```python
import torch

def _softmax(x, axis=-1):
    return torch.softmax(x, dim=axis)

def _gelu(x):
    return torch.nn.functional.gelu(x, approximate='tanh')

def _silu(x):
    return torch.nn.functional.silu(x)

def _sigmoid(x):
    return torch.sigmoid(x)

def _layernorm(x, axis=-1, eps=1e-05):
    m = x.mean(dim=axis, keepdim=True)
    v = x.var(dim=axis, keepdim=True, unbiased=False)
    return (x - m) / torch.sqrt(v + eps)

def _scatter_add(tgt, idx, src, axis=0):
    return tgt.clone().index_add_(axis, idx, src)

def _segment_sum(src, seg, n):
    out = torch.zeros((n,) + src.shape[1:], dtype=src.dtype)
    return out.index_add_(0, seg, src)

def _pad(x, pw):
    flat = tuple((v for pair in reversed(pw) for v in pair))
    return torch.nn.functional.pad(x, flat)
kernel_name = 'adaLN_cond__mha_block__dense_activation_relu__prompt'

def setup_inputs():

    _w = lambda a: (lambda t: t.to(torch.bfloat16) if t.is_floating_point() else t)(torch.as_tensor(a))

    def _A_setup():
        B, S, D, H = (1, 2048, 512, 32)
        return {'x': _w((lambda *s: torch.randn(*s, dtype=torch.bfloat16) * 0.05)(B, S, D)), 'wqkv': _w((lambda *s: torch.randn(*s, dtype=torch.bfloat16) * 0.05)(D, 3 * D)), 'wo': _w((lambda *s: torch.randn(*s, dtype=torch.bfloat16) * 0.05)(D, D))}
    _A_in = _A_setup()

    def _B_setup():
        B, S, D, Dff = (1, 2048, 512, 1792)
        return {'x': _w((lambda *s: torch.randn(*s, dtype=torch.bfloat16) * 0.05)(B, S, D)), 'w1': _w((lambda *s: torch.randn(*s, dtype=torch.bfloat16) * 0.05)(D, Dff)), 'w2': _w((lambda *s: torch.randn(*s, dtype=torch.bfloat16) * 0.05)(Dff, D))}
    _B_in = _B_setup()
    return {'A_x': _A_in['x'], 'A_wqkv': _A_in['wqkv'], 'A_wo': _A_in['wo'], 'B_x': _B_in['x'], 'B_w1': _B_in['w1'], 'B_w2': _B_in['w2'], 'c': _w((lambda *s: torch.randn(*s, dtype=torch.bfloat16) * 0.1)(1, 512) * 8.0), 'w_mod': _w((lambda *s: torch.randn(*s, dtype=torch.bfloat16) * 0.1)(512, 6 * 512) * 512 ** (-0.5) * 8.0)}

def reference(A_x, A_wqkv, A_wo, B_x, B_w1, B_w2, c, w_mod):

    def _A_ref(x, wqkv, wo):
        B, S, D = x.shape
        H = 32
        Dh = D // H
        qkv = (lambda x, *d: x.permute(*d))((x @ wqkv).reshape(B, S, 3, H, Dh), 2, 0, 3, 1, 4)
        q, k, v = (qkv[0], qkv[1], qkv[2])
        scores = torch.einsum('bhqd,bhkd->bhqk', q, k) * Dh ** (-0.5)
        p = _softmax(scores, axis=-1)
        o = torch.einsum('bhqk,bhkd->bhqd', p, v)
        return (lambda x, *d: x.permute(*d))(o, 0, 2, 1, 3).reshape(B, S, D) @ wo

    def _B_ref(x, w1, w2):
        h = torch.einsum('bsd,df->bsf', x, w1)
        zero = torch.zeros_like(h)
        h = torch.maximum(h, zero)
        return torch.einsum('bsf,fd->bsd', h, w2)
    x = A_x
    mod = (_silu(c) @ w_mod).reshape(c.shape[0], 6, 1, -1)
    sa, ca, ga, sb, cb, gb = (mod[:, 0].clone(), mod[:, 1].clone(), mod[:, 2].clone(), mod[:, 3].clone(), mod[:, 4].clone(), mod[:, 5].clone())
    h = _layernorm(x, axis=-1) * (1 + ca) + sa
    x = x + ga * _A_ref(h, A_wqkv, A_wo)
    h = _layernorm(x, axis=-1) * (1 + cb) + sb
    x = x + gb * _B_ref(h, B_w1, B_w2)
    return x
```

```python
import sys, subprocess, struct
sys.path.insert(0, "cdna_kernels")
import numpy as np

def kern(name, body, nvgpr=512, nsgpr=64, lds=0):
    acc = min(256, nvgpr)
    return f""".amdgcn_target "amdgcn-amd-amdhsa--gfx950"
.text
.globl {name}
.p2align 8
.type {name},@function
{name}:
{body}
s_endpgm
.section .rodata,"a"
.p2align 6
.amdhsa_kernel {name}
  .amdhsa_next_free_vgpr {nvgpr}
  .amdhsa_next_free_sgpr {nsgpr}
  .amdhsa_accum_offset {acc}
  .amdhsa_group_segment_fixed_size 0
  .amdhsa_kernarg_size 16
  .amdhsa_user_sgpr_count 2
  .amdhsa_user_sgpr_kernarg_segment_ptr 1
  .amdhsa_system_sgpr_workgroup_id_x 1
.end_amdhsa_kernel
"""

PRO = """
    s_memrealtime s[30:31]
    s_memtime s[32:33]
    s_load_dwordx4 s[4:7], s[0:1], 0
    v_lshrrev_b32 v1, 6, v0
    v_and_b32 v2, 63, v0
    v_readfirstlane_b32 s20, v1
    v_lshlrev_b32 v2, 4, v2        ; lane*16
    s_waitcnt lgkmcnt(0)
    s_mov_b32 s8, s4
    s_mov_b32 s9, s5
    s_mov_b32 s10, 0x4000000
    s_mov_b32 s11, 0x00020000
    s_mov_b32 s12, s6
    s_mov_b32 s13, s7
    s_mov_b32 s14, 0x100000
    s_mov_b32 s15, 0x00020000
"""
EPI = """
    s_memtime s[36:37]
    s_memrealtime s[34:35]
    s_waitcnt lgkmcnt(0)
    s_sub_u32 s36, s36, s32
    s_lshl_b32 s3, s2, 4
    s_add_u32 s3, s3, s20
    s_lshl_b32 s3, s3, 4
    v_mov_b32 v1, s3
    v_mov_b32 v4, s30
    v_mov_b32 v5, s34
    v_mov_b32 v6, s36
    v_mov_b32 v7, 0
    buffer_store_dwordx4 v[4:7], v1, s[12:15], 0 offen
    s_waitcnt vmcnt(0)
"""

def mapping(xcd_aware, ntb, ncb, tb_per_xcd):
    if xcd_aware:
        return f"""
    s_and_b32 s23, s2, 7
    s_lshr_b32 s24, s2, 3
    s_and_b32 s25, s24, {tb_per_xcd-1}
    s_mul_i32 s21, s23, {tb_per_xcd}
    s_add_u32 s21, s21, s25
    s_lshr_b32 s22, s24, {tb_per_xcd.bit_length()-1}
"""
    else:
        return f"""
    s_and_b32 s22, s2, {ncb-1}
    s_lshr_b32 s21, s2, {ncb.bit_length()-1}
"""

def direct(nA_kb, nB_kb, nwaves, depth, xcd_aware, ntb, ncb, tbx, flags=""):
    a = nA_kb // nwaves; b = nB_kb // nwaves
    s = PRO + mapping(xcd_aware, ntb, ncb, tbx)
    s += f"""
    s_mul_i32 s26, s21, {nA_kb*1024}
    s_mul_i32 s27, s20, {a*1024}
    s_add_u32 s26, s26, s27
    s_mul_i32 s28, s22, {nB_kb*1024}
    s_mul_i32 s27, s20, {b*1024}
    s_add_u32 s28, s28, s27
    s_add_u32 s28, s28, 0x2000000
"""
    seq = []
    ia = ib = 0
    while ia < a or ib < b:
        if ia < a: seq.append(("s26", ia)); ia += 1
        if ib < b: seq.append(("s28", ib)); ib += 1
    nreg = depth
    for i, (sreg, idx) in enumerate(seq):
        r = 8 + 4 * (i % nreg)
        if i >= nreg:
            s += f"    s_waitcnt vmcnt({nreg-1})\n    v_xor_b32 v3, v3, v{r}\n"
        off = (idx % 4) * 1024
        if idx % 4 == 0 and idx > 0:
            s += f"    s_add_u32 {sreg}, {sreg}, 4096\n"
        s += f"    buffer_load_dwordx4 v[{r}:{r+3}], v2, s[8:11], {sreg} offen offset:{off} {flags}\n"
    s += "    s_waitcnt vmcnt(0)\n" + EPI
    return s

def dma(nA_kb, nB_kb, nwaves, depth, xcd_aware, ntb, ncb, tbx, ldskb):
    a = nA_kb // nwaves; b = nB_kb // nwaves
    s = PRO + mapping(xcd_aware, ntb, ncb, tbx)
    s += f"""
    s_mul_i32 s26, s21, {nA_kb*1024}
    s_mul_i32 s27, s20, {a*1024}
    s_add_u32 s26, s26, s27
    s_mul_i32 s28, s22, {nB_kb*1024}
    s_mul_i32 s27, s20, {b*1024}
    s_add_u32 s28, s28, s27
    s_add_u32 s28, s28, 0x2000000
    s_mul_i32 s29, s20, {ldskb//nwaves*1024}
"""
    seq = []
    ia = ib = 0
    while ia < a or ib < b:
        if ia < a: seq.append(("s26", ia)); ia += 1
        if ib < b: seq.append(("s28", ib)); ib += 1
    per = ldskb // nwaves
    for i, (sreg, idx) in enumerate(seq):
        if i >= depth:
            s += f"    s_waitcnt vmcnt({depth-1})\n"
        s += f"    s_add_u32 m0, s29, {(i % per)*1024}\n"
        if idx > 0:
            s += f"    s_add_u32 {sreg}, {sreg}, 1024\n"
        else:
            s += "    s_nop 0\n"
        s += f"    buffer_load_dwordx4 v2, s[8:11], {sreg} offen lds\n"
    s += "    s_waitcnt vmcnt(0)\n" + EPI
    return s

def fill_kernel():
    s = PRO
    s += """
    v_lshlrev_b32 v2, 4, v0
    s_mul_i32 s26, s2, 0x8000
    v_mov_b32 v4, 1.0
    v_mov_b32 v5, 1.0
    v_mov_b32 v6, 1.0
    v_mov_b32 v7, 1.0
"""
    for i in range(8):
        s += f"    buffer_store_dwordx4 v[4:7], v2, s[8:11], s26 offen\n    s_add_u32 s26, s26, 4096\n"
    s += "    s_mul_i32 s26, s2, 0x2000\n    s_add_u32 s26, s26, 0x2000000\n"
    for i in range(2):
        s += f"    buffer_store_dwordx4 v[4:7], v2, s[8:11], s26 offen\n    s_add_u32 s26, s26, 4096\n"
    s += "    s_waitcnt vmcnt(0)\n"
    return s

tests = {
    "k5_direct48_x": (direct(224, 224, 4, 48, True, 32, 8, 4), 256, 0, 256),
    "k5_direct48_n": (direct(224, 224, 4, 48, False, 32, 8, 4), 256, 0, 256),
    "k5_direct24_x": (direct(224, 224, 4, 24, True, 32, 8, 4), 256, 0, 256),
    "k5_direct60_x": (direct(224, 224, 4, 60, True, 32, 8, 4), 256, 0, 256),
    "k5_direct8w_x": (direct(224, 224, 8, 48, True, 32, 8, 4), 512, 0, 256),
    "k5_direct16w_x": (direct(224, 224, 16, 24, True, 32, 8, 4), 1024, 0, 128),
    "k5_dma32_x": (dma(224, 224, 4, 32, True, 32, 8, 4, 128), 256, 131072, 64),
    "k5_dma8w_x": (dma(224, 224, 8, 16, True, 32, 8, 4, 128), 512, 131072, 64),
    "k3_direct_x": (direct(64, 64, 4, 32, True, 32, 8, 4), 256, 0, 256),
    "k3_direct_n": (direct(64, 64, 4, 32, False, 32, 8, 4), 256, 0, 256),
    "k3_dma_x": (dma(64, 64, 4, 32, True, 32, 8, 4, 128), 256, 131072, 64),
    "k1_direct_x": (direct(64, 192, 4, 60, True, 32, 8, 4), 256, 0, 256),
    "k4_direct_x": (direct(128, 112, 4, 60, True, 16, 16, 2), 256, 0, 256),
    "empty": (PRO + EPI, 256, 0, 64),
}

def build():
    from cdna_launch import with_harness_metadata
    allk = dict(tests); allk["fill"] = (fill_kernel(), 256, 0, 64)
    for name, (body, thr, lds, nv) in allk.items():
        kn = f"mb_{name}_kernel"
        asm = f"; @launch grid=(1,1,1) block=({thr},1,1) lds=0\n" + kern(kn, body, nvgpr=nv)
        asm = with_harness_metadata(asm, kn, 2)
        open(f"mb/{name}.s", "w").write(asm)
        r = subprocess.run(["clang", "-x", "assembler", "-target", "amdgcn-amd-amdhsa", "-mcpu=gfx950", f"mb/{name}.s", "-o", f"mb/{name}.co"], capture_output=True, text=True)
        assert r.returncode == 0, r.stderr

def run():
    from cdna_launch import AsmKernel, DeviceBuffer, _hip, _check
    src = DeviceBuffer(64 << 20)
    out = DeviceBuffer(1 << 20)
    fill = AsmKernel("fill.co", "mb_fill_kernel")
    ka = struct.pack("<QQ", src.ptr, out.ptr)
    for name, (body, thr, lds, nv) in tests.items():
        k = AsmKernel(f"mb/{name}.co", f"mb_{name}_kernel")
        spans = []; cyc = []; cmax = []
        for rep in range(12):
            fill.launch((256, 1, 1), (256, 1, 1), ka)
            k.launch((256, 1, 1), (thr, 1, 1), ka, lds)
            _check(_hip.hipDeviceSynchronize())
            o = out.to_numpy(np.uint32, (256 * 16 * 4,)).reshape(256, 16, 4)[:, : thr // 64].astype(np.int64)
            spans.append((o[:, :, 1].max() - o[:, :, 0].min()) * 10)
            cyc.append(o[:, :, 2].mean()); cmax.append(o[:, :, 2].max())
        print(f"{name:18s} span ns: med {np.median(spans[2:]):.0f} min {min(spans[2:])}  wave cycles mean {np.median(cyc[2:]):.0f} max {np.median(cmax[2:]):.0f}")

if __name__ == "__main__":
    build()
    if sys.argv[1] == "run":
        run()
```

```python
import re

REG_RE = re.compile(r"^(-|\|)?(abs\()?([vas])(\d+)\)?\|?$")
RNG_RE = re.compile(r"^(-)?([vas])\[(\d+):(\d+)\]$")

TRANS = ("v_exp_f32", "v_log_f32", "v_rcp_f32", "v_rsq_f32", "v_sqrt_f32", "v_sin_f32", "v_cos_f32", "v_rcp_iflag_f32")


def parse_regs(op):
    op = op.strip()
    m = REG_RE.match(op)
    if m:
        return {(m.group(3), int(m.group(4)))}
    m = RNG_RE.match(op)
    if m:
        return {(m.group(2), i) for i in range(int(m.group(3)), int(m.group(4)) + 1)}
    if op == "vcc":
        return {("s", 106), ("s", 107)}
    if op == "exec":
        return {("s", 126), ("s", 127)}
    if op == "m0":
        return {("s", 124)}
    return set()


def split_ops(rest):
    ops, depth, cur = [], 0, ""
    for ch in rest:
        if ch in "[(":
            depth += 1
        if ch in "])":
            depth -= 1
        if ch == "," and depth == 0:
            ops.append(cur.strip())
            cur = ""
        else:
            cur += ch
    if cur.strip():
        ops.append(cur.strip())
    return ops


class Ins:
    def __init__(self, text):
        self.text = text
        t = text.split(";")[0].strip()
        parts = t.split(None, 1)
        self.mn = parts[0]
        rest = parts[1] if len(parts) > 1 else ""
        ops = split_ops(rest)
        self.mods = ""
        if ops:
            last = ops[-1].split()
            if len(last) > 1 and not self.mn.startswith("s_waitcnt"):
                ops[-1] = last[0]
                self.mods = " ".join(last[1:])
        self.ops = ops
        mn = self.mn
        self.w = set(); self.r = set()
        self.kind = "other"
        self.A = self.B = self.C = set()
        self.passes = 0
        R = [parse_regs(o) for o in ops]
        if mn.startswith("v_mfma"):
            self.kind = "mfma"
            self.w = R[0]; self.A = R[1]; self.B = R[2]; self.C = R[3]
            self.r = R[1] | R[2] | R[3]
            self.passes = 8 if "32x32" in mn else 4
        elif mn.startswith("v_"):
            self.kind = "valu"
            self.w = set(R[0])
            for x in R[1:]:
                self.r |= x
            if mn.startswith("v_permlane"):
                self.w |= R[1]; self.r |= R[0]
            if mn.startswith(("v_fmac", "v_dot2c", "v_pk_fmac")) or "UNUSED_PRESERVE" in self.mods or "dpp" in mn or "row_" in self.mods:
                self.r |= R[0]
            if mn.startswith(("v_add_co", "v_sub_co", "v_addc_co", "v_subb_co")):
                self.w |= R[1]; self.r -= R[1]
                if mn.startswith(("v_addc", "v_subb")):
                    self.r |= R[-1]
            if mn.startswith("v_cmpx"):
                self.w |= parse_regs("exec")
        elif mn.startswith("ds_read") or mn.startswith("ds_bpermute") or mn.startswith("ds_swizzle"):
            self.kind = "ds"; self.w = R[0]
            for x in R[1:]:
                self.r |= x
        elif mn.startswith("ds_"):
            self.kind = "ds"
            for x in R:
                self.r |= x
        elif mn.startswith(("buffer_load", "global_load")):
            self.kind = "vmem"
            if "lds" in self.mods.split() or "_lds_" in mn:
                for x in R:
                    self.r |= x
                self.r |= parse_regs("m0")
                self.dma = True
            else:
                self.w = R[0]
                for x in R[1:]:
                    self.r |= x
        elif mn.startswith(("buffer_store", "global_store", "buffer_atomic", "global_atomic")):
            self.kind = "vmem"
            for x in R:
                self.r |= x
            self.store = True
            self.data = R[0] if mn.startswith("buffer") else R[1]
            if "atomic" in mn and "sc0" in self.mods.split():
                self.w = set(R[0])
        elif mn.startswith(("buffer_wbl2", "buffer_inv")):
            self.kind = "vmem"
        elif mn.startswith(("s_load", "s_memtime", "s_memrealtime", "s_buffer_load")):
            self.kind = "smem"; self.w = R[0]
            for x in R[1:]:
                self.r |= x
        elif mn.startswith("s_"):
            self.kind = "salu"
            if mn.startswith(("s_cmp", "s_cbranch", "s_branch", "s_waitcnt", "s_nop", "s_barrier", "s_endpgm", "s_setprio", "s_sleep", "s_bitcmp")):
                for x in R:
                    self.r |= x
            else:
                self.w = set(R[0]) if R else set()
                for x in R[1:]:
                    self.r |= x
                if "saveexec" in mn:
                    self.w |= parse_regs("exec")
        self.trans = mn.replace("_e32", "").replace("_e64", "") in TRANS
        self.slots = 1
        if mn == "s_nop":
            self.slots = int(ops[0], 0) + 1
        self.dpp = ("row_" in self.mods) or ("quad_perm" in self.mods) or mn.endswith("_dpp")
        self.sdwa = mn.endswith("_sdwa")


def vg(s):
    return {x for x in s if x[0] in "va"}


def sg(s):
    return {x for x in s if x[0] == "s"}


def check_trace(lines, name=""):
    ins = [Ins(l) for l in lines]
    errs = []
    for i, c in enumerate(ins):
        dist = 0
        for j in range(i - 1, max(-1, i - 24), -1):
            p = ins[j]
            need = 0
            why = ""
            if p.kind == "valu":
                wv = vg(p.w); ws = sg(p.w)
                if c.kind == "mfma" and wv & c.r:
                    need, why = 2, "valu->mfma"
                if p.trans and c.kind == "valu" and not c.trans and wv & (c.r):
                    need, why = max(need, 1), "trans->valu"
                if p.sdwa and c.kind in ("valu", "mfma") and wv & (c.r | c.w):
                    need, why = max(need, 1), "sdwa->valu"
                if c.kind == "valu" and c.mn.startswith(("v_readlane", "v_readfirstlane")) and wv & c.r:
                    need, why = max(need, 1), "valu->readlane"
                if c.kind == "valu" and c.mn.startswith("v_permlane") and wv & c.r:
                    need, why = max(need, 2), "valu->permlane"
                if c.kind == "valu" and c.dpp and wv & c.r:
                    need, why = max(need, 2), "valu->dpp"
                if ws and c.kind == "vmem" and ws & c.r:
                    need, why = max(need, 5), "valu sgpr->vmem"
                if ws and c.kind == "valu" and ws & c.r:
                    need, why = max(need, 2), "valu sgpr->valu"
                    if c.mn.startswith(("v_readlane", "v_writelane")):
                        need = 4
                if ws and c.kind == "valu" and c.mn.startswith("v_cndmask") and len(c.ops) == 3 and ws & parse_regs("vcc"):
                    need, why = max(need, 2), "vcc->cndmask"
                if ws & parse_regs("exec") and c.kind == "mfma":
                    need, why = max(need, 4), "valu exec->mfma"
            if p.kind == "mfma":
                big = 12 if p.passes == 8 else 8
                if c.kind == "mfma":
                    if p.w & (c.A | c.B):
                        need, why = big, "mfma D->mfma AB"
                    elif p.w & c.C:
                        if not (p.w == c.C and p.passes == c.passes):
                            need, why = (10 if p.passes == 8 else 6), "mfma D->mfma C overlap"
                    elif p.w & c.w:
                        need, why = (10 if p.passes == 8 else 6), "mfma D->mfma D waw"
                elif c.kind in ("valu", "vmem", "ds"):
                    if p.w & (c.r | c.w):
                        need, why = big, "mfma D->valu/mem"
                    if c.kind == "valu" and p.C & c.w:
                        need, why = max(need, 7 if p.passes == 8 else 3), "mfma C war"
            if p.kind == "salu" and ("s", 124) in p.w and c.kind == "vmem" and ("s", 124) in c.r:
                need, why = max(need, 1), "m0->dma"
            if p.kind == "vmem" and getattr(p, "store", False) and len(p.data) >= 3 and c.kind in ("valu", "mfma") and p.data & c.w:
                need, why = max(need, 2), "store data war"
            if need > dist:
                errs.append(f"[{name}] hazard {why}: need {need} have {dist}:\n    {p.text}\n    {c.text}")
            dist += p.slots
    vm = []
    lg = []
    for c in ins:
        if c.mn == "s_waitcnt":
            m = re.search(r"vmcnt\((\d+)\)", c.text)
            if m:
                n = int(m.group(1))
                assert n <= 63
                while len(vm) > n:
                    vm.pop(0)
            m = re.search(r"lgkmcnt\((\d+)\)", c.text)
            if m:
                n = int(m.group(1))
                assert n <= 15
                if n > 0 and any(k == "smem" for _, _, k in lg):
                    errs.append(f"[{name}] counted lgkmcnt with smem outstanding: {c.text}")
                while len(lg) > n:
                    lg.pop(0)
            continue
        touched = c.r | c.w
        for d, t in vm:
            if d & touched:
                errs.append(f"[{name}] vmcnt: unresolved load\n    {t}\n    {c.text}")
        for d, t, k in lg:
            if d & touched:
                errs.append(f"[{name}] lgkmcnt: unresolved load\n    {t}\n    {c.text}")
        if c.kind == "vmem":
            vm.append((set(c.w), c.text))
        elif c.kind in ("ds", "smem"):
            lg.append((set(c.w), c.text, c.kind))
    return errs


class Kern:
    def __init__(self, name, nvgpr, nagpr=0, nsgpr=100):
        self.name = name
        self.lines = []
        self.nvgpr = nvgpr
        self.nagpr = nagpr
        self.nsgpr = nsgpr

    def __call__(self, text):
        for l in text.strip("\n").split("\n"):
            l = l.strip()
            if l:
                self.lines.append(l)

    def label(self, l):
        self.lines.append(f"{l}:")

    def text(self):
        acc = (self.nvgpr + 3) // 4 * 4
        total = acc + self.nagpr if self.nagpr else self.nvgpr
        body = "\n".join(("" if l.endswith(":") else "    ") + l for l in self.lines)
        code = f""".text
.globl {self.name}
.p2align 8
.type {self.name},@function
{self.name}:
{body}
"""
        kd = f""".p2align 6
.amdhsa_kernel {self.name}
  .amdhsa_next_free_vgpr {total}
  .amdhsa_next_free_sgpr {self.nsgpr}
  .amdhsa_accum_offset {acc}
  .amdhsa_group_segment_fixed_size 0
  .amdhsa_kernarg_size 88
  .amdhsa_user_sgpr_count 2
  .amdhsa_user_sgpr_kernarg_segment_ptr 1
  .amdhsa_system_sgpr_workgroup_id_x 1
.end_amdhsa_kernel
"""
        return code, kd

    def traces(self, maxloop=2, maxpaths=64):
        lines = [l for l in self.lines if not l.startswith(";") and not l.startswith(".")]
        labels = {l[:-1]: i for i, l in enumerate(lines) if l.endswith(":")}
        paths = []
        stack = [(0, [], {})]
        while stack and len(paths) < maxpaths:
            pc, tr, cnt = stack.pop()
            tr = list(tr)
            while True:
                if pc >= len(lines):
                    paths.append(tr); break
                l = lines[pc]
                if l.endswith(":"):
                    pc += 1; continue
                tr.append(l)
                mn = l.split()[0]
                if mn == "s_endpgm":
                    paths.append(tr); break
                if mn == "s_branch":
                    tgt = labels[l.split()[1]]
                    if tgt <= pc:
                        c = cnt.get(pc, 0)
                        if c >= maxloop - 1:
                            paths.append(tr); break
                        cnt = dict(cnt); cnt[pc] = c + 1
                    pc = tgt; continue
                if mn.startswith("s_cbranch"):
                    tgt = labels[l.split()[1]]
                    if tgt <= pc:
                        c = cnt.get(pc, 0)
                        if c < maxloop - 1:
                            cnt = dict(cnt); cnt[pc] = c + 1
                            pc = tgt; continue
                        pc += 1; continue
                    stack.append((tgt, tr, dict(cnt)))
                    pc += 1; continue
                pc += 1
        return paths

    def check(self):
        errs = []
        seen = set()
        for tr in self.traces():
            for e in check_trace(tr, self.name):
                if e not in seen:
                    seen.add(e); errs.append(e)
        for l in self.lines:
            for m in re.finditer(r"\b([vas])(\d+)\b|\b([vas])\[(\d+):(\d+)\]", l.split(";")[0]):
                k = m.group(1) or m.group(3)
                hi = int(m.group(2)) if m.group(2) else int(m.group(5))
                lim = {"v": self.nvgpr, "a": self.nagpr, "s": self.nsgpr}[k]
                if hi >= lim:
                    errs.append(f"[{self.name}] reg out of range: {l}")
        return errs
```

```python
import sys
sys.path.insert(0, "gen")
from asmlib import Kern

NAME = "adaLN_cond__mha_block__dense_activation_relu__prompt"
OUT = f"cdna_kernels/{NAME}.s"

MB = 1 << 20
OFF_MOD = 0x0
OFF_UT = 0x4000
OFF_R2 = 0x8000
OFF_XHAT = 0x10000
OFF_WQKV = OFF_XHAT + 2 * MB
OFF_Q = OFF_WQKV + 3 * MB // 2
OFF_KV = OFF_Q + 2 * MB
OFF_O = OFF_KV + 4 * MB
OFF_WO = OFF_O + 2 * MB
OFF_X2 = OFF_WO + MB // 2
OFF_X2S = OFF_X2 + 2 * MB
OFF_ST2 = OFF_X2S + 2 * MB
OFF_W1 = OFF_ST2 + MB // 4
OFF_H = OFF_W1 + 7 * MB // 4
OFF_W2 = OFF_H + 7 * MB
OFF_FLAG = OFF_W2 + 7 * MB // 4
WS_USED = OFF_FLAG + MB // 4
OFF_MODB = 0x3000

import os
DIAG = int(os.environ.get("DIAG", "0"))
OFF_DIAG = (WS_USED + 0xfffff) // MB * MB
if DIAG:
    WS_USED = OFF_DIAG + 8 * MB
QSCALE = 0x3eb8aa3b

P_X, P_WQKV, P_WO, P_BX, P_W1, P_W2, P_C, P_WMOD, P_OUT, P_WS = 4, 6, 8, 10, 12, 14, 16, 18, 20, 22
S_WS = 24
S_W = 3


def srd(k, d, p, size):
    k(f"""
    s_mov_b32 s{d}, s{p}
    s_mov_b32 s{d+1}, s{p+1}
    s_mov_b32 s{d+2}, {size:#x}
    s_mov_b32 s{d+3}, 0x00020000
    """)


def stamp(k, i):
    if DIAG:
        k(f"s_waitcnt lgkmcnt(0)")
        k(f"s_memtime s[{64+2*i}:{65+2*i}]")
        k(f"s_waitcnt lgkmcnt(0)")


def endpgm(k):
    if DIAG:
        kid = int(k.name[1])
        k(f"""
        s_waitcnt vmcnt(0) lgkmcnt(0)
        s_memtime s[88:89]
        s_memrealtime s[90:91]
        s_waitcnt lgkmcnt(0)
        s_mov_b64 exec, 1
        s_lshl_b32 s92, s2, 4
        s_add_u32 s92, s92, s3
        s_lshl_b32 s92, s92, 6
        s_add_u32 s92, s92, {OFF_DIAG + kid * MB}
        v_mov_b32 v0, 0
        """)
        regs = [62, 90, 60, 88] + [64 + 2 * i for i in range(12)]
        for q in range(4):
            for i in range(4):
                k(f"v_mov_b32 v{4+i}, s{regs[4*q+i]}")
            k(f"buffer_store_dwordx4 v[4:7], v0, s[24:27], s92 offen offset:{16*q}")
            k("s_nop 1")
    k("s_endpgm")


def prologue(k, nwg):
    if DIAG:
        k("s_memtime s[60:61]")
        k("s_memrealtime s[62:63]")
        for i in range(12):
            k(f"s_mov_b32 s{64+2*i}, 0")
    k(f"""
    s_cmp_ge_u32 s2, {nwg}
    s_cbranch_scc1 L_end_{k.name}
    s_load_dwordx16 s[4:19], s[0:1], 0
    s_load_dwordx2 s[20:21], s[0:1], 64
    s_load_dwordx2 s[22:23], s[0:1], 80
    v_lshrrev_b32 v2, 6, v0
    v_and_b32 v1, 63, v0
    v_readfirstlane_b32 s3, v2
    """)


def prologue_wait(k):
    k("s_waitcnt lgkmcnt(0)")
    srd(k, S_WS, P_WS, WS_USED)
    stamp(k, 0)


def epilogue(k):
    endpgm(k)
    k.label(f"L_end_{k.name}")
    k("s_endpgm")


def bf16_round(k, d, s):
    k(f"v_cvt_pk_bf16_f32 v{d}, v{s}, v{s}")
    k(f"v_and_b32 v{d}, 0xffff0000, v{d}")


def allreduce64(k, regs, tmp):
    for ror in (1, 2, 4, 8):
        for r in regs:
            k(f"v_add_f32_dpp v{r}, v{r}, v{r} row_ror:{ror} row_mask:0xf bank_mask:0xf")
        if len(regs) < 3:
            k(f"s_nop {2 - len(regs)}")
    for op in ("v_permlane16_swap_b32", "v_permlane32_swap_b32"):
        for r, t in zip(regs, tmp):
            k(f"v_mov_b32 v{t}, v{r}")
        k("s_nop 1")
        for r, t in zip(regs, tmp):
            k(f"{op} v{t}, v{r}")
        for r, t in zip(regs, tmp):
            k(f"v_add_f32 v{r}, v{t}, v{r}")


def role_mod(k, sj):
    srd(k, 28, P_WMOD, 512 * 3072 * 2)
    srd(k, 32, P_C, 1024)
    k(f"""
    v_lshlrev_b32 v2, 1, v0
    buffer_load_ushort v4, v2, s[32:35], 0 offen
    v_lshrrev_b32 v3, 2, v0
    v_and_b32 v5, 3, v0
    v_mul_u32_u24 v6, 6144, v3
    v_lshl_add_u32 v6, v5, 4, v6
    s_lshl_b32 s40, s{sj}, 6
    s_add_u32 s41, s40, {128*6144}
    s_add_u32 s42, s40, {256*6144}
    s_add_u32 s43, s40, {384*6144}
    buffer_load_dwordx4 v[8:11], v6, s[28:31], s40 offen
    buffer_load_dwordx4 v[12:15], v6, s[28:31], s41 offen
    buffer_load_dwordx4 v[16:19], v6, s[28:31], s42 offen
    buffer_load_dwordx4 v[20:23], v6, s[28:31], s43 offen
    s_waitcnt vmcnt(4)
    v_lshlrev_b32 v4, 16, v4
    v_mul_f32 v7, 0xbfb8aa3b, v4
    v_exp_f32 v7, v7
    s_nop 0
    v_add_f32 v7, 1.0, v7
    v_rcp_f32 v7, v7
    s_nop 0
    v_mul_f32 v7, v4, v7
    """)
    bf16_round(k, 7, 7)
    k("""
    v_lshlrev_b32 v2, 2, v0
    ds_write_b32 v2, v7
    s_waitcnt lgkmcnt(0)
    s_barrier
    v_lshlrev_b32 v2, 2, v3
    ds_read_b32 v24, v2
    ds_read_b32 v25, v2 offset:512
    ds_read_b32 v26, v2 offset:1024
    ds_read_b32 v27, v2 offset:1536
    """)
    for p in range(4):
        k(f"s_waitcnt vmcnt({3-p}) lgkmcnt({3-p})")
        for i in range(4):
            src = 8 + 4 * p + i
            k(f"v_lshlrev_b32 v40, 16, v{src}")
            k(f"v_and_b32 v41, 0xffff0000, v{src}")
            op = "v_mul_f32" if p == 0 else "v_fmac_f32"
            k(f"{op} v{32+2*i}, v{24+p}, v40")
            k(f"{op} v{33+2*i}, v{24+p}, v41")
    k("s_nop 1")
    for ror in (4, 8):
        for r in range(32, 40):
            k(f"v_add_f32_dpp v{r}, v{r}, v{r} row_ror:{ror} row_mask:0xf bank_mask:0xf")
    k("""
    v_lshrrev_b32 v2, 4, v0
    v_lshlrev_b32 v2, 7, v2
    v_lshl_add_u32 v2, v5, 5, v2
    ds_write_b128 v2, v[32:35] offset:2048
    ds_write_b128 v2, v[36:39] offset:2064
    s_waitcnt lgkmcnt(0)
    s_barrier
    s_cmp_lg_u32 s3, 0
    """)
    k(f"s_cbranch_scc1 L_end_{k.name}")
    k("""
    v_and_b32 v3, 31, v1
    v_lshrrev_b32 v2, 5, v1
    v_lshlrev_b32 v2, 11, v2
    v_lshl_add_u32 v2, v3, 2, v2
    """)
    for i in range(16):
        k(f"ds_read_b32 v{8+i}, v2 offset:{2048+128*i}")
        if i == 7:
            k("s_waitcnt lgkmcnt(0)")
    k("s_waitcnt lgkmcnt(0)")
    n = 16
    while n > 1:
        for i in range(n // 2):
            k(f"v_add_f32 v{8+i}, v{8+i}, v{8+i+n//2}")
        n //= 2
    k("""
    v_mov_b32 v9, v8
    s_nop 1
    v_permlane32_swap_b32 v9, v8
    v_add_f32 v8, v9, v8
    """)
    bf16_round(k, 8, 8)
    k(f"""
    s_lshr_b32 s40, s{sj}, 4
    s_cmp_eq_u32 s40, 1
    s_cselect_b32 s41, 1.0, 0
    s_cmp_eq_u32 s40, 4
    s_cselect_b32 s41, 1.0, s41
    v_add_f32 v8, s41, v8
    """)
    bf16_round(k, 8, 8)
    k(f"""
    v_lshlrev_b32 v3, 2, v3
    s_lshl_b32 s40, s{sj}, 7
    s_add_u32 s40, s40, {OFF_MOD}
    buffer_store_dword v8, v3, s[24:27], s40 offen
    """)
    k(f"""
    s_lshr_b32 s40, s{sj}, 4
    s_sub_u32 s40, 4, s40
    s_cmp_gt_u32 s40, 1
    s_cbranch_scc1 L_k0_mod_done
    s_lshl_b32 s40, s40, 10
    s_and_b32 s41, s{sj}, 15
    s_lshl_b32 s41, s41, 6
    s_add_u32 s40, s40, s41
    s_add_u32 s40, s40, {OFF_MODB}
    v_and_b32 v3, 31, v1
    v_lshrrev_b32 v4, 4, v3
    v_lshlrev_b32 v4, 5, v4
    v_bfe_u32 v5, v3, 2, 1
    v_lshl_add_u32 v4, v5, 4, v4
    v_bfe_u32 v5, v3, 3, 1
    v_lshl_add_u32 v4, v5, 3, v4
    v_and_b32 v5, 3, v3
    v_lshl_add_u32 v4, v5, 1, v4
    buffer_store_short_d16_hi v8, v4, s[24:27], s40 offen
    """)
    k.label("L_k0_mod_done")
    endpgm(k)


def ln_stats_finish(k, s, q, m_out, r_out, t0, std_out=None):
    k(f"""
    v_mul_f32 v{s}, 0x3b000000, v{s}
    v_mul_f32 v{q}, 0x3b000000, v{q}
    v_fma_f32 v{q}, -v{s}, v{s}, v{q}
    v_max_f32 v{q}, 0, v{q}
    """)
    bf16_round(k, m_out, s)
    bf16_round(k, q, q)
    k(f"v_add_f32 v{q}, 0x3727c5ac, v{q}")
    bf16_round(k, q, q)
    k(f"v_sqrt_f32 v{q}, v{q}")
    k("s_nop 0")
    d = std_out if std_out is not None else t0
    bf16_round(k, d, q)
    k(f"v_rcp_f32 v{r_out}, v{d}")
    k("s_nop 0")


def role_ln(k, si):
    srd(k, 28, P_X, 2048 * 1024)
    k(f"""
    s_lshl_b32 s40, s{si}, 3
    s_add_u32 s40, s40, s3
    s_lshl_b32 s40, s40, 8
    s_add_u32 s40, s40, {OFF_FLAG}
    v_lshlrev_b32 v2, 2, v1
    v_mov_b32 v3, 0
    buffer_store_dword v3, v2, s[24:27], s40 offen
    """)
    k(f"""
    v_lshlrev_b32 v2, 4, v1
    s_lshl_b32 s40, s{si}, 14
    s_lshl_b32 s41, s3, 11
    s_add_u32 s40, s40, s41
    buffer_load_dwordx4 v[8:11], v2, s[28:31], s40 offen
    buffer_load_dwordx4 v[12:15], v2, s[28:31], s40 offen offset:1024
    s_add_u32 s40, s40, {OFF_XHAT}
    """)
    for row in range(2):
        k(f"s_waitcnt vmcnt({1-row})")
        b = 16 + 8 * row
        for i in range(4):
            k(f"v_lshlrev_b32 v{b+2*i}, 16, v{8+4*row+i}")
            k(f"v_and_b32 v{b+2*i+1}, 0xffff0000, v{8+4*row+i}")
        s, q = 32 + 2 * row, 33 + 2 * row
        k(f"v_add_f32 v{s}, v{b}, v{b+1}")
        k(f"v_mul_f32 v{q}, v{b}, v{b}")
        for i in range(1, 8):
            if i >= 2:
                k(f"v_add_f32 v{s}, v{s}, v{b+i}")
            k(f"v_fmac_f32 v{q}, v{b+i}, v{b+i}")
    k("s_nop 1")
    allreduce64(k, [32, 33, 34, 35], [36, 37, 38, 39])
    for row in range(2):
        s, q = 32 + 2 * row, 33 + 2 * row
        ln_stats_finish(k, s, q, 40, 41, 42)
        k("v_mul_f32 v40, v40, v41")
        b = 16 + 8 * row
        for i in range(8):
            k(f"v_fma_f32 v{b+i}, v{b+i}, v41, -v40")
        for i in range(4):
            k(f"v_cvt_pk_bf16_f32 v{8+4*row+i}, v{b+2*i}, v{b+2*i+1}")
        k(f"buffer_store_dwordx4 v[{8+4*row}:{11+4*row}], v2, s[24:27], s40 offen offset:{1024*row}")
    endpgm(k)


def role_relayout(k, tag, ptr, nrows, ncols, typ, sjob, ncg, lds_base=0):
    stride = ncols * 2
    srd(k, 28, ptr, nrows * stride)
    magic = (1 << 16) // ncg + 1
    k(f"""
    s_mul_i32 s40, s{sjob}, {magic}
    s_lshr_b32 s40, s40, 16
    s_mul_i32 s41, s40, {ncg}
    s_sub_u32 s41, s{sjob}, s41
    v_lshrrev_b32 v2, 3, v1
    v_and_b32 v3, 7, v1
    v_mul_u32_u24 v2, {stride}, v2
    v_lshl_add_u32 v2, v3, 4, v2
    s_mul_i32 s42, s40, {128*stride}
    s_lshl_b32 s43, s41, 7
    s_add_u32 s42, s42, s43
    s_mul_i32 s43, s3, {16*stride}
    s_add_u32 s42, s42, s43
    s_lshl_b32 s44, s3, 11
    s_add_u32 m0, s44, {lds_base}
    s_add_u32 s43, s42, {8*stride}
    buffer_load_dwordx4 v2, s[28:31], s42 offen lds
    s_add_u32 m0, s44, {lds_base+1024}
    s_nop 0
    buffer_load_dwordx4 v2, s[28:31], s43 offen lds
    """)
    k("""
    v_and_b32 v3, 15, v1
    v_lshrrev_b32 v4, 4, v1
    v_lshrrev_b32 v5, 2, v3
    v_and_b32 v6, 3, v3
    v_lshlrev_b32 v6, 3, v6
    v_lshl_add_u32 v6, v5, 7, v6
    v_and_b32 v7, 1, v4
    v_lshrrev_b32 v8, 1, v4
    """)
    if typ == "A":
        k("v_lshl_add_u32 v6, v4, 10, v6")
        second = 4 * 128
    elif typ == "C":
        k("v_lshl_add_u32 v6, v8, 11, v6")
        k("v_lshl_add_u32 v6, v7, 9, v6")
        second = 8 * 128
    elif typ == "B":
        k("v_lshl_add_u32 v6, v7, 5, v6")
        k("v_lshl_add_u32 v6, v8, 9, v6")
        second = 8 * 128
    elif typ == "D":
        k("v_lshl_add_u32 v6, v7, 5, v6")
        k("v_lshl_add_u32 v6, v8, 10, v6")
        second = 4 * 128
    if typ in "AC":
        k(f"""
        s_lshr_b32 s45, s3, 1
        s_and_b32 s46, s3, 1
        s_lshl_b32 s47, s45, 12
        s_lshl_b32 s48, s46, 6
        s_add_u32 s47, s47, s48
        s_add_u32 s47, s47, {lds_base}
        v_add_u32 v6, s47, v6
        s_lshl_b32 s48, s40, 2
        s_add_u32 s45, s45, s48
        s_lshl_b32 s48, s41, 2
        s_lshl_b32 s46, s46, 1
        s_add_u32 s46, s46, s48
        """)
        frag2 = 32
        for f in range(2):
            sd = 50 + f
            if f:
                k("s_add_u32 s46, s46, 1")
            if typ == "A":
                k(f"""
                s_and_b32 s48, s46, 31
                s_lshl_b32 s48, s48, 4
                s_add_u32 s48, s48, s45
                s_mul_i32 s48, s48, 3
                s_lshr_b32 s49, s46, 5
                s_add_u32 s48, s48, s49
                s_lshl_b32 s48, s48, 10
                s_add_u32 s{sd}, s48, {OFF_WQKV}
                """)
            else:
                k(f"""
                s_mul_i32 s48, s46, 9363
                s_lshr_b32 s48, s48, 16
                s_mul_i32 s49, s48, 7
                s_sub_u32 s49, s46, s49
                s_lshl_b32 s48, s48, 4
                s_add_u32 s48, s48, s45
                s_mul_i32 s48, s48, 7
                s_add_u32 s48, s48, s49
                s_lshl_b32 s48, s48, 10
                s_add_u32 s{sd}, s48, {OFF_W1}
                """)
    else:
        nks = nrows // 16
        off = OFF_WO if typ == "B" else OFF_W2
        k(f"""
        s_lshl_b32 s47, s3, 11
        s_add_u32 s47, s47, {lds_base}
        v_add_u32 v6, s47, v6
        s_lshl_b32 s45, s40, 3
        s_add_u32 s45, s45, s3
        s_mul_i32 s48, s41, {2*nks}
        s_add_u32 s48, s48, s45
        s_lshl_b32 s48, s48, 10
        s_add_u32 s50, s48, {off}
        s_add_u32 s51, s50, {nks*1024}
        """)
        frag2 = 64
    k(f"""
    v_lshlrev_b32 v2, 4, v1
    s_waitcnt vmcnt(0)
    s_barrier
    ds_read_b64_tr_b16 v[8:9], v6
    ds_read_b64_tr_b16 v[10:11], v6 offset:{second}
    ds_read_b64_tr_b16 v[12:13], v6 offset:{frag2}
    ds_read_b64_tr_b16 v[14:15], v6 offset:{frag2+second}
    s_waitcnt lgkmcnt(2)
    buffer_store_dwordx4 v[8:11], v2, s[24:27], s50 offen
    s_waitcnt lgkmcnt(0)
    buffer_store_dwordx4 v[12:15], v2, s[24:27], s51 offen
    """)
    endpgm(k)


def k0():
    k = Kern("k0_prep_kernel", nvgpr=48)
    roles = [("mod", 96), ("ln", 128), ("wqkv", 96), ("wo", 32), ("w1", 112), ("w2", 112)]
    total = sum(n for _, n in roles)
    prologue(k, total)
    prologue_wait(k)
    base = 0
    for name, n in roles:
        k(f"s_sub_u32 s39, s2, {base}")
        k(f"s_cmp_lt_u32 s2, {base+n}")
        k(f"s_cbranch_scc1 L_k0_{name}")
        base += n
    k("s_endpgm")
    k.label("L_k0_mod"); role_mod(k, 39)
    k.label("L_k0_ln"); role_ln(k, 39)
    k.label("L_k0_wqkv"); role_relayout(k, "wqkv", P_WQKV, 512, 1536, "A", 39, 24)
    k.label("L_k0_wo"); role_relayout(k, "wo", P_WO, 512, 512, "B", 39, 8)
    k.label("L_k0_w1"); role_relayout(k, "w1", P_W1, 512, 1792, "C", 39, 28)
    k.label("L_k0_w2"); role_relayout(k, "w2", P_W2, 1792, 512, "D", 39, 8)
    k.label(f"L_end_{k.name}")
    k("s_endpgm")
    return k, (total, 512, 16384)


def k1():
    k = Kern("k1_qkv_kernel", nvgpr=184, nagpr=192)
    prologue(k, 256)
    VA, VB, ROWS, TMP, ACC = 8, 16, 24, 88, 136
    FR = 104
    k(f"""
    s_and_b32 s40, s2, 7
    s_lshr_b32 s41, s2, 3
    s_lshr_b32 s42, s40, 1
    s_lshl_b32 s42, s42, 3
    s_and_b32 s43, s41, 7
    s_add_u32 s42, s42, s43        ; tb
    s_and_b32 s43, s40, 1
    s_lshl_b32 s43, s43, 2
    s_lshr_b32 s44, s41, 3
    s_add_u32 s43, s43, s44        ; cb
    s_lshl_b32 s43, s43, 2
    s_add_u32 s43, s43, s3         ; head
    v_lshlrev_b32 v2, 4, v1        ; lane*16
    v_lshlrev_b32 v3, 5, v1        ; lane*32
    s_lshl_b32 s44, s42, 16
    s_lshl_b32 s45, s3, 14
    s_add_u32 s44, s44, s45
    s_add_u32 s44, s44, {OFF_XHAT}
    s_mul_i32 s46, s43, {48*1024}
    s_add_u32 s46, s46, {OFF_WQKV}
    """)
    prologue_wait(k)
    k(f"""
    buffer_load_dwordx4 v[{VB}:{VB+3}], v3, s[24:27], 0 offen offset:{OFF_MOD}
    buffer_load_dwordx4 v[{VB+4}:{VB+7}], v3, s[24:27], 0 offen offset:{OFF_MOD+16}
    buffer_load_dwordx4 v[{VA}:{VA+3}], v3, s[24:27], 0 offen offset:{OFF_MOD+2048}
    buffer_load_dwordx4 v[{VA+4}:{VA+7}], v3, s[24:27], 0 offen offset:{OFF_MOD+2064}
    """)
    for r in range(16):
        if r and r % 4 == 0:
            k("s_add_u32 s44, s44, 4096")
        k(f"buffer_load_dwordx4 v[{ROWS+4*r}:{ROWS+4*r+3}], v2, s[24:27], s44 offen offset:{(r%4)*1024}")
    NW1 = 40
    def wload(i):
        if i and i % 4 == 0:
            k("s_add_u32 s46, s46, 4096")
        k(f"buffer_load_dwordx4 a[{4*i}:{4*i+3}], v2, s[24:27], s46 offen offset:{(i%4)*1024}")
    for i in range(NW1):
        wload(i)
    k(f"""
    v_and_b32 v4, 7, v1
    v_lshlrev_b32 v4, 4, v4
    v_lshl_add_u32 v4, v1, 8, v4
    v_add_u32 v4, s45, v4
    v_and_b32 v5, 15, v1
    v_lshrrev_b32 v6, 4, v1
    v_xor_b32 v7, v5, v6
    v_lshlrev_b32 v7, 4, v7
    v_lshl_add_u32 v6, v6, 8, v7
    v_xor_b32 v7, 64, v6
    """)
    stamp(k, 1)
    nw = NW1
    for r in range(16):
        k(f"s_waitcnt vmcnt({min(63, (15 - r) + nw)})")
        b = ROWS + 4 * r
        t = TMP + 8 * (r & 1)
        for i in range(4):
            k(f"v_lshlrev_b32 v{t+2*i}, 16, v{b+i}")
            k(f"v_and_b32 v{t+2*i+1}, 0xffff0000, v{b+i}")
        for i in range(4):
            k(f"v_pk_fma_f32 v[{t+2*i}:{t+2*i+1}], v[{t+2*i}:{t+2*i+1}], v[{VA+2*i}:{VA+2*i+1}], v[{VB+2*i}:{VB+2*i+1}]")
        for i in range(4):
            k(f"v_cvt_pk_bf16_f32 v{b+i}, v{t+2*i}, v{t+2*i+1}")
        k(f"v_xor_b32 v5, {r<<4}, v4")
        k(f"ds_write_b128 v5, v[{b}:{b+3}]")
        if nw < 48:
            wload(nw); nw += 1
    k("s_waitcnt lgkmcnt(0)")
    stamp(k, 2)
    k("s_barrier")
    stamp(k, 3)
    def aread(s):
        base = 6 + (s & 1)
        f = FR + 16 * (s & 1)
        for b in range(4):
            k(f"ds_read_b128 v[{f+4*b}:{f+4*b+3}], v{base} offset:{b*16384+s*1024}")
    aread(0)
    for s in range(16):
        if s < 15:
            aread(s + 1)
            k(f"s_waitcnt vmcnt({45-3*s}) lgkmcnt(4)")
        else:
            k("s_waitcnt vmcnt(0) lgkmcnt(0)")
        f = FR + 16 * (s & 1)
        for b in range(4):
            for which in range(3):
                acc = ACC + 4 * (which * 4 + b)
                w = f"a[{12*s+4*which}:{12*s+4*which+3}]"
                h = f"v[{f+4*b}:{f+4*b+3}]"
                c = "0" if s == 0 else f"v[{acc}:{acc+3}]"
                a_, b_ = (w, h) if which < 2 else (h, w)
                k(f"v_mfma_f32_16x16x32_bf16 v[{acc}:{acc+3}], {a_}, {b_}, {c}")
    stamp(k, 4)
    k(f"""
    v_and_b32 v5, 15, v1
    v_lshrrev_b32 v6, 4, v1
    v_and_b32 v7, 1, v6
    v_lshrrev_b32 v6, 1, v6
    v_lshlrev_b32 v5, 4, v5
    v_lshl_add_u32 v8, v6, 9, v5
    v_lshl_add_u32 v8, v7, 3, v8      ; q/k voffset
    v_lshl_add_u32 v9, v7, 8, v5
    v_lshl_add_u32 v9, v6, 3, v9      ; v voffset
    s_lshl_b32 s44, s43, 16
    s_lshl_b32 s45, s42, 11
    s_add_u32 s44, s44, s45
    s_add_u32 s44, s44, {OFF_Q}
    s_lshl_b32 s46, s43, 17
    s_lshl_b32 s45, s42, 12
    s_add_u32 s46, s46, s45
    s_add_u32 s46, s46, {OFF_KV}
    v_mov_b32 v10, {QSCALE:#x}
    """)
    for which in range(3):
        for b in range(4):
            acc = ACC + 4 * (which * 4 + b)
            t = 12 + 2 * (which * 4 + b)
            if which == 0:
                for i in range(4):
                    k(f"v_mul_f32 v{acc+i}, v10, v{acc+i}")
            k(f"v_cvt_pk_bf16_f32 v{t}, v{acc}, v{acc+1}")
            k(f"v_cvt_pk_bf16_f32 v{t+1}, v{acc+2}, v{acc+3}")
            if which == 0:
                k(f"buffer_store_dwordx2 v[{t}:{t+1}], v8, s[24:27], s44 offen offset:{(b>>1)*1024+(b&1)*256}")
            elif which == 1:
                k(f"buffer_store_dwordx2 v[{t}:{t+1}], v8, s[24:27], s46 offen offset:{(b>>1)*2048+(b&1)*256}")
            else:
                k(f"buffer_store_dwordx2 v[{t}:{t+1}], v9, s[24:27], s46 offen offset:{(b>>1)*2048+1024+(b&1)*512}")
    epilogue(k)
    return k, (256, 256, 65536)


def k2():
    k = Kern("k2_attn_kernel", nvgpr=112)
    prologue(k, 256)
    Q, KF, VF, S, P, O, C = 8, 12, 20, 36, 68, 76, 92
    k(f"""
    s_and_b32 s40, s2, 7
    s_lshr_b32 s41, s2, 3
    s_lshl_b32 s40, s40, 2
    s_and_b32 s42, s41, 3
    s_add_u32 s40, s40, s42        ; head
    s_lshr_b32 s41, s41, 2         ; qblock256
    s_lshl_b32 s41, s41, 3
    s_add_u32 s41, s41, s3         ; qblock32
    v_lshlrev_b32 v2, 4, v1        ; lane*16
    s_lshl_b32 s42, s40, 16
    s_lshl_b32 s43, s41, 10
    s_add_u32 s42, s42, s43
    s_add_u32 s42, s42, {OFF_Q}
    s_lshl_b32 s44, s40, 17
    s_lshl_b32 s45, s3, 10
    s_add_u32 s44, s44, s45
    s_add_u32 s44, s44, {OFF_KV}
    s_lshl_b32 s46, s41, 15
    s_lshl_b32 s47, s40, 10
    s_add_u32 s46, s46, s47
    s_add_u32 s46, s46, {OFF_O}
    """)
    prologue_wait(k)
    k(f"buffer_load_dwordx4 v[{Q}:{Q+3}], v2, s[24:27], s42 offen")
    for i in range(16):
        k(f"s_add_u32 m0, s45, {i*8192}")
        if i:
            k("s_add_u32 s44, s44, 8192")
        else:
            k("s_nop 0")
        k("buffer_load_dwordx4 v2, s[24:27], s44 offen lds")
    k(f"""
    v_and_b32 v3, 15, v1
    v_lshlrev_b32 v3, 4, v3
    v_lshrrev_b32 v4, 5, v1
    v_lshl_add_u32 v3, v4, 8, v3
    s_mov_b32 s48, 0x0000ffff
    s_mov_b32 s49, 0x0000ffff
    s_mov_b32 s52, 0
    """)
    for i in range(16):
        k(f"v_mov_b32 v{VF+i}, 0x3f803f80")
    stamp(k, 1)
    k("s_waitcnt vmcnt(15)")
    k("s_barrier")
    stamp(k, 2)
    k(f"""
    ds_read_b128 v[{KF}:{KF+3}], v2
    s_waitcnt lgkmcnt(0)
    v_mfma_f32_32x32x16_bf16 v[{S}:{S+15}], v[{KF}:{KF+3}], v[{Q}:{Q+3}], 0
    s_nop 15
    """)
    def max16(dst, b, first):
        if first:
            k(f"v_max3_f32 v{dst}, v{b}, v{b+1}, v{b+2}")
            k(f"v_max_f32 v{dst}, v{dst}, v{b+3}")
        else:
            k(f"v_max3_f32 v{dst}, v{dst}, v{b}, v{b+1}")
            k(f"v_max3_f32 v{dst}, v{dst}, v{b+2}, v{b+3}")
        for i in range(4, 16, 2):
            k(f"v_max3_f32 v{dst}, v{dst}, v{b+i}, v{b+i+1}")
    max16(5, S, True)
    k.label("L_k2_setmax")
    k("""
    v_mov_b32 v6, v5
    s_nop 1
    v_permlane32_swap_b32 v6, v5
    v_max_f32 v5, v5, v6
    v_sub_f32 v5, 0, v5
    """)
    for i in range(16):
        k(f"v_mov_b32 v{C+i}, v5")
    for i in range(16):
        k(f"v_mov_b32 v{O+i}, 0")
    stamp(k, 3)
    k(f"""
    v_mov_b32 v6, v2
    v_mov_b32 v7, v3
    ds_read_b128 v[{KF}:{KF+3}], v6
    ds_read_b128 v[{KF+4}:{KF+7}], v6 offset:2048
    s_mov_b64 exec, s[48:49]
    ds_read_b128 v[{VF}:{VF+3}], v7 offset:1024
    ds_read_b128 v[{VF+4}:{VF+7}], v7 offset:1536
    s_mov_b64 exec, -1
    s_waitcnt lgkmcnt(3)
    v_mfma_f32_32x32x16_bf16 v[{S}:{S+15}], v[{KF}:{KF+3}], v[{Q}:{Q+3}], v[{C}:{C+15}]
    s_mov_b32 s50, 0
    s_nop 7
    """)
    k.label("L_k2_loop")
    k(f"""
    s_cmp_lg_u32 s52, 0
    s_cbranch_scc1 L_k2_nobar
    s_cmp_eq_u32 s50, 0
    s_cbranch_scc0 L_k2_b2
    s_waitcnt vmcnt(12)
    s_barrier
    s_branch L_k2_nobar
    """)
    k.label("L_k2_b2")
    k(f"""
    s_cmp_eq_u32 s50, 3
    s_cbranch_scc0 L_k2_nobar
    s_waitcnt vmcnt(0)
    s_barrier
    """)
    k.label("L_k2_nobar")
    for u in range(4):
        cur, nxt = u & 1, (u + 1) & 1
        Sc, Sn = S + 16 * cur, S + 16 * nxt
        Kn = KF + 4 * nxt
        Kc = KF + 4 * cur
        Vc, Vn = VF + 8 * cur, VF + 8 * nxt
        k("s_waitcnt lgkmcnt(2)")
        k(f"v_mfma_f32_32x32x16_bf16 v[{Sn}:{Sn+15}], v[{Kn}:{Kn+3}], v[{Q}:{Q+3}], v[{C}:{C+15}]")
        k(f"ds_read_b128 v[{Kc}:{Kc+3}], v6 offset:{(u+2)*2048}")
        k("s_mov_b64 exec, s[48:49]")
        k(f"ds_read_b128 v[{Vn}:{Vn+3}], v7 offset:{(u+1)*2048+1024}")
        k(f"ds_read_b128 v[{Vn+4}:{Vn+7}], v7 offset:{(u+1)*2048+1536}")
        k("s_mov_b64 exec, -1")
        for half in range(2):
            b = Sc + 8 * half
            for i in range(8):
                k(f"v_exp_f32 v{b+i}, v{b+i}")
                if i >= 3 and i % 2 == 1:
                    j = (i - 3) // 2
                    k(f"v_cvt_pk_bf16_f32 v{P+4*half+j}, v{b+2*j}, v{b+2*j+1}")
            if half == 0:
                k("s_waitcnt lgkmcnt(3)")
            else:
                k("s_nop 0")
            k(f"v_cvt_pk_bf16_f32 v{P+4*half+3}, v{b+6}, v{b+7}")
            if half == 1 and u == 3:
                k("v_add_u32 v6, 0x2000, v6")
                k("v_add_u32 v7, 0x2000, v7")
            else:
                k("s_nop 1")
            k(f"v_mfma_f32_32x32x16_bf16 v[{O}:{O+15}], v[{Vc+4*half}:{Vc+4*half+3}], v[{P+4*half}:{P+4*half+3}], v[{O}:{O+15}]")
    k(f"""
    s_add_u32 s50, s50, 1
    s_cmp_lt_u32 s50, 16
    s_cbranch_scc1 L_k2_loop
    s_waitcnt lgkmcnt(0)
    s_nop 15
    """)
    stamp(k, 4)
    k(f"""
    s_mov_b32 s53, 0x53800000
    v_cmp_nge_f32 vcc, s53, v{O+8}
    s_cmp_lg_u32 s52, 0
    s_cbranch_scc1 L_k2_fin
    s_nop 3
    s_cmp_eq_u64 vcc, 0
    s_cbranch_scc1 L_k2_fin
    """)
    k(f"""
    s_mov_b32 s52, 1
    s_mov_b32 s50, 0
    v_mov_b32 v6, v2
    v_mov_b32 v5, 0xff800000
    """)
    k.label("L_k2_maxloop")
    k(f"""
    ds_read_b128 v[{KF}:{KF+3}], v6
    v_add_u32 v6, 0x800, v6
    s_waitcnt lgkmcnt(0)
    v_mfma_f32_32x32x16_bf16 v[{S}:{S+15}], v[{KF}:{KF+3}], v[{Q}:{Q+3}], 0
    s_nop 15
    """)
    max16(5, S, False)
    k(f"""
    s_add_u32 s50, s50, 1
    s_cmp_lt_u32 s50, 64
    s_cbranch_scc1 L_k2_maxloop
    s_branch L_k2_setmax
    """)
    k.label("L_k2_fin")
    k(f"v_rcp_f32 v5, v{O+8}")
    k("s_nop 0")
    for i in range(8):
        k(f"v_mul_f32 v{O+i}, v5, v{O+i}")
    for i in range(4):
        k(f"v_cvt_pk_bf16_f32 v{P+i}, v{O+2*i}, v{O+2*i+1}")
    k(f"buffer_store_dwordx4 v[{P}:{P+3}], v2, s[24:27], s46 offen")
    epilogue(k)
    return k, (256, 512, 131072 + 4096 + 1024)


ATT = dict(Q=8, KF=16, VF=20, S=36, P=68, O=76, C=108)


def att_unit(k, u, side, last=False):
    Q, KF, VF, S, P, O, C = (ATT[x] for x in ("Q", "KF", "VF", "S", "P", "O", "C"))
    blk = u & 1
    t = u >> 1
    Sc, Sp = S + 16 * blk, S + 16 * (blk ^ 1)
    def E(i): return f"v_exp_f32 v{Sc+i}, v{Sc+i}"
    def Cv(j, base=None):
        b = Sc if base is None else base
        return f"v_cvt_pk_bf16_f32 v{P+j}, v{b+2*j}, v{b+2*j+1}"
    def PV(uu, half):
        o = O + 16 * (uu & 1)
        v = VF + 8 * ((uu >> 1) & 1) + 4 * half
        c = "0" if (uu < 2 and half == 0) else f"v[{o}:{o+15}]"
        return f"v_mfma_f32_32x32x16_bf16 v[{o}:{o+15}], v[{v}:{v+3}], v[{P+4*half}:{P+4*half+3}], {c}"
    def QK(uu):
        b = uu & 1
        return f"v_mfma_f32_32x32x16_bf16 v[{S+16*b}:{S+16*b+15}], v[{KF}:{KF+3}], v[{Q+4*b}:{Q+4*b+3}], v[{C+16*b}:{C+16*b+15}]"
    seq = [E(0), E(1), Cv(7, Sp) if u > 0 else None, E(2), Cv(0), E(3), PV(u - 1, 1) if u > 0 else None,
           E(4), Cv(1), E(5), E(6), Cv(2), E(7), QK(u + 1) if not last else None,
           E(8), Cv(3), E(9), E(10), Cv(4), E(11), PV(u, 0), E(12), Cv(5), E(13), E(14), Cv(6), E(15)]
    for i, ins in enumerate(seq, 1):
        for x in side.get(-i, []):
            k(x)
        if ins:
            k(ins)
        for x in side.get(i, []):
            k(x)


def att_max16(k, dst, b, first):
    if first:
        k(f"v_max3_f32 v{dst}, v{b}, v{b+1}, v{b+2}")
        k(f"v_max_f32 v{dst}, v{dst}, v{b+3}")
    else:
        k(f"v_max3_f32 v{dst}, v{dst}, v{b}, v{b+1}")
        k(f"v_max3_f32 v{dst}, v{dst}, v{b+2}, v{b+3}")
    for i in range(4, 16, 2):
        k(f"v_max3_f32 v{dst}, v{dst}, v{b+i}, v{b+i+1}")


def k2b():
    k = Kern("k2_attn_kernel", nvgpr=144)
    prologue(k, 256)
    Q, KF, VF, S, P, O, C = (ATT[x] for x in ("Q", "KF", "VF", "S", "P", "O", "C"))
    k(f"""
    s_and_b32 s40, s2, 7
    s_lshr_b32 s41, s2, 3
    s_lshl_b32 s40, s40, 2
    s_and_b32 s42, s41, 3
    s_add_u32 s40, s40, s42        ; head
    s_lshr_b32 s41, s41, 2         ; qblock256
    s_lshl_b32 s41, s41, 2
    s_add_u32 s41, s41, s3         ; qblock64
    v_lshlrev_b32 v2, 4, v1        ; lane*16
    s_lshl_b32 s42, s40, 16
    s_lshl_b32 s43, s41, 11
    s_add_u32 s42, s42, s43
    s_add_u32 s42, s42, {OFF_Q}
    s_lshl_b32 s44, s40, 17
    s_lshl_b32 s45, s3, 10
    s_add_u32 s47, s44, {OFF_KV}
    s_add_u32 s44, s47, s45
    s_lshl_b32 s46, s41, 16
    s_lshl_b32 s43, s40, 10
    s_add_u32 s46, s46, s43
    s_add_u32 s46, s46, {OFF_O}
    s_mov_b32 m0, s45
    """)
    prologue_wait(k)
    rounds = [0]
    def dma():
        i = rounds[0]; rounds[0] += 1
        out = []
        if i:
            out += ["s_add_u32 m0, m0, 4096", "s_add_u32 s44, s44, 4096"]
        out += ["buffer_load_dwordx4 v2, s[24:27], s44 offen lds"]
        return out
    for x in dma(): k(x)
    k(f"buffer_load_dwordx4 v[{Q}:{Q+3}], v2, s[24:27], s42 offen")
    k(f"buffer_load_dwordx4 v[{Q+4}:{Q+7}], v2, s[24:27], s42 offen offset:1024")
    for r in range(3):
        for x in dma(): k(x)
    k(f"""
    v_and_b32 v3, 15, v1
    v_lshlrev_b32 v3, 4, v3
    v_lshrrev_b32 v4, 5, v1
    v_lshl_add_u32 v3, v4, 8, v3
    v_add_u32 v4, 0x10000, v2
    v_add_u32 v5, 0x10000, v3
    s_mov_b32 s48, 0x0000ffff
    s_mov_b32 s49, 0x0000ffff
    v_and_b32 v6, 27, v1
    v_cmp_eq_u32 vcc, 16, v6
    v_mov_b32 v7, 0x3f803f80
    s_nop 0
    v_cndmask_b32 v7, 0, v7, vcc
    """)
    for i in range(16):
        k(f"v_mov_b32 v{VF+i}, v7")
    stamp(k, 1)
    k("s_waitcnt vmcnt(3)")
    k("s_barrier")
    stamp(k, 2)
    def kread(t):
        off = t * 2048
        return f"ds_read_b128 v[{KF}:{KF+3}], v{2 if off < 65536 else 4} offset:{off & 0xffff}"
    def vread(t):
        off = t * 2048 + 1024
        b = VF + 8 * (t & 1)
        a = 3 if off < 65536 else 5
        return ["s_mov_b64 exec, s[48:49]",
                f"ds_read_b128 v[{b}:{b+3}], v{a} offset:{off & 0xffff}",
                f"ds_read_b128 v[{b+4}:{b+7}], v{a} offset:{(off+512) & 0xffff}",
                "s_mov_b64 exec, -1"]
    k(kread(0))
    for x in vread(0): k(x)
    k(f"""
    s_waitcnt lgkmcnt(2)
    v_mfma_f32_32x32x16_bf16 v[{S}:{S+15}], v[{KF}:{KF+3}], v[{Q}:{Q+3}], 0
    v_mfma_f32_32x32x16_bf16 v[{S+16}:{S+31}], v[{KF}:{KF+3}], v[{Q+4}:{Q+7}], 0
    s_nop 10
    """)
    att_max16(k, 6, S, True)
    att_max16(k, 7, S + 16, True)
    k("""
    s_nop 1
    v_permlane32_swap_b32 v6, v7
    v_max_f32 v6, v6, v7
    v_mov_b32 v7, v6
    s_nop 1
    v_permlane32_swap_b32 v6, v7
    v_sub_f32 v6, 0, v6
    v_sub_f32 v7, 0, v7
    """)
    for i in range(16):
        k(f"v_mov_b32 v{C+i}, v6")
    k("s_nop 0")
    k(f"v_mov_b32 v{C+16}, v7")
    k(f"v_mfma_f32_32x32x16_bf16 v[{S}:{S+15}], v[{KF}:{KF+3}], v[{Q}:{Q+3}], v[{C}:{C+15}]")
    for i in range(1, 16):
        k(f"v_mov_b32 v{C+16+i}, v7")
    stamp(k, 3)
    ROLL = int(os.environ.get("ROLL", "4"))
    NUNR = 16 if ROLL else 64
    for u in range(2 * NUNR):
        t = u >> 1
        side = {}
        if u % 2 == 0 and t < 63:
            pre = []
            if u == 2:
                pre = [f"s_waitcnt vmcnt({rounds[0]-4})", "s_barrier"]
            elif u == 14:
                pre = [f"s_waitcnt vmcnt({rounds[0]-12})", "s_barrier"]
            elif u == 46:
                pre = ["s_waitcnt vmcnt(0)", "s_barrier"]
            side[14] = pre + [kread(t + 1)]
            vr = vread(t + 1)
            side[15] = vr
        if u % 2 == 1 or u == 0:
            side[-14] = ["s_waitcnt lgkmcnt(0)"]
        if rounds[0] < 32:
            d = dma()
            side[1] = d[:2]
            side[2] = d[2:]
        att_unit(k, u, side, last=(u == 127))
    if ROLL:
        k(f"""
        v_add_u32 v4, {NUNR*2048}, v2
        v_add_u32 v5, {NUNR*2048}, v3
        s_mov_b32 s50, {(64-NUNR)//ROLL}
        s_waitcnt vmcnt(0)
        s_barrier
        """)
        k(".p2align 6")
        k.label("L_k2_roll")
        for uu in range(2 * ROLL):
            u = 2 * NUNR + uu
            tt = uu >> 1
            side = {}
            if uu % 2 == 0:
                b = VF + 8 * ((tt + 1) & 1)
                off = (tt + 1) * 2048
                side[14] = [f"ds_read_b128 v[{KF}:{KF+3}], v4 offset:{off}"]
                side[15] = ["s_mov_b64 exec, s[48:49]",
                            f"ds_read_b128 v[{b}:{b+3}], v5 offset:{off+1024}",
                            f"ds_read_b128 v[{b+4}:{b+7}], v5 offset:{off+1536}",
                            "s_mov_b64 exec, -1"]
            else:
                side[-14] = ["s_waitcnt lgkmcnt(0)"]
            if uu == 2 * ROLL - 1:
                side[1] = [f"v_add_u32 v4, {ROLL*2048}, v4"]
                side[4] = [f"v_add_u32 v5, {ROLL*2048}, v5"]
                side[24] = ["s_sub_u32 s50, s50, 1"]
                side[25] = ["s_cmp_lg_u32 s50, 0"]
            att_unit(k, u, side)
        k("s_cbranch_scc1 L_k2_roll")
    k(f"""
    s_nop 0
    v_cvt_pk_bf16_f32 v{P+7}, v{S+30}, v{S+31}
    s_nop 1
    v_mfma_f32_32x32x16_bf16 v[{O+16}:{O+31}], v[{VF+12}:{VF+15}], v[{P+4}:{P+7}], v[{O+16}:{O+31}]
    s_mov_b32 s53, 0x53800000
    s_nop 10
    """)
    stamp(k, 4)
    k(f"""
    v_max_f32 v6, v{O+8}, v{O+24}
    v_cmp_nge_f32 vcc, s53, v{O+8}
    v_cmp_nge_f32 s[50:51], s53, v{O+24}
    s_nop 3
    s_or_b64 vcc, vcc, s[50:51]
    s_cbranch_scc0 L_k2_fin
    """)
    k(f"""
    s_mov_b32 s50, 0
    s_mov_b32 s51, s47
    v_mov_b32 v6, 0xff800000
    v_mov_b32 v7, 0xff800000
    """)
    k.label("L_k2_maxloop")
    k(f"""
    buffer_load_dwordx4 v[{KF}:{KF+3}], v2, s[24:27], s51 offen sc1
    s_add_u32 s51, s51, 2048
    s_waitcnt vmcnt(0)
    v_mfma_f32_32x32x16_bf16 v[{S}:{S+15}], v[{KF}:{KF+3}], v[{Q}:{Q+3}], 0
    v_mfma_f32_32x32x16_bf16 v[{S+16}:{S+31}], v[{KF}:{KF+3}], v[{Q+4}:{Q+7}], 0
    s_nop 10
    """)
    att_max16(k, 6, S, False)
    att_max16(k, 7, S + 16, False)
    k(f"""
    s_add_u32 s50, s50, 1
    s_cmp_lt_u32 s50, 64
    s_cbranch_scc1 L_k2_maxloop
    s_nop 0
    v_permlane32_swap_b32 v6, v7
    v_max_f32 v6, v6, v7
    v_mov_b32 v7, v6
    s_nop 1
    v_permlane32_swap_b32 v6, v7
    v_sub_f32 v6, 0, v6
    v_sub_f32 v7, 0, v7
    """)
    for i in range(16):
        k(f"v_mov_b32 v{C+i}, v6")
        k(f"v_mov_b32 v{C+16+i}, v7")
        k(f"v_mov_b32 v{O+i}, 0")
        k(f"v_mov_b32 v{O+16+i}, 0")
    k("s_mov_b32 s50, 0")
    k("s_mov_b32 s51, s47")
    k.label("L_k2_redo")
    k(f"""
    buffer_load_dwordx4 v[{KF}:{KF+3}], v2, s[24:27], s51 offen sc1
    s_mov_b64 exec, s[48:49]
    buffer_load_dwordx4 v[{VF}:{VF+3}], v3, s[24:27], s51 offen offset:1024 sc1
    buffer_load_dwordx4 v[{VF+4}:{VF+7}], v3, s[24:27], s51 offen offset:1536 sc1
    s_mov_b64 exec, -1
    s_add_u32 s51, s51, 2048
    s_waitcnt vmcnt(0)
    v_mfma_f32_32x32x16_bf16 v[{S}:{S+15}], v[{KF}:{KF+3}], v[{Q}:{Q+3}], v[{C}:{C+15}]
    v_mfma_f32_32x32x16_bf16 v[{S+16}:{S+31}], v[{KF}:{KF+3}], v[{Q+4}:{Q+7}], v[{C+16}:{C+31}]
    s_nop 10
    """)
    for b in range(2):
        for i in range(16):
            k(f"v_exp_f32 v{S+16*b+i}, v{S+16*b+i}")
        k("s_nop 0")
        for j in range(8):
            k(f"v_cvt_pk_bf16_f32 v{P+j}, v{S+16*b+2*j}, v{S+16*b+2*j+1}")
        k("s_nop 1")
        for h in range(2):
            k(f"v_mfma_f32_32x32x16_bf16 v[{O+16*b}:{O+16*b+15}], v[{VF+4*h}:{VF+4*h+3}], v[{P+4*h}:{P+4*h+3}], v[{O+16*b}:{O+16*b+15}]")
    k(f"""
    s_add_u32 s50, s50, 1
    s_cmp_lt_u32 s50, 64
    s_cbranch_scc1 L_k2_redo
    s_nop 10
    """)
    k.label("L_k2_fin")
    k(f"v_rcp_f32 v6, v{O+8}")
    k(f"v_rcp_f32 v7, v{O+24}")
    for b in range(2):
        for i in range(8):
            k(f"v_mul_f32 v{O+16*b+i}, v{6+b}, v{O+16*b+i}")
        for i in range(4):
            k(f"v_cvt_pk_bf16_f32 v{P+4*b+i}, v{O+16*b+2*i}, v{O+16*b+2*i+1}")
        if b:
            k("s_add_u32 s46, s46, 32768")
        k(f"buffer_store_dwordx4 v[{P+4*b}:{P+4*b+3}], v2, s[24:27], s46 offen")
    epilogue(k)
    return k, (256, 256, 131072 + 2048)


def splitk_gemm(k, nks, offA, offB, depth_steps, RB, ACC):
    n = nks // 4
    k(f"""
    s_lshr_b32 s44, s3, 1
    s_and_b32 s45, s3, 1
    s_lshl_b32 s46, s43, 1
    s_add_u32 s47, s46, s44
    s_xor_b32 s48, s47, 1          ; other
    s_lshl_b32 s46, s42, 1
    s_add_u32 s49, s46, s45
    s_xor_b32 s50, s49, 1
    s_mul_i32 s46, s3, {n*1024}
    s_mul_i32 s52, s47, {nks*1024}
    s_mul_i32 s53, s48, {nks*1024}
    s_mul_i32 s54, s49, {nks*1024}
    s_mul_i32 s55, s50, {nks*1024}
    s_add_u32 s51, s46, {offA}
    s_add_u32 s52, s52, s51
    s_add_u32 s53, s53, s51
    s_add_u32 s51, s46, {offB}
    s_add_u32 s54, s54, s51
    s_add_u32 s55, s55, s51
    """)
    def load(s):
        r = RB + 16 * (s % depth_steps)
        if s and s % 4 == 0:
            for sr in (52, 53, 54, 55):
                k(f"s_add_u32 s{sr}, s{sr}, 4096")
        for i, sr in enumerate((52, 54, 53, 55)):
            k(f"buffer_load_dwordx4 v[{r+4*i}:{r+4*i+3}], v2, s[24:27], s{sr} offen offset:{(s%4)*1024}")
    return n, load


def splitk_main(k, n, load, depth_steps, RB, ACC, extra_after=0):
    issued = min(n, depth_steps)
    for s in range(n):
        later = (issued - 1 - s) * 4 + extra_after
        k(f"s_waitcnt vmcnt({min(63, later)})")
        r = RB + 16 * (s % depth_steps)
        A0, B0, A1, B1 = (f"v[{r+4*i}:{r+4*i+3}]" for i in range(4))
        for t, (a, b) in enumerate(((A0, B0), (A0, B1), (A1, B0), (A1, B1))):
            acc = ACC + 16 * t
            c = "0" if s == 0 else f"v[{acc}:{acc+15}]"
            k(f"v_mfma_f32_32x32x16_bf16 v[{acc}:{acc+15}], {a}, {b}, {c}")
        if issued < n:
            load(issued); issued += 1
            extra_after = 0


def splitk_reduce(k, ACC, TMP):
    k("s_nop 7")
    for t in (1, 2, 3):
        k(f"""
        s_xor_b32 s56, s3, {t}
        s_mul_i32 s56, s56, 12288
        s_add_u32 s56, s56, {(t-1)*4096}
        v_add_u32 v3, s56, v2
        """)
        for q in range(4):
            k(f"ds_write_b128 v3, v[{ACC+16*t+4*q}:{ACC+16*t+4*q+3}] offset:{q*1024}")
    k(f"""
    s_mul_i32 s56, s3, 12288
    v_add_u32 v3, s56, v2
    s_waitcnt lgkmcnt(0)
    s_barrier
    """)
    for i in range(12):
        k(f"ds_read_b128 v[{TMP+4*i}:{TMP+4*i+3}], v3 offset:{i*1024}")
    for sl in range(3):
        k(f"s_waitcnt lgkmcnt({8-4*sl})")
        for i in range(16):
            k(f"v_add_f32 v{ACC+i}, v{ACC+i}, v{TMP+16*sl+i}")


def map_4x8(k):
    k("""
    s_and_b32 s40, s2, 7
    s_lshr_b32 s41, s2, 3
    s_lshl_b32 s42, s40, 2
    s_and_b32 s43, s41, 3
    s_add_u32 s42, s42, s43        ; tb
    s_lshr_b32 s43, s41, 2         ; cb
    v_lshlrev_b32 v2, 4, v1
    """)


def k3():
    k = Kern("k3_wo_kernel", nvgpr=248)
    NUT = 28
    prologue(k, 256 + NUT)
    k("s_cmp_ge_u32 s2, 256")
    k("s_cbranch_scc1 L_k3_ut")
    RB, ACC = 8, 136
    G, CBV, X = 200, 216, 232
    map_4x8(k)
    n, load = splitk_gemm(k, 32, OFF_WO, OFF_O, 8, RB, ACC)
    prologue_wait(k)
    srd(k, 28, P_X, 2048 * 1024)
    for s in range(8):
        load(s)
    k(f"""
    v_lshrrev_b32 v4, 5, v1
    v_and_b32 v5, 31, v1
    v_lshlrev_b32 v6, 4, v4             ; h*16 bytes (4 f32)
    s_lshl_b32 s56, s47, 7
    s_add_u32 s57, s56, {OFF_MOD + 2*2048}
    s_add_u32 s58, s56, {OFF_MOD + 4*2048}
    v_lshlrev_b32 v7, 10, v5
    v_lshl_add_u32 v7, v4, 3, v7        ; tok*1024 + h*8
    s_lshl_b32 s59, s49, 15
    s_lshl_b32 s56, s47, 6
    s_add_u32 s59, s59, s56
    """)
    for j in range(4):
        k(f"buffer_load_dwordx4 v[{G+4*j}:{G+4*j+3}], v6, s[24:27], s57 offen offset:{32*j}")
        k(f"buffer_load_dwordx4 v[{CBV+4*j}:{CBV+4*j+3}], v6, s[24:27], s58 offen offset:{32*j}")
        k(f"buffer_load_dwordx2 v[{X+2*j}:{X+2*j+1}], v7, s[28:31], s59 offen offset:{16*j}")
    stamp(k, 1)
    splitk_main(k, n, load, 8, RB, ACC, extra_after=12)
    stamp(k, 2)
    splitk_reduce(k, ACC, 8)
    stamp(k, 3)
    k("s_waitcnt vmcnt(0)")
    T = 8
    for i in range(8):
        k(f"v_cvt_pk_bf16_f32 v{T+i}, v{ACC+2*i}, v{ACC+2*i+1}")
    for i in range(8):
        k(f"v_lshlrev_b32 v{ACC+2*i}, 16, v{T+i}")
        k(f"v_and_b32 v{ACC+2*i+1}, 0xffff0000, v{T+i}")
    for i in range(16):
        k(f"v_mul_f32 v{ACC+i}, v{G+i}, v{ACC+i}")
    for i in range(8):
        k(f"v_cvt_pk_bf16_f32 v{T+i}, v{ACC+2*i}, v{ACC+2*i+1}")
    for i in range(8):
        k(f"v_lshlrev_b32 v{ACC+2*i}, 16, v{T+i}")
        k(f"v_and_b32 v{ACC+2*i+1}, 0xffff0000, v{T+i}")
        k(f"v_lshlrev_b32 v{G+2*i}, 16, v{X+i}")
        k(f"v_and_b32 v{G+2*i+1}, 0xffff0000, v{X+i}")
    for i in range(16):
        k(f"v_add_f32 v{ACC+i}, v{G+i}, v{ACC+i}")
    for i in range(8):
        k(f"v_cvt_pk_bf16_f32 v{T+i}, v{ACC+2*i}, v{ACC+2*i+1}")
    k(f"""
    v_lshrrev_b32 v3, 4, v5
    v_lshlrev_b32 v3, 14, v3
    v_and_b32 v6, 15, v5
    v_lshl_add_u32 v3, v6, 4, v3
    v_lshl_add_u32 v3, v4, 8, v3
    s_lshl_b32 s56, s49, 15
    s_lshl_b32 s57, s47, 10
    s_add_u32 s56, s56, s57
    s_add_u32 s57, s56, {OFF_X2S}
    s_add_u32 s56, s56, {OFF_X2}
    buffer_store_dwordx4 v[{T}:{T+3}], v3, s[24:27], s56 offen
    buffer_store_dwordx4 v[{T+4}:{T+7}], v3, s[24:27], s56 offen offset:512
    """)
    for i in range(8):
        k(f"v_lshlrev_b32 v{ACC+2*i}, 16, v{T+i}")
        k(f"v_and_b32 v{ACC+2*i+1}, 0xffff0000, v{T+i}")
    k(f"v_add_f32 v24, v{ACC}, v{ACC+1}")
    k(f"v_mul_f32 v25, v{ACC}, v{ACC}")
    for i in range(1, 16):
        if i >= 2:
            k(f"v_add_f32 v24, v24, v{ACC+i}")
        k(f"v_fmac_f32 v25, v{ACC+i}, v{ACC+i}")
    for i in range(16):
        k(f"v_mul_f32 v{ACC+i}, v{CBV+i}, v{ACC+i}")
    for i in range(8):
        k(f"v_cvt_pk_bf16_f32 v{16+i}, v{ACC+2*i}, v{ACC+2*i+1}")
    k(f"""
    buffer_store_dwordx4 v[16:19], v3, s[24:27], s57 offen
    buffer_store_dwordx4 v[20:23], v3, s[24:27], s57 offen offset:512
    v_permlane32_swap_b32 v24, v25
    v_add_f32 v24, v24, v25
    v_lshlrev_b32 v3, 7, v5
    v_lshl_add_u32 v3, v4, 2, v3
    s_lshl_b32 s56, s49, 12
    s_lshl_b32 s57, s47, 3
    s_add_u32 s56, s56, s57
    s_add_u32 s56, s56, {OFF_ST2}
    buffer_store_dword v24, v3, s[24:27], s56 offen
    """)
    endpgm(k)
    k.label("L_k3_ut")
    k(f"""
    s_sub_u32 s40, s2, 256
    s_lshl_b32 s40, s40, 2
    s_add_u32 s40, s40, s3          ; nt
    s_mul_i32 s41, s40, 9363
    s_lshr_b32 s41, s41, 16
    s_mul_i32 s42, s41, 7
    s_sub_u32 s42, s40, s42         ; i
    s_mul_i32 s41, s41, {16*7}
    s_add_u32 s41, s41, s42
    s_lshl_b32 s41, s41, 10
    s_add_u32 s41, s41, {OFF_W1}
    v_lshlrev_b32 v2, 4, v1
    v_and_b32 v3, 15, v1            ; col
    v_lshrrev_b32 v4, 4, v1         ; g
    v_and_b32 v5, 1, v4
    v_lshrrev_b32 v6, 1, v4
    v_lshlrev_b32 v6, 6, v6
    v_lshl_add_u32 v6, v5, 4, v6    ; (16(g>>1) + 4(g&1))*4 bytes
    v_and_b32 v7, 1, v3
    v_sub_u32 v7, 4, v7
    v_lshl_add_u32 v6, v7, 11, v6
    """)
    prologue_wait(k)
    for s in range(16):
        k(f"buffer_load_dwordx4 v[{8+4*s}:{11+4*s}], v2, s[24:27], s41 offen")
        k(f"s_add_u32 s41, s41, 7168")
    for s in range(16):
        k(f"buffer_load_dwordx4 v[{72+8*s}:{75+8*s}], v6, s[24:27], 0 offen offset:{OFF_MOD+128*s}")
        k(f"buffer_load_dwordx4 v[{76+8*s}:{79+8*s}], v6, s[24:27], 0 offen offset:{OFF_MOD+128*s+32}")
    k("s_waitcnt vmcnt(0)")
    for s in range(16):
        b = 72 + 8 * s
        for i in range(4):
            k(f"v_cvt_pk_bf16_f32 v{b+i}, v{b+2*i}, v{b+2*i+1}")
    k("s_nop 1")
    for s in range(16):
        b = 72 + 8 * s
        c = "0" if s == 0 else "v[200:203]"
        k(f"v_mfma_f32_16x16x32_bf16 v[200:203], v[{8+4*s}:{11+4*s}], v[{b}:{b+3}], {c}")
    k(f"""
    v_lshlrev_b32 v5, 4, v4
    v_lshl_add_u32 v5, v3, 6, v5
    v_cmp_gt_u32 vcc, 2, v3
    s_lshl_b32 s40, s40, 7
    s_add_u32 s40, s40, {OFF_UT}
    s_nop 7
    s_and_saveexec_b64 s[44:45], vcc
    buffer_store_dwordx4 v[200:203], v5, s[24:27], s40 offen
    """)
    epilogue(k)
    return k, (256 + NUT, 256, 49152)


def k4():
    k = Kern("k4_ffn1_kernel", nvgpr=200, nagpr=128)
    prologue(k, 256)
    ACC = 8
    WF = 64
    UT = 120
    ST = 176
    k(f"""
    s_and_b32 s40, s2, 7
    s_lshr_b32 s41, s2, 3
    s_lshr_b32 s42, s40, 1
    s_lshl_b32 s42, s42, 2
    s_and_b32 s43, s41, 3
    s_add_u32 s42, s42, s43
    s_and_b32 s43, s40, 1
    s_lshl_b32 s43, s43, 3
    s_lshr_b32 s44, s41, 2
    s_add_u32 s43, s43, s44
    v_lshlrev_b32 v2, 4, v1
    s_lshl_b32 s44, s42, 2
    s_add_u32 s44, s44, s3
    s_lshl_b32 s45, s44, 15
    s_add_u32 s45, s45, {OFF_X2S}
    s_add_u32 s46, s45, 16384
    s_mul_i32 s47, s43, {112*1024}
    s_lshl_b32 s48, s3, 10
    s_add_u32 s47, s47, s48
    s_add_u32 s47, s47, {OFF_W1}
    v_and_b32 v3, 15, v1
    v_lshrrev_b32 v4, 4, v1
    v_lshlrev_b32 v5, 7, v3
    v_lshl_add_u32 v5, v4, 5, v5
    s_lshl_b32 s49, s44, 12
    s_add_u32 s49, s49, {OFF_ST2}
    v_lshlrev_b32 v6, 4, v4          ; g*16
    s_mul_i32 s50, s43, {7*128}
    s_add_u32 s50, s50, {OFF_UT}
    """)
    prologue_wait(k)
    for j in range(2):
        k(f"buffer_load_dwordx4 v[{ST+8*j}:{ST+8*j+3}], v5, s[24:27], s49 offen offset:{2048*j}")
        k(f"buffer_load_dwordx4 v[{ST+8*j+4}:{ST+8*j+7}], v5, s[24:27], s49 offen offset:{2048*j+16}")
    for i in range(7):
        k(f"buffer_load_dwordx4 v[{UT+8*i}:{UT+8*i+3}], v6, s[24:27], s50 offen offset:{128*i}")
        k(f"buffer_load_dwordx4 v[{UT+8*i+4}:{UT+8*i+7}], v6, s[24:27], s50 offen offset:{128*i+64}")
    def group(gi):
        for i in range(7):
            idx = gi * 7 + i
            k(f"s_add_u32 m0, s48, {idx*4096}")
            if idx:
                k("s_add_u32 s47, s47, 4096")
            else:
                k("s_nop 0")
            k("buffer_load_dwordx4 v2, s[24:27], s47 offen lds")
        if gi:
            k("s_add_u32 s45, s45, 4096")
            k("s_add_u32 s46, s46, 4096")
        for s in range(4):
            ks = gi * 4 + s
            k(f"buffer_load_dwordx4 a[{8*ks}:{8*ks+3}], v2, s[24:27], s45 offen offset:{s*1024}")
            k(f"buffer_load_dwordx4 a[{8*ks+4}:{8*ks+7}], v2, s[24:27], s46 offen offset:{s*1024}")
    for gi in range(3):
        group(gi)
    stamp(k, 1)
    k("s_waitcnt vmcnt(59)")
    stamp(k, 2)
    for j in range(2):
        b = ST + 8 * j
        k(f"v_add_f32 v{b}, v{b}, v{b+2}")
        k(f"v_add_f32 v{b+1}, v{b+1}, v{b+3}")
        k(f"v_add_f32 v{b+4}, v{b+4}, v{b+6}")
        k(f"v_add_f32 v{b+5}, v{b+5}, v{b+7}")
        k(f"v_add_f32 v{b}, v{b}, v{b+4}")
        k(f"v_add_f32 v{b+1}, v{b+1}, v{b+5}")
    regs = [ST, ST + 1, ST + 8, ST + 9]
    tmp = [ST + 2, ST + 3, ST + 10, ST + 11]
    for op in ("v_permlane16_swap_b32", "v_permlane32_swap_b32"):
        for r, t in zip(regs, tmp):
            k(f"v_mov_b32 v{t}, v{r}")
        k("s_nop 1")
        for r, t in zip(regs, tmp):
            k(f"{op} v{t}, v{r}")
        for r, t in zip(regs, tmp):
            k(f"v_add_f32 v{r}, v{t}, v{r}")
    for j in range(2):
        b = ST + 8 * j
        ln_stats_finish(k, b, b + 1, b + 4, b + 5, None, std_out=b + 6)
    group(3)
    k(f"""
    s_cmp_lg_u32 s43, 0
    s_cbranch_scc1 L_k4_nor
    v_lshlrev_b32 v7, 2, v3
    s_lshl_b32 s51, s44, 7
    s_add_u32 s51, s51, {OFF_R2}
    buffer_store_dword v{ST+5}, v7, s[24:27], s51 offen
    buffer_store_dword v{ST+13}, v7, s[24:27], s51 offen offset:64
    s_waitcnt vmcnt(0)
    """)
    k.label("L_k4_nor")
    k("s_waitcnt vmcnt(60)")
    for j in range(2):
        b = ST + 8 * j
        for i in range(7):
            for r in range(4):
                a = ACC + 4 * (j * 7 + i) + r
                k(f"v_mul_f32 v{a}, v{UT+8*i+4+r}, v{b+6}")
        for i in range(7):
            for r in range(4):
                a = ACC + 4 * (j * 7 + i) + r
                k(f"v_fma_f32 v{a}, -v{b+4}, v{UT+8*i+r}, v{a}")
    def wread(s):
        f = WF + 28 * (s & 1)
        for i in range(7):
            off = (s * 7 + i) * 1024
            base = "v2" if off < 65536 else "v7"
            k(f"ds_read_b128 v[{f+4*i}:{f+4*i+3}], {base} offset:{off & 0xffff}")
    k("v_add_u32 v7, 0x10000, v2")
    stamp(k, 3)
    for gi in range(4):
        k(f"s_waitcnt vmcnt({15*(3-gi)})")
        k("s_barrier")
        stamp(k, 4 + gi)
        for s4 in range(4):
            s = gi * 4 + s4
            if s4 == 0:
                wread(s)
            if s4 < 3:
                wread(s + 1)
                k("s_waitcnt lgkmcnt(7)")
            else:
                k("s_waitcnt lgkmcnt(0)")
            f = WF + 28 * (s & 1)
            for i in range(7):
                for j in range(2):
                    a = ACC + 4 * (j * 7 + i)
                    k(f"v_mfma_f32_16x16x32_bf16 v[{a}:{a+3}], v[{f+4*i}:{f+4*i+3}], a[{8*s+4*j}:{8*s+4*j+3}], v[{a}:{a+3}]")
    stamp(k, 8)
    k(f"""
    v_and_b32 v5, 1, v4
    v_lshrrev_b32 v6, 1, v4
    v_lshlrev_b32 v7, 4, v3
    v_lshl_add_u32 v7, v6, 9, v7
    v_lshl_add_u32 v7, v5, 3, v7
    s_mul_i32 s45, s44, {112*1024}
    s_mul_i32 s46, s43, {7*1024}
    s_add_u32 s45, s45, s46
    s_add_u32 s45, s45, {OFF_H}
    s_add_u32 s46, s45, 4096
    """)
    for i in range(7):
        for j in range(2):
            a = ACC + 4 * (j * 7 + i)
            t = WF + 2 * (i * 2 + j)
            k(f"v_cvt_pk_bf16_f32 v{t}, v{a}, v{a+1}")
            k(f"v_cvt_pk_bf16_f32 v{t+1}, v{a+2}, v{a+3}")
            k(f"v_pk_max_i16 v{t}, v{t}, 0")
            k(f"v_pk_max_i16 v{t+1}, v{t+1}, 0")
            sr = 45 if i < 4 else 46
            k(f"buffer_store_dwordx2 v[{t}:{t+1}], v7, s[24:27], s{sr} offen offset:{(i%4)*1024+j*256}")
    epilogue(k)
    return k, (256, 256, 112 * 1024)


def k5():
    k = Kern("k5_ffn2_kernel", nvgpr=256, nagpr=64)
    prologue(k, 256)
    DEPTH = 13
    RB = 8
    G, X2, R = 216, 232, 240
    map_4x8(k)
    n, load = splitk_gemm(k, 112, OFF_W2, OFF_H, DEPTH, RB, None)
    prologue_wait(k)
    srd(k, 28, P_OUT, 2048 * 1024)
    k(f"""
    v_lshrrev_b32 v4, 5, v1
    v_and_b32 v5, 31, v1
    v_lshlrev_b32 v6, 4, v4
    s_lshl_b32 s56, s47, 7
    s_add_u32 s57, s56, {OFF_MOD + 5*2048}
    v_lshrrev_b32 v3, 4, v5
    v_lshlrev_b32 v3, 14, v3
    v_and_b32 v7, 15, v5
    v_lshl_add_u32 v3, v7, 4, v3
    v_lshl_add_u32 v3, v4, 8, v3
    s_lshl_b32 s58, s49, 15
    s_lshl_b32 s59, s47, 10
    s_add_u32 s58, s58, s59
    s_add_u32 s58, s58, {OFF_X2}
    v_lshlrev_b32 v7, 2, v5
    s_lshl_b32 s59, s49, 7
    s_add_u32 s59, s59, {OFF_R2}
    """)
    for j in range(4):
        k(f"buffer_load_dwordx4 v[{G+4*j}:{G+4*j+3}], v6, s[24:27], s57 offen offset:{32*j}")
    k(f"buffer_load_dwordx4 v[{X2}:{X2+3}], v3, s[24:27], s58 offen")
    k(f"buffer_load_dwordx4 v[{X2+4}:{X2+7}], v3, s[24:27], s58 offen offset:512")
    k(f"buffer_load_dword v{R}, v7, s[24:27], s59 offen")
    for s in range(DEPTH):
        load(s)
    stamp(k, 1)
    issued = DEPTH
    for s in range(n):
        k(f"s_waitcnt vmcnt({(issued-1-s)*4})")
        r = RB + 16 * (s % DEPTH)
        A0, B0, A1, B1 = (f"v[{r+4*i}:{r+4*i+3}]" for i in range(4))
        for t, (a, b) in enumerate(((A0, B0), (A0, B1), (A1, B0), (A1, B1))):
            c = "0" if s == 0 else f"a[{16*t}:{16*t+15}]"
            k(f"v_mfma_f32_32x32x16_bf16 a[{16*t}:{16*t+15}], {a}, {b}, {c}")
        if issued < n:
            load(issued); issued += 1
    stamp(k, 2)
    k("s_nop 7")
    for t in (1, 2, 3):
        k(f"""
        s_xor_b32 s56, s3, {t}
        s_mul_i32 s56, s56, 12288
        s_add_u32 s56, s56, {(t-1)*4096}
        v_add_u32 v3, s56, v2
        """)
        for q in range(4):
            k(f"ds_write_b128 v3, a[{16*t+4*q}:{16*t+4*q+3}] offset:{q*1024}")
    ACC, TMP = 8, 24
    for i in range(16):
        k(f"v_accvgpr_read_b32 v{ACC+i}, a{i}")
    for i in range(16):
        k(f"v_mul_f32 v{G+i}, v{R}, v{G+i}")
    k(f"""
    s_mul_i32 s56, s3, 12288
    v_add_u32 v3, s56, v2
    s_waitcnt lgkmcnt(0)
    s_barrier
    """)
    for i in range(12):
        k(f"ds_read_b128 v[{TMP+4*i}:{TMP+4*i+3}], v3 offset:{i*1024}")
    XU = 80
    stamp(k, 3)
    for i in range(8):
        k(f"v_lshlrev_b32 v{XU+2*i}, 16, v{X2+i}")
        k(f"v_and_b32 v{XU+2*i+1}, 0xffff0000, v{X2+i}")
    for sl in range(3):
        k(f"s_waitcnt lgkmcnt({8-4*sl})")
        for i in range(16):
            k(f"v_add_f32 v{ACC+i}, v{ACC+i}, v{TMP+16*sl+i}")
    for i in range(16):
        k(f"v_fma_f32 v{ACC+i}, v{G+i}, v{ACC+i}, v{XU+i}")
    for i in range(8):
        k(f"v_cvt_pk_bf16_f32 v{TMP+i}, v{ACC+2*i}, v{ACC+2*i+1}")
    k(f"""
    v_lshlrev_b32 v7, 10, v5
    v_lshl_add_u32 v7, v4, 3, v7
    s_lshl_b32 s59, s49, 15
    s_lshl_b32 s56, s47, 6
    s_add_u32 s59, s59, s56
    """)
    for j in range(4):
        k(f"buffer_store_dwordx2 v[{TMP+2*j}:{TMP+2*j+1}], v7, s[28:31], s59 offen offset:{16*j}")
    epilogue(k)
    return k, (256, 256, 49152)


def build(path=OUT):
    ks = [k0(), k1(), k2b(), k3(), k4(), k5()]
    errs = []
    for k, _ in ks:
        errs += k.check()
    for e in errs:
        print(e)
    ref = open(OUT + ".ref").read().split("\n")
    hdr = [l for l in ref if l.startswith(";") and "@launch" not in l and "Override" not in l and "grid=ceil" not in l]
    out = "\n".join(hdr) + "\n"
    for k, (g, b, lds) in ks:
        out += f"; @launch kernel={k.name} grid=({g},1,1) block=({b},1,1) lds={lds}\n"
    out += '.amdgcn_target "amdgcn-amd-amdhsa--gfx950"\n'
    codes, kds = zip(*[k.text() for k, _ in ks])
    out += "".join(codes)
    out += '.section .rodata,"a"\n' + "".join(kds)
    open(path, "w").write(out)
    print("wrote", path, len(out), "bytes;", len(errs), "checker errors")
    return len(errs)


if __name__ == "__main__":
    sys.exit(1 if build(sys.argv[1] if len(sys.argv) > 1 else OUT) else 0)
```

```python
import sys, os
sys.path.insert(0, "gen")
from asmlib import Kern
import gen as G
from gen import (MB, OFF_MOD, OFF_XHAT, OFF_WQKV, OFF_Q, OFF_KV, OFF_O, OFF_WO, OFF_X2, OFF_X2S, OFF_ST2, OFF_W1,
                 OFF_H, OFF_W2, QSCALE, P_X, P_WQKV, P_WO, P_W1, P_W2, P_C, P_WMOD, P_OUT, P_WS, srd, stamp, endpgm,
                 prologue, prologue_wait, epilogue, bf16_round, ln_stats_finish, role_ln, role_relayout, ATT, att_unit,
                 att_max16, NAME, OUT, DIAG)

OFF_MODB = 0x3000
OFF_FLAG = G.OFF_FLAG
FL = "sc1"


class VM:
    def __init__(self, k):
        self.k = k; self.n = 0
    def op(self, text=None):
        if text:
            self.k(text)
        self.n += 1
        return self.n
    def tick(self):
        self.n += 1
        return self.n
    def wait_str(self, idx):
        c = self.n - idx
        return f"s_waitcnt vmcnt({min(c, 63)})"
    def wait(self, idx):
        self.k(self.wait_str(idx))


def signal(k, edge, s_group, s_member, gsize):
    lab = f"L_sig{edge}"
    k(f"""
    s_mul_i32 s38, s{s_group}, {gsize}
    s_add_u32 s38, s38, s{s_member}
    s_lshl_b32 s38, s38, 8
    s_add_u32 s38, s38, {OFF_FLAG + edge * 65536}
    v_mov_b32 v6, 0
    v_mov_b32 v7, 1
    s_waitcnt vmcnt(0) lgkmcnt(0)
    s_barrier
    s_cmp_lg_u32 s3, 0
    s_cbranch_scc1 {lab}
    s_mov_b64 exec, 1
    buffer_store_dword v7, v6, s[24:27], s38 offen {FL}
    s_mov_b64 exec, -1
    """)
    k.label(lab)


def wait_edge(k, edge, s_group, gsize):
    lab = f"L_wait{edge}"
    k(f"""
    s_cmp_lg_u32 s3, 0
    s_cbranch_scc1 {lab}
    s_mul_i32 s38, s{s_group}, {gsize*256}
    s_add_u32 s38, s38, {OFF_FLAG + edge * 65536}
    v_lshlrev_b32 v6, 8, v1
    s_mov_b32 exec_lo, {hex((1 << gsize) - 1)}
    s_mov_b32 exec_hi, 0
    s_mov_b32 s39, 0x400000
    """)
    k.label(f"L_poll{edge}")
    k(f"""
    buffer_load_dword v7, v6, s[24:27], s38 offen {FL}
    s_sub_u32 s39, s39, 1
    s_cbranch_scc1 L_bail{edge}
    s_waitcnt vmcnt(0)
    v_cmp_eq_u32 vcc, 0, v7
    s_cbranch_vccnz L_poll{edge}
    """)
    k.label(f"L_bail{edge}")
    k("s_waitcnt vmcnt(0)")
    k("s_mov_b64 exec, -1")
    k.label(lab)
    k("s_barrier")


def wo_reg(s):
    return f"a[{224+4*s}:{227+4*s}]" if s < 8 else f"v[{160+4*(s-8)}:{163+4*(s-8)}]"


def w1_lds(f):
    if f < 32:
        return 131072 + f * 1024
    if f < 112:
        return (f - 32) * 1024
    return 112 * 1024 + (f - 112) * 1024


LDS_OST = 80 * 1024
LDS_R = 120 * 1024


def lds_rd(dst, addr):
    base = (2, 4, 5)[addr >> 16]
    return f"ds_read_b128 {dst}, v{base} offset:{addr & 0xffff}"


def mega():
    k = Kern("k1_mega_kernel", nvgpr=256, nagpr=256)
    prologue(k, 256)
    vm = VM(k)
    k("""
    s_and_b32 s36, s2, 7
    s_lshr_b32 s37, s2, 3
    v_lshlrev_b32 v2, 4, v1
    """)
    VA, VB, ROWS, TMP, ACC, FR = 8, 16, 24, 88, 136, 104
    k(f"""
    s_lshr_b32 s42, s36, 1
    s_lshl_b32 s42, s42, 3
    s_and_b32 s43, s37, 7
    s_add_u32 s42, s42, s43        ; tb1
    s_and_b32 s40, s36, 1
    s_lshl_b32 s40, s40, 2
    s_lshr_b32 s44, s37, 3
    s_add_u32 s40, s40, s44        ; cb1
    s_lshl_b32 s43, s40, 2
    s_add_u32 s43, s43, s3         ; head
    v_lshlrev_b32 v3, 5, v1
    s_lshl_b32 s44, s42, 16
    s_lshl_b32 s45, s3, 14
    s_add_u32 s44, s44, s45
    s_add_u32 s44, s44, {OFF_XHAT}
    s_mul_i32 s46, s43, {48*1024}
    s_add_u32 s46, s46, {OFF_WQKV}
    """)
    prologue_wait(k)
    srd(k, 28, P_X, 2048 * 1024)
    srd(k, 32, P_OUT, 2048 * 1024)
    vm.op(f"buffer_load_dwordx4 v[{VB}:{VB+3}], v3, s[24:27], 0 offen offset:{OFF_MOD}")
    vm.op(f"buffer_load_dwordx4 v[{VB+4}:{VB+7}], v3, s[24:27], 0 offen offset:{OFF_MOD+16}")
    vm.op(f"buffer_load_dwordx4 v[{VA}:{VA+3}], v3, s[24:27], 0 offen offset:{OFF_MOD+2048}")
    vm.op(f"buffer_load_dwordx4 v[{VA+4}:{VA+7}], v3, s[24:27], 0 offen offset:{OFF_MOD+2064}")
    rowid = []
    for r in range(16):
        if r and r % 4 == 0:
            k("s_add_u32 s44, s44, 4096")
        rowid.append(vm.op(f"buffer_load_dwordx4 v[{ROWS+4*r}:{ROWS+4*r+3}], v2, s[24:27], s44 offen offset:{(r%4)*1024}"))
    wid = []
    def wload():
        i = len(wid)
        if i >= 48:
            return
        if i and i % 4 == 0:
            k("s_add_u32 s46, s46, 4096")
        wid.append(vm.op(f"buffer_load_dwordx4 a[{4*i}:{4*i+3}], v2, s[24:27], s46 offen offset:{(i%4)*1024}"))
    k(f"""
    v_and_b32 v4, 7, v1
    v_lshlrev_b32 v4, 4, v4
    v_lshl_add_u32 v4, v1, 8, v4
    v_add_u32 v4, s45, v4
    v_and_b32 v5, 15, v1
    v_lshrrev_b32 v6, 4, v1
    v_xor_b32 v7, v5, v6
    v_lshlrev_b32 v7, 4, v7
    v_lshl_add_u32 v6, v6, 8, v7
    v_xor_b32 v7, 64, v6
    """)
    stamp(k, 1)
    for r in range(16):
        vm.wait(rowid[r])
        b = ROWS + 4 * r
        t = TMP + 8 * (r & 1)
        for i in range(4):
            k(f"v_lshlrev_b32 v{t+2*i}, 16, v{b+i}")
            k(f"v_and_b32 v{t+2*i+1}, 0xffff0000, v{b+i}")
        wload()
        for i in range(4):
            k(f"v_pk_fma_f32 v[{t+2*i}:{t+2*i+1}], v[{t+2*i}:{t+2*i+1}], v[{VA+2*i}:{VA+2*i+1}], v[{VB+2*i}:{VB+2*i+1}]")
        for i in range(4):
            k(f"v_cvt_pk_bf16_f32 v{b+i}, v{t+2*i}, v{t+2*i+1}")
        k(f"v_xor_b32 v5, {r<<4}, v4")
        k(f"ds_write_b128 v5, v[{b}:{b+3}]")
        if r >= 8:
            wload()
    k("s_waitcnt lgkmcnt(0)")
    k("s_barrier")
    stamp(k, 2)
    def aread(s):
        base = 6 + (s & 1)
        f = FR + 16 * (s & 1)
        for b in range(4):
            k(f"ds_read_b128 v[{f+4*b}:{f+4*b+3}], v{base} offset:{b*16384+s*1024}")
    aread(0)
    for s in range(16):
        if s < 15:
            aread(s + 1)
        k(vm.wait_str(wid[3 * s + 2]) + (" lgkmcnt(4)" if s < 15 else " lgkmcnt(0)"))
        f = FR + 16 * (s & 1)
        for b in range(4):
            for which in range(3):
                acc = ACC + 4 * (which * 4 + b)
                w = f"a[{12*s+4*which}:{12*s+4*which+3}]"
                h = f"v[{f+4*b}:{f+4*b+3}]"
                c = "0" if s == 0 else f"v[{acc}:{acc+3}]"
                a_, b_ = (w, h) if which < 2 else (h, w)
                k(f"v_mfma_f32_16x16x32_bf16 v[{acc}:{acc+3}], {a_}, {b_}, {c}")
            if b < 3:
                wload()
    stamp(k, 3)
    k(f"""
    s_lshl_b32 s44, s43, 16
    s_lshl_b32 s45, s42, 11
    s_add_u32 s44, s44, s45
    s_add_u32 s44, s44, {OFF_Q}
    s_lshl_b32 s46, s43, 17
    s_lshl_b32 s45, s42, 12
    s_add_u32 s46, s46, s45
    s_add_u32 s46, s46, {OFF_KV}
    v_mov_b32 v10, {QSCALE:#x}
    v_mov_b32 v11, {QSCALE:#x}
    """)
    for which in (1, 2, 0):
        for bp in range(2):
            t = 12 + 4 * (which * 2 + bp)
            for b2 in range(2):
                acc = ACC + 4 * (which * 4 + bp * 2 + b2)
                if which == 0:
                    k(f"v_pk_mul_f32 v[{acc}:{acc+1}], v[10:11], v[{acc}:{acc+1}]")
                    k(f"v_pk_mul_f32 v[{acc+2}:{acc+3}], v[10:11], v[{acc+2}:{acc+3}]")
                k(f"v_cvt_pk_bf16_f32 v{t+2*b2}, v{acc}, v{acc+1}")
                k(f"v_cvt_pk_bf16_f32 v{t+2*b2+1}, v{acc+2}, v{acc+3}")
        op = "v_permlane32_swap_b32" if which == 2 else "v_permlane16_swap_b32"
        for bp in range(2):
            t = 12 + 4 * (which * 2 + bp)
            if bp == 1:
                k("s_nop 0")
            k(f"{op} v{t}, v{t+2}")
            k(f"{op} v{t+1}, v{t+3}")
            if which == 0:
                vm.op(f"buffer_store_dwordx4 v[{t}:{t+3}], v2, s[24:27], s44 offen offset:{bp*1024} {FL}")
            else:
                vm.op(f"buffer_store_dwordx4 v[{t}:{t+3}], v2, s[24:27], s46 offen offset:{bp*2048+(which-1)*1024} {FL}")
    signal(k, 0, 40, 42, 32)
    stamp(k, 4)
    Q, KF, VF, S, P, O, C = (ATT[x] for x in ("Q", "KF", "VF", "S", "P", "O", "C"))
    k(f"""
    s_lshl_b32 s40, s36, 2
    s_and_b32 s42, s37, 3
    s_add_u32 s40, s40, s42        ; head2
    s_lshr_b32 s54, s37, 2         ; qb256
    s_lshl_b32 s41, s54, 2
    s_add_u32 s41, s41, s3         ; qblock64
    s_lshl_b32 s42, s40, 16
    s_lshl_b32 s43, s41, 11
    s_add_u32 s42, s42, s43
    s_add_u32 s42, s42, {OFF_Q}
    s_lshl_b32 s44, s40, 17
    s_lshl_b32 s45, s3, 10
    s_add_u32 s47, s44, {OFF_KV}
    s_add_u32 s44, s47, s45
    s_lshl_b32 s46, s41, 16
    s_lshl_b32 s43, s40, 10
    s_add_u32 s46, s46, s43
    s_add_u32 s46, s46, {OFF_O}
    s_mov_b32 m0, s45
    v_and_b32 v3, 15, v1
    v_lshlrev_b32 v3, 4, v3
    v_lshrrev_b32 v4, 5, v1
    v_lshl_add_u32 v3, v4, 8, v3
    v_add_u32 v4, 0x10000, v2
    v_add_u32 v5, 0x10000, v3
    s_mov_b32 s48, 0x0000ffff
    s_mov_b32 s49, 0x0000ffff
    v_and_b32 v8, 27, v1
    v_cmp_eq_u32 vcc, 16, v8
    v_mov_b32 v9, 0x3f803f80
    s_nop 0
    v_cndmask_b32 v9, 0, v9, vcc
    """)
    for i in range(16):
        k(f"v_mov_b32 v{VF+i}, v9")
    k(f"""
    s_lshr_b32 s50, s37, 3
    s_lshl_b32 s50, s50, 2
    s_add_u32 s50, s50, s3          ; P3 ncol32
    s_lshl_b32 s51, s50, 15
    s_add_u32 s51, s51, {OFF_WO}
    s_lshr_b32 s52, s37, 2
    s_lshl_b32 s52, s52, 1
    s_lshr_b32 s53, s3, 1
    s_add_u32 s52, s52, s53
    s_xor_b32 s53, s52, 1
    s_mul_i32 s55, s52, {112*1024}
    s_mul_i32 s56, s53, {112*1024}
    s_mul_i32 s53, s3, {28*1024}
    s_add_u32 s53, s53, {OFF_W2}
    s_add_u32 s55, s55, s53
    s_add_u32 s56, s56, s53
    s_lshr_b32 s57, s37, 2
    s_lshl_b32 s57, s57, 1
    s_and_b32 s53, s37, 1
    s_add_u32 s57, s57, s53         ; cb4
    s_mul_i32 s58, s57, {112*1024}
    s_add_u32 s58, s58, s45
    s_add_u32 s58, s58, {OFF_W1}
    """)
    wait_edge(k, 0, 36, 32)
    stamp(k, 5)
    vm.n = 0
    rid = []
    def dma():
        i = len(rid)
        out = []
        if i:
            out += ["s_add_u32 m0, m0, 4096", "s_add_u32 s44, s44, 4096"]
        out += [f"buffer_load_dwordx4 v2, s[24:27], s44 offen {FL} lds"]
        rid.append(vm.tick())
        return out
    for x in dma(): k(x)
    vm.op(f"buffer_load_dwordx4 v[{Q}:{Q+3}], v2, s[24:27], s42 offen {FL}")
    qid = vm.op(f"buffer_load_dwordx4 v[{Q+4}:{Q+7}], v2, s[24:27], s42 offen offset:1024 {FL}")
    for r in range(3):
        for x in dma(): k(x)
    vm.wait(qid)
    k("s_barrier")
    def kread(t):
        off = t * 2048
        return f"ds_read_b128 v[{KF}:{KF+3}], v{2 if off < 65536 else 4} offset:{off & 0xffff}"
    def vread(t):
        off = t * 2048 + 1024
        b = VF + 8 * (t & 1)
        a = 3 if off < 65536 else 5
        return ["s_mov_b64 exec, s[48:49]",
                f"ds_read_b128 v[{b}:{b+3}], v{a} offset:{off & 0xffff}",
                f"ds_read_b128 v[{b+4}:{b+7}], v{a} offset:{(off+512) & 0xffff}",
                "s_mov_b64 exec, -1"]
    k(kread(0))
    for x in vread(0): k(x)
    k(f"""
    s_waitcnt lgkmcnt(2)
    v_mfma_f32_32x32x16_bf16 v[{S}:{S+15}], v[{KF}:{KF+3}], v[{Q}:{Q+3}], 0
    v_mfma_f32_32x32x16_bf16 v[{S+16}:{S+31}], v[{KF}:{KF+3}], v[{Q+4}:{Q+7}], 0
    s_nop 10
    """)
    att_max16(k, 6, S, True)
    att_max16(k, 7, S + 16, True)
    k("""
    s_nop 1
    v_permlane32_swap_b32 v6, v7
    v_max_f32 v6, v6, v7
    v_mov_b32 v7, v6
    s_nop 1
    v_permlane32_swap_b32 v6, v7
    v_sub_f32 v6, 0, v6
    v_sub_f32 v7, 0, v7
    """)
    for i in range(16):
        k(f"v_mov_b32 v{C+i}, v6")
    k("s_nop 0")
    k(f"v_mov_b32 v{C+16}, v7")
    k(f"v_mfma_f32_32x32x16_bf16 v[{S}:{S+15}], v[{KF}:{KF+3}], v[{Q}:{Q+3}], v[{C}:{C+15}]")
    for i in range(1, 16):
        k(f"v_mov_b32 v{C+16+i}, v7")
    stamp(k, 6)
    jobs = []
    for s in range(32):
        pre = ["s_add_u32 s51, s51, 4096"] if (s and s % 4 == 0) else []
        jobs.append(pre + [f"buffer_load_dwordx4 {wo_reg(s)}, v2, s[24:27], s51 offen offset:{(s%4)*1024}"])
    for s in range(28):
        for i, sr in enumerate((55, 56)):
            pre = [f"s_add_u32 s{sr}, s{sr}, 4096"] if (s and s % 4 == 0) else []
            jobs.append(pre + [f"buffer_load_dwordx4 a[{8*s+4*i}:{8*s+4*i+3}], v2, s[24:27], s{sr} offen offset:{(s%4)*1024}"])
    w1jobs = []
    for i in range(28):
        pre = [f"s_add_u32 m0, s45, {w1_lds(4*i)}"] + (["s_add_u32 s58, s58, 4096"] if i else ["s_nop 0"])
        w1jobs.append(pre + ["buffer_load_dwordx4 v2, s[24:27], s58 offen lds"])
    jobs = w1jobs[:8] + jobs
    late = w1jobs[8:]
    for u in range(128):
        t = u >> 1
        side = {}
        def add(slot, xs):
            side.setdefault(slot, []).extend(xs)
        if len(rid) < 32:
            d = dma()
            add(1, d[:2]); add(2, d[2:])
        elif jobs:
            d = jobs.pop(0); vm.tick()
            add(1, d[:-1]); add(2, d[-1:])
        if u % 2 == 0 and t < 63:
            pre = []
            if u == 2:
                pre = [vm.wait_str(rid[3]), "s_barrier"]
            elif u == 14:
                pre = [vm.wait_str(rid[11]), "s_barrier"]
            elif u == 46:
                pre = [vm.wait_str(rid[31]), "s_barrier"]
            elif u == 82:
                pre = ["s_barrier"]
            add(14, pre + [kread(t + 1)])
            add(15, vread(t + 1))
        if u % 2 == 1 or u == 0:
            add(-14, ["s_waitcnt lgkmcnt(0)"])
        if u >= 83 and late and u % 2 == 1:
            d = late.pop(0); vm.tick()
            add(17, d[:-1]); add(18, d[-1:])
        att_unit(k, u, side, last=(u == 127))
    assert not jobs and not late, (len(jobs), len(late))
    k(f"""
    s_nop 0
    v_cvt_pk_bf16_f32 v{P+7}, v{S+30}, v{S+31}
    s_nop 1
    v_mfma_f32_32x32x16_bf16 v[{O+16}:{O+31}], v[{VF+12}:{VF+15}], v[{P+4}:{P+7}], v[{O+16}:{O+31}]
    s_mov_b32 s53, 0x53800000
    v_cmp_nge_f32 vcc, s53, v{O+8}
    s_nop 9
    v_cmp_nge_f32 s[42:43], s53, v{O+24}
    s_nop 3
    s_or_b64 vcc, vcc, s[42:43]
    s_cbranch_scc0 L_att_fin
    s_branch L_att_fallback
    """)
    k.label("L_att_fin")
    stamp(k, 7)
    k(f"v_rcp_f32 v6, v{O+8}")
    k(f"v_rcp_f32 v7, v{O+24}")
    for b in range(2):
        for i in range(8):
            k(f"v_mul_f32 v{O+16*b+i}, v{6+b}, v{O+16*b+i}")
        for i in range(4):
            k(f"v_cvt_pk_bf16_f32 v{P+4*b+i}, v{O+16*b+2*i}, v{O+16*b+2*i+1}")
        if b:
            k("s_add_u32 s46, s46, 32768")
        k(f"buffer_store_dwordx4 v[{P+4*b}:{P+4*b+3}], v2, s[24:27], s46 offen {FL}")
    signal(k, 1, 54, 40, 32)
    vm.n = 0
    ACC3, OFR, XR, XU, GA, A2, MA = 8, 24, 56, 64, 80, 96, 56
    k(f"""
    v_add_u32 v5, 0x20000, v2
    v_and_b32 v8, 15, v1
    v_lshrrev_b32 v9, 4, v1
    v_lshlrev_b32 v10, 10, v8
    v_lshl_add_u32 v10, v9, 4, v10
    v_cmp_gt_u32 vcc, 2, v8
    v_mov_b32 v11, 0x7ff00000
    s_nop 0
    v_cndmask_b32 v10, v11, v10, vcc
    s_mov_b32 s42, {OFF_MODB}
    """)
    MB_ = 24
    mid = [vm.op(f"buffer_load_dwordx4 v[{MB_+4*s}:{MB_+4*s+3}], v10, s[24:27], s42 offen offset:{64*s}") for s in range(16)]
    k(f"""
    s_lshl_b32 s43, s3, 10
    v_add_u32 v12, s43, v2
    """)
    WU = 88
    U0, U1 = 104, 108
    def uread(s):
        r = WU + 8 * (s & 1)
        for h in range(2):
            f0 = s * 7 + 4 * h
            k(f"v_add_u32 v13, {f0*1024 + 131072}, v12")
            k(f"v_subrev_u32 v14, {163840}, v13")
            k(f"v_min_u32 v13, v13, v14")
            k(f"ds_read_b128 v[{r+4*h}:{r+4*h+3}], v13")
    uread(0)
    for s in range(16):
        if s < 15:
            uread(s + 1)
            k(vm.wait_str(mid[s]) + " lgkmcnt(2)")
        else:
            k(vm.wait_str(mid[s]) + " lgkmcnt(0)")
        r = WU + 8 * (s & 1)
        for h, u_ in enumerate((U0, U1)):
            c = "0" if s == 0 else f"v[{u_}:{u_+3}]"
            k(f"v_mfma_f32_16x16x32_bf16 v[{u_}:{u_+3}], v[{MB_+4*s}:{MB_+4*s+3}], v[{r+4*h}:{r+4*h+3}], {c}")
    k(f"""
    s_lshl_b32 s42, s36, 3
    s_and_b32 s43, s37, 7
    s_add_u32 s42, s42, s43         ; t3 (tok32)
    v_lshrrev_b32 v8, 5, v1         ; h
    v_and_b32 v9, 31, v1            ; tok
    v_lshlrev_b32 v10, 4, v8
    s_lshl_b32 s43, s50, 7
    s_add_u32 s44, s43, {OFF_MOD + 2*2048}
    s_add_u32 s45, s43, {OFF_MOD + 4*2048}
    v_lshlrev_b32 v11, 10, v9
    v_lshl_add_u32 v11, v8, 3, v11
    s_lshl_b32 s46, s42, 15
    s_lshl_b32 s43, s50, 6
    s_add_u32 s46, s46, s43
    """)
    XR, XU, GA, A2 = 112, 24, 120, 136
    for j in range(4):
        vm.op(f"buffer_load_dwordx2 v[{XR+2*j}:{XR+2*j+1}], v11, s[28:31], s46 offen offset:{16*j}")
        vm.op(f"buffer_load_dwordx4 v[{GA+4*j}:{GA+4*j+3}], v10, s[24:27], s44 offen offset:{32*j}")
        eid = vm.op(f"buffer_load_dwordx4 v[{A2+4*j}:{A2+4*j+3}], v10, s[24:27], s45 offen offset:{32*j}")
    for h, u_ in enumerate((U0, U1)):
        d = 88 + 4 * h
        for i in range(2):
            bf16_round(k, 12 + i, u_ + i)
        for i in range(2):
            k(f"v_sub_f32 v{14+i}, v{u_+i}, v{12+i}")
        for i in range(2):
            k(f"v_cvt_pk_bf16_f32 v{d+i}, v{12+i}, v{14+i}")
        k(f"v_mov_b32 v{d+2}, 0")
        k(f"v_mov_b32 v{d+3}, 0")
    k(f"""
    s_lshl_b32 s43, s3, 10
    v_add_u32 v12, s43, v4
    ds_write_b128 v12, v[88:91] offset:{w1_lds(112) - 65536}
    ds_write_b128 v12, v[92:95] offset:{w1_lds(116) - 65536}
    """)
    vm.wait(eid)
    for i in range(8):
        k(f"v_lshlrev_b32 v{XU+2*i}, 16, v{XR+i}")
        k(f"v_and_b32 v{XU+2*i+1}, 0xffff0000, v{XR+i}")
    k(f"""
    v_lshrrev_b32 v12, 4, v9
    v_lshlrev_b32 v12, 14, v12
    v_and_b32 v13, 15, v9
    v_lshl_add_u32 v12, v13, 4, v12
    v_lshl_add_u32 v12, v8, 8, v12
    v_lshlrev_b32 v13, 7, v9
    v_lshl_add_u32 v13, v8, 2, v13
    s_lshl_b32 s44, s42, 15
    s_lshl_b32 s45, s50, 10
    s_add_u32 s44, s44, s45
    s_add_u32 s45, s44, {OFF_X2S}
    s_add_u32 s44, s44, {OFF_X2}
    s_lshl_b32 s46, s42, 12
    s_lshl_b32 s47, s50, 3
    s_add_u32 s46, s46, s47
    s_add_u32 s46, s46, {OFF_ST2}
    s_lshl_b32 s47, s42, 15
    s_add_u32 s47, s47, s43
    s_add_u32 s47, s47, {OFF_O}
    s_add_u32 m0, s43, {LDS_OST}
    """)
    stamp(k, 8)
    wait_edge(k, 1, 36, 32)
    stamp(k, 9)
    vm.n = 0
    oid = []
    for i in range(8):
        if i:
            k("s_add_u32 m0, m0, 4096")
            k("s_add_u32 s47, s47, 4096")
        oid.append(vm.op(f"buffer_load_dwordx4 v2, s[24:27], s47 offen {FL} lds"))
    AC, OFR = 40, 56
    chunks = [(0, 8), (8, 20), (20, 32)]
    for (c0, c1) in chunks:
        vm.wait(oid[c1 // 4 - 1])
        k("s_barrier")
        n = c1 - c0
        ahead = 6
        for s in range(c0, min(c1, c0 + ahead)):
            k(lds_rd(f"v[{OFR+4*(s%8)}:{OFR+4*(s%8)+3}]", LDS_OST + s * 1024))
        for s in range(c0, c1):
            issued = min(c1, s + ahead)
            k(f"s_waitcnt lgkmcnt({issued - 1 - s})")
            c = "0" if s == 0 else f"v[{AC}:{AC+15}]"
            k(f"v_mfma_f32_32x32x16_bf16 v[{AC}:{AC+15}], {wo_reg(s)}, v[{OFR+4*(s%8)}:{OFR+4*(s%8)+3}], {c}")
            if s + ahead < c1:
                s2 = s + ahead
                k(lds_rd(f"v[{OFR+4*(s2%8)}:{OFR+4*(s2%8)+3}]", LDS_OST + s2 * 1024))
    k("s_nop 11")
    for i in range(8):
        k(f"v_pk_fma_f32 v[{AC+2*i}:{AC+2*i+1}], v[{GA+2*i}:{GA+2*i+1}], v[{AC+2*i}:{AC+2*i+1}], v[{XU+2*i}:{XU+2*i+1}]")
    for i in range(8):
        k(f"v_pk_mul_f32 v[{A2+2*i}:{A2+2*i+1}], v[{A2+2*i}:{A2+2*i+1}], v[{AC+2*i}:{AC+2*i+1}]")
    for i in range(8):
        k(f"v_cvt_pk_bf16_f32 v{56+i}, v{A2+2*i}, v{A2+2*i+1}")
    k(f"buffer_store_dwordx4 v[56:59], v12, s[24:27], s45 offen {FL}")
    k(f"buffer_store_dwordx4 v[60:63], v12, s[24:27], s45 offen offset:512 {FL}")
    k(f"v_pk_add_f32 v[14:15], v[{AC}:{AC+1}], v[{AC+2}:{AC+3}]")
    k(f"v_pk_mul_f32 v[16:17], v[{AC}:{AC+1}], v[{AC}:{AC+1}]")
    for i in range(1, 8):
        if i >= 2:
            k(f"v_pk_add_f32 v[14:15], v[14:15], v[{AC+2*i}:{AC+2*i+1}]")
        k(f"v_pk_fma_f32 v[16:17], v[{AC+2*i}:{AC+2*i+1}], v[{AC+2*i}:{AC+2*i+1}], v[16:17]")
    k("v_add_f32 v14, v14, v15")
    k("v_add_f32 v16, v16, v17")
    for i in range(2):
        k(f"v_cvt_pk_bf16_f32 v{64+i}, v{AC+2*i}, v{AC+2*i+1}")
    k("v_permlane32_swap_b32 v14, v16")
    k("v_add_f32 v14, v14, v16")
    k(f"buffer_store_dword v14, v13, s[24:27], s46 offen {FL}")
    for i in range(2, 8):
        k(f"v_cvt_pk_bf16_f32 v{64+i}, v{AC+2*i}, v{AC+2*i+1}")
    k(f"buffer_store_dwordx4 v[64:67], v12, s[24:27], s44 offen {FL}")
    k(f"buffer_store_dwordx4 v[68:71], v12, s[24:27], s44 offen offset:512 {FL}")
    k("""
    s_lshr_b32 s40, s42, 2          ; E3 group
    s_and_b32 s41, s42, 3
    s_lshl_b32 s41, s41, 2
    s_lshr_b32 s43, s37, 3
    s_add_u32 s41, s41, s43         ; member
    """)
    signal(k, 2, 40, 41, 16)
    stamp(k, 10)
    ACC4, WF, ST, SB = 8, 64, 120, 136
    k(f"""
    s_lshl_b32 s40, s36, 1
    s_bfe_u32 s41, s37, 0x10001
    s_add_u32 s40, s40, s41        ; tb4
    s_lshl_b32 s44, s40, 2
    s_add_u32 s44, s44, s3         ; tok32
    s_lshl_b32 s45, s44, 15
    s_add_u32 s45, s45, {OFF_X2S}
    s_add_u32 s46, s45, 16384
    v_and_b32 v3, 15, v1
    v_lshrrev_b32 v152, 4, v1
    v_lshlrev_b32 v153, 7, v3
    v_lshl_add_u32 v153, v152, 5, v153
    s_lshl_b32 s47, s44, 12
    s_add_u32 s47, s47, {OFF_ST2}
    s_mul_i32 s42, s44, {112*1024}
    s_mul_i32 s43, s57, {7*1024}
    s_add_u32 s42, s42, s43
    s_add_u32 s42, s42, {OFF_H}
    s_add_u32 s43, s42, 4096
    """)
    def wread(s):
        f = WF + 28 * (s & 1)
        return [lds_rd(f"v[{f+4*i}:{f+4*i+3}]", w1_lds(s * 7 + i)) for i in range(7)]
    for x in wread(0): k(x)
    wait_edge(k, 2, 40, 16)
    stamp(k, 11)
    vm.n = 0
    xid = []
    def xload():
        s = len(xid)
        if s >= 16:
            return
        if s and s % 4 == 0:
            k("s_add_u32 s45, s45, 4096")
            k("s_add_u32 s46, s46, 4096")
        vm.op(f"buffer_load_dwordx4 {wo_reg(2*s)}, v2, s[24:27], s45 offen offset:{(s%4)*1024} {FL}")
        xid.append(vm.op(f"buffer_load_dwordx4 {wo_reg(2*s+1)}, v2, s[24:27], s46 offen offset:{(s%4)*1024} {FL}"))
    for s in range(5):
        xload()
    for j in range(2):
        vm.op(f"buffer_load_dwordx4 v[{ST+8*j}:{ST+8*j+3}], v153, s[24:27], s47 offen offset:{2048*j} {FL}")
        sid = vm.op(f"buffer_load_dwordx4 v[{ST+8*j+4}:{ST+8*j+7}], v153, s[24:27], s47 offen offset:{2048*j+16} {FL}")
    class L(list):
        def __call__(self, text):
            for l in text.strip("\n").split("\n"):
                if l.strip():
                    self.append(l.strip())
    fill = L()
    for j in range(2):
        b = ST + 8 * j
        fill(f"v_pk_add_f32 v[{b}:{b+1}], v[{b}:{b+1}], v[{b+2}:{b+3}]")
        fill(f"v_pk_add_f32 v[{b+4}:{b+5}], v[{b+4}:{b+5}], v[{b+6}:{b+7}]")
        fill(f"v_pk_add_f32 v[{b}:{b+1}], v[{b}:{b+1}], v[{b+4}:{b+5}]")
    regs = [ST, ST + 1, ST + 8, ST + 9]
    tmp = [ST + 2, ST + 3, ST + 10, ST + 11]
    for op in ("v_permlane16_swap_b32", "v_permlane32_swap_b32"):
        for r, t in zip(regs, tmp):
            fill(f"v_mov_b32 v{t}, v{r}")
        fill("s_nop 1")
        for r, t in zip(regs, tmp):
            fill(f"{op} v{t}, v{r}")
        for r, t in zip(regs, tmp):
            fill(f"v_add_f32 v{r}, v{t}, v{r}")
    for j in range(2):
        b = ST + 8 * j
        ln_stats_finish(fill, b, b + 1, b + 4, b + 5, None, std_out=b + 6)
        fill(f"v_cvt_pk_bf16_f32 v{SB+4*j}, -v{b+4}, -v{b+4}")
        fill(f"v_cvt_pk_bf16_f32 v{SB+4*j+1}, v{b+6}, v{b+6}")
        fill(f"v_mov_b32 v{SB+4*j+2}, 0")
        fill(f"v_mov_b32 v{SB+4*j+3}, 0")
    fill(f"""
    v_lshlrev_b32 v154, 2, v3
    s_lshl_b32 s41, s3, 7
    v_add_u32 v154, s41, v154
    v_add_u32 v154, {LDS_R}, v154
    """)
    for s in range(17):
        if s < 16:
            for x in wread(s + 1): k(x)
            k(vm.wait_str(xid[s]) + " lgkmcnt(7)")
        else:
            k("s_waitcnt lgkmcnt(0)")
        if s == 6:
            vm.wait(sid)
        f = WF + 28 * (s & 1)
        for i in range(7):
            for j in range(2):
                a = ACC4 + 4 * (j * 7 + i)
                c = "0" if s == 0 else f"v[{a}:{a+3}]"
                bop = wo_reg(2 * s + j) if s < 16 else f"v[{SB+4*j}:{SB+4*j+3}]"
                k(f"v_mfma_f32_16x16x32_bf16 v[{a}:{a+3}], v[{f+4*i}:{f+4*i+3}], {bop}, {c}")
                if s >= 6 and fill:
                    k(fill.pop(0))
            if i == 2:
                xload()
    assert not fill
    k(f"ds_write_b32 v154, v{ST+5}")
    k(f"ds_write_b32 v154, v{ST+13} offset:64")
    for i in range(7):
        t = WF + 4 * i
        for j in range(2):
            a = ACC4 + 4 * (j * 7 + i)
            k(f"v_cvt_pk_bf16_f32 v{t+2*j}, v{a}, v{a+1}")
            k(f"v_cvt_pk_bf16_f32 v{t+2*j+1}, v{a+2}, v{a+3}")
        for q in range(4):
            k(f"v_pk_max_i16 v{t+q}, v{t+q}, 0")
        if i:
            tp = WF + 4 * (i - 1)
            k(f"v_permlane16_swap_b32 v{tp}, v{tp+2}")
            k(f"v_permlane16_swap_b32 v{tp+1}, v{tp+3}")
            k(f"buffer_store_dwordx4 v[{tp}:{tp+3}], v2, s[24:27], s{42 if i-1 < 4 else 43} offen offset:{((i-1)%4)*1024} {FL}")
    tp = WF + 24
    k("s_nop 1")
    k(f"v_permlane16_swap_b32 v{tp}, v{tp+2}")
    k(f"v_permlane16_swap_b32 v{tp+1}, v{tp+3}")
    k(f"buffer_store_dwordx4 v[{tp}:{tp+3}], v2, s[24:27], s43 offen offset:2048 {FL}")
    signal(k, 3, 40, 57, 16)
    vm.n = 0
    ACC5, RB, DEPTH = 8, 72, 19
    G5, X5, R5 = 224, 240, 248
    k(f"""
    s_lshl_b32 s42, s36, 2
    s_and_b32 s43, s37, 3
    s_add_u32 s42, s42, s43         ; tb5
    s_lshl_b32 s42, s42, 1
    s_and_b32 s43, s3, 1
    s_add_u32 s42, s42, s43
    s_xor_b32 s43, s42, 1
    s_mul_i32 s44, s42, {112*1024}
    s_mul_i32 s45, s43, {112*1024}
    s_mul_i32 s46, s3, {28*1024}
    s_add_u32 s46, s46, {OFF_H}
    s_add_u32 s44, s44, s46
    s_add_u32 s45, s45, s46
    v_lshrrev_b32 v250, 5, v1
    v_and_b32 v251, 31, v1
    v_lshlrev_b32 v252, 4, v250
    s_lshl_b32 s46, s52, 7
    s_add_u32 s46, s46, {OFF_MOD + 5*2048}
    v_lshrrev_b32 v253, 4, v251
    v_lshlrev_b32 v253, 14, v253
    v_and_b32 v254, 15, v251
    v_lshl_add_u32 v253, v254, 4, v253
    v_lshl_add_u32 v253, v250, 8, v253
    s_lshl_b32 s47, s42, 15
    s_lshl_b32 s50, s52, 10
    s_add_u32 s47, s47, s50
    s_add_u32 s47, s47, {OFF_X2}
    s_and_b32 s50, s42, 3
    s_lshl_b32 s50, s50, 7
    s_add_u32 s50, s50, {LDS_R}
    v_lshlrev_b32 v254, 2, v251
    v_add_u32 v254, s50, v254
    ds_read_b32 v{R5}, v254
    """)
    for j in range(4):
        vm.op(f"buffer_load_dwordx4 v[{G5+4*j}:{G5+4*j+3}], v252, s[24:27], s46 offen offset:{32*j}")
    vm.op(f"buffer_load_dwordx4 v[{X5}:{X5+3}], v253, s[24:27], s47 offen {FL}")
    gid = vm.op(f"buffer_load_dwordx4 v[{X5+4}:{X5+7}], v253, s[24:27], s47 offen offset:512 {FL}")
    k(f"""
    v_lshlrev_b32 v253, 10, v251
    v_lshl_add_u32 v253, v250, 4, v253
    s_lshl_b32 s47, s42, 15
    s_lshl_b32 s50, s52, 6
    s_add_u32 s47, s47, s50
    s_waitcnt vmcnt(0) lgkmcnt(0)
    """)
    for i in range(16):
        k(f"v_mul_f32 v{G5+i}, v{R5}, v{G5+i}")
    wait_edge(k, 3, 40, 16)
    vm.n = 0
    hid = []
    def hload():
        s = len(hid)
        if s >= 28:
            return
        r = RB + 8 * (s % DEPTH)
        if s and s % 4 == 0:
            k("s_add_u32 s44, s44, 4096")
            k("s_add_u32 s45, s45, 4096")
        vm.op(f"buffer_load_dwordx4 v[{r}:{r+3}], v2, s[24:27], s44 offen offset:{(s%4)*1024} {FL}")
        hid.append(vm.op(f"buffer_load_dwordx4 v[{r+4}:{r+7}], v2, s[24:27], s45 offen offset:{(s%4)*1024} {FL}"))
    for s in range(8):
        hload()
    for s in range(28):
        vm.wait(hid[s])
        r = RB + 8 * (s % DEPTH)
        A0, A1 = f"a[{8*s}:{8*s+3}]", f"a[{8*s+4}:{8*s+7}]"
        B0, B1 = f"v[{r}:{r+3}]", f"v[{r+4}:{r+7}]"
        for t, (a, b) in enumerate(((A0, B0), (A0, B1), (A1, B0), (A1, B1))):
            acc = ACC5 + 16 * t
            c = "0" if s == 0 else f"v[{acc}:{acc+15}]"
            k(f"v_mfma_f32_32x32x16_bf16 v[{acc}:{acc+15}], {a}, {b}, {c}")
            if t == 0 or (t == 2 and len(hid) - s < DEPTH - 1):
                if len(hid) - s < DEPTH:
                    hload()
    XU5, TMP5 = 72, 88
    for t in (1, 2, 3):
        k(f"""
        s_xor_b32 s56, s3, {t}
        s_mul_i32 s56, s56, 12288
        s_add_u32 s56, s56, {(t-1)*4096}
        v_add_u32 v{3+t}, s56, v2
        """)
    for t in (1, 2, 3):
        for q in range(4):
            k(f"ds_write_b128 v{3+t}, v[{ACC5+16*t+4*q}:{ACC5+16*t+4*q+3}] offset:{q*1024}")
    for i in range(8):
        k(f"v_lshlrev_b32 v{XU5+2*i}, 16, v{X5+i}")
        k(f"v_and_b32 v{XU5+2*i+1}, 0xffff0000, v{X5+i}")
    k(f"""
    s_mul_i32 s56, s3, 12288
    v_add_u32 v3, s56, v2
    s_waitcnt lgkmcnt(0)
    s_barrier
    """)
    for i in range(12):
        k(f"ds_read_b128 v[{TMP5+4*i}:{TMP5+4*i+3}], v3 offset:{i*1024}")
    for sl in range(3):
        k(f"s_waitcnt lgkmcnt({8-4*sl})")
        for i in range(8):
            k(f"v_pk_add_f32 v[{ACC5+2*i}:{ACC5+2*i+1}], v[{ACC5+2*i}:{ACC5+2*i+1}], v[{TMP5+16*sl+2*i}:{TMP5+16*sl+2*i+1}]")
    for i in range(8):
        k(f"v_pk_fma_f32 v[{ACC5+2*i}:{ACC5+2*i+1}], v[{G5+2*i}:{G5+2*i+1}], v[{ACC5+2*i}:{ACC5+2*i+1}], v[{XU5+2*i}:{XU5+2*i+1}]")
    for i in range(8):
        k(f"v_cvt_pk_bf16_f32 v{TMP5+i}, v{ACC5+2*i}, v{ACC5+2*i+1}")
    k("s_nop 0")
    for p in range(2):
        t = TMP5 + 4 * p
        k(f"v_permlane32_swap_b32 v{t}, v{t+2}")
        k(f"v_permlane32_swap_b32 v{t+1}, v{t+3}")
        k(f"buffer_store_dwordx4 v[{t}:{t+3}], v253, s[32:35], s47 offen offset:{32*p}")
    endpgm(k)
    k.label("L_att_fallback")
    k(f"""
    s_mov_b32 s42, 0
    s_mov_b32 s43, s47
    v_mov_b32 v6, 0xff800000
    v_mov_b32 v7, 0xff800000
    """)
    k.label("L_att_maxloop")
    k(f"""
    buffer_load_dwordx4 v[{KF}:{KF+3}], v2, s[24:27], s43 offen {FL}
    s_add_u32 s43, s43, 2048
    s_waitcnt vmcnt(0)
    v_mfma_f32_32x32x16_bf16 v[{S}:{S+15}], v[{KF}:{KF+3}], v[{Q}:{Q+3}], 0
    v_mfma_f32_32x32x16_bf16 v[{S+16}:{S+31}], v[{KF}:{KF+3}], v[{Q+4}:{Q+7}], 0
    s_nop 10
    """)
    att_max16(k, 6, S, False)
    att_max16(k, 7, S + 16, False)
    k(f"""
    s_add_u32 s42, s42, 1
    s_cmp_lt_u32 s42, 64
    s_cbranch_scc1 L_att_maxloop
    s_nop 0
    v_permlane32_swap_b32 v6, v7
    v_max_f32 v6, v6, v7
    v_mov_b32 v7, v6
    s_nop 1
    v_permlane32_swap_b32 v6, v7
    v_sub_f32 v6, 0, v6
    v_sub_f32 v7, 0, v7
    """)
    for i in range(16):
        k(f"v_mov_b32 v{C+i}, v6")
        k(f"v_mov_b32 v{C+16+i}, v7")
        k(f"v_mov_b32 v{O+i}, 0")
        k(f"v_mov_b32 v{O+16+i}, 0")
    k("s_mov_b32 s42, 0")
    k("s_mov_b32 s43, s47")
    k.label("L_att_redo")
    k(f"""
    buffer_load_dwordx4 v[{KF}:{KF+3}], v2, s[24:27], s43 offen {FL}
    s_mov_b64 exec, s[48:49]
    buffer_load_dwordx4 v[{VF}:{VF+3}], v3, s[24:27], s43 offen offset:1024 {FL}
    buffer_load_dwordx4 v[{VF+4}:{VF+7}], v3, s[24:27], s43 offen offset:1536 {FL}
    s_mov_b64 exec, -1
    s_add_u32 s43, s43, 2048
    s_waitcnt vmcnt(0)
    v_mfma_f32_32x32x16_bf16 v[{S}:{S+15}], v[{KF}:{KF+3}], v[{Q}:{Q+3}], v[{C}:{C+15}]
    v_mfma_f32_32x32x16_bf16 v[{S+16}:{S+31}], v[{KF}:{KF+3}], v[{Q+4}:{Q+7}], v[{C+16}:{C+31}]
    s_nop 10
    """)
    for b in range(2):
        for i in range(16):
            k(f"v_exp_f32 v{S+16*b+i}, v{S+16*b+i}")
        k("s_nop 0")
        for j in range(8):
            k(f"v_cvt_pk_bf16_f32 v{P+j}, v{S+16*b+2*j}, v{S+16*b+2*j+1}")
        k("s_nop 1")
        for h in range(2):
            k(f"v_mfma_f32_32x32x16_bf16 v[{O+16*b}:{O+16*b+15}], v[{VF+4*h}:{VF+4*h+3}], v[{P+4*h}:{P+4*h+3}], v[{O+16*b}:{O+16*b+15}]")
    k(f"""
    s_add_u32 s42, s42, 1
    s_cmp_lt_u32 s42, 64
    s_cbranch_scc1 L_att_redo
    s_nop 10
    s_branch L_att_fin
    """)
    k.label(f"L_end_{k.name}")
    k("s_endpgm")
    return k, (256, 256, 163840)


def build(path=OUT):
    ks = [G.k0(), mega()]
    errs = []
    for k, _ in ks:
        errs += k.check()
    for e in errs:
        print(e)
    ref = open(OUT + ".ref").read().split("\n")
    hdr = [l for l in ref if l.startswith(";") and "@launch" not in l and "Override" not in l and "grid=ceil" not in l]
    out = "\n".join(hdr) + "\n"
    for k, (g, b, lds) in ks:
        out += f"; @launch kernel={k.name} grid=({g},1,1) block=({b},1,1) lds={lds}\n"
    out += '.amdgcn_target "amdgcn-amd-amdhsa--gfx950"\n'
    codes, kds = zip(*[k.text() for k, _ in ks])
    out += "".join(codes)
    out += '.section .rodata,"a"\n' + "".join(kds)
    open(path, "w").write(out)
    print("wrote", path, len(out), "bytes;", len(errs), "checker errors")
    return len(errs)


if __name__ == "__main__":
    sys.exit(1 if build(sys.argv[1] if len(sys.argv) > 1 else OUT) else 0)
```

```python
import sys
sys.path.insert(0, "gen")
from asmlib import Kern

NAME = "adaLN_cond__mha_block__dense_activation_relu__prompt"
OUT = f"cdna_kernels/{NAME}.s"

MB = 1 << 20
OFF_MOD = 0x0
OFF_UT = 0x4000
OFF_R2 = 0x8000
OFF_XHAT = 0x10000
OFF_WQKV = OFF_XHAT + 2 * MB
OFF_Q = OFF_WQKV + 3 * MB // 2
OFF_KV = OFF_Q + 2 * MB
OFF_O = OFF_KV + 4 * MB
OFF_WO = OFF_O + 2 * MB
OFF_X2 = OFF_WO + MB // 2
OFF_X2S = OFF_X2 + 2 * MB
OFF_ST2 = OFF_X2S + 2 * MB
OFF_W1 = OFF_ST2 + MB // 4
OFF_H = OFF_W1 + 7 * MB // 4
OFF_W2 = OFF_H + 7 * MB
OFF_FLAG = OFF_W2 + 7 * MB // 4
OFF_XID = OFF_FLAG + MB // 4
WS_USED = OFF_XID + 4096
OFF_MODB = 0x3000

import os
DIAG = int(os.environ.get("DIAG", "0"))
OFF_DIAG = (WS_USED + 0xfffff) // MB * MB
if DIAG:
    WS_USED = OFF_DIAG + 8 * MB
QSCALE = 0x3eb8aa3b

P_X, P_WQKV, P_WO, P_BX, P_W1, P_W2, P_C, P_WMOD, P_OUT, P_WS = 4, 6, 8, 10, 12, 14, 16, 18, 20, 22
S_WS = 24
S_W = 3


def srd(k, d, p, size):
    k(f"""
    s_mov_b32 s{d}, s{p}
    s_mov_b32 s{d+1}, s{p+1}
    s_mov_b32 s{d+2}, {size:#x}
    s_mov_b32 s{d+3}, 0x00020000
    """)


NST = 28


def stamp(k, i):
    if DIAG:
        k(f"s_waitcnt lgkmcnt(0)")
        k(f"s_memtime s[94:95]")
        k(f"s_waitcnt lgkmcnt(0)")
        k(f"s_mov_b32 s{64+i}, s94")


def endpgm(k):
    if DIAG:
        kid = getattr(k, 'kid', None) or int(k.name[1])
        k(f"""
        s_waitcnt vmcnt(0) lgkmcnt(0)
        s_memtime s[94:95]
        s_memrealtime s[96:97]
        s_waitcnt lgkmcnt(0)
        s_mov_b64 exec, 1
        s_lshl_b32 s92, s2, 3
        s_add_u32 s92, s92, s3
        s_lshl_b32 s92, s92, 7
        s_add_u32 s92, s92, {OFF_DIAG + kid * MB}
        v_mov_b32 v0, 0
        """)
        regs = [62, 96, 60, 94] + [64 + i for i in range(NST)]
        for q in range(8):
            for i in range(4):
                k(f"v_mov_b32 v{4+i}, s{regs[4*q+i]}")
            k(f"buffer_store_dwordx4 v[4:7], v0, s[24:27], s92 offen offset:{16*q}")
            k("s_nop 1")
    k("s_endpgm")


def prologue(k, nwg):
    if DIAG:
        k("s_memtime s[60:61]")
        k("s_memrealtime s[62:63]")
        for i in range(NST):
            k(f"s_mov_b32 s{64+i}, 0")
    k(f"""
    s_cmp_ge_u32 s2, {nwg}
    s_cbranch_scc1 L_end_{k.name}
    s_load_dwordx16 s[4:19], s[0:1], 0
    s_load_dwordx2 s[20:21], s[0:1], 64
    s_load_dwordx2 s[22:23], s[0:1], 80
    v_lshrrev_b32 v2, 6, v0
    v_and_b32 v1, 63, v0
    v_readfirstlane_b32 s3, v2
    """)


def prologue_wait(k):
    k("s_waitcnt lgkmcnt(0)")
    srd(k, S_WS, P_WS, WS_USED)
    stamp(k, 0)


def epilogue(k):
    endpgm(k)
    k.label(f"L_end_{k.name}")
    k("s_endpgm")


def bf16_round(k, d, s):
    k(f"v_cvt_pk_bf16_f32 v{d}, v{s}, v{s}")
    k(f"v_and_b32 v{d}, 0xffff0000, v{d}")


def allreduce64(k, regs, tmp):
    for ror in (1, 2, 4, 8):
        for r in regs:
            k(f"v_add_f32_dpp v{r}, v{r}, v{r} row_ror:{ror} row_mask:0xf bank_mask:0xf")
        if len(regs) < 3:
            k(f"s_nop {2 - len(regs)}")
    for op in ("v_permlane16_swap_b32", "v_permlane32_swap_b32"):
        for r, t in zip(regs, tmp):
            k(f"v_mov_b32 v{t}, v{r}")
        k("s_nop 1")
        for r, t in zip(regs, tmp):
            k(f"{op} v{t}, v{r}")
        for r, t in zip(regs, tmp):
            k(f"v_add_f32 v{r}, v{t}, v{r}")


def role_mod(k, sj):
    srd(k, 28, P_WMOD, 512 * 3072 * 2)
    srd(k, 32, P_C, 1024)
    k(f"""
    v_lshlrev_b32 v2, 2, v0
    v_mov_b32 v3, 0
    s_mov_b32 s40, {OFF_XID}
    buffer_store_dword v3, v2, s[24:27], s40 offen
    v_lshlrev_b32 v2, 1, v0
    buffer_load_ushort v4, v2, s[32:35], 0 offen
    v_lshrrev_b32 v3, 2, v0
    v_and_b32 v5, 3, v0
    v_mul_u32_u24 v6, 6144, v3
    v_lshl_add_u32 v6, v5, 4, v6
    s_lshl_b32 s40, s{sj}, 6
    s_add_u32 s41, s40, {128*6144}
    s_add_u32 s42, s40, {256*6144}
    s_add_u32 s43, s40, {384*6144}
    buffer_load_dwordx4 v[8:11], v6, s[28:31], s40 offen
    buffer_load_dwordx4 v[12:15], v6, s[28:31], s41 offen
    buffer_load_dwordx4 v[16:19], v6, s[28:31], s42 offen
    buffer_load_dwordx4 v[20:23], v6, s[28:31], s43 offen
    s_waitcnt vmcnt(4)
    v_lshlrev_b32 v4, 16, v4
    v_mul_f32 v7, 0xbfb8aa3b, v4
    v_exp_f32 v7, v7
    s_nop 0
    v_add_f32 v7, 1.0, v7
    v_rcp_f32 v7, v7
    s_nop 0
    v_mul_f32 v7, v4, v7
    """)
    bf16_round(k, 7, 7)
    k("""
    v_lshlrev_b32 v2, 2, v0
    ds_write_b32 v2, v7
    s_waitcnt lgkmcnt(0)
    s_barrier
    v_lshlrev_b32 v2, 2, v3
    ds_read_b32 v24, v2
    ds_read_b32 v25, v2 offset:512
    ds_read_b32 v26, v2 offset:1024
    ds_read_b32 v27, v2 offset:1536
    """)
    for p in range(4):
        k(f"s_waitcnt vmcnt({3-p}) lgkmcnt({3-p})")
        for i in range(4):
            src = 8 + 4 * p + i
            k(f"v_lshlrev_b32 v40, 16, v{src}")
            k(f"v_and_b32 v41, 0xffff0000, v{src}")
            op = "v_mul_f32" if p == 0 else "v_fmac_f32"
            k(f"{op} v{32+2*i}, v{24+p}, v40")
            k(f"{op} v{33+2*i}, v{24+p}, v41")
    k("s_nop 1")
    for ror in (4, 8):
        for r in range(32, 40):
            k(f"v_add_f32_dpp v{r}, v{r}, v{r} row_ror:{ror} row_mask:0xf bank_mask:0xf")
    k("""
    v_lshrrev_b32 v2, 4, v0
    v_lshlrev_b32 v2, 7, v2
    v_lshl_add_u32 v2, v5, 5, v2
    ds_write_b128 v2, v[32:35] offset:2048
    ds_write_b128 v2, v[36:39] offset:2064
    s_waitcnt lgkmcnt(0)
    s_barrier
    s_cmp_lg_u32 s3, 0
    """)
    k(f"s_cbranch_scc1 L_end_{k.name}")
    k("""
    v_and_b32 v3, 31, v1
    v_lshrrev_b32 v2, 5, v1
    v_lshlrev_b32 v2, 11, v2
    v_lshl_add_u32 v2, v3, 2, v2
    """)
    for i in range(16):
        k(f"ds_read_b32 v{8+i}, v2 offset:{2048+128*i}")
        if i == 7:
            k("s_waitcnt lgkmcnt(0)")
    k("s_waitcnt lgkmcnt(0)")
    n = 16
    while n > 1:
        for i in range(n // 2):
            k(f"v_add_f32 v{8+i}, v{8+i}, v{8+i+n//2}")
        n //= 2
    k("""
    v_mov_b32 v9, v8
    s_nop 1
    v_permlane32_swap_b32 v9, v8
    v_add_f32 v8, v9, v8
    """)
    bf16_round(k, 8, 8)
    k(f"""
    s_lshr_b32 s40, s{sj}, 4
    s_cmp_eq_u32 s40, 1
    s_cselect_b32 s41, 1.0, 0
    s_cmp_eq_u32 s40, 4
    s_cselect_b32 s41, 1.0, s41
    v_add_f32 v8, s41, v8
    """)
    bf16_round(k, 8, 8)
    k(f"""
    v_lshlrev_b32 v3, 2, v3
    s_lshl_b32 s40, s{sj}, 7
    s_add_u32 s40, s40, {OFF_MOD}
    buffer_store_dword v8, v3, s[24:27], s40 offen
    """)
    k(f"""
    s_lshr_b32 s40, s{sj}, 4
    s_sub_u32 s40, 4, s40
    s_cmp_gt_u32 s40, 1
    s_cbranch_scc1 L_k0_mod_done
    s_lshl_b32 s40, s40, 10
    s_and_b32 s41, s{sj}, 15
    s_lshl_b32 s41, s41, 6
    s_add_u32 s40, s40, s41
    s_add_u32 s40, s40, {OFF_MODB}
    v_and_b32 v3, 31, v1
    v_lshrrev_b32 v4, 4, v3
    v_lshlrev_b32 v4, 5, v4
    v_bfe_u32 v5, v3, 2, 1
    v_lshl_add_u32 v4, v5, 4, v4
    v_bfe_u32 v5, v3, 3, 1
    v_lshl_add_u32 v4, v5, 3, v4
    v_and_b32 v5, 3, v3
    v_lshl_add_u32 v4, v5, 1, v4
    buffer_store_short_d16_hi v8, v4, s[24:27], s40 offen
    """)
    k.label("L_k0_mod_done")
    endpgm(k)


def ln_stats_finish(k, s, q, m_out, r_out, t0, std_out=None):
    k(f"""
    v_mul_f32 v{s}, 0x3b000000, v{s}
    v_mul_f32 v{q}, 0x3b000000, v{q}
    v_fma_f32 v{q}, -v{s}, v{s}, v{q}
    v_max_f32 v{q}, 0, v{q}
    """)
    bf16_round(k, m_out, s)
    bf16_round(k, q, q)
    k(f"v_add_f32 v{q}, 0x3727c5ac, v{q}")
    bf16_round(k, q, q)
    k(f"v_sqrt_f32 v{q}, v{q}")
    k("s_nop 0")
    d = std_out if std_out is not None else t0
    bf16_round(k, d, q)
    k(f"v_rcp_f32 v{r_out}, v{d}")
    k("s_nop 0")


def role_ln(k, si):
    srd(k, 28, P_X, 2048 * 1024)
    k(f"""
    s_lshl_b32 s40, s{si}, 3
    s_add_u32 s40, s40, s3
    s_lshl_b32 s40, s40, 8
    s_add_u32 s40, s40, {OFF_FLAG}
    v_lshlrev_b32 v2, 2, v1
    v_mov_b32 v3, 0
    buffer_store_dword v3, v2, s[24:27], s40 offen
    """)
    k(f"""
    v_lshlrev_b32 v2, 4, v1
    s_lshl_b32 s40, s{si}, 14
    s_lshl_b32 s41, s3, 11
    s_add_u32 s40, s40, s41
    buffer_load_dwordx4 v[8:11], v2, s[28:31], s40 offen
    buffer_load_dwordx4 v[12:15], v2, s[28:31], s40 offen offset:1024
    s_add_u32 s40, s40, {OFF_XHAT}
    """)
    for row in range(2):
        k(f"s_waitcnt vmcnt({1-row})")
        b = 16 + 8 * row
        for i in range(4):
            k(f"v_lshlrev_b32 v{b+2*i}, 16, v{8+4*row+i}")
            k(f"v_and_b32 v{b+2*i+1}, 0xffff0000, v{8+4*row+i}")
        s, q = 32 + 2 * row, 33 + 2 * row
        k(f"v_add_f32 v{s}, v{b}, v{b+1}")
        k(f"v_mul_f32 v{q}, v{b}, v{b}")
        for i in range(1, 8):
            if i >= 2:
                k(f"v_add_f32 v{s}, v{s}, v{b+i}")
            k(f"v_fmac_f32 v{q}, v{b+i}, v{b+i}")
    k("s_nop 1")
    allreduce64(k, [32, 33, 34, 35], [36, 37, 38, 39])
    for row in range(2):
        s, q = 32 + 2 * row, 33 + 2 * row
        ln_stats_finish(k, s, q, 40, 41, 42)
        k("v_mul_f32 v40, v40, v41")
        b = 16 + 8 * row
        for i in range(8):
            k(f"v_fma_f32 v{b+i}, v{b+i}, v41, -v40")
        for i in range(4):
            k(f"v_cvt_pk_bf16_f32 v{8+4*row+i}, v{b+2*i}, v{b+2*i+1}")
        k(f"buffer_store_dwordx4 v[{8+4*row}:{11+4*row}], v2, s[24:27], s40 offen offset:{1024*row}")
    endpgm(k)


def role_relayout(k, tag, ptr, nrows, ncols, typ, sjob, ncg, lds_base=0):
    stride = ncols * 2
    srd(k, 28, ptr, nrows * stride)
    magic = (1 << 16) // ncg + 1
    k(f"""
    s_mul_i32 s40, s{sjob}, {magic}
    s_lshr_b32 s40, s40, 16
    s_mul_i32 s41, s40, {ncg}
    s_sub_u32 s41, s{sjob}, s41
    v_lshrrev_b32 v2, 3, v1
    v_and_b32 v3, 7, v1
    v_mul_u32_u24 v2, {stride}, v2
    v_lshl_add_u32 v2, v3, 4, v2
    s_mul_i32 s42, s40, {128*stride}
    s_lshl_b32 s43, s41, 7
    s_add_u32 s42, s42, s43
    s_mul_i32 s43, s3, {16*stride}
    s_add_u32 s42, s42, s43
    s_lshl_b32 s44, s3, 11
    s_add_u32 m0, s44, {lds_base}
    s_add_u32 s43, s42, {8*stride}
    buffer_load_dwordx4 v2, s[28:31], s42 offen lds
    s_add_u32 m0, s44, {lds_base+1024}
    s_nop 0
    buffer_load_dwordx4 v2, s[28:31], s43 offen lds
    """)
    k("""
    v_and_b32 v3, 15, v1
    v_lshrrev_b32 v4, 4, v1
    v_lshrrev_b32 v5, 2, v3
    v_and_b32 v6, 3, v3
    v_lshlrev_b32 v6, 3, v6
    v_lshl_add_u32 v6, v5, 7, v6
    v_and_b32 v7, 1, v4
    v_lshrrev_b32 v8, 1, v4
    """)
    if typ == "A":
        k("v_lshl_add_u32 v6, v4, 10, v6")
        second = 4 * 128
    elif typ == "C":
        k("v_lshl_add_u32 v6, v8, 11, v6")
        k("v_lshl_add_u32 v6, v7, 9, v6")
        second = 8 * 128
    elif typ == "B":
        k("v_lshl_add_u32 v6, v7, 5, v6")
        k("v_lshl_add_u32 v6, v8, 9, v6")
        second = 8 * 128
    elif typ == "D":
        k("v_lshl_add_u32 v6, v7, 5, v6")
        k("v_lshl_add_u32 v6, v8, 10, v6")
        second = 4 * 128
    if typ in "AC":
        k(f"""
        s_lshr_b32 s45, s3, 1
        s_and_b32 s46, s3, 1
        s_lshl_b32 s47, s45, 12
        s_lshl_b32 s48, s46, 6
        s_add_u32 s47, s47, s48
        s_add_u32 s47, s47, {lds_base}
        v_add_u32 v6, s47, v6
        s_lshl_b32 s48, s40, 2
        s_add_u32 s45, s45, s48
        s_lshl_b32 s48, s41, 2
        s_lshl_b32 s46, s46, 1
        s_add_u32 s46, s46, s48
        """)
        frag2 = 32
        for f in range(2):
            sd = 50 + f
            if f:
                k("s_add_u32 s46, s46, 1")
            if typ == "A":
                k(f"""
                s_and_b32 s48, s46, 31
                s_lshl_b32 s48, s48, 4
                s_add_u32 s48, s48, s45
                s_mul_i32 s48, s48, 3
                s_lshr_b32 s49, s46, 5
                s_add_u32 s48, s48, s49
                s_lshl_b32 s48, s48, 10
                s_add_u32 s{sd}, s48, {OFF_WQKV}
                """)
            else:
                k(f"""
                s_mul_i32 s48, s46, 9363
                s_lshr_b32 s48, s48, 16
                s_mul_i32 s49, s48, 7
                s_sub_u32 s49, s46, s49
                s_lshl_b32 s48, s48, 4
                s_add_u32 s48, s48, s45
                s_mul_i32 s48, s48, 7
                s_add_u32 s48, s48, s49
                s_lshl_b32 s48, s48, 10
                s_add_u32 s{sd}, s48, {OFF_W1}
                """)
    else:
        nks = nrows // 16
        off = OFF_WO if typ == "B" else OFF_W2
        k(f"""
        s_lshl_b32 s47, s3, 11
        s_add_u32 s47, s47, {lds_base}
        v_add_u32 v6, s47, v6
        s_lshl_b32 s45, s40, 3
        s_add_u32 s45, s45, s3
        s_mul_i32 s48, s41, {2*nks}
        s_add_u32 s48, s48, s45
        s_lshl_b32 s48, s48, 10
        s_add_u32 s50, s48, {off}
        s_add_u32 s51, s50, {nks*1024}
        """)
        frag2 = 64
    k(f"""
    v_lshlrev_b32 v2, 4, v1
    s_waitcnt vmcnt(0)
    s_barrier
    ds_read_b64_tr_b16 v[8:9], v6
    ds_read_b64_tr_b16 v[10:11], v6 offset:{second}
    ds_read_b64_tr_b16 v[12:13], v6 offset:{frag2}
    ds_read_b64_tr_b16 v[14:15], v6 offset:{frag2+second}
    s_waitcnt lgkmcnt(2)
    buffer_store_dwordx4 v[8:11], v2, s[24:27], s50 offen
    s_waitcnt lgkmcnt(0)
    buffer_store_dwordx4 v[12:15], v2, s[24:27], s51 offen
    """)
    endpgm(k)


def k0():
    k = Kern("k0_prep_kernel", nvgpr=48)
    roles = [("mod", 96), ("ln", 128), ("wqkv", 96), ("wo", 32), ("w1", 112), ("w2", 112)]
    total = sum(n for _, n in roles)
    prologue(k, total)
    prologue_wait(k)
    base = 0
    for name, n in roles:
        k(f"s_sub_u32 s39, s2, {base}")
        k(f"s_cmp_lt_u32 s2, {base+n}")
        k(f"s_cbranch_scc1 L_k0_{name}")
        base += n
    k("s_endpgm")
    k.label("L_k0_mod"); role_mod(k, 39)
    k.label("L_k0_ln"); role_ln(k, 39)
    k.label("L_k0_wqkv"); role_relayout(k, "wqkv", P_WQKV, 512, 1536, "A", 39, 24)
    k.label("L_k0_wo"); role_relayout(k, "wo", P_WO, 512, 512, "B", 39, 8)
    k.label("L_k0_w1"); role_relayout(k, "w1", P_W1, 512, 1792, "C", 39, 28)
    k.label("L_k0_w2"); role_relayout(k, "w2", P_W2, 1792, 512, "D", 39, 8)
    k.label(f"L_end_{k.name}")
    k("s_endpgm")
    return k, (total, 512, 16384)


def k1():
    k = Kern("k1_qkv_kernel", nvgpr=184, nagpr=192)
    prologue(k, 256)
    VA, VB, ROWS, TMP, ACC = 8, 16, 24, 88, 136
    FR = 104
    k(f"""
    s_and_b32 s40, s2, 7
    s_lshr_b32 s41, s2, 3
    s_lshr_b32 s42, s40, 1
    s_lshl_b32 s42, s42, 3
    s_and_b32 s43, s41, 7
    s_add_u32 s42, s42, s43        ; tb
    s_and_b32 s43, s40, 1
    s_lshl_b32 s43, s43, 2
    s_lshr_b32 s44, s41, 3
    s_add_u32 s43, s43, s44        ; cb
    s_lshl_b32 s43, s43, 2
    s_add_u32 s43, s43, s3         ; head
    v_lshlrev_b32 v2, 4, v1        ; lane*16
    v_lshlrev_b32 v3, 5, v1        ; lane*32
    s_lshl_b32 s44, s42, 16
    s_lshl_b32 s45, s3, 14
    s_add_u32 s44, s44, s45
    s_add_u32 s44, s44, {OFF_XHAT}
    s_mul_i32 s46, s43, {48*1024}
    s_add_u32 s46, s46, {OFF_WQKV}
    """)
    prologue_wait(k)
    k(f"""
    buffer_load_dwordx4 v[{VB}:{VB+3}], v3, s[24:27], 0 offen offset:{OFF_MOD}
    buffer_load_dwordx4 v[{VB+4}:{VB+7}], v3, s[24:27], 0 offen offset:{OFF_MOD+16}
    buffer_load_dwordx4 v[{VA}:{VA+3}], v3, s[24:27], 0 offen offset:{OFF_MOD+2048}
    buffer_load_dwordx4 v[{VA+4}:{VA+7}], v3, s[24:27], 0 offen offset:{OFF_MOD+2064}
    """)
    for r in range(16):
        if r and r % 4 == 0:
            k("s_add_u32 s44, s44, 4096")
        k(f"buffer_load_dwordx4 v[{ROWS+4*r}:{ROWS+4*r+3}], v2, s[24:27], s44 offen offset:{(r%4)*1024}")
    NW1 = 40
    def wload(i):
        if i and i % 4 == 0:
            k("s_add_u32 s46, s46, 4096")
        k(f"buffer_load_dwordx4 a[{4*i}:{4*i+3}], v2, s[24:27], s46 offen offset:{(i%4)*1024}")
    for i in range(NW1):
        wload(i)
    k(f"""
    v_and_b32 v4, 7, v1
    v_lshlrev_b32 v4, 4, v4
    v_lshl_add_u32 v4, v1, 8, v4
    v_add_u32 v4, s45, v4
    v_and_b32 v5, 15, v1
    v_lshrrev_b32 v6, 4, v1
    v_xor_b32 v7, v5, v6
    v_lshlrev_b32 v7, 4, v7
    v_lshl_add_u32 v6, v6, 8, v7
    v_xor_b32 v7, 64, v6
    """)
    stamp(k, 1)
    nw = NW1
    for r in range(16):
        k(f"s_waitcnt vmcnt({min(63, (15 - r) + nw)})")
        b = ROWS + 4 * r
        t = TMP + 8 * (r & 1)
        for i in range(4):
            k(f"v_lshlrev_b32 v{t+2*i}, 16, v{b+i}")
            k(f"v_and_b32 v{t+2*i+1}, 0xffff0000, v{b+i}")
        for i in range(4):
            k(f"v_pk_fma_f32 v[{t+2*i}:{t+2*i+1}], v[{t+2*i}:{t+2*i+1}], v[{VA+2*i}:{VA+2*i+1}], v[{VB+2*i}:{VB+2*i+1}]")
        for i in range(4):
            k(f"v_cvt_pk_bf16_f32 v{b+i}, v{t+2*i}, v{t+2*i+1}")
        k(f"v_xor_b32 v5, {r<<4}, v4")
        k(f"ds_write_b128 v5, v[{b}:{b+3}]")
        if nw < 48:
            wload(nw); nw += 1
    k("s_waitcnt lgkmcnt(0)")
    stamp(k, 2)
    k("s_barrier")
    stamp(k, 3)
    def aread(s):
        base = 6 + (s & 1)
        f = FR + 16 * (s & 1)
        for b in range(4):
            k(f"ds_read_b128 v[{f+4*b}:{f+4*b+3}], v{base} offset:{b*16384+s*1024}")
    aread(0)
    for s in range(16):
        if s < 15:
            aread(s + 1)
            k(f"s_waitcnt vmcnt({45-3*s}) lgkmcnt(4)")
        else:
            k("s_waitcnt vmcnt(0) lgkmcnt(0)")
        f = FR + 16 * (s & 1)
        for b in range(4):
            for which in range(3):
                acc = ACC + 4 * (which * 4 + b)
                w = f"a[{12*s+4*which}:{12*s+4*which+3}]"
                h = f"v[{f+4*b}:{f+4*b+3}]"
                c = "0" if s == 0 else f"v[{acc}:{acc+3}]"
                a_, b_ = (w, h) if which < 2 else (h, w)
                k(f"v_mfma_f32_16x16x32_bf16 v[{acc}:{acc+3}], {a_}, {b_}, {c}")
    stamp(k, 4)
    k(f"""
    v_and_b32 v5, 15, v1
    v_lshrrev_b32 v6, 4, v1
    v_and_b32 v7, 1, v6
    v_lshrrev_b32 v6, 1, v6
    v_lshlrev_b32 v5, 4, v5
    v_lshl_add_u32 v8, v6, 9, v5
    v_lshl_add_u32 v8, v7, 3, v8      ; q/k voffset
    v_lshl_add_u32 v9, v7, 8, v5
    v_lshl_add_u32 v9, v6, 3, v9      ; v voffset
    s_lshl_b32 s44, s43, 16
    s_lshl_b32 s45, s42, 11
    s_add_u32 s44, s44, s45
    s_add_u32 s44, s44, {OFF_Q}
    s_lshl_b32 s46, s43, 17
    s_lshl_b32 s45, s42, 12
    s_add_u32 s46, s46, s45
    s_add_u32 s46, s46, {OFF_KV}
    v_mov_b32 v10, {QSCALE:#x}
    """)
    for which in range(3):
        for b in range(4):
            acc = ACC + 4 * (which * 4 + b)
            t = 12 + 2 * (which * 4 + b)
            if which == 0:
                for i in range(4):
                    k(f"v_mul_f32 v{acc+i}, v10, v{acc+i}")
            k(f"v_cvt_pk_bf16_f32 v{t}, v{acc}, v{acc+1}")
            k(f"v_cvt_pk_bf16_f32 v{t+1}, v{acc+2}, v{acc+3}")
            if which == 0:
                k(f"buffer_store_dwordx2 v[{t}:{t+1}], v8, s[24:27], s44 offen offset:{(b>>1)*1024+(b&1)*256}")
            elif which == 1:
                k(f"buffer_store_dwordx2 v[{t}:{t+1}], v8, s[24:27], s46 offen offset:{(b>>1)*2048+(b&1)*256}")
            else:
                k(f"buffer_store_dwordx2 v[{t}:{t+1}], v9, s[24:27], s46 offen offset:{(b>>1)*2048+1024+(b&1)*512}")
    epilogue(k)
    return k, (256, 256, 65536)


def k2():
    k = Kern("k2_attn_kernel", nvgpr=112)
    prologue(k, 256)
    Q, KF, VF, S, P, O, C = 8, 12, 20, 36, 68, 76, 92
    k(f"""
    s_and_b32 s40, s2, 7
    s_lshr_b32 s41, s2, 3
    s_lshl_b32 s40, s40, 2
    s_and_b32 s42, s41, 3
    s_add_u32 s40, s40, s42        ; head
    s_lshr_b32 s41, s41, 2         ; qblock256
    s_lshl_b32 s41, s41, 3
    s_add_u32 s41, s41, s3         ; qblock32
    v_lshlrev_b32 v2, 4, v1        ; lane*16
    s_lshl_b32 s42, s40, 16
    s_lshl_b32 s43, s41, 10
    s_add_u32 s42, s42, s43
    s_add_u32 s42, s42, {OFF_Q}
    s_lshl_b32 s44, s40, 17
    s_lshl_b32 s45, s3, 10
    s_add_u32 s44, s44, s45
    s_add_u32 s44, s44, {OFF_KV}
    s_lshl_b32 s46, s41, 15
    s_lshl_b32 s47, s40, 10
    s_add_u32 s46, s46, s47
    s_add_u32 s46, s46, {OFF_O}
    """)
    prologue_wait(k)
    k(f"buffer_load_dwordx4 v[{Q}:{Q+3}], v2, s[24:27], s42 offen")
    for i in range(16):
        k(f"s_add_u32 m0, s45, {i*8192}")
        if i:
            k("s_add_u32 s44, s44, 8192")
        else:
            k("s_nop 0")
        k("buffer_load_dwordx4 v2, s[24:27], s44 offen lds")
    k(f"""
    v_and_b32 v3, 15, v1
    v_lshlrev_b32 v3, 4, v3
    v_lshrrev_b32 v4, 5, v1
    v_lshl_add_u32 v3, v4, 8, v3
    s_mov_b32 s48, 0x0000ffff
    s_mov_b32 s49, 0x0000ffff
    s_mov_b32 s52, 0
    """)
    for i in range(16):
        k(f"v_mov_b32 v{VF+i}, 0x3f803f80")
    stamp(k, 1)
    k("s_waitcnt vmcnt(15)")
    k("s_barrier")
    stamp(k, 2)
    k(f"""
    ds_read_b128 v[{KF}:{KF+3}], v2
    s_waitcnt lgkmcnt(0)
    v_mfma_f32_32x32x16_bf16 v[{S}:{S+15}], v[{KF}:{KF+3}], v[{Q}:{Q+3}], 0
    s_nop 15
    """)
    def max16(dst, b, first):
        if first:
            k(f"v_max3_f32 v{dst}, v{b}, v{b+1}, v{b+2}")
            k(f"v_max_f32 v{dst}, v{dst}, v{b+3}")
        else:
            k(f"v_max3_f32 v{dst}, v{dst}, v{b}, v{b+1}")
            k(f"v_max3_f32 v{dst}, v{dst}, v{b+2}, v{b+3}")
        for i in range(4, 16, 2):
            k(f"v_max3_f32 v{dst}, v{dst}, v{b+i}, v{b+i+1}")
    max16(5, S, True)
    k.label("L_k2_setmax")
    k("""
    v_mov_b32 v6, v5
    s_nop 1
    v_permlane32_swap_b32 v6, v5
    v_max_f32 v5, v5, v6
    v_sub_f32 v5, 0, v5
    """)
    for i in range(16):
        k(f"v_mov_b32 v{C+i}, v5")
    for i in range(16):
        k(f"v_mov_b32 v{O+i}, 0")
    stamp(k, 3)
    k(f"""
    v_mov_b32 v6, v2
    v_mov_b32 v7, v3
    ds_read_b128 v[{KF}:{KF+3}], v6
    ds_read_b128 v[{KF+4}:{KF+7}], v6 offset:2048
    s_mov_b64 exec, s[48:49]
    ds_read_b128 v[{VF}:{VF+3}], v7 offset:1024
    ds_read_b128 v[{VF+4}:{VF+7}], v7 offset:1536
    s_mov_b64 exec, -1
    s_waitcnt lgkmcnt(3)
    v_mfma_f32_32x32x16_bf16 v[{S}:{S+15}], v[{KF}:{KF+3}], v[{Q}:{Q+3}], v[{C}:{C+15}]
    s_mov_b32 s50, 0
    s_nop 7
    """)
    k.label("L_k2_loop")
    k(f"""
    s_cmp_lg_u32 s52, 0
    s_cbranch_scc1 L_k2_nobar
    s_cmp_eq_u32 s50, 0
    s_cbranch_scc0 L_k2_b2
    s_waitcnt vmcnt(12)
    s_barrier
    s_branch L_k2_nobar
    """)
    k.label("L_k2_b2")
    k(f"""
    s_cmp_eq_u32 s50, 3
    s_cbranch_scc0 L_k2_nobar
    s_waitcnt vmcnt(0)
    s_barrier
    """)
    k.label("L_k2_nobar")
    for u in range(4):
        cur, nxt = u & 1, (u + 1) & 1
        Sc, Sn = S + 16 * cur, S + 16 * nxt
        Kn = KF + 4 * nxt
        Kc = KF + 4 * cur
        Vc, Vn = VF + 8 * cur, VF + 8 * nxt
        k("s_waitcnt lgkmcnt(2)")
        k(f"v_mfma_f32_32x32x16_bf16 v[{Sn}:{Sn+15}], v[{Kn}:{Kn+3}], v[{Q}:{Q+3}], v[{C}:{C+15}]")
        k(f"ds_read_b128 v[{Kc}:{Kc+3}], v6 offset:{(u+2)*2048}")
        k("s_mov_b64 exec, s[48:49]")
        k(f"ds_read_b128 v[{Vn}:{Vn+3}], v7 offset:{(u+1)*2048+1024}")
        k(f"ds_read_b128 v[{Vn+4}:{Vn+7}], v7 offset:{(u+1)*2048+1536}")
        k("s_mov_b64 exec, -1")
        for half in range(2):
            b = Sc + 8 * half
            for i in range(8):
                k(f"v_exp_f32 v{b+i}, v{b+i}")
                if i >= 3 and i % 2 == 1:
                    j = (i - 3) // 2
                    k(f"v_cvt_pk_bf16_f32 v{P+4*half+j}, v{b+2*j}, v{b+2*j+1}")
            if half == 0:
                k("s_waitcnt lgkmcnt(3)")
            else:
                k("s_nop 0")
            k(f"v_cvt_pk_bf16_f32 v{P+4*half+3}, v{b+6}, v{b+7}")
            if half == 1 and u == 3:
                k("v_add_u32 v6, 0x2000, v6")
                k("v_add_u32 v7, 0x2000, v7")
            else:
                k("s_nop 1")
            k(f"v_mfma_f32_32x32x16_bf16 v[{O}:{O+15}], v[{Vc+4*half}:{Vc+4*half+3}], v[{P+4*half}:{P+4*half+3}], v[{O}:{O+15}]")
    k(f"""
    s_add_u32 s50, s50, 1
    s_cmp_lt_u32 s50, 16
    s_cbranch_scc1 L_k2_loop
    s_waitcnt lgkmcnt(0)
    s_nop 15
    """)
    stamp(k, 4)
    k(f"""
    s_mov_b32 s53, 0x53800000
    v_cmp_nge_f32 vcc, s53, v{O+8}
    s_cmp_lg_u32 s52, 0
    s_cbranch_scc1 L_k2_fin
    s_nop 3
    s_cmp_eq_u64 vcc, 0
    s_cbranch_scc1 L_k2_fin
    """)
    k(f"""
    s_mov_b32 s52, 1
    s_mov_b32 s50, 0
    v_mov_b32 v6, v2
    v_mov_b32 v5, 0xff800000
    """)
    k.label("L_k2_maxloop")
    k(f"""
    ds_read_b128 v[{KF}:{KF+3}], v6
    v_add_u32 v6, 0x800, v6
    s_waitcnt lgkmcnt(0)
    v_mfma_f32_32x32x16_bf16 v[{S}:{S+15}], v[{KF}:{KF+3}], v[{Q}:{Q+3}], 0
    s_nop 15
    """)
    max16(5, S, False)
    k(f"""
    s_add_u32 s50, s50, 1
    s_cmp_lt_u32 s50, 64
    s_cbranch_scc1 L_k2_maxloop
    s_branch L_k2_setmax
    """)
    k.label("L_k2_fin")
    k(f"v_rcp_f32 v5, v{O+8}")
    k("s_nop 0")
    for i in range(8):
        k(f"v_mul_f32 v{O+i}, v5, v{O+i}")
    for i in range(4):
        k(f"v_cvt_pk_bf16_f32 v{P+i}, v{O+2*i}, v{O+2*i+1}")
    k(f"buffer_store_dwordx4 v[{P}:{P+3}], v2, s[24:27], s46 offen")
    epilogue(k)
    return k, (256, 512, 131072 + 4096 + 1024)


ATT = dict(Q=8, KF=16, VF=20, S=36, P=68, O=76, C=108)


def att_unit(k, u, side, last=False):
    Q, KF, VF, S, P, O, C = (ATT[x] for x in ("Q", "KF", "VF", "S", "P", "O", "C"))
    blk = u & 1
    t = u >> 1
    Sc, Sp = S + 16 * blk, S + 16 * (blk ^ 1)
    def E(i): return f"v_exp_f32 v{Sc+i}, v{Sc+i}"
    def Cv(j, base=None):
        b = Sc if base is None else base
        return f"v_cvt_pk_bf16_f32 v{P+j}, v{b+2*j}, v{b+2*j+1}"
    def PV(uu, half):
        o = O + 16 * (uu & 1)
        v = VF + 8 * ((uu >> 1) & 1) + 4 * half
        c = "0" if (uu < 2 and half == 0) else f"v[{o}:{o+15}]"
        return f"v_mfma_f32_32x32x16_bf16 v[{o}:{o+15}], v[{v}:{v+3}], v[{P+4*half}:{P+4*half+3}], {c}"
    def QK(uu):
        b = uu & 1
        return f"v_mfma_f32_32x32x16_bf16 v[{S+16*b}:{S+16*b+15}], v[{KF}:{KF+3}], v[{Q+4*b}:{Q+4*b+3}], v[{C+16*b}:{C+16*b+15}]"
    seq = [E(0), E(1), Cv(7, Sp) if u > 0 else None, E(2), Cv(0), E(3), PV(u - 1, 1) if u > 0 else None,
           E(4), Cv(1), E(5), E(6), Cv(2), E(7), QK(u + 1) if not last else None,
           E(8), Cv(3), E(9), E(10), Cv(4), E(11), PV(u, 0), E(12), Cv(5), E(13), E(14), Cv(6), E(15)]
    for i, ins in enumerate(seq, 1):
        for x in side.get(-i, []):
            k(x)
        if ins:
            k(ins)
        for x in side.get(i, []):
            k(x)


def att_max16(k, dst, b, first):
    if first:
        k(f"v_max3_f32 v{dst}, v{b}, v{b+1}, v{b+2}")
        k(f"v_max_f32 v{dst}, v{dst}, v{b+3}")
    else:
        k(f"v_max3_f32 v{dst}, v{dst}, v{b}, v{b+1}")
        k(f"v_max3_f32 v{dst}, v{dst}, v{b+2}, v{b+3}")
    for i in range(4, 16, 2):
        k(f"v_max3_f32 v{dst}, v{dst}, v{b+i}, v{b+i+1}")


def k2b():
    k = Kern("k2_attn_kernel", nvgpr=144)
    prologue(k, 256)
    Q, KF, VF, S, P, O, C = (ATT[x] for x in ("Q", "KF", "VF", "S", "P", "O", "C"))
    k(f"""
    s_and_b32 s40, s2, 7
    s_lshr_b32 s41, s2, 3
    s_lshl_b32 s40, s40, 2
    s_and_b32 s42, s41, 3
    s_add_u32 s40, s40, s42        ; head
    s_lshr_b32 s41, s41, 2         ; qblock256
    s_lshl_b32 s41, s41, 2
    s_add_u32 s41, s41, s3         ; qblock64
    v_lshlrev_b32 v2, 4, v1        ; lane*16
    s_lshl_b32 s42, s40, 16
    s_lshl_b32 s43, s41, 11
    s_add_u32 s42, s42, s43
    s_add_u32 s42, s42, {OFF_Q}
    s_lshl_b32 s44, s40, 17
    s_lshl_b32 s45, s3, 10
    s_add_u32 s47, s44, {OFF_KV}
    s_add_u32 s44, s47, s45
    s_lshl_b32 s46, s41, 16
    s_lshl_b32 s43, s40, 10
    s_add_u32 s46, s46, s43
    s_add_u32 s46, s46, {OFF_O}
    s_mov_b32 m0, s45
    """)
    prologue_wait(k)
    rounds = [0]
    def dma():
        i = rounds[0]; rounds[0] += 1
        out = []
        if i:
            out += ["s_add_u32 m0, m0, 4096", "s_add_u32 s44, s44, 4096"]
        out += ["buffer_load_dwordx4 v2, s[24:27], s44 offen lds"]
        return out
    for x in dma(): k(x)
    k(f"buffer_load_dwordx4 v[{Q}:{Q+3}], v2, s[24:27], s42 offen")
    k(f"buffer_load_dwordx4 v[{Q+4}:{Q+7}], v2, s[24:27], s42 offen offset:1024")
    for r in range(3):
        for x in dma(): k(x)
    k(f"""
    v_and_b32 v3, 15, v1
    v_lshlrev_b32 v3, 4, v3
    v_lshrrev_b32 v4, 5, v1
    v_lshl_add_u32 v3, v4, 8, v3
    v_add_u32 v4, 0x10000, v2
    v_add_u32 v5, 0x10000, v3
    s_mov_b32 s48, 0x0000ffff
    s_mov_b32 s49, 0x0000ffff
    v_and_b32 v6, 27, v1
    v_cmp_eq_u32 vcc, 16, v6
    v_mov_b32 v7, 0x3f803f80
    s_nop 0
    v_cndmask_b32 v7, 0, v7, vcc
    """)
    for i in range(16):
        k(f"v_mov_b32 v{VF+i}, v7")
    stamp(k, 1)
    k("s_waitcnt vmcnt(3)")
    k("s_barrier")
    stamp(k, 2)
    def kread(t):
        off = t * 2048
        return f"ds_read_b128 v[{KF}:{KF+3}], v{2 if off < 65536 else 4} offset:{off & 0xffff}"
    def vread(t):
        off = t * 2048 + 1024
        b = VF + 8 * (t & 1)
        a = 3 if off < 65536 else 5
        return ["s_mov_b64 exec, s[48:49]",
                f"ds_read_b128 v[{b}:{b+3}], v{a} offset:{off & 0xffff}",
                f"ds_read_b128 v[{b+4}:{b+7}], v{a} offset:{(off+512) & 0xffff}",
                "s_mov_b64 exec, -1"]
    k(kread(0))
    for x in vread(0): k(x)
    k(f"""
    s_waitcnt lgkmcnt(2)
    v_mfma_f32_32x32x16_bf16 v[{S}:{S+15}], v[{KF}:{KF+3}], v[{Q}:{Q+3}], 0
    v_mfma_f32_32x32x16_bf16 v[{S+16}:{S+31}], v[{KF}:{KF+3}], v[{Q+4}:{Q+7}], 0
    s_nop 10
    """)
    att_max16(k, 6, S, True)
    att_max16(k, 7, S + 16, True)
    k("""
    s_nop 1
    v_permlane32_swap_b32 v6, v7
    v_max_f32 v6, v6, v7
    v_mov_b32 v7, v6
    s_nop 1
    v_permlane32_swap_b32 v6, v7
    v_sub_f32 v6, 0, v6
    v_sub_f32 v7, 0, v7
    """)
    for i in range(16):
        k(f"v_mov_b32 v{C+i}, v6")
    k("s_nop 0")
    k(f"v_mov_b32 v{C+16}, v7")
    k(f"v_mfma_f32_32x32x16_bf16 v[{S}:{S+15}], v[{KF}:{KF+3}], v[{Q}:{Q+3}], v[{C}:{C+15}]")
    for i in range(1, 16):
        k(f"v_mov_b32 v{C+16+i}, v7")
    stamp(k, 3)
    ROLL = int(os.environ.get("ROLL", "4"))
    NUNR = 16 if ROLL else 64
    for u in range(2 * NUNR):
        t = u >> 1
        side = {}
        if u % 2 == 0 and t < 63:
            pre = []
            if u == 2:
                pre = [f"s_waitcnt vmcnt({rounds[0]-4})", "s_barrier"]
            elif u == 14:
                pre = [f"s_waitcnt vmcnt({rounds[0]-12})", "s_barrier"]
            elif u == 46:
                pre = ["s_waitcnt vmcnt(0)", "s_barrier"]
            side[14] = pre + [kread(t + 1)]
            vr = vread(t + 1)
            side[15] = vr
        if u % 2 == 1 or u == 0:
            side[-14] = ["s_waitcnt lgkmcnt(0)"]
        if rounds[0] < 32:
            d = dma()
            side[1] = d[:2]
            side[2] = d[2:]
        att_unit(k, u, side, last=(u == 127))
    if ROLL:
        k(f"""
        v_add_u32 v4, {NUNR*2048}, v2
        v_add_u32 v5, {NUNR*2048}, v3
        s_mov_b32 s50, {(64-NUNR)//ROLL}
        s_waitcnt vmcnt(0)
        s_barrier
        """)
        k(".p2align 6")
        k.label("L_k2_roll")
        for uu in range(2 * ROLL):
            u = 2 * NUNR + uu
            tt = uu >> 1
            side = {}
            if uu % 2 == 0:
                b = VF + 8 * ((tt + 1) & 1)
                off = (tt + 1) * 2048
                side[14] = [f"ds_read_b128 v[{KF}:{KF+3}], v4 offset:{off}"]
                side[15] = ["s_mov_b64 exec, s[48:49]",
                            f"ds_read_b128 v[{b}:{b+3}], v5 offset:{off+1024}",
                            f"ds_read_b128 v[{b+4}:{b+7}], v5 offset:{off+1536}",
                            "s_mov_b64 exec, -1"]
            else:
                side[-14] = ["s_waitcnt lgkmcnt(0)"]
            if uu == 2 * ROLL - 1:
                side[1] = [f"v_add_u32 v4, {ROLL*2048}, v4"]
                side[4] = [f"v_add_u32 v5, {ROLL*2048}, v5"]
                side[24] = ["s_sub_u32 s50, s50, 1"]
                side[25] = ["s_cmp_lg_u32 s50, 0"]
            att_unit(k, u, side)
        k("s_cbranch_scc1 L_k2_roll")
    k(f"""
    s_nop 0
    v_cvt_pk_bf16_f32 v{P+7}, v{S+30}, v{S+31}
    s_nop 1
    v_mfma_f32_32x32x16_bf16 v[{O+16}:{O+31}], v[{VF+12}:{VF+15}], v[{P+4}:{P+7}], v[{O+16}:{O+31}]
    s_mov_b32 s53, 0x53800000
    s_nop 10
    """)
    stamp(k, 4)
    k(f"""
    v_max_f32 v6, v{O+8}, v{O+24}
    v_cmp_nge_f32 vcc, s53, v{O+8}
    v_cmp_nge_f32 s[50:51], s53, v{O+24}
    s_nop 3
    s_or_b64 vcc, vcc, s[50:51]
    s_cbranch_scc0 L_k2_fin
    """)
    k(f"""
    s_mov_b32 s50, 0
    s_mov_b32 s51, s47
    v_mov_b32 v6, 0xff800000
    v_mov_b32 v7, 0xff800000
    """)
    k.label("L_k2_maxloop")
    k(f"""
    buffer_load_dwordx4 v[{KF}:{KF+3}], v2, s[24:27], s51 offen sc1
    s_add_u32 s51, s51, 2048
    s_waitcnt vmcnt(0)
    v_mfma_f32_32x32x16_bf16 v[{S}:{S+15}], v[{KF}:{KF+3}], v[{Q}:{Q+3}], 0
    v_mfma_f32_32x32x16_bf16 v[{S+16}:{S+31}], v[{KF}:{KF+3}], v[{Q+4}:{Q+7}], 0
    s_nop 10
    """)
    att_max16(k, 6, S, False)
    att_max16(k, 7, S + 16, False)
    k(f"""
    s_add_u32 s50, s50, 1
    s_cmp_lt_u32 s50, 64
    s_cbranch_scc1 L_k2_maxloop
    s_nop 0
    v_permlane32_swap_b32 v6, v7
    v_max_f32 v6, v6, v7
    v_mov_b32 v7, v6
    s_nop 1
    v_permlane32_swap_b32 v6, v7
    v_sub_f32 v6, 0, v6
    v_sub_f32 v7, 0, v7
    """)
    for i in range(16):
        k(f"v_mov_b32 v{C+i}, v6")
        k(f"v_mov_b32 v{C+16+i}, v7")
        k(f"v_mov_b32 v{O+i}, 0")
        k(f"v_mov_b32 v{O+16+i}, 0")
    k("s_mov_b32 s50, 0")
    k("s_mov_b32 s51, s47")
    k.label("L_k2_redo")
    k(f"""
    buffer_load_dwordx4 v[{KF}:{KF+3}], v2, s[24:27], s51 offen sc1
    s_mov_b64 exec, s[48:49]
    buffer_load_dwordx4 v[{VF}:{VF+3}], v3, s[24:27], s51 offen offset:1024 sc1
    buffer_load_dwordx4 v[{VF+4}:{VF+7}], v3, s[24:27], s51 offen offset:1536 sc1
    s_mov_b64 exec, -1
    s_add_u32 s51, s51, 2048
    s_waitcnt vmcnt(0)
    v_mfma_f32_32x32x16_bf16 v[{S}:{S+15}], v[{KF}:{KF+3}], v[{Q}:{Q+3}], v[{C}:{C+15}]
    v_mfma_f32_32x32x16_bf16 v[{S+16}:{S+31}], v[{KF}:{KF+3}], v[{Q+4}:{Q+7}], v[{C+16}:{C+31}]
    s_nop 10
    """)
    for b in range(2):
        for i in range(16):
            k(f"v_exp_f32 v{S+16*b+i}, v{S+16*b+i}")
        k("s_nop 0")
        for j in range(8):
            k(f"v_cvt_pk_bf16_f32 v{P+j}, v{S+16*b+2*j}, v{S+16*b+2*j+1}")
        k("s_nop 1")
        for h in range(2):
            k(f"v_mfma_f32_32x32x16_bf16 v[{O+16*b}:{O+16*b+15}], v[{VF+4*h}:{VF+4*h+3}], v[{P+4*h}:{P+4*h+3}], v[{O+16*b}:{O+16*b+15}]")
    k(f"""
    s_add_u32 s50, s50, 1
    s_cmp_lt_u32 s50, 64
    s_cbranch_scc1 L_k2_redo
    s_nop 10
    """)
    k.label("L_k2_fin")
    k(f"v_rcp_f32 v6, v{O+8}")
    k(f"v_rcp_f32 v7, v{O+24}")
    for b in range(2):
        for i in range(8):
            k(f"v_mul_f32 v{O+16*b+i}, v{6+b}, v{O+16*b+i}")
        for i in range(4):
            k(f"v_cvt_pk_bf16_f32 v{P+4*b+i}, v{O+16*b+2*i}, v{O+16*b+2*i+1}")
        if b:
            k("s_add_u32 s46, s46, 32768")
        k(f"buffer_store_dwordx4 v[{P+4*b}:{P+4*b+3}], v2, s[24:27], s46 offen")
    epilogue(k)
    return k, (256, 256, 131072 + 2048)


def splitk_gemm(k, nks, offA, offB, depth_steps, RB, ACC):
    n = nks // 4
    k(f"""
    s_lshr_b32 s44, s3, 1
    s_and_b32 s45, s3, 1
    s_lshl_b32 s46, s43, 1
    s_add_u32 s47, s46, s44
    s_xor_b32 s48, s47, 1          ; other
    s_lshl_b32 s46, s42, 1
    s_add_u32 s49, s46, s45
    s_xor_b32 s50, s49, 1
    s_mul_i32 s46, s3, {n*1024}
    s_mul_i32 s52, s47, {nks*1024}
    s_mul_i32 s53, s48, {nks*1024}
    s_mul_i32 s54, s49, {nks*1024}
    s_mul_i32 s55, s50, {nks*1024}
    s_add_u32 s51, s46, {offA}
    s_add_u32 s52, s52, s51
    s_add_u32 s53, s53, s51
    s_add_u32 s51, s46, {offB}
    s_add_u32 s54, s54, s51
    s_add_u32 s55, s55, s51
    """)
    def load(s):
        r = RB + 16 * (s % depth_steps)
        if s and s % 4 == 0:
            for sr in (52, 53, 54, 55):
                k(f"s_add_u32 s{sr}, s{sr}, 4096")
        for i, sr in enumerate((52, 54, 53, 55)):
            k(f"buffer_load_dwordx4 v[{r+4*i}:{r+4*i+3}], v2, s[24:27], s{sr} offen offset:{(s%4)*1024}")
    return n, load


def splitk_main(k, n, load, depth_steps, RB, ACC, extra_after=0):
    issued = min(n, depth_steps)
    for s in range(n):
        later = (issued - 1 - s) * 4 + extra_after
        k(f"s_waitcnt vmcnt({min(63, later)})")
        r = RB + 16 * (s % depth_steps)
        A0, B0, A1, B1 = (f"v[{r+4*i}:{r+4*i+3}]" for i in range(4))
        for t, (a, b) in enumerate(((A0, B0), (A0, B1), (A1, B0), (A1, B1))):
            acc = ACC + 16 * t
            c = "0" if s == 0 else f"v[{acc}:{acc+15}]"
            k(f"v_mfma_f32_32x32x16_bf16 v[{acc}:{acc+15}], {a}, {b}, {c}")
        if issued < n:
            load(issued); issued += 1
            extra_after = 0


def splitk_reduce(k, ACC, TMP):
    k("s_nop 7")
    for t in (1, 2, 3):
        k(f"""
        s_xor_b32 s56, s3, {t}
        s_mul_i32 s56, s56, 12288
        s_add_u32 s56, s56, {(t-1)*4096}
        v_add_u32 v3, s56, v2
        """)
        for q in range(4):
            k(f"ds_write_b128 v3, v[{ACC+16*t+4*q}:{ACC+16*t+4*q+3}] offset:{q*1024}")
    k(f"""
    s_mul_i32 s56, s3, 12288
    v_add_u32 v3, s56, v2
    s_waitcnt lgkmcnt(0)
    s_barrier
    """)
    for i in range(12):
        k(f"ds_read_b128 v[{TMP+4*i}:{TMP+4*i+3}], v3 offset:{i*1024}")
    for sl in range(3):
        k(f"s_waitcnt lgkmcnt({8-4*sl})")
        for i in range(16):
            k(f"v_add_f32 v{ACC+i}, v{ACC+i}, v{TMP+16*sl+i}")


def map_4x8(k):
    k("""
    s_and_b32 s40, s2, 7
    s_lshr_b32 s41, s2, 3
    s_lshl_b32 s42, s40, 2
    s_and_b32 s43, s41, 3
    s_add_u32 s42, s42, s43        ; tb
    s_lshr_b32 s43, s41, 2         ; cb
    v_lshlrev_b32 v2, 4, v1
    """)


def k3():
    k = Kern("k3_wo_kernel", nvgpr=248)
    NUT = 28
    prologue(k, 256 + NUT)
    k("s_cmp_ge_u32 s2, 256")
    k("s_cbranch_scc1 L_k3_ut")
    RB, ACC = 8, 136
    G, CBV, X = 200, 216, 232
    map_4x8(k)
    n, load = splitk_gemm(k, 32, OFF_WO, OFF_O, 8, RB, ACC)
    prologue_wait(k)
    srd(k, 28, P_X, 2048 * 1024)
    for s in range(8):
        load(s)
    k(f"""
    v_lshrrev_b32 v4, 5, v1
    v_and_b32 v5, 31, v1
    v_lshlrev_b32 v6, 4, v4             ; h*16 bytes (4 f32)
    s_lshl_b32 s56, s47, 7
    s_add_u32 s57, s56, {OFF_MOD + 2*2048}
    s_add_u32 s58, s56, {OFF_MOD + 4*2048}
    v_lshlrev_b32 v7, 10, v5
    v_lshl_add_u32 v7, v4, 3, v7        ; tok*1024 + h*8
    s_lshl_b32 s59, s49, 15
    s_lshl_b32 s56, s47, 6
    s_add_u32 s59, s59, s56
    """)
    for j in range(4):
        k(f"buffer_load_dwordx4 v[{G+4*j}:{G+4*j+3}], v6, s[24:27], s57 offen offset:{32*j}")
        k(f"buffer_load_dwordx4 v[{CBV+4*j}:{CBV+4*j+3}], v6, s[24:27], s58 offen offset:{32*j}")
        k(f"buffer_load_dwordx2 v[{X+2*j}:{X+2*j+1}], v7, s[28:31], s59 offen offset:{16*j}")
    stamp(k, 1)
    splitk_main(k, n, load, 8, RB, ACC, extra_after=12)
    stamp(k, 2)
    splitk_reduce(k, ACC, 8)
    stamp(k, 3)
    k("s_waitcnt vmcnt(0)")
    T = 8
    for i in range(8):
        k(f"v_cvt_pk_bf16_f32 v{T+i}, v{ACC+2*i}, v{ACC+2*i+1}")
    for i in range(8):
        k(f"v_lshlrev_b32 v{ACC+2*i}, 16, v{T+i}")
        k(f"v_and_b32 v{ACC+2*i+1}, 0xffff0000, v{T+i}")
    for i in range(16):
        k(f"v_mul_f32 v{ACC+i}, v{G+i}, v{ACC+i}")
    for i in range(8):
        k(f"v_cvt_pk_bf16_f32 v{T+i}, v{ACC+2*i}, v{ACC+2*i+1}")
    for i in range(8):
        k(f"v_lshlrev_b32 v{ACC+2*i}, 16, v{T+i}")
        k(f"v_and_b32 v{ACC+2*i+1}, 0xffff0000, v{T+i}")
        k(f"v_lshlrev_b32 v{G+2*i}, 16, v{X+i}")
        k(f"v_and_b32 v{G+2*i+1}, 0xffff0000, v{X+i}")
    for i in range(16):
        k(f"v_add_f32 v{ACC+i}, v{G+i}, v{ACC+i}")
    for i in range(8):
        k(f"v_cvt_pk_bf16_f32 v{T+i}, v{ACC+2*i}, v{ACC+2*i+1}")
    k(f"""
    v_lshrrev_b32 v3, 4, v5
    v_lshlrev_b32 v3, 14, v3
    v_and_b32 v6, 15, v5
    v_lshl_add_u32 v3, v6, 4, v3
    v_lshl_add_u32 v3, v4, 8, v3
    s_lshl_b32 s56, s49, 15
    s_lshl_b32 s57, s47, 10
    s_add_u32 s56, s56, s57
    s_add_u32 s57, s56, {OFF_X2S}
    s_add_u32 s56, s56, {OFF_X2}
    buffer_store_dwordx4 v[{T}:{T+3}], v3, s[24:27], s56 offen
    buffer_store_dwordx4 v[{T+4}:{T+7}], v3, s[24:27], s56 offen offset:512
    """)
    for i in range(8):
        k(f"v_lshlrev_b32 v{ACC+2*i}, 16, v{T+i}")
        k(f"v_and_b32 v{ACC+2*i+1}, 0xffff0000, v{T+i}")
    k(f"v_add_f32 v24, v{ACC}, v{ACC+1}")
    k(f"v_mul_f32 v25, v{ACC}, v{ACC}")
    for i in range(1, 16):
        if i >= 2:
            k(f"v_add_f32 v24, v24, v{ACC+i}")
        k(f"v_fmac_f32 v25, v{ACC+i}, v{ACC+i}")
    for i in range(16):
        k(f"v_mul_f32 v{ACC+i}, v{CBV+i}, v{ACC+i}")
    for i in range(8):
        k(f"v_cvt_pk_bf16_f32 v{16+i}, v{ACC+2*i}, v{ACC+2*i+1}")
    k(f"""
    buffer_store_dwordx4 v[16:19], v3, s[24:27], s57 offen
    buffer_store_dwordx4 v[20:23], v3, s[24:27], s57 offen offset:512
    v_permlane32_swap_b32 v24, v25
    v_add_f32 v24, v24, v25
    v_lshlrev_b32 v3, 7, v5
    v_lshl_add_u32 v3, v4, 2, v3
    s_lshl_b32 s56, s49, 12
    s_lshl_b32 s57, s47, 3
    s_add_u32 s56, s56, s57
    s_add_u32 s56, s56, {OFF_ST2}
    buffer_store_dword v24, v3, s[24:27], s56 offen
    """)
    endpgm(k)
    k.label("L_k3_ut")
    k(f"""
    s_sub_u32 s40, s2, 256
    s_lshl_b32 s40, s40, 2
    s_add_u32 s40, s40, s3          ; nt
    s_mul_i32 s41, s40, 9363
    s_lshr_b32 s41, s41, 16
    s_mul_i32 s42, s41, 7
    s_sub_u32 s42, s40, s42         ; i
    s_mul_i32 s41, s41, {16*7}
    s_add_u32 s41, s41, s42
    s_lshl_b32 s41, s41, 10
    s_add_u32 s41, s41, {OFF_W1}
    v_lshlrev_b32 v2, 4, v1
    v_and_b32 v3, 15, v1            ; col
    v_lshrrev_b32 v4, 4, v1         ; g
    v_and_b32 v5, 1, v4
    v_lshrrev_b32 v6, 1, v4
    v_lshlrev_b32 v6, 6, v6
    v_lshl_add_u32 v6, v5, 4, v6    ; (16(g>>1) + 4(g&1))*4 bytes
    v_and_b32 v7, 1, v3
    v_sub_u32 v7, 4, v7
    v_lshl_add_u32 v6, v7, 11, v6
    """)
    prologue_wait(k)
    for s in range(16):
        k(f"buffer_load_dwordx4 v[{8+4*s}:{11+4*s}], v2, s[24:27], s41 offen")
        k(f"s_add_u32 s41, s41, 7168")
    for s in range(16):
        k(f"buffer_load_dwordx4 v[{72+8*s}:{75+8*s}], v6, s[24:27], 0 offen offset:{OFF_MOD+128*s}")
        k(f"buffer_load_dwordx4 v[{76+8*s}:{79+8*s}], v6, s[24:27], 0 offen offset:{OFF_MOD+128*s+32}")
    k("s_waitcnt vmcnt(0)")
    for s in range(16):
        b = 72 + 8 * s
        for i in range(4):
            k(f"v_cvt_pk_bf16_f32 v{b+i}, v{b+2*i}, v{b+2*i+1}")
    k("s_nop 1")
    for s in range(16):
        b = 72 + 8 * s
        c = "0" if s == 0 else "v[200:203]"
        k(f"v_mfma_f32_16x16x32_bf16 v[200:203], v[{8+4*s}:{11+4*s}], v[{b}:{b+3}], {c}")
    k(f"""
    v_lshlrev_b32 v5, 4, v4
    v_lshl_add_u32 v5, v3, 6, v5
    v_cmp_gt_u32 vcc, 2, v3
    s_lshl_b32 s40, s40, 7
    s_add_u32 s40, s40, {OFF_UT}
    s_nop 7
    s_and_saveexec_b64 s[44:45], vcc
    buffer_store_dwordx4 v[200:203], v5, s[24:27], s40 offen
    """)
    epilogue(k)
    return k, (256 + NUT, 256, 49152)


def k4():
    k = Kern("k4_ffn1_kernel", nvgpr=200, nagpr=128)
    prologue(k, 256)
    ACC = 8
    WF = 64
    UT = 120
    ST = 176
    k(f"""
    s_and_b32 s40, s2, 7
    s_lshr_b32 s41, s2, 3
    s_lshr_b32 s42, s40, 1
    s_lshl_b32 s42, s42, 2
    s_and_b32 s43, s41, 3
    s_add_u32 s42, s42, s43
    s_and_b32 s43, s40, 1
    s_lshl_b32 s43, s43, 3
    s_lshr_b32 s44, s41, 2
    s_add_u32 s43, s43, s44
    v_lshlrev_b32 v2, 4, v1
    s_lshl_b32 s44, s42, 2
    s_add_u32 s44, s44, s3
    s_lshl_b32 s45, s44, 15
    s_add_u32 s45, s45, {OFF_X2S}
    s_add_u32 s46, s45, 16384
    s_mul_i32 s47, s43, {112*1024}
    s_lshl_b32 s48, s3, 10
    s_add_u32 s47, s47, s48
    s_add_u32 s47, s47, {OFF_W1}
    v_and_b32 v3, 15, v1
    v_lshrrev_b32 v4, 4, v1
    v_lshlrev_b32 v5, 7, v3
    v_lshl_add_u32 v5, v4, 5, v5
    s_lshl_b32 s49, s44, 12
    s_add_u32 s49, s49, {OFF_ST2}
    v_lshlrev_b32 v6, 4, v4          ; g*16
    s_mul_i32 s50, s43, {7*128}
    s_add_u32 s50, s50, {OFF_UT}
    """)
    prologue_wait(k)
    for j in range(2):
        k(f"buffer_load_dwordx4 v[{ST+8*j}:{ST+8*j+3}], v5, s[24:27], s49 offen offset:{2048*j}")
        k(f"buffer_load_dwordx4 v[{ST+8*j+4}:{ST+8*j+7}], v5, s[24:27], s49 offen offset:{2048*j+16}")
    for i in range(7):
        k(f"buffer_load_dwordx4 v[{UT+8*i}:{UT+8*i+3}], v6, s[24:27], s50 offen offset:{128*i}")
        k(f"buffer_load_dwordx4 v[{UT+8*i+4}:{UT+8*i+7}], v6, s[24:27], s50 offen offset:{128*i+64}")
    def group(gi):
        for i in range(7):
            idx = gi * 7 + i
            k(f"s_add_u32 m0, s48, {idx*4096}")
            if idx:
                k("s_add_u32 s47, s47, 4096")
            else:
                k("s_nop 0")
            k("buffer_load_dwordx4 v2, s[24:27], s47 offen lds")
        if gi:
            k("s_add_u32 s45, s45, 4096")
            k("s_add_u32 s46, s46, 4096")
        for s in range(4):
            ks = gi * 4 + s
            k(f"buffer_load_dwordx4 a[{8*ks}:{8*ks+3}], v2, s[24:27], s45 offen offset:{s*1024}")
            k(f"buffer_load_dwordx4 a[{8*ks+4}:{8*ks+7}], v2, s[24:27], s46 offen offset:{s*1024}")
    for gi in range(3):
        group(gi)
    stamp(k, 1)
    k("s_waitcnt vmcnt(59)")
    stamp(k, 2)
    for j in range(2):
        b = ST + 8 * j
        k(f"v_add_f32 v{b}, v{b}, v{b+2}")
        k(f"v_add_f32 v{b+1}, v{b+1}, v{b+3}")
        k(f"v_add_f32 v{b+4}, v{b+4}, v{b+6}")
        k(f"v_add_f32 v{b+5}, v{b+5}, v{b+7}")
        k(f"v_add_f32 v{b}, v{b}, v{b+4}")
        k(f"v_add_f32 v{b+1}, v{b+1}, v{b+5}")
    regs = [ST, ST + 1, ST + 8, ST + 9]
    tmp = [ST + 2, ST + 3, ST + 10, ST + 11]
    for op in ("v_permlane16_swap_b32", "v_permlane32_swap_b32"):
        for r, t in zip(regs, tmp):
            k(f"v_mov_b32 v{t}, v{r}")
        k("s_nop 1")
        for r, t in zip(regs, tmp):
            k(f"{op} v{t}, v{r}")
        for r, t in zip(regs, tmp):
            k(f"v_add_f32 v{r}, v{t}, v{r}")
    for j in range(2):
        b = ST + 8 * j
        ln_stats_finish(k, b, b + 1, b + 4, b + 5, None, std_out=b + 6)
    group(3)
    k(f"""
    s_cmp_lg_u32 s43, 0
    s_cbranch_scc1 L_k4_nor
    v_lshlrev_b32 v7, 2, v3
    s_lshl_b32 s51, s44, 7
    s_add_u32 s51, s51, {OFF_R2}
    buffer_store_dword v{ST+5}, v7, s[24:27], s51 offen
    buffer_store_dword v{ST+13}, v7, s[24:27], s51 offen offset:64
    s_waitcnt vmcnt(0)
    """)
    k.label("L_k4_nor")
    k("s_waitcnt vmcnt(60)")
    for j in range(2):
        b = ST + 8 * j
        for i in range(7):
            for r in range(4):
                a = ACC + 4 * (j * 7 + i) + r
                k(f"v_mul_f32 v{a}, v{UT+8*i+4+r}, v{b+6}")
        for i in range(7):
            for r in range(4):
                a = ACC + 4 * (j * 7 + i) + r
                k(f"v_fma_f32 v{a}, -v{b+4}, v{UT+8*i+r}, v{a}")
    def wread(s):
        f = WF + 28 * (s & 1)
        for i in range(7):
            off = (s * 7 + i) * 1024
            base = "v2" if off < 65536 else "v7"
            k(f"ds_read_b128 v[{f+4*i}:{f+4*i+3}], {base} offset:{off & 0xffff}")
    k("v_add_u32 v7, 0x10000, v2")
    stamp(k, 3)
    for gi in range(4):
        k(f"s_waitcnt vmcnt({15*(3-gi)})")
        k("s_barrier")
        stamp(k, 4 + gi)
        for s4 in range(4):
            s = gi * 4 + s4
            if s4 == 0:
                wread(s)
            if s4 < 3:
                wread(s + 1)
                k("s_waitcnt lgkmcnt(7)")
            else:
                k("s_waitcnt lgkmcnt(0)")
            f = WF + 28 * (s & 1)
            for i in range(7):
                for j in range(2):
                    a = ACC + 4 * (j * 7 + i)
                    k(f"v_mfma_f32_16x16x32_bf16 v[{a}:{a+3}], v[{f+4*i}:{f+4*i+3}], a[{8*s+4*j}:{8*s+4*j+3}], v[{a}:{a+3}]")
    stamp(k, 8)
    k(f"""
    v_and_b32 v5, 1, v4
    v_lshrrev_b32 v6, 1, v4
    v_lshlrev_b32 v7, 4, v3
    v_lshl_add_u32 v7, v6, 9, v7
    v_lshl_add_u32 v7, v5, 3, v7
    s_mul_i32 s45, s44, {112*1024}
    s_mul_i32 s46, s43, {7*1024}
    s_add_u32 s45, s45, s46
    s_add_u32 s45, s45, {OFF_H}
    s_add_u32 s46, s45, 4096
    """)
    for i in range(7):
        for j in range(2):
            a = ACC + 4 * (j * 7 + i)
            t = WF + 2 * (i * 2 + j)
            k(f"v_cvt_pk_bf16_f32 v{t}, v{a}, v{a+1}")
            k(f"v_cvt_pk_bf16_f32 v{t+1}, v{a+2}, v{a+3}")
            k(f"v_pk_max_i16 v{t}, v{t}, 0")
            k(f"v_pk_max_i16 v{t+1}, v{t+1}, 0")
            sr = 45 if i < 4 else 46
            k(f"buffer_store_dwordx2 v[{t}:{t+1}], v7, s[24:27], s{sr} offen offset:{(i%4)*1024+j*256}")
    epilogue(k)
    return k, (256, 256, 112 * 1024)


def k5():
    k = Kern("k5_ffn2_kernel", nvgpr=256, nagpr=64)
    prologue(k, 256)
    DEPTH = 13
    RB = 8
    G, X2, R = 216, 232, 240
    map_4x8(k)
    n, load = splitk_gemm(k, 112, OFF_W2, OFF_H, DEPTH, RB, None)
    prologue_wait(k)
    srd(k, 28, P_OUT, 2048 * 1024)
    k(f"""
    v_lshrrev_b32 v4, 5, v1
    v_and_b32 v5, 31, v1
    v_lshlrev_b32 v6, 4, v4
    s_lshl_b32 s56, s47, 7
    s_add_u32 s57, s56, {OFF_MOD + 5*2048}
    v_lshrrev_b32 v3, 4, v5
    v_lshlrev_b32 v3, 14, v3
    v_and_b32 v7, 15, v5
    v_lshl_add_u32 v3, v7, 4, v3
    v_lshl_add_u32 v3, v4, 8, v3
    s_lshl_b32 s58, s49, 15
    s_lshl_b32 s59, s47, 10
    s_add_u32 s58, s58, s59
    s_add_u32 s58, s58, {OFF_X2}
    v_lshlrev_b32 v7, 2, v5
    s_lshl_b32 s59, s49, 7
    s_add_u32 s59, s59, {OFF_R2}
    """)
    for j in range(4):
        k(f"buffer_load_dwordx4 v[{G+4*j}:{G+4*j+3}], v6, s[24:27], s57 offen offset:{32*j}")
    k(f"buffer_load_dwordx4 v[{X2}:{X2+3}], v3, s[24:27], s58 offen")
    k(f"buffer_load_dwordx4 v[{X2+4}:{X2+7}], v3, s[24:27], s58 offen offset:512")
    k(f"buffer_load_dword v{R}, v7, s[24:27], s59 offen")
    for s in range(DEPTH):
        load(s)
    stamp(k, 1)
    issued = DEPTH
    for s in range(n):
        k(f"s_waitcnt vmcnt({(issued-1-s)*4})")
        r = RB + 16 * (s % DEPTH)
        A0, B0, A1, B1 = (f"v[{r+4*i}:{r+4*i+3}]" for i in range(4))
        for t, (a, b) in enumerate(((A0, B0), (A0, B1), (A1, B0), (A1, B1))):
            c = "0" if s == 0 else f"a[{16*t}:{16*t+15}]"
            k(f"v_mfma_f32_32x32x16_bf16 a[{16*t}:{16*t+15}], {a}, {b}, {c}")
        if issued < n:
            load(issued); issued += 1
    stamp(k, 2)
    k("s_nop 7")
    for t in (1, 2, 3):
        k(f"""
        s_xor_b32 s56, s3, {t}
        s_mul_i32 s56, s56, 12288
        s_add_u32 s56, s56, {(t-1)*4096}
        v_add_u32 v3, s56, v2
        """)
        for q in range(4):
            k(f"ds_write_b128 v3, a[{16*t+4*q}:{16*t+4*q+3}] offset:{q*1024}")
    ACC, TMP = 8, 24
    for i in range(16):
        k(f"v_accvgpr_read_b32 v{ACC+i}, a{i}")
    for i in range(16):
        k(f"v_mul_f32 v{G+i}, v{R}, v{G+i}")
    k(f"""
    s_mul_i32 s56, s3, 12288
    v_add_u32 v3, s56, v2
    s_waitcnt lgkmcnt(0)
    s_barrier
    """)
    for i in range(12):
        k(f"ds_read_b128 v[{TMP+4*i}:{TMP+4*i+3}], v3 offset:{i*1024}")
    XU = 80
    stamp(k, 3)
    for i in range(8):
        k(f"v_lshlrev_b32 v{XU+2*i}, 16, v{X2+i}")
        k(f"v_and_b32 v{XU+2*i+1}, 0xffff0000, v{X2+i}")
    for sl in range(3):
        k(f"s_waitcnt lgkmcnt({8-4*sl})")
        for i in range(16):
            k(f"v_add_f32 v{ACC+i}, v{ACC+i}, v{TMP+16*sl+i}")
    for i in range(16):
        k(f"v_fma_f32 v{ACC+i}, v{G+i}, v{ACC+i}, v{XU+i}")
    for i in range(8):
        k(f"v_cvt_pk_bf16_f32 v{TMP+i}, v{ACC+2*i}, v{ACC+2*i+1}")
    k(f"""
    v_lshlrev_b32 v7, 10, v5
    v_lshl_add_u32 v7, v4, 3, v7
    s_lshl_b32 s59, s49, 15
    s_lshl_b32 s56, s47, 6
    s_add_u32 s59, s59, s56
    """)
    for j in range(4):
        k(f"buffer_store_dwordx2 v[{TMP+2*j}:{TMP+2*j+1}], v7, s[28:31], s59 offen offset:{16*j}")
    epilogue(k)
    return k, (256, 256, 49152)


def build(path=OUT):
    ks = [k0(), k1(), k2b(), k3(), k4(), k5()]
    errs = []
    for k, _ in ks:
        errs += k.check()
    for e in errs:
        print(e)
    ref = open(OUT + ".ref").read().split("\n")
    hdr = [l for l in ref if l.startswith(";") and "@launch" not in l and "Override" not in l and "grid=ceil" not in l]
    out = "\n".join(hdr) + "\n"
    for k, (g, b, lds) in ks:
        out += f"; @launch kernel={k.name} grid=({g},1,1) block=({b},1,1) lds={lds}\n"
    out += '.amdgcn_target "amdgcn-amd-amdhsa--gfx950"\n'
    codes, kds = zip(*[k.text() for k, _ in ks])
    out += "".join(codes)
    out += '.section .rodata,"a"\n' + "".join(kds)
    open(path, "w").write(out)
    print("wrote", path, len(out), "bytes;", len(errs), "checker errors")
    return len(errs)


if __name__ == "__main__":
    sys.exit(1 if build(sys.argv[1] if len(sys.argv) > 1 else OUT) else 0)
```

```python
import sys, os
sys.path.insert(0, "gen")
from asmlib import Kern
import gen as G
from gen import (MB, OFF_MOD, OFF_XHAT, OFF_WQKV, OFF_Q, OFF_KV, OFF_O, OFF_WO, OFF_X2, OFF_X2S, OFF_ST2, OFF_W1,
                 OFF_H, OFF_W2, QSCALE, P_X, P_WQKV, P_WO, P_W1, P_W2, P_C, P_WMOD, P_OUT, P_WS, srd, stamp, endpgm,
                 prologue, prologue_wait, epilogue, bf16_round, ln_stats_finish, role_ln, role_relayout, ATT, att_unit,
                 att_max16, NAME, OUT, DIAG)

OFF_MODB = 0x3000
OFF_FLAG = G.OFF_FLAG
FL = "sc1"
DF = "@DF@"
S_FAST = 98
OFF_XID = G.OFF_XID
OOL = []


def dual_begin(k):
    k._dual = len(k.lines)


def dual_end(k, tag):
    body = k.lines[k._dual:]
    del k.lines[k._dual:]
    import re
    labs = [l[:-1] for l in body if l.endswith(":")]
    def variant(fl, suffix):
        out = []
        for l in body:
            l = l.replace(DF, fl).rstrip()
            for lab in labs:
                l = re.sub(rf"\b{lab}\b", lab + suffix, l)
            out.append(l)
        return out
    k(f"s_cmp_eq_u32 s{S_FAST}, 0")
    k(f"s_cbranch_scc1 L_slow_{tag}")
    k.lines += variant("", "_f")
    k.label(f"L_join_{tag}")
    OOL.append([f"L_slow_{tag}:"] + variant("sc1", "_s") + [f"s_branch L_join_{tag}"])


class VM:
    def __init__(self, k):
        self.k = k; self.n = 0
    def op(self, text=None):
        if text:
            self.k(text)
        self.n += 1
        return self.n
    def tick(self):
        self.n += 1
        return self.n
    def wait_str(self, idx):
        c = self.n - idx
        return f"s_waitcnt vmcnt({min(c, 63)})"
    def wait(self, idx):
        self.k(self.wait_str(idx))


def signal(k, edge, s_group, s_member, gsize, nafter=0, fl=FL):
    lab = f"L_sig{edge}"
    k(f"""
    s_mul_i32 s38, s{s_group}, {gsize}
    s_add_u32 s38, s38, s{s_member}
    s_lshl_b32 s38, s38, 8
    s_add_u32 s38, s38, {OFF_FLAG + edge * 65536}
    v_mov_b32 v6, 0
    v_mov_b32 v7, 1
    s_waitcnt vmcnt({nafter}) lgkmcnt(0)
    s_barrier
    s_cmp_lg_u32 s3, 0
    s_cbranch_scc1 {lab}
    s_mov_b64 exec, 1
    buffer_store_dword v7, v6, s[24:27], s38 offen {fl}
    s_mov_b64 exec, -1
    """)
    k.label(lab)


def wait_edge(k, edge, s_group, gsize):
    lab = f"L_wait{edge}"
    k(f"""
    s_cmp_lg_u32 s3, 0
    s_cbranch_scc1 {lab}
    s_mul_i32 s38, s{s_group}, {gsize*256}
    s_add_u32 s38, s38, {OFF_FLAG + edge * 65536}
    v_lshlrev_b32 v6, 8, v1
    s_mov_b32 exec_lo, {hex((1 << gsize) - 1)}
    s_mov_b32 exec_hi, 0
    s_mov_b32 s39, 0x400000
    """)
    k.label(f"L_poll{edge}")
    k(f"""
    buffer_load_dword v7, v6, s[24:27], s38 offen {FL}
    s_sub_u32 s39, s39, 1
    s_cbranch_scc1 L_bail{edge}
    s_waitcnt vmcnt(0)
    v_cmp_eq_u32 vcc, 0, v7
    s_cbranch_vccnz L_poll{edge}
    """)
    k.label(f"L_bail{edge}")
    k("s_waitcnt vmcnt(0)")
    k("s_mov_b64 exec, -1")
    k.label(lab)
    k("s_barrier")


def wo_reg(s):
    return f"a[{224+4*s}:{227+4*s}]" if s < 8 else f"v[{160+4*(s-8)}:{163+4*(s-8)}]"


def w1_lds(f):
    if f < 28:
        return 131072 + f * 1024
    if f < 112:
        return (f - 28) * 1024
    return LDS_UT + (f - 112) * 1024


LDS_MODB = 156 * 1024
LDS_VEC = 158 * 1024
LDS_OST = 84 * 1024
LDS_UT = 116 * 1024
LDS_R = 125 * 1024


def lds_rd(dst, addr):
    base = (2, 4, 5)[addr >> 16]
    return f"ds_read_b128 {dst}, v{base} offset:{addr & 0xffff}"


def mega():
    k = Kern("k1_mega_kernel", nvgpr=256, nagpr=256)
    prologue(k, 256)
    vm = VM(k)
    k("""
    s_and_b32 s36, s2, 7
    s_lshr_b32 s37, s2, 3
    v_lshlrev_b32 v2, 4, v1
    """)
    VA, VB, ROWS, TMP, ACC, FR = 8, 16, 24, 88, 136, 104
    k(f"""
    s_lshr_b32 s42, s36, 1
    s_lshl_b32 s42, s42, 3
    s_and_b32 s43, s37, 7
    s_add_u32 s42, s42, s43        ; tb1
    s_and_b32 s40, s36, 1
    s_lshl_b32 s40, s40, 2
    s_lshr_b32 s44, s37, 3
    s_add_u32 s40, s40, s44        ; cb1
    s_lshl_b32 s43, s40, 2
    s_add_u32 s43, s43, s3         ; head
    v_lshlrev_b32 v3, 5, v1
    s_lshl_b32 s44, s42, 16
    s_lshl_b32 s45, s3, 14
    s_add_u32 s44, s44, s45
    s_add_u32 s44, s44, {OFF_XHAT}
    s_mul_i32 s46, s43, {48*1024}
    s_add_u32 s46, s46, {OFF_WQKV}
    """)
    prologue_wait(k)
    srd(k, 28, P_X, 2048 * 1024)
    srd(k, 32, P_OUT, 2048 * 1024)
    vm.op(f"buffer_load_dwordx4 v[{VB}:{VB+3}], v3, s[24:27], 0 offen offset:{OFF_MOD}")
    vm.op(f"buffer_load_dwordx4 v[{VB+4}:{VB+7}], v3, s[24:27], 0 offen offset:{OFF_MOD+16}")
    vm.op(f"buffer_load_dwordx4 v[{VA}:{VA+3}], v3, s[24:27], 0 offen offset:{OFF_MOD+2048}")
    vm.op(f"buffer_load_dwordx4 v[{VA+4}:{VA+7}], v3, s[24:27], 0 offen offset:{OFF_MOD+2064}")
    rowid = []
    for r in range(16):
        if r and r % 4 == 0:
            k("s_add_u32 s44, s44, 4096")
        rowid.append(vm.op(f"buffer_load_dwordx4 v[{ROWS+4*r}:{ROWS+4*r+3}], v2, s[24:27], s44 offen offset:{(r%4)*1024}"))
    wid = []
    def wload():
        i = len(wid)
        if i >= 48:
            return
        if i and i % 4 == 0:
            k("s_add_u32 s46, s46, 4096")
        wid.append(vm.op(f"buffer_load_dwordx4 a[{4*i}:{4*i+3}], v2, s[24:27], s46 offen offset:{(i%4)*1024}"))
    k(f"""
    v_and_b32 v4, 7, v1
    v_lshlrev_b32 v4, 4, v4
    v_lshl_add_u32 v4, v1, 8, v4
    v_add_u32 v4, s45, v4
    v_and_b32 v5, 15, v1
    v_lshrrev_b32 v6, 4, v1
    v_xor_b32 v7, v5, v6
    v_lshlrev_b32 v7, 4, v7
    v_lshl_add_u32 v6, v6, 8, v7
    v_xor_b32 v7, 64, v6
    """)
    stamp(k, 1)
    for r in range(16):
        vm.wait(rowid[r])
        b = ROWS + 4 * r
        t = TMP + 8 * (r & 1)
        for i in range(4):
            k(f"v_lshlrev_b32 v{t+2*i}, 16, v{b+i}")
            k(f"v_and_b32 v{t+2*i+1}, 0xffff0000, v{b+i}")
        wload()
        for i in range(4):
            k(f"v_pk_fma_f32 v[{t+2*i}:{t+2*i+1}], v[{t+2*i}:{t+2*i+1}], v[{VA+2*i}:{VA+2*i+1}], v[{VB+2*i}:{VB+2*i+1}]")
        for i in range(4):
            k(f"v_cvt_pk_bf16_f32 v{b+i}, v{t+2*i}, v{t+2*i+1}")
        k(f"v_xor_b32 v5, {r<<4}, v4")
        k(f"ds_write_b128 v5, v[{b}:{b+3}]")
        if r >= 8:
            wload()
    k("s_waitcnt lgkmcnt(0)")
    k("s_barrier")
    stamp(k, 2)
    def aread(s):
        base = 6 + (s & 1)
        f = FR + 16 * (s & 1)
        return [f"ds_read_b128 v[{f+4*b}:{f+4*b+3}], v{base} offset:{b*16384+s*1024}" for b in range(4)]
    for x in aread(0): k(x)
    for s in range(16):
        nxt = aread(s + 1) if s < 15 else []
        k(vm.wait_str(wid[3 * s + 2]) + " lgkmcnt(0)")
        f = FR + 16 * (s & 1)
        n = 0
        for b in range(4):
            for which in range(3):
                acc = ACC + 4 * (which * 4 + b)
                w = f"a[{12*s+4*which}:{12*s+4*which+3}]"
                h = f"v[{f+4*b}:{f+4*b+3}]"
                c = "0" if s == 0 else f"v[{acc}:{acc+3}]"
                a_, b_ = (w, h) if which < 2 else (h, w)
                k(f"v_mfma_f32_16x16x32_bf16 v[{acc}:{acc+3}], {a_}, {b_}, {c}")
                if nxt:
                    k(nxt.pop(0))
                elif n in (5, 7, 9):
                    wload()
                n += 1
    stamp(k, 3)
    k(f"""
    s_lshl_b32 s44, s43, 16
    s_lshl_b32 s45, s42, 11
    s_add_u32 s44, s44, s45
    s_add_u32 s44, s44, {OFF_Q}
    s_lshl_b32 s46, s43, 17
    s_lshl_b32 s45, s42, 12
    s_add_u32 s46, s46, s45
    s_add_u32 s46, s46, {OFF_KV}
    v_mov_b32 v10, {QSCALE:#x}
    v_mov_b32 v11, {QSCALE:#x}
    """)
    for which in (1, 2, 0):
        for bp in range(2):
            t = 12 + 4 * (which * 2 + bp)
            for b2 in range(2):
                acc = ACC + 4 * (which * 4 + bp * 2 + b2)
                if which == 0:
                    k(f"v_pk_mul_f32 v[{acc}:{acc+1}], v[10:11], v[{acc}:{acc+1}]")
                    k(f"v_pk_mul_f32 v[{acc+2}:{acc+3}], v[10:11], v[{acc+2}:{acc+3}]")
                k(f"v_cvt_pk_bf16_f32 v{t+2*b2}, v{acc}, v{acc+1}")
                k(f"v_cvt_pk_bf16_f32 v{t+2*b2+1}, v{acc+2}, v{acc+3}")
        op = "v_permlane32_swap_b32" if which == 2 else "v_permlane16_swap_b32"
        for bp in range(2):
            t = 12 + 4 * (which * 2 + bp)
            if bp == 1:
                k("s_nop 0")
            k(f"{op} v{t}, v{t+2}")
            k(f"{op} v{t+1}, v{t+3}")
            if which == 0:
                vm.op(f"buffer_store_dwordx4 v[{t}:{t+3}], v2, s[24:27], s44 offen offset:{bp*1024} {FL}")
            else:
                vm.op(f"buffer_store_dwordx4 v[{t}:{t+3}], v2, s[24:27], s46 offen offset:{bp*2048+(which-1)*1024} {FL}")
    signal(k, 0, 40, 42, 32)
    k(f"""
    s_cmp_lg_u32 s3, 1
    s_cbranch_scc1 L_noxid
    s_getreg_b32 s38, hwreg(HW_REG_XCC_ID, 0, 4)
    s_add_u32 s38, s38, 1
    s_lshl_b32 s39, s2, 2
    s_add_u32 s39, s39, {OFF_XID}
    v_mov_b32 v7, s38
    s_mov_b64 exec, 1
    buffer_store_dword v7, v6, s[24:27], s39 offen {FL}
    s_mov_b64 exec, -1
    """)
    k.label("L_noxid")
    stamp(k, 4)
    Q, KF, VF, S, P, O, C = (ATT[x] for x in ("Q", "KF", "VF", "S", "P", "O", "C"))
    k(f"""
    s_mov_b32 s40, s37             ; head2
    s_mov_b32 s54, s36             ; qb256
    s_lshl_b32 s41, s54, 2
    s_add_u32 s41, s41, s3         ; qblock64
    s_lshl_b32 s42, s40, 16
    s_lshl_b32 s43, s41, 11
    s_add_u32 s42, s42, s43
    s_add_u32 s42, s42, {OFF_Q}
    s_lshl_b32 s44, s40, 17
    s_lshl_b32 s45, s3, 10
    s_add_u32 s47, s44, {OFF_KV}
    s_add_u32 s44, s47, s45
    s_lshl_b32 s46, s41, 16
    s_lshl_b32 s43, s40, 10
    s_add_u32 s46, s46, s43
    s_add_u32 s46, s46, {OFF_O}
    s_mov_b32 m0, s45
    v_and_b32 v3, 15, v1
    v_lshlrev_b32 v3, 4, v3
    v_lshrrev_b32 v4, 5, v1
    v_lshl_add_u32 v3, v4, 8, v3
    v_add_u32 v4, 0x10000, v2
    v_add_u32 v5, 0x10000, v3
    s_mov_b32 s48, 0x0000ffff
    s_mov_b32 s49, 0x0000ffff
    v_and_b32 v8, 27, v1
    v_cmp_eq_u32 vcc, 16, v8
    v_mov_b32 v9, 0x3f803f80
    s_nop 0
    v_cndmask_b32 v9, 0, v9, vcc
    """)
    for i in range(16):
        k(f"v_mov_b32 v{VF+i}, v9")
    k(f"""
    s_lshr_b32 s50, s37, 3
    s_lshl_b32 s50, s50, 2
    s_add_u32 s50, s50, s3          ; P3 ncol32
    s_lshl_b32 s51, s50, 15
    s_add_u32 s51, s51, {OFF_WO}
    s_lshr_b32 s52, s37, 2
    s_lshl_b32 s52, s52, 1
    s_lshr_b32 s53, s3, 1
    s_add_u32 s52, s52, s53
    s_xor_b32 s53, s52, 1
    s_mul_i32 s55, s52, {112*1024}
    s_mul_i32 s56, s53, {112*1024}
    s_mul_i32 s53, s3, {28*1024}
    s_add_u32 s53, s53, {OFF_W2}
    s_add_u32 s55, s55, s53
    s_add_u32 s56, s56, s53
    s_lshr_b32 s57, s37, 2
    s_lshl_b32 s57, s57, 1
    s_and_b32 s53, s37, 1
    s_add_u32 s57, s57, s53         ; cb4
    s_mul_i32 s58, s57, {112*1024}
    s_add_u32 s58, s58, s45
    s_add_u32 s58, s58, {OFF_W1}
    v_lshrrev_b32 v8, 5, v1
    v_and_b32 v9, 31, v1
    v_lshlrev_b32 v148, 10, v9
    v_lshl_add_u32 v148, v8, 3, v148
    v_lshlrev_b32 v149, 4, v9
    v_lshl_add_u32 v149, v8, 12, v149
    s_lshl_b32 s59, s36, 3
    s_and_b32 s53, s37, 7
    s_add_u32 s59, s59, s53
    s_lshl_b32 s59, s59, 15
    s_lshl_b32 s53, s50, 6
    s_add_u32 s59, s59, s53
    s_lshr_b32 s53, s37, 2
    """)
    wait_edge(k, 0, 53, 32)
    stamp(k, 5)
    vm.n = 0
    rid = []
    def dma():
        i = len(rid)
        out = []
        if i:
            out += ["s_add_u32 m0, m0, 4096", "s_add_u32 s44, s44, 4096"]
        out += [f"buffer_load_dwordx4 v2, s[24:27], s44 offen {FL} lds"]
        rid.append(vm.tick())
        return out
    for x in dma(): k(x)
    vm.op(f"buffer_load_dwordx4 v[{Q}:{Q+3}], v2, s[24:27], s42 offen {FL}")
    qid = vm.op(f"buffer_load_dwordx4 v[{Q+4}:{Q+7}], v2, s[24:27], s42 offen offset:1024 {FL}")
    for r in range(3):
        for x in dma(): k(x)
    vm.wait(qid)
    k("s_barrier")
    def kread(t):
        off = t * 2048
        return f"ds_read_b128 v[{KF}:{KF+3}], v{2 if off < 65536 else 4} offset:{off & 0xffff}"
    def vread(t):
        off = t * 2048 + 1024
        b = VF + 8 * (t & 1)
        a = 3 if off < 65536 else 5
        return ["s_mov_b64 exec, s[48:49]",
                f"ds_read_b128 v[{b}:{b+3}], v{a} offset:{off & 0xffff}",
                f"ds_read_b128 v[{b+4}:{b+7}], v{a} offset:{(off+512) & 0xffff}",
                "s_mov_b64 exec, -1"]
    k(kread(0))
    for x in vread(0): k(x)
    k(f"""
    s_waitcnt lgkmcnt(2)
    v_mfma_f32_32x32x16_bf16 v[{S}:{S+15}], v[{KF}:{KF+3}], v[{Q}:{Q+3}], 0
    v_mfma_f32_32x32x16_bf16 v[{S+16}:{S+31}], v[{KF}:{KF+3}], v[{Q+4}:{Q+7}], 0
    s_nop 10
    """)
    att_max16(k, 6, S, True)
    att_max16(k, 7, S + 16, True)
    k("""
    s_nop 1
    v_permlane32_swap_b32 v6, v7
    v_max_f32 v6, v6, v7
    v_mov_b32 v7, v6
    s_nop 1
    v_permlane32_swap_b32 v6, v7
    v_sub_f32 v6, 0, v6
    v_sub_f32 v7, 0, v7
    """)
    for i in range(16):
        k(f"v_mov_b32 v{C+i}, v6")
    k("s_nop 0")
    k(f"v_mov_b32 v{C+16}, v7")
    k(f"v_mfma_f32_32x32x16_bf16 v[{S}:{S+15}], v[{KF}:{KF+3}], v[{Q}:{Q+3}], v[{C}:{C+15}]")
    for i in range(1, 16):
        k(f"v_mov_b32 v{C+16+i}, v7")
    stamp(k, 6)
    jobs = []
    for s in range(32):
        pre = ["s_add_u32 s51, s51, 4096"] if (s and s % 4 == 0) else []
        jobs.append(pre + [f"buffer_load_dwordx4 {wo_reg(s)}, v2, s[24:27], s51 offen offset:{(s%4)*1024}"])
    for s in range(28):
        for i, sr in enumerate((55, 56)):
            pre = [f"s_add_u32 s{sr}, s{sr}, 4096"] if (s and s % 4 == 0) else []
            jobs.append(pre + [f"buffer_load_dwordx4 a[{8*s+4*i}:{8*s+4*i+3}], v2, s[24:27], s{sr} offen offset:{(s%4)*1024}"])
    w1jobs = []
    for i in range(28):
        pre = [f"s_add_u32 m0, s45, {w1_lds(4*i)}"] + (["s_add_u32 s58, s58, 4096"] if i else ["s_nop 0"])
        w1jobs.append(pre + ["buffer_load_dwordx4 v2, s[24:27], s58 offen lds"])
    modb = ["s_and_b32 s53, s45, 1024", f"s_add_u32 m0, s53, {LDS_MODB}", f"s_add_u32 s53, s53, {OFF_MODB}",
            "buffer_load_dwordx4 v2, s[24:27], s53 offen lds"]
    vec1 = [f"s_mov_b32 m0, {LDS_VEC}", "s_lshr_b32 s53, s37, 3", "s_lshl_b32 s53, s53, 9", f"s_add_u32 s53, s53, {OFF_MOD + 2*2048}",
            "buffer_load_dwordx4 v149, s[24:27], s53 offen lds"]
    vec2 = [f"s_mov_b32 m0, {LDS_VEC + 1024}", "s_lshr_b32 s53, s37, 4", "s_lshl_b32 s53, s53, 10", f"s_add_u32 s53, s53, {OFF_MOD + 5*2048}",
            "buffer_load_dwordx4 v2, s[24:27], s53 offen lds"]
    xj = [[f"buffer_load_dwordx2 v[{140+2*j}:{141+2*j}], v148, s[28:31], s59 offen offset:{16*j}"] for j in range(4)]
    jobs = w1jobs[:7] + [modb, vec1, vec2] + jobs
    late2 = xj
    late = w1jobs[7:]
    for u in range(128):
        t = u >> 1
        side = {}
        def add(slot, xs):
            side.setdefault(slot, []).extend(xs)
        if len(rid) < 32:
            d = dma()
            add(1, d[:2]); add(2, d[2:])
        elif jobs:
            d = jobs.pop(0); vm.tick()
            add(1, d[:-1]); add(2, d[-1:])
        if u % 2 == 0 and t < 63:
            pre = []
            if u == 2:
                pre = [vm.wait_str(rid[3]), "s_barrier"]
            elif u == 14:
                pre = [vm.wait_str(rid[11]), "s_barrier"]
            elif u == 46:
                pre = [vm.wait_str(rid[31]), "s_barrier"]
            elif u == 82:
                pre = ["s_barrier"]
            add(14, pre + [kread(t + 1)])
            add(15, vread(t + 1))
        if u % 2 == 1 or u == 0:
            add(-14, ["s_waitcnt lgkmcnt(0)"])
        if u >= 83 and late and u % 2 == 1:
            d = late.pop(0); vm.tick()
            add(17, d[:-1]); add(18, d[-1:])
        if u >= 60 and late2 and u % 2 == 1:
            d = late2.pop(0); vm.tick()
            add(18, d)
        if u == 70:
            vm.tick(); xidid = vm.tick()
            add(17, [f"s_mov_b32 s53, {OFF_XID}", f"buffer_load_dwordx4 v[150:153], v2, s[24:27], s53 offen {FL}"])
            add(24, [f"buffer_load_dwordx4 v[154:157], v2, s[24:27], s53 offen offset:32 {FL}"])
        if u == 79:
            add(17, [vm.wait_str(xidid), "v_min_u32 v158, v150, v151", "v_min_u32 v159, v152, v153"])
            add(18, ["v_min_u32 v158, v158, v159", "v_xor_b32 v154, v154, v150", "v_xor_b32 v155, v155, v151"])
            add(20, ["v_cmp_eq_u32 vcc, 0, v158", "v_xor_b32 v156, v156, v152", "v_xor_b32 v157, v157, v153"])
            add(22, ["s_cbranch_vccnz L_xid_retry", "L_xid_ok:", "v_or3_b32 v154, v154, v155, v156", "v_or_b32 v154, v154, v157"])
            add(24, ["v_cmp_ne_u32 vcc, 0, v154"])
            add(27, ["s_and_b32 s53, vcc_hi, 0x3fffffff", "s_or_b32 s53, s53, vcc_lo", "s_cmp_eq_u32 s53, 0", f"s_cselect_b32 s{S_FAST}, 1, 0"])
        att_unit(k, u, side, last=(u == 127))
    assert not jobs and not late, (len(jobs), len(late))
    k(f"""
    s_nop 0
    v_cvt_pk_bf16_f32 v{P+7}, v{S+30}, v{S+31}
    s_nop 1
    v_mfma_f32_32x32x16_bf16 v[{O+16}:{O+31}], v[{VF+12}:{VF+15}], v[{P+4}:{P+7}], v[{O+16}:{O+31}]
    s_mov_b32 s53, 0x53800000
    v_cmp_nge_f32 vcc, s53, v{O+8}
    s_nop 9
    v_cmp_nge_f32 s[42:43], s53, v{O+24}
    s_nop 3
    s_or_b64 vcc, vcc, s[42:43]
    s_cbranch_scc0 L_att_fin
    s_branch L_att_fallback
    """)
    k.label("L_att_fin")
    stamp(k, 7)
    XR, XU, GA, A2 = 140, 44, 108, 124
    k(f"""
    v_rcp_f32 v6, v{O+8}
    v_rcp_f32 v7, v{O+24}
    s_lshl_b32 s42, s36, 3
    s_and_b32 s43, s37, 7
    s_add_u32 s42, s42, s43         ; t3 (tok32)
    v_lshrrev_b32 v8, 5, v1         ; h
    v_and_b32 v9, 31, v1            ; tok
    """)
    dual_begin(k)
    for b_ in range(2):
        for i in range(8):
            k(f"v_mul_f32 v{O+16*b_+i}, v{6+b_}, v{O+16*b_+i}")
        for i in range(4):
            k(f"v_cvt_pk_bf16_f32 v{P+4*b_+i}, v{O+16*b_+2*i}, v{O+16*b_+2*i+1}")
        if b_:
            k("s_add_u32 s46, s46, 32768")
        k(f"buffer_store_dwordx4 v[{P+4*b_}:{P+4*b_+3}], v2, s[24:27], s46 offen {DF}")
    k(f"""
    v_add_u32 v5, 0x20000, v2
    v_lshrrev_b32 v12, 4, v9
    v_lshlrev_b32 v12, 14, v12
    v_and_b32 v13, 15, v9
    v_lshl_add_u32 v12, v13, 4, v12
    v_lshl_add_u32 v12, v8, 8, v12
    v_lshlrev_b32 v13, 3, v9
    s_lshl_b32 s43, s3, 10
    s_lshl_b32 s44, s42, 15
    s_lshl_b32 s45, s50, 10
    s_add_u32 s44, s44, s45
    s_add_u32 s45, s44, {OFF_X2S}
    s_add_u32 s44, s44, {OFF_X2}
    s_lshl_b32 s46, s42, 12
    s_lshl_b32 s47, s50, 8
    s_add_u32 s46, s46, s47
    s_add_u32 s46, s46, {OFF_ST2}
    s_lshl_b32 s47, s42, 15
    s_add_u32 s47, s47, s43
    s_add_u32 s47, s47, {OFF_O}
    s_add_u32 m0, s43, {LDS_OST}
    """)
    signal(k, 1, 54, 40, 32, fl=DF)
    dual_end(k, 'e1')
    stamp(k, 19)
    k(f"""
    s_lshl_b32 s38, s3, 7
    s_add_u32 s38, s38, {LDS_VEC}
    v_lshlrev_b32 v10, 4, v8
    v_add_u32 v10, s38, v10
    """)
    for j in range(4):
        k(f"ds_read_b128 v[{GA+4*j}:{GA+4*j+3}], v10 offset:{32*j}")
        k(f"ds_read_b128 v[{A2+4*j}:{A2+4*j+3}], v10 offset:{512+32*j}")
    for i in range(8):
        k(f"v_lshlrev_b32 v{XU+2*i}, 16, v{XR+i}")
        k(f"v_and_b32 v{XU+2*i+1}, 0xffff0000, v{XR+i}")
    k("s_cmp_eq_u32 s3, 0")
    k("s_cbranch_scc1 L_ut_done")
    MA_, WU, UA = 60, 68, 92
    k(f"""
    s_sub_u32 s38, s43, 1024
    v_add_u32 v14, s38, v2
    v_add_u32 v15, s38, v4
    v_add_u32 v16, s38, v5
    v_and_b32 v17, 15, v1
    v_lshrrev_b32 v18, 4, v1
    v_lshlrev_b32 v17, 10, v17
    v_lshl_add_u32 v17, v18, 4, v17
    v_add_u32 v17, {LDS_MODB}, v17
    s_mov_b32 s38, 0x00030003
    s_mov_b32 s39, 0x00030003
    """)
    for i in range(8):
        k(f"v_mov_b32 v{MA_+i}, 0")
    def uread(s):
        r = WU + 12 * (s & 1)
        k("s_mov_b64 exec, s[38:39]")
        k(f"ds_read_b128 v[{MA_+4*(s&1)}:{MA_+4*(s&1)+3}], v17 offset:{64*s}")
        k("s_mov_b64 exec, -1")
        for h in range(3):
            addr = w1_lds(s * 7) + 3 * h * 1024
            k(f"ds_read_b128 v[{r+4*h}:{r+4*h+3}], v{14 + (addr >> 16)} offset:{addr & 0xffff}")
    uread(0)
    for s in range(16):
        if s < 15:
            uread(s + 1)
            k("s_waitcnt lgkmcnt(4)")
        else:
            k("s_waitcnt lgkmcnt(0)")
        r = WU + 12 * (s & 1)
        for h in range(3):
            u_ = UA + 4 * h
            c = "0" if s == 0 else f"v[{u_}:{u_+3}]"
            k(f"v_mfma_f32_16x16x32_bf16 v[{u_}:{u_+3}], v[{MA_+4*(s&1)}:{MA_+4*(s&1)+3}], v[{r+4*h}:{r+4*h+3}], {c}")
    k("s_nop 5")
    for h in range(3):
        u_ = UA + 4 * h
        d = WU + 4 * h
        for i in range(2):
            bf16_round(k, 18 + i, u_ + i)
        for i in range(2):
            k(f"v_sub_f32 v{20+i}, v{u_+i}, v{18+i}")
        for i in range(2):
            k(f"v_cvt_pk_bf16_f32 v{d+i}, v{18+i}, v{20+i}")
        k(f"v_mov_b32 v{d+2}, 0")
        k(f"v_mov_b32 v{d+3}, 0")
        k(f"ds_write_b128 v15, v[{d}:{d+3}] offset:{LDS_UT + 3*h*1024 - 65536}")
    k.label("L_ut_done")
    stamp(k, 8)
    wait_edge(k, 1, 36, 32)
    stamp(k, 9)
    vm.n = 0
    oid = []
    for i in range(8):
        if i:
            k("s_add_u32 m0, m0, 4096")
            k("s_add_u32 s47, s47, 4096")
        oid.append(vm.op(f"buffer_load_dwordx4 v2, s[24:27], s47 offen {FL} lds"))
    AC, OFR = 20, 60
    chunks = [(0, 8), (8, 20), (20, 32)]
    for (c0, c1) in chunks:
        vm.wait(oid[c1 // 4 - 1])
        k("s_barrier")
        n = c1 - c0
        ahead = 6
        for s in range(c0, min(c1, c0 + ahead)):
            k(lds_rd(f"v[{OFR+4*(s%8)}:{OFR+4*(s%8)+3}]", LDS_OST + s * 1024))
        for s in range(c0, c1):
            issued = min(c1, s + ahead)
            k(f"s_waitcnt lgkmcnt({issued - 1 - s})")
            c = "0" if s == 0 else f"v[{AC}:{AC+15}]"
            k(f"v_mfma_f32_32x32x16_bf16 v[{AC}:{AC+15}], {wo_reg(s)}, v[{OFR+4*(s%8)}:{OFR+4*(s%8)+3}], {c}")
            if s + ahead < c1:
                s2 = s + ahead
                k(lds_rd(f"v[{OFR+4*(s2%8)}:{OFR+4*(s2%8)+3}]", LDS_OST + s2 * 1024))
    k("s_nop 11")
    stamp(k, 20)
    for i in range(8):
        k(f"v_pk_fma_f32 v[{AC+2*i}:{AC+2*i+1}], v[{GA+2*i}:{GA+2*i+1}], v[{AC+2*i}:{AC+2*i+1}], v[{XU+2*i}:{XU+2*i+1}]")
    for i in range(8):
        k(f"v_pk_mul_f32 v[{A2+2*i}:{A2+2*i+1}], v[{A2+2*i}:{A2+2*i+1}], v[{AC+2*i}:{AC+2*i+1}]")
    for i in range(8):
        k(f"v_cvt_pk_bf16_f32 v{60+i}, v{A2+2*i}, v{A2+2*i+1}")
    dual_begin(k)
    k(f"buffer_store_dwordx4 v[60:63], v12, s[24:27], s45 offen {DF}")
    k(f"buffer_store_dwordx4 v[64:67], v12, s[24:27], s45 offen offset:512 {DF}")
    k(f"v_pk_add_f32 v[14:15], v[{AC}:{AC+1}], v[{AC+2}:{AC+3}]")
    k(f"v_pk_mul_f32 v[16:17], v[{AC}:{AC+1}], v[{AC}:{AC+1}]")
    for i in range(1, 8):
        if i >= 2:
            k(f"v_pk_add_f32 v[14:15], v[14:15], v[{AC+2*i}:{AC+2*i+1}]")
        k(f"v_pk_fma_f32 v[16:17], v[{AC+2*i}:{AC+2*i+1}], v[{AC+2*i}:{AC+2*i+1}], v[16:17]")
    k("v_add_f32 v14, v14, v15")
    k("v_add_f32 v15, v16, v17")
    k("v_mov_b32 v16, v14")
    k("v_mov_b32 v17, v15")
    for i in range(2):
        k(f"v_cvt_pk_bf16_f32 v{68+i}, v{AC+2*i}, v{AC+2*i+1}")
    k("v_permlane32_swap_b32 v16, v14")
    k("v_permlane32_swap_b32 v17, v15")
    k("v_pk_add_f32 v[14:15], v[14:15], v[16:17]")
    k("s_mov_b32 exec_hi, 0")
    k(f"buffer_store_dwordx2 v[14:15], v13, s[24:27], s46 offen {DF}")
    k("s_mov_b32 exec_hi, -1")
    for i in range(2, 8):
        k(f"v_cvt_pk_bf16_f32 v{68+i}, v{AC+2*i}, v{AC+2*i+1}")
    k(f"buffer_store_dwordx4 v[68:71], v12, s[24:27], s44 offen {DF}")
    k(f"buffer_store_dwordx4 v[72:75], v12, s[24:27], s44 offen offset:512 {DF}")
    k("""
    s_lshr_b32 s40, s42, 2          ; E3 group
    s_and_b32 s41, s42, 3
    s_lshl_b32 s41, s41, 2
    s_lshr_b32 s43, s37, 3
    s_add_u32 s41, s41, s43         ; member
    """)
    signal(k, 2, 40, 41, 16, fl=DF)
    dual_end(k, 'e2')
    stamp(k, 10)
    ACC4, WF, ST, SB = 8, 64, 120, 136
    k(f"""
    s_lshl_b32 s40, s36, 1
    s_bfe_u32 s41, s37, 0x10001
    s_add_u32 s40, s40, s41        ; tb4
    s_lshl_b32 s44, s40, 2
    s_add_u32 s44, s44, s3         ; tok32
    s_lshl_b32 s45, s44, 15
    s_add_u32 s45, s45, {OFF_X2S}
    s_add_u32 s46, s45, 16384
    v_and_b32 v3, 15, v1
    v_lshrrev_b32 v152, 4, v1
    v_lshlrev_b32 v153, 3, v3
    v_lshl_add_u32 v153, v152, 10, v153
    s_lshl_b32 s47, s44, 12
    s_add_u32 s47, s47, {OFF_ST2}
    s_mul_i32 s42, s44, {112*1024}
    s_mul_i32 s43, s57, {7*1024}
    s_add_u32 s42, s42, s43
    s_add_u32 s42, s42, {OFF_H}
    s_add_u32 s43, s42, 4096
    """)
    def wread(s):
        f = WF + 28 * (s & 1)
        return [lds_rd(f"v[{f+4*i}:{f+4*i+3}]", w1_lds(s * 7 + i)) for i in range(7)]
    for x in wread(0): k(x)
    wait_edge(k, 2, 40, 16)
    stamp(k, 11)
    vm.n = 0
    xid = []
    def xload():
        s = len(xid)
        if s >= 16:
            return
        if s and s % 4 == 0:
            k("s_add_u32 s45, s45, 4096")
            k("s_add_u32 s46, s46, 4096")
        vm.op(f"buffer_load_dwordx4 {wo_reg(2*s)}, v2, s[24:27], s45 offen offset:{(s%4)*1024} {FL}")
        xid.append(vm.op(f"buffer_load_dwordx4 {wo_reg(2*s+1)}, v2, s[24:27], s46 offen offset:{(s%4)*1024} {FL}"))
    for s in range(int(os.environ.get("P4D", "6"))):
        xload()
    stl = [f"buffer_load_dwordx2 v[{ST+8*j+2*pp}:{ST+8*j+2*pp+1}], v153, s[24:27], s47 offen offset:{256*pp+128*j} {FL}"
           for j in range(2) for pp in range(4)]
    class L(list):
        def __call__(self, text):
            for l in text.strip("\n").split("\n"):
                if l.strip():
                    self.append(l.strip())
    fill = L()
    for j in range(2):
        b = ST + 8 * j
        fill(f"v_pk_add_f32 v[{b}:{b+1}], v[{b}:{b+1}], v[{b+2}:{b+3}]")
        fill(f"v_pk_add_f32 v[{b+4}:{b+5}], v[{b+4}:{b+5}], v[{b+6}:{b+7}]")
        fill(f"v_pk_add_f32 v[{b}:{b+1}], v[{b}:{b+1}], v[{b+4}:{b+5}]")
    regs = [ST, ST + 1, ST + 8, ST + 9]
    tmp = [ST + 2, ST + 3, ST + 10, ST + 11]
    for op in ("v_permlane16_swap_b32", "v_permlane32_swap_b32"):
        for r, t in zip(regs, tmp):
            fill(f"v_mov_b32 v{t}, v{r}")
        fill("s_nop 1")
        for r, t in zip(regs, tmp):
            fill(f"{op} v{t}, v{r}")
        for r, t in zip(regs, tmp):
            fill(f"v_add_f32 v{r}, v{t}, v{r}")
    for j in range(2):
        b = ST + 8 * j
        ln_stats_finish(fill, b, b + 1, b + 4, b + 5, None, std_out=b + 6)
        fill(f"v_cvt_pk_bf16_f32 v{SB+4*j}, -v{b+4}, -v{b+4}")
        fill(f"v_cvt_pk_bf16_f32 v{SB+4*j+1}, v{b+6}, v{b+6}")
        fill(f"v_mov_b32 v{SB+4*j+2}, 0")
        fill(f"v_mov_b32 v{SB+4*j+3}, 0")
    fill(f"""
    v_lshlrev_b32 v154, 2, v3
    s_lshl_b32 s41, s3, 7
    v_add_u32 v154, s41, v154
    v_add_u32 v154, {LDS_R}, v154
    """)
    for s in range(17):
        nxt = wread(s + 1) if s < 16 else []
        k((vm.wait_str(xid[s]) if s < 16 else "s_waitcnt") + " lgkmcnt(0)")
        if s == 9:
            vm.wait(sid)
        f = WF + 28 * (s & 1)
        n = 0
        for i in range(7):
            for j in range(2):
                a = ACC4 + 4 * (j * 7 + i)
                c = "0" if s == 0 else f"v[{a}:{a+3}]"
                bop = wo_reg(2 * s + j) if s < 16 else f"v[{SB+4*j}:{SB+4*j+3}]"
                k(f"v_mfma_f32_16x16x32_bf16 v[{a}:{a+3}], v[{f+4*i}:{f+4*i+3}], {bop}, {c}")
                if nxt:
                    k(nxt.pop(0))
                elif n == 8:
                    xload()
                elif n in (10, 12) and stl:
                    sid = vm.op(stl.pop(0))
                if s >= 9 and fill:
                    k(fill.pop(0))
                n += 1
    assert not fill
    stamp(k, 12)
    dual_begin(k)
    k(f"ds_write_b32 v154, v{ST+5}")
    k(f"ds_write_b32 v154, v{ST+13} offset:64")
    for i in range(7):
        t = WF + 4 * i
        for j in range(2):
            a = ACC4 + 4 * (j * 7 + i)
            k(f"v_cvt_pk_bf16_f32 v{t+2*j}, v{a}, v{a+1}")
            k(f"v_cvt_pk_bf16_f32 v{t+2*j+1}, v{a+2}, v{a+3}")
        for q in range(4):
            k(f"v_pk_max_i16 v{t+q}, v{t+q}, 0")
        if i:
            tp = WF + 4 * (i - 1)
            k(f"v_permlane16_swap_b32 v{tp}, v{tp+2}")
            k(f"v_permlane16_swap_b32 v{tp+1}, v{tp+3}")
            k(f"buffer_store_dwordx4 v[{tp}:{tp+3}], v2, s[24:27], s{42 if i-1 < 4 else 43} offen offset:{((i-1)%4)*1024} {DF}")
    tp = WF + 24
    k("s_nop 1")
    k(f"v_permlane16_swap_b32 v{tp}, v{tp+2}")
    k(f"v_permlane16_swap_b32 v{tp+1}, v{tp+3}")
    k(f"buffer_store_dwordx4 v[{tp}:{tp+3}], v2, s[24:27], s43 offen offset:2048 {DF}")
    ACC5, RB, DEPTH = 8, 72, 19
    G5, X5, R5 = 224, 240, 248
    k(f"""
    s_lshl_b32 s58, s36, 2
    s_and_b32 s59, s37, 3
    s_add_u32 s58, s58, s59         ; tb5
    s_lshl_b32 s58, s58, 1
    s_and_b32 s59, s3, 1
    s_add_u32 s58, s58, s59
    s_xor_b32 s59, s58, 1
    s_mul_i32 s44, s58, {112*1024}
    s_mul_i32 s45, s59, {112*1024}
    s_mul_i32 s46, s3, {28*1024}
    s_add_u32 s46, s46, {OFF_H}
    s_add_u32 s44, s44, s46
    s_add_u32 s45, s45, s46
    v_lshrrev_b32 v250, 5, v1
    v_and_b32 v251, 31, v1
    v_lshlrev_b32 v252, 4, v250
    s_and_b32 s46, s52, 7
    s_lshl_b32 s46, s46, 7
    s_add_u32 s46, s46, {LDS_VEC + 1024}
    v_add_u32 v252, s46, v252
    v_lshrrev_b32 v253, 4, v251
    v_lshlrev_b32 v253, 14, v253
    v_and_b32 v254, 15, v251
    v_lshl_add_u32 v253, v254, 4, v253
    v_lshl_add_u32 v253, v250, 8, v253
    s_lshl_b32 s47, s58, 15
    s_lshl_b32 s50, s52, 10
    s_add_u32 s47, s47, s50
    s_add_u32 s47, s47, {OFF_X2}
    s_and_b32 s50, s58, 3
    s_lshl_b32 s50, s50, 7
    s_add_u32 s50, s50, {LDS_R}
    v_lshlrev_b32 v254, 2, v251
    v_add_u32 v254, s50, v254
    """)
    for j in range(4):
        k(f"ds_read_b128 v[{G5+4*j}:{G5+4*j+3}], v252 offset:{32*j}")
    k(f"buffer_load_dwordx4 v[{X5}:{X5+3}], v253, s[24:27], s47 offen {FL}")
    k(f"buffer_load_dwordx4 v[{X5+4}:{X5+7}], v253, s[24:27], s47 offen offset:512 {FL}")
    k(f"""
    v_lshlrev_b32 v253, 10, v251
    v_lshl_add_u32 v253, v250, 4, v253
    s_lshl_b32 s47, s58, 15
    s_lshl_b32 s50, s52, 6
    s_add_u32 s47, s47, s50
    """)
    stamp(k, 13)
    signal(k, 3, 40, 57, 16, nafter=2, fl=DF)
    dual_end(k, 'e3')
    stamp(k, 14)
    k(f"ds_read_b32 v{R5}, v254")
    k("s_waitcnt lgkmcnt(0)")
    for i in range(16):
        k(f"v_mul_f32 v{G5+i}, v{R5}, v{G5+i}")
    stamp(k, 15)
    wait_edge(k, 3, 40, 16)
    stamp(k, 16)
    vm.n = 0
    hid = []
    def hload():
        s = len(hid)
        if s >= 28:
            return
        r = RB + 8 * (s % DEPTH)
        if s and s % 4 == 0:
            k("s_add_u32 s44, s44, 4096")
            k("s_add_u32 s45, s45, 4096")
        vm.op(f"buffer_load_dwordx4 v[{r}:{r+3}], v2, s[24:27], s44 offen offset:{(s%4)*1024} {FL}")
        hid.append(vm.op(f"buffer_load_dwordx4 v[{r+4}:{r+7}], v2, s[24:27], s45 offen offset:{(s%4)*1024} {FL}"))
    for s in range(int(os.environ.get("P5D", "8"))):
        hload()
    for s in range(28):
        vm.wait(hid[s])
        r = RB + 8 * (s % DEPTH)
        A0, A1 = f"a[{8*s}:{8*s+3}]", f"a[{8*s+4}:{8*s+7}]"
        B0, B1 = f"v[{r}:{r+3}]", f"v[{r+4}:{r+7}]"
        for t, (a, b) in enumerate(((A0, B0), (A0, B1), (A1, B0), (A1, B1))):
            acc = ACC5 + 16 * t
            c = "0" if s == 0 else f"v[{acc}:{acc+15}]"
            k(f"v_mfma_f32_32x32x16_bf16 v[{acc}:{acc+15}], {a}, {b}, {c}")
            if t == 0:
                hload()
    XU5, TMP5 = 72, 88
    stamp(k, 17)
    for t in (1, 2, 3):
        k(f"""
        s_xor_b32 s56, s3, {t}
        s_mul_i32 s56, s56, 12288
        s_add_u32 s56, s56, {(t-1)*4096}
        v_add_u32 v{3+t}, s56, v2
        """)
    for t in (1, 2, 3):
        for q in range(4):
            k(f"ds_write_b128 v{3+t}, v[{ACC5+16*t+4*q}:{ACC5+16*t+4*q+3}] offset:{q*1024}")
    for i in range(8):
        k(f"v_lshlrev_b32 v{XU5+2*i}, 16, v{X5+i}")
        k(f"v_and_b32 v{XU5+2*i+1}, 0xffff0000, v{X5+i}")
    k(f"""
    s_mul_i32 s56, s3, 12288
    v_add_u32 v3, s56, v2
    s_waitcnt lgkmcnt(0)
    s_barrier
    """)
    for i in range(12):
        k(f"ds_read_b128 v[{TMP5+4*i}:{TMP5+4*i+3}], v3 offset:{i*1024}")
    for sl in range(3):
        k(f"s_waitcnt lgkmcnt({8-4*sl})")
        for i in range(8):
            k(f"v_pk_add_f32 v[{ACC5+2*i}:{ACC5+2*i+1}], v[{ACC5+2*i}:{ACC5+2*i+1}], v[{TMP5+16*sl+2*i}:{TMP5+16*sl+2*i+1}]")
    stamp(k, 18)
    for i in range(8):
        k(f"v_pk_fma_f32 v[{ACC5+2*i}:{ACC5+2*i+1}], v[{G5+2*i}:{G5+2*i+1}], v[{ACC5+2*i}:{ACC5+2*i+1}], v[{XU5+2*i}:{XU5+2*i+1}]")
    for i in range(8):
        k(f"v_cvt_pk_bf16_f32 v{TMP5+i}, v{ACC5+2*i}, v{ACC5+2*i+1}")
    k("s_nop 0")
    for p in range(2):
        t = TMP5 + 4 * p
        k(f"v_permlane32_swap_b32 v{t}, v{t+2}")
        k(f"v_permlane32_swap_b32 v{t+1}, v{t+3}")
        k(f"buffer_store_dwordx4 v[{t}:{t+3}], v253, s[32:35], s47 offen offset:{32*p}")
    endpgm(k)
    k.label("L_att_fallback")
    k(f"""
    s_mov_b32 s42, 0
    s_mov_b32 s43, s47
    v_mov_b32 v6, 0xff800000
    v_mov_b32 v7, 0xff800000
    """)
    k.label("L_att_maxloop")
    k(f"""
    buffer_load_dwordx4 v[{KF}:{KF+3}], v2, s[24:27], s43 offen {FL}
    s_add_u32 s43, s43, 2048
    s_waitcnt vmcnt(0)
    v_mfma_f32_32x32x16_bf16 v[{S}:{S+15}], v[{KF}:{KF+3}], v[{Q}:{Q+3}], 0
    v_mfma_f32_32x32x16_bf16 v[{S+16}:{S+31}], v[{KF}:{KF+3}], v[{Q+4}:{Q+7}], 0
    s_nop 10
    """)
    att_max16(k, 6, S, False)
    att_max16(k, 7, S + 16, False)
    k(f"""
    s_add_u32 s42, s42, 1
    s_cmp_lt_u32 s42, 64
    s_cbranch_scc1 L_att_maxloop
    s_nop 0
    v_permlane32_swap_b32 v6, v7
    v_max_f32 v6, v6, v7
    v_mov_b32 v7, v6
    s_nop 1
    v_permlane32_swap_b32 v6, v7
    v_sub_f32 v6, 0, v6
    v_sub_f32 v7, 0, v7
    """)
    for i in range(16):
        k(f"v_mov_b32 v{C+i}, v6")
        k(f"v_mov_b32 v{C+16+i}, v7")
        k(f"v_mov_b32 v{O+i}, 0")
        k(f"v_mov_b32 v{O+16+i}, 0")
    k("s_mov_b32 s42, 0")
    k("s_mov_b32 s43, s47")
    k.label("L_att_redo")
    k(f"""
    buffer_load_dwordx4 v[{KF}:{KF+3}], v2, s[24:27], s43 offen {FL}
    s_mov_b64 exec, s[48:49]
    buffer_load_dwordx4 v[{VF}:{VF+3}], v3, s[24:27], s43 offen offset:1024 {FL}
    buffer_load_dwordx4 v[{VF+4}:{VF+7}], v3, s[24:27], s43 offen offset:1536 {FL}
    s_mov_b64 exec, -1
    s_add_u32 s43, s43, 2048
    s_waitcnt vmcnt(0)
    v_mfma_f32_32x32x16_bf16 v[{S}:{S+15}], v[{KF}:{KF+3}], v[{Q}:{Q+3}], v[{C}:{C+15}]
    v_mfma_f32_32x32x16_bf16 v[{S+16}:{S+31}], v[{KF}:{KF+3}], v[{Q+4}:{Q+7}], v[{C+16}:{C+31}]
    s_nop 10
    """)
    for b in range(2):
        for i in range(16):
            k(f"v_exp_f32 v{S+16*b+i}, v{S+16*b+i}")
        k("s_nop 0")
        for j in range(8):
            k(f"v_cvt_pk_bf16_f32 v{P+j}, v{S+16*b+2*j}, v{S+16*b+2*j+1}")
        k("s_nop 1")
        for h in range(2):
            k(f"v_mfma_f32_32x32x16_bf16 v[{O+16*b}:{O+16*b+15}], v[{VF+4*h}:{VF+4*h+3}], v[{P+4*h}:{P+4*h+3}], v[{O+16*b}:{O+16*b+15}]")
    k(f"""
    s_add_u32 s42, s42, 1
    s_cmp_lt_u32 s42, 64
    s_cbranch_scc1 L_att_redo
    s_nop 10
    s_branch L_att_fin
    """)
    k.label("L_xid_retry")
    k(f"""
    s_mov_b32 s39, 0x400000
    s_mov_b32 s53, {OFF_XID}
    """)
    k.label("L_xid_spin")
    k(f"""
    buffer_load_dwordx4 v[150:153], v2, s[24:27], s53 offen {FL}
    buffer_load_dwordx4 v[154:157], v2, s[24:27], s53 offen offset:32 {FL}
    s_sub_u32 s39, s39, 1
    s_waitcnt vmcnt(0)
    v_min_u32 v158, v150, v151
    v_min_u32 v159, v152, v153
    v_min_u32 v158, v158, v159
    v_xor_b32 v154, v154, v150
    v_xor_b32 v155, v155, v151
    v_cmp_eq_u32 vcc, 0, v158
    v_xor_b32 v156, v156, v152
    v_xor_b32 v157, v157, v153
    s_cbranch_scc1 L_xid_ok
    s_cbranch_vccnz L_xid_spin
    s_branch L_xid_ok
    """)
    for blk in OOL:
        k.lines += blk
    k.label(f"L_end_{k.name}")
    k("s_endpgm")
    return k, (256, 256, 163840)


def build(path=OUT):
    ks = [G.k0(), mega()]
    errs = []
    for k, _ in ks:
        errs += k.check()
    for e in errs:
        print(e)
    ref = open(OUT + ".ref").read().split("\n")
    hdr = [l for l in ref if l.startswith(";") and "@launch" not in l and "Override" not in l and "grid=ceil" not in l]
    out = "\n".join(hdr) + "\n"
    for k, (g, b, lds) in ks:
        out += f"; @launch kernel={k.name} grid=({g},1,1) block=({b},1,1) lds={lds}\n"
    out += '.amdgcn_target "amdgcn-amd-amdhsa--gfx950"\n'
    codes, kds = zip(*[k.text() for k, _ in ks])
    out += "".join(codes)
    out += '.section .rodata,"a"\n' + "".join(kds)
    open(path, "w").write(out)
    print("wrote", path, len(out), "bytes;", len(errs), "checker errors")
    return len(errs)


if __name__ == "__main__":
    sys.exit(1 if build(sys.argv[1] if len(sys.argv) > 1 else OUT) else 0)
```

```python
import sys, os
sys.path.insert(0, "gen")
from asmlib import Kern
import gen as G
from gen import (MB, OFF_MOD, OFF_XHAT, OFF_WQKV, OFF_Q, OFF_KV, OFF_O, OFF_WO, OFF_X2, OFF_X2S, OFF_ST2, OFF_W1,
                 OFF_H, OFF_W2, QSCALE, P_X, P_WQKV, P_WO, P_W1, P_W2, P_C, P_WMOD, P_OUT, P_WS, srd, stamp, endpgm,
                 prologue, prologue_wait, epilogue, bf16_round, ln_stats_finish, role_ln, role_relayout, ATT, att_unit,
                 att_max16, NAME, OUT, DIAG)

OFF_MODB = 0x3000
OFF_FLAG = G.OFF_FLAG
FL = "sc1"
DF = "@DF@"
S_FAST = 98
OFF_XID = G.OFF_XID
OOL = []


def dual_begin(k):
    k._dual = len(k.lines)


def dual_end(k, tag):
    body = k.lines[k._dual:]
    del k.lines[k._dual:]
    import re
    labs = [l[:-1] for l in body if l.endswith(":")]
    def variant(fl, suffix):
        out = []
        for l in body:
            l = l.replace(DF, fl).rstrip()
            for lab in labs:
                l = re.sub(rf"\b{lab}\b", lab + suffix, l)
            out.append(l)
        return out
    k(f"s_cmp_eq_u32 s{S_FAST}, 0")
    k(f"s_cbranch_scc1 L_slow_{tag}")
    k.lines += variant("", "_f")
    k.label(f"L_join_{tag}")
    OOL.append([f"L_slow_{tag}:"] + variant("sc1", "_s") + [f"s_branch L_join_{tag}"])


class VM:
    def __init__(self, k):
        self.k = k; self.n = 0
    def op(self, text=None):
        if text:
            self.k(text)
        self.n += 1
        return self.n
    def tick(self):
        self.n += 1
        return self.n
    def wait_str(self, idx):
        c = self.n - idx
        return f"s_waitcnt vmcnt({min(c, 63)})"
    def wait(self, idx):
        self.k(self.wait_str(idx))


def signal(k, edge, s_group, s_member, gsize, nafter=0, fl=FL):
    lab = f"L_sig{edge}"
    k(f"""
    s_mul_i32 s38, s{s_group}, {gsize}
    s_add_u32 s38, s38, s{s_member}
    s_lshl_b32 s38, s38, 8
    s_add_u32 s38, s38, {OFF_FLAG + edge * 65536}
    v_mov_b32 v6, 0
    v_mov_b32 v7, 1
    s_waitcnt vmcnt({nafter}) lgkmcnt(0)
    s_barrier
    s_cmp_lg_u32 s3, 0
    s_cbranch_scc1 {lab}
    s_mov_b64 exec, 1
    buffer_store_dword v7, v6, s[24:27], s38 offen {fl}
    s_mov_b64 exec, -1
    """)
    k.label(lab)


def wait_edge(k, edge, s_group, gsize):
    lab = f"L_wait{edge}"
    k(f"""
    s_cmp_lg_u32 s3, 0
    s_cbranch_scc1 {lab}
    s_mul_i32 s38, s{s_group}, {gsize*256}
    s_add_u32 s38, s38, {OFF_FLAG + edge * 65536}
    v_lshlrev_b32 v6, 8, v1
    s_mov_b32 exec_lo, {hex((1 << gsize) - 1)}
    s_mov_b32 exec_hi, 0
    s_mov_b32 s39, 0x400000
    """)
    k.label(f"L_poll{edge}")
    k(f"""
    buffer_load_dword v7, v6, s[24:27], s38 offen {FL}
    s_sub_u32 s39, s39, 1
    s_cbranch_scc1 L_bail{edge}
    s_waitcnt vmcnt(0)
    v_cmp_eq_u32 vcc, 0, v7
    s_cbranch_vccnz L_poll{edge}
    """)
    k.label(f"L_bail{edge}")
    k("s_waitcnt vmcnt(0)")
    k("s_mov_b64 exec, -1")
    k.label(lab)
    k("s_barrier")


def wo_reg(s):
    return f"a[{224+4*s}:{227+4*s}]" if s < 8 else f"v[{160+4*(s-8)}:{163+4*(s-8)}]"


def w1_lds(f):
    if f < 28:
        return 131072 + f * 1024
    if f < 112:
        return (f - 28) * 1024
    return LDS_UT + (f - 112) * 1024


LDS_MODB = 156 * 1024
LDS_VEC = 158 * 1024
LDS_OST = 84 * 1024
LDS_UT = 116 * 1024
LDS_R = 125 * 1024


def lds_rd(dst, addr):
    base = (2, 4, 5)[addr >> 16]
    return f"ds_read_b128 {dst}, v{base} offset:{addr & 0xffff}"


def mega():
    k = Kern("k1_mega_kernel", nvgpr=256, nagpr=256)
    prologue(k, 256)
    vm = VM(k)
    k("""
    s_and_b32 s36, s2, 7
    s_lshr_b32 s37, s2, 3
    v_lshlrev_b32 v2, 4, v1
    """)
    VA, VB, ROWS, TMP, ACC, FR = 8, 16, 24, 88, 136, 104
    k(f"""
    s_lshr_b32 s42, s36, 1
    s_lshl_b32 s42, s42, 3
    s_and_b32 s43, s37, 7
    s_add_u32 s42, s42, s43        ; tb1
    s_and_b32 s40, s36, 1
    s_lshl_b32 s40, s40, 2
    s_lshr_b32 s44, s37, 3
    s_add_u32 s40, s40, s44        ; cb1
    s_lshl_b32 s43, s40, 2
    s_add_u32 s43, s43, s3         ; head
    v_lshlrev_b32 v3, 5, v1
    s_lshl_b32 s44, s42, 16
    s_lshl_b32 s45, s3, 14
    s_add_u32 s44, s44, s45
    s_add_u32 s44, s44, {OFF_XHAT}
    s_mul_i32 s46, s43, {48*1024}
    s_add_u32 s46, s46, {OFF_WQKV}
    """)
    prologue_wait(k)
    srd(k, 28, P_X, 2048 * 1024)
    srd(k, 32, P_OUT, 2048 * 1024)
    vm.op(f"buffer_load_dwordx4 v[{VB}:{VB+3}], v3, s[24:27], 0 offen offset:{OFF_MOD}")
    vm.op(f"buffer_load_dwordx4 v[{VB+4}:{VB+7}], v3, s[24:27], 0 offen offset:{OFF_MOD+16}")
    vm.op(f"buffer_load_dwordx4 v[{VA}:{VA+3}], v3, s[24:27], 0 offen offset:{OFF_MOD+2048}")
    vm.op(f"buffer_load_dwordx4 v[{VA+4}:{VA+7}], v3, s[24:27], 0 offen offset:{OFF_MOD+2064}")
    rowid = []
    for r in range(16):
        if r and r % 4 == 0:
            k("s_add_u32 s44, s44, 4096")
        rowid.append(vm.op(f"buffer_load_dwordx4 v[{ROWS+4*r}:{ROWS+4*r+3}], v2, s[24:27], s44 offen offset:{(r%4)*1024}"))
    wid = []
    def wload():
        i = len(wid)
        if i >= 48:
            return
        if i and i % 4 == 0:
            k("s_add_u32 s46, s46, 4096")
        wid.append(vm.op(f"buffer_load_dwordx4 a[{4*i}:{4*i+3}], v2, s[24:27], s46 offen offset:{(i%4)*1024}"))
    k(f"""
    v_and_b32 v4, 7, v1
    v_lshlrev_b32 v4, 4, v4
    v_lshl_add_u32 v4, v1, 8, v4
    v_add_u32 v4, s45, v4
    v_and_b32 v5, 15, v1
    v_lshrrev_b32 v6, 4, v1
    v_xor_b32 v7, v5, v6
    v_lshlrev_b32 v7, 4, v7
    v_lshl_add_u32 v6, v6, 8, v7
    v_xor_b32 v7, 64, v6
    """)
    stamp(k, 1)
    for r in range(16):
        vm.wait(rowid[r])
        b = ROWS + 4 * r
        t = TMP + 8 * (r & 1)
        for i in range(4):
            k(f"v_lshlrev_b32 v{t+2*i}, 16, v{b+i}")
            k(f"v_and_b32 v{t+2*i+1}, 0xffff0000, v{b+i}")
        wload()
        for i in range(4):
            k(f"v_pk_fma_f32 v[{t+2*i}:{t+2*i+1}], v[{t+2*i}:{t+2*i+1}], v[{VA+2*i}:{VA+2*i+1}], v[{VB+2*i}:{VB+2*i+1}]")
        for i in range(4):
            k(f"v_cvt_pk_bf16_f32 v{b+i}, v{t+2*i}, v{t+2*i+1}")
        k(f"v_xor_b32 v5, {r<<4}, v4")
        k(f"ds_write_b128 v5, v[{b}:{b+3}]")
        if r >= 8:
            wload()
    if int(os.environ.get("CPF", "1")):
        k(f"""
        s_getpc_b64 s[38:39]
        """)
        k.label("L_pc_here")
        k(f"""
        s_lshl_b32 s41, s37, 2
        s_add_u32 s41, s41, s3
        s_and_b32 s41, s41, 63
        s_lshl_b32 s41, s41, 10
        s_add_u32 s38, s38, s41
        s_addc_u32 s39, s39, 0
        """)
        vm.op(f"global_load_dwordx4 v[{TMP}:{TMP+3}], v2, s[38:39]")
    k("s_waitcnt lgkmcnt(0)")
    k("s_barrier")
    stamp(k, 2)
    def aread(s):
        base = 6 + (s & 1)
        f = FR + 16 * (s & 1)
        return [f"ds_read_b128 v[{f+4*b}:{f+4*b+3}], v{base} offset:{b*16384+s*1024}" for b in range(4)]
    for x in aread(0): k(x)
    for s in range(16):
        nxt = aread(s + 1) if s < 15 else []
        k(vm.wait_str(wid[3 * s + 2]) + " lgkmcnt(0)")
        f = FR + 16 * (s & 1)
        n = 0
        for b in range(4):
            for which in range(3):
                acc = ACC + 4 * (which * 4 + b)
                w = f"a[{12*s+4*which}:{12*s+4*which+3}]"
                h = f"v[{f+4*b}:{f+4*b+3}]"
                c = "0" if s == 0 else f"v[{acc}:{acc+3}]"
                a_, b_ = (w, h) if which < 2 else (h, w)
                k(f"v_mfma_f32_16x16x32_bf16 v[{acc}:{acc+3}], {a_}, {b_}, {c}")
                if nxt:
                    k(nxt.pop(0))
                elif n in (5, 7, 9):
                    wload()
                n += 1
    stamp(k, 3)
    k(f"""
    s_lshl_b32 s44, s43, 16
    s_lshl_b32 s45, s42, 11
    s_add_u32 s44, s44, s45
    s_add_u32 s44, s44, {OFF_Q}
    s_lshl_b32 s46, s43, 17
    s_lshl_b32 s45, s42, 12
    s_add_u32 s46, s46, s45
    s_add_u32 s46, s46, {OFF_KV}
    v_mov_b32 v10, {QSCALE:#x}
    v_mov_b32 v11, {QSCALE:#x}
    """)
    for which in (1, 2, 0):
        for bp in range(2):
            t = 12 + 4 * (which * 2 + bp)
            for b2 in range(2):
                acc = ACC + 4 * (which * 4 + bp * 2 + b2)
                if which == 0:
                    k(f"v_pk_mul_f32 v[{acc}:{acc+1}], v[10:11], v[{acc}:{acc+1}]")
                    k(f"v_pk_mul_f32 v[{acc+2}:{acc+3}], v[10:11], v[{acc+2}:{acc+3}]")
                k(f"v_cvt_pk_bf16_f32 v{t+2*b2}, v{acc}, v{acc+1}")
                k(f"v_cvt_pk_bf16_f32 v{t+2*b2+1}, v{acc+2}, v{acc+3}")
        op = "v_permlane32_swap_b32" if which == 2 else "v_permlane16_swap_b32"
        for bp in range(2):
            t = 12 + 4 * (which * 2 + bp)
            if bp == 1:
                k("s_nop 0")
            k(f"{op} v{t}, v{t+2}")
            k(f"{op} v{t+1}, v{t+3}")
            if which == 0:
                vm.op(f"buffer_store_dwordx4 v[{t}:{t+3}], v2, s[24:27], s44 offen offset:{bp*1024} {FL}")
            else:
                vm.op(f"buffer_store_dwordx4 v[{t}:{t+3}], v2, s[24:27], s46 offen offset:{bp*2048+(which-1)*1024} {FL}")
    signal(k, 0, 40, 42, 32)
    k(f"""
    s_cmp_lg_u32 s3, 1
    s_cbranch_scc1 L_noxid
    s_getreg_b32 s38, hwreg(HW_REG_XCC_ID, 0, 4)
    s_add_u32 s38, s38, 1
    s_lshl_b32 s39, s2, 2
    s_add_u32 s39, s39, {OFF_XID}
    v_mov_b32 v7, s38
    s_mov_b64 exec, 1
    buffer_store_dword v7, v6, s[24:27], s39 offen {FL}
    s_mov_b64 exec, -1
    """)
    k.label("L_noxid")
    stamp(k, 4)
    Q, KF, VF, S, P, O, C = (ATT[x] for x in ("Q", "KF", "VF", "S", "P", "O", "C"))
    k(f"""
    s_mov_b32 s40, s37             ; head2
    s_mov_b32 s54, s36             ; qb256
    s_lshl_b32 s41, s54, 2
    s_add_u32 s41, s41, s3         ; qblock64
    s_lshl_b32 s42, s40, 16
    s_lshl_b32 s43, s41, 11
    s_add_u32 s42, s42, s43
    s_add_u32 s42, s42, {OFF_Q}
    s_lshl_b32 s44, s40, 17
    s_lshl_b32 s45, s3, 10
    s_add_u32 s47, s44, {OFF_KV}
    s_add_u32 s44, s47, s45
    s_lshl_b32 s46, s41, 16
    s_lshl_b32 s43, s40, 10
    s_add_u32 s46, s46, s43
    s_add_u32 s46, s46, {OFF_O}
    s_mov_b32 m0, s45
    v_and_b32 v3, 15, v1
    v_lshlrev_b32 v3, 4, v3
    v_lshrrev_b32 v4, 5, v1
    v_lshl_add_u32 v3, v4, 8, v3
    v_add_u32 v4, 0x10000, v2
    v_add_u32 v5, 0x10000, v3
    s_mov_b32 s48, 0x0000ffff
    s_mov_b32 s49, 0x0000ffff
    v_and_b32 v8, 27, v1
    v_cmp_eq_u32 vcc, 16, v8
    v_mov_b32 v9, 0x3f803f80
    s_nop 0
    v_cndmask_b32 v9, 0, v9, vcc
    """)
    for i in range(16):
        k(f"v_mov_b32 v{VF+i}, v9")
    k(f"""
    s_lshr_b32 s50, s37, 3
    s_lshl_b32 s50, s50, 2
    s_add_u32 s50, s50, s3          ; P3 ncol32
    s_lshl_b32 s51, s50, 15
    s_add_u32 s51, s51, {OFF_WO}
    s_lshr_b32 s52, s37, 2
    s_lshl_b32 s52, s52, 1
    s_lshr_b32 s53, s3, 1
    s_add_u32 s52, s52, s53
    s_xor_b32 s53, s52, 1
    s_mul_i32 s55, s52, {112*1024}
    s_mul_i32 s56, s53, {112*1024}
    s_mul_i32 s53, s3, {28*1024}
    s_add_u32 s53, s53, {OFF_W2}
    s_add_u32 s55, s55, s53
    s_add_u32 s56, s56, s53
    s_lshr_b32 s57, s37, 2
    s_lshl_b32 s57, s57, 1
    s_and_b32 s53, s37, 1
    s_add_u32 s57, s57, s53         ; cb4
    s_mul_i32 s58, s57, {112*1024}
    s_add_u32 s58, s58, s45
    s_add_u32 s58, s58, {OFF_W1}
    v_lshrrev_b32 v8, 5, v1
    v_and_b32 v9, 31, v1
    v_lshlrev_b32 v148, 10, v9
    v_lshl_add_u32 v148, v8, 3, v148
    v_lshlrev_b32 v149, 4, v9
    v_lshl_add_u32 v149, v8, 12, v149
    s_lshl_b32 s59, s36, 3
    s_and_b32 s53, s37, 7
    s_add_u32 s59, s59, s53
    s_lshl_b32 s59, s59, 15
    s_lshl_b32 s53, s50, 6
    s_add_u32 s59, s59, s53
    s_lshr_b32 s53, s37, 2
    """)
    wait_edge(k, 0, 53, 32)
    stamp(k, 5)
    vm.n = 0
    rid = []
    def dma():
        i = len(rid)
        out = []
        if i:
            out += ["s_add_u32 m0, m0, 4096", "s_add_u32 s44, s44, 4096"]
        out += [f"buffer_load_dwordx4 v2, s[24:27], s44 offen {FL} lds"]
        rid.append(vm.tick())
        return out
    for x in dma(): k(x)
    vm.op(f"buffer_load_dwordx4 v[{Q}:{Q+3}], v2, s[24:27], s42 offen {FL}")
    qid = vm.op(f"buffer_load_dwordx4 v[{Q+4}:{Q+7}], v2, s[24:27], s42 offen offset:1024 {FL}")
    for r in range(3):
        for x in dma(): k(x)
    vm.wait(qid)
    k("s_barrier")
    def kread(t):
        off = t * 2048
        return f"ds_read_b128 v[{KF}:{KF+3}], v{2 if off < 65536 else 4} offset:{off & 0xffff}"
    def vread(t):
        off = t * 2048 + 1024
        b = VF + 8 * (t & 1)
        a = 3 if off < 65536 else 5
        return ["s_mov_b64 exec, s[48:49]",
                f"ds_read_b128 v[{b}:{b+3}], v{a} offset:{off & 0xffff}",
                f"ds_read_b128 v[{b+4}:{b+7}], v{a} offset:{(off+512) & 0xffff}",
                "s_mov_b64 exec, -1"]
    k(kread(0))
    for x in vread(0): k(x)
    k(f"""
    s_waitcnt lgkmcnt(2)
    v_mfma_f32_32x32x16_bf16 v[{S}:{S+15}], v[{KF}:{KF+3}], v[{Q}:{Q+3}], 0
    v_mfma_f32_32x32x16_bf16 v[{S+16}:{S+31}], v[{KF}:{KF+3}], v[{Q+4}:{Q+7}], 0
    s_nop 10
    """)
    att_max16(k, 6, S, True)
    att_max16(k, 7, S + 16, True)
    k("""
    s_nop 1
    v_permlane32_swap_b32 v6, v7
    v_max_f32 v6, v6, v7
    v_mov_b32 v7, v6
    s_nop 1
    v_permlane32_swap_b32 v6, v7
    v_sub_f32 v6, 0, v6
    v_sub_f32 v7, 0, v7
    """)
    for i in range(16):
        k(f"v_mov_b32 v{C+i}, v6")
    k("s_nop 0")
    k(f"v_mov_b32 v{C+16}, v7")
    k(f"v_mfma_f32_32x32x16_bf16 v[{S}:{S+15}], v[{KF}:{KF+3}], v[{Q}:{Q+3}], v[{C}:{C+15}]")
    for i in range(1, 16):
        k(f"v_mov_b32 v{C+16+i}, v7")
    stamp(k, 6)
    jobs = []
    for s in range(32):
        pre = ["s_add_u32 s51, s51, 4096"] if (s and s % 4 == 0) else []
        jobs.append(pre + [f"buffer_load_dwordx4 {wo_reg(s)}, v2, s[24:27], s51 offen offset:{(s%4)*1024}"])
    for s in range(28):
        for i, sr in enumerate((55, 56)):
            pre = [f"s_add_u32 s{sr}, s{sr}, 4096"] if (s and s % 4 == 0) else []
            jobs.append(pre + [f"buffer_load_dwordx4 a[{8*s+4*i}:{8*s+4*i+3}], v2, s[24:27], s{sr} offen offset:{(s%4)*1024}"])
    w1jobs = []
    for i in range(28):
        pre = [f"s_add_u32 m0, s45, {w1_lds(4*i)}"] + (["s_add_u32 s58, s58, 4096"] if i else ["s_nop 0"])
        w1jobs.append(pre + ["buffer_load_dwordx4 v2, s[24:27], s58 offen lds"])
    modb = ["s_and_b32 s53, s45, 1024", f"s_add_u32 m0, s53, {LDS_MODB}", f"s_add_u32 s53, s53, {OFF_MODB}",
            "buffer_load_dwordx4 v2, s[24:27], s53 offen lds"]
    vec1 = [f"s_mov_b32 m0, {LDS_VEC}", "s_lshr_b32 s53, s37, 3", "s_lshl_b32 s53, s53, 9", f"s_add_u32 s53, s53, {OFF_MOD + 2*2048}",
            "buffer_load_dwordx4 v149, s[24:27], s53 offen lds"]
    vec2 = [f"s_mov_b32 m0, {LDS_VEC + 1024}", "s_lshr_b32 s53, s37, 4", "s_lshl_b32 s53, s53, 10", f"s_add_u32 s53, s53, {OFF_MOD + 5*2048}",
            "buffer_load_dwordx4 v2, s[24:27], s53 offen lds"]
    xj = [[f"buffer_load_dwordx2 v[{140+2*j}:{141+2*j}], v148, s[28:31], s59 offen offset:{16*j}"] for j in range(4)]
    jobs = w1jobs[:7] + [modb, vec1, vec2] + jobs
    late2 = xj
    late = w1jobs[7:]
    for u in range(128):
        t = u >> 1
        side = {}
        def add(slot, xs):
            side.setdefault(slot, []).extend(xs)
        if len(rid) < 32:
            d = dma()
            add(1, d[:2]); add(2, d[2:])
        elif jobs:
            d = jobs.pop(0); vm.tick()
            add(1, d[:-1]); add(2, d[-1:])
        if u % 2 == 0 and t < 63:
            pre = []
            if u == 2:
                pre = [vm.wait_str(rid[3]), "s_barrier"]
            elif u == 14:
                pre = [vm.wait_str(rid[11]), "s_barrier"]
            elif u == 46:
                pre = [vm.wait_str(rid[31]), "s_barrier"]
            elif u == 82:
                pre = ["s_barrier"]
            add(14, pre + [kread(t + 1)])
            add(15, vread(t + 1))
        if u % 2 == 1 or u == 0:
            add(-14, ["s_waitcnt lgkmcnt(0)"])
        if u >= 83 and late and u % 2 == 1:
            d = late.pop(0); vm.tick()
            add(17, d[:-1]); add(18, d[-1:])
        if u >= 60 and late2 and u % 2 == 1:
            d = late2.pop(0); vm.tick()
            add(18, d)
        if u == 70:
            vm.tick(); xidid = vm.tick()
            add(17, [f"s_mov_b32 s53, {OFF_XID}", f"buffer_load_dwordx4 v[150:153], v2, s[24:27], s53 offen {FL}"])
            add(24, [f"buffer_load_dwordx4 v[154:157], v2, s[24:27], s53 offen offset:32 {FL}"])
        if u == 79:
            add(17, [vm.wait_str(xidid), "v_min_u32 v158, v150, v151", "v_min_u32 v159, v152, v153"])
            add(18, ["v_min_u32 v158, v158, v159", "v_xor_b32 v154, v154, v150", "v_xor_b32 v155, v155, v151"])
            add(20, ["v_cmp_eq_u32 vcc, 0, v158", "v_xor_b32 v156, v156, v152", "v_xor_b32 v157, v157, v153"])
            add(22, ["s_cbranch_vccnz L_xid_retry", "L_xid_ok:", "v_or3_b32 v154, v154, v155, v156", "v_or_b32 v154, v154, v157"])
            add(24, ["v_cmp_ne_u32 vcc, 0, v154"])
            add(27, ["s_and_b32 s53, vcc_hi, 0x3fffffff", "s_or_b32 s53, s53, vcc_lo", "s_cmp_eq_u32 s53, 0", f"s_cselect_b32 s{S_FAST}, 1, 0"])
        att_unit(k, u, side, last=(u == 127))
    assert not jobs and not late, (len(jobs), len(late))
    k(f"""
    s_nop 0
    v_cvt_pk_bf16_f32 v{P+7}, v{S+30}, v{S+31}
    s_nop 1
    v_mfma_f32_32x32x16_bf16 v[{O+16}:{O+31}], v[{VF+12}:{VF+15}], v[{P+4}:{P+7}], v[{O+16}:{O+31}]
    s_mov_b32 s53, 0x53800000
    v_cmp_nge_f32 vcc, s53, v{O+8}
    s_nop 9
    v_cmp_nge_f32 s[42:43], s53, v{O+24}
    s_nop 3
    s_or_b64 vcc, vcc, s[42:43]
    s_cbranch_scc0 L_att_fin
    s_branch L_att_fallback
    """)
    k.label("L_att_fin")
    stamp(k, 7)
    XR, XU, GA, A2 = 140, 44, 108, 124
    k(f"""
    v_rcp_f32 v6, v{O+8}
    v_rcp_f32 v7, v{O+24}
    s_lshl_b32 s42, s36, 3
    s_and_b32 s43, s37, 7
    s_add_u32 s42, s42, s43         ; t3 (tok32)
    v_lshrrev_b32 v8, 5, v1         ; h
    v_and_b32 v9, 31, v1            ; tok
    """)
    dual_begin(k)
    for b_ in range(2):
        for i in range(8):
            k(f"v_mul_f32 v{O+16*b_+i}, v{6+b_}, v{O+16*b_+i}")
        for i in range(4):
            k(f"v_cvt_pk_bf16_f32 v{P+4*b_+i}, v{O+16*b_+2*i}, v{O+16*b_+2*i+1}")
        if b_:
            k("s_add_u32 s46, s46, 32768")
        k(f"buffer_store_dwordx4 v[{P+4*b_}:{P+4*b_+3}], v2, s[24:27], s46 offen {DF}")
    k(f"""
    v_add_u32 v5, 0x20000, v2
    v_lshrrev_b32 v12, 4, v9
    v_lshlrev_b32 v12, 14, v12
    v_and_b32 v13, 15, v9
    v_lshl_add_u32 v12, v13, 4, v12
    v_lshl_add_u32 v12, v8, 8, v12
    v_lshlrev_b32 v13, 3, v9
    s_lshl_b32 s43, s3, 10
    s_lshl_b32 s44, s42, 15
    s_lshl_b32 s45, s50, 10
    s_add_u32 s44, s44, s45
    s_add_u32 s45, s44, {OFF_X2S}
    s_add_u32 s44, s44, {OFF_X2}
    s_lshl_b32 s46, s42, 12
    s_lshl_b32 s47, s50, 8
    s_add_u32 s46, s46, s47
    s_add_u32 s46, s46, {OFF_ST2}
    s_lshl_b32 s47, s42, 15
    s_add_u32 s47, s47, s43
    s_add_u32 s47, s47, {OFF_O}
    s_add_u32 m0, s43, {LDS_OST}
    """)
    signal(k, 1, 54, 40, 32, fl=DF)
    dual_end(k, 'e1')
    stamp(k, 19)
    k(f"""
    s_lshl_b32 s38, s3, 7
    s_add_u32 s38, s38, {LDS_VEC}
    v_lshlrev_b32 v10, 4, v8
    v_add_u32 v10, s38, v10
    """)
    for j in range(4):
        k(f"ds_read_b128 v[{GA+4*j}:{GA+4*j+3}], v10 offset:{32*j}")
        k(f"ds_read_b128 v[{A2+4*j}:{A2+4*j+3}], v10 offset:{512+32*j}")
    for i in range(8):
        k(f"v_lshlrev_b32 v{XU+2*i}, 16, v{XR+i}")
        k(f"v_and_b32 v{XU+2*i+1}, 0xffff0000, v{XR+i}")
    k("s_cmp_eq_u32 s3, 0")
    k("s_cbranch_scc1 L_ut_done")
    MA_, WU, UA = 60, 68, 92
    k(f"""
    s_sub_u32 s38, s43, 1024
    v_add_u32 v14, s38, v2
    v_add_u32 v15, s38, v4
    v_add_u32 v16, s38, v5
    v_and_b32 v17, 15, v1
    v_lshrrev_b32 v18, 4, v1
    v_lshlrev_b32 v17, 10, v17
    v_lshl_add_u32 v17, v18, 4, v17
    v_add_u32 v17, {LDS_MODB}, v17
    s_mov_b32 s38, 0x00030003
    s_mov_b32 s39, 0x00030003
    """)
    for i in range(8):
        k(f"v_mov_b32 v{MA_+i}, 0")
    def uread(s):
        r = WU + 12 * (s & 1)
        k("s_mov_b64 exec, s[38:39]")
        k(f"ds_read_b128 v[{MA_+4*(s&1)}:{MA_+4*(s&1)+3}], v17 offset:{64*s}")
        k("s_mov_b64 exec, -1")
        for h in range(3):
            addr = w1_lds(s * 7) + 3 * h * 1024
            k(f"ds_read_b128 v[{r+4*h}:{r+4*h+3}], v{14 + (addr >> 16)} offset:{addr & 0xffff}")
    uread(0)
    for s in range(16):
        if s < 15:
            uread(s + 1)
            k("s_waitcnt lgkmcnt(4)")
        else:
            k("s_waitcnt lgkmcnt(0)")
        r = WU + 12 * (s & 1)
        for h in range(3):
            u_ = UA + 4 * h
            c = "0" if s == 0 else f"v[{u_}:{u_+3}]"
            k(f"v_mfma_f32_16x16x32_bf16 v[{u_}:{u_+3}], v[{MA_+4*(s&1)}:{MA_+4*(s&1)+3}], v[{r+4*h}:{r+4*h+3}], {c}")
    k("s_nop 5")
    for h in range(3):
        u_ = UA + 4 * h
        d = WU + 4 * h
        for i in range(2):
            bf16_round(k, 18 + i, u_ + i)
        for i in range(2):
            k(f"v_sub_f32 v{20+i}, v{u_+i}, v{18+i}")
        for i in range(2):
            k(f"v_cvt_pk_bf16_f32 v{d+i}, v{18+i}, v{20+i}")
        k(f"v_mov_b32 v{d+2}, 0")
        k(f"v_mov_b32 v{d+3}, 0")
        k(f"ds_write_b128 v15, v[{d}:{d+3}] offset:{LDS_UT + 3*h*1024 - 65536}")
    k.label("L_ut_done")
    stamp(k, 8)
    wait_edge(k, 1, 36, 32)
    stamp(k, 9)
    vm.n = 0
    oid = []
    for i in range(8):
        if i:
            k("s_add_u32 m0, m0, 4096")
            k("s_add_u32 s47, s47, 4096")
        oid.append(vm.op(f"buffer_load_dwordx4 v2, s[24:27], s47 offen {FL} lds"))
    AC, OFR = 20, 60
    chunks = [(0, 8), (8, 20), (20, 32)]
    for (c0, c1) in chunks:
        vm.wait(oid[c1 // 4 - 1])
        k("s_barrier")
        n = c1 - c0
        ahead = 6
        for s in range(c0, min(c1, c0 + ahead)):
            k(lds_rd(f"v[{OFR+4*(s%8)}:{OFR+4*(s%8)+3}]", LDS_OST + s * 1024))
        for s in range(c0, c1):
            issued = min(c1, s + ahead)
            k(f"s_waitcnt lgkmcnt({issued - 1 - s})")
            c = "0" if s == 0 else f"v[{AC}:{AC+15}]"
            k(f"v_mfma_f32_32x32x16_bf16 v[{AC}:{AC+15}], {wo_reg(s)}, v[{OFR+4*(s%8)}:{OFR+4*(s%8)+3}], {c}")
            if s + ahead < c1:
                s2 = s + ahead
                k(lds_rd(f"v[{OFR+4*(s2%8)}:{OFR+4*(s2%8)+3}]", LDS_OST + s2 * 1024))
    k("s_nop 11")
    stamp(k, 20)
    for i in range(8):
        k(f"v_pk_fma_f32 v[{AC+2*i}:{AC+2*i+1}], v[{GA+2*i}:{GA+2*i+1}], v[{AC+2*i}:{AC+2*i+1}], v[{XU+2*i}:{XU+2*i+1}]")
    for i in range(8):
        k(f"v_pk_mul_f32 v[{A2+2*i}:{A2+2*i+1}], v[{A2+2*i}:{A2+2*i+1}], v[{AC+2*i}:{AC+2*i+1}]")
    for i in range(8):
        k(f"v_cvt_pk_bf16_f32 v{60+i}, v{A2+2*i}, v{A2+2*i+1}")
    dual_begin(k)
    k(f"buffer_store_dwordx4 v[60:63], v12, s[24:27], s45 offen {DF}")
    k(f"buffer_store_dwordx4 v[64:67], v12, s[24:27], s45 offen offset:512 {DF}")
    k(f"v_pk_add_f32 v[14:15], v[{AC}:{AC+1}], v[{AC+2}:{AC+3}]")
    k(f"v_pk_mul_f32 v[16:17], v[{AC}:{AC+1}], v[{AC}:{AC+1}]")
    for i in range(1, 8):
        if i >= 2:
            k(f"v_pk_add_f32 v[14:15], v[14:15], v[{AC+2*i}:{AC+2*i+1}]")
        k(f"v_pk_fma_f32 v[16:17], v[{AC+2*i}:{AC+2*i+1}], v[{AC+2*i}:{AC+2*i+1}], v[16:17]")
    k("v_add_f32 v14, v14, v15")
    k("v_add_f32 v15, v16, v17")
    k("v_mov_b32 v16, v14")
    k("v_mov_b32 v17, v15")
    for i in range(2):
        k(f"v_cvt_pk_bf16_f32 v{68+i}, v{AC+2*i}, v{AC+2*i+1}")
    k("v_permlane32_swap_b32 v16, v14")
    k("v_permlane32_swap_b32 v17, v15")
    k("v_pk_add_f32 v[14:15], v[14:15], v[16:17]")
    k("s_mov_b32 exec_hi, 0")
    k(f"buffer_store_dwordx2 v[14:15], v13, s[24:27], s46 offen {DF}")
    k("s_mov_b32 exec_hi, -1")
    for i in range(2, 8):
        k(f"v_cvt_pk_bf16_f32 v{68+i}, v{AC+2*i}, v{AC+2*i+1}")
    k(f"buffer_store_dwordx4 v[68:71], v12, s[24:27], s44 offen {DF}")
    k(f"buffer_store_dwordx4 v[72:75], v12, s[24:27], s44 offen offset:512 {DF}")
    k("""
    s_lshr_b32 s40, s42, 2          ; E3 group
    s_and_b32 s41, s42, 3
    s_lshl_b32 s41, s41, 2
    s_lshr_b32 s43, s37, 3
    s_add_u32 s41, s41, s43         ; member
    """)
    signal(k, 2, 40, 41, 16, fl=DF)
    dual_end(k, 'e2')
    stamp(k, 10)
    ACC4, WF, ST, SB = 8, 64, 120, 136
    k(f"""
    s_lshl_b32 s40, s36, 1
    s_bfe_u32 s41, s37, 0x10001
    s_add_u32 s40, s40, s41        ; tb4
    s_lshl_b32 s44, s40, 2
    s_add_u32 s44, s44, s3         ; tok32
    s_lshl_b32 s45, s44, 15
    s_add_u32 s45, s45, {OFF_X2S}
    s_add_u32 s46, s45, 16384
    v_and_b32 v3, 15, v1
    v_lshrrev_b32 v152, 4, v1
    v_lshlrev_b32 v153, 3, v3
    v_lshl_add_u32 v153, v152, 10, v153
    s_lshl_b32 s47, s44, 12
    s_add_u32 s47, s47, {OFF_ST2}
    s_mul_i32 s42, s44, {112*1024}
    s_mul_i32 s43, s57, {7*1024}
    s_add_u32 s42, s42, s43
    s_add_u32 s42, s42, {OFF_H}
    s_add_u32 s43, s42, 4096
    """)
    def wread(s):
        f = WF + 28 * (s & 1)
        return [lds_rd(f"v[{f+4*i}:{f+4*i+3}]", w1_lds(s * 7 + i)) for i in range(7)]
    for x in wread(0): k(x)
    wait_edge(k, 2, 40, 16)
    stamp(k, 11)
    vm.n = 0
    xid = []
    def xload():
        s = len(xid)
        if s >= 16:
            return
        if s and s % 4 == 0:
            k("s_add_u32 s45, s45, 4096")
            k("s_add_u32 s46, s46, 4096")
        vm.op(f"buffer_load_dwordx4 {wo_reg(2*s)}, v2, s[24:27], s45 offen offset:{(s%4)*1024} {FL}")
        xid.append(vm.op(f"buffer_load_dwordx4 {wo_reg(2*s+1)}, v2, s[24:27], s46 offen offset:{(s%4)*1024} {FL}"))
    for s in range(int(os.environ.get("P4D", "6"))):
        xload()
    stl = [f"buffer_load_dwordx2 v[{ST+8*j+2*pp}:{ST+8*j+2*pp+1}], v153, s[24:27], s47 offen offset:{256*pp+128*j} {FL}"
           for j in range(2) for pp in range(4)]
    class L(list):
        def __call__(self, text):
            for l in text.strip("\n").split("\n"):
                if l.strip():
                    self.append(l.strip())
    fill = L()
    for j in range(2):
        b = ST + 8 * j
        fill(f"v_pk_add_f32 v[{b}:{b+1}], v[{b}:{b+1}], v[{b+2}:{b+3}]")
        fill(f"v_pk_add_f32 v[{b+4}:{b+5}], v[{b+4}:{b+5}], v[{b+6}:{b+7}]")
        fill(f"v_pk_add_f32 v[{b}:{b+1}], v[{b}:{b+1}], v[{b+4}:{b+5}]")
    regs = [ST, ST + 1, ST + 8, ST + 9]
    tmp = [ST + 2, ST + 3, ST + 10, ST + 11]
    for op in ("v_permlane16_swap_b32", "v_permlane32_swap_b32"):
        for r, t in zip(regs, tmp):
            fill(f"v_mov_b32 v{t}, v{r}")
        fill("s_nop 1")
        for r, t in zip(regs, tmp):
            fill(f"{op} v{t}, v{r}")
        for r, t in zip(regs, tmp):
            fill(f"v_add_f32 v{r}, v{t}, v{r}")
    for j in range(2):
        b = ST + 8 * j
        ln_stats_finish(fill, b, b + 1, b + 4, b + 5, None, std_out=b + 6)
        fill(f"v_cvt_pk_bf16_f32 v{SB+4*j}, -v{b+4}, -v{b+4}")
        fill(f"v_cvt_pk_bf16_f32 v{SB+4*j+1}, v{b+6}, v{b+6}")
        fill(f"v_mov_b32 v{SB+4*j+2}, 0")
        fill(f"v_mov_b32 v{SB+4*j+3}, 0")
    fill(f"""
    v_lshlrev_b32 v154, 2, v3
    s_lshl_b32 s41, s3, 7
    v_add_u32 v154, s41, v154
    v_add_u32 v154, {LDS_R}, v154
    """)
    for s in range(17):
        nxt = wread(s + 1) if s < 16 else []
        k((vm.wait_str(xid[s]) if s < 16 else "s_waitcnt") + " lgkmcnt(0)")
        if s == 9:
            vm.wait(sid)
        f = WF + 28 * (s & 1)
        n = 0
        for i in range(7):
            for j in range(2):
                a = ACC4 + 4 * (j * 7 + i)
                c = "0" if s == 0 else f"v[{a}:{a+3}]"
                bop = wo_reg(2 * s + j) if s < 16 else f"v[{SB+4*j}:{SB+4*j+3}]"
                k(f"v_mfma_f32_16x16x32_bf16 v[{a}:{a+3}], v[{f+4*i}:{f+4*i+3}], {bop}, {c}")
                if nxt:
                    k(nxt.pop(0))
                elif n == 8:
                    xload()
                elif n in (10, 12) and stl:
                    sid = vm.op(stl.pop(0))
                if s >= 9 and fill:
                    k(fill.pop(0))
                n += 1
    assert not fill
    stamp(k, 12)
    dual_begin(k)
    k(f"ds_write_b32 v154, v{ST+5}")
    k(f"ds_write_b32 v154, v{ST+13} offset:64")
    for i in range(7):
        t = WF + 4 * i
        for j in range(2):
            a = ACC4 + 4 * (j * 7 + i)
            k(f"v_cvt_pk_bf16_f32 v{t+2*j}, v{a}, v{a+1}")
            k(f"v_cvt_pk_bf16_f32 v{t+2*j+1}, v{a+2}, v{a+3}")
        for q in range(4):
            k(f"v_pk_max_i16 v{t+q}, v{t+q}, 0")
        if i:
            tp = WF + 4 * (i - 1)
            k(f"v_permlane16_swap_b32 v{tp}, v{tp+2}")
            k(f"v_permlane16_swap_b32 v{tp+1}, v{tp+3}")
            k(f"buffer_store_dwordx4 v[{tp}:{tp+3}], v2, s[24:27], s{42 if i-1 < 4 else 43} offen offset:{((i-1)%4)*1024} {DF}")
    tp = WF + 24
    k("s_nop 1")
    k(f"v_permlane16_swap_b32 v{tp}, v{tp+2}")
    k(f"v_permlane16_swap_b32 v{tp+1}, v{tp+3}")
    k(f"buffer_store_dwordx4 v[{tp}:{tp+3}], v2, s[24:27], s43 offen offset:2048 {DF}")
    ACC5, RB, DEPTH = 8, 72, 19
    G5, X5, R5 = 224, 240, 248
    k(f"""
    s_lshl_b32 s58, s36, 2
    s_and_b32 s59, s37, 3
    s_add_u32 s58, s58, s59         ; tb5
    s_lshl_b32 s58, s58, 1
    s_and_b32 s59, s3, 1
    s_add_u32 s58, s58, s59
    s_xor_b32 s59, s58, 1
    s_mul_i32 s44, s58, {112*1024}
    s_mul_i32 s45, s59, {112*1024}
    s_mul_i32 s46, s3, {28*1024}
    s_add_u32 s46, s46, {OFF_H}
    s_add_u32 s44, s44, s46
    s_add_u32 s45, s45, s46
    v_lshrrev_b32 v250, 5, v1
    v_and_b32 v251, 31, v1
    v_lshlrev_b32 v252, 4, v250
    s_and_b32 s46, s52, 7
    s_lshl_b32 s46, s46, 7
    s_add_u32 s46, s46, {LDS_VEC + 1024}
    v_add_u32 v252, s46, v252
    v_lshrrev_b32 v253, 4, v251
    v_lshlrev_b32 v253, 14, v253
    v_and_b32 v254, 15, v251
    v_lshl_add_u32 v253, v254, 4, v253
    v_lshl_add_u32 v253, v250, 8, v253
    s_lshl_b32 s47, s58, 15
    s_lshl_b32 s50, s52, 10
    s_add_u32 s47, s47, s50
    s_add_u32 s47, s47, {OFF_X2}
    s_and_b32 s50, s58, 3
    s_lshl_b32 s50, s50, 7
    s_add_u32 s50, s50, {LDS_R}
    v_lshlrev_b32 v254, 2, v251
    v_add_u32 v254, s50, v254
    """)
    for j in range(4):
        k(f"ds_read_b128 v[{G5+4*j}:{G5+4*j+3}], v252 offset:{32*j}")
    k(f"buffer_load_dwordx4 v[{X5}:{X5+3}], v253, s[24:27], s47 offen {FL}")
    k(f"buffer_load_dwordx4 v[{X5+4}:{X5+7}], v253, s[24:27], s47 offen offset:512 {FL}")
    k(f"""
    v_lshlrev_b32 v253, 10, v251
    v_lshl_add_u32 v253, v250, 4, v253
    s_lshl_b32 s47, s58, 15
    s_lshl_b32 s50, s52, 6
    s_add_u32 s47, s47, s50
    """)
    stamp(k, 13)
    signal(k, 3, 40, 57, 16, nafter=2, fl=DF)
    dual_end(k, 'e3')
    stamp(k, 14)
    k(f"ds_read_b32 v{R5}, v254")
    k("s_waitcnt lgkmcnt(0)")
    for i in range(16):
        k(f"v_mul_f32 v{G5+i}, v{R5}, v{G5+i}")
    stamp(k, 15)
    wait_edge(k, 3, 40, 16)
    stamp(k, 16)
    vm.n = 0
    hid = []
    def hload():
        s = len(hid)
        if s >= 28:
            return
        r = RB + 8 * (s % DEPTH)
        if s and s % 4 == 0:
            k("s_add_u32 s44, s44, 4096")
            k("s_add_u32 s45, s45, 4096")
        vm.op(f"buffer_load_dwordx4 v[{r}:{r+3}], v2, s[24:27], s44 offen offset:{(s%4)*1024} {FL}")
        hid.append(vm.op(f"buffer_load_dwordx4 v[{r+4}:{r+7}], v2, s[24:27], s45 offen offset:{(s%4)*1024} {FL}"))
    for s in range(int(os.environ.get("P5D", "8"))):
        hload()
    for s in range(28):
        vm.wait(hid[s])
        r = RB + 8 * (s % DEPTH)
        A0, A1 = f"a[{8*s}:{8*s+3}]", f"a[{8*s+4}:{8*s+7}]"
        B0, B1 = f"v[{r}:{r+3}]", f"v[{r+4}:{r+7}]"
        for t, (a, b) in enumerate(((A0, B0), (A0, B1), (A1, B0), (A1, B1))):
            acc = ACC5 + 16 * t
            c = "0" if s == 0 else f"v[{acc}:{acc+15}]"
            k(f"v_mfma_f32_32x32x16_bf16 v[{acc}:{acc+15}], {a}, {b}, {c}")
            if t == 0:
                hload()
    XU5, TMP5 = 72, 88
    stamp(k, 17)
    for t in (1, 2, 3):
        k(f"""
        s_xor_b32 s56, s3, {t}
        s_mul_i32 s56, s56, 12288
        s_add_u32 s56, s56, {(t-1)*4096}
        v_add_u32 v{3+t}, s56, v2
        """)
    for t in (1, 2, 3):
        for q in range(4):
            k(f"ds_write_b128 v{3+t}, v[{ACC5+16*t+4*q}:{ACC5+16*t+4*q+3}] offset:{q*1024}")
    for i in range(8):
        k(f"v_lshlrev_b32 v{XU5+2*i}, 16, v{X5+i}")
        k(f"v_and_b32 v{XU5+2*i+1}, 0xffff0000, v{X5+i}")
    k(f"""
    s_mul_i32 s56, s3, 12288
    v_add_u32 v3, s56, v2
    s_waitcnt lgkmcnt(0)
    s_barrier
    """)
    for i in range(12):
        k(f"ds_read_b128 v[{TMP5+4*i}:{TMP5+4*i+3}], v3 offset:{i*1024}")
    for sl in range(3):
        k(f"s_waitcnt lgkmcnt({8-4*sl})")
        for i in range(8):
            k(f"v_pk_add_f32 v[{ACC5+2*i}:{ACC5+2*i+1}], v[{ACC5+2*i}:{ACC5+2*i+1}], v[{TMP5+16*sl+2*i}:{TMP5+16*sl+2*i+1}]")
    stamp(k, 18)
    for i in range(8):
        k(f"v_pk_fma_f32 v[{ACC5+2*i}:{ACC5+2*i+1}], v[{G5+2*i}:{G5+2*i+1}], v[{ACC5+2*i}:{ACC5+2*i+1}], v[{XU5+2*i}:{XU5+2*i+1}]")
    for i in range(8):
        k(f"v_cvt_pk_bf16_f32 v{TMP5+i}, v{ACC5+2*i}, v{ACC5+2*i+1}")
    k("s_nop 0")
    for p in range(2):
        t = TMP5 + 4 * p
        k(f"v_permlane32_swap_b32 v{t}, v{t+2}")
        k(f"v_permlane32_swap_b32 v{t+1}, v{t+3}")
        k(f"buffer_store_dwordx4 v[{t}:{t+3}], v253, s[32:35], s47 offen offset:{32*p}")
    endpgm(k)
    k.label("L_att_fallback")
    k(f"""
    s_mov_b32 s42, 0
    s_mov_b32 s43, s47
    v_mov_b32 v6, 0xff800000
    v_mov_b32 v7, 0xff800000
    """)
    k.label("L_att_maxloop")
    k(f"""
    buffer_load_dwordx4 v[{KF}:{KF+3}], v2, s[24:27], s43 offen {FL}
    s_add_u32 s43, s43, 2048
    s_waitcnt vmcnt(0)
    v_mfma_f32_32x32x16_bf16 v[{S}:{S+15}], v[{KF}:{KF+3}], v[{Q}:{Q+3}], 0
    v_mfma_f32_32x32x16_bf16 v[{S+16}:{S+31}], v[{KF}:{KF+3}], v[{Q+4}:{Q+7}], 0
    s_nop 10
    """)
    att_max16(k, 6, S, False)
    att_max16(k, 7, S + 16, False)
    k(f"""
    s_add_u32 s42, s42, 1
    s_cmp_lt_u32 s42, 64
    s_cbranch_scc1 L_att_maxloop
    s_nop 0
    v_permlane32_swap_b32 v6, v7
    v_max_f32 v6, v6, v7
    v_mov_b32 v7, v6
    s_nop 1
    v_permlane32_swap_b32 v6, v7
    v_sub_f32 v6, 0, v6
    v_sub_f32 v7, 0, v7
    """)
    for i in range(16):
        k(f"v_mov_b32 v{C+i}, v6")
        k(f"v_mov_b32 v{C+16+i}, v7")
        k(f"v_mov_b32 v{O+i}, 0")
        k(f"v_mov_b32 v{O+16+i}, 0")
    k("s_mov_b32 s42, 0")
    k("s_mov_b32 s43, s47")
    k.label("L_att_redo")
    k(f"""
    buffer_load_dwordx4 v[{KF}:{KF+3}], v2, s[24:27], s43 offen {FL}
    s_mov_b64 exec, s[48:49]
    buffer_load_dwordx4 v[{VF}:{VF+3}], v3, s[24:27], s43 offen offset:1024 {FL}
    buffer_load_dwordx4 v[{VF+4}:{VF+7}], v3, s[24:27], s43 offen offset:1536 {FL}
    s_mov_b64 exec, -1
    s_add_u32 s43, s43, 2048
    s_waitcnt vmcnt(0)
    v_mfma_f32_32x32x16_bf16 v[{S}:{S+15}], v[{KF}:{KF+3}], v[{Q}:{Q+3}], v[{C}:{C+15}]
    v_mfma_f32_32x32x16_bf16 v[{S+16}:{S+31}], v[{KF}:{KF+3}], v[{Q+4}:{Q+7}], v[{C+16}:{C+31}]
    s_nop 10
    """)
    for b in range(2):
        for i in range(16):
            k(f"v_exp_f32 v{S+16*b+i}, v{S+16*b+i}")
        k("s_nop 0")
        for j in range(8):
            k(f"v_cvt_pk_bf16_f32 v{P+j}, v{S+16*b+2*j}, v{S+16*b+2*j+1}")
        k("s_nop 1")
        for h in range(2):
            k(f"v_mfma_f32_32x32x16_bf16 v[{O+16*b}:{O+16*b+15}], v[{VF+4*h}:{VF+4*h+3}], v[{P+4*h}:{P+4*h+3}], v[{O+16*b}:{O+16*b+15}]")
    k(f"""
    s_add_u32 s42, s42, 1
    s_cmp_lt_u32 s42, 64
    s_cbranch_scc1 L_att_redo
    s_nop 10
    s_branch L_att_fin
    """)
    k.label("L_xid_retry")
    k(f"""
    s_mov_b32 s39, 0x400000
    s_mov_b32 s53, {OFF_XID}
    """)
    k.label("L_xid_spin")
    k(f"""
    buffer_load_dwordx4 v[150:153], v2, s[24:27], s53 offen {FL}
    buffer_load_dwordx4 v[154:157], v2, s[24:27], s53 offen offset:32 {FL}
    s_sub_u32 s39, s39, 1
    s_waitcnt vmcnt(0)
    v_min_u32 v158, v150, v151
    v_min_u32 v159, v152, v153
    v_min_u32 v158, v158, v159
    v_xor_b32 v154, v154, v150
    v_xor_b32 v155, v155, v151
    v_cmp_eq_u32 vcc, 0, v158
    v_xor_b32 v156, v156, v152
    v_xor_b32 v157, v157, v153
    s_cbranch_scc1 L_xid_ok
    s_cbranch_vccnz L_xid_spin
    s_branch L_xid_ok
    """)
    for blk in OOL:
        k.lines += blk
    k.label(f"L_end_{k.name}")
    k("s_endpgm")
    k(".fill (65536 + L_pc_here - .) / 4 + 64, 4, 0xbf810000")
    return k, (256, 256, 163840)


def build(path=OUT):
    ks = [G.k0(), mega()]
    errs = []
    for k, _ in ks:
        errs += k.check()
    for e in errs:
        print(e)
    ref = open(OUT + ".ref").read().split("\n")
    hdr = [l for l in ref if l.startswith(";") and "@launch" not in l and "Override" not in l and "grid=ceil" not in l]
    out = "\n".join(hdr) + "\n"
    for k, (g, b, lds) in ks:
        out += f"; @launch kernel={k.name} grid=({g},1,1) block=({b},1,1) lds={lds}\n"
    out += '.amdgcn_target "amdgcn-amd-amdhsa--gfx950"\n'
    codes, kds = zip(*[k.text() for k, _ in ks])
    out += "".join(codes)
    out += '.section .rodata,"a"\n' + "".join(kds)
    open(path, "w").write(out)
    print("wrote", path, len(out), "bytes;", len(errs), "checker errors")
    return len(errs)


if __name__ == "__main__":
    sys.exit(1 if build(sys.argv[1] if len(sys.argv) > 1 else OUT) else 0)
```

```python
import sys, os
sys.path.insert(0, "gen")
from asmlib import Kern
import gen as G
from gen import (MB, OFF_MOD, OFF_XHAT, OFF_WQKV, OFF_Q, OFF_KV, OFF_O, OFF_WO, OFF_X2, OFF_X2S, OFF_ST2, OFF_W1,
                 OFF_H, OFF_W2, QSCALE, P_X, P_WQKV, P_WO, P_W1, P_W2, P_C, P_WMOD, P_OUT, P_WS, srd, stamp, endpgm,
                 prologue, prologue_wait, epilogue, bf16_round, ln_stats_finish, role_ln, role_relayout, ATT, att_unit,
                 att_max16, NAME, OUT, DIAG)

OFF_MODB = 0x3000
OFF_FLAG = G.OFF_FLAG
FL = "sc1"
DF = "@DF@"
S_FAST = 98
OFF_XID = G.OFF_XID
OOL = []


def dual_begin(k):
    k._dual = len(k.lines)


def dual_end(k, tag):
    body = k.lines[k._dual:]
    del k.lines[k._dual:]
    import re
    labs = [l[:-1] for l in body if l.endswith(":")]
    def variant(fl, suffix):
        out = []
        for l in body:
            l = l.replace(DF, fl).rstrip()
            for lab in labs:
                l = re.sub(rf"\b{lab}\b", lab + suffix, l)
            out.append(l)
        return out
    k(f"s_cmp_eq_u32 s{S_FAST}, 0")
    k(f"s_cbranch_scc1 L_slow_{tag}")
    k.lines += variant("", "_f")
    k.label(f"L_join_{tag}")
    OOL.append([f"L_slow_{tag}:"] + variant("sc1", "_s") + [f"s_branch L_join_{tag}"])


class VM:
    def __init__(self, k):
        self.k = k; self.n = 0
    def op(self, text=None):
        if text:
            self.k(text)
        self.n += 1
        return self.n
    def tick(self):
        self.n += 1
        return self.n
    def wait_str(self, idx):
        c = self.n - idx
        return f"s_waitcnt vmcnt({min(c, 63)})"
    def wait(self, idx):
        self.k(self.wait_str(idx))


def signal(k, edge, s_group, s_member, gsize, nafter=0, fl=FL):
    lab = f"L_sig{edge}"
    k(f"""
    s_mul_i32 s38, s{s_group}, {gsize}
    s_add_u32 s38, s38, s{s_member}
    s_lshl_b32 s38, s38, 8
    s_add_u32 s38, s38, {OFF_FLAG + edge * 65536}
    v_mov_b32 v6, 0
    v_mov_b32 v7, 1
    s_waitcnt vmcnt({nafter}) lgkmcnt(0)
    s_barrier
    s_cmp_lg_u32 s3, 0
    s_cbranch_scc1 {lab}
    s_mov_b64 exec, 1
    buffer_store_dword v7, v6, s[24:27], s38 offen {fl}
    s_mov_b64 exec, -1
    """)
    k.label(lab)


def wait_edge(k, edge, s_group, gsize):
    lab = f"L_wait{edge}"
    k(f"""
    s_cmp_lg_u32 s3, 0
    s_cbranch_scc1 {lab}
    s_mul_i32 s38, s{s_group}, {gsize*256}
    s_add_u32 s38, s38, {OFF_FLAG + edge * 65536}
    v_lshlrev_b32 v6, 8, v1
    s_mov_b32 exec_lo, {hex((1 << gsize) - 1)}
    s_mov_b32 exec_hi, 0
    s_mov_b32 s39, 0x400000
    """)
    k.label(f"L_poll{edge}")
    k(f"""
    buffer_load_dword v7, v6, s[24:27], s38 offen {FL}
    s_sub_u32 s39, s39, 1
    s_cbranch_scc1 L_bail{edge}
    s_waitcnt vmcnt(0)
    v_cmp_eq_u32 vcc, 0, v7
    s_cbranch_vccnz L_poll{edge}
    """)
    k.label(f"L_bail{edge}")
    k("s_waitcnt vmcnt(0)")
    k("s_mov_b64 exec, -1")
    k.label(lab)
    k("s_barrier")


def wo_reg(s):
    return f"a[{224+4*s}:{227+4*s}]" if s < 8 else f"v[{160+4*(s-8)}:{163+4*(s-8)}]"


def w1_lds(f):
    if f < 28:
        return 131072 + f * 1024
    if f < 112:
        return (f - 28) * 1024
    return LDS_UT + (f - 112) * 1024


LDS_MODB = 156 * 1024
LDS_VEC = 158 * 1024
LDS_OST = 84 * 1024
LDS_UT = 116 * 1024
LDS_R = 125 * 1024


def lds_rd(dst, addr):
    base = (2, 4, 5)[addr >> 16]
    return f"ds_read_b128 {dst}, v{base} offset:{addr & 0xffff}"


def mega():
    k = Kern("k1_mega_kernel", nvgpr=256, nagpr=256)
    prologue(k, 256)
    vm = VM(k)
    if int(os.environ.get("MAPX", "0")):
        k("s_lshr_b32 s36, s2, 5")
        k("s_and_b32 s37, s2, 31")
    else:
        k("s_and_b32 s36, s2, 7")
        k("s_lshr_b32 s37, s2, 3")
    k("v_lshlrev_b32 v2, 4, v1")
    VA, VB, ROWS, TMP, ACC, FR = 8, 16, 24, 88, 136, 104
    k(f"""
    s_lshr_b32 s42, s36, 1
    s_lshl_b32 s42, s42, 3
    s_and_b32 s43, s37, 7
    s_add_u32 s42, s42, s43        ; tb1
    s_and_b32 s40, s36, 1
    s_lshl_b32 s40, s40, 2
    s_lshr_b32 s44, s37, 3
    s_add_u32 s40, s40, s44        ; cb1
    s_lshl_b32 s43, s40, 2
    s_add_u32 s43, s43, s3         ; head
    v_lshlrev_b32 v3, 5, v1
    s_lshl_b32 s44, s42, 16
    s_lshl_b32 s45, s3, 14
    s_add_u32 s44, s44, s45
    s_add_u32 s44, s44, {OFF_XHAT}
    s_mul_i32 s46, s43, {48*1024}
    s_add_u32 s46, s46, {OFF_WQKV}
    """)
    prologue_wait(k)
    srd(k, 28, P_X, 2048 * 1024)
    srd(k, 32, P_OUT, 2048 * 1024)
    vm.op(f"buffer_load_dwordx4 v[{VB}:{VB+3}], v3, s[24:27], 0 offen offset:{OFF_MOD}")
    vm.op(f"buffer_load_dwordx4 v[{VB+4}:{VB+7}], v3, s[24:27], 0 offen offset:{OFF_MOD+16}")
    vm.op(f"buffer_load_dwordx4 v[{VA}:{VA+3}], v3, s[24:27], 0 offen offset:{OFF_MOD+2048}")
    vm.op(f"buffer_load_dwordx4 v[{VA+4}:{VA+7}], v3, s[24:27], 0 offen offset:{OFF_MOD+2064}")
    rowid = []
    for r in range(16):
        if r and r % 4 == 0:
            k("s_add_u32 s44, s44, 4096")
        rowid.append(vm.op(f"buffer_load_dwordx4 v[{ROWS+4*r}:{ROWS+4*r+3}], v2, s[24:27], s44 offen offset:{(r%4)*1024}"))
    wid = []
    def wload():
        i = len(wid)
        if i >= 48:
            return
        if i and i % 4 == 0:
            k("s_add_u32 s46, s46, 4096")
        wid.append(vm.op(f"buffer_load_dwordx4 a[{4*i}:{4*i+3}], v2, s[24:27], s46 offen offset:{(i%4)*1024}"))
    k(f"""
    v_and_b32 v4, 7, v1
    v_lshlrev_b32 v4, 4, v4
    v_lshl_add_u32 v4, v1, 8, v4
    v_add_u32 v4, s45, v4
    v_and_b32 v5, 15, v1
    v_lshrrev_b32 v6, 4, v1
    v_xor_b32 v7, v5, v6
    v_lshlrev_b32 v7, 4, v7
    v_lshl_add_u32 v6, v6, 8, v7
    v_xor_b32 v7, 64, v6
    """)
    stamp(k, 1)
    for r in range(16):
        vm.wait(rowid[r])
        b = ROWS + 4 * r
        t = TMP + 8 * (r & 1)
        for i in range(4):
            k(f"v_lshlrev_b32 v{t+2*i}, 16, v{b+i}")
            k(f"v_and_b32 v{t+2*i+1}, 0xffff0000, v{b+i}")
        wload()
        for i in range(4):
            k(f"v_pk_fma_f32 v[{t+2*i}:{t+2*i+1}], v[{t+2*i}:{t+2*i+1}], v[{VA+2*i}:{VA+2*i+1}], v[{VB+2*i}:{VB+2*i+1}]")
        for i in range(4):
            k(f"v_cvt_pk_bf16_f32 v{b+i}, v{t+2*i}, v{t+2*i+1}")
        k(f"v_xor_b32 v5, {r<<4}, v4")
        k(f"ds_write_b128 v5, v[{b}:{b+3}]")
        if r >= 8:
            wload()
    if int(os.environ.get("CPF", "1")):
        k(f"""
        s_getpc_b64 s[38:39]
        """)
        k.label("L_pc_here")
        k(f"""
        s_lshl_b32 s41, s37, 2
        s_add_u32 s41, s41, s3
        s_and_b32 s41, s41, 63
        s_lshl_b32 s41, s41, 10
        s_add_u32 s38, s38, s41
        s_addc_u32 s39, s39, 0
        """)
        vm.op(f"global_load_dwordx4 v[{TMP}:{TMP+3}], v2, s[38:39]")
    k("s_waitcnt lgkmcnt(0)")
    k("s_barrier")
    stamp(k, 2)
    def aread(s):
        base = 6 + (s & 1)
        f = FR + 16 * (s & 1)
        return [f"ds_read_b128 v[{f+4*b}:{f+4*b+3}], v{base} offset:{b*16384+s*1024}" for b in range(4)]
    for x in aread(0): k(x)
    for s in range(16):
        nxt = aread(s + 1) if s < 15 else []
        k(vm.wait_str(wid[3 * s + 2]) + " lgkmcnt(0)")
        f = FR + 16 * (s & 1)
        n = 0
        for b in range(4):
            for which in range(3):
                acc = ACC + 4 * (which * 4 + b)
                w = f"a[{12*s+4*which}:{12*s+4*which+3}]"
                h = f"v[{f+4*b}:{f+4*b+3}]"
                c = "0" if s == 0 else f"v[{acc}:{acc+3}]"
                a_, b_ = (w, h) if which < 2 else (h, w)
                k(f"v_mfma_f32_16x16x32_bf16 v[{acc}:{acc+3}], {a_}, {b_}, {c}")
                if nxt:
                    k(nxt.pop(0))
                elif n in (5, 7, 9):
                    wload()
                n += 1
    stamp(k, 3)
    k(f"""
    s_lshl_b32 s44, s43, 16
    s_lshl_b32 s45, s42, 11
    s_add_u32 s44, s44, s45
    s_add_u32 s44, s44, {OFF_Q}
    s_lshl_b32 s46, s43, 17
    s_lshl_b32 s45, s42, 12
    s_add_u32 s46, s46, s45
    s_add_u32 s46, s46, {OFF_KV}
    v_mov_b32 v10, {QSCALE:#x}
    v_mov_b32 v11, {QSCALE:#x}
    """)
    for which in (1, 2, 0):
        for bp in range(2):
            t = 12 + 4 * (which * 2 + bp)
            for b2 in range(2):
                acc = ACC + 4 * (which * 4 + bp * 2 + b2)
                if which == 0:
                    k(f"v_pk_mul_f32 v[{acc}:{acc+1}], v[10:11], v[{acc}:{acc+1}]")
                    k(f"v_pk_mul_f32 v[{acc+2}:{acc+3}], v[10:11], v[{acc+2}:{acc+3}]")
                k(f"v_cvt_pk_bf16_f32 v{t+2*b2}, v{acc}, v{acc+1}")
                k(f"v_cvt_pk_bf16_f32 v{t+2*b2+1}, v{acc+2}, v{acc+3}")
        op = "v_permlane32_swap_b32" if which == 2 else "v_permlane16_swap_b32"
        for bp in range(2):
            t = 12 + 4 * (which * 2 + bp)
            if bp == 1:
                k("s_nop 0")
            k(f"{op} v{t}, v{t+2}")
            k(f"{op} v{t+1}, v{t+3}")
            if which == 0:
                vm.op(f"buffer_store_dwordx4 v[{t}:{t+3}], v2, s[24:27], s44 offen offset:{bp*1024} {FL}")
            else:
                vm.op(f"buffer_store_dwordx4 v[{t}:{t+3}], v2, s[24:27], s46 offen offset:{bp*2048+(which-1)*1024} {FL}")
    signal(k, 0, 40, 42, 32)
    k(f"""
    s_cmp_lg_u32 s3, 1
    s_cbranch_scc1 L_noxid
    s_getreg_b32 s38, hwreg(HW_REG_XCC_ID, 0, 4)
    s_add_u32 s38, s38, 1
    s_lshl_b32 s39, s37, 3
    s_add_u32 s39, s39, s36
    s_lshl_b32 s39, s39, 2
    s_add_u32 s39, s39, {OFF_XID}
    v_mov_b32 v7, s38
    s_mov_b64 exec, 1
    buffer_store_dword v7, v6, s[24:27], s39 offen {FL}
    s_mov_b64 exec, -1
    """)
    k.label("L_noxid")
    stamp(k, 4)
    Q, KF, VF, S, P, O, C = (ATT[x] for x in ("Q", "KF", "VF", "S", "P", "O", "C"))
    k(f"""
    s_mov_b32 s40, s37             ; head2
    s_mov_b32 s54, s36             ; qb256
    s_lshl_b32 s41, s54, 2
    s_add_u32 s41, s41, s3         ; qblock64
    s_lshl_b32 s42, s40, 16
    s_lshl_b32 s43, s41, 11
    s_add_u32 s42, s42, s43
    s_add_u32 s42, s42, {OFF_Q}
    s_lshl_b32 s44, s40, 17
    s_lshl_b32 s45, s3, 10
    s_add_u32 s47, s44, {OFF_KV}
    s_add_u32 s44, s47, s45
    s_lshl_b32 s46, s41, 16
    s_lshl_b32 s43, s40, 10
    s_add_u32 s46, s46, s43
    s_add_u32 s46, s46, {OFF_O}
    s_mov_b32 m0, s45
    v_and_b32 v3, 15, v1
    v_lshlrev_b32 v3, 4, v3
    v_lshrrev_b32 v4, 5, v1
    v_lshl_add_u32 v3, v4, 8, v3
    v_add_u32 v4, 0x10000, v2
    v_add_u32 v5, 0x10000, v3
    s_mov_b32 s48, 0x0000ffff
    s_mov_b32 s49, 0x0000ffff
    v_and_b32 v8, 27, v1
    v_cmp_eq_u32 vcc, 16, v8
    v_mov_b32 v9, 0x3f803f80
    s_nop 0
    v_cndmask_b32 v9, 0, v9, vcc
    """)
    for i in range(16):
        k(f"v_mov_b32 v{VF+i}, v9")
    k(f"""
    s_lshr_b32 s50, s37, 3
    s_lshl_b32 s50, s50, 2
    s_add_u32 s50, s50, s3          ; P3 ncol32
    s_lshl_b32 s51, s50, 15
    s_add_u32 s51, s51, {OFF_WO}
    s_lshr_b32 s52, s37, 2
    s_lshl_b32 s52, s52, 1
    s_lshr_b32 s53, s3, 1
    s_add_u32 s52, s52, s53
    s_xor_b32 s53, s52, 1
    s_mul_i32 s55, s52, {112*1024}
    s_mul_i32 s56, s53, {112*1024}
    s_mul_i32 s53, s3, {28*1024}
    s_add_u32 s53, s53, {OFF_W2}
    s_add_u32 s55, s55, s53
    s_add_u32 s56, s56, s53
    s_lshr_b32 s57, s37, 2
    s_lshl_b32 s57, s57, 1
    s_and_b32 s53, s37, 1
    s_add_u32 s57, s57, s53         ; cb4
    s_mul_i32 s58, s57, {112*1024}
    s_add_u32 s58, s58, s45
    s_add_u32 s58, s58, {OFF_W1}
    v_lshrrev_b32 v8, 5, v1
    v_and_b32 v9, 31, v1
    v_lshlrev_b32 v148, 10, v9
    v_lshl_add_u32 v148, v8, 3, v148
    v_lshlrev_b32 v149, 4, v9
    v_lshl_add_u32 v149, v8, 12, v149
    s_lshl_b32 s59, s36, 3
    s_and_b32 s53, s37, 7
    s_add_u32 s59, s59, s53
    s_lshl_b32 s59, s59, 15
    s_lshl_b32 s53, s50, 6
    s_add_u32 s59, s59, s53
    s_lshr_b32 s53, s37, 2
    """)
    wait_edge(k, 0, 53, 32)
    stamp(k, 5)
    vm.n = 0
    rid = []
    def dma():
        i = len(rid)
        out = []
        if i:
            out += ["s_add_u32 m0, m0, 4096", "s_add_u32 s44, s44, 4096"]
        out += [f"buffer_load_dwordx4 v2, s[24:27], s44 offen {FL} lds"]
        rid.append(vm.tick())
        return out
    for x in dma(): k(x)
    vm.op(f"buffer_load_dwordx4 v[{Q}:{Q+3}], v2, s[24:27], s42 offen {FL}")
    qid = vm.op(f"buffer_load_dwordx4 v[{Q+4}:{Q+7}], v2, s[24:27], s42 offen offset:1024 {FL}")
    for r in range(3):
        for x in dma(): k(x)
    vm.wait(qid)
    k("s_barrier")
    def kread(t):
        off = t * 2048
        return f"ds_read_b128 v[{KF}:{KF+3}], v{2 if off < 65536 else 4} offset:{off & 0xffff}"
    def vread(t):
        off = t * 2048 + 1024
        b = VF + 8 * (t & 1)
        a = 3 if off < 65536 else 5
        return ["s_mov_b64 exec, s[48:49]",
                f"ds_read_b128 v[{b}:{b+3}], v{a} offset:{off & 0xffff}",
                f"ds_read_b128 v[{b+4}:{b+7}], v{a} offset:{(off+512) & 0xffff}",
                "s_mov_b64 exec, -1"]
    k(kread(0))
    for x in vread(0): k(x)
    k(f"""
    s_waitcnt lgkmcnt(2)
    v_mfma_f32_32x32x16_bf16 v[{S}:{S+15}], v[{KF}:{KF+3}], v[{Q}:{Q+3}], 0
    v_mfma_f32_32x32x16_bf16 v[{S+16}:{S+31}], v[{KF}:{KF+3}], v[{Q+4}:{Q+7}], 0
    s_nop 10
    """)
    att_max16(k, 6, S, True)
    att_max16(k, 7, S + 16, True)
    k("""
    s_nop 1
    v_permlane32_swap_b32 v6, v7
    v_max_f32 v6, v6, v7
    v_mov_b32 v7, v6
    s_nop 1
    v_permlane32_swap_b32 v6, v7
    v_sub_f32 v6, 0, v6
    v_sub_f32 v7, 0, v7
    """)
    for i in range(16):
        k(f"v_mov_b32 v{C+i}, v6")
    k("s_nop 0")
    k(f"v_mov_b32 v{C+16}, v7")
    k(f"v_mfma_f32_32x32x16_bf16 v[{S}:{S+15}], v[{KF}:{KF+3}], v[{Q}:{Q+3}], v[{C}:{C+15}]")
    for i in range(1, 16):
        k(f"v_mov_b32 v{C+16+i}, v7")
    stamp(k, 6)
    jobs = []
    for s in range(32):
        pre = ["s_add_u32 s51, s51, 4096"] if (s and s % 4 == 0) else []
        jobs.append(pre + [f"buffer_load_dwordx4 {wo_reg(s)}, v2, s[24:27], s51 offen offset:{(s%4)*1024}"])
    for s in range(28):
        for i, sr in enumerate((55, 56)):
            pre = [f"s_add_u32 s{sr}, s{sr}, 4096"] if (s and s % 4 == 0) else []
            jobs.append(pre + [f"buffer_load_dwordx4 a[{8*s+4*i}:{8*s+4*i+3}], v2, s[24:27], s{sr} offen offset:{(s%4)*1024}"])
    w1jobs = []
    for i in range(28):
        pre = [f"s_add_u32 m0, s45, {w1_lds(4*i)}"] + (["s_add_u32 s58, s58, 4096"] if i else ["s_nop 0"])
        w1jobs.append(pre + ["buffer_load_dwordx4 v2, s[24:27], s58 offen lds"])
    modb = ["s_and_b32 s53, s45, 1024", f"s_add_u32 m0, s53, {LDS_MODB}", f"s_add_u32 s53, s53, {OFF_MODB}",
            "buffer_load_dwordx4 v2, s[24:27], s53 offen lds"]
    vec1 = [f"s_mov_b32 m0, {LDS_VEC}", "s_lshr_b32 s53, s37, 3", "s_lshl_b32 s53, s53, 9", f"s_add_u32 s53, s53, {OFF_MOD + 2*2048}",
            "buffer_load_dwordx4 v149, s[24:27], s53 offen lds"]
    vec2 = [f"s_mov_b32 m0, {LDS_VEC + 1024}", "s_lshr_b32 s53, s37, 4", "s_lshl_b32 s53, s53, 10", f"s_add_u32 s53, s53, {OFF_MOD + 5*2048}",
            "buffer_load_dwordx4 v2, s[24:27], s53 offen lds"]
    xj = [[f"buffer_load_dwordx2 v[{140+2*j}:{141+2*j}], v148, s[28:31], s59 offen offset:{16*j}"] for j in range(4)]
    jobs = w1jobs[:7] + [modb, vec1, vec2] + jobs
    late2 = xj
    late = w1jobs[7:]
    for u in range(128):
        t = u >> 1
        side = {}
        def add(slot, xs):
            side.setdefault(slot, []).extend(xs)
        if len(rid) < 32:
            d = dma()
            add(1, d[:2]); add(2, d[2:])
        elif jobs:
            d = jobs.pop(0); vm.tick()
            add(1, d[:-1]); add(2, d[-1:])
        if u % 2 == 0 and t < 63:
            pre = []
            if u == 2:
                pre = [vm.wait_str(rid[3]), "s_barrier"]
            elif u == 14:
                pre = [vm.wait_str(rid[11]), "s_barrier"]
            elif u == 46:
                pre = [vm.wait_str(rid[31]), "s_barrier"]
            elif u == 82:
                pre = ["s_barrier"]
            add(14, pre + [kread(t + 1)])
            add(15, vread(t + 1))
        if u % 2 == 1 or u == 0:
            add(-14, ["s_waitcnt lgkmcnt(0)"])
        if u >= 83 and late and u % 2 == 1:
            d = late.pop(0); vm.tick()
            add(17, d[:-1]); add(18, d[-1:])
        if u >= 60 and late2 and u % 2 == 1:
            d = late2.pop(0); vm.tick()
            add(18, d)
        if u == 70:
            vm.tick(); xidid = vm.tick()
            add(17, [f"s_mov_b32 s53, {OFF_XID}", f"buffer_load_dwordx4 v[150:153], v2, s[24:27], s53 offen {FL}"])
            add(24, [f"buffer_load_dwordx4 v[154:157], v2, s[24:27], s53 offen offset:32 {FL}"])
        if u == 79:
            add(17, [vm.wait_str(xidid), "v_min_u32 v158, v150, v151", "v_min_u32 v159, v152, v153"])
            add(18, ["v_min_u32 v158, v158, v159", "v_xor_b32 v154, v154, v150", "v_xor_b32 v155, v155, v151"])
            add(20, ["v_cmp_eq_u32 vcc, 0, v158", "v_xor_b32 v156, v156, v152", "v_xor_b32 v157, v157, v153"])
            add(22, ["s_cbranch_vccnz L_xid_retry", "L_xid_ok:", "v_or3_b32 v154, v154, v155, v156", "v_or_b32 v154, v154, v157"])
            add(24, ["v_cmp_ne_u32 vcc, 0, v154"])
            add(27, ["s_and_b32 s53, vcc_hi, 0x3fffffff", "s_or_b32 s53, s53, vcc_lo", "s_cmp_eq_u32 s53, 0", f"s_cselect_b32 s{S_FAST}, 1, 0"])
        att_unit(k, u, side, last=(u == 127))
    assert not jobs and not late, (len(jobs), len(late))
    k(f"""
    s_nop 0
    v_cvt_pk_bf16_f32 v{P+7}, v{S+30}, v{S+31}
    s_nop 1
    v_mfma_f32_32x32x16_bf16 v[{O+16}:{O+31}], v[{VF+12}:{VF+15}], v[{P+4}:{P+7}], v[{O+16}:{O+31}]
    s_mov_b32 s53, 0x53800000
    v_cmp_nge_f32 vcc, s53, v{O+8}
    s_nop 9
    v_cmp_nge_f32 s[42:43], s53, v{O+24}
    s_nop 3
    s_or_b64 vcc, vcc, s[42:43]
    s_cbranch_scc0 L_att_fin
    s_branch L_att_fallback
    """)
    k.label("L_att_fin")
    stamp(k, 7)
    XR, XU, GA, A2 = 140, 44, 108, 124
    k(f"""
    v_rcp_f32 v6, v{O+8}
    v_rcp_f32 v7, v{O+24}
    s_lshl_b32 s42, s36, 3
    s_and_b32 s43, s37, 7
    s_add_u32 s42, s42, s43         ; t3 (tok32)
    v_lshrrev_b32 v8, 5, v1         ; h
    v_and_b32 v9, 31, v1            ; tok
    """)
    dual_begin(k)
    for b_ in range(2):
        for i in range(8):
            k(f"v_mul_f32 v{O+16*b_+i}, v{6+b_}, v{O+16*b_+i}")
        for i in range(4):
            k(f"v_cvt_pk_bf16_f32 v{P+4*b_+i}, v{O+16*b_+2*i}, v{O+16*b_+2*i+1}")
        if b_:
            k("s_add_u32 s46, s46, 32768")
        k(f"buffer_store_dwordx4 v[{P+4*b_}:{P+4*b_+3}], v2, s[24:27], s46 offen {DF}")
    k(f"""
    v_add_u32 v5, 0x20000, v2
    v_lshrrev_b32 v12, 4, v9
    v_lshlrev_b32 v12, 14, v12
    v_and_b32 v13, 15, v9
    v_lshl_add_u32 v12, v13, 4, v12
    v_lshl_add_u32 v12, v8, 8, v12
    v_lshlrev_b32 v13, 3, v9
    s_lshl_b32 s43, s3, 10
    s_lshl_b32 s44, s42, 15
    s_lshl_b32 s45, s50, 10
    s_add_u32 s44, s44, s45
    s_add_u32 s45, s44, {OFF_X2S}
    s_add_u32 s44, s44, {OFF_X2}
    s_lshl_b32 s46, s42, 12
    s_lshl_b32 s47, s50, 8
    s_add_u32 s46, s46, s47
    s_add_u32 s46, s46, {OFF_ST2}
    s_lshl_b32 s47, s42, 15
    s_add_u32 s47, s47, s43
    s_add_u32 s47, s47, {OFF_O}
    s_add_u32 m0, s43, {LDS_OST}
    """)
    signal(k, 1, 54, 40, 32, fl=DF)
    dual_end(k, 'e1')
    stamp(k, 19)
    k(f"""
    s_lshl_b32 s38, s3, 7
    s_add_u32 s38, s38, {LDS_VEC}
    v_lshlrev_b32 v10, 4, v8
    v_add_u32 v10, s38, v10
    """)
    for j in range(4):
        k(f"ds_read_b128 v[{GA+4*j}:{GA+4*j+3}], v10 offset:{32*j}")
        k(f"ds_read_b128 v[{A2+4*j}:{A2+4*j+3}], v10 offset:{512+32*j}")
    for i in range(8):
        k(f"v_lshlrev_b32 v{XU+2*i}, 16, v{XR+i}")
        k(f"v_and_b32 v{XU+2*i+1}, 0xffff0000, v{XR+i}")
    k("s_cmp_eq_u32 s3, 0")
    k("s_cbranch_scc1 L_ut_done")
    MA_, WU, UA = 60, 68, 92
    k(f"""
    s_sub_u32 s38, s43, 1024
    v_add_u32 v14, s38, v2
    v_add_u32 v15, s38, v4
    v_add_u32 v16, s38, v5
    v_and_b32 v17, 15, v1
    v_lshrrev_b32 v18, 4, v1
    v_lshlrev_b32 v17, 10, v17
    v_lshl_add_u32 v17, v18, 4, v17
    v_add_u32 v17, {LDS_MODB}, v17
    s_mov_b32 s38, 0x00030003
    s_mov_b32 s39, 0x00030003
    """)
    for i in range(8):
        k(f"v_mov_b32 v{MA_+i}, 0")
    def uread(s):
        r = WU + 12 * (s & 1)
        k("s_mov_b64 exec, s[38:39]")
        k(f"ds_read_b128 v[{MA_+4*(s&1)}:{MA_+4*(s&1)+3}], v17 offset:{64*s}")
        k("s_mov_b64 exec, -1")
        for h in range(3):
            addr = w1_lds(s * 7) + 3 * h * 1024
            k(f"ds_read_b128 v[{r+4*h}:{r+4*h+3}], v{14 + (addr >> 16)} offset:{addr & 0xffff}")
    uread(0)
    for s in range(16):
        if s < 15:
            uread(s + 1)
            k("s_waitcnt lgkmcnt(4)")
        else:
            k("s_waitcnt lgkmcnt(0)")
        r = WU + 12 * (s & 1)
        for h in range(3):
            u_ = UA + 4 * h
            c = "0" if s == 0 else f"v[{u_}:{u_+3}]"
            k(f"v_mfma_f32_16x16x32_bf16 v[{u_}:{u_+3}], v[{MA_+4*(s&1)}:{MA_+4*(s&1)+3}], v[{r+4*h}:{r+4*h+3}], {c}")
    k("s_nop 5")
    for h in range(3):
        u_ = UA + 4 * h
        d = WU + 4 * h
        for i in range(2):
            bf16_round(k, 18 + i, u_ + i)
        for i in range(2):
            k(f"v_sub_f32 v{20+i}, v{u_+i}, v{18+i}")
        for i in range(2):
            k(f"v_cvt_pk_bf16_f32 v{d+i}, v{18+i}, v{20+i}")
        k(f"v_mov_b32 v{d+2}, 0")
        k(f"v_mov_b32 v{d+3}, 0")
        k(f"ds_write_b128 v15, v[{d}:{d+3}] offset:{LDS_UT + 3*h*1024 - 65536}")
    k.label("L_ut_done")
    stamp(k, 8)
    wait_edge(k, 1, 36, 32)
    stamp(k, 9)
    vm.n = 0
    oid = []
    for i in range(8):
        if i:
            k("s_add_u32 m0, m0, 4096")
            k("s_add_u32 s47, s47, 4096")
        oid.append(vm.op(f"buffer_load_dwordx4 v2, s[24:27], s47 offen {FL} lds"))
    AC, OFR = 20, 60
    chunks = [(0, 8), (8, 20), (20, 32)]
    for (c0, c1) in chunks:
        vm.wait(oid[c1 // 4 - 1])
        k("s_barrier")
        n = c1 - c0
        ahead = 6
        for s in range(c0, min(c1, c0 + ahead)):
            k(lds_rd(f"v[{OFR+4*(s%8)}:{OFR+4*(s%8)+3}]", LDS_OST + s * 1024))
        for s in range(c0, c1):
            issued = min(c1, s + ahead)
            k(f"s_waitcnt lgkmcnt({issued - 1 - s})")
            c = "0" if s == 0 else f"v[{AC}:{AC+15}]"
            k(f"v_mfma_f32_32x32x16_bf16 v[{AC}:{AC+15}], {wo_reg(s)}, v[{OFR+4*(s%8)}:{OFR+4*(s%8)+3}], {c}")
            if s + ahead < c1:
                s2 = s + ahead
                k(lds_rd(f"v[{OFR+4*(s2%8)}:{OFR+4*(s2%8)+3}]", LDS_OST + s2 * 1024))
    k("s_nop 11")
    stamp(k, 20)
    for i in range(8):
        k(f"v_pk_fma_f32 v[{AC+2*i}:{AC+2*i+1}], v[{GA+2*i}:{GA+2*i+1}], v[{AC+2*i}:{AC+2*i+1}], v[{XU+2*i}:{XU+2*i+1}]")
    for i in range(8):
        k(f"v_pk_mul_f32 v[{A2+2*i}:{A2+2*i+1}], v[{A2+2*i}:{A2+2*i+1}], v[{AC+2*i}:{AC+2*i+1}]")
    for i in range(8):
        k(f"v_cvt_pk_bf16_f32 v{60+i}, v{A2+2*i}, v{A2+2*i+1}")
    dual_begin(k)
    k(f"buffer_store_dwordx4 v[60:63], v12, s[24:27], s45 offen {DF}")
    k(f"buffer_store_dwordx4 v[64:67], v12, s[24:27], s45 offen offset:512 {DF}")
    k(f"v_pk_add_f32 v[14:15], v[{AC}:{AC+1}], v[{AC+2}:{AC+3}]")
    k(f"v_pk_mul_f32 v[16:17], v[{AC}:{AC+1}], v[{AC}:{AC+1}]")
    for i in range(1, 8):
        if i >= 2:
            k(f"v_pk_add_f32 v[14:15], v[14:15], v[{AC+2*i}:{AC+2*i+1}]")
        k(f"v_pk_fma_f32 v[16:17], v[{AC+2*i}:{AC+2*i+1}], v[{AC+2*i}:{AC+2*i+1}], v[16:17]")
    k("v_add_f32 v14, v14, v15")
    k("v_add_f32 v15, v16, v17")
    k("v_mov_b32 v16, v14")
    k("v_mov_b32 v17, v15")
    for i in range(2):
        k(f"v_cvt_pk_bf16_f32 v{68+i}, v{AC+2*i}, v{AC+2*i+1}")
    k("v_permlane32_swap_b32 v16, v14")
    k("v_permlane32_swap_b32 v17, v15")
    k("v_pk_add_f32 v[14:15], v[14:15], v[16:17]")
    k("s_mov_b32 exec_hi, 0")
    k(f"buffer_store_dwordx2 v[14:15], v13, s[24:27], s46 offen {DF}")
    k("s_mov_b32 exec_hi, -1")
    for i in range(2, 8):
        k(f"v_cvt_pk_bf16_f32 v{68+i}, v{AC+2*i}, v{AC+2*i+1}")
    k(f"buffer_store_dwordx4 v[68:71], v12, s[24:27], s44 offen {DF}")
    k(f"buffer_store_dwordx4 v[72:75], v12, s[24:27], s44 offen offset:512 {DF}")
    k("""
    s_lshr_b32 s40, s42, 2          ; E3 group
    s_and_b32 s41, s42, 3
    s_lshl_b32 s41, s41, 2
    s_lshr_b32 s43, s37, 3
    s_add_u32 s41, s41, s43         ; member
    """)
    signal(k, 2, 40, 41, 16, fl=DF)
    dual_end(k, 'e2')
    stamp(k, 10)
    ACC4, WF, ST, SB = 8, 64, 120, 136
    k(f"""
    s_lshl_b32 s40, s36, 1
    s_bfe_u32 s41, s37, 0x10001
    s_add_u32 s40, s40, s41        ; tb4
    s_lshl_b32 s44, s40, 2
    s_add_u32 s44, s44, s3         ; tok32
    s_lshl_b32 s45, s44, 15
    s_add_u32 s45, s45, {OFF_X2S}
    s_add_u32 s46, s45, 16384
    v_and_b32 v3, 15, v1
    v_lshrrev_b32 v152, 4, v1
    v_lshlrev_b32 v153, 3, v3
    v_lshl_add_u32 v153, v152, 10, v153
    s_lshl_b32 s47, s44, 12
    s_add_u32 s47, s47, {OFF_ST2}
    s_mul_i32 s42, s44, {112*1024}
    s_mul_i32 s43, s57, {7*1024}
    s_add_u32 s42, s42, s43
    s_add_u32 s42, s42, {OFF_H}
    s_add_u32 s43, s42, 4096
    """)
    def wread(s):
        f = WF + 28 * (s & 1)
        return [lds_rd(f"v[{f+4*i}:{f+4*i+3}]", w1_lds(s * 7 + i)) for i in range(7)]
    for x in wread(0): k(x)
    wait_edge(k, 2, 40, 16)
    stamp(k, 11)
    vm.n = 0
    xid = []
    def xload():
        s = len(xid)
        if s >= 16:
            return
        if s and s % 4 == 0:
            k("s_add_u32 s45, s45, 4096")
            k("s_add_u32 s46, s46, 4096")
        vm.op(f"buffer_load_dwordx4 {wo_reg(2*s)}, v2, s[24:27], s45 offen offset:{(s%4)*1024} {FL}")
        xid.append(vm.op(f"buffer_load_dwordx4 {wo_reg(2*s+1)}, v2, s[24:27], s46 offen offset:{(s%4)*1024} {FL}"))
    for s in range(int(os.environ.get("P4D", "6"))):
        xload()
    stl = [f"buffer_load_dwordx2 v[{ST+8*j+2*pp}:{ST+8*j+2*pp+1}], v153, s[24:27], s47 offen offset:{256*pp+128*j} {FL}"
           for j in range(2) for pp in range(4)]
    class L(list):
        def __call__(self, text):
            for l in text.strip("\n").split("\n"):
                if l.strip():
                    self.append(l.strip())
    fill = L()
    for j in range(2):
        b = ST + 8 * j
        fill(f"v_pk_add_f32 v[{b}:{b+1}], v[{b}:{b+1}], v[{b+2}:{b+3}]")
        fill(f"v_pk_add_f32 v[{b+4}:{b+5}], v[{b+4}:{b+5}], v[{b+6}:{b+7}]")
        fill(f"v_pk_add_f32 v[{b}:{b+1}], v[{b}:{b+1}], v[{b+4}:{b+5}]")
    regs = [ST, ST + 1, ST + 8, ST + 9]
    tmp = [ST + 2, ST + 3, ST + 10, ST + 11]
    for op in ("v_permlane16_swap_b32", "v_permlane32_swap_b32"):
        for r, t in zip(regs, tmp):
            fill(f"v_mov_b32 v{t}, v{r}")
        fill("s_nop 1")
        for r, t in zip(regs, tmp):
            fill(f"{op} v{t}, v{r}")
        for r, t in zip(regs, tmp):
            fill(f"v_add_f32 v{r}, v{t}, v{r}")
    for j in range(2):
        b = ST + 8 * j
        ln_stats_finish(fill, b, b + 1, b + 4, b + 5, None, std_out=b + 6)
        fill(f"v_cvt_pk_bf16_f32 v{SB+4*j}, -v{b+4}, -v{b+4}")
        fill(f"v_cvt_pk_bf16_f32 v{SB+4*j+1}, v{b+6}, v{b+6}")
        fill(f"v_mov_b32 v{SB+4*j+2}, 0")
        fill(f"v_mov_b32 v{SB+4*j+3}, 0")
    fill(f"""
    v_lshlrev_b32 v154, 2, v3
    s_lshl_b32 s41, s3, 7
    v_add_u32 v154, s41, v154
    v_add_u32 v154, {LDS_R}, v154
    """)
    for s in range(17):
        nxt = wread(s + 1) if s < 16 else []
        k((vm.wait_str(xid[s]) if s < 16 else "s_waitcnt") + " lgkmcnt(0)")
        if s == 9:
            vm.wait(sid)
        f = WF + 28 * (s & 1)
        n = 0
        for i in range(7):
            for j in range(2):
                a = ACC4 + 4 * (j * 7 + i)
                c = "0" if s == 0 else f"v[{a}:{a+3}]"
                bop = wo_reg(2 * s + j) if s < 16 else f"v[{SB+4*j}:{SB+4*j+3}]"
                k(f"v_mfma_f32_16x16x32_bf16 v[{a}:{a+3}], v[{f+4*i}:{f+4*i+3}], {bop}, {c}")
                if nxt:
                    k(nxt.pop(0))
                elif n == 8:
                    xload()
                elif n in (10, 12) and stl:
                    sid = vm.op(stl.pop(0))
                if s >= 9 and fill:
                    k(fill.pop(0))
                n += 1
    assert not fill
    stamp(k, 12)
    dual_begin(k)
    k(f"ds_write_b32 v154, v{ST+5}")
    k(f"ds_write_b32 v154, v{ST+13} offset:64")
    for i in range(7):
        t = WF + 4 * i
        for j in range(2):
            a = ACC4 + 4 * (j * 7 + i)
            k(f"v_cvt_pk_bf16_f32 v{t+2*j}, v{a}, v{a+1}")
            k(f"v_cvt_pk_bf16_f32 v{t+2*j+1}, v{a+2}, v{a+3}")
        for q in range(4):
            k(f"v_pk_max_i16 v{t+q}, v{t+q}, 0")
        if i:
            tp = WF + 4 * (i - 1)
            k(f"v_permlane16_swap_b32 v{tp}, v{tp+2}")
            k(f"v_permlane16_swap_b32 v{tp+1}, v{tp+3}")
            k(f"buffer_store_dwordx4 v[{tp}:{tp+3}], v2, s[24:27], s{42 if i-1 < 4 else 43} offen offset:{((i-1)%4)*1024} {DF}")
    tp = WF + 24
    k("s_nop 1")
    k(f"v_permlane16_swap_b32 v{tp}, v{tp+2}")
    k(f"v_permlane16_swap_b32 v{tp+1}, v{tp+3}")
    k(f"buffer_store_dwordx4 v[{tp}:{tp+3}], v2, s[24:27], s43 offen offset:2048 {DF}")
    ACC5, RB, DEPTH = 8, 72, 19
    G5, X5, R5 = 224, 240, 248
    k(f"""
    s_lshl_b32 s58, s36, 2
    s_and_b32 s59, s37, 3
    s_add_u32 s58, s58, s59         ; tb5
    s_lshl_b32 s58, s58, 1
    s_and_b32 s59, s3, 1
    s_add_u32 s58, s58, s59
    s_xor_b32 s59, s58, 1
    s_mul_i32 s44, s58, {112*1024}
    s_mul_i32 s45, s59, {112*1024}
    s_mul_i32 s46, s3, {28*1024}
    s_add_u32 s46, s46, {OFF_H}
    s_add_u32 s44, s44, s46
    s_add_u32 s45, s45, s46
    v_lshrrev_b32 v250, 5, v1
    v_and_b32 v251, 31, v1
    v_lshlrev_b32 v252, 4, v250
    s_and_b32 s46, s52, 7
    s_lshl_b32 s46, s46, 7
    s_add_u32 s46, s46, {LDS_VEC + 1024}
    v_add_u32 v252, s46, v252
    v_lshrrev_b32 v253, 4, v251
    v_lshlrev_b32 v253, 14, v253
    v_and_b32 v254, 15, v251
    v_lshl_add_u32 v253, v254, 4, v253
    v_lshl_add_u32 v253, v250, 8, v253
    s_lshl_b32 s47, s58, 15
    s_lshl_b32 s50, s52, 10
    s_add_u32 s47, s47, s50
    s_add_u32 s47, s47, {OFF_X2}
    s_and_b32 s50, s58, 3
    s_lshl_b32 s50, s50, 7
    s_add_u32 s50, s50, {LDS_R}
    v_lshlrev_b32 v254, 2, v251
    v_add_u32 v254, s50, v254
    """)
    for j in range(4):
        k(f"ds_read_b128 v[{G5+4*j}:{G5+4*j+3}], v252 offset:{32*j}")
    k(f"buffer_load_dwordx4 v[{X5}:{X5+3}], v253, s[24:27], s47 offen {FL}")
    k(f"buffer_load_dwordx4 v[{X5+4}:{X5+7}], v253, s[24:27], s47 offen offset:512 {FL}")
    k(f"""
    v_lshlrev_b32 v253, 10, v251
    v_lshl_add_u32 v253, v250, 4, v253
    s_lshl_b32 s47, s58, 15
    s_lshl_b32 s50, s52, 6
    s_add_u32 s47, s47, s50
    """)
    stamp(k, 13)
    signal(k, 3, 40, 57, 16, nafter=2, fl=DF)
    dual_end(k, 'e3')
    stamp(k, 14)
    k(f"ds_read_b32 v{R5}, v254")
    k("s_waitcnt lgkmcnt(0)")
    for i in range(16):
        k(f"v_mul_f32 v{G5+i}, v{R5}, v{G5+i}")
    stamp(k, 15)
    wait_edge(k, 3, 40, 16)
    stamp(k, 16)
    vm.n = 0
    hid = []
    def hload():
        s = len(hid)
        if s >= 28:
            return
        r = RB + 8 * (s % DEPTH)
        if s and s % 4 == 0:
            k("s_add_u32 s44, s44, 4096")
            k("s_add_u32 s45, s45, 4096")
        vm.op(f"buffer_load_dwordx4 v[{r}:{r+3}], v2, s[24:27], s44 offen offset:{(s%4)*1024} {FL}")
        hid.append(vm.op(f"buffer_load_dwordx4 v[{r+4}:{r+7}], v2, s[24:27], s45 offen offset:{(s%4)*1024} {FL}"))
    for s in range(int(os.environ.get("P5D", "8"))):
        hload()
    for s in range(28):
        vm.wait(hid[s])
        r = RB + 8 * (s % DEPTH)
        A0, A1 = f"a[{8*s}:{8*s+3}]", f"a[{8*s+4}:{8*s+7}]"
        B0, B1 = f"v[{r}:{r+3}]", f"v[{r+4}:{r+7}]"
        for t, (a, b) in enumerate(((A0, B0), (A0, B1), (A1, B0), (A1, B1))):
            acc = ACC5 + 16 * t
            c = "0" if s == 0 else f"v[{acc}:{acc+15}]"
            k(f"v_mfma_f32_32x32x16_bf16 v[{acc}:{acc+15}], {a}, {b}, {c}")
            if t == 0:
                hload()
    XU5, TMP5 = 72, 88
    stamp(k, 17)
    for t in (1, 2, 3):
        k(f"""
        s_xor_b32 s56, s3, {t}
        s_mul_i32 s56, s56, 12288
        s_add_u32 s56, s56, {(t-1)*4096}
        v_add_u32 v{3+t}, s56, v2
        """)
    for t in (1, 2, 3):
        for q in range(4):
            k(f"ds_write_b128 v{3+t}, v[{ACC5+16*t+4*q}:{ACC5+16*t+4*q+3}] offset:{q*1024}")
    for i in range(8):
        k(f"v_lshlrev_b32 v{XU5+2*i}, 16, v{X5+i}")
        k(f"v_and_b32 v{XU5+2*i+1}, 0xffff0000, v{X5+i}")
    k(f"""
    s_mul_i32 s56, s3, 12288
    v_add_u32 v3, s56, v2
    s_waitcnt lgkmcnt(0)
    s_barrier
    """)
    for i in range(12):
        k(f"ds_read_b128 v[{TMP5+4*i}:{TMP5+4*i+3}], v3 offset:{i*1024}")
    for sl in range(3):
        k(f"s_waitcnt lgkmcnt({8-4*sl})")
        for i in range(8):
            k(f"v_pk_add_f32 v[{ACC5+2*i}:{ACC5+2*i+1}], v[{ACC5+2*i}:{ACC5+2*i+1}], v[{TMP5+16*sl+2*i}:{TMP5+16*sl+2*i+1}]")
    stamp(k, 18)
    for i in range(8):
        k(f"v_pk_fma_f32 v[{ACC5+2*i}:{ACC5+2*i+1}], v[{G5+2*i}:{G5+2*i+1}], v[{ACC5+2*i}:{ACC5+2*i+1}], v[{XU5+2*i}:{XU5+2*i+1}]")
    for i in range(8):
        k(f"v_cvt_pk_bf16_f32 v{TMP5+i}, v{ACC5+2*i}, v{ACC5+2*i+1}")
    k("s_nop 0")
    for p in range(2):
        t = TMP5 + 4 * p
        k(f"v_permlane32_swap_b32 v{t}, v{t+2}")
        k(f"v_permlane32_swap_b32 v{t+1}, v{t+3}")
        k(f"buffer_store_dwordx4 v[{t}:{t+3}], v253, s[32:35], s47 offen offset:{32*p}")
    endpgm(k)
    k.label("L_att_fallback")
    k(f"""
    s_mov_b32 s42, 0
    s_mov_b32 s43, s47
    v_mov_b32 v6, 0xff800000
    v_mov_b32 v7, 0xff800000
    """)
    k.label("L_att_maxloop")
    k(f"""
    buffer_load_dwordx4 v[{KF}:{KF+3}], v2, s[24:27], s43 offen {FL}
    s_add_u32 s43, s43, 2048
    s_waitcnt vmcnt(0)
    v_mfma_f32_32x32x16_bf16 v[{S}:{S+15}], v[{KF}:{KF+3}], v[{Q}:{Q+3}], 0
    v_mfma_f32_32x32x16_bf16 v[{S+16}:{S+31}], v[{KF}:{KF+3}], v[{Q+4}:{Q+7}], 0
    s_nop 10
    """)
    att_max16(k, 6, S, False)
    att_max16(k, 7, S + 16, False)
    k(f"""
    s_add_u32 s42, s42, 1
    s_cmp_lt_u32 s42, 64
    s_cbranch_scc1 L_att_maxloop
    s_nop 0
    v_permlane32_swap_b32 v6, v7
    v_max_f32 v6, v6, v7
    v_mov_b32 v7, v6
    s_nop 1
    v_permlane32_swap_b32 v6, v7
    v_sub_f32 v6, 0, v6
    v_sub_f32 v7, 0, v7
    """)
    for i in range(16):
        k(f"v_mov_b32 v{C+i}, v6")
        k(f"v_mov_b32 v{C+16+i}, v7")
        k(f"v_mov_b32 v{O+i}, 0")
        k(f"v_mov_b32 v{O+16+i}, 0")
    k("s_mov_b32 s42, 0")
    k("s_mov_b32 s43, s47")
    k.label("L_att_redo")
    k(f"""
    buffer_load_dwordx4 v[{KF}:{KF+3}], v2, s[24:27], s43 offen {FL}
    s_mov_b64 exec, s[48:49]
    buffer_load_dwordx4 v[{VF}:{VF+3}], v3, s[24:27], s43 offen offset:1024 {FL}
    buffer_load_dwordx4 v[{VF+4}:{VF+7}], v3, s[24:27], s43 offen offset:1536 {FL}
    s_mov_b64 exec, -1
    s_add_u32 s43, s43, 2048
    s_waitcnt vmcnt(0)
    v_mfma_f32_32x32x16_bf16 v[{S}:{S+15}], v[{KF}:{KF+3}], v[{Q}:{Q+3}], v[{C}:{C+15}]
    v_mfma_f32_32x32x16_bf16 v[{S+16}:{S+31}], v[{KF}:{KF+3}], v[{Q+4}:{Q+7}], v[{C+16}:{C+31}]
    s_nop 10
    """)
    for b in range(2):
        for i in range(16):
            k(f"v_exp_f32 v{S+16*b+i}, v{S+16*b+i}")
        k("s_nop 0")
        for j in range(8):
            k(f"v_cvt_pk_bf16_f32 v{P+j}, v{S+16*b+2*j}, v{S+16*b+2*j+1}")
        k("s_nop 1")
        for h in range(2):
            k(f"v_mfma_f32_32x32x16_bf16 v[{O+16*b}:{O+16*b+15}], v[{VF+4*h}:{VF+4*h+3}], v[{P+4*h}:{P+4*h+3}], v[{O+16*b}:{O+16*b+15}]")
    k(f"""
    s_add_u32 s42, s42, 1
    s_cmp_lt_u32 s42, 64
    s_cbranch_scc1 L_att_redo
    s_nop 10
    s_branch L_att_fin
    """)
    k.label("L_xid_retry")
    k(f"""
    s_mov_b32 s39, 0x400000
    s_mov_b32 s53, {OFF_XID}
    """)
    k.label("L_xid_spin")
    k(f"""
    buffer_load_dwordx4 v[150:153], v2, s[24:27], s53 offen {FL}
    buffer_load_dwordx4 v[154:157], v2, s[24:27], s53 offen offset:32 {FL}
    s_sub_u32 s39, s39, 1
    s_waitcnt vmcnt(0)
    v_min_u32 v158, v150, v151
    v_min_u32 v159, v152, v153
    v_min_u32 v158, v158, v159
    v_xor_b32 v154, v154, v150
    v_xor_b32 v155, v155, v151
    v_cmp_eq_u32 vcc, 0, v158
    v_xor_b32 v156, v156, v152
    v_xor_b32 v157, v157, v153
    s_cbranch_scc1 L_xid_ok
    s_cbranch_vccnz L_xid_spin
    s_branch L_xid_ok
    """)
    for blk in OOL:
        k.lines += blk
    k.label(f"L_end_{k.name}")
    k("s_endpgm")
    k(".fill (65536 + L_pc_here - .) / 4 + 64, 4, 0xbf810000")
    return k, (256, 256, 163840)


def build(path=OUT):
    ks = [G.k0(), mega()]
    errs = []
    for k, _ in ks:
        errs += k.check()
    for e in errs:
        print(e)
    ref = open(OUT + ".ref").read().split("\n")
    hdr = [l for l in ref if l.startswith(";") and "@launch" not in l and "Override" not in l and "grid=ceil" not in l]
    out = "\n".join(hdr) + "\n"
    for k, (g, b, lds) in ks:
        out += f"; @launch kernel={k.name} grid=({g},1,1) block=({b},1,1) lds={lds}\n"
    out += '.amdgcn_target "amdgcn-amd-amdhsa--gfx950"\n'
    codes, kds = zip(*[k.text() for k, _ in ks])
    out += "".join(codes)
    out += '.section .rodata,"a"\n' + "".join(kds)
    open(path, "w").write(out)
    print("wrote", path, len(out), "bytes;", len(errs), "checker errors")
    return len(errs)


if __name__ == "__main__":
    sys.exit(1 if build(sys.argv[1] if len(sys.argv) > 1 else OUT) else 0)
```

```python
import sys, os
sys.path.insert(0, "gen")
from asmlib import Kern
import gen as G
from gen import (MB, OFF_MOD, OFF_XHAT, OFF_WQKV, OFF_Q, OFF_KV, OFF_O, OFF_WO, OFF_X2, OFF_X2S, OFF_ST2, OFF_W1,
                 OFF_H, OFF_W2, QSCALE, P_X, P_WQKV, P_WO, P_W1, P_W2, P_C, P_WMOD, P_OUT, P_WS, srd, stamp, endpgm,
                 prologue, prologue_wait, epilogue, bf16_round, ln_stats_finish, role_ln, role_relayout, ATT, att_unit,
                 att_max16, NAME, OUT, DIAG)

OFF_MODB = 0x3000
OFF_FLAG = G.OFF_FLAG
FL = "sc1"
DF = "@DF@"
S_FAST = 98
OFF_XID = G.OFF_XID
OOL = []


def dual_begin(k):
    k._dual = len(k.lines)


def dual_end(k, tag):
    body = k.lines[k._dual:]
    del k.lines[k._dual:]
    import re
    labs = [l[:-1] for l in body if l.endswith(":")]
    def variant(fl, suffix):
        out = []
        for l in body:
            l = l.replace(DF, fl).rstrip()
            for lab in labs:
                l = re.sub(rf"\b{lab}\b", lab + suffix, l)
            out.append(l)
        return out
    if tag not in os.environ.get("FAST", "e1,e2,e3").split(","):
        k.lines += variant("sc1", "_s")
        return
    k(f"s_cmp_eq_u32 s{S_FAST}, 0")
    k(f"s_cbranch_scc1 L_slow_{tag}")
    k.lines += variant("", "_f")
    k.label(f"L_join_{tag}")
    OOL.append([f"L_slow_{tag}:"] + variant("sc1", "_s") + [f"s_branch L_join_{tag}"])


class VM:
    def __init__(self, k):
        self.k = k; self.n = 0
    def op(self, text=None):
        if text:
            self.k(text)
        self.n += 1
        return self.n
    def tick(self):
        self.n += 1
        return self.n
    def wait_str(self, idx):
        c = self.n - idx
        return f"s_waitcnt vmcnt({min(c, 63)})"
    def wait(self, idx):
        self.k(self.wait_str(idx))


def signal(k, edge, s_group, s_member, gsize, nafter=0, fl=FL):
    lab = f"L_sig{edge}"
    k(f"""
    s_mul_i32 s38, s{s_group}, {gsize}
    s_add_u32 s38, s38, s{s_member}
    s_lshl_b32 s38, s38, 8
    s_add_u32 s38, s38, {OFF_FLAG + edge * 65536}
    v_mov_b32 v6, 0
    v_mov_b32 v7, 1
    s_waitcnt vmcnt({nafter}) lgkmcnt(0)
    s_barrier
    s_cmp_lg_u32 s3, 0
    s_cbranch_scc1 {lab}
    s_mov_b64 exec, 1
    buffer_store_dword v7, v6, s[24:27], s38 offen {fl}
    s_mov_b64 exec, -1
    """)
    k.label(lab)


def wait_edge(k, edge, s_group, gsize):
    lab = f"L_wait{edge}"
    k(f"""
    s_cmp_lg_u32 s3, 0
    s_cbranch_scc1 {lab}
    s_mul_i32 s38, s{s_group}, {gsize*256}
    s_add_u32 s38, s38, {OFF_FLAG + edge * 65536}
    v_lshlrev_b32 v6, 8, v1
    s_mov_b32 exec_lo, {hex((1 << gsize) - 1)}
    s_mov_b32 exec_hi, 0
    s_mov_b32 s39, 0x400000
    """)
    k.label(f"L_poll{edge}")
    k(f"""
    buffer_load_dword v7, v6, s[24:27], s38 offen {FL}
    s_sub_u32 s39, s39, 1
    s_cbranch_scc1 L_bail{edge}
    s_waitcnt vmcnt(0)
    v_cmp_eq_u32 vcc, 0, v7
    s_cbranch_vccnz L_poll{edge}
    """)
    k.label(f"L_bail{edge}")
    k("s_waitcnt vmcnt(0)")
    k("s_mov_b64 exec, -1")
    k.label(lab)
    k("s_barrier")


def wbl2(k, tag):
    if tag in os.environ.get("WBL2", "").split(","):
        k(f"""
        s_lshl_b32 s38, s37, 2
        s_add_u32 s38, s38, s3
        s_cmp_lg_u32 s38, 1
        s_cbranch_scc1 L_nowb_{tag}
        buffer_wbl2 sc1
        """)
        k.label(f"L_nowb_{tag}")


def wo_reg(s):
    return f"a[{224+4*s}:{227+4*s}]" if s < 8 else f"v[{160+4*(s-8)}:{163+4*(s-8)}]"


def w1_lds(f):
    if f < 28:
        return 131072 + f * 1024
    if f < 112:
        return (f - 28) * 1024
    return LDS_UT + (f - 112) * 1024


LDS_MODB = 156 * 1024
LDS_VEC = 158 * 1024
LDS_OST = 84 * 1024
LDS_UT = 116 * 1024
LDS_R = 125 * 1024


def lds_rd(dst, addr):
    base = (2, 4, 5)[addr >> 16]
    return f"ds_read_b128 {dst}, v{base} offset:{addr & 0xffff}"


def mega():
    k = Kern("k1_mega_kernel", nvgpr=256, nagpr=256)
    prologue(k, 256)
    vm = VM(k)
    if int(os.environ.get("MAPX", "0")):
        k("s_lshr_b32 s36, s2, 5")
        k("s_and_b32 s37, s2, 31")
    else:
        k("s_and_b32 s36, s2, 7")
        k("s_lshr_b32 s37, s2, 3")
    k("v_lshlrev_b32 v2, 4, v1")
    VA, VB, ROWS, TMP, ACC, FR = 8, 16, 24, 88, 136, 104
    k(f"""
    s_lshr_b32 s42, s36, 1
    s_lshl_b32 s42, s42, 3
    s_and_b32 s43, s37, 7
    s_add_u32 s42, s42, s43        ; tb1
    s_and_b32 s40, s36, 1
    s_lshl_b32 s40, s40, 2
    s_lshr_b32 s44, s37, 3
    s_add_u32 s40, s40, s44        ; cb1
    s_lshl_b32 s43, s40, 2
    s_add_u32 s43, s43, s3         ; head
    v_lshlrev_b32 v3, 5, v1
    s_lshl_b32 s44, s42, 16
    s_lshl_b32 s45, s3, 14
    s_add_u32 s44, s44, s45
    s_add_u32 s44, s44, {OFF_XHAT}
    s_mul_i32 s46, s43, {48*1024}
    s_add_u32 s46, s46, {OFF_WQKV}
    """)
    prologue_wait(k)
    srd(k, 28, P_X, 2048 * 1024)
    srd(k, 32, P_OUT, 2048 * 1024)
    vm.op(f"buffer_load_dwordx4 v[{VB}:{VB+3}], v3, s[24:27], 0 offen offset:{OFF_MOD}")
    vm.op(f"buffer_load_dwordx4 v[{VB+4}:{VB+7}], v3, s[24:27], 0 offen offset:{OFF_MOD+16}")
    vm.op(f"buffer_load_dwordx4 v[{VA}:{VA+3}], v3, s[24:27], 0 offen offset:{OFF_MOD+2048}")
    vm.op(f"buffer_load_dwordx4 v[{VA+4}:{VA+7}], v3, s[24:27], 0 offen offset:{OFF_MOD+2064}")
    rowid = []
    for r in range(16):
        if r and r % 4 == 0:
            k("s_add_u32 s44, s44, 4096")
        rowid.append(vm.op(f"buffer_load_dwordx4 v[{ROWS+4*r}:{ROWS+4*r+3}], v2, s[24:27], s44 offen offset:{(r%4)*1024}"))
    wid = []
    def wload():
        i = len(wid)
        if i >= 48:
            return
        if i and i % 4 == 0:
            k("s_add_u32 s46, s46, 4096")
        wid.append(vm.op(f"buffer_load_dwordx4 a[{4*i}:{4*i+3}], v2, s[24:27], s46 offen offset:{(i%4)*1024}"))
    k(f"""
    v_and_b32 v4, 7, v1
    v_lshlrev_b32 v4, 4, v4
    v_lshl_add_u32 v4, v1, 8, v4
    v_add_u32 v4, s45, v4
    v_and_b32 v5, 15, v1
    v_lshrrev_b32 v6, 4, v1
    v_xor_b32 v7, v5, v6
    v_lshlrev_b32 v7, 4, v7
    v_lshl_add_u32 v6, v6, 8, v7
    v_xor_b32 v7, 64, v6
    """)
    stamp(k, 1)
    for r in range(16):
        vm.wait(rowid[r])
        b = ROWS + 4 * r
        t = TMP + 8 * (r & 1)
        for i in range(4):
            k(f"v_lshlrev_b32 v{t+2*i}, 16, v{b+i}")
            k(f"v_and_b32 v{t+2*i+1}, 0xffff0000, v{b+i}")
        wload()
        for i in range(4):
            k(f"v_pk_fma_f32 v[{t+2*i}:{t+2*i+1}], v[{t+2*i}:{t+2*i+1}], v[{VA+2*i}:{VA+2*i+1}], v[{VB+2*i}:{VB+2*i+1}]")
        for i in range(4):
            k(f"v_cvt_pk_bf16_f32 v{b+i}, v{t+2*i}, v{t+2*i+1}")
        k(f"v_xor_b32 v5, {r<<4}, v4")
        k(f"ds_write_b128 v5, v[{b}:{b+3}]")
        if r >= 8:
            wload()
    if int(os.environ.get("CPF", "1")):
        k(f"""
        s_getpc_b64 s[38:39]
        """)
        k.label("L_pc_here")
        k(f"""
        s_lshl_b32 s41, s37, 2
        s_add_u32 s41, s41, s3
        s_and_b32 s41, s41, 63
        s_lshl_b32 s41, s41, 10
        s_add_u32 s38, s38, s41
        s_addc_u32 s39, s39, 0
        """)
        vm.op(f"global_load_dwordx4 v[{TMP}:{TMP+3}], v2, s[38:39]")
    k("s_waitcnt lgkmcnt(0)")
    k("s_barrier")
    stamp(k, 2)
    def aread(s):
        base = 6 + (s & 1)
        f = FR + 16 * (s & 1)
        return [f"ds_read_b128 v[{f+4*b}:{f+4*b+3}], v{base} offset:{b*16384+s*1024}" for b in range(4)]
    for x in aread(0): k(x)
    for s in range(16):
        nxt = aread(s + 1) if s < 15 else []
        k(vm.wait_str(wid[3 * s + 2]) + " lgkmcnt(0)")
        f = FR + 16 * (s & 1)
        n = 0
        for b in range(4):
            for which in range(3):
                acc = ACC + 4 * (which * 4 + b)
                w = f"a[{12*s+4*which}:{12*s+4*which+3}]"
                h = f"v[{f+4*b}:{f+4*b+3}]"
                c = "0" if s == 0 else f"v[{acc}:{acc+3}]"
                a_, b_ = (w, h) if which < 2 else (h, w)
                k(f"v_mfma_f32_16x16x32_bf16 v[{acc}:{acc+3}], {a_}, {b_}, {c}")
                if nxt:
                    k(nxt.pop(0))
                elif n in (5, 7, 9):
                    wload()
                n += 1
    stamp(k, 3)
    k(f"""
    s_lshl_b32 s44, s43, 16
    s_lshl_b32 s45, s42, 11
    s_add_u32 s44, s44, s45
    s_add_u32 s44, s44, {OFF_Q}
    s_lshl_b32 s46, s43, 17
    s_lshl_b32 s45, s42, 12
    s_add_u32 s46, s46, s45
    s_add_u32 s46, s46, {OFF_KV}
    v_mov_b32 v10, {QSCALE:#x}
    v_mov_b32 v11, {QSCALE:#x}
    """)
    for which in (1, 2, 0):
        for bp in range(2):
            t = 12 + 4 * (which * 2 + bp)
            for b2 in range(2):
                acc = ACC + 4 * (which * 4 + bp * 2 + b2)
                if which == 0:
                    k(f"v_pk_mul_f32 v[{acc}:{acc+1}], v[10:11], v[{acc}:{acc+1}]")
                    k(f"v_pk_mul_f32 v[{acc+2}:{acc+3}], v[10:11], v[{acc+2}:{acc+3}]")
                k(f"v_cvt_pk_bf16_f32 v{t+2*b2}, v{acc}, v{acc+1}")
                k(f"v_cvt_pk_bf16_f32 v{t+2*b2+1}, v{acc+2}, v{acc+3}")
        op = "v_permlane32_swap_b32" if which == 2 else "v_permlane16_swap_b32"
        for bp in range(2):
            t = 12 + 4 * (which * 2 + bp)
            if bp == 1:
                k("s_nop 0")
            k(f"{op} v{t}, v{t+2}")
            k(f"{op} v{t+1}, v{t+3}")
            if which == 0:
                vm.op(f"buffer_store_dwordx4 v[{t}:{t+3}], v2, s[24:27], s44 offen offset:{bp*1024} {FL}")
            else:
                vm.op(f"buffer_store_dwordx4 v[{t}:{t+3}], v2, s[24:27], s46 offen offset:{bp*2048+(which-1)*1024} {FL}")
    signal(k, 0, 40, 42, 32)
    k(f"""
    s_cmp_lg_u32 s3, 1
    s_cbranch_scc1 L_noxid
    s_getreg_b32 s38, hwreg(HW_REG_XCC_ID, 0, 4)
    s_add_u32 s38, s38, 1
    s_lshl_b32 s39, s37, 3
    s_add_u32 s39, s39, s36
    s_lshl_b32 s39, s39, 2
    s_add_u32 s39, s39, {OFF_XID}
    v_mov_b32 v7, s38
    s_mov_b64 exec, 1
    buffer_store_dword v7, v6, s[24:27], s39 offen {FL}
    s_mov_b64 exec, -1
    """)
    k.label("L_noxid")
    stamp(k, 4)
    Q, KF, VF, S, P, O, C = (ATT[x] for x in ("Q", "KF", "VF", "S", "P", "O", "C"))
    k(f"""
    s_mov_b32 s40, s37             ; head2
    s_mov_b32 s54, s36             ; qb256
    s_lshl_b32 s41, s54, 2
    s_add_u32 s41, s41, s3         ; qblock64
    s_lshl_b32 s42, s40, 16
    s_lshl_b32 s43, s41, 11
    s_add_u32 s42, s42, s43
    s_add_u32 s42, s42, {OFF_Q}
    s_lshl_b32 s44, s40, 17
    s_lshl_b32 s45, s3, 10
    s_add_u32 s47, s44, {OFF_KV}
    s_add_u32 s44, s47, s45
    s_lshl_b32 s46, s41, 16
    s_lshl_b32 s43, s40, 10
    s_add_u32 s46, s46, s43
    s_add_u32 s46, s46, {OFF_O}
    s_mov_b32 m0, s45
    v_and_b32 v3, 15, v1
    v_lshlrev_b32 v3, 4, v3
    v_lshrrev_b32 v4, 5, v1
    v_lshl_add_u32 v3, v4, 8, v3
    v_add_u32 v4, 0x10000, v2
    v_add_u32 v5, 0x10000, v3
    s_mov_b32 s48, 0x0000ffff
    s_mov_b32 s49, 0x0000ffff
    v_and_b32 v8, 27, v1
    v_cmp_eq_u32 vcc, 16, v8
    v_mov_b32 v9, 0x3f803f80
    s_nop 0
    v_cndmask_b32 v9, 0, v9, vcc
    """)
    for i in range(16):
        k(f"v_mov_b32 v{VF+i}, v9")
    k(f"""
    s_lshr_b32 s50, s37, 3
    s_lshl_b32 s50, s50, 2
    s_add_u32 s50, s50, s3          ; P3 ncol32
    s_lshl_b32 s51, s50, 15
    s_add_u32 s51, s51, {OFF_WO}
    s_lshr_b32 s52, s37, 2
    s_lshl_b32 s52, s52, 1
    s_lshr_b32 s53, s3, 1
    s_add_u32 s52, s52, s53
    s_xor_b32 s53, s52, 1
    s_mul_i32 s55, s52, {112*1024}
    s_mul_i32 s56, s53, {112*1024}
    s_mul_i32 s53, s3, {28*1024}
    s_add_u32 s53, s53, {OFF_W2}
    s_add_u32 s55, s55, s53
    s_add_u32 s56, s56, s53
    s_lshr_b32 s57, s37, 2
    s_lshl_b32 s57, s57, 1
    s_and_b32 s53, s37, 1
    s_add_u32 s57, s57, s53         ; cb4
    s_mul_i32 s58, s57, {112*1024}
    s_add_u32 s58, s58, s45
    s_add_u32 s58, s58, {OFF_W1}
    v_lshrrev_b32 v8, 5, v1
    v_and_b32 v9, 31, v1
    v_lshlrev_b32 v148, 10, v9
    v_lshl_add_u32 v148, v8, 3, v148
    v_lshlrev_b32 v149, 4, v9
    v_lshl_add_u32 v149, v8, 12, v149
    s_lshl_b32 s59, s36, 3
    s_and_b32 s53, s37, 7
    s_add_u32 s59, s59, s53
    s_lshl_b32 s59, s59, 15
    s_lshl_b32 s53, s50, 6
    s_add_u32 s59, s59, s53
    s_lshr_b32 s53, s37, 2
    """)
    wait_edge(k, 0, 53, 32)
    stamp(k, 5)
    vm.n = 0
    rid = []
    def dma():
        i = len(rid)
        out = []
        if i:
            out += ["s_add_u32 m0, m0, 4096", "s_add_u32 s44, s44, 4096"]
        out += [f"buffer_load_dwordx4 v2, s[24:27], s44 offen {FL} lds"]
        rid.append(vm.tick())
        return out
    for x in dma(): k(x)
    vm.op(f"buffer_load_dwordx4 v[{Q}:{Q+3}], v2, s[24:27], s42 offen {FL}")
    qid = vm.op(f"buffer_load_dwordx4 v[{Q+4}:{Q+7}], v2, s[24:27], s42 offen offset:1024 {FL}")
    for r in range(3):
        for x in dma(): k(x)
    vm.wait(qid)
    k("s_barrier")
    def kread(t):
        off = t * 2048
        return f"ds_read_b128 v[{KF}:{KF+3}], v{2 if off < 65536 else 4} offset:{off & 0xffff}"
    def vread(t):
        off = t * 2048 + 1024
        b = VF + 8 * (t & 1)
        a = 3 if off < 65536 else 5
        return ["s_mov_b64 exec, s[48:49]",
                f"ds_read_b128 v[{b}:{b+3}], v{a} offset:{off & 0xffff}",
                f"ds_read_b128 v[{b+4}:{b+7}], v{a} offset:{(off+512) & 0xffff}",
                "s_mov_b64 exec, -1"]
    k(kread(0))
    for x in vread(0): k(x)
    k(f"""
    s_waitcnt lgkmcnt(2)
    v_mfma_f32_32x32x16_bf16 v[{S}:{S+15}], v[{KF}:{KF+3}], v[{Q}:{Q+3}], 0
    v_mfma_f32_32x32x16_bf16 v[{S+16}:{S+31}], v[{KF}:{KF+3}], v[{Q+4}:{Q+7}], 0
    s_nop 10
    """)
    att_max16(k, 6, S, True)
    att_max16(k, 7, S + 16, True)
    k("""
    s_nop 1
    v_permlane32_swap_b32 v6, v7
    v_max_f32 v6, v6, v7
    v_mov_b32 v7, v6
    s_nop 1
    v_permlane32_swap_b32 v6, v7
    v_sub_f32 v6, 0, v6
    v_sub_f32 v7, 0, v7
    """)
    for i in range(16):
        k(f"v_mov_b32 v{C+i}, v6")
    k("s_nop 0")
    k(f"v_mov_b32 v{C+16}, v7")
    k(f"v_mfma_f32_32x32x16_bf16 v[{S}:{S+15}], v[{KF}:{KF+3}], v[{Q}:{Q+3}], v[{C}:{C+15}]")
    for i in range(1, 16):
        k(f"v_mov_b32 v{C+16+i}, v7")
    stamp(k, 6)
    jobs = []
    for s in range(32):
        pre = ["s_add_u32 s51, s51, 4096"] if (s and s % 4 == 0) else []
        jobs.append(pre + [f"buffer_load_dwordx4 {wo_reg(s)}, v2, s[24:27], s51 offen offset:{(s%4)*1024}"])
    for s in range(28):
        for i, sr in enumerate((55, 56)):
            pre = [f"s_add_u32 s{sr}, s{sr}, 4096"] if (s and s % 4 == 0) else []
            jobs.append(pre + [f"buffer_load_dwordx4 a[{8*s+4*i}:{8*s+4*i+3}], v2, s[24:27], s{sr} offen offset:{(s%4)*1024}"])
    w1jobs = []
    for i in range(28):
        pre = [f"s_add_u32 m0, s45, {w1_lds(4*i)}"] + (["s_add_u32 s58, s58, 4096"] if i else ["s_nop 0"])
        w1jobs.append(pre + ["buffer_load_dwordx4 v2, s[24:27], s58 offen lds"])
    modb = ["s_and_b32 s53, s45, 1024", f"s_add_u32 m0, s53, {LDS_MODB}", f"s_add_u32 s53, s53, {OFF_MODB}",
            "buffer_load_dwordx4 v2, s[24:27], s53 offen lds"]
    vec1 = [f"s_mov_b32 m0, {LDS_VEC}", "s_lshr_b32 s53, s37, 3", "s_lshl_b32 s53, s53, 9", f"s_add_u32 s53, s53, {OFF_MOD + 2*2048}",
            "buffer_load_dwordx4 v149, s[24:27], s53 offen lds"]
    vec2 = [f"s_mov_b32 m0, {LDS_VEC + 1024}", "s_lshr_b32 s53, s37, 4", "s_lshl_b32 s53, s53, 10", f"s_add_u32 s53, s53, {OFF_MOD + 5*2048}",
            "buffer_load_dwordx4 v2, s[24:27], s53 offen lds"]
    xj = [[f"buffer_load_dwordx2 v[{140+2*j}:{141+2*j}], v148, s[28:31], s59 offen offset:{16*j}"] for j in range(4)]
    jobs = w1jobs[:7] + [modb, vec1, vec2] + jobs
    late2 = xj
    late = w1jobs[7:]
    for u in range(128):
        t = u >> 1
        side = {}
        def add(slot, xs):
            side.setdefault(slot, []).extend(xs)
        if len(rid) < 32:
            d = dma()
            add(1, d[:2]); add(2, d[2:])
        elif jobs:
            d = jobs.pop(0); vm.tick()
            add(1, d[:-1]); add(2, d[-1:])
        if u % 2 == 0 and t < 63:
            pre = []
            if u == 2:
                pre = [vm.wait_str(rid[3]), "s_barrier"]
            elif u == 14:
                pre = [vm.wait_str(rid[11]), "s_barrier"]
            elif u == 46:
                pre = [vm.wait_str(rid[31]), "s_barrier"]
            elif u == 82:
                pre = ["s_barrier"]
            add(14, pre + [kread(t + 1)])
            add(15, vread(t + 1))
        if u % 2 == 1 or u == 0:
            add(-14, ["s_waitcnt lgkmcnt(0)"])
        if u >= 83 and late and u % 2 == 1:
            d = late.pop(0); vm.tick()
            add(17, d[:-1]); add(18, d[-1:])
        if u >= 60 and late2 and u % 2 == 1:
            d = late2.pop(0); vm.tick()
            add(18, d)
        if u == 70:
            vm.tick(); xidid = vm.tick()
            add(17, [f"s_mov_b32 s53, {OFF_XID}", f"buffer_load_dwordx4 v[150:153], v2, s[24:27], s53 offen {FL}"])
            add(24, [f"buffer_load_dwordx4 v[154:157], v2, s[24:27], s53 offen offset:32 {FL}"])
        if u == 79:
            add(17, [vm.wait_str(xidid), "v_min_u32 v158, v150, v151", "v_min_u32 v159, v152, v153"])
            add(18, ["v_min_u32 v158, v158, v159", "v_xor_b32 v154, v154, v150", "v_xor_b32 v155, v155, v151"])
            add(20, ["v_cmp_eq_u32 vcc, 0, v158", "v_xor_b32 v156, v156, v152", "v_xor_b32 v157, v157, v153"])
            add(22, ["s_cbranch_vccnz L_xid_retry", "L_xid_ok:", "v_or3_b32 v154, v154, v155, v156", "v_or_b32 v154, v154, v157"])
            add(24, ["v_cmp_ne_u32 vcc, 0, v154"])
            add(27, ["s_and_b32 s53, vcc_hi, 0x3fffffff", "s_or_b32 s53, s53, vcc_lo", "s_cmp_eq_u32 s53, 0", f"s_cselect_b32 s{S_FAST}, 1, 0"])
        att_unit(k, u, side, last=(u == 127))
    assert not jobs and not late, (len(jobs), len(late))
    k(f"""
    s_nop 0
    v_cvt_pk_bf16_f32 v{P+7}, v{S+30}, v{S+31}
    s_nop 1
    v_mfma_f32_32x32x16_bf16 v[{O+16}:{O+31}], v[{VF+12}:{VF+15}], v[{P+4}:{P+7}], v[{O+16}:{O+31}]
    s_mov_b32 s53, 0x53800000
    v_cmp_nge_f32 vcc, s53, v{O+8}
    s_nop 9
    v_cmp_nge_f32 s[42:43], s53, v{O+24}
    s_nop 3
    s_or_b64 vcc, vcc, s[42:43]
    s_cbranch_scc0 L_att_fin
    s_branch L_att_fallback
    """)
    k.label("L_att_fin")
    stamp(k, 7)
    XR, XU, GA, A2 = 140, 44, 108, 124
    k(f"""
    v_rcp_f32 v6, v{O+8}
    v_rcp_f32 v7, v{O+24}
    s_lshl_b32 s42, s36, 3
    s_and_b32 s43, s37, 7
    s_add_u32 s42, s42, s43         ; t3 (tok32)
    v_lshrrev_b32 v8, 5, v1         ; h
    v_and_b32 v9, 31, v1            ; tok
    """)
    dual_begin(k)
    for b_ in range(2):
        for i in range(8):
            k(f"v_mul_f32 v{O+16*b_+i}, v{6+b_}, v{O+16*b_+i}")
        for i in range(4):
            k(f"v_cvt_pk_bf16_f32 v{P+4*b_+i}, v{O+16*b_+2*i}, v{O+16*b_+2*i+1}")
        if b_:
            k("s_add_u32 s46, s46, 32768")
        k(f"buffer_store_dwordx4 v[{P+4*b_}:{P+4*b_+3}], v2, s[24:27], s46 offen {DF}")
    k(f"""
    v_add_u32 v5, 0x20000, v2
    v_lshrrev_b32 v12, 4, v9
    v_lshlrev_b32 v12, 14, v12
    v_and_b32 v13, 15, v9
    v_lshl_add_u32 v12, v13, 4, v12
    v_lshl_add_u32 v12, v8, 8, v12
    v_lshlrev_b32 v13, 3, v9
    s_lshl_b32 s43, s3, 10
    s_lshl_b32 s44, s42, 15
    s_lshl_b32 s45, s50, 10
    s_add_u32 s44, s44, s45
    s_add_u32 s45, s44, {OFF_X2S}
    s_add_u32 s44, s44, {OFF_X2}
    s_lshl_b32 s46, s42, 12
    s_lshl_b32 s47, s50, 8
    s_add_u32 s46, s46, s47
    s_add_u32 s46, s46, {OFF_ST2}
    s_lshl_b32 s47, s42, 15
    s_add_u32 s47, s47, s43
    s_add_u32 s47, s47, {OFF_O}
    s_add_u32 m0, s43, {LDS_OST}
    """)
    signal(k, 1, 54, 40, 32, fl=DF)
    dual_end(k, 'e1')
    stamp(k, 19)
    k(f"""
    s_lshl_b32 s38, s3, 7
    s_add_u32 s38, s38, {LDS_VEC}
    v_lshlrev_b32 v10, 4, v8
    v_add_u32 v10, s38, v10
    """)
    for j in range(4):
        k(f"ds_read_b128 v[{GA+4*j}:{GA+4*j+3}], v10 offset:{32*j}")
        k(f"ds_read_b128 v[{A2+4*j}:{A2+4*j+3}], v10 offset:{512+32*j}")
    for i in range(8):
        k(f"v_lshlrev_b32 v{XU+2*i}, 16, v{XR+i}")
        k(f"v_and_b32 v{XU+2*i+1}, 0xffff0000, v{XR+i}")
    k("s_cmp_eq_u32 s3, 0")
    k("s_cbranch_scc1 L_ut_done")
    MA_, WU, UA = 60, 68, 92
    k(f"""
    s_sub_u32 s38, s43, 1024
    v_add_u32 v14, s38, v2
    v_add_u32 v15, s38, v4
    v_add_u32 v16, s38, v5
    v_and_b32 v17, 15, v1
    v_lshrrev_b32 v18, 4, v1
    v_lshlrev_b32 v17, 10, v17
    v_lshl_add_u32 v17, v18, 4, v17
    v_add_u32 v17, {LDS_MODB}, v17
    s_mov_b32 s38, 0x00030003
    s_mov_b32 s39, 0x00030003
    """)
    for i in range(8):
        k(f"v_mov_b32 v{MA_+i}, 0")
    def uread(s):
        r = WU + 12 * (s & 1)
        k("s_mov_b64 exec, s[38:39]")
        k(f"ds_read_b128 v[{MA_+4*(s&1)}:{MA_+4*(s&1)+3}], v17 offset:{64*s}")
        k("s_mov_b64 exec, -1")
        for h in range(3):
            addr = w1_lds(s * 7) + 3 * h * 1024
            k(f"ds_read_b128 v[{r+4*h}:{r+4*h+3}], v{14 + (addr >> 16)} offset:{addr & 0xffff}")
    uread(0)
    for s in range(16):
        if s < 15:
            uread(s + 1)
            k("s_waitcnt lgkmcnt(4)")
        else:
            k("s_waitcnt lgkmcnt(0)")
        r = WU + 12 * (s & 1)
        for h in range(3):
            u_ = UA + 4 * h
            c = "0" if s == 0 else f"v[{u_}:{u_+3}]"
            k(f"v_mfma_f32_16x16x32_bf16 v[{u_}:{u_+3}], v[{MA_+4*(s&1)}:{MA_+4*(s&1)+3}], v[{r+4*h}:{r+4*h+3}], {c}")
    k("s_nop 5")
    for h in range(3):
        u_ = UA + 4 * h
        d = WU + 4 * h
        for i in range(2):
            bf16_round(k, 18 + i, u_ + i)
        for i in range(2):
            k(f"v_sub_f32 v{20+i}, v{u_+i}, v{18+i}")
        for i in range(2):
            k(f"v_cvt_pk_bf16_f32 v{d+i}, v{18+i}, v{20+i}")
        k(f"v_mov_b32 v{d+2}, 0")
        k(f"v_mov_b32 v{d+3}, 0")
        k(f"ds_write_b128 v15, v[{d}:{d+3}] offset:{LDS_UT + 3*h*1024 - 65536}")
    k.label("L_ut_done")
    stamp(k, 8)
    wait_edge(k, 1, 36, 32)
    stamp(k, 9)
    vm.n = 0
    oid = []
    for i in range(8):
        if i:
            k("s_add_u32 m0, m0, 4096")
            k("s_add_u32 s47, s47, 4096")
        oid.append(vm.op(f"buffer_load_dwordx4 v2, s[24:27], s47 offen {FL} lds"))
    AC, OFR = 20, 60
    chunks = [(0, 8), (8, 20), (20, 32)]
    for (c0, c1) in chunks:
        vm.wait(oid[c1 // 4 - 1])
        k("s_barrier")
        n = c1 - c0
        ahead = 6
        for s in range(c0, min(c1, c0 + ahead)):
            k(lds_rd(f"v[{OFR+4*(s%8)}:{OFR+4*(s%8)+3}]", LDS_OST + s * 1024))
        for s in range(c0, c1):
            issued = min(c1, s + ahead)
            k(f"s_waitcnt lgkmcnt({issued - 1 - s})")
            c = "0" if s == 0 else f"v[{AC}:{AC+15}]"
            k(f"v_mfma_f32_32x32x16_bf16 v[{AC}:{AC+15}], {wo_reg(s)}, v[{OFR+4*(s%8)}:{OFR+4*(s%8)+3}], {c}")
            if s + ahead < c1:
                s2 = s + ahead
                k(lds_rd(f"v[{OFR+4*(s2%8)}:{OFR+4*(s2%8)+3}]", LDS_OST + s2 * 1024))
    k("s_nop 11")
    stamp(k, 20)
    for i in range(8):
        k(f"v_pk_fma_f32 v[{AC+2*i}:{AC+2*i+1}], v[{GA+2*i}:{GA+2*i+1}], v[{AC+2*i}:{AC+2*i+1}], v[{XU+2*i}:{XU+2*i+1}]")
    for i in range(8):
        k(f"v_pk_mul_f32 v[{A2+2*i}:{A2+2*i+1}], v[{A2+2*i}:{A2+2*i+1}], v[{AC+2*i}:{AC+2*i+1}]")
    for i in range(8):
        k(f"v_cvt_pk_bf16_f32 v{60+i}, v{A2+2*i}, v{A2+2*i+1}")
    dual_begin(k)
    k(f"buffer_store_dwordx4 v[60:63], v12, s[24:27], s45 offen {DF}")
    k(f"buffer_store_dwordx4 v[64:67], v12, s[24:27], s45 offen offset:512 {DF}")
    k(f"v_pk_add_f32 v[14:15], v[{AC}:{AC+1}], v[{AC+2}:{AC+3}]")
    k(f"v_pk_mul_f32 v[16:17], v[{AC}:{AC+1}], v[{AC}:{AC+1}]")
    for i in range(1, 8):
        if i >= 2:
            k(f"v_pk_add_f32 v[14:15], v[14:15], v[{AC+2*i}:{AC+2*i+1}]")
        k(f"v_pk_fma_f32 v[16:17], v[{AC+2*i}:{AC+2*i+1}], v[{AC+2*i}:{AC+2*i+1}], v[16:17]")
    k("v_add_f32 v14, v14, v15")
    k("v_add_f32 v15, v16, v17")
    k("v_mov_b32 v16, v14")
    k("v_mov_b32 v17, v15")
    for i in range(2):
        k(f"v_cvt_pk_bf16_f32 v{68+i}, v{AC+2*i}, v{AC+2*i+1}")
    k("v_permlane32_swap_b32 v16, v14")
    k("v_permlane32_swap_b32 v17, v15")
    k("v_pk_add_f32 v[14:15], v[14:15], v[16:17]")
    k("s_mov_b32 exec_hi, 0")
    k(f"buffer_store_dwordx2 v[14:15], v13, s[24:27], s46 offen {DF}")
    k("s_mov_b32 exec_hi, -1")
    for i in range(2, 8):
        k(f"v_cvt_pk_bf16_f32 v{68+i}, v{AC+2*i}, v{AC+2*i+1}")
    k(f"buffer_store_dwordx4 v[68:71], v12, s[24:27], s44 offen {DF}")
    k(f"buffer_store_dwordx4 v[72:75], v12, s[24:27], s44 offen offset:512 {DF}")
    k("""
    s_lshr_b32 s40, s42, 2          ; E3 group
    s_and_b32 s41, s42, 3
    s_lshl_b32 s41, s41, 2
    s_lshr_b32 s43, s37, 3
    s_add_u32 s41, s41, s43         ; member
    """)
    signal(k, 2, 40, 41, 16, fl=DF)
    dual_end(k, 'e2')
    stamp(k, 10)
    ACC4, WF, ST, SB = 8, 64, 120, 136
    k(f"""
    s_lshl_b32 s40, s36, 1
    s_bfe_u32 s41, s37, 0x10001
    s_add_u32 s40, s40, s41        ; tb4
    s_lshl_b32 s44, s40, 2
    s_add_u32 s44, s44, s3         ; tok32
    s_lshl_b32 s45, s44, 15
    s_add_u32 s45, s45, {OFF_X2S}
    s_add_u32 s46, s45, 16384
    v_and_b32 v3, 15, v1
    v_lshrrev_b32 v152, 4, v1
    v_lshlrev_b32 v153, 3, v3
    v_lshl_add_u32 v153, v152, 10, v153
    s_lshl_b32 s47, s44, 12
    s_add_u32 s47, s47, {OFF_ST2}
    s_mul_i32 s42, s44, {112*1024}
    s_mul_i32 s43, s57, {7*1024}
    s_add_u32 s42, s42, s43
    s_add_u32 s42, s42, {OFF_H}
    s_add_u32 s43, s42, 4096
    """)
    def wread(s):
        f = WF + 28 * (s & 1)
        return [lds_rd(f"v[{f+4*i}:{f+4*i+3}]", w1_lds(s * 7 + i)) for i in range(7)]
    for x in wread(0): k(x)
    wait_edge(k, 2, 40, 16)
    wbl2(k, "a")
    stamp(k, 11)
    vm.n = 0
    xid = []
    def xload():
        s = len(xid)
        if s >= 16:
            return
        if s and s % 4 == 0:
            k("s_add_u32 s45, s45, 4096")
            k("s_add_u32 s46, s46, 4096")
        vm.op(f"buffer_load_dwordx4 {wo_reg(2*s)}, v2, s[24:27], s45 offen offset:{(s%4)*1024} {FL}")
        xid.append(vm.op(f"buffer_load_dwordx4 {wo_reg(2*s+1)}, v2, s[24:27], s46 offen offset:{(s%4)*1024} {FL}"))
    for s in range(int(os.environ.get("P4D", "6"))):
        xload()
    stl = [f"buffer_load_dwordx2 v[{ST+8*j+2*pp}:{ST+8*j+2*pp+1}], v153, s[24:27], s47 offen offset:{256*pp+128*j} {FL}"
           for j in range(2) for pp in range(4)]
    class L(list):
        def __call__(self, text):
            for l in text.strip("\n").split("\n"):
                if l.strip():
                    self.append(l.strip())
    fill = L()
    for j in range(2):
        b = ST + 8 * j
        fill(f"v_pk_add_f32 v[{b}:{b+1}], v[{b}:{b+1}], v[{b+2}:{b+3}]")
        fill(f"v_pk_add_f32 v[{b+4}:{b+5}], v[{b+4}:{b+5}], v[{b+6}:{b+7}]")
        fill(f"v_pk_add_f32 v[{b}:{b+1}], v[{b}:{b+1}], v[{b+4}:{b+5}]")
    regs = [ST, ST + 1, ST + 8, ST + 9]
    tmp = [ST + 2, ST + 3, ST + 10, ST + 11]
    for op in ("v_permlane16_swap_b32", "v_permlane32_swap_b32"):
        for r, t in zip(regs, tmp):
            fill(f"v_mov_b32 v{t}, v{r}")
        fill("s_nop 1")
        for r, t in zip(regs, tmp):
            fill(f"{op} v{t}, v{r}")
        for r, t in zip(regs, tmp):
            fill(f"v_add_f32 v{r}, v{t}, v{r}")
    for j in range(2):
        b = ST + 8 * j
        ln_stats_finish(fill, b, b + 1, b + 4, b + 5, None, std_out=b + 6)
        fill(f"v_cvt_pk_bf16_f32 v{SB+4*j}, -v{b+4}, -v{b+4}")
        fill(f"v_cvt_pk_bf16_f32 v{SB+4*j+1}, v{b+6}, v{b+6}")
        fill(f"v_mov_b32 v{SB+4*j+2}, 0")
        fill(f"v_mov_b32 v{SB+4*j+3}, 0")
    fill(f"""
    v_lshlrev_b32 v154, 2, v3
    s_lshl_b32 s41, s3, 7
    v_add_u32 v154, s41, v154
    v_add_u32 v154, {LDS_R}, v154
    """)
    for s in range(17):
        nxt = wread(s + 1) if s < 16 else []
        k((vm.wait_str(xid[s]) if s < 16 else "s_waitcnt") + " lgkmcnt(0)")
        if s == 9:
            vm.wait(sid)
        f = WF + 28 * (s & 1)
        n = 0
        for i in range(7):
            for j in range(2):
                a = ACC4 + 4 * (j * 7 + i)
                c = "0" if s == 0 else f"v[{a}:{a+3}]"
                bop = wo_reg(2 * s + j) if s < 16 else f"v[{SB+4*j}:{SB+4*j+3}]"
                k(f"v_mfma_f32_16x16x32_bf16 v[{a}:{a+3}], v[{f+4*i}:{f+4*i+3}], {bop}, {c}")
                if nxt:
                    k(nxt.pop(0))
                elif n == 8:
                    xload()
                elif n in (10, 12) and stl:
                    sid = vm.op(stl.pop(0))
                if s >= 9 and fill:
                    k(fill.pop(0))
                n += 1
    assert not fill
    stamp(k, 12)
    dual_begin(k)
    k(f"ds_write_b32 v154, v{ST+5}")
    k(f"ds_write_b32 v154, v{ST+13} offset:64")
    for i in range(7):
        t = WF + 4 * i
        for j in range(2):
            a = ACC4 + 4 * (j * 7 + i)
            k(f"v_cvt_pk_bf16_f32 v{t+2*j}, v{a}, v{a+1}")
            k(f"v_cvt_pk_bf16_f32 v{t+2*j+1}, v{a+2}, v{a+3}")
        for q in range(4):
            k(f"v_pk_max_i16 v{t+q}, v{t+q}, 0")
        if i:
            tp = WF + 4 * (i - 1)
            k(f"v_permlane16_swap_b32 v{tp}, v{tp+2}")
            k(f"v_permlane16_swap_b32 v{tp+1}, v{tp+3}")
            k(f"buffer_store_dwordx4 v[{tp}:{tp+3}], v2, s[24:27], s{42 if i-1 < 4 else 43} offen offset:{((i-1)%4)*1024} {DF}")
    tp = WF + 24
    k("s_nop 1")
    k(f"v_permlane16_swap_b32 v{tp}, v{tp+2}")
    k(f"v_permlane16_swap_b32 v{tp+1}, v{tp+3}")
    k(f"buffer_store_dwordx4 v[{tp}:{tp+3}], v2, s[24:27], s43 offen offset:2048 {DF}")
    ACC5, RB, DEPTH = 8, 72, 19
    G5, X5, R5 = 224, 240, 248
    k(f"""
    s_lshl_b32 s58, s36, 2
    s_and_b32 s59, s37, 3
    s_add_u32 s58, s58, s59         ; tb5
    s_lshl_b32 s58, s58, 1
    s_and_b32 s59, s3, 1
    s_add_u32 s58, s58, s59
    s_xor_b32 s59, s58, 1
    s_mul_i32 s44, s58, {112*1024}
    s_mul_i32 s45, s59, {112*1024}
    s_mul_i32 s46, s3, {28*1024}
    s_add_u32 s46, s46, {OFF_H}
    s_add_u32 s44, s44, s46
    s_add_u32 s45, s45, s46
    v_lshrrev_b32 v250, 5, v1
    v_and_b32 v251, 31, v1
    v_lshlrev_b32 v252, 4, v250
    s_and_b32 s46, s52, 7
    s_lshl_b32 s46, s46, 7
    s_add_u32 s46, s46, {LDS_VEC + 1024}
    v_add_u32 v252, s46, v252
    v_lshrrev_b32 v253, 4, v251
    v_lshlrev_b32 v253, 14, v253
    v_and_b32 v254, 15, v251
    v_lshl_add_u32 v253, v254, 4, v253
    v_lshl_add_u32 v253, v250, 8, v253
    s_lshl_b32 s47, s58, 15
    s_lshl_b32 s50, s52, 10
    s_add_u32 s47, s47, s50
    s_add_u32 s47, s47, {OFF_X2}
    s_and_b32 s50, s58, 3
    s_lshl_b32 s50, s50, 7
    s_add_u32 s50, s50, {LDS_R}
    v_lshlrev_b32 v254, 2, v251
    v_add_u32 v254, s50, v254
    """)
    for j in range(4):
        k(f"ds_read_b128 v[{G5+4*j}:{G5+4*j+3}], v252 offset:{32*j}")
    k(f"buffer_load_dwordx4 v[{X5}:{X5+3}], v253, s[24:27], s47 offen {FL}")
    k(f"buffer_load_dwordx4 v[{X5+4}:{X5+7}], v253, s[24:27], s47 offen offset:512 {FL}")
    k(f"""
    v_lshlrev_b32 v253, 10, v251
    v_lshl_add_u32 v253, v250, 4, v253
    s_lshl_b32 s47, s58, 15
    s_lshl_b32 s50, s52, 6
    s_add_u32 s47, s47, s50
    """)
    stamp(k, 13)
    signal(k, 3, 40, 57, 16, nafter=2, fl=DF)
    dual_end(k, 'e3')
    stamp(k, 14)
    k(f"ds_read_b32 v{R5}, v254")
    k("s_waitcnt lgkmcnt(0)")
    for i in range(16):
        k(f"v_mul_f32 v{G5+i}, v{R5}, v{G5+i}")
    stamp(k, 15)
    wait_edge(k, 3, 40, 16)
    wbl2(k, "b")
    stamp(k, 16)
    vm.n = 0
    hid = []
    def hload():
        s = len(hid)
        if s >= 28:
            return
        r = RB + 8 * (s % DEPTH)
        if s and s % 4 == 0:
            k("s_add_u32 s44, s44, 4096")
            k("s_add_u32 s45, s45, 4096")
        vm.op(f"buffer_load_dwordx4 v[{r}:{r+3}], v2, s[24:27], s44 offen offset:{(s%4)*1024} {FL}")
        hid.append(vm.op(f"buffer_load_dwordx4 v[{r+4}:{r+7}], v2, s[24:27], s45 offen offset:{(s%4)*1024} {FL}"))
    for s in range(int(os.environ.get("P5D", "8"))):
        hload()
    for s in range(28):
        vm.wait(hid[s])
        r = RB + 8 * (s % DEPTH)
        A0, A1 = f"a[{8*s}:{8*s+3}]", f"a[{8*s+4}:{8*s+7}]"
        B0, B1 = f"v[{r}:{r+3}]", f"v[{r+4}:{r+7}]"
        for t, (a, b) in enumerate(((A0, B0), (A0, B1), (A1, B0), (A1, B1))):
            acc = ACC5 + 16 * t
            c = "0" if s == 0 else f"v[{acc}:{acc+15}]"
            k(f"v_mfma_f32_32x32x16_bf16 v[{acc}:{acc+15}], {a}, {b}, {c}")
            if t == 0:
                hload()
    XU5, TMP5 = 72, 88
    stamp(k, 17)
    for t in (1, 2, 3):
        k(f"""
        s_xor_b32 s56, s3, {t}
        s_mul_i32 s56, s56, 12288
        s_add_u32 s56, s56, {(t-1)*4096}
        v_add_u32 v{3+t}, s56, v2
        """)
    for t in (1, 2, 3):
        for q in range(4):
            k(f"ds_write_b128 v{3+t}, v[{ACC5+16*t+4*q}:{ACC5+16*t+4*q+3}] offset:{q*1024}")
    for i in range(8):
        k(f"v_lshlrev_b32 v{XU5+2*i}, 16, v{X5+i}")
        k(f"v_and_b32 v{XU5+2*i+1}, 0xffff0000, v{X5+i}")
    k(f"""
    s_mul_i32 s56, s3, 12288
    v_add_u32 v3, s56, v2
    s_waitcnt lgkmcnt(0)
    s_barrier
    """)
    for i in range(12):
        k(f"ds_read_b128 v[{TMP5+4*i}:{TMP5+4*i+3}], v3 offset:{i*1024}")
    for sl in range(3):
        k(f"s_waitcnt lgkmcnt({8-4*sl})")
        for i in range(8):
            k(f"v_pk_add_f32 v[{ACC5+2*i}:{ACC5+2*i+1}], v[{ACC5+2*i}:{ACC5+2*i+1}], v[{TMP5+16*sl+2*i}:{TMP5+16*sl+2*i+1}]")
    stamp(k, 18)
    for i in range(8):
        k(f"v_pk_fma_f32 v[{ACC5+2*i}:{ACC5+2*i+1}], v[{G5+2*i}:{G5+2*i+1}], v[{ACC5+2*i}:{ACC5+2*i+1}], v[{XU5+2*i}:{XU5+2*i+1}]")
    for i in range(8):
        k(f"v_cvt_pk_bf16_f32 v{TMP5+i}, v{ACC5+2*i}, v{ACC5+2*i+1}")
    k("s_nop 0")
    for p in range(2):
        t = TMP5 + 4 * p
        k(f"v_permlane32_swap_b32 v{t}, v{t+2}")
        k(f"v_permlane32_swap_b32 v{t+1}, v{t+3}")
        k(f"buffer_store_dwordx4 v[{t}:{t+3}], v253, s[32:35], s47 offen offset:{32*p} {os.environ.get('OUTFL', '')}")
    endpgm(k)
    k.label("L_att_fallback")
    k(f"""
    s_mov_b32 s42, 0
    s_mov_b32 s43, s47
    v_mov_b32 v6, 0xff800000
    v_mov_b32 v7, 0xff800000
    """)
    k.label("L_att_maxloop")
    k(f"""
    buffer_load_dwordx4 v[{KF}:{KF+3}], v2, s[24:27], s43 offen {FL}
    s_add_u32 s43, s43, 2048
    s_waitcnt vmcnt(0)
    v_mfma_f32_32x32x16_bf16 v[{S}:{S+15}], v[{KF}:{KF+3}], v[{Q}:{Q+3}], 0
    v_mfma_f32_32x32x16_bf16 v[{S+16}:{S+31}], v[{KF}:{KF+3}], v[{Q+4}:{Q+7}], 0
    s_nop 10
    """)
    att_max16(k, 6, S, False)
    att_max16(k, 7, S + 16, False)
    k(f"""
    s_add_u32 s42, s42, 1
    s_cmp_lt_u32 s42, 64
    s_cbranch_scc1 L_att_maxloop
    s_nop 0
    v_permlane32_swap_b32 v6, v7
    v_max_f32 v6, v6, v7
    v_mov_b32 v7, v6
    s_nop 1
    v_permlane32_swap_b32 v6, v7
    v_sub_f32 v6, 0, v6
    v_sub_f32 v7, 0, v7
    """)
    for i in range(16):
        k(f"v_mov_b32 v{C+i}, v6")
        k(f"v_mov_b32 v{C+16+i}, v7")
        k(f"v_mov_b32 v{O+i}, 0")
        k(f"v_mov_b32 v{O+16+i}, 0")
    k("s_mov_b32 s42, 0")
    k("s_mov_b32 s43, s47")
    k.label("L_att_redo")
    k(f"""
    buffer_load_dwordx4 v[{KF}:{KF+3}], v2, s[24:27], s43 offen {FL}
    s_mov_b64 exec, s[48:49]
    buffer_load_dwordx4 v[{VF}:{VF+3}], v3, s[24:27], s43 offen offset:1024 {FL}
    buffer_load_dwordx4 v[{VF+4}:{VF+7}], v3, s[24:27], s43 offen offset:1536 {FL}
    s_mov_b64 exec, -1
    s_add_u32 s43, s43, 2048
    s_waitcnt vmcnt(0)
    v_mfma_f32_32x32x16_bf16 v[{S}:{S+15}], v[{KF}:{KF+3}], v[{Q}:{Q+3}], v[{C}:{C+15}]
    v_mfma_f32_32x32x16_bf16 v[{S+16}:{S+31}], v[{KF}:{KF+3}], v[{Q+4}:{Q+7}], v[{C+16}:{C+31}]
    s_nop 10
    """)
    for b in range(2):
        for i in range(16):
            k(f"v_exp_f32 v{S+16*b+i}, v{S+16*b+i}")
        k("s_nop 0")
        for j in range(8):
            k(f"v_cvt_pk_bf16_f32 v{P+j}, v{S+16*b+2*j}, v{S+16*b+2*j+1}")
        k("s_nop 1")
        for h in range(2):
            k(f"v_mfma_f32_32x32x16_bf16 v[{O+16*b}:{O+16*b+15}], v[{VF+4*h}:{VF+4*h+3}], v[{P+4*h}:{P+4*h+3}], v[{O+16*b}:{O+16*b+15}]")
    k(f"""
    s_add_u32 s42, s42, 1
    s_cmp_lt_u32 s42, 64
    s_cbranch_scc1 L_att_redo
    s_nop 10
    s_branch L_att_fin
    """)
    k.label("L_xid_retry")
    k(f"""
    s_mov_b32 s39, 0x400000
    s_mov_b32 s53, {OFF_XID}
    """)
    k.label("L_xid_spin")
    k(f"""
    buffer_load_dwordx4 v[150:153], v2, s[24:27], s53 offen {FL}
    buffer_load_dwordx4 v[154:157], v2, s[24:27], s53 offen offset:32 {FL}
    s_sub_u32 s39, s39, 1
    s_waitcnt vmcnt(0)
    v_min_u32 v158, v150, v151
    v_min_u32 v159, v152, v153
    v_min_u32 v158, v158, v159
    v_xor_b32 v154, v154, v150
    v_xor_b32 v155, v155, v151
    v_cmp_eq_u32 vcc, 0, v158
    v_xor_b32 v156, v156, v152
    v_xor_b32 v157, v157, v153
    s_cbranch_scc1 L_xid_ok
    s_cbranch_vccnz L_xid_spin
    s_branch L_xid_ok
    """)
    for blk in OOL:
        k.lines += blk
    k.label(f"L_end_{k.name}")
    k("s_endpgm")
    k(".fill (65536 + L_pc_here - .) / 4 + 64, 4, 0xbf810000")
    return k, (256, 256, 163840)


def build(path=OUT):
    ks = [G.k0(), mega()]
    errs = []
    for k, _ in ks:
        errs += k.check()
    for e in errs:
        print(e)
    ref = open(OUT + ".ref").read().split("\n")
    hdr = [l for l in ref if l.startswith(";") and "@launch" not in l and "Override" not in l and "grid=ceil" not in l]
    out = "\n".join(hdr) + "\n"
    for k, (g, b, lds) in ks:
        out += f"; @launch kernel={k.name} grid=({g},1,1) block=({b},1,1) lds={lds}\n"
    out += '.amdgcn_target "amdgcn-amd-amdhsa--gfx950"\n'
    codes, kds = zip(*[k.text() for k, _ in ks])
    out += "".join(codes)
    out += '.section .rodata,"a"\n' + "".join(kds)
    open(path, "w").write(out)
    print("wrote", path, len(out), "bytes;", len(errs), "checker errors")
    return len(errs)


if __name__ == "__main__":
    sys.exit(1 if build(sys.argv[1] if len(sys.argv) > 1 else OUT) else 0)
```

```python
import re

REG_RE = re.compile(r"^(-|\|)?(abs\()?([vas])(\d+)\)?\|?$")
RNG_RE = re.compile(r"^(-)?([vas])\[(\d+):(\d+)\]$")

TRANS = ("v_exp_f32", "v_log_f32", "v_rcp_f32", "v_rsq_f32", "v_sqrt_f32", "v_sin_f32", "v_cos_f32", "v_rcp_iflag_f32")


def parse_regs(op):
    op = op.strip()
    m = REG_RE.match(op)
    if m:
        return {(m.group(3), int(m.group(4)))}
    m = RNG_RE.match(op)
    if m:
        return {(m.group(2), i) for i in range(int(m.group(3)), int(m.group(4)) + 1)}
    if op == "vcc":
        return {("s", 106), ("s", 107)}
    if op == "exec":
        return {("s", 126), ("s", 127)}
    if op == "m0":
        return {("s", 124)}
    return set()


def split_ops(rest):
    ops, depth, cur = [], 0, ""
    for ch in rest:
        if ch in "[(":
            depth += 1
        if ch in "])":
            depth -= 1
        if ch == "," and depth == 0:
            ops.append(cur.strip())
            cur = ""
        else:
            cur += ch
    if cur.strip():
        ops.append(cur.strip())
    return ops


class Ins:
    def __init__(self, text):
        self.text = text
        t = text.split(";")[0].strip()
        parts = t.split(None, 1)
        self.mn = parts[0]
        rest = parts[1] if len(parts) > 1 else ""
        ops = split_ops(rest)
        self.mods = ""
        if ops:
            last = ops[-1].split()
            if len(last) > 1 and not self.mn.startswith("s_waitcnt"):
                ops[-1] = last[0]
                self.mods = " ".join(last[1:])
        self.ops = ops
        mn = self.mn
        self.w = set(); self.r = set()
        self.kind = "other"
        self.A = self.B = self.C = set()
        self.passes = 0
        R = [parse_regs(o) for o in ops]
        if mn.startswith("v_mfma"):
            self.kind = "mfma"
            self.w = R[0]; self.A = R[1]; self.B = R[2]; self.C = R[3]
            self.r = R[1] | R[2] | R[3]
            self.passes = 8 if "32x32" in mn else 4
        elif mn.startswith("v_"):
            self.kind = "valu"
            self.w = set(R[0])
            for x in R[1:]:
                self.r |= x
            if mn.startswith("v_permlane"):
                self.w |= R[1]; self.r |= R[0]
            if mn.startswith(("v_fmac", "v_dot2c", "v_pk_fmac")) or "UNUSED_PRESERVE" in self.mods or "dpp" in mn or "row_" in self.mods:
                self.r |= R[0]
            if mn.startswith(("v_add_co", "v_sub_co", "v_addc_co", "v_subb_co")):
                self.w |= R[1]; self.r -= R[1]
                if mn.startswith(("v_addc", "v_subb")):
                    self.r |= R[-1]
            if mn.startswith("v_cmpx"):
                self.w |= parse_regs("exec")
        elif mn.startswith("ds_read") or mn.startswith("ds_bpermute") or mn.startswith("ds_swizzle"):
            self.kind = "ds"; self.w = R[0]
            for x in R[1:]:
                self.r |= x
        elif mn.startswith("ds_"):
            self.kind = "ds"
            for x in R:
                self.r |= x
        elif mn.startswith(("buffer_load", "global_load")):
            self.kind = "vmem"
            if "lds" in self.mods.split() or "_lds_" in mn:
                for x in R:
                    self.r |= x
                self.r |= parse_regs("m0")
                self.dma = True
            else:
                self.w = R[0]
                for x in R[1:]:
                    self.r |= x
        elif mn.startswith(("buffer_store", "global_store", "buffer_atomic", "global_atomic")):
            self.kind = "vmem"
            for x in R:
                self.r |= x
            self.store = True
            self.data = R[0] if mn.startswith("buffer") else R[1]
            if "atomic" in mn and "sc0" in self.mods.split():
                self.w = set(R[0])
        elif mn.startswith(("buffer_wbl2", "buffer_inv")):
            self.kind = "vmem"
        elif mn.startswith(("s_load", "s_memtime", "s_memrealtime", "s_buffer_load")):
            self.kind = "smem"; self.w = R[0]
            for x in R[1:]:
                self.r |= x
        elif mn.startswith("s_"):
            self.kind = "salu"
            if mn.startswith(("s_cmp", "s_cbranch", "s_branch", "s_waitcnt", "s_nop", "s_barrier", "s_endpgm", "s_setprio", "s_sleep", "s_bitcmp")):
                for x in R:
                    self.r |= x
            else:
                self.w = set(R[0]) if R else set()
                for x in R[1:]:
                    self.r |= x
                if "saveexec" in mn:
                    self.w |= parse_regs("exec")
        self.trans = mn.replace("_e32", "").replace("_e64", "") in TRANS
        self.slots = 1
        if mn == "s_nop":
            self.slots = int(ops[0], 0) + 1
        self.dpp = ("row_" in self.mods) or ("quad_perm" in self.mods) or mn.endswith("_dpp")
        self.sdwa = mn.endswith("_sdwa")


def vg(s):
    return {x for x in s if x[0] in "va"}


def sg(s):
    return {x for x in s if x[0] == "s"}


def check_trace(lines, name=""):
    ins = [Ins(l) for l in lines]
    errs = []
    for i, c in enumerate(ins):
        dist = 0
        for j in range(i - 1, max(-1, i - 24), -1):
            p = ins[j]
            need = 0
            why = ""
            if p.kind == "valu":
                wv = vg(p.w); ws = sg(p.w)
                if c.kind == "mfma" and wv & c.r:
                    need, why = 2, "valu->mfma"
                if p.trans and c.kind == "valu" and not c.trans and wv & (c.r):
                    need, why = max(need, 1), "trans->valu"
                if p.sdwa and c.kind in ("valu", "mfma") and wv & (c.r | c.w):
                    need, why = max(need, 1), "sdwa->valu"
                if c.kind == "valu" and c.mn.startswith(("v_readlane", "v_readfirstlane")) and wv & c.r:
                    need, why = max(need, 1), "valu->readlane"
                if c.kind == "valu" and c.mn.startswith("v_permlane") and wv & c.r:
                    need, why = max(need, 2), "valu->permlane"
                if c.kind == "valu" and c.dpp and wv & c.r:
                    need, why = max(need, 2), "valu->dpp"
                if ws and c.kind == "vmem" and ws & c.r:
                    need, why = max(need, 5), "valu sgpr->vmem"
                if ws and c.kind == "valu" and ws & c.r:
                    need, why = max(need, 2), "valu sgpr->valu"
                    if c.mn.startswith(("v_readlane", "v_writelane")):
                        need = 4
                if ws and c.kind == "valu" and c.mn.startswith("v_cndmask") and len(c.ops) == 3 and ws & parse_regs("vcc"):
                    need, why = max(need, 2), "vcc->cndmask"
                if ws & parse_regs("exec") and c.kind == "mfma":
                    need, why = max(need, 4), "valu exec->mfma"
            if p.kind == "mfma":
                big = 12 if p.passes == 8 else 8
                if c.kind == "mfma":
                    if p.w & (c.A | c.B):
                        need, why = big, "mfma D->mfma AB"
                    elif p.w & c.C:
                        if not (p.w == c.C and p.passes == c.passes):
                            need, why = (10 if p.passes == 8 else 6), "mfma D->mfma C overlap"
                    elif p.w & c.w:
                        need, why = (10 if p.passes == 8 else 6), "mfma D->mfma D waw"
                elif c.kind in ("valu", "vmem", "ds"):
                    if p.w & (c.r | c.w):
                        need, why = big, "mfma D->valu/mem"
                    if c.kind == "valu" and p.C & c.w:
                        need, why = max(need, 7 if p.passes == 8 else 3), "mfma C war"
            if p.kind == "salu" and ("s", 124) in p.w and c.kind == "vmem" and ("s", 124) in c.r:
                need, why = max(need, 1), "m0->dma"
            if p.kind == "vmem" and getattr(p, "store", False) and len(p.data) >= 3 and c.kind in ("valu", "mfma") and p.data & c.w:
                need, why = max(need, 2), "store data war"
            if need > dist:
                errs.append(f"[{name}] hazard {why}: need {need} have {dist}:\n    {p.text}\n    {c.text}")
            dist += p.slots
    vm = []
    lg = []
    for c in ins:
        if c.mn == "s_waitcnt":
            m = re.search(r"vmcnt\((\d+)\)", c.text)
            if m:
                n = int(m.group(1))
                assert n <= 63
                while len(vm) > n:
                    vm.pop(0)
            m = re.search(r"lgkmcnt\((\d+)\)", c.text)
            if m:
                n = int(m.group(1))
                assert n <= 15
                if n > 0 and any(k == "smem" for _, _, k in lg):
                    errs.append(f"[{name}] counted lgkmcnt with smem outstanding: {c.text}")
                while len(lg) > n:
                    lg.pop(0)
            continue
        touched = c.r | c.w
        for d, t in vm:
            if d & touched:
                errs.append(f"[{name}] vmcnt: unresolved load\n    {t}\n    {c.text}")
        for d, t, k in lg:
            if d & touched:
                errs.append(f"[{name}] lgkmcnt: unresolved load\n    {t}\n    {c.text}")
        if c.kind == "vmem":
            vm.append((set(c.w), c.text))
        elif c.kind in ("ds", "smem"):
            lg.append((set(c.w), c.text, c.kind))
    return errs


class Kern:
    def __init__(self, name, nvgpr, nagpr=0, nsgpr=100):
        self.name = name
        self.lines = []
        self.nvgpr = nvgpr
        self.nagpr = nagpr
        self.nsgpr = nsgpr

    def __call__(self, text):
        for l in text.strip("\n").split("\n"):
            l = l.strip()
            if l:
                self.lines.append(l)

    def label(self, l):
        self.lines.append(f"{l}:")

    def text(self):
        acc = (self.nvgpr + 3) // 4 * 4
        total = acc + self.nagpr if self.nagpr else self.nvgpr
        body = "\n".join(("" if l.endswith(":") else "    ") + l for l in self.lines)
        code = f""".text
.globl {self.name}
.p2align 8
.type {self.name},@function
{self.name}:
{body}
"""
        kd = f""".p2align 6
.amdhsa_kernel {self.name}
  .amdhsa_next_free_vgpr {total}
  .amdhsa_next_free_sgpr {self.nsgpr}
  .amdhsa_accum_offset {acc}
  .amdhsa_group_segment_fixed_size 0
  .amdhsa_kernarg_size 88
  .amdhsa_user_sgpr_count 2
  .amdhsa_user_sgpr_kernarg_segment_ptr 1
  .amdhsa_system_sgpr_workgroup_id_x 1
.end_amdhsa_kernel
"""
        return code, kd

    def traces(self, maxloop=2, maxpaths=400):
        lines = [l for l in self.lines if not l.startswith(";") and not l.startswith(".")]
        labels = {l[:-1]: i for i, l in enumerate(lines) if l.endswith(":")}
        paths = []
        stack = [(0, [], {})]
        pushed = set()
        while stack and len(paths) < maxpaths:
            pc, tr, cnt = stack.pop()
            tr = list(tr)
            while True:
                if pc >= len(lines):
                    paths.append(tr); break
                l = lines[pc]
                if l.endswith(":"):
                    pc += 1; continue
                tr.append(l)
                mn = l.split()[0]
                if mn == "s_endpgm":
                    paths.append(tr); break
                if mn == "s_branch":
                    tgt = labels[l.split()[1]]
                    if tgt <= pc:
                        c = cnt.get(pc, 0)
                        if c >= maxloop - 1:
                            paths.append(tr); break
                        cnt = dict(cnt); cnt[pc] = c + 1
                    pc = tgt; continue
                if mn.startswith("s_cbranch"):
                    tgt = labels[l.split()[1]]
                    if tgt <= pc:
                        c = cnt.get(pc, 0)
                        if c < maxloop - 1:
                            if ("b", pc) not in pushed:
                                pushed.add(("b", pc))
                                c2 = dict(cnt); c2[pc] = maxloop
                                stack.append((pc + 1, list(tr), c2))
                            cnt = dict(cnt); cnt[pc] = c + 1
                            pc = tgt; continue
                        pc += 1; continue
                    if pc not in pushed:
                        pushed.add(pc)
                        stack.append((tgt, list(tr), dict(cnt)))
                    pc += 1; continue
                pc += 1
        return paths

    def check(self):
        errs = []
        seen = set()
        for tr in self.traces():
            for e in check_trace(tr, self.name):
                if e not in seen:
                    seen.add(e); errs.append(e)
        for l in self.lines:
            for m in re.finditer(r"\b([vas])(\d+)\b|\b([vas])\[(\d+):(\d+)\]", l.split(";")[0]):
                k = m.group(1) or m.group(3)
                hi = int(m.group(2)) if m.group(2) else int(m.group(5))
                lim = {"v": self.nvgpr, "a": self.nagpr, "s": self.nsgpr}[k]
                if hi >= lim:
                    errs.append(f"[{self.name}] reg out of range: {l}")
        return errs
```

```python
import sys, os
sys.path.insert(0, "gen")
from asmlib import Kern
import gen as G
from gen import (MB, OFF_MOD, OFF_XHAT, OFF_WQKV, OFF_Q, OFF_KV, OFF_O, OFF_WO, OFF_X2, OFF_X2S, OFF_ST2, OFF_W1,
                 OFF_H, OFF_W2, QSCALE, P_X, P_WQKV, P_WO, P_W1, P_W2, P_C, P_WMOD, P_OUT, P_WS, srd, stamp, endpgm,
                 prologue, prologue_wait, epilogue, bf16_round, ln_stats_finish, role_ln, role_relayout, ATT, att_unit,
                 att_max16, NAME, OUT, DIAG)

OFF_MODB = 0x3000
OFF_FLAG = G.OFF_FLAG
FL = "sc1"
DF = "@DF@"
S_FAST = 98
OFF_XID = G.OFF_XID
OOL = []


def dual_begin(k):
    k._dual = len(k.lines)


def dual_end(k, tag):
    body = k.lines[k._dual:]
    del k.lines[k._dual:]
    import re
    labs = [l[:-1] for l in body if l.endswith(":")]
    def variant(fl, suffix):
        out = []
        for l in body:
            l = l.replace(DF, fl).rstrip()
            for lab in labs:
                l = re.sub(rf"\b{lab}\b", lab + suffix, l)
            out.append(l)
        return out
    if tag not in os.environ.get("FAST", "none").split(","):
        k.lines += variant("sc1", "_s")
        return
    k(f"s_cmp_eq_u32 s{S_FAST}, 0")
    k(f"s_cbranch_scc1 L_slow_{tag}")
    k.lines += variant("", "_f")
    k.label(f"L_join_{tag}")
    OOL.append([f"L_slow_{tag}:"] + variant("sc1", "_s") + [f"s_branch L_join_{tag}"])


class VM:
    def __init__(self, k):
        self.k = k; self.n = 0
    def op(self, text=None):
        if text:
            self.k(text)
        self.n += 1
        return self.n
    def tick(self):
        self.n += 1
        return self.n
    def wait_str(self, idx):
        c = self.n - idx
        return f"s_waitcnt vmcnt({min(c, 63)})"
    def wait(self, idx):
        self.k(self.wait_str(idx))


def signal(k, edge, s_group, s_member, gsize, nafter=0, fl=FL):
    lab = f"L_sig{edge}"
    k(f"""
    s_mul_i32 s38, s{s_group}, {gsize}
    s_add_u32 s38, s38, s{s_member}
    s_lshl_b32 s38, s38, 8
    s_add_u32 s38, s38, {OFF_FLAG + edge * 65536}
    v_mov_b32 v6, 0
    v_mov_b32 v7, 1
    s_waitcnt vmcnt({nafter}) lgkmcnt(0)
    s_barrier
    s_cmp_lg_u32 s3, 0
    s_cbranch_scc1 {lab}
    s_mov_b64 exec, 1
    buffer_store_dword v7, v6, s[24:27], s38 offen {fl}
    s_mov_b64 exec, -1
    """)
    k.label(lab)


def wait_edge(k, edge, s_group, gsize):
    lab = f"L_wait{edge}"
    k(f"""
    s_cmp_lg_u32 s3, 0
    s_cbranch_scc1 {lab}
    s_mul_i32 s38, s{s_group}, {gsize*256}
    s_add_u32 s38, s38, {OFF_FLAG + edge * 65536}
    v_lshlrev_b32 v6, 8, v1
    s_mov_b32 exec_lo, {hex((1 << gsize) - 1)}
    s_mov_b32 exec_hi, 0
    s_mov_b32 s39, 0x40000
    """)
    k.label(f"L_poll{edge}")
    k(f"""
    buffer_load_dword v7, v6, s[24:27], s38 offen {FL}
    s_sub_u32 s39, s39, 1
    s_cbranch_scc1 L_bail{edge}
    s_waitcnt vmcnt(0)
    v_cmp_eq_u32 vcc, 0, v7
    s_cbranch_vccnz L_poll{edge}
    """)
    k.label(f"L_bail{edge}")
    k("s_waitcnt vmcnt(0)")
    k("s_mov_b64 exec, -1")
    k.label(lab)
    k("s_barrier")


def wbl2(k, tag):
    if tag in os.environ.get("WBL2", "").split(","):
        k(f"""
        s_lshl_b32 s38, s37, 2
        s_add_u32 s38, s38, s3
        s_cmp_lg_u32 s38, 1
        s_cbranch_scc1 L_nowb_{tag}
        buffer_wbl2 sc1
        """)
        k.label(f"L_nowb_{tag}")


def wo_reg(s):
    return f"a[{224+4*s}:{227+4*s}]" if s < 8 else f"v[{160+4*(s-8)}:{163+4*(s-8)}]"


def w1_lds(f):
    if f < 28:
        return 131072 + f * 1024
    if f < 112:
        return (f - 28) * 1024
    return LDS_UT + (f - 112) * 1024


LDS_MODB = 156 * 1024
LDS_VEC = 158 * 1024
LDS_OST = 84 * 1024
LDS_UT = 116 * 1024
LDS_R = 125 * 1024


def lds_rd(dst, addr):
    base = (2, 4, 5)[addr >> 16]
    return f"ds_read_b128 {dst}, v{base} offset:{addr & 0xffff}"


class L(list):
    def __call__(self, text):
        for l in text.strip("\n").split("\n"):
            if l.strip():
                self.append(l.strip())


def weave(k, main, side, every):
    n = 0
    for x in main:
        k(x)
        n += 1
        if side and n % every == 0:
            for y in side.pop(0)():
                k(y)


SLOT = (64 * 1024, 112 * 1024, 64 * 1024, 112 * 1024)
LDS_RL = 112 * 1024
LDS_MODS = 128 * 1024
LDS_MRED = 48 * 1024
LDS_SHARE = 52 * 1024
LDS_MRED2 = 159 * 1024
OFF_MODP = 0x4000


def mega():
    k = Kern(NAME + "_kernel", nvgpr=256, nagpr=256, nsgpr=102)
    k.kid = 1
    vm = VM(k)
    if DIAG:
        k("s_memtime s[60:61]")
        k("s_memrealtime s[62:63]")
        for i in range(G.NST):
            k(f"s_mov_b32 s{64+i}, 0")
    k(f"""
    s_cmp_ge_u32 s2, 256
    s_cbranch_scc1 L_end_{k.name}
    s_load_dwordx16 s[4:19], s[0:1], 0
    s_load_dwordx4 s[20:23], s[0:1], 64
    s_load_dwordx2 s[24:25], s[0:1], 80
    v_lshrrev_b32 v2, 6, v0
    v_and_b32 v1, 63, v0
    v_readfirstlane_b32 s3, v2
    s_and_b32 s36, s2, 7
    s_lshr_b32 s37, s2, 3
    v_lshlrev_b32 v2, 4, v1
    s_getpc_b64 s[38:39]
    L_pc_here:
    s_lshl_b32 s98, s37, 2
    s_add_u32 s98, s98, s3
    s_and_b32 s98, s98, 63
    s_lshl_b32 s98, s98, 10
    s_add_u32 s38, s38, s98
    s_addc_u32 s39, s39, 0
    global_load_dwordx4 a[208:211], v2, s[38:39]
    """)
    VA, VB, RAW, XF, FR, ACC = 8, 16, 24, 88, 216, 24
    WM, CC, MA = 8, 12, 16
    k(f"""
    v_lshrrev_b32 v3, 1, v1
    v_lshlrev_b32 v4, 1, v3              ; c voffset: (l>>1)*2
    v_mul_u32_u24 v3, 6144, v3
    v_and_b32 v5, 1, v1
    v_lshl_add_u32 v3, v5, 4, v3
    v_lshrrev_b32 v6, 3, v1              ; r8
    v_and_b32 v7, 7, v1
    v_and_b32 v248, 2, v6
    v_xor_b32 v7, v7, v248
    s_and_b32 s38, s3, 1
    s_lshl_b32 s38, s38, 2
    v_xor_b32 v7, s38, v7
    v_mul_u32_u24 v5, 3072, v6
    v_lshl_add_u32 v5, v7, 4, v5
    s_and_b32 s93, s37, 7
    s_lshl_b32 s93, s93, 1               ; rotW
    s_lshr_b32 s99, s37, 4
    s_lshl_b32 s99, s99, 3
    s_add_u32 s99, s99, s36
    s_lshl_b32 s99, s99, 2
    s_and_b32 s38, s37, 3
    s_add_u32 s99, s99, s38
    s_bfe_u32 s98, s37, 0x20002          ; k split
    s_lshl_b32 s100, s98, 2
    s_add_u32 s100, s100, s3
    s_lshl_b32 s101, s100, 6             ; c soffset
    s_mul_i32 s100, s100, {32*6144}
    s_lshl_b32 s38, s99, 5
    s_add_u32 s100, s100, s38
    v_mov_b32 v248, 0
    v_mov_b32 v249, 0
    v_mov_b32 v250, 0
    v_mov_b32 v251, 0
    s_lshl_b32 s39, s2, 2
    s_add_u32 s39, s39, s3
    s_and_b32 s39, s39, 0x3e3
    s_waitcnt lgkmcnt(0)
    s_mov_b32 s26, {G.WS_USED:#x}
    s_mov_b32 s27, 0x00020000
    s_cmp_lg_u32 s39, 3
    s_cbranch_scc1 L_nozw
    s_cmp_ge_u32 s2, 4
    s_cbranch_scc1 L_zero_flags
    s_lshl_b32 s38, s2, 12
    s_add_u32 s38, s38, {OFF_MODP}
    """)
    for i in range(4):
        k(f"buffer_store_dwordx4 v[248:251], v2, s[24:27], s38 offen offset:{1024*i} {FL}")
    k("s_branch L_nozw")
    k.label("L_zero_flags")
    k(f"""
    s_mov_b32 s38, {OFF_XID}
    buffer_store_dwordx4 v[248:251], v2, s[24:27], s38 offen {FL}
    buffer_store_dwordx4 v[248:251], v2, s[24:27], s38 offen offset:2048 {FL}
    v_lshlrev_b32 v252, 8, v1
    s_lshl_b32 s38, s36, 16
    s_add_u32 s38, s38, {OFF_FLAG - 4*65536}
    """)
    for i in range(4):
        k(f"buffer_store_dword v248, v252, s[24:27], s38 offen {FL}")
        k("s_add_u32 s38, s38, 16384")
    k.label("L_nozw")
    srd(k, 44, P_WMOD, 512 * 3072 * 2)
    srd(k, 56, P_C, 1024)
    srd(k, 28, P_X, 2048 * 1024)
    stamp(k, 0)
    vm.op(f"buffer_load_ushort v{CC}, v4, s[56:59], s101 offen")
    wmid = vm.op(f"buffer_load_dwordx4 v[{WM}:{WM+3}], v3, s[44:47], s100 offen")
    srd(k, 48, 22, 256)
    srd(k, 32, 20, 2048 * 1024)
    k(f"""
    s_lshr_b32 s20, s36, 1
    s_lshl_b32 s20, s20, 3
    s_and_b32 s38, s37, 7
    s_add_u32 s20, s20, s38        ; tb1
    s_and_b32 s21, s36, 1
    s_lshl_b32 s21, s21, 2
    s_lshr_b32 s101, s37, 3        ; rotX
    s_add_u32 s21, s21, s101       ; cb1
    s_lshl_b32 s22, s21, 2
    s_add_u32 s22, s22, s3         ; head
    s_lshl_b32 s38, s20, 16
    s_lshl_b32 s23, s3, 14
    s_add_u32 s38, s38, s23
    """)
    rowid = []
    for g in range(4):
        k(f"s_xor_b32 s23, s101, {g}")
        k("s_lshl_b32 s23, s23, 12")
        k("s_add_u32 s23, s23, s38")
        for i in range(4):
            r = 4 * g + i
            rowid.append(vm.op(f"buffer_load_dwordx4 v[{RAW+4*r}:{RAW+4*r+3}], v2, s[28:31], s23 offen offset:{i*1024}"))
        if g == 0:
            k(f"""
            s_cmp_lg_u32 s39, 3
            s_cbranch_scc1 L_nozp
            s_lshl_b32 s23, s2, 2
            s_add_u32 s100, s23, 112
            s_cmp_ge_u32 s2, 4
            s_cselect_b32 s23, s100, s23
            v_mov_b32 v249, 1
            s_mov_b64 exec, 1
            s_waitcnt vmcnt(6)
            buffer_store_dword v249, v248, s[48:51], s23 offen {FL}
            s_mov_b64 exec, -1
            L_nozp:
            """)
    srd(k, 40, P_WQKV, 512 * 1536 * 2)
    k(f"""
    s_cmp_lt_u32 s2, 32
    s_cselect_b32 s52, s{P_WO}, s{P_W1}
    s_cselect_b32 s53, s{P_WO+1}, s{P_W1+1}
    s_mov_b32 s54, {512*1792*2:#x}
    s_cselect_b32 s54, {512*512*2:#x}, s54
    s_cmp_ge_u32 s2, 144
    s_cselect_b32 s52, s{P_W2}, s52
    s_cselect_b32 s53, s{P_W2+1}, s53
    s_mov_b32 s55, 0x00020000
    s_lshl_b32 s23, s21, 7
    s_mul_i32 s38, s3, {8*3072}
    s_add_u32 s23, s23, s38
    s_mul_i32 s100, s3, 3072
    """)
    stamp(k, 1)
    wd = {}
    def wdma(s):
        base = SLOT[s // 4] + (s % 4) * 12288
        def f(p):
            out = []
            if p == 0:
                out = [f"s_xor_b32 s39, s93, {s}", f"s_mul_i32 s39, s39, {32*3072}", f"s_add_u32 m0, s100, {base}", "s_add_u32 s39, s39, s23"]
            out.append(f"buffer_load_dwordx4 v5, s[40:43], s39 offen offset:{p*1024} lds")
            wd[s] = vm.tick()
            return out
        return [(lambda p=p: f(p)) for p in range(3)]
    wq = [g for s in range(8) for g in wdma(s)]
    def mod_reduce(mj, MA_, t0, t1, lds_off, lds_base=0):
        mj("s_nop 0")
        for i in range(4):
            mj(f"v_permlane32_swap_b32 v{MA_+i}, v{MA_+4+i}")
        for i in range(0, 4, 2):
            mj(f"v_pk_add_f32 v[{MA_+i}:{MA_+i+1}], v[{MA_+i}:{MA_+i+1}], v[{MA_+4+i}:{MA_+5+i}]")
        mj(f"v_lshrrev_b32 v{t0}, 4, v1")
        mj(f"v_and_b32 v{t1}, 1, v1")
        for i in range(2):
            mj(f"v_permlane16_swap_b32 v{MA_+i}, v{MA_+2+i}")
        mj(f"v_pk_add_f32 v[{MA_}:{MA_+1}], v[{MA_}:{MA_+1}], v[{MA_+2}:{MA_+3}]")
        mj(f"v_lshlrev_b32 v{t0}, 3, v{t0}")
        mj(f"v_lshl_add_u32 v{t0}, v{t1}, 5, v{t0}")
        for n_, ror in enumerate((8, 4, 2)):
            for i in range(2):
                mj(f"v_add_f32_dpp v{MA_+i}, v{MA_+i}, v{MA_+i} row_ror:{ror} row_mask:0xf bank_mask:0xf")
            mj("s_lshl_b32 s38, s3, 6" if n_ == 0 else (f"v_add_u32 v{t0}, s38, v{t0}" if n_ == 1 else f"v_add_u32 v{t0}, {lds_base}, v{t0}"))
        mj(f"ds_write_b64 v{t0}, v[{MA_}:{MA_+1}] offset:{lds_off}")
    def silu(mj, regs, tmp):
        for r, t in zip(regs, tmp):
            mj(f"v_mul_f32 v{t}, 0xbfb8aa3b, v{r}")
        for t in tmp:
            mj(f"v_exp_f32 v{t}, v{t}")
        mj("s_nop 0")
        for t in tmp:
            mj(f"v_add_f32 v{t}, 1.0, v{t}")
        for t in tmp:
            mj(f"v_rcp_f32 v{t}, v{t}")
        mj("s_nop 0")
        for r, t in zip(regs, tmp):
            mj(f"v_mul_f32 v{r}, v{r}, v{t}")
        for r in regs:
            bf16_round(mj, r, r)
    mj = L()
    vm.wait(wmid)
    mj(f"v_lshlrev_b32 v{CC}, 16, v{CC}")
    silu(mj, [CC], [CC + 1])
    for i in range(4):
        mj(f"v_lshlrev_b32 v{MA+2*i}, 16, v{WM+i}")
        mj(f"v_and_b32 v{MA+2*i+1}, 0xffff0000, v{WM+i}")
    for i in range(4):
        mj(f"v_pk_mul_f32 v[{MA+2*i}:{MA+2*i+1}], v[{MA+2*i}:{MA+2*i+1}], v[{CC}:{CC+1}] op_sel_hi:[1,0]")
    mod_reduce(mj, MA, CC, CC + 1, LDS_MRED)
    weave(k, mj, wq, int(os.environ.get("WV0", "8")))
    stamp(k, 2)
    SU, SQ = 216, 232
    WV = int(os.environ.get("WV1", "12"))
    PUBROW = int(os.environ.get("PUBROW", "6"))
    for r in range(16):
        ln = L()
        vm.wait(rowid[r])
        b, t = RAW + 4 * r, XF + 8 * r
        for i in range(4):
            ln(f"v_lshlrev_b32 v{t+2*i}, 16, v{b+i}")
            ln(f"v_and_b32 v{t+2*i+1}, 0xffff0000, v{b+i}")
        ln(f"v_pk_add_f32 v[248:249], v[{t}:{t+1}], v[{t+2}:{t+3}]")
        ln(f"v_pk_mul_f32 v[250:251], v[{t}:{t+1}], v[{t}:{t+1}]")
        ln(f"v_pk_add_f32 v[252:253], v[{t+4}:{t+5}], v[{t+6}:{t+7}]")
        for i in range(1, 4):
            ln(f"v_pk_fma_f32 v[250:251], v[{t+2*i}:{t+2*i+1}], v[{t+2*i}:{t+2*i+1}], v[250:251]")
        ln("v_pk_add_f32 v[248:249], v[248:249], v[252:253]")
        ln(f"v_add_f32 v{SQ+r}, v250, v251")
        ln(f"v_add_f32 v{SU+r}, v248, v249")
        weave(k, ln, wq, WV)
        if r == PUBROW - 2:
            k("s_waitcnt lgkmcnt(0)")
            k("s_load_dwordx4 s[4:7], s[48:49], 0")
        if r == PUBROW:
            k(f"""
            v_lshlrev_b32 v{CC}, 2, v1
            s_waitcnt lgkmcnt(0)
            s_barrier
            s_cmp_lg_u32 s3, 0
            s_cbranch_scc1 L_mod_done
            ds_read_b32 v{MA}, v{CC} offset:{LDS_MRED}
            s_and_b64 s[4:5], s[4:5], s[6:7]
            s_and_b32 s4, s4, s5
            s_cbranch_scc0 L_zspin
            L_zpoll_out:
            s_lshl_b32 s38, s98, 12
            s_lshl_b32 s4, s99, 6
            s_add_u32 s38, s38, s4
            s_add_u32 s38, s38, {OFF_MODP}
            s_waitcnt lgkmcnt(0)
            v_mov_b32 v{MA+1}, v{MA}
            s_nop 1
            v_permlane32_swap_b32 v{MA+1}, v{MA}
            v_add_f32 v{MA}, v{MA+1}, v{MA}
            v_mov_b32 v{MA+1}, v{MA}
            s_nop 1
            v_permlane16_swap_b32 v{MA+1}, v{MA}
            v_add_f32 v{MA}, v{MA+1}, v{MA}
            v_or_b32 v{MA}, 1, v{MA}
            s_mov_b64 exec, 0xffff
            buffer_store_dword v{MA}, v{CC}, s[24:27], s38 offen {FL}
            s_mov_b64 exec, -1
            L_mod_done:
            """)
            OOL.append(["L_zspin:", "s_mov_b32 s4, 0x40000", "s_mov_b64 exec, 15",
                        "L_zspin2:", f"buffer_load_dword v{CC+1}, v{CC}, s[48:51], 0 offen {FL}", "s_sub_u32 s4, s4, 1", "s_waitcnt vmcnt(0)",
                        f"v_cmp_eq_u32 vcc, 0, v{CC+1}", "s_cbranch_scc1 L_zout", "s_sleep 8", "s_cbranch_vccnz L_zspin2", "L_zout:",
                        "s_mov_b64 exec, -1", "s_branch L_zpoll_out"])
    for g in wq:
        for y in g():
            k(y)
    k(f"""
    v_and_b32 v248, 15, v1
    v_lshrrev_b32 v249, 4, v1
    v_mul_u32_u24 v3, 3072, v249
    v_lshrrev_b32 v250, 2, v248
    v_lshl_add_u32 v3, v250, 7, v3
    v_and_b32 v250, 1, v248
    v_lshl_add_u32 v3, v250, 3, v3
    v_bfe_u32 v250, v248, 1, 1
    s_lshl_b32 s38, s3, 1
    v_add_u32 v250, s38, v250
    v_bfe_u32 v251, v248, 3, 1
    v_and_b32 v252, 1, v249
    v_lshl_add_u32 v251, v252, 1, v251
    v_lshlrev_b32 v251, 1, v251
    v_xor_b32 v250, v250, v251
    v_lshl_add_u32 v3, v250, 4, v3
    v_add_u32 v4, 0x10000, v3
    v_add_u32 v6, 0x20000, v3
    """)
    def trreads(b):
        out = []
        for s in range(4 * b, 4 * b + 4):
            for p in range(3):
                for h in range(2):
                    addr = SLOT[b] + (s % 4) * 12288 + p * 1024 + h * 512
                    ar = 12 * s + 4 * p + 2 * h
                    out.append(f"ds_read_b64_tr_b16 a[{ar}:{ar+1}], v{(3, 4, 6)[addr >> 16]} offset:{addr & 0xffff}")
        return out
    def normalize(half):
        out = L()
        for rr in range(8):
            r = 8 * half + rr
            out(f"v_readlane_b32 s{4+2*rr}, v{SQ+4+(r&3)}, {16*(r>>2)}")
            out(f"v_readlane_b32 s{5+2*rr}, v{SU+4+(r&3)}, {16*(r>>2)}")
        for rr in range(8):
            t = XF + 8 * (8 * half + rr)
            for i in range(4):
                out(f"v_pk_fma_f32 v[{t+2*i}:{t+2*i+1}], v[{t+2*i}:{t+2*i+1}], s[{4+2*rr}:{5+2*rr}], s[{4+2*rr}:{5+2*rr}] op_sel:[0,0,1] op_sel_hi:[1,0,1]")
        return out
    stamp(k, 3)
    vm.wait(wd[3]); k("s_barrier")
    ln = L()
    for base in (SQ, SU):
        for r in range(8):
            ln(f"v_permlane32_swap_b32 v{base+r}, v{base+8+r}")
    for base in (SQ, SU):
        for r in range(0, 8, 2):
            ln(f"v_pk_add_f32 v[{base+r}:{base+r+1}], v[{base+r}:{base+r+1}], v[{base+8+r}:{base+9+r}]")
    for base in (SQ, SU):
        for r in range(4):
            ln(f"v_permlane16_swap_b32 v{base+r}, v{base+4+r}")
    for base in (SQ, SU):
        for r in range(0, 4, 2):
            ln(f"v_pk_add_f32 v[{base+r}:{base+r+1}], v[{base+r}:{base+r+1}], v[{base+4+r}:{base+5+r}]")
    for ror in (8, 4, 2, 1):
        for base in (SQ, SU):
            for r in range(4):
                ln(f"v_add_f32_dpp v{base+r}, v{base+r}, v{base+r} row_ror:{ror} row_mask:0xf bank_mask:0xf")
    fin = [L() for _ in range(4)]
    for i in range(4):
        ln_stats_finish(fin[i], SU + i, SQ + i, SU + 4 + i, SQ + 4 + i, SQ + 8 + i)
        fin[i](f"v_mul_f32 v{SU+4+i}, -v{SU+4+i}, v{SQ+4+i}")
    for tup in zip(*fin):
        for x in tup:
            if not x.startswith("s_nop"):
                ln(x)
    weave(k, ln, [(lambda x=x: [x]) for x in trreads(0)], 5)
    k(f"""
    s_lshl_b32 s38, s3, 10
    s_add_u32 s38, s38, {OFF_MODP}
    s_waitcnt lgkmcnt(0)
    s_barrier
    """)
    MP = 8
    def modloads():
        out = []
        for q in range(4):
            out.append(f"s_add_u32 s4, s38, {4096*q}")
            out.append(f"buffer_load_dwordx4 v[{MP+4*q}:{MP+4*q+3}], v2, s[24:27], s4 offen {FL}")
        return out
    def modcheck():
        out = L()
        out(f"v_and_b32 v252, v{MP}, v{MP+1}")
        for i in range(2, 16, 2):
            out(f"v_bitop3_b32 v252, v252, v{MP+i}, v{MP+i+1} bitop3:0x80")
        out("v_and_b32 v252, 1, v252")
        out("v_cmp_eq_u32 vcc, 0, v252")
        return out
    for x in modloads():
        k(x)
        if x.startswith("buffer"):
            modid = vm.tick()
    OOL.append(["L_dbg_spin:", "s_mov_b32 s4, 0x40000", "v_lshlrev_b32 v248, 2, v1", "s_mov_b64 exec, 15",
                "L_dbg_spin2:", f"buffer_load_dword v249, v248, s[48:51], 0 offen offset:128 {FL}", "s_sub_u32 s4, s4, 1", "s_waitcnt vmcnt(0)",
                "v_cmp_eq_u32 vcc, 0, v249", "s_cbranch_scc1 L_dbg_out", "s_sleep 8", "s_cbranch_vccnz L_dbg_spin2", "L_dbg_out:",
                "s_mov_b64 exec, -1", "s_branch L_dbg_ok"])
    OOL.append(["L_mod_spin:", "s_mov_b32 s39, 0x40000", "s_lshl_b32 s38, s3, 10", f"s_add_u32 s38, s38, {OFF_MODP}", "L_mod_spin2:"]
               + modloads() + ["s_sub_u32 s39, s39, 1", "s_waitcnt vmcnt(0)"]
               + list(modcheck()) + ["s_cbranch_scc1 L_mod_ok", "s_nop 1", "s_cbranch_vccnz L_mod_spin2", "s_branch L_mod_ok"])
    wq = [g for s in range(8, 12) for g in wdma(s)]
    weave(k, normalize(0), wq, 4)
    assert not wq
    stamp(k, 4)
    vm.wait(wd[7]); k("s_barrier")
    weave(k, normalize(1), [(lambda x=x: [x]) for x in trreads(1)], 2)
    k(f"""
    s_lshl_b32 s38, s93, 2
    v_xor_b32 v254, s38, v1
    v_lshlrev_b32 v254, 8, v254
    v_and_b32 v253, 7, v1
    v_lshl_add_u32 v254, v253, 4, v254
    s_lshl_b32 s38, s3, 14
    s_lshl_b32 s39, s101, 6
    v_add_u32 v254, s38, v254
    v_xor_b32 v254, s39, v254
    s_lshl_b32 s38, s3, 10
    v_add_u32 v7, s38, v2
    v_lshlrev_b32 v255, 5, v1
    s_cmp_ge_u32 s3, 2
    s_cselect_b32 s5, 1.0, 0
    """)
    vm.wait(modid)
    for x in modcheck(): k(x)
    k("s_nop 0")
    k("s_cbranch_vccnz L_mod_spin")
    k.label("L_mod_ok")
    k(f"v_pk_add_f32 v[{MP}:{MP+1}], v[{MP}:{MP+1}], v[{MP+4}:{MP+5}]")
    k(f"""
    v_pk_add_f32 v[{MP+2}:{MP+3}], v[{MP+2}:{MP+3}], v[{MP+6}:{MP+7}]
    v_pk_add_f32 v[{MP+8}:{MP+9}], v[{MP+8}:{MP+9}], v[{MP+12}:{MP+13}]
    v_pk_add_f32 v[{MP+10}:{MP+11}], v[{MP+10}:{MP+11}], v[{MP+14}:{MP+15}]
    v_pk_add_f32 v[{MP}:{MP+1}], v[{MP}:{MP+1}], v[{MP+8}:{MP+9}]
    v_pk_add_f32 v[{MP+2}:{MP+3}], v[{MP+2}:{MP+3}], v[{MP+10}:{MP+11}]
    """)
    for rep in range(2):
        k(f"v_cvt_pk_bf16_f32 v{MP+4}, v{MP}, v{MP+1}")
        k(f"v_cvt_pk_bf16_f32 v{MP+5}, v{MP+2}, v{MP+3}")
        for i in range(2):
            k(f"v_lshlrev_b32 v{MP+2*i}, 16, v{MP+4+i}")
            k(f"v_and_b32 v{MP+2*i+1}, 0xffff0000, v{MP+4+i}")
        if rep == 0:
            for i in range(4):
                k(f"v_add_f32 v{MP+i}, s5, v{MP+i}")
    k(f"""
    ds_write_b128 v7, v[{MP}:{MP+3}] offset:{LDS_SHARE}
    s_waitcnt lgkmcnt(0)
    s_barrier
    ds_read_b128 v[{VB}:{VB+3}], v255 offset:{LDS_SHARE}
    ds_read_b128 v[{VB+4}:{VB+7}], v255 offset:{LDS_SHARE+16}
    ds_read_b128 v[{VA}:{VA+3}], v255 offset:{LDS_SHARE+2048}
    ds_read_b128 v[{VA+4}:{VA+7}], v255 offset:{LDS_SHARE+2064}
    """)
    wq = [g for s in range(12, 16) for g in wdma(s)]
    for g in wq[:2]:
        for y in g():
            k(y)
    wq = wq[2:]
    k("s_waitcnt lgkmcnt(0)")
    stamp(k, 5)
    md = L()
    def mrow(r):
        t = XF + 8 * r
        for i in range(4):
            md(f"v_pk_fma_f32 v[{t+2*i}:{t+2*i+1}], v[{t+2*i}:{t+2*i+1}], v[{VA+2*i}:{VA+2*i+1}], v[{VB+2*i}:{VB+2*i+1}]")
        for i in range(4):
            md(f"v_cvt_pk_bf16_f32 v{t+i}, v{t+2*i}, v{t+2*i+1}")
        md(f"v_xor_b32 v{t+4}, {r<<4}, v254")
    def mwr(r):
        t = XF + 8 * r
        md(f"ds_write_b128 v{t+4}, v[{t}:{t+3}]")
    mrow(0)
    md("s_barrier")
    for r in range(1, 16):
        mwr(r - 1)
        mrow(r)
    mwr(15)
    weave(k, md, wq, 12)
    assert not wq
    k(f"""
    v_and_b32 v8, 15, v1
    v_lshrrev_b32 v9, 4, v1
    v_xor_b32 v10, v8, v9
    v_lshlrev_b32 v10, 4, v10
    v_lshl_add_u32 v8, v9, 8, v10
    v_xor_b32 v9, 64, v8
    s_waitcnt lgkmcnt(0)
    s_barrier
    """)
    stamp(k, 6)
    def aread(s):
        f = FR + 16 * (s & 1)
        return [f"ds_read_b128 v[{f+4*b}:{f+4*b+3}], v{8 + (s & 1)} offset:{b*16384+s*1024}" for b in range(4)]
    ex2, ex3 = trreads(2), trreads(3)
    for x in aread(0): k(x)
    for s in range(16):
        nxt = aread(s + 1) if s < 15 else []
        k("s_waitcnt lgkmcnt(0)")
        if s == 3:
            vm.wait(wd[11]); k("s_barrier")
        if s == 7:
            vm.wait(wd[15]); k("s_barrier")
        if s == 14:
            k("s_load_dwordx4 s[16:19], s[48:49], 128")
        if 3 <= s < 7:
            nxt += ex2[6 * (s - 3):6 * (s - 3) + 6]
        if 7 <= s < 11:
            nxt += ex3[6 * (s - 7):6 * (s - 7) + 6]
        f = FR + 16 * (s & 1)
        for b in range(4):
            for which in range(3):
                acc = ACC + 4 * (which * 4 + b)
                w = f"a[{12*s+4*which}:{12*s+4*which+3}]"
                h = f"v[{f+4*b}:{f+4*b+3}]"
                c = "0" if s == 0 else f"v[{acc}:{acc+3}]"
                a_, b_ = (w, h) if which < 2 else (h, w)
                k(f"v_mfma_f32_16x16x32_bf16 v[{acc}:{acc+3}], {a_}, {b_}, {c}")
                if nxt:
                    k(nxt.pop(0))
        assert not nxt
    stamp(k, 7)
    C2 = 200
    k(f"""
    v_lshrrev_b32 v221, 1, v1
    v_lshlrev_b32 v220, 3, v221
    s_lshl_b32 s38, s3, 8
    buffer_load_dwordx2 v[{C2}:{C2+1}], v220, s[56:59], s38 offen
    """)
    k(f"""
    s_lshl_b32 s40, s22, 16
    s_lshl_b32 s41, s20, 11
    s_add_u32 s40, s40, s41
    s_add_u32 s40, s40, {OFF_Q}
    s_lshl_b32 s42, s22, 17
    s_lshl_b32 s41, s20, 12
    s_add_u32 s42, s42, s41
    s_add_u32 s42, s42, {OFF_KV}
    v_mov_b32 v12, {QSCALE:#x}
    v_mov_b32 v13, {QSCALE:#x}
    """)
    for which in (1, 2, 0):
        for bp in range(2):
            t = 88 + 4 * (which * 2 + bp)
            for b2 in range(2):
                acc = ACC + 4 * (which * 4 + bp * 2 + b2)
                if which == 0:
                    k(f"v_pk_mul_f32 v[{acc}:{acc+1}], v[12:13], v[{acc}:{acc+1}]")
                    k(f"v_pk_mul_f32 v[{acc+2}:{acc+3}], v[12:13], v[{acc+2}:{acc+3}]")
                k(f"v_cvt_pk_bf16_f32 v{t+2*b2}, v{acc}, v{acc+1}")
                k(f"v_cvt_pk_bf16_f32 v{t+2*b2+1}, v{acc+2}, v{acc+3}")
        op = "v_permlane32_swap_b32" if which == 2 else "v_permlane16_swap_b32"
        for bp in range(2):
            t = 88 + 4 * (which * 2 + bp)
            if bp == 1:
                k("s_nop 0")
            k(f"{op} v{t}, v{t+2}")
            k(f"{op} v{t+1}, v{t+3}")
            if which == 0:
                vm.op(f"buffer_store_dwordx4 v[{t}:{t+3}], v2, s[24:27], s40 offen offset:{bp*1024} {FL}")
            else:
                vm.op(f"buffer_store_dwordx4 v[{t}:{t+3}], v2, s[24:27], s42 offen offset:{bp*2048+(which-1)*1024} {FL}")
    k("""
    s_and_b64 s[16:17], s[16:17], s[18:19]
    s_and_b32 s16, s16, s17
    s_cbranch_scc0 L_dbg_spin
    L_dbg_ok:
    """)
    stamp(k, 25)
    signal(k, 0, 21, 20, 32)
    stamp(k, 26)
    RA, RD, W2M, M2 = 160, 168, 184, 208
    LDS_RLS = 128 * 1024
    k(f"""
    s_cmp_lt_u32 s2, 32
    s_cselect_b32 s4, 0, 32
    s_cselect_b32 s5, 0, 1
    s_cmp_ge_u32 s2, 144
    s_cselect_b32 s4, 144, s4
    s_cselect_b32 s5, 2, s5
    s_sub_u32 s4, s2, s4
    s_lshr_b32 s6, s4, 3
    s_and_b32 s7, s4, 7
    s_mov_b32 s8, 1024
    s_cmp_lg_u32 s5, 1
    s_cbranch_scc1 L_rl_a
    s_mul_i32 s6, s4, 2341
    s_lshr_b32 s6, s6, 16
    s_mul_i32 s7, s6, 28
    s_sub_u32 s7, s4, s7
    s_mov_b32 s8, 3584
    L_rl_a:
    s_lshl_b32 s9, s6, 2
    s_add_u32 s9, s9, s3
    s_lshl_b32 s12, s8, 5
    s_mul_i32 s12, s12, s9
    s_lshl_b32 s11, s7, 7
    s_add_u32 s12, s12, s11
    v_lshrrev_b32 v220, 3, v1
    v_mul_lo_u32 v220, v220, s8
    v_and_b32 v249, 7, v1
    v_lshl_add_u32 v220, v249, 4, v220
    s_lshl_b32 s14, s3, 12
    s_add_u32 s14, s14, {LDS_RLS}
    v_and_b32 v248, 15, v1
    v_lshrrev_b32 v249, 4, v1
    v_lshrrev_b32 v250, 2, v248
    v_and_b32 v248, 3, v248
    v_lshlrev_b32 v248, 3, v248
    v_lshl_add_u32 v248, v250, 7, v248
    v_add_u32 v248, s14, v248
    v_and_b32 v250, 1, v249
    v_lshrrev_b32 v249, 1, v249
    s_cmp_eq_u32 s5, 1
    s_cbranch_scc1 L_rl_c
    v_lshl_add_u32 v248, v250, 5, v248
    s_lshr_b32 s13, s5, 1
    s_add_u32 s23, s13, 9
    v_lshlrev_b32 v249, s23, v249
    v_add_u32 v{RA}, v248, v249
    v_add_u32 v{RA+1}, 64, v{RA}
    v_add_u32 v{RA+2}, 0x800, v{RA}
    v_add_u32 v{RA+3}, 0x840, v{RA}
    s_lshr_b32 s23, 1024, s13
    s_cmp_eq_u32 s5, 0
    s_cselect_b32 s15, 32, 112      ; ksteps
    s_mov_b32 s10, {OFF_W2}
    s_cselect_b32 s10, {OFF_WO}, s10
    s_lshl_b32 s11, s7, 1
    s_mul_i32 s11, s11, s15
    s_lshl_b32 s13, s9, 1
    s_add_u32 s11, s11, s13
    s_lshl_b32 s11, s11, 10
    s_add_u32 s16, s11, s10
    s_lshl_b32 s15, s15, 10
    s_add_u32 s17, s16, s15
    s_add_u32 s18, s16, 1024
    s_add_u32 s19, s17, 1024
    s_branch L_rl_d
    L_rl_c:
    v_lshl_add_u32 v248, v249, 11, v248
    v_lshl_add_u32 v{RA}, v250, 9, v248
    v_add_u32 v{RA+1}, 32, v{RA}
    v_add_u32 v{RA+2}, 64, v{RA}
    v_add_u32 v{RA+3}, 0x60, v{RA}
    s_mov_b32 s23, 1024
    s_lshl_b32 s15, s7, 2
    s_mul_i32 s13, s9, 7
    """)
    for f in range(4):
        k(f"""
        s_mul_i32 s10, s15, 9363
        s_lshr_b32 s10, s10, 16
        s_mul_i32 s11, s10, 105
        s_add_u32 s11, s11, s15
        s_add_u32 s11, s11, s13
        s_lshl_b32 s11, s11, 10
        s_add_u32 s{16+f}, s11, {OFF_W1}
        s_add_u32 s15, s15, 1
        """)
    k.label("L_rl_d")
    for f in range(4):
        k(f"v_add_u32 v{RA+4+f}, s23, v{RA+f}")
    k(f"""
    s_lshl_b32 s13, s8, 3
    s_lshr_b32 s99, s37, 2
    s_lshl_b32 s99, s99, 3
    s_add_u32 s99, s99, s36
    s_lshl_b32 s99, s99, 2
    s_and_b32 s38, s37, 3
    s_add_u32 s99, s99, s38
    s_add_u32 s99, s99, 64
    v_mul_u32_u24 v221, {4*6144}, v221
    v_and_b32 v249, 1, v1
    v_lshl_add_u32 v221, v249, 4, v221
    s_mul_i32 s15, s3, {128*6144}
    s_lshl_b32 s4, s99, 5
    s_add_u32 s15, s15, s4
    s_cmp_ge_u32 s37, 16
    s_cselect_b32 s15, 0x7f000000, s15
    s_lshl_b32 s20, s2, 1
    s_lshr_b32 s21, s3, 1
    s_add_u32 s20, s20, s21
    s_mul_i32 s20, s20, 6144
    s_and_b32 s21, s3, 1
    s_lshl_b32 s21, s21, 11
    s_add_u32 s20, s20, s21
    s_add_u32 s20, s20, 2048
    s_mov_b64 s[4:5], s[44:45]
    s_mov_b32 s6, s46
    s_mov_b32 s7, 0x00020000
    s_mov_b64 s[8:9], s[52:53]
    s_mov_b32 s10, s54
    s_mov_b32 s11, 0x00020000
    v_lshlrev_b32 v{C2+2}, 16, v{C2}
    v_and_b32 v{C2+3}, 0xffff0000, v{C2}
    v_lshlrev_b32 v{C2+4}, 16, v{C2+1}
    v_and_b32 v{C2+5}, 0xffff0000, v{C2+1}
    """)
    silu(k, [C2 + 2 + i for i in range(4)], [M2 + i for i in range(4)])
    stamp(k, 8)
    Q, KF, VF, S, P, O, C = (ATT[x] for x in ("Q", "KF", "VF", "S", "P", "O", "C"))
    k(f"""
    s_lshl_b32 s40, s36, 2
    s_and_b32 s42, s37, 3
    s_add_u32 s40, s40, s42        ; head2
    s_lshr_b32 s54, s37, 2         ; qb256
    s_lshl_b32 s41, s54, 2
    s_add_u32 s41, s41, s3         ; qblock64
    s_lshl_b32 s42, s40, 16
    s_lshl_b32 s43, s41, 11
    s_add_u32 s42, s42, s43
    s_add_u32 s42, s42, {OFF_Q}
    s_lshl_b32 s44, s40, 17
    s_lshl_b32 s45, s3, 10
    s_add_u32 s47, s44, {OFF_KV}
    s_add_u32 s44, s47, s45
    s_lshl_b32 s46, s41, 16
    s_lshl_b32 s43, s40, 10
    s_add_u32 s46, s46, s43
    s_add_u32 s46, s46, {OFF_O}
    s_mov_b32 m0, s45
    v_and_b32 v3, 15, v1
    v_lshlrev_b32 v3, 4, v3
    v_lshrrev_b32 v4, 5, v1
    v_lshl_add_u32 v3, v4, 8, v3
    v_add_u32 v4, 0x10000, v2
    v_add_u32 v5, 0x10000, v3
    s_mov_b32 s48, 0x0000ffff
    s_mov_b32 s49, 0x0000ffff
    v_and_b32 v8, 27, v1
    v_cmp_eq_u32 vcc, 16, v8
    v_mov_b32 v9, 0x3f803f80
    s_nop 0
    v_cndmask_b32 v9, 0, v9, vcc
    """)
    for i in range(16):
        k(f"v_mov_b32 v{VF+i}, v9")
    k(f"""
    s_lshr_b32 s50, s37, 3
    s_lshl_b32 s50, s50, 2
    s_add_u32 s50, s50, s3          ; P3 ncol32
    s_lshl_b32 s51, s50, 15
    s_add_u32 s51, s51, {OFF_WO}
    s_lshr_b32 s52, s37, 2
    s_lshl_b32 s52, s52, 1
    s_lshr_b32 s53, s3, 1
    s_add_u32 s52, s52, s53
    s_xor_b32 s53, s52, 1
    s_mul_i32 s55, s52, {112*1024}
    s_mul_i32 s56, s53, {112*1024}
    s_mul_i32 s53, s3, {28*1024}
    s_add_u32 s53, s53, {OFF_W2}
    s_add_u32 s55, s55, s53
    s_add_u32 s56, s56, s53
    s_lshr_b32 s57, s37, 2
    s_lshl_b32 s57, s57, 1
    s_and_b32 s53, s37, 1
    s_add_u32 s57, s57, s53         ; cb4
    s_mul_i32 s58, s57, {112*1024}
    s_add_u32 s58, s58, s45
    s_add_u32 s58, s58, {OFF_W1}
    v_lshrrev_b32 v8, 5, v1
    v_and_b32 v9, 31, v1
    v_lshlrev_b32 v148, 10, v9
    v_lshl_add_u32 v148, v8, 3, v148
    v_lshlrev_b32 v149, 4, v9
    v_lshl_add_u32 v149, v8, 12, v149
    s_lshl_b32 s59, s36, 3
    s_and_b32 s53, s37, 7
    s_add_u32 s59, s59, s53
    s_lshl_b32 s59, s59, 15
    s_lshl_b32 s53, s50, 6
    s_add_u32 s59, s59, s53
    s_lshr_b32 s53, s37, 2
    """)
    wait_edge(k, 0, 36, 32)
    stamp(k, 9)
    vm.n = 0
    rid = []
    def dma():
        i = len(rid)
        out = []
        if i:
            out += [f"s_add_u32 m0, s45, {4096*i}", "s_add_u32 s44, s44, 4096"]
        out += [f"buffer_load_dwordx4 v2, s[24:27], s44 offen {FL} lds"]
        rid.append(vm.tick())
        return out
    for x in dma(): k(x)
    vm.op(f"buffer_load_dwordx4 v[{Q}:{Q+3}], v2, s[24:27], s42 offen {FL}")
    qid = vm.op(f"buffer_load_dwordx4 v[{Q+4}:{Q+7}], v2, s[24:27], s42 offen offset:1024 {FL}")
    for r in range(3):
        for x in dma(): k(x)
    fin2 = L()
    fin2(f"""
    s_cmp_lg_u32 s3, 1
    s_cbranch_scc1 L_m2_done
    s_cmp_ge_u32 s37, 16
    s_cbranch_scc1 L_m2_done
    v_lshlrev_b32 v216, 2, v1
    v_add_u32 v217, {LDS_MRED2}, v216
    ds_read_b32 v{M2}, v217
    s_lshr_b32 s38, s99, 5
    s_cmp_eq_u32 s38, 4
    s_cselect_b32 s39, 1.0, 0
    s_waitcnt lgkmcnt(0)
    v_mov_b32 v{M2+1}, v{M2}
    s_nop 1
    v_permlane32_swap_b32 v{M2+1}, v{M2}
    v_add_f32 v{M2}, v{M2+1}, v{M2}
    v_mov_b32 v{M2+1}, v{M2}
    s_nop 1
    v_permlane16_swap_b32 v{M2+1}, v{M2}
    v_add_f32 v{M2}, v{M2+1}, v{M2}
    """)
    bf16_round(fin2, M2, M2)
    fin2(f"v_add_f32 v{M2}, s39, v{M2}")
    bf16_round(fin2, M2, M2)
    fin2(f"""
    s_lshl_b32 s39, s99, 6
    s_mov_b64 exec, 0xffff
    buffer_store_dword v{M2}, v216, s[24:27], s39 offen offset:{OFF_MOD} {FL}
    s_sub_u32 s38, 4, s38
    s_cmp_gt_u32 s38, 1
    s_cbranch_scc1 L_m2_done
    s_lshl_b32 s38, s38, 10
    s_and_b32 s39, s99, 31
    s_lshl_b32 s39, s39, 5
    s_add_u32 s38, s38, s39
    s_add_u32 s38, s38, {OFF_MODB}
    v_bfe_u32 v217, v1, 2, 1
    v_lshlrev_b32 v216, 4, v217
    v_bfe_u32 v217, v1, 3, 1
    v_lshl_add_u32 v216, v217, 3, v216
    v_and_b32 v217, 3, v1
    v_lshl_add_u32 v216, v217, 1, v216
    buffer_store_short_d16_hi v{M2}, v216, s[24:27], s38 offen {FL}
    L_m2_done:
    s_mov_b64 exec, -1
    """)
    vm.wait(qid)
    k("s_barrier")
    def kread(t):
        off = t * 2048
        return f"ds_read_b128 v[{KF}:{KF+3}], v{2 if off < 65536 else 4} offset:{off & 0xffff}"
    def vread(t):
        off = t * 2048 + 1024
        b = VF + 8 * (t & 1)
        a = 3 if off < 65536 else 5
        return ["s_mov_b64 exec, s[48:49]",
                f"ds_read_b128 v[{b}:{b+3}], v{a} offset:{off & 0xffff}",
                f"ds_read_b128 v[{b+4}:{b+7}], v{a} offset:{(off+512) & 0xffff}",
                "s_mov_b64 exec, -1"]
    k(kread(0))
    for x in vread(0): k(x)
    k(f"""
    s_waitcnt lgkmcnt(2)
    v_mfma_f32_32x32x16_bf16 v[{S}:{S+15}], v[{KF}:{KF+3}], v[{Q}:{Q+3}], 0
    v_mfma_f32_32x32x16_bf16 v[{S+16}:{S+31}], v[{KF}:{KF+3}], v[{Q+4}:{Q+7}], 0
    s_nop 10
    """)
    att_max16(k, 6, S, True)
    att_max16(k, 7, S + 16, True)
    k("""
    s_nop 1
    v_permlane32_swap_b32 v6, v7
    v_max_f32 v6, v6, v7
    v_mov_b32 v7, v6
    s_nop 1
    v_permlane32_swap_b32 v6, v7
    v_sub_f32 v6, 0, v6
    v_sub_f32 v7, 0, v7
    """)
    for i in range(16):
        k(f"v_mov_b32 v{C+i}, v6")
    k("s_nop 0")
    k(f"v_mov_b32 v{C+16}, v7")
    k(f"v_mfma_f32_32x32x16_bf16 v[{S}:{S+15}], v[{KF}:{KF+3}], v[{Q}:{Q+3}], v[{C}:{C+15}]")
    for i in range(1, 16):
        k(f"v_mov_b32 v{C+16+i}, v7")
    stamp(k, 10)
    jobs = []
    for s in range(32):
        pre = ["s_add_u32 s51, s51, 4096"] if (s and s % 4 == 0) else []
        jobs.append(pre + [f"buffer_load_dwordx4 {wo_reg(s)}, v2, s[24:27], s51 offen offset:{(s%4)*1024} {FL}"])
    for s in range(28):
        for i, sr in enumerate((55, 56)):
            pre = [f"s_add_u32 s{sr}, s{sr}, 4096"] if (s and s % 4 == 0) else []
            jobs.append(pre + [f"buffer_load_dwordx4 a[{8*s+4*i}:{8*s+4*i+3}], v2, s[24:27], s{sr} offen offset:{(s%4)*1024} {FL}"])
    w1jobs = []
    for i in range(28):
        pre = [f"s_add_u32 m0, s45, {w1_lds(4*i)}"] + (["s_add_u32 s58, s58, 4096"] if i else ["s_nop 0"])
        w1jobs.append(pre + ["buffer_load_dwordx4 v2, s[24:27], s58 offen sc1 lds"])
    modb = ["s_and_b32 s53, s45, 1024", f"s_add_u32 m0, s53, {LDS_MODB}", f"s_add_u32 s53, s53, {OFF_MODB}",
            "buffer_load_dwordx4 v2, s[24:27], s53 offen sc1 lds"]
    vec1 = [f"s_mov_b32 m0, {LDS_VEC}", "s_lshr_b32 s53, s37, 3", "s_lshl_b32 s53, s53, 9", f"s_add_u32 s53, s53, {OFF_MOD + 2*2048}",
            "buffer_load_dwordx4 v149, s[24:27], s53 offen sc1 lds"]
    vec2 = [f"s_mov_b32 m0, {LDS_VEC + 1024}", "s_lshr_b32 s53, s37, 4", "s_lshl_b32 s53, s53, 10", f"s_add_u32 s53, s53, {OFF_MOD + 5*2048}",
            "buffer_load_dwordx4 v2, s[24:27], s53 offen sc1 lds"]
    xj = [[f"buffer_load_dwordx2 v[{140+2*j}:{141+2*j}], v148, s[28:31], s59 offen offset:{16*j}"] for j in range(4)]
    wo_j, w2_j = jobs[:32], jobs[32:]
    NW2 = int(os.environ.get("NW2", "56"))
    w2_late = w2_j[NW2:]
    jobs = w1jobs[:7] + w2_j[:NW2] + wo_j
    late = w1jobs[7:]
    vecj = [modb, vec1, vec2]
    pfj = [[f"buffer_load_dwordx4 v[{W2M+4*i}:{W2M+4*i+3}], v2, s[4:7], s20 offen offset:{1024*i}"] for i in range(2)]
    rlj = [([f"s_add_u32 m0, s14, {1024*i}", "s_add_u32 s12, s12, s13"] if i else ["s_mov_b32 m0, s14", "s_nop 0"])
           + ["buffer_load_dwordx4 v220, s[8:11], s12 offen lds"] for i in range(4)]
    m2j = [(["s_add_u32 s15, s15, 6144"] if i else []) + [f"buffer_load_dwordx4 v[{W2M+4*i}:{W2M+4*i+3}], v221, s[4:7], s15 offen"]
           for i in range(4)]
    bg = L()
    for p in range(4):
        for i in range(4):
            src = W2M + 4 * p + i
            t_ = 216 + 2 * (i & 1)
            bg(f"v_lshlrev_b32 v{t_}, 16, v{src}")
            bg(f"v_and_b32 v{t_+1}, 0xffff0000, v{src}")
            if p == 0:
                bg(f"v_pk_mul_f32 v[{M2+2*i}:{M2+2*i+1}], v[{t_}:{t_+1}], v[{C2+2}:{C2+3}] op_sel_hi:[1,0]")
            else:
                sel = "op_sel:[0,1,0] op_sel_hi:[1,1,1]" if p & 1 else "op_sel_hi:[1,0,1]"
                cr = C2 + 2 + (p & 2)
                bg(f"v_pk_fma_f32 v[{M2+2*i}:{M2+2*i+1}], v[{t_}:{t_+1}], v[{cr}:{cr+1}], v[{M2+2*i}:{M2+2*i+1}] {sel}")
    mod_reduce(bg, M2, C2, C2 + 1, 0, LDS_MRED2)
    bg = [x for x in bg if not x.startswith("s_nop")]
    U_RL, U_FLAG, U_XL, U_XC = 28, 38, 52, 58
    U_M2, U_BG, U_FIN, U_MFLAG, U_ML, U_MC = 40, 62, 74, 80, 112, 118
    def flagblk(lab, off, cond):
        return cond + ["s_getreg_b32 s38, hwreg(HW_REG_XCC_ID, 0, 4)", "s_add_u32 s38, s38, 1", "s_lshl_b32 s39, s2, 2",
                       f"s_add_u32 s39, s39, {off}", "s_mov_b64 exec, 1", "v_mov_b32 v6, 0", "v_mov_b32 v7, s38",
                       f"buffer_store_dword v7, v6, s[24:27], s39 offen {FL}", "s_mov_b64 exec, -1", f"{lab}:"]
    for u in range(128):
        t = u >> 1
        side = {}
        def add(slot, xs):
            side.setdefault(slot, []).extend(xs)
        def put(d, slot):
            add(slot, d[:-1]); add(slot + 1, d[-1:])
            return vm.tick()
        if 8 <= u < 12:
            rlid = put(rlj[u - 8], 1)
        elif 12 <= u < 14:
            put(pfj[u - 12], 1)
        elif len(rid) < 32:
            d = dma()
            add(1, d[:2]); add(2, d[2:])
        elif xj:
            put(xj.pop(0), 1)
        elif U_M2 <= u < U_M2 + 4:
            m2id = put(m2j[u - U_M2], 1)
        elif vecj and u > U_MC:
            put(vecj.pop(0), 1)
        elif jobs and u > U_XC:
            put(jobs.pop(0), 1)
        if u == U_BG:
            add(2, [vm.wait_str(m2id)])
        if u >= U_BG:
            for sl in (4, 6, 8, 11, 13, 18, 20, 25):
                if bg:
                    add(sl, [bg.pop(0)])
        if u % 2 == 0 and t < 63:
            pre = []
            if u == 2:
                pre = [vm.wait_str(rid[3]), "s_barrier"]
            elif u == 14:
                pre = [vm.wait_str(rid[11]), "s_barrier"]
            elif u == U_FLAG:
                pre = [vm.wait_str(max(rid[31], rlst)), "s_barrier"] + flagblk("L_noxid", OFF_XID, ["s_cmp_lg_u32 s3, 1", "s_cbranch_scc1 L_noxid"])
            elif u == U_FIN:
                assert not bg
                pre = ["s_barrier"] + list(fin2)
                finid = vm.n
            elif u == U_MFLAG:
                pre = flagblk("L_nomid", OFF_XID + 2048, ["s_cmp_lg_u32 s3, 1", "s_cbranch_scc1 L_nomid", vm.wait_str(finid)])
            elif u == 82:
                pre = ["s_barrier"]
            add(14, pre + [kread(t + 1)])
            add(15, vread(t + 1))
        if u % 2 == 1 or u == 0:
            add(-14, ["s_waitcnt lgkmcnt(0)"])
        if u == U_RL:
            add(16, [vm.wait_str(rlid)])
            for f in range(4):
                add(17 + 2 * f, [f"ds_read_b64_tr_b16 v[{RD+4*f}:{RD+4*f+1}], v{RA+f}"])
                add(18 + 2 * f, [f"ds_read_b64_tr_b16 v[{RD+4*f+2}:{RD+4*f+3}], v{RA+4+f}"])
        if U_RL + 1 <= u < U_RL + 5:
            f = u - U_RL - 1
            rlst = put([f"buffer_store_dwordx4 v[{RD+4*f}:{RD+4*f+3}], v2, s[24:27], s{16+f} offen {FL}"], 17)
        if u == U_XL:
            vm.tick(); xidid = vm.tick()
            add(17, [f"s_mov_b32 s53, {OFF_XID}", f"buffer_load_dwordx4 v[150:153], v2, s[24:27], s53 offen {FL}"])
            add(24, [f"buffer_load_dwordx4 v[154:157], v2, s[24:27], s53 offen offset:32 {FL}"])
        elif u == U_XC:
            add(17, [vm.wait_str(xidid), "v_min_u32 v158, v150, v151", "v_min_u32 v159, v152, v153"])
            add(18, ["v_min_u32 v158, v158, v159", "v_xor_b32 v154, v154, v150", "v_xor_b32 v155, v155, v151"])
            add(20, ["v_cmp_eq_u32 vcc, 0, v158", "v_xor_b32 v156, v156, v152", "v_xor_b32 v157, v157, v153"])
            add(22, ["s_cbranch_vccnz L_xid_retry", "L_xid_ok:", "v_or3_b32 v154, v154, v155, v156", "v_or_b32 v154, v154, v157"])
            add(24, ["v_cmp_ne_u32 vcc, 0, v154"])
            add(27, ["s_and_b32 s53, vcc_hi, 0x3fffffff", "s_or_b32 s53, s53, vcc_lo", "s_cmp_eq_u32 s53, 0", f"s_cselect_b32 s{S_FAST}, 1, 0"])
        elif u == U_ML:
            midid = put([f"s_mov_b32 s53, {OFF_XID + 2048}", f"buffer_load_dwordx4 v[150:153], v2, s[24:27], s53 offen {FL}"], 17)
        elif u == U_MC:
            add(17, [vm.wait_str(midid), "v_min_u32 v158, v150, v151", "v_min_u32 v159, v152, v153"])
            add(18, ["v_min_u32 v158, v158, v159"])
            add(20, ["v_cmp_eq_u32 vcc, 0, v158"])
            add(24, ["s_cbranch_vccnz L_mid_retry", "L_mid_ok:"])
        elif u >= 83 and late and u % 2 == 1:
            put(late.pop(0), 17)
        elif jobs and u > U_XC and (u >= U_FIN or len(jobs) > 40):
            put(jobs.pop(0), 17)
        if DIAG and os.environ.get('ATTST') and u in (8, 16, 28, 36, 48, 64, 72, 96):
            stamp(k, (8, 16, 28, 36, 48, 64, 72, 96).index(u))
        att_unit(k, u, side, last=(u == 127))
    assert not vecj
    assert not jobs and not late, (len(jobs), len(late))
    k(f"""
    s_nop 0
    v_cvt_pk_bf16_f32 v{P+7}, v{S+30}, v{S+31}
    s_nop 1
    v_mfma_f32_32x32x16_bf16 v[{O+16}:{O+31}], v[{VF+12}:{VF+15}], v[{P+4}:{P+7}], v[{O+16}:{O+31}]
    s_mov_b32 s53, 0x53800000
    v_cmp_nge_f32 vcc, s53, v{O+8}
    s_nop 9
    v_cmp_nge_f32 s[42:43], s53, v{O+24}
    s_nop 3
    s_or_b64 vcc, vcc, s[42:43]
    s_cbranch_scc0 L_att_fin
    s_branch L_att_fallback
    """)
    k.label("L_att_fin")
    stamp(k, 11)
    XR, XU, GA, A2 = 140, 44, 108, 124
    k(f"""
    v_rcp_f32 v6, v{O+8}
    v_rcp_f32 v7, v{O+24}
    s_lshl_b32 s42, s36, 3
    s_and_b32 s43, s37, 7
    s_add_u32 s42, s42, s43         ; t3 (tok32)
    v_lshrrev_b32 v8, 5, v1         ; h
    v_and_b32 v9, 31, v1            ; tok
    """)
    dual_begin(k)
    for b_ in range(2):
        for i in range(8):
            k(f"v_mul_f32 v{O+16*b_+i}, v{6+b_}, v{O+16*b_+i}")
        for i in range(4):
            k(f"v_cvt_pk_bf16_f32 v{P+4*b_+i}, v{O+16*b_+2*i}, v{O+16*b_+2*i+1}")
        if b_:
            k("s_add_u32 s46, s46, 32768")
        k(f"buffer_store_dwordx4 v[{P+4*b_}:{P+4*b_+3}], v2, s[24:27], s46 offen {DF}")
    k(f"""
    v_add_u32 v5, 0x20000, v2
    v_lshrrev_b32 v12, 4, v9
    v_lshlrev_b32 v12, 14, v12
    v_and_b32 v13, 15, v9
    v_lshl_add_u32 v12, v13, 4, v12
    v_lshl_add_u32 v12, v8, 8, v12
    v_lshlrev_b32 v13, 3, v9
    s_lshl_b32 s43, s3, 10
    s_lshl_b32 s44, s42, 15
    s_lshl_b32 s45, s50, 10
    s_add_u32 s44, s44, s45
    s_add_u32 s45, s44, {OFF_X2S}
    s_add_u32 s44, s44, {OFF_X2}
    s_lshl_b32 s46, s42, 12
    s_lshl_b32 s47, s50, 8
    s_add_u32 s46, s46, s47
    s_add_u32 s46, s46, {OFF_ST2}
    s_lshl_b32 s47, s42, 15
    s_add_u32 s47, s47, s43
    s_add_u32 s47, s47, {OFF_O}
    s_add_u32 m0, s43, {LDS_OST}
    """)
    signal(k, 1, 54, 40, 32, fl=DF)
    dual_end(k, 'e1')
    stamp(k, 12)
    k(f"""
    s_lshl_b32 s38, s3, 7
    s_add_u32 s38, s38, {LDS_VEC}
    v_lshlrev_b32 v10, 4, v8
    v_add_u32 v10, s38, v10
    """)
    for j in range(4):
        k(f"ds_read_b128 v[{GA+4*j}:{GA+4*j+3}], v10 offset:{32*j}")
        k(f"ds_read_b128 v[{A2+4*j}:{A2+4*j+3}], v10 offset:{512+32*j}")
    for i in range(8):
        k(f"v_lshlrev_b32 v{XU+2*i}, 16, v{XR+i}")
        k(f"v_and_b32 v{XU+2*i+1}, 0xffff0000, v{XR+i}")
    k("s_cmp_eq_u32 s3, 0")
    k("s_cbranch_scc1 L_ut_done")
    MA_, WU, UA = 60, 68, 92
    k(f"""
    s_sub_u32 s38, s43, 1024
    v_add_u32 v14, s38, v2
    v_add_u32 v15, s38, v4
    v_add_u32 v16, s38, v5
    v_and_b32 v17, 15, v1
    v_lshrrev_b32 v18, 4, v1
    v_lshlrev_b32 v17, 10, v17
    v_lshl_add_u32 v17, v18, 4, v17
    v_add_u32 v17, {LDS_MODB}, v17
    s_mov_b32 s38, 0x00030003
    s_mov_b32 s39, 0x00030003
    """)
    for i in range(8):
        k(f"v_mov_b32 v{MA_+i}, 0")
    def uread(s):
        r = WU + 12 * (s & 1)
        k("s_mov_b64 exec, s[38:39]")
        k(f"ds_read_b128 v[{MA_+4*(s&1)}:{MA_+4*(s&1)+3}], v17 offset:{64*s}")
        k("s_mov_b64 exec, -1")
        for h in range(3):
            addr = w1_lds(s * 7) + 3 * h * 1024
            k(f"ds_read_b128 v[{r+4*h}:{r+4*h+3}], v{14 + (addr >> 16)} offset:{addr & 0xffff}")
    uread(0)
    for s in range(16):
        if s < 15:
            uread(s + 1)
            k("s_waitcnt lgkmcnt(4)")
        else:
            k("s_waitcnt lgkmcnt(0)")
        r = WU + 12 * (s & 1)
        for h in range(3):
            u_ = UA + 4 * h
            c = "0" if s == 0 else f"v[{u_}:{u_+3}]"
            k(f"v_mfma_f32_16x16x32_bf16 v[{u_}:{u_+3}], v[{MA_+4*(s&1)}:{MA_+4*(s&1)+3}], v[{r+4*h}:{r+4*h+3}], {c}")
    k("s_nop 5")
    for h in range(3):
        u_ = UA + 4 * h
        d = WU + 4 * h
        for i in range(2):
            bf16_round(k, 18 + i, u_ + i)
        for i in range(2):
            k(f"v_sub_f32 v{20+i}, v{u_+i}, v{18+i}")
        for i in range(2):
            k(f"v_cvt_pk_bf16_f32 v{d+i}, v{18+i}, v{20+i}")
        k(f"v_mov_b32 v{d+2}, 0")
        k(f"v_mov_b32 v{d+3}, 0")
        k(f"ds_write_b128 v15, v[{d}:{d+3}] offset:{LDS_UT + 3*h*1024 - 65536}")
    k.label("L_ut_done")
    stamp(k, 13)
    wait_edge(k, 1, 36, 32)
    stamp(k, 14)
    vm.n = 0
    oid = []
    for i in range(8):
        if i:
            k("s_add_u32 m0, m0, 4096")
            k("s_add_u32 s47, s47, 4096")
        oid.append(vm.op(f"buffer_load_dwordx4 v2, s[24:27], s47 offen {FL} lds"))
    AC, OFR = 20, 60
    chunks = [(0, 8), (8, 20), (20, 32)]
    for (c0, c1) in chunks:
        vm.wait(oid[c1 // 4 - 1])
        k("s_barrier")
        n = c1 - c0
        ahead = 6
        for s in range(c0, min(c1, c0 + ahead)):
            k(lds_rd(f"v[{OFR+4*(s%8)}:{OFR+4*(s%8)+3}]", LDS_OST + s * 1024))
        for s in range(c0, c1):
            issued = min(c1, s + ahead)
            k(f"s_waitcnt lgkmcnt({issued - 1 - s})")
            c = "0" if s == 0 else f"v[{AC}:{AC+15}]"
            k(f"v_mfma_f32_32x32x16_bf16 v[{AC}:{AC+15}], {wo_reg(s)}, v[{OFR+4*(s%8)}:{OFR+4*(s%8)+3}], {c}")
            if s + ahead < c1:
                s2 = s + ahead
                k(lds_rd(f"v[{OFR+4*(s2%8)}:{OFR+4*(s2%8)+3}]", LDS_OST + s2 * 1024))
    k("s_nop 11")
    stamp(k, 15)
    for i in range(8):
        k(f"v_pk_fma_f32 v[{AC+2*i}:{AC+2*i+1}], v[{GA+2*i}:{GA+2*i+1}], v[{AC+2*i}:{AC+2*i+1}], v[{XU+2*i}:{XU+2*i+1}]")
    for i in range(8):
        k(f"v_pk_mul_f32 v[{A2+2*i}:{A2+2*i+1}], v[{A2+2*i}:{A2+2*i+1}], v[{AC+2*i}:{AC+2*i+1}]")
    for i in range(8):
        k(f"v_cvt_pk_bf16_f32 v{60+i}, v{A2+2*i}, v{A2+2*i+1}")
    dual_begin(k)
    k(f"buffer_store_dwordx4 v[60:63], v12, s[24:27], s45 offen {DF}")
    k(f"buffer_store_dwordx4 v[64:67], v12, s[24:27], s45 offen offset:512 {DF}")
    k(f"v_pk_add_f32 v[14:15], v[{AC}:{AC+1}], v[{AC+2}:{AC+3}]")
    k(f"v_pk_mul_f32 v[16:17], v[{AC}:{AC+1}], v[{AC}:{AC+1}]")
    for i in range(1, 8):
        if i >= 2:
            k(f"v_pk_add_f32 v[14:15], v[14:15], v[{AC+2*i}:{AC+2*i+1}]")
        k(f"v_pk_fma_f32 v[16:17], v[{AC+2*i}:{AC+2*i+1}], v[{AC+2*i}:{AC+2*i+1}], v[16:17]")
    k("v_add_f32 v14, v14, v15")
    k("v_add_f32 v15, v16, v17")
    k("v_mov_b32 v16, v14")
    k("v_mov_b32 v17, v15")
    for i in range(2):
        k(f"v_cvt_pk_bf16_f32 v{68+i}, v{AC+2*i}, v{AC+2*i+1}")
    k("v_permlane32_swap_b32 v16, v14")
    k("v_permlane32_swap_b32 v17, v15")
    k("v_pk_add_f32 v[14:15], v[14:15], v[16:17]")
    k("s_mov_b32 exec_hi, 0")
    k(f"buffer_store_dwordx2 v[14:15], v13, s[24:27], s46 offen {DF}")
    k("s_mov_b32 exec_hi, -1")
    for i in range(2, 8):
        k(f"v_cvt_pk_bf16_f32 v{68+i}, v{AC+2*i}, v{AC+2*i+1}")
    k(f"buffer_store_dwordx4 v[68:71], v12, s[24:27], s44 offen {DF}")
    k(f"buffer_store_dwordx4 v[72:75], v12, s[24:27], s44 offen offset:512 {DF}")
    k("""
    s_lshr_b32 s40, s42, 2          ; E3 group
    s_and_b32 s41, s42, 3
    s_lshl_b32 s41, s41, 2
    s_lshr_b32 s43, s37, 3
    s_add_u32 s41, s41, s43         ; member
    """)
    signal(k, 2, 40, 41, 16, fl=DF)
    dual_end(k, 'e2')
    stamp(k, 16)
    ACC4, WF, ST, SB = 8, 64, 120, 136
    k(f"""
    s_lshl_b32 s40, s36, 1
    s_bfe_u32 s41, s37, 0x10001
    s_add_u32 s40, s40, s41        ; tb4
    s_lshl_b32 s44, s40, 2
    s_add_u32 s44, s44, s3         ; tok32
    s_lshl_b32 s45, s44, 15
    s_add_u32 s45, s45, {OFF_X2S}
    s_add_u32 s46, s45, 16384
    v_and_b32 v3, 15, v1
    v_lshrrev_b32 v152, 4, v1
    v_lshlrev_b32 v153, 3, v3
    v_lshl_add_u32 v153, v152, 10, v153
    s_lshl_b32 s47, s44, 12
    s_add_u32 s47, s47, {OFF_ST2}
    s_mul_i32 s42, s44, {112*1024}
    s_mul_i32 s43, s57, {7*1024}
    s_add_u32 s42, s42, s43
    s_add_u32 s42, s42, {OFF_H}
    s_add_u32 s43, s42, 4096
    """)
    def wread(s):
        f = WF + 28 * (s & 1)
        return [lds_rd(f"v[{f+4*i}:{f+4*i+3}]", w1_lds(s * 7 + i)) for i in range(7)]
    for x in wread(0): k(x)
    wait_edge(k, 2, 40, 16)
    wbl2(k, "a")
    stamp(k, 17)
    vm.n = 0
    xid = []
    def xload():
        s = len(xid)
        if s >= 16:
            return
        if s and s % 4 == 0:
            k("s_add_u32 s45, s45, 4096")
            k("s_add_u32 s46, s46, 4096")
        vm.op(f"buffer_load_dwordx4 {wo_reg(2*s)}, v2, s[24:27], s45 offen offset:{(s%4)*1024} {FL}")
        xid.append(vm.op(f"buffer_load_dwordx4 {wo_reg(2*s+1)}, v2, s[24:27], s46 offen offset:{(s%4)*1024} {FL}"))
    for s in range(int(os.environ.get("P4D", "6"))):
        xload()
    stl = [f"buffer_load_dwordx2 v[{ST+8*j+2*pp}:{ST+8*j+2*pp+1}], v153, s[24:27], s47 offen offset:{256*pp+128*j} {FL}"
           for j in range(2) for pp in range(4)]
    fill = L()
    for j in range(2):
        b = ST + 8 * j
        fill(f"v_pk_add_f32 v[{b}:{b+1}], v[{b}:{b+1}], v[{b+2}:{b+3}]")
        fill(f"v_pk_add_f32 v[{b+4}:{b+5}], v[{b+4}:{b+5}], v[{b+6}:{b+7}]")
        fill(f"v_pk_add_f32 v[{b}:{b+1}], v[{b}:{b+1}], v[{b+4}:{b+5}]")
    regs = [ST, ST + 1, ST + 8, ST + 9]
    tmp = [ST + 2, ST + 3, ST + 10, ST + 11]
    for op in ("v_permlane16_swap_b32", "v_permlane32_swap_b32"):
        for r, t in zip(regs, tmp):
            fill(f"v_mov_b32 v{t}, v{r}")
        fill("s_nop 1")
        for r, t in zip(regs, tmp):
            fill(f"{op} v{t}, v{r}")
        for r, t in zip(regs, tmp):
            fill(f"v_add_f32 v{r}, v{t}, v{r}")
    for j in range(2):
        b = ST + 8 * j
        ln_stats_finish(fill, b, b + 1, b + 4, b + 5, None, std_out=b + 6)
        fill(f"v_cvt_pk_bf16_f32 v{SB+4*j}, -v{b+4}, -v{b+4}")
        fill(f"v_cvt_pk_bf16_f32 v{SB+4*j+1}, v{b+6}, v{b+6}")
        fill(f"v_mov_b32 v{SB+4*j+2}, 0")
        fill(f"v_mov_b32 v{SB+4*j+3}, 0")
    fill(f"""
    v_lshlrev_b32 v154, 2, v3
    s_lshl_b32 s41, s3, 7
    v_add_u32 v154, s41, v154
    v_add_u32 v154, {LDS_R}, v154
    """)
    for s in range(17):
        nxt = wread(s + 1) if s < 16 else []
        k((vm.wait_str(xid[s]) if s < 16 else "s_waitcnt") + " lgkmcnt(0)")
        if s == 9:
            vm.wait(sid)
        f = WF + 28 * (s & 1)
        n = 0
        for i in range(7):
            for j in range(2):
                a = ACC4 + 4 * (j * 7 + i)
                c = "0" if s == 0 else f"v[{a}:{a+3}]"
                bop = wo_reg(2 * s + j) if s < 16 else f"v[{SB+4*j}:{SB+4*j+3}]"
                k(f"v_mfma_f32_16x16x32_bf16 v[{a}:{a+3}], v[{f+4*i}:{f+4*i+3}], {bop}, {c}")
                if nxt:
                    k(nxt.pop(0))
                elif n == 8:
                    xload()
                elif n in (10, 12) and stl:
                    sid = vm.op(stl.pop(0))
                elif s >= 10 and n in (9, 11, 13) and w2_late:
                    for y in w2_late.pop(0):
                        k(y)
                    vm.tick()
                if s >= 9 and fill:
                    k(fill.pop(0))
                n += 1
    assert not fill and not w2_late
    stamp(k, 18)
    dual_begin(k)
    k(f"ds_write_b32 v154, v{ST+5}")
    k(f"ds_write_b32 v154, v{ST+13} offset:64")
    for i in range(7):
        t = WF + 4 * i
        for j in range(2):
            a = ACC4 + 4 * (j * 7 + i)
            k(f"v_cvt_pk_bf16_f32 v{t+2*j}, v{a}, v{a+1}")
            k(f"v_cvt_pk_bf16_f32 v{t+2*j+1}, v{a+2}, v{a+3}")
        for q in range(4):
            k(f"v_pk_max_i16 v{t+q}, v{t+q}, 0")
        if i:
            tp = WF + 4 * (i - 1)
            k(f"v_permlane16_swap_b32 v{tp}, v{tp+2}")
            k(f"v_permlane16_swap_b32 v{tp+1}, v{tp+3}")
            k(f"buffer_store_dwordx4 v[{tp}:{tp+3}], v2, s[24:27], s{42 if i-1 < 4 else 43} offen offset:{((i-1)%4)*1024} {DF}")
    tp = WF + 24
    k("s_nop 1")
    k(f"v_permlane16_swap_b32 v{tp}, v{tp+2}")
    k(f"v_permlane16_swap_b32 v{tp+1}, v{tp+3}")
    k(f"buffer_store_dwordx4 v[{tp}:{tp+3}], v2, s[24:27], s43 offen offset:2048 {DF}")
    ACC5, RB, DEPTH = 8, 72, 19
    G5, X5, R5 = 224, 240, 248
    k(f"""
    s_lshl_b32 s58, s36, 2
    s_and_b32 s59, s37, 3
    s_add_u32 s58, s58, s59         ; tb5
    s_lshl_b32 s58, s58, 1
    s_and_b32 s59, s3, 1
    s_add_u32 s58, s58, s59
    s_xor_b32 s59, s58, 1
    s_mul_i32 s44, s58, {112*1024}
    s_mul_i32 s45, s59, {112*1024}
    s_mul_i32 s46, s3, {28*1024}
    s_add_u32 s46, s46, {OFF_H}
    s_add_u32 s44, s44, s46
    s_add_u32 s45, s45, s46
    v_lshrrev_b32 v250, 5, v1
    v_and_b32 v251, 31, v1
    v_lshlrev_b32 v252, 4, v250
    s_and_b32 s46, s52, 7
    s_lshl_b32 s46, s46, 7
    s_add_u32 s46, s46, {LDS_VEC + 1024}
    v_add_u32 v252, s46, v252
    v_lshrrev_b32 v253, 4, v251
    v_lshlrev_b32 v253, 14, v253
    v_and_b32 v254, 15, v251
    v_lshl_add_u32 v253, v254, 4, v253
    v_lshl_add_u32 v253, v250, 8, v253
    s_lshl_b32 s47, s58, 15
    s_lshl_b32 s50, s52, 10
    s_add_u32 s47, s47, s50
    s_add_u32 s47, s47, {OFF_X2}
    s_and_b32 s50, s58, 3
    s_lshl_b32 s50, s50, 7
    s_add_u32 s50, s50, {LDS_R}
    v_lshlrev_b32 v254, 2, v251
    v_add_u32 v254, s50, v254
    """)
    for j in range(4):
        k(f"ds_read_b128 v[{G5+4*j}:{G5+4*j+3}], v252 offset:{32*j}")
    k(f"buffer_load_dwordx4 v[{X5}:{X5+3}], v253, s[24:27], s47 offen {FL}")
    k(f"buffer_load_dwordx4 v[{X5+4}:{X5+7}], v253, s[24:27], s47 offen offset:512 {FL}")
    k(f"""
    v_lshlrev_b32 v253, 10, v251
    v_lshl_add_u32 v253, v250, 4, v253
    s_lshl_b32 s47, s58, 15
    s_lshl_b32 s50, s52, 6
    s_add_u32 s47, s47, s50
    """)
    stamp(k, 19)
    signal(k, 3, 40, 57, 16, nafter=2, fl=DF)
    dual_end(k, 'e3')
    stamp(k, 20)
    k(f"ds_read_b32 v{R5}, v254")
    k("s_waitcnt lgkmcnt(0)")
    for i in range(16):
        k(f"v_mul_f32 v{G5+i}, v{R5}, v{G5+i}")
    stamp(k, 21)
    wait_edge(k, 3, 40, 16)
    wbl2(k, "b")
    stamp(k, 22)
    vm.n = 0
    hid = []
    def hload():
        s = len(hid)
        if s >= 28:
            return
        r = RB + 8 * (s % DEPTH)
        if s and s % 4 == 0:
            k("s_add_u32 s44, s44, 4096")
            k("s_add_u32 s45, s45, 4096")
        vm.op(f"buffer_load_dwordx4 v[{r}:{r+3}], v2, s[24:27], s44 offen offset:{(s%4)*1024} {FL}")
        hid.append(vm.op(f"buffer_load_dwordx4 v[{r+4}:{r+7}], v2, s[24:27], s45 offen offset:{(s%4)*1024} {FL}"))
    for s in range(int(os.environ.get("P5D", "8"))):
        hload()
    for s in range(28):
        vm.wait(hid[s])
        r = RB + 8 * (s % DEPTH)
        A0, A1 = f"a[{8*s}:{8*s+3}]", f"a[{8*s+4}:{8*s+7}]"
        B0, B1 = f"v[{r}:{r+3}]", f"v[{r+4}:{r+7}]"
        for t, (a, b) in enumerate(((A0, B0), (A0, B1), (A1, B0), (A1, B1))):
            acc = ACC5 + 16 * t
            c = "0" if s == 0 else f"v[{acc}:{acc+15}]"
            k(f"v_mfma_f32_32x32x16_bf16 v[{acc}:{acc+15}], {a}, {b}, {c}")
            if t == 0:
                hload()
    XU5, TMP5 = 72, 88
    stamp(k, 23)
    for t in (1, 2, 3):
        k(f"""
        s_xor_b32 s56, s3, {t}
        s_mul_i32 s56, s56, 12288
        s_add_u32 s56, s56, {(t-1)*4096}
        v_add_u32 v{3+t}, s56, v2
        """)
    for t in (1, 2, 3):
        for q in range(4):
            k(f"ds_write_b128 v{3+t}, v[{ACC5+16*t+4*q}:{ACC5+16*t+4*q+3}] offset:{q*1024}")
    for i in range(8):
        k(f"v_lshlrev_b32 v{XU5+2*i}, 16, v{X5+i}")
        k(f"v_and_b32 v{XU5+2*i+1}, 0xffff0000, v{X5+i}")
    k(f"""
    s_mul_i32 s56, s3, 12288
    v_add_u32 v3, s56, v2
    s_waitcnt lgkmcnt(0)
    s_barrier
    """)
    for i in range(12):
        k(f"ds_read_b128 v[{TMP5+4*i}:{TMP5+4*i+3}], v3 offset:{i*1024}")
    for sl in range(3):
        k(f"s_waitcnt lgkmcnt({8-4*sl})")
        for i in range(8):
            k(f"v_pk_add_f32 v[{ACC5+2*i}:{ACC5+2*i+1}], v[{ACC5+2*i}:{ACC5+2*i+1}], v[{TMP5+16*sl+2*i}:{TMP5+16*sl+2*i+1}]")
    stamp(k, 24)
    for i in range(8):
        k(f"v_pk_fma_f32 v[{ACC5+2*i}:{ACC5+2*i+1}], v[{G5+2*i}:{G5+2*i+1}], v[{ACC5+2*i}:{ACC5+2*i+1}], v[{XU5+2*i}:{XU5+2*i+1}]")
    for i in range(8):
        k(f"v_cvt_pk_bf16_f32 v{TMP5+i}, v{ACC5+2*i}, v{ACC5+2*i+1}")
    k("s_nop 0")
    for p in range(2):
        t = TMP5 + 4 * p
        k(f"v_permlane32_swap_b32 v{t}, v{t+2}")
        k(f"v_permlane32_swap_b32 v{t+1}, v{t+3}")
        k(f"buffer_store_dwordx4 v[{t}:{t+3}], v253, s[32:35], s47 offen offset:{32*p} {os.environ.get('OUTFL', '')}")
    endpgm(k)
    k.label("L_att_fallback")
    k(f"""
    s_mov_b32 s42, 0
    s_mov_b32 s43, s47
    v_mov_b32 v6, 0xff800000
    v_mov_b32 v7, 0xff800000
    """)
    k.label("L_att_maxloop")
    k(f"""
    buffer_load_dwordx4 v[{KF}:{KF+3}], v2, s[24:27], s43 offen {FL}
    s_add_u32 s43, s43, 2048
    s_waitcnt vmcnt(0)
    v_mfma_f32_32x32x16_bf16 v[{S}:{S+15}], v[{KF}:{KF+3}], v[{Q}:{Q+3}], 0
    v_mfma_f32_32x32x16_bf16 v[{S+16}:{S+31}], v[{KF}:{KF+3}], v[{Q+4}:{Q+7}], 0
    s_nop 10
    """)
    att_max16(k, 6, S, False)
    att_max16(k, 7, S + 16, False)
    k(f"""
    s_add_u32 s42, s42, 1
    s_cmp_lt_u32 s42, 64
    s_cbranch_scc1 L_att_maxloop
    s_nop 0
    v_permlane32_swap_b32 v6, v7
    v_max_f32 v6, v6, v7
    v_mov_b32 v7, v6
    s_nop 1
    v_permlane32_swap_b32 v6, v7
    v_sub_f32 v6, 0, v6
    v_sub_f32 v7, 0, v7
    """)
    for i in range(16):
        k(f"v_mov_b32 v{C+i}, v6")
        k(f"v_mov_b32 v{C+16+i}, v7")
        k(f"v_mov_b32 v{O+i}, 0")
        k(f"v_mov_b32 v{O+16+i}, 0")
    k("s_mov_b32 s42, 0")
    k("s_mov_b32 s43, s47")
    k.label("L_att_redo")
    k(f"""
    buffer_load_dwordx4 v[{KF}:{KF+3}], v2, s[24:27], s43 offen {FL}
    s_mov_b64 exec, s[48:49]
    buffer_load_dwordx4 v[{VF}:{VF+3}], v3, s[24:27], s43 offen offset:1024 {FL}
    buffer_load_dwordx4 v[{VF+4}:{VF+7}], v3, s[24:27], s43 offen offset:1536 {FL}
    s_mov_b64 exec, -1
    s_add_u32 s43, s43, 2048
    s_waitcnt vmcnt(0)
    v_mfma_f32_32x32x16_bf16 v[{S}:{S+15}], v[{KF}:{KF+3}], v[{Q}:{Q+3}], v[{C}:{C+15}]
    v_mfma_f32_32x32x16_bf16 v[{S+16}:{S+31}], v[{KF}:{KF+3}], v[{Q+4}:{Q+7}], v[{C+16}:{C+31}]
    s_nop 10
    """)
    for b in range(2):
        for i in range(16):
            k(f"v_exp_f32 v{S+16*b+i}, v{S+16*b+i}")
        k("s_nop 0")
        for j in range(8):
            k(f"v_cvt_pk_bf16_f32 v{P+j}, v{S+16*b+2*j}, v{S+16*b+2*j+1}")
        k("s_nop 1")
        for h in range(2):
            k(f"v_mfma_f32_32x32x16_bf16 v[{O+16*b}:{O+16*b+15}], v[{VF+4*h}:{VF+4*h+3}], v[{P+4*h}:{P+4*h+3}], v[{O+16*b}:{O+16*b+15}]")
    k(f"""
    s_add_u32 s42, s42, 1
    s_cmp_lt_u32 s42, 64
    s_cbranch_scc1 L_att_redo
    s_nop 10
    s_branch L_att_fin
    """)
    k.label("L_xid_retry")
    k(f"""
    s_mov_b32 s39, 0x40000
    s_mov_b32 s53, {OFF_XID}
    """)
    k.label("L_xid_spin")
    k(f"""
    buffer_load_dwordx4 v[150:153], v2, s[24:27], s53 offen {FL}
    buffer_load_dwordx4 v[154:157], v2, s[24:27], s53 offen offset:32 {FL}
    s_sub_u32 s39, s39, 1
    s_waitcnt vmcnt(0)
    v_min_u32 v158, v150, v151
    v_min_u32 v159, v152, v153
    v_min_u32 v158, v158, v159
    v_xor_b32 v154, v154, v150
    v_xor_b32 v155, v155, v151
    v_cmp_eq_u32 vcc, 0, v158
    v_xor_b32 v156, v156, v152
    v_xor_b32 v157, v157, v153
    s_cbranch_scc1 L_xid_ok
    s_sleep 32
    s_cbranch_vccnz L_xid_spin
    s_branch L_xid_ok
    """)
    k(f"""
    L_mid_retry:
    s_mov_b32 s39, 0x40000
    s_mov_b32 s53, {OFF_XID + 2048}
    L_mid_spin:
    buffer_load_dwordx4 v[150:153], v2, s[24:27], s53 offen {FL}
    s_sub_u32 s39, s39, 1
    s_waitcnt vmcnt(0)
    v_min_u32 v158, v150, v151
    v_min_u32 v159, v152, v153
    v_min_u32 v158, v158, v159
    v_cmp_eq_u32 vcc, 0, v158
    s_cbranch_scc1 L_mid_ok
    s_sleep 32
    s_cbranch_vccnz L_mid_spin
    s_branch L_mid_ok
    """)
    for blk in OOL:
        k.lines += blk
    k.label(f"L_end_{k.name}")
    k("s_endpgm")
    k(".fill (65536 + L_pc_here - .) / 4 + 64, 4, 0xbf810000")
    return k, (256, 256, 163840)


def build(path=OUT):
    ks = [mega()]
    errs = []
    for k, _ in ks:
        errs += k.check()
    for e in errs:
        print(e)
    ref = open(OUT + ".ref").read().split("\n")
    hdr = [l for l in ref if l.startswith(";") and "@launch" not in l and "Override" not in l and "grid=ceil" not in l]
    out = "\n".join(hdr) + "\n"
    for k, (g, b, lds) in ks:
        kn = f"kernel={k.name} " if os.environ.get("ASLIST") else ""
        out += f"; @launch {kn}grid=({g},1,1) block=({b},1,1) lds={lds}\n"
    out += '.amdgcn_target "amdgcn-amd-amdhsa--gfx950"\n'
    codes, kds = zip(*[k.text() for k, _ in ks])
    out += "".join(codes)
    out += '.section .rodata,"a"\n' + "".join(kds)
    open(path, "w").write(out)
    print("wrote", path, len(out), "bytes;", len(errs), "checker errors")
    return len(errs)


if __name__ == "__main__":
    sys.exit(1 if build(sys.argv[1] if len(sys.argv) > 1 else OUT) else 0)
```

```python
import sys
sys.path.insert(0, "gen")
from asmlib import Kern

NAME = "adaLN_cond__mha_block__dense_activation_relu__prompt"
OUT = f"cdna_kernels/{NAME}.s"

MB = 1 << 20
OFF_MOD = 0x0
OFF_UT = 0x4000
OFF_R2 = 0x8000
OFF_XHAT = 0x10000
OFF_WQKV = OFF_XHAT + 2 * MB
OFF_Q = OFF_WQKV + 3 * MB // 2
OFF_KV = OFF_Q + 2 * MB
OFF_O = OFF_KV + 4 * MB
OFF_WO = OFF_O + 2 * MB
OFF_X2 = OFF_WO + MB // 2
OFF_X2S = OFF_X2 + 2 * MB
OFF_ST2 = OFF_X2S + 2 * MB
OFF_W1 = OFF_ST2 + MB // 4
OFF_H = OFF_W1 + 7 * MB // 4
OFF_W2 = OFF_H + 7 * MB
OFF_FLAG = OFF_W2 + 7 * MB // 4
OFF_XID = OFF_FLAG + MB // 4
WS_USED = OFF_XID + 4096
OFF_MODB = 0x3000

import os
DIAG = int(os.environ.get("DIAG", "0"))
OFF_DIAG = (WS_USED + 0xfffff) // MB * MB
if DIAG:
    WS_USED = OFF_DIAG + 8 * MB
QSCALE = 0x3eb8aa3b

P_X, P_WQKV, P_WO, P_BX, P_W1, P_W2, P_C, P_WMOD, P_OUT, P_WS = 4, 6, 8, 10, 12, 14, 16, 18, 20, 22
S_WS = 24
S_W = 3


def srd(k, d, p, size):
    k(f"""
    s_mov_b32 s{d}, s{p}
    s_mov_b32 s{d+1}, s{p+1}
    s_mov_b32 s{d+2}, {size:#x}
    s_mov_b32 s{d+3}, 0x00020000
    """)


NST = 28


def stamp(k, i):
    if DIAG == 1:
        k(f"s_waitcnt lgkmcnt(0)")
        k(f"s_memtime s[94:95]")
        k(f"s_waitcnt lgkmcnt(0)")
        k(f"s_mov_b32 s{64+i}, s94")


def endpgm(k):
    if DIAG and os.environ.get("DBGST"):
        sel = [int(x) for x in os.environ["DBGST"].split(",")]
        k(f"""
        s_waitcnt vmcnt(0) lgkmcnt(0)
        s_memtime s[94:95]
        s_memrealtime s[96:97]
        s_load_dwordx2 s[4:5], s[0:1], 72
        s_waitcnt lgkmcnt(0)
        s_mov_b32 s6, 256
        s_mov_b32 s7, 0x00020000
        s_lshl_b32 s92, s3, 8
        s_add_u32 s92, s92, s2
        s_cmp_lg_u32 s92, 100
        s_cbranch_scc1 L_dbgst_skip
        s_mov_b64 exec, 1
        v_mov_b32 v0, 0
        s_sub_u32 s96, s96, s62
        s_sub_u32 s94, s94, s60
        """)
        regs = [96, 94]
        for i in sel:
            k(f"s_sub_u32 s{64+i}, s{64+i}, s60")
            regs.append(64 + i)
        for q in range(3):
            for i in range(4):
                k(f"v_mov_b32 v{4+i}, s{regs[4*q+i]}")
            k(f"buffer_store_dwordx4 v[4:7], v0, s[4:7], 0 offen offset:{16+16*q}")
            k("s_nop 1")
        k("L_dbgst_skip:")
    elif DIAG:
        kid = getattr(k, 'kid', None) or int(k.name[1])
        k(f"""
        s_waitcnt vmcnt(0) lgkmcnt(0)
        s_memtime s[94:95]
        s_memrealtime s[96:97]
        s_waitcnt lgkmcnt(0)
        s_mov_b64 exec, 1
        s_lshl_b32 s92, s2, 3
        s_add_u32 s92, s92, s3
        s_lshl_b32 s92, s92, 7
        s_add_u32 s92, s92, {OFF_DIAG + kid * MB}
        v_mov_b32 v0, 0
        """)
        regs = [62, 96, 60, 94] + [64 + i for i in range(NST)]
        for q in range(8):
            for i in range(4):
                k(f"v_mov_b32 v{4+i}, s{regs[4*q+i]}")
            k(f"buffer_store_dwordx4 v[4:7], v0, s[24:27], s92 offen offset:{16*q}")
            k("s_nop 1")
    k("s_endpgm")


def prologue(k, nwg):
    if DIAG:
        k("s_memtime s[60:61]")
        k("s_memrealtime s[62:63]")
        for i in range(NST):
            k(f"s_mov_b32 s{64+i}, 0")
    k(f"""
    s_cmp_ge_u32 s2, {nwg}
    s_cbranch_scc1 L_end_{k.name}
    s_load_dwordx16 s[4:19], s[0:1], 0
    s_load_dwordx2 s[20:21], s[0:1], 64
    s_load_dwordx2 s[22:23], s[0:1], 80
    v_lshrrev_b32 v2, 6, v0
    v_and_b32 v1, 63, v0
    v_readfirstlane_b32 s3, v2
    """)


def prologue_wait(k):
    k("s_waitcnt lgkmcnt(0)")
    srd(k, S_WS, P_WS, WS_USED)
    stamp(k, 0)


def epilogue(k):
    endpgm(k)
    k.label(f"L_end_{k.name}")
    k("s_endpgm")


def bf16_round(k, d, s):
    k(f"v_cvt_pk_bf16_f32 v{d}, v{s}, v{s}")
    k(f"v_and_b32 v{d}, 0xffff0000, v{d}")


def allreduce64(k, regs, tmp):
    for ror in (1, 2, 4, 8):
        for r in regs:
            k(f"v_add_f32_dpp v{r}, v{r}, v{r} row_ror:{ror} row_mask:0xf bank_mask:0xf")
        if len(regs) < 3:
            k(f"s_nop {2 - len(regs)}")
    for op in ("v_permlane16_swap_b32", "v_permlane32_swap_b32"):
        for r, t in zip(regs, tmp):
            k(f"v_mov_b32 v{t}, v{r}")
        k("s_nop 1")
        for r, t in zip(regs, tmp):
            k(f"{op} v{t}, v{r}")
        for r, t in zip(regs, tmp):
            k(f"v_add_f32 v{r}, v{t}, v{r}")


def role_mod(k, sj):
    srd(k, 28, P_WMOD, 512 * 3072 * 2)
    srd(k, 32, P_C, 1024)
    k(f"""
    v_lshlrev_b32 v2, 2, v0
    v_mov_b32 v3, 0
    s_mov_b32 s40, {OFF_XID}
    buffer_store_dword v3, v2, s[24:27], s40 offen
    v_lshlrev_b32 v2, 1, v0
    buffer_load_ushort v4, v2, s[32:35], 0 offen
    v_lshrrev_b32 v3, 2, v0
    v_and_b32 v5, 3, v0
    v_mul_u32_u24 v6, 6144, v3
    v_lshl_add_u32 v6, v5, 4, v6
    s_lshl_b32 s40, s{sj}, 6
    s_add_u32 s41, s40, {128*6144}
    s_add_u32 s42, s40, {256*6144}
    s_add_u32 s43, s40, {384*6144}
    buffer_load_dwordx4 v[8:11], v6, s[28:31], s40 offen
    buffer_load_dwordx4 v[12:15], v6, s[28:31], s41 offen
    buffer_load_dwordx4 v[16:19], v6, s[28:31], s42 offen
    buffer_load_dwordx4 v[20:23], v6, s[28:31], s43 offen
    s_waitcnt vmcnt(4)
    v_lshlrev_b32 v4, 16, v4
    v_mul_f32 v7, 0xbfb8aa3b, v4
    v_exp_f32 v7, v7
    s_nop 0
    v_add_f32 v7, 1.0, v7
    v_rcp_f32 v7, v7
    s_nop 0
    v_mul_f32 v7, v4, v7
    """)
    bf16_round(k, 7, 7)
    k("""
    v_lshlrev_b32 v2, 2, v0
    ds_write_b32 v2, v7
    s_waitcnt lgkmcnt(0)
    s_barrier
    v_lshlrev_b32 v2, 2, v3
    ds_read_b32 v24, v2
    ds_read_b32 v25, v2 offset:512
    ds_read_b32 v26, v2 offset:1024
    ds_read_b32 v27, v2 offset:1536
    """)
    for p in range(4):
        k(f"s_waitcnt vmcnt({3-p}) lgkmcnt({3-p})")
        for i in range(4):
            src = 8 + 4 * p + i
            k(f"v_lshlrev_b32 v40, 16, v{src}")
            k(f"v_and_b32 v41, 0xffff0000, v{src}")
            op = "v_mul_f32" if p == 0 else "v_fmac_f32"
            k(f"{op} v{32+2*i}, v{24+p}, v40")
            k(f"{op} v{33+2*i}, v{24+p}, v41")
    k("s_nop 1")
    for ror in (4, 8):
        for r in range(32, 40):
            k(f"v_add_f32_dpp v{r}, v{r}, v{r} row_ror:{ror} row_mask:0xf bank_mask:0xf")
    k("""
    v_lshrrev_b32 v2, 4, v0
    v_lshlrev_b32 v2, 7, v2
    v_lshl_add_u32 v2, v5, 5, v2
    ds_write_b128 v2, v[32:35] offset:2048
    ds_write_b128 v2, v[36:39] offset:2064
    s_waitcnt lgkmcnt(0)
    s_barrier
    s_cmp_lg_u32 s3, 0
    """)
    k(f"s_cbranch_scc1 L_end_{k.name}")
    k("""
    v_and_b32 v3, 31, v1
    v_lshrrev_b32 v2, 5, v1
    v_lshlrev_b32 v2, 11, v2
    v_lshl_add_u32 v2, v3, 2, v2
    """)
    for i in range(16):
        k(f"ds_read_b32 v{8+i}, v2 offset:{2048+128*i}")
        if i == 7:
            k("s_waitcnt lgkmcnt(0)")
    k("s_waitcnt lgkmcnt(0)")
    n = 16
    while n > 1:
        for i in range(n // 2):
            k(f"v_add_f32 v{8+i}, v{8+i}, v{8+i+n//2}")
        n //= 2
    k("""
    v_mov_b32 v9, v8
    s_nop 1
    v_permlane32_swap_b32 v9, v8
    v_add_f32 v8, v9, v8
    """)
    bf16_round(k, 8, 8)
    k(f"""
    s_lshr_b32 s40, s{sj}, 4
    s_cmp_eq_u32 s40, 1
    s_cselect_b32 s41, 1.0, 0
    s_cmp_eq_u32 s40, 4
    s_cselect_b32 s41, 1.0, s41
    v_add_f32 v8, s41, v8
    """)
    bf16_round(k, 8, 8)
    k(f"""
    v_lshlrev_b32 v3, 2, v3
    s_lshl_b32 s40, s{sj}, 7
    s_add_u32 s40, s40, {OFF_MOD}
    buffer_store_dword v8, v3, s[24:27], s40 offen
    """)
    k(f"""
    s_lshr_b32 s40, s{sj}, 4
    s_sub_u32 s40, 4, s40
    s_cmp_gt_u32 s40, 1
    s_cbranch_scc1 L_k0_mod_done
    s_lshl_b32 s40, s40, 10
    s_and_b32 s41, s{sj}, 15
    s_lshl_b32 s41, s41, 6
    s_add_u32 s40, s40, s41
    s_add_u32 s40, s40, {OFF_MODB}
    v_and_b32 v3, 31, v1
    v_lshrrev_b32 v4, 4, v3
    v_lshlrev_b32 v4, 5, v4
    v_bfe_u32 v5, v3, 2, 1
    v_lshl_add_u32 v4, v5, 4, v4
    v_bfe_u32 v5, v3, 3, 1
    v_lshl_add_u32 v4, v5, 3, v4
    v_and_b32 v5, 3, v3
    v_lshl_add_u32 v4, v5, 1, v4
    buffer_store_short_d16_hi v8, v4, s[24:27], s40 offen
    """)
    k.label("L_k0_mod_done")
    endpgm(k)


def ln_stats_finish(k, s, q, m_out, r_out, t0, std_out=None):
    k(f"""
    v_mul_f32 v{s}, 0x3b000000, v{s}
    v_mul_f32 v{q}, 0x3b000000, v{q}
    v_fma_f32 v{q}, -v{s}, v{s}, v{q}
    v_max_f32 v{q}, 0, v{q}
    """)
    bf16_round(k, m_out, s)
    bf16_round(k, q, q)
    k(f"v_add_f32 v{q}, 0x3727c5ac, v{q}")
    bf16_round(k, q, q)
    k(f"v_sqrt_f32 v{q}, v{q}")
    k("s_nop 0")
    d = std_out if std_out is not None else t0
    bf16_round(k, d, q)
    k(f"v_rcp_f32 v{r_out}, v{d}")
    k("s_nop 0")


def role_ln(k, si):
    srd(k, 28, P_X, 2048 * 1024)
    k(f"""
    s_lshl_b32 s40, s{si}, 3
    s_add_u32 s40, s40, s3
    s_lshl_b32 s40, s40, 8
    s_add_u32 s40, s40, {OFF_FLAG}
    v_lshlrev_b32 v2, 2, v1
    v_mov_b32 v3, 0
    buffer_store_dword v3, v2, s[24:27], s40 offen
    """)
    k(f"""
    v_lshlrev_b32 v2, 4, v1
    s_lshl_b32 s40, s{si}, 14
    s_lshl_b32 s41, s3, 11
    s_add_u32 s40, s40, s41
    buffer_load_dwordx4 v[8:11], v2, s[28:31], s40 offen
    buffer_load_dwordx4 v[12:15], v2, s[28:31], s40 offen offset:1024
    s_add_u32 s40, s40, {OFF_XHAT}
    """)
    for row in range(2):
        k(f"s_waitcnt vmcnt({1-row})")
        b = 16 + 8 * row
        for i in range(4):
            k(f"v_lshlrev_b32 v{b+2*i}, 16, v{8+4*row+i}")
            k(f"v_and_b32 v{b+2*i+1}, 0xffff0000, v{8+4*row+i}")
        s, q = 32 + 2 * row, 33 + 2 * row
        k(f"v_add_f32 v{s}, v{b}, v{b+1}")
        k(f"v_mul_f32 v{q}, v{b}, v{b}")
        for i in range(1, 8):
            if i >= 2:
                k(f"v_add_f32 v{s}, v{s}, v{b+i}")
            k(f"v_fmac_f32 v{q}, v{b+i}, v{b+i}")
    k("s_nop 1")
    allreduce64(k, [32, 33, 34, 35], [36, 37, 38, 39])
    for row in range(2):
        s, q = 32 + 2 * row, 33 + 2 * row
        ln_stats_finish(k, s, q, 40, 41, 42)
        k("v_mul_f32 v40, v40, v41")
        b = 16 + 8 * row
        for i in range(8):
            k(f"v_fma_f32 v{b+i}, v{b+i}, v41, -v40")
        for i in range(4):
            k(f"v_cvt_pk_bf16_f32 v{8+4*row+i}, v{b+2*i}, v{b+2*i+1}")
        k(f"buffer_store_dwordx4 v[{8+4*row}:{11+4*row}], v2, s[24:27], s40 offen offset:{1024*row}")
    endpgm(k)


def role_relayout(k, tag, ptr, nrows, ncols, typ, sjob, ncg, lds_base=0):
    stride = ncols * 2
    srd(k, 28, ptr, nrows * stride)
    magic = (1 << 16) // ncg + 1
    k(f"""
    s_mul_i32 s40, s{sjob}, {magic}
    s_lshr_b32 s40, s40, 16
    s_mul_i32 s41, s40, {ncg}
    s_sub_u32 s41, s{sjob}, s41
    v_lshrrev_b32 v2, 3, v1
    v_and_b32 v3, 7, v1
    v_mul_u32_u24 v2, {stride}, v2
    v_lshl_add_u32 v2, v3, 4, v2
    s_mul_i32 s42, s40, {128*stride}
    s_lshl_b32 s43, s41, 7
    s_add_u32 s42, s42, s43
    s_mul_i32 s43, s3, {16*stride}
    s_add_u32 s42, s42, s43
    s_lshl_b32 s44, s3, 11
    s_add_u32 m0, s44, {lds_base}
    s_add_u32 s43, s42, {8*stride}
    buffer_load_dwordx4 v2, s[28:31], s42 offen lds
    s_add_u32 m0, s44, {lds_base+1024}
    s_nop 0
    buffer_load_dwordx4 v2, s[28:31], s43 offen lds
    """)
    k("""
    v_and_b32 v3, 15, v1
    v_lshrrev_b32 v4, 4, v1
    v_lshrrev_b32 v5, 2, v3
    v_and_b32 v6, 3, v3
    v_lshlrev_b32 v6, 3, v6
    v_lshl_add_u32 v6, v5, 7, v6
    v_and_b32 v7, 1, v4
    v_lshrrev_b32 v8, 1, v4
    """)
    if typ == "A":
        k("v_lshl_add_u32 v6, v4, 10, v6")
        second = 4 * 128
    elif typ == "C":
        k("v_lshl_add_u32 v6, v8, 11, v6")
        k("v_lshl_add_u32 v6, v7, 9, v6")
        second = 8 * 128
    elif typ == "B":
        k("v_lshl_add_u32 v6, v7, 5, v6")
        k("v_lshl_add_u32 v6, v8, 9, v6")
        second = 8 * 128
    elif typ == "D":
        k("v_lshl_add_u32 v6, v7, 5, v6")
        k("v_lshl_add_u32 v6, v8, 10, v6")
        second = 4 * 128
    if typ in "AC":
        k(f"""
        s_lshr_b32 s45, s3, 1
        s_and_b32 s46, s3, 1
        s_lshl_b32 s47, s45, 12
        s_lshl_b32 s48, s46, 6
        s_add_u32 s47, s47, s48
        s_add_u32 s47, s47, {lds_base}
        v_add_u32 v6, s47, v6
        s_lshl_b32 s48, s40, 2
        s_add_u32 s45, s45, s48
        s_lshl_b32 s48, s41, 2
        s_lshl_b32 s46, s46, 1
        s_add_u32 s46, s46, s48
        """)
        frag2 = 32
        for f in range(2):
            sd = 50 + f
            if f:
                k("s_add_u32 s46, s46, 1")
            if typ == "A":
                k(f"""
                s_and_b32 s48, s46, 31
                s_lshl_b32 s48, s48, 4
                s_add_u32 s48, s48, s45
                s_mul_i32 s48, s48, 3
                s_lshr_b32 s49, s46, 5
                s_add_u32 s48, s48, s49
                s_lshl_b32 s48, s48, 10
                s_add_u32 s{sd}, s48, {OFF_WQKV}
                """)
            else:
                k(f"""
                s_mul_i32 s48, s46, 9363
                s_lshr_b32 s48, s48, 16
                s_mul_i32 s49, s48, 7
                s_sub_u32 s49, s46, s49
                s_lshl_b32 s48, s48, 4
                s_add_u32 s48, s48, s45
                s_mul_i32 s48, s48, 7
                s_add_u32 s48, s48, s49
                s_lshl_b32 s48, s48, 10
                s_add_u32 s{sd}, s48, {OFF_W1}
                """)
    else:
        nks = nrows // 16
        off = OFF_WO if typ == "B" else OFF_W2
        k(f"""
        s_lshl_b32 s47, s3, 11
        s_add_u32 s47, s47, {lds_base}
        v_add_u32 v6, s47, v6
        s_lshl_b32 s45, s40, 3
        s_add_u32 s45, s45, s3
        s_mul_i32 s48, s41, {2*nks}
        s_add_u32 s48, s48, s45
        s_lshl_b32 s48, s48, 10
        s_add_u32 s50, s48, {off}
        s_add_u32 s51, s50, {nks*1024}
        """)
        frag2 = 64
    k(f"""
    v_lshlrev_b32 v2, 4, v1
    s_waitcnt vmcnt(0)
    s_barrier
    ds_read_b64_tr_b16 v[8:9], v6
    ds_read_b64_tr_b16 v[10:11], v6 offset:{second}
    ds_read_b64_tr_b16 v[12:13], v6 offset:{frag2}
    ds_read_b64_tr_b16 v[14:15], v6 offset:{frag2+second}
    s_waitcnt lgkmcnt(2)
    buffer_store_dwordx4 v[8:11], v2, s[24:27], s50 offen
    s_waitcnt lgkmcnt(0)
    buffer_store_dwordx4 v[12:15], v2, s[24:27], s51 offen
    """)
    endpgm(k)


def k0():
    k = Kern("k0_prep_kernel", nvgpr=48)
    roles = [("mod", 96), ("ln", 128), ("wqkv", 96), ("wo", 32), ("w1", 112), ("w2", 112)]
    total = sum(n for _, n in roles)
    prologue(k, total)
    prologue_wait(k)
    base = 0
    for name, n in roles:
        k(f"s_sub_u32 s39, s2, {base}")
        k(f"s_cmp_lt_u32 s2, {base+n}")
        k(f"s_cbranch_scc1 L_k0_{name}")
        base += n
    k("s_endpgm")
    k.label("L_k0_mod"); role_mod(k, 39)
    k.label("L_k0_ln"); role_ln(k, 39)
    k.label("L_k0_wqkv"); role_relayout(k, "wqkv", P_WQKV, 512, 1536, "A", 39, 24)
    k.label("L_k0_wo"); role_relayout(k, "wo", P_WO, 512, 512, "B", 39, 8)
    k.label("L_k0_w1"); role_relayout(k, "w1", P_W1, 512, 1792, "C", 39, 28)
    k.label("L_k0_w2"); role_relayout(k, "w2", P_W2, 1792, 512, "D", 39, 8)
    k.label(f"L_end_{k.name}")
    k("s_endpgm")
    return k, (total, 512, 16384)


def k1():
    k = Kern("k1_qkv_kernel", nvgpr=184, nagpr=192)
    prologue(k, 256)
    VA, VB, ROWS, TMP, ACC = 8, 16, 24, 88, 136
    FR = 104
    k(f"""
    s_and_b32 s40, s2, 7
    s_lshr_b32 s41, s2, 3
    s_lshr_b32 s42, s40, 1
    s_lshl_b32 s42, s42, 3
    s_and_b32 s43, s41, 7
    s_add_u32 s42, s42, s43        ; tb
    s_and_b32 s43, s40, 1
    s_lshl_b32 s43, s43, 2
    s_lshr_b32 s44, s41, 3
    s_add_u32 s43, s43, s44        ; cb
    s_lshl_b32 s43, s43, 2
    s_add_u32 s43, s43, s3         ; head
    v_lshlrev_b32 v2, 4, v1        ; lane*16
    v_lshlrev_b32 v3, 5, v1        ; lane*32
    s_lshl_b32 s44, s42, 16
    s_lshl_b32 s45, s3, 14
    s_add_u32 s44, s44, s45
    s_add_u32 s44, s44, {OFF_XHAT}
    s_mul_i32 s46, s43, {48*1024}
    s_add_u32 s46, s46, {OFF_WQKV}
    """)
    prologue_wait(k)
    k(f"""
    buffer_load_dwordx4 v[{VB}:{VB+3}], v3, s[24:27], 0 offen offset:{OFF_MOD}
    buffer_load_dwordx4 v[{VB+4}:{VB+7}], v3, s[24:27], 0 offen offset:{OFF_MOD+16}
    buffer_load_dwordx4 v[{VA}:{VA+3}], v3, s[24:27], 0 offen offset:{OFF_MOD+2048}
    buffer_load_dwordx4 v[{VA+4}:{VA+7}], v3, s[24:27], 0 offen offset:{OFF_MOD+2064}
    """)
    for r in range(16):
        if r and r % 4 == 0:
            k("s_add_u32 s44, s44, 4096")
        k(f"buffer_load_dwordx4 v[{ROWS+4*r}:{ROWS+4*r+3}], v2, s[24:27], s44 offen offset:{(r%4)*1024}")
    NW1 = 40
    def wload(i):
        if i and i % 4 == 0:
            k("s_add_u32 s46, s46, 4096")
        k(f"buffer_load_dwordx4 a[{4*i}:{4*i+3}], v2, s[24:27], s46 offen offset:{(i%4)*1024}")
    for i in range(NW1):
        wload(i)
    k(f"""
    v_and_b32 v4, 7, v1
    v_lshlrev_b32 v4, 4, v4
    v_lshl_add_u32 v4, v1, 8, v4
    v_add_u32 v4, s45, v4
    v_and_b32 v5, 15, v1
    v_lshrrev_b32 v6, 4, v1
    v_xor_b32 v7, v5, v6
    v_lshlrev_b32 v7, 4, v7
    v_lshl_add_u32 v6, v6, 8, v7
    v_xor_b32 v7, 64, v6
    """)
    stamp(k, 1)
    nw = NW1
    for r in range(16):
        k(f"s_waitcnt vmcnt({min(63, (15 - r) + nw)})")
        b = ROWS + 4 * r
        t = TMP + 8 * (r & 1)
        for i in range(4):
            k(f"v_lshlrev_b32 v{t+2*i}, 16, v{b+i}")
            k(f"v_and_b32 v{t+2*i+1}, 0xffff0000, v{b+i}")
        for i in range(4):
            k(f"v_pk_fma_f32 v[{t+2*i}:{t+2*i+1}], v[{t+2*i}:{t+2*i+1}], v[{VA+2*i}:{VA+2*i+1}], v[{VB+2*i}:{VB+2*i+1}]")
        for i in range(4):
            k(f"v_cvt_pk_bf16_f32 v{b+i}, v{t+2*i}, v{t+2*i+1}")
        k(f"v_xor_b32 v5, {r<<4}, v4")
        k(f"ds_write_b128 v5, v[{b}:{b+3}]")
        if nw < 48:
            wload(nw); nw += 1
    k("s_waitcnt lgkmcnt(0)")
    stamp(k, 2)
    k("s_barrier")
    stamp(k, 3)
    def aread(s):
        base = 6 + (s & 1)
        f = FR + 16 * (s & 1)
        for b in range(4):
            k(f"ds_read_b128 v[{f+4*b}:{f+4*b+3}], v{base} offset:{b*16384+s*1024}")
    aread(0)
    for s in range(16):
        if s < 15:
            aread(s + 1)
            k(f"s_waitcnt vmcnt({45-3*s}) lgkmcnt(4)")
        else:
            k("s_waitcnt vmcnt(0) lgkmcnt(0)")
        f = FR + 16 * (s & 1)
        for b in range(4):
            for which in range(3):
                acc = ACC + 4 * (which * 4 + b)
                w = f"a[{12*s+4*which}:{12*s+4*which+3}]"
                h = f"v[{f+4*b}:{f+4*b+3}]"
                c = "0" if s == 0 else f"v[{acc}:{acc+3}]"
                a_, b_ = (w, h) if which < 2 else (h, w)
                k(f"v_mfma_f32_16x16x32_bf16 v[{acc}:{acc+3}], {a_}, {b_}, {c}")
    stamp(k, 4)
    k(f"""
    v_and_b32 v5, 15, v1
    v_lshrrev_b32 v6, 4, v1
    v_and_b32 v7, 1, v6
    v_lshrrev_b32 v6, 1, v6
    v_lshlrev_b32 v5, 4, v5
    v_lshl_add_u32 v8, v6, 9, v5
    v_lshl_add_u32 v8, v7, 3, v8      ; q/k voffset
    v_lshl_add_u32 v9, v7, 8, v5
    v_lshl_add_u32 v9, v6, 3, v9      ; v voffset
    s_lshl_b32 s44, s43, 16
    s_lshl_b32 s45, s42, 11
    s_add_u32 s44, s44, s45
    s_add_u32 s44, s44, {OFF_Q}
    s_lshl_b32 s46, s43, 17
    s_lshl_b32 s45, s42, 12
    s_add_u32 s46, s46, s45
    s_add_u32 s46, s46, {OFF_KV}
    v_mov_b32 v10, {QSCALE:#x}
    """)
    for which in range(3):
        for b in range(4):
            acc = ACC + 4 * (which * 4 + b)
            t = 12 + 2 * (which * 4 + b)
            if which == 0:
                for i in range(4):
                    k(f"v_mul_f32 v{acc+i}, v10, v{acc+i}")
            k(f"v_cvt_pk_bf16_f32 v{t}, v{acc}, v{acc+1}")
            k(f"v_cvt_pk_bf16_f32 v{t+1}, v{acc+2}, v{acc+3}")
            if which == 0:
                k(f"buffer_store_dwordx2 v[{t}:{t+1}], v8, s[24:27], s44 offen offset:{(b>>1)*1024+(b&1)*256}")
            elif which == 1:
                k(f"buffer_store_dwordx2 v[{t}:{t+1}], v8, s[24:27], s46 offen offset:{(b>>1)*2048+(b&1)*256}")
            else:
                k(f"buffer_store_dwordx2 v[{t}:{t+1}], v9, s[24:27], s46 offen offset:{(b>>1)*2048+1024+(b&1)*512}")
    epilogue(k)
    return k, (256, 256, 65536)


def k2():
    k = Kern("k2_attn_kernel", nvgpr=112)
    prologue(k, 256)
    Q, KF, VF, S, P, O, C = 8, 12, 20, 36, 68, 76, 92
    k(f"""
    s_and_b32 s40, s2, 7
    s_lshr_b32 s41, s2, 3
    s_lshl_b32 s40, s40, 2
    s_and_b32 s42, s41, 3
    s_add_u32 s40, s40, s42        ; head
    s_lshr_b32 s41, s41, 2         ; qblock256
    s_lshl_b32 s41, s41, 3
    s_add_u32 s41, s41, s3         ; qblock32
    v_lshlrev_b32 v2, 4, v1        ; lane*16
    s_lshl_b32 s42, s40, 16
    s_lshl_b32 s43, s41, 10
    s_add_u32 s42, s42, s43
    s_add_u32 s42, s42, {OFF_Q}
    s_lshl_b32 s44, s40, 17
    s_lshl_b32 s45, s3, 10
    s_add_u32 s44, s44, s45
    s_add_u32 s44, s44, {OFF_KV}
    s_lshl_b32 s46, s41, 15
    s_lshl_b32 s47, s40, 10
    s_add_u32 s46, s46, s47
    s_add_u32 s46, s46, {OFF_O}
    """)
    prologue_wait(k)
    k(f"buffer_load_dwordx4 v[{Q}:{Q+3}], v2, s[24:27], s42 offen")
    for i in range(16):
        k(f"s_add_u32 m0, s45, {i*8192}")
        if i:
            k("s_add_u32 s44, s44, 8192")
        else:
            k("s_nop 0")
        k("buffer_load_dwordx4 v2, s[24:27], s44 offen lds")
    k(f"""
    v_and_b32 v3, 15, v1
    v_lshlrev_b32 v3, 4, v3
    v_lshrrev_b32 v4, 5, v1
    v_lshl_add_u32 v3, v4, 8, v3
    s_mov_b32 s48, 0x0000ffff
    s_mov_b32 s49, 0x0000ffff
    s_mov_b32 s52, 0
    """)
    for i in range(16):
        k(f"v_mov_b32 v{VF+i}, 0x3f803f80")
    stamp(k, 1)
    k("s_waitcnt vmcnt(15)")
    k("s_barrier")
    stamp(k, 2)
    k(f"""
    ds_read_b128 v[{KF}:{KF+3}], v2
    s_waitcnt lgkmcnt(0)
    v_mfma_f32_32x32x16_bf16 v[{S}:{S+15}], v[{KF}:{KF+3}], v[{Q}:{Q+3}], 0
    s_nop 15
    """)
    def max16(dst, b, first):
        if first:
            k(f"v_max3_f32 v{dst}, v{b}, v{b+1}, v{b+2}")
            k(f"v_max_f32 v{dst}, v{dst}, v{b+3}")
        else:
            k(f"v_max3_f32 v{dst}, v{dst}, v{b}, v{b+1}")
            k(f"v_max3_f32 v{dst}, v{dst}, v{b+2}, v{b+3}")
        for i in range(4, 16, 2):
            k(f"v_max3_f32 v{dst}, v{dst}, v{b+i}, v{b+i+1}")
    max16(5, S, True)
    k.label("L_k2_setmax")
    k("""
    v_mov_b32 v6, v5
    s_nop 1
    v_permlane32_swap_b32 v6, v5
    v_max_f32 v5, v5, v6
    v_sub_f32 v5, 0, v5
    """)
    for i in range(16):
        k(f"v_mov_b32 v{C+i}, v5")
    for i in range(16):
        k(f"v_mov_b32 v{O+i}, 0")
    stamp(k, 3)
    k(f"""
    v_mov_b32 v6, v2
    v_mov_b32 v7, v3
    ds_read_b128 v[{KF}:{KF+3}], v6
    ds_read_b128 v[{KF+4}:{KF+7}], v6 offset:2048
    s_mov_b64 exec, s[48:49]
    ds_read_b128 v[{VF}:{VF+3}], v7 offset:1024
    ds_read_b128 v[{VF+4}:{VF+7}], v7 offset:1536
    s_mov_b64 exec, -1
    s_waitcnt lgkmcnt(3)
    v_mfma_f32_32x32x16_bf16 v[{S}:{S+15}], v[{KF}:{KF+3}], v[{Q}:{Q+3}], v[{C}:{C+15}]
    s_mov_b32 s50, 0
    s_nop 7
    """)
    k.label("L_k2_loop")
    k(f"""
    s_cmp_lg_u32 s52, 0
    s_cbranch_scc1 L_k2_nobar
    s_cmp_eq_u32 s50, 0
    s_cbranch_scc0 L_k2_b2
    s_waitcnt vmcnt(12)
    s_barrier
    s_branch L_k2_nobar
    """)
    k.label("L_k2_b2")
    k(f"""
    s_cmp_eq_u32 s50, 3
    s_cbranch_scc0 L_k2_nobar
    s_waitcnt vmcnt(0)
    s_barrier
    """)
    k.label("L_k2_nobar")
    for u in range(4):
        cur, nxt = u & 1, (u + 1) & 1
        Sc, Sn = S + 16 * cur, S + 16 * nxt
        Kn = KF + 4 * nxt
        Kc = KF + 4 * cur
        Vc, Vn = VF + 8 * cur, VF + 8 * nxt
        k("s_waitcnt lgkmcnt(2)")
        k(f"v_mfma_f32_32x32x16_bf16 v[{Sn}:{Sn+15}], v[{Kn}:{Kn+3}], v[{Q}:{Q+3}], v[{C}:{C+15}]")
        k(f"ds_read_b128 v[{Kc}:{Kc+3}], v6 offset:{(u+2)*2048}")
        k("s_mov_b64 exec, s[48:49]")
        k(f"ds_read_b128 v[{Vn}:{Vn+3}], v7 offset:{(u+1)*2048+1024}")
        k(f"ds_read_b128 v[{Vn+4}:{Vn+7}], v7 offset:{(u+1)*2048+1536}")
        k("s_mov_b64 exec, -1")
        for half in range(2):
            b = Sc + 8 * half
            for i in range(8):
                k(f"v_exp_f32 v{b+i}, v{b+i}")
                if i >= 3 and i % 2 == 1:
                    j = (i - 3) // 2
                    k(f"v_cvt_pk_bf16_f32 v{P+4*half+j}, v{b+2*j}, v{b+2*j+1}")
            if half == 0:
                k("s_waitcnt lgkmcnt(3)")
            else:
                k("s_nop 0")
            k(f"v_cvt_pk_bf16_f32 v{P+4*half+3}, v{b+6}, v{b+7}")
            if half == 1 and u == 3:
                k("v_add_u32 v6, 0x2000, v6")
                k("v_add_u32 v7, 0x2000, v7")
            else:
                k("s_nop 1")
            k(f"v_mfma_f32_32x32x16_bf16 v[{O}:{O+15}], v[{Vc+4*half}:{Vc+4*half+3}], v[{P+4*half}:{P+4*half+3}], v[{O}:{O+15}]")
    k(f"""
    s_add_u32 s50, s50, 1
    s_cmp_lt_u32 s50, 16
    s_cbranch_scc1 L_k2_loop
    s_waitcnt lgkmcnt(0)
    s_nop 15
    """)
    stamp(k, 4)
    k(f"""
    s_mov_b32 s53, 0x53800000
    v_cmp_nge_f32 vcc, s53, v{O+8}
    s_cmp_lg_u32 s52, 0
    s_cbranch_scc1 L_k2_fin
    s_nop 3
    s_cmp_eq_u64 vcc, 0
    s_cbranch_scc1 L_k2_fin
    """)
    k(f"""
    s_mov_b32 s52, 1
    s_mov_b32 s50, 0
    v_mov_b32 v6, v2
    v_mov_b32 v5, 0xff800000
    """)
    k.label("L_k2_maxloop")
    k(f"""
    ds_read_b128 v[{KF}:{KF+3}], v6
    v_add_u32 v6, 0x800, v6
    s_waitcnt lgkmcnt(0)
    v_mfma_f32_32x32x16_bf16 v[{S}:{S+15}], v[{KF}:{KF+3}], v[{Q}:{Q+3}], 0
    s_nop 15
    """)
    max16(5, S, False)
    k(f"""
    s_add_u32 s50, s50, 1
    s_cmp_lt_u32 s50, 64
    s_cbranch_scc1 L_k2_maxloop
    s_branch L_k2_setmax
    """)
    k.label("L_k2_fin")
    k(f"v_rcp_f32 v5, v{O+8}")
    k("s_nop 0")
    for i in range(8):
        k(f"v_mul_f32 v{O+i}, v5, v{O+i}")
    for i in range(4):
        k(f"v_cvt_pk_bf16_f32 v{P+i}, v{O+2*i}, v{O+2*i+1}")
    k(f"buffer_store_dwordx4 v[{P}:{P+3}], v2, s[24:27], s46 offen")
    epilogue(k)
    return k, (256, 512, 131072 + 4096 + 1024)


ATT = dict(Q=8, KF=16, VF=20, S=36, P=68, O=76, C=108)


def att_unit(k, u, side, last=False):
    Q, KF, VF, S, P, O, C = (ATT[x] for x in ("Q", "KF", "VF", "S", "P", "O", "C"))
    blk = u & 1
    t = u >> 1
    Sc, Sp = S + 16 * blk, S + 16 * (blk ^ 1)
    def E(i): return f"v_exp_f32 v{Sc+i}, v{Sc+i}"
    def Cv(j, base=None):
        b = Sc if base is None else base
        return f"v_cvt_pk_bf16_f32 v{P+j}, v{b+2*j}, v{b+2*j+1}"
    def PV(uu, half):
        o = O + 16 * (uu & 1)
        v = VF + 8 * ((uu >> 1) & 1) + 4 * half
        c = "0" if (uu < 2 and half == 0) else f"v[{o}:{o+15}]"
        return f"v_mfma_f32_32x32x16_bf16 v[{o}:{o+15}], v[{v}:{v+3}], v[{P+4*half}:{P+4*half+3}], {c}"
    def QK(uu):
        b = uu & 1
        return f"v_mfma_f32_32x32x16_bf16 v[{S+16*b}:{S+16*b+15}], v[{KF}:{KF+3}], v[{Q+4*b}:{Q+4*b+3}], v[{C+16*b}:{C+16*b+15}]"
    seq = [E(0), E(1), Cv(7, Sp) if u > 0 else None, E(2), Cv(0), E(3), PV(u - 1, 1) if u > 0 else None,
           E(4), Cv(1), E(5), E(6), Cv(2), E(7), QK(u + 1) if not last else None,
           E(8), Cv(3), E(9), E(10), Cv(4), E(11), PV(u, 0), E(12), Cv(5), E(13), E(14), Cv(6), E(15)]
    for i, ins in enumerate(seq, 1):
        for x in side.get(-i, []):
            k(x)
        if ins:
            k(ins)
        for x in side.get(i, []):
            k(x)


def att_max16(k, dst, b, first):
    if first:
        k(f"v_max3_f32 v{dst}, v{b}, v{b+1}, v{b+2}")
        k(f"v_max_f32 v{dst}, v{dst}, v{b+3}")
    else:
        k(f"v_max3_f32 v{dst}, v{dst}, v{b}, v{b+1}")
        k(f"v_max3_f32 v{dst}, v{dst}, v{b+2}, v{b+3}")
    for i in range(4, 16, 2):
        k(f"v_max3_f32 v{dst}, v{dst}, v{b+i}, v{b+i+1}")


def k2b():
    k = Kern("k2_attn_kernel", nvgpr=144)
    prologue(k, 256)
    Q, KF, VF, S, P, O, C = (ATT[x] for x in ("Q", "KF", "VF", "S", "P", "O", "C"))
    k(f"""
    s_and_b32 s40, s2, 7
    s_lshr_b32 s41, s2, 3
    s_lshl_b32 s40, s40, 2
    s_and_b32 s42, s41, 3
    s_add_u32 s40, s40, s42        ; head
    s_lshr_b32 s41, s41, 2         ; qblock256
    s_lshl_b32 s41, s41, 2
    s_add_u32 s41, s41, s3         ; qblock64
    v_lshlrev_b32 v2, 4, v1        ; lane*16
    s_lshl_b32 s42, s40, 16
    s_lshl_b32 s43, s41, 11
    s_add_u32 s42, s42, s43
    s_add_u32 s42, s42, {OFF_Q}
    s_lshl_b32 s44, s40, 17
    s_lshl_b32 s45, s3, 10
    s_add_u32 s47, s44, {OFF_KV}
    s_add_u32 s44, s47, s45
    s_lshl_b32 s46, s41, 16
    s_lshl_b32 s43, s40, 10
    s_add_u32 s46, s46, s43
    s_add_u32 s46, s46, {OFF_O}
    s_mov_b32 m0, s45
    """)
    prologue_wait(k)
    rounds = [0]
    def dma():
        i = rounds[0]; rounds[0] += 1
        out = []
        if i:
            out += ["s_add_u32 m0, m0, 4096", "s_add_u32 s44, s44, 4096"]
        out += ["buffer_load_dwordx4 v2, s[24:27], s44 offen lds"]
        return out
    for x in dma(): k(x)
    k(f"buffer_load_dwordx4 v[{Q}:{Q+3}], v2, s[24:27], s42 offen")
    k(f"buffer_load_dwordx4 v[{Q+4}:{Q+7}], v2, s[24:27], s42 offen offset:1024")
    for r in range(3):
        for x in dma(): k(x)
    k(f"""
    v_and_b32 v3, 15, v1
    v_lshlrev_b32 v3, 4, v3
    v_lshrrev_b32 v4, 5, v1
    v_lshl_add_u32 v3, v4, 8, v3
    v_add_u32 v4, 0x10000, v2
    v_add_u32 v5, 0x10000, v3
    s_mov_b32 s48, 0x0000ffff
    s_mov_b32 s49, 0x0000ffff
    v_and_b32 v6, 27, v1
    v_cmp_eq_u32 vcc, 16, v6
    v_mov_b32 v7, 0x3f803f80
    s_nop 0
    v_cndmask_b32 v7, 0, v7, vcc
    """)
    for i in range(16):
        k(f"v_mov_b32 v{VF+i}, v7")
    stamp(k, 1)
    k("s_waitcnt vmcnt(3)")
    k("s_barrier")
    stamp(k, 2)
    def kread(t):
        off = t * 2048
        return f"ds_read_b128 v[{KF}:{KF+3}], v{2 if off < 65536 else 4} offset:{off & 0xffff}"
    def vread(t):
        off = t * 2048 + 1024
        b = VF + 8 * (t & 1)
        a = 3 if off < 65536 else 5
        return ["s_mov_b64 exec, s[48:49]",
                f"ds_read_b128 v[{b}:{b+3}], v{a} offset:{off & 0xffff}",
                f"ds_read_b128 v[{b+4}:{b+7}], v{a} offset:{(off+512) & 0xffff}",
                "s_mov_b64 exec, -1"]
    k(kread(0))
    for x in vread(0): k(x)
    k(f"""
    s_waitcnt lgkmcnt(2)
    v_mfma_f32_32x32x16_bf16 v[{S}:{S+15}], v[{KF}:{KF+3}], v[{Q}:{Q+3}], 0
    v_mfma_f32_32x32x16_bf16 v[{S+16}:{S+31}], v[{KF}:{KF+3}], v[{Q+4}:{Q+7}], 0
    s_nop 10
    """)
    att_max16(k, 6, S, True)
    att_max16(k, 7, S + 16, True)
    k("""
    s_nop 1
    v_permlane32_swap_b32 v6, v7
    v_max_f32 v6, v6, v7
    v_mov_b32 v7, v6
    s_nop 1
    v_permlane32_swap_b32 v6, v7
    v_sub_f32 v6, 0, v6
    v_sub_f32 v7, 0, v7
    """)
    for i in range(16):
        k(f"v_mov_b32 v{C+i}, v6")
    k("s_nop 0")
    k(f"v_mov_b32 v{C+16}, v7")
    k(f"v_mfma_f32_32x32x16_bf16 v[{S}:{S+15}], v[{KF}:{KF+3}], v[{Q}:{Q+3}], v[{C}:{C+15}]")
    for i in range(1, 16):
        k(f"v_mov_b32 v{C+16+i}, v7")
    stamp(k, 3)
    ROLL = int(os.environ.get("ROLL", "4"))
    NUNR = 16 if ROLL else 64
    for u in range(2 * NUNR):
        t = u >> 1
        side = {}
        if u % 2 == 0 and t < 63:
            pre = []
            if u == 2:
                pre = [f"s_waitcnt vmcnt({rounds[0]-4})", "s_barrier"]
            elif u == 14:
                pre = [f"s_waitcnt vmcnt({rounds[0]-12})", "s_barrier"]
            elif u == 46:
                pre = ["s_waitcnt vmcnt(0)", "s_barrier"]
            side[14] = pre + [kread(t + 1)]
            vr = vread(t + 1)
            side[15] = vr
        if u % 2 == 1 or u == 0:
            side[-14] = ["s_waitcnt lgkmcnt(0)"]
        if rounds[0] < 32:
            d = dma()
            side[1] = d[:2]
            side[2] = d[2:]
        att_unit(k, u, side, last=(u == 127))
    if ROLL:
        k(f"""
        v_add_u32 v4, {NUNR*2048}, v2
        v_add_u32 v5, {NUNR*2048}, v3
        s_mov_b32 s50, {(64-NUNR)//ROLL}
        s_waitcnt vmcnt(0)
        s_barrier
        """)
        k(".p2align 6")
        k.label("L_k2_roll")
        for uu in range(2 * ROLL):
            u = 2 * NUNR + uu
            tt = uu >> 1
            side = {}
            if uu % 2 == 0:
                b = VF + 8 * ((tt + 1) & 1)
                off = (tt + 1) * 2048
                side[14] = [f"ds_read_b128 v[{KF}:{KF+3}], v4 offset:{off}"]
                side[15] = ["s_mov_b64 exec, s[48:49]",
                            f"ds_read_b128 v[{b}:{b+3}], v5 offset:{off+1024}",
                            f"ds_read_b128 v[{b+4}:{b+7}], v5 offset:{off+1536}",
                            "s_mov_b64 exec, -1"]
            else:
                side[-14] = ["s_waitcnt lgkmcnt(0)"]
            if uu == 2 * ROLL - 1:
                side[1] = [f"v_add_u32 v4, {ROLL*2048}, v4"]
                side[4] = [f"v_add_u32 v5, {ROLL*2048}, v5"]
                side[24] = ["s_sub_u32 s50, s50, 1"]
                side[25] = ["s_cmp_lg_u32 s50, 0"]
            att_unit(k, u, side)
        k("s_cbranch_scc1 L_k2_roll")
    k(f"""
    s_nop 0
    v_cvt_pk_bf16_f32 v{P+7}, v{S+30}, v{S+31}
    s_nop 1
    v_mfma_f32_32x32x16_bf16 v[{O+16}:{O+31}], v[{VF+12}:{VF+15}], v[{P+4}:{P+7}], v[{O+16}:{O+31}]
    s_mov_b32 s53, 0x53800000
    s_nop 10
    """)
    stamp(k, 4)
    k(f"""
    v_max_f32 v6, v{O+8}, v{O+24}
    v_cmp_nge_f32 vcc, s53, v{O+8}
    v_cmp_nge_f32 s[50:51], s53, v{O+24}
    s_nop 3
    s_or_b64 vcc, vcc, s[50:51]
    s_cbranch_scc0 L_k2_fin
    """)
    k(f"""
    s_mov_b32 s50, 0
    s_mov_b32 s51, s47
    v_mov_b32 v6, 0xff800000
    v_mov_b32 v7, 0xff800000
    """)
    k.label("L_k2_maxloop")
    k(f"""
    buffer_load_dwordx4 v[{KF}:{KF+3}], v2, s[24:27], s51 offen sc1
    s_add_u32 s51, s51, 2048
    s_waitcnt vmcnt(0)
    v_mfma_f32_32x32x16_bf16 v[{S}:{S+15}], v[{KF}:{KF+3}], v[{Q}:{Q+3}], 0
    v_mfma_f32_32x32x16_bf16 v[{S+16}:{S+31}], v[{KF}:{KF+3}], v[{Q+4}:{Q+7}], 0
    s_nop 10
    """)
    att_max16(k, 6, S, False)
    att_max16(k, 7, S + 16, False)
    k(f"""
    s_add_u32 s50, s50, 1
    s_cmp_lt_u32 s50, 64
    s_cbranch_scc1 L_k2_maxloop
    s_nop 0
    v_permlane32_swap_b32 v6, v7
    v_max_f32 v6, v6, v7
    v_mov_b32 v7, v6
    s_nop 1
    v_permlane32_swap_b32 v6, v7
    v_sub_f32 v6, 0, v6
    v_sub_f32 v7, 0, v7
    """)
    for i in range(16):
        k(f"v_mov_b32 v{C+i}, v6")
        k(f"v_mov_b32 v{C+16+i}, v7")
        k(f"v_mov_b32 v{O+i}, 0")
        k(f"v_mov_b32 v{O+16+i}, 0")
    k("s_mov_b32 s50, 0")
    k("s_mov_b32 s51, s47")
    k.label("L_k2_redo")
    k(f"""
    buffer_load_dwordx4 v[{KF}:{KF+3}], v2, s[24:27], s51 offen sc1
    s_mov_b64 exec, s[48:49]
    buffer_load_dwordx4 v[{VF}:{VF+3}], v3, s[24:27], s51 offen offset:1024 sc1
    buffer_load_dwordx4 v[{VF+4}:{VF+7}], v3, s[24:27], s51 offen offset:1536 sc1
    s_mov_b64 exec, -1
    s_add_u32 s51, s51, 2048
    s_waitcnt vmcnt(0)
    v_mfma_f32_32x32x16_bf16 v[{S}:{S+15}], v[{KF}:{KF+3}], v[{Q}:{Q+3}], v[{C}:{C+15}]
    v_mfma_f32_32x32x16_bf16 v[{S+16}:{S+31}], v[{KF}:{KF+3}], v[{Q+4}:{Q+7}], v[{C+16}:{C+31}]
    s_nop 10
    """)
    for b in range(2):
        for i in range(16):
            k(f"v_exp_f32 v{S+16*b+i}, v{S+16*b+i}")
        k("s_nop 0")
        for j in range(8):
            k(f"v_cvt_pk_bf16_f32 v{P+j}, v{S+16*b+2*j}, v{S+16*b+2*j+1}")
        k("s_nop 1")
        for h in range(2):
            k(f"v_mfma_f32_32x32x16_bf16 v[{O+16*b}:{O+16*b+15}], v[{VF+4*h}:{VF+4*h+3}], v[{P+4*h}:{P+4*h+3}], v[{O+16*b}:{O+16*b+15}]")
    k(f"""
    s_add_u32 s50, s50, 1
    s_cmp_lt_u32 s50, 64
    s_cbranch_scc1 L_k2_redo
    s_nop 10
    """)
    k.label("L_k2_fin")
    k(f"v_rcp_f32 v6, v{O+8}")
    k(f"v_rcp_f32 v7, v{O+24}")
    for b in range(2):
        for i in range(8):
            k(f"v_mul_f32 v{O+16*b+i}, v{6+b}, v{O+16*b+i}")
        for i in range(4):
            k(f"v_cvt_pk_bf16_f32 v{P+4*b+i}, v{O+16*b+2*i}, v{O+16*b+2*i+1}")
        if b:
            k("s_add_u32 s46, s46, 32768")
        k(f"buffer_store_dwordx4 v[{P+4*b}:{P+4*b+3}], v2, s[24:27], s46 offen")
    epilogue(k)
    return k, (256, 256, 131072 + 2048)


def splitk_gemm(k, nks, offA, offB, depth_steps, RB, ACC):
    n = nks // 4
    k(f"""
    s_lshr_b32 s44, s3, 1
    s_and_b32 s45, s3, 1
    s_lshl_b32 s46, s43, 1
    s_add_u32 s47, s46, s44
    s_xor_b32 s48, s47, 1          ; other
    s_lshl_b32 s46, s42, 1
    s_add_u32 s49, s46, s45
    s_xor_b32 s50, s49, 1
    s_mul_i32 s46, s3, {n*1024}
    s_mul_i32 s52, s47, {nks*1024}
    s_mul_i32 s53, s48, {nks*1024}
    s_mul_i32 s54, s49, {nks*1024}
    s_mul_i32 s55, s50, {nks*1024}
    s_add_u32 s51, s46, {offA}
    s_add_u32 s52, s52, s51
    s_add_u32 s53, s53, s51
    s_add_u32 s51, s46, {offB}
    s_add_u32 s54, s54, s51
    s_add_u32 s55, s55, s51
    """)
    def load(s):
        r = RB + 16 * (s % depth_steps)
        if s and s % 4 == 0:
            for sr in (52, 53, 54, 55):
                k(f"s_add_u32 s{sr}, s{sr}, 4096")
        for i, sr in enumerate((52, 54, 53, 55)):
            k(f"buffer_load_dwordx4 v[{r+4*i}:{r+4*i+3}], v2, s[24:27], s{sr} offen offset:{(s%4)*1024}")
    return n, load


def splitk_main(k, n, load, depth_steps, RB, ACC, extra_after=0):
    issued = min(n, depth_steps)
    for s in range(n):
        later = (issued - 1 - s) * 4 + extra_after
        k(f"s_waitcnt vmcnt({min(63, later)})")
        r = RB + 16 * (s % depth_steps)
        A0, B0, A1, B1 = (f"v[{r+4*i}:{r+4*i+3}]" for i in range(4))
        for t, (a, b) in enumerate(((A0, B0), (A0, B1), (A1, B0), (A1, B1))):
            acc = ACC + 16 * t
            c = "0" if s == 0 else f"v[{acc}:{acc+15}]"
            k(f"v_mfma_f32_32x32x16_bf16 v[{acc}:{acc+15}], {a}, {b}, {c}")
        if issued < n:
            load(issued); issued += 1
            extra_after = 0


def splitk_reduce(k, ACC, TMP):
    k("s_nop 7")
    for t in (1, 2, 3):
        k(f"""
        s_xor_b32 s56, s3, {t}
        s_mul_i32 s56, s56, 12288
        s_add_u32 s56, s56, {(t-1)*4096}
        v_add_u32 v3, s56, v2
        """)
        for q in range(4):
            k(f"ds_write_b128 v3, v[{ACC+16*t+4*q}:{ACC+16*t+4*q+3}] offset:{q*1024}")
    k(f"""
    s_mul_i32 s56, s3, 12288
    v_add_u32 v3, s56, v2
    s_waitcnt lgkmcnt(0)
    s_barrier
    """)
    for i in range(12):
        k(f"ds_read_b128 v[{TMP+4*i}:{TMP+4*i+3}], v3 offset:{i*1024}")
    for sl in range(3):
        k(f"s_waitcnt lgkmcnt({8-4*sl})")
        for i in range(16):
            k(f"v_add_f32 v{ACC+i}, v{ACC+i}, v{TMP+16*sl+i}")


def map_4x8(k):
    k("""
    s_and_b32 s40, s2, 7
    s_lshr_b32 s41, s2, 3
    s_lshl_b32 s42, s40, 2
    s_and_b32 s43, s41, 3
    s_add_u32 s42, s42, s43        ; tb
    s_lshr_b32 s43, s41, 2         ; cb
    v_lshlrev_b32 v2, 4, v1
    """)


def k3():
    k = Kern("k3_wo_kernel", nvgpr=248)
    NUT = 28
    prologue(k, 256 + NUT)
    k("s_cmp_ge_u32 s2, 256")
    k("s_cbranch_scc1 L_k3_ut")
    RB, ACC = 8, 136
    G, CBV, X = 200, 216, 232
    map_4x8(k)
    n, load = splitk_gemm(k, 32, OFF_WO, OFF_O, 8, RB, ACC)
    prologue_wait(k)
    srd(k, 28, P_X, 2048 * 1024)
    for s in range(8):
        load(s)
    k(f"""
    v_lshrrev_b32 v4, 5, v1
    v_and_b32 v5, 31, v1
    v_lshlrev_b32 v6, 4, v4             ; h*16 bytes (4 f32)
    s_lshl_b32 s56, s47, 7
    s_add_u32 s57, s56, {OFF_MOD + 2*2048}
    s_add_u32 s58, s56, {OFF_MOD + 4*2048}
    v_lshlrev_b32 v7, 10, v5
    v_lshl_add_u32 v7, v4, 3, v7        ; tok*1024 + h*8
    s_lshl_b32 s59, s49, 15
    s_lshl_b32 s56, s47, 6
    s_add_u32 s59, s59, s56
    """)
    for j in range(4):
        k(f"buffer_load_dwordx4 v[{G+4*j}:{G+4*j+3}], v6, s[24:27], s57 offen offset:{32*j}")
        k(f"buffer_load_dwordx4 v[{CBV+4*j}:{CBV+4*j+3}], v6, s[24:27], s58 offen offset:{32*j}")
        k(f"buffer_load_dwordx2 v[{X+2*j}:{X+2*j+1}], v7, s[28:31], s59 offen offset:{16*j}")
    stamp(k, 1)
    splitk_main(k, n, load, 8, RB, ACC, extra_after=12)
    stamp(k, 2)
    splitk_reduce(k, ACC, 8)
    stamp(k, 3)
    k("s_waitcnt vmcnt(0)")
    T = 8
    for i in range(8):
        k(f"v_cvt_pk_bf16_f32 v{T+i}, v{ACC+2*i}, v{ACC+2*i+1}")
    for i in range(8):
        k(f"v_lshlrev_b32 v{ACC+2*i}, 16, v{T+i}")
        k(f"v_and_b32 v{ACC+2*i+1}, 0xffff0000, v{T+i}")
    for i in range(16):
        k(f"v_mul_f32 v{ACC+i}, v{G+i}, v{ACC+i}")
    for i in range(8):
        k(f"v_cvt_pk_bf16_f32 v{T+i}, v{ACC+2*i}, v{ACC+2*i+1}")
    for i in range(8):
        k(f"v_lshlrev_b32 v{ACC+2*i}, 16, v{T+i}")
        k(f"v_and_b32 v{ACC+2*i+1}, 0xffff0000, v{T+i}")
        k(f"v_lshlrev_b32 v{G+2*i}, 16, v{X+i}")
        k(f"v_and_b32 v{G+2*i+1}, 0xffff0000, v{X+i}")
    for i in range(16):
        k(f"v_add_f32 v{ACC+i}, v{G+i}, v{ACC+i}")
    for i in range(8):
        k(f"v_cvt_pk_bf16_f32 v{T+i}, v{ACC+2*i}, v{ACC+2*i+1}")
    k(f"""
    v_lshrrev_b32 v3, 4, v5
    v_lshlrev_b32 v3, 14, v3
    v_and_b32 v6, 15, v5
    v_lshl_add_u32 v3, v6, 4, v3
    v_lshl_add_u32 v3, v4, 8, v3
    s_lshl_b32 s56, s49, 15
    s_lshl_b32 s57, s47, 10
    s_add_u32 s56, s56, s57
    s_add_u32 s57, s56, {OFF_X2S}
    s_add_u32 s56, s56, {OFF_X2}
    buffer_store_dwordx4 v[{T}:{T+3}], v3, s[24:27], s56 offen
    buffer_store_dwordx4 v[{T+4}:{T+7}], v3, s[24:27], s56 offen offset:512
    """)
    for i in range(8):
        k(f"v_lshlrev_b32 v{ACC+2*i}, 16, v{T+i}")
        k(f"v_and_b32 v{ACC+2*i+1}, 0xffff0000, v{T+i}")
    k(f"v_add_f32 v24, v{ACC}, v{ACC+1}")
    k(f"v_mul_f32 v25, v{ACC}, v{ACC}")
    for i in range(1, 16):
        if i >= 2:
            k(f"v_add_f32 v24, v24, v{ACC+i}")
        k(f"v_fmac_f32 v25, v{ACC+i}, v{ACC+i}")
    for i in range(16):
        k(f"v_mul_f32 v{ACC+i}, v{CBV+i}, v{ACC+i}")
    for i in range(8):
        k(f"v_cvt_pk_bf16_f32 v{16+i}, v{ACC+2*i}, v{ACC+2*i+1}")
    k(f"""
    buffer_store_dwordx4 v[16:19], v3, s[24:27], s57 offen
    buffer_store_dwordx4 v[20:23], v3, s[24:27], s57 offen offset:512
    v_permlane32_swap_b32 v24, v25
    v_add_f32 v24, v24, v25
    v_lshlrev_b32 v3, 7, v5
    v_lshl_add_u32 v3, v4, 2, v3
    s_lshl_b32 s56, s49, 12
    s_lshl_b32 s57, s47, 3
    s_add_u32 s56, s56, s57
    s_add_u32 s56, s56, {OFF_ST2}
    buffer_store_dword v24, v3, s[24:27], s56 offen
    """)
    endpgm(k)
    k.label("L_k3_ut")
    k(f"""
    s_sub_u32 s40, s2, 256
    s_lshl_b32 s40, s40, 2
    s_add_u32 s40, s40, s3          ; nt
    s_mul_i32 s41, s40, 9363
    s_lshr_b32 s41, s41, 16
    s_mul_i32 s42, s41, 7
    s_sub_u32 s42, s40, s42         ; i
    s_mul_i32 s41, s41, {16*7}
    s_add_u32 s41, s41, s42
    s_lshl_b32 s41, s41, 10
    s_add_u32 s41, s41, {OFF_W1}
    v_lshlrev_b32 v2, 4, v1
    v_and_b32 v3, 15, v1            ; col
    v_lshrrev_b32 v4, 4, v1         ; g
    v_and_b32 v5, 1, v4
    v_lshrrev_b32 v6, 1, v4
    v_lshlrev_b32 v6, 6, v6
    v_lshl_add_u32 v6, v5, 4, v6    ; (16(g>>1) + 4(g&1))*4 bytes
    v_and_b32 v7, 1, v3
    v_sub_u32 v7, 4, v7
    v_lshl_add_u32 v6, v7, 11, v6
    """)
    prologue_wait(k)
    for s in range(16):
        k(f"buffer_load_dwordx4 v[{8+4*s}:{11+4*s}], v2, s[24:27], s41 offen")
        k(f"s_add_u32 s41, s41, 7168")
    for s in range(16):
        k(f"buffer_load_dwordx4 v[{72+8*s}:{75+8*s}], v6, s[24:27], 0 offen offset:{OFF_MOD+128*s}")
        k(f"buffer_load_dwordx4 v[{76+8*s}:{79+8*s}], v6, s[24:27], 0 offen offset:{OFF_MOD+128*s+32}")
    k("s_waitcnt vmcnt(0)")
    for s in range(16):
        b = 72 + 8 * s
        for i in range(4):
            k(f"v_cvt_pk_bf16_f32 v{b+i}, v{b+2*i}, v{b+2*i+1}")
    k("s_nop 1")
    for s in range(16):
        b = 72 + 8 * s
        c = "0" if s == 0 else "v[200:203]"
        k(f"v_mfma_f32_16x16x32_bf16 v[200:203], v[{8+4*s}:{11+4*s}], v[{b}:{b+3}], {c}")
    k(f"""
    v_lshlrev_b32 v5, 4, v4
    v_lshl_add_u32 v5, v3, 6, v5
    v_cmp_gt_u32 vcc, 2, v3
    s_lshl_b32 s40, s40, 7
    s_add_u32 s40, s40, {OFF_UT}
    s_nop 7
    s_and_saveexec_b64 s[44:45], vcc
    buffer_store_dwordx4 v[200:203], v5, s[24:27], s40 offen
    """)
    epilogue(k)
    return k, (256 + NUT, 256, 49152)


def k4():
    k = Kern("k4_ffn1_kernel", nvgpr=200, nagpr=128)
    prologue(k, 256)
    ACC = 8
    WF = 64
    UT = 120
    ST = 176
    k(f"""
    s_and_b32 s40, s2, 7
    s_lshr_b32 s41, s2, 3
    s_lshr_b32 s42, s40, 1
    s_lshl_b32 s42, s42, 2
    s_and_b32 s43, s41, 3
    s_add_u32 s42, s42, s43
    s_and_b32 s43, s40, 1
    s_lshl_b32 s43, s43, 3
    s_lshr_b32 s44, s41, 2
    s_add_u32 s43, s43, s44
    v_lshlrev_b32 v2, 4, v1
    s_lshl_b32 s44, s42, 2
    s_add_u32 s44, s44, s3
    s_lshl_b32 s45, s44, 15
    s_add_u32 s45, s45, {OFF_X2S}
    s_add_u32 s46, s45, 16384
    s_mul_i32 s47, s43, {112*1024}
    s_lshl_b32 s48, s3, 10
    s_add_u32 s47, s47, s48
    s_add_u32 s47, s47, {OFF_W1}
    v_and_b32 v3, 15, v1
    v_lshrrev_b32 v4, 4, v1
    v_lshlrev_b32 v5, 7, v3
    v_lshl_add_u32 v5, v4, 5, v5
    s_lshl_b32 s49, s44, 12
    s_add_u32 s49, s49, {OFF_ST2}
    v_lshlrev_b32 v6, 4, v4          ; g*16
    s_mul_i32 s50, s43, {7*128}
    s_add_u32 s50, s50, {OFF_UT}
    """)
    prologue_wait(k)
    for j in range(2):
        k(f"buffer_load_dwordx4 v[{ST+8*j}:{ST+8*j+3}], v5, s[24:27], s49 offen offset:{2048*j}")
        k(f"buffer_load_dwordx4 v[{ST+8*j+4}:{ST+8*j+7}], v5, s[24:27], s49 offen offset:{2048*j+16}")
    for i in range(7):
        k(f"buffer_load_dwordx4 v[{UT+8*i}:{UT+8*i+3}], v6, s[24:27], s50 offen offset:{128*i}")
        k(f"buffer_load_dwordx4 v[{UT+8*i+4}:{UT+8*i+7}], v6, s[24:27], s50 offen offset:{128*i+64}")
    def group(gi):
        for i in range(7):
            idx = gi * 7 + i
            k(f"s_add_u32 m0, s48, {idx*4096}")
            if idx:
                k("s_add_u32 s47, s47, 4096")
            else:
                k("s_nop 0")
            k("buffer_load_dwordx4 v2, s[24:27], s47 offen lds")
        if gi:
            k("s_add_u32 s45, s45, 4096")
            k("s_add_u32 s46, s46, 4096")
        for s in range(4):
            ks = gi * 4 + s
            k(f"buffer_load_dwordx4 a[{8*ks}:{8*ks+3}], v2, s[24:27], s45 offen offset:{s*1024}")
            k(f"buffer_load_dwordx4 a[{8*ks+4}:{8*ks+7}], v2, s[24:27], s46 offen offset:{s*1024}")
    for gi in range(3):
        group(gi)
    stamp(k, 1)
    k("s_waitcnt vmcnt(59)")
    stamp(k, 2)
    for j in range(2):
        b = ST + 8 * j
        k(f"v_add_f32 v{b}, v{b}, v{b+2}")
        k(f"v_add_f32 v{b+1}, v{b+1}, v{b+3}")
        k(f"v_add_f32 v{b+4}, v{b+4}, v{b+6}")
        k(f"v_add_f32 v{b+5}, v{b+5}, v{b+7}")
        k(f"v_add_f32 v{b}, v{b}, v{b+4}")
        k(f"v_add_f32 v{b+1}, v{b+1}, v{b+5}")
    regs = [ST, ST + 1, ST + 8, ST + 9]
    tmp = [ST + 2, ST + 3, ST + 10, ST + 11]
    for op in ("v_permlane16_swap_b32", "v_permlane32_swap_b32"):
        for r, t in zip(regs, tmp):
            k(f"v_mov_b32 v{t}, v{r}")
        k("s_nop 1")
        for r, t in zip(regs, tmp):
            k(f"{op} v{t}, v{r}")
        for r, t in zip(regs, tmp):
            k(f"v_add_f32 v{r}, v{t}, v{r}")
    for j in range(2):
        b = ST + 8 * j
        ln_stats_finish(k, b, b + 1, b + 4, b + 5, None, std_out=b + 6)
    group(3)
    k(f"""
    s_cmp_lg_u32 s43, 0
    s_cbranch_scc1 L_k4_nor
    v_lshlrev_b32 v7, 2, v3
    s_lshl_b32 s51, s44, 7
    s_add_u32 s51, s51, {OFF_R2}
    buffer_store_dword v{ST+5}, v7, s[24:27], s51 offen
    buffer_store_dword v{ST+13}, v7, s[24:27], s51 offen offset:64
    s_waitcnt vmcnt(0)
    """)
    k.label("L_k4_nor")
    k("s_waitcnt vmcnt(60)")
    for j in range(2):
        b = ST + 8 * j
        for i in range(7):
            for r in range(4):
                a = ACC + 4 * (j * 7 + i) + r
                k(f"v_mul_f32 v{a}, v{UT+8*i+4+r}, v{b+6}")
        for i in range(7):
            for r in range(4):
                a = ACC + 4 * (j * 7 + i) + r
                k(f"v_fma_f32 v{a}, -v{b+4}, v{UT+8*i+r}, v{a}")
    def wread(s):
        f = WF + 28 * (s & 1)
        for i in range(7):
            off = (s * 7 + i) * 1024
            base = "v2" if off < 65536 else "v7"
            k(f"ds_read_b128 v[{f+4*i}:{f+4*i+3}], {base} offset:{off & 0xffff}")
    k("v_add_u32 v7, 0x10000, v2")
    stamp(k, 3)
    for gi in range(4):
        k(f"s_waitcnt vmcnt({15*(3-gi)})")
        k("s_barrier")
        stamp(k, 4 + gi)
        for s4 in range(4):
            s = gi * 4 + s4
            if s4 == 0:
                wread(s)
            if s4 < 3:
                wread(s + 1)
                k("s_waitcnt lgkmcnt(7)")
            else:
                k("s_waitcnt lgkmcnt(0)")
            f = WF + 28 * (s & 1)
            for i in range(7):
                for j in range(2):
                    a = ACC + 4 * (j * 7 + i)
                    k(f"v_mfma_f32_16x16x32_bf16 v[{a}:{a+3}], v[{f+4*i}:{f+4*i+3}], a[{8*s+4*j}:{8*s+4*j+3}], v[{a}:{a+3}]")
    stamp(k, 8)
    k(f"""
    v_and_b32 v5, 1, v4
    v_lshrrev_b32 v6, 1, v4
    v_lshlrev_b32 v7, 4, v3
    v_lshl_add_u32 v7, v6, 9, v7
    v_lshl_add_u32 v7, v5, 3, v7
    s_mul_i32 s45, s44, {112*1024}
    s_mul_i32 s46, s43, {7*1024}
    s_add_u32 s45, s45, s46
    s_add_u32 s45, s45, {OFF_H}
    s_add_u32 s46, s45, 4096
    """)
    for i in range(7):
        for j in range(2):
            a = ACC + 4 * (j * 7 + i)
            t = WF + 2 * (i * 2 + j)
            k(f"v_cvt_pk_bf16_f32 v{t}, v{a}, v{a+1}")
            k(f"v_cvt_pk_bf16_f32 v{t+1}, v{a+2}, v{a+3}")
            k(f"v_pk_max_i16 v{t}, v{t}, 0")
            k(f"v_pk_max_i16 v{t+1}, v{t+1}, 0")
            sr = 45 if i < 4 else 46
            k(f"buffer_store_dwordx2 v[{t}:{t+1}], v7, s[24:27], s{sr} offen offset:{(i%4)*1024+j*256}")
    epilogue(k)
    return k, (256, 256, 112 * 1024)


def k5():
    k = Kern("k5_ffn2_kernel", nvgpr=256, nagpr=64)
    prologue(k, 256)
    DEPTH = 13
    RB = 8
    G, X2, R = 216, 232, 240
    map_4x8(k)
    n, load = splitk_gemm(k, 112, OFF_W2, OFF_H, DEPTH, RB, None)
    prologue_wait(k)
    srd(k, 28, P_OUT, 2048 * 1024)
    k(f"""
    v_lshrrev_b32 v4, 5, v1
    v_and_b32 v5, 31, v1
    v_lshlrev_b32 v6, 4, v4
    s_lshl_b32 s56, s47, 7
    s_add_u32 s57, s56, {OFF_MOD + 5*2048}
    v_lshrrev_b32 v3, 4, v5
    v_lshlrev_b32 v3, 14, v3
    v_and_b32 v7, 15, v5
    v_lshl_add_u32 v3, v7, 4, v3
    v_lshl_add_u32 v3, v4, 8, v3
    s_lshl_b32 s58, s49, 15
    s_lshl_b32 s59, s47, 10
    s_add_u32 s58, s58, s59
    s_add_u32 s58, s58, {OFF_X2}
    v_lshlrev_b32 v7, 2, v5
    s_lshl_b32 s59, s49, 7
    s_add_u32 s59, s59, {OFF_R2}
    """)
    for j in range(4):
        k(f"buffer_load_dwordx4 v[{G+4*j}:{G+4*j+3}], v6, s[24:27], s57 offen offset:{32*j}")
    k(f"buffer_load_dwordx4 v[{X2}:{X2+3}], v3, s[24:27], s58 offen")
    k(f"buffer_load_dwordx4 v[{X2+4}:{X2+7}], v3, s[24:27], s58 offen offset:512")
    k(f"buffer_load_dword v{R}, v7, s[24:27], s59 offen")
    for s in range(DEPTH):
        load(s)
    stamp(k, 1)
    issued = DEPTH
    for s in range(n):
        k(f"s_waitcnt vmcnt({(issued-1-s)*4})")
        r = RB + 16 * (s % DEPTH)
        A0, B0, A1, B1 = (f"v[{r+4*i}:{r+4*i+3}]" for i in range(4))
        for t, (a, b) in enumerate(((A0, B0), (A0, B1), (A1, B0), (A1, B1))):
            c = "0" if s == 0 else f"a[{16*t}:{16*t+15}]"
            k(f"v_mfma_f32_32x32x16_bf16 a[{16*t}:{16*t+15}], {a}, {b}, {c}")
        if issued < n:
            load(issued); issued += 1
    stamp(k, 2)
    k("s_nop 7")
    for t in (1, 2, 3):
        k(f"""
        s_xor_b32 s56, s3, {t}
        s_mul_i32 s56, s56, 12288
        s_add_u32 s56, s56, {(t-1)*4096}
        v_add_u32 v3, s56, v2
        """)
        for q in range(4):
            k(f"ds_write_b128 v3, a[{16*t+4*q}:{16*t+4*q+3}] offset:{q*1024}")
    ACC, TMP = 8, 24
    for i in range(16):
        k(f"v_accvgpr_read_b32 v{ACC+i}, a{i}")
    for i in range(16):
        k(f"v_mul_f32 v{G+i}, v{R}, v{G+i}")
    k(f"""
    s_mul_i32 s56, s3, 12288
    v_add_u32 v3, s56, v2
    s_waitcnt lgkmcnt(0)
    s_barrier
    """)
    for i in range(12):
        k(f"ds_read_b128 v[{TMP+4*i}:{TMP+4*i+3}], v3 offset:{i*1024}")
    XU = 80
    stamp(k, 3)
    for i in range(8):
        k(f"v_lshlrev_b32 v{XU+2*i}, 16, v{X2+i}")
        k(f"v_and_b32 v{XU+2*i+1}, 0xffff0000, v{X2+i}")
    for sl in range(3):
        k(f"s_waitcnt lgkmcnt({8-4*sl})")
        for i in range(16):
            k(f"v_add_f32 v{ACC+i}, v{ACC+i}, v{TMP+16*sl+i}")
    for i in range(16):
        k(f"v_fma_f32 v{ACC+i}, v{G+i}, v{ACC+i}, v{XU+i}")
    for i in range(8):
        k(f"v_cvt_pk_bf16_f32 v{TMP+i}, v{ACC+2*i}, v{ACC+2*i+1}")
    k(f"""
    v_lshlrev_b32 v7, 10, v5
    v_lshl_add_u32 v7, v4, 3, v7
    s_lshl_b32 s59, s49, 15
    s_lshl_b32 s56, s47, 6
    s_add_u32 s59, s59, s56
    """)
    for j in range(4):
        k(f"buffer_store_dwordx2 v[{TMP+2*j}:{TMP+2*j+1}], v7, s[28:31], s59 offen offset:{16*j}")
    epilogue(k)
    return k, (256, 256, 49152)


def build(path=OUT):
    ks = [k0(), k1(), k2b(), k3(), k4(), k5()]
    errs = []
    for k, _ in ks:
        errs += k.check()
    for e in errs:
        print(e)
    ref = open(OUT + ".ref").read().split("\n")
    hdr = [l for l in ref if l.startswith(";") and "@launch" not in l and "Override" not in l and "grid=ceil" not in l]
    out = "\n".join(hdr) + "\n"
    for k, (g, b, lds) in ks:
        out += f"; @launch kernel={k.name} grid=({g},1,1) block=({b},1,1) lds={lds}\n"
    out += '.amdgcn_target "amdgcn-amd-amdhsa--gfx950"\n'
    codes, kds = zip(*[k.text() for k, _ in ks])
    out += "".join(codes)
    out += '.section .rodata,"a"\n' + "".join(kds)
    open(path, "w").write(out)
    print("wrote", path, len(out), "bytes;", len(errs), "checker errors")
    return len(errs)


if __name__ == "__main__":
    sys.exit(1 if build(sys.argv[1] if len(sys.argv) > 1 else OUT) else 0)
```

```python
import sys, os
sys.path.insert(0, "gen")
from asmlib import Kern
import gen as G
from gen import (MB, OFF_MOD, OFF_XHAT, OFF_WQKV, OFF_Q, OFF_KV, OFF_O, OFF_WO, OFF_X2, OFF_X2S, OFF_ST2, OFF_W1,
                 OFF_H, OFF_W2, QSCALE, P_X, P_WQKV, P_WO, P_W1, P_W2, P_C, P_WMOD, P_OUT, P_WS, srd, stamp, endpgm,
                 prologue, prologue_wait, epilogue, bf16_round, ln_stats_finish, role_ln, role_relayout, ATT, att_unit,
                 att_max16, NAME, OUT, DIAG)

OFF_MODB = 0x3000
OFF_FLAG = G.OFF_FLAG
FL = "sc1"
DF = "@DF@"
S_FAST = 98
OFF_XID = G.OFF_XID
OOL = []


def dual_begin(k):
    k._dual = len(k.lines)


def dual_end(k, tag):
    body = k.lines[k._dual:]
    del k.lines[k._dual:]
    import re
    labs = [l[:-1] for l in body if l.endswith(":")]
    def variant(fl, suffix):
        out = []
        for l in body:
            l = l.replace(DF, fl).rstrip()
            for lab in labs:
                l = re.sub(rf"\b{lab}\b", lab + suffix, l)
            out.append(l)
        return out
    if tag not in os.environ.get("FAST", "none").split(","):
        k.lines += variant("sc1", "_s")
        return
    k(f"s_cmp_eq_u32 s{S_FAST}, 0")
    k(f"s_cbranch_scc1 L_slow_{tag}")
    k.lines += variant("", "_f")
    k.label(f"L_join_{tag}")
    OOL.append([f"L_slow_{tag}:"] + variant("sc1", "_s") + [f"s_branch L_join_{tag}"])


class VM:
    def __init__(self, k):
        self.k = k; self.n = 0
    def op(self, text=None):
        if text:
            self.k(text)
        self.n += 1
        return self.n
    def tick(self):
        self.n += 1
        return self.n
    def wait_str(self, idx):
        c = self.n - idx
        return f"s_waitcnt vmcnt({min(c, 63)})"
    def wait(self, idx):
        self.k(self.wait_str(idx))


def signal(k, edge, s_group, s_member, gsize, nafter=0, fl=FL):
    lab = f"L_sig{edge}"
    k(f"""
    s_mul_i32 s38, s{s_group}, {gsize}
    s_add_u32 s38, s38, s{s_member}
    s_lshl_b32 s38, s38, 8
    s_add_u32 s38, s38, {OFF_FLAG + edge * 65536}
    v_mov_b32 v6, 0
    v_mov_b32 v7, 1
    s_waitcnt vmcnt({nafter}) lgkmcnt(0)
    s_barrier
    s_cmp_lg_u32 s3, 0
    s_cbranch_scc1 {lab}
    s_mov_b64 exec, 1
    buffer_store_dword v7, v6, s[24:27], s38 offen {fl}
    s_mov_b64 exec, -1
    """)
    k.label(lab)


def wait_edge(k, edge, s_group, gsize):
    lab = f"L_wait{edge}"
    k(f"""
    s_cmp_lg_u32 s3, 0
    s_cbranch_scc1 {lab}
    s_mul_i32 s38, s{s_group}, {gsize*256}
    s_add_u32 s38, s38, {OFF_FLAG + edge * 65536}
    v_lshlrev_b32 v6, 8, v1
    s_mov_b32 exec_lo, {hex((1 << gsize) - 1)}
    s_mov_b32 exec_hi, 0
    s_mov_b32 s39, 0x40000
    """)
    k.label(f"L_poll{edge}")
    k(f"""
    buffer_load_dword v7, v6, s[24:27], s38 offen {FL}
    s_sub_u32 s39, s39, 1
    s_cbranch_scc1 L_bail{edge}
    s_waitcnt vmcnt(0)
    v_cmp_eq_u32 vcc, 0, v7
    s_cbranch_vccnz L_poll{edge}
    """)
    k.label(f"L_bail{edge}")
    k("s_waitcnt vmcnt(0)")
    k("s_mov_b64 exec, -1")
    k.label(lab)
    k("s_barrier")


def wbl2(k, tag):
    if tag in os.environ.get("WBL2", "").split(","):
        k(f"""
        s_lshl_b32 s38, s37, 2
        s_add_u32 s38, s38, s3
        s_cmp_lg_u32 s38, 1
        s_cbranch_scc1 L_nowb_{tag}
        buffer_wbl2 sc1
        """)
        k.label(f"L_nowb_{tag}")


def wo_reg(s):
    return f"a[{224+4*s}:{227+4*s}]" if s < 8 else f"v[{160+4*(s-8)}:{163+4*(s-8)}]"


def w1_lds(f):
    if f < 28:
        return 131072 + f * 1024
    if f < 112:
        return (f - 28) * 1024
    return LDS_UT + (f - 112) * 1024


LDS_MODB = 156 * 1024
LDS_VEC = 158 * 1024
LDS_OST = 84 * 1024
LDS_UT = 116 * 1024
LDS_R = 125 * 1024


def lds_rd(dst, addr):
    base = (2, 4, 5)[addr >> 16]
    return f"ds_read_b128 {dst}, v{base} offset:{addr & 0xffff}"


class L(list):
    def __call__(self, text):
        for l in text.strip("\n").split("\n"):
            if l.strip():
                self.append(l.strip())


def weave(k, main, side, every):
    n = 0
    for x in main:
        k(x)
        n += 1
        if side and n % every == 0:
            for y in side.pop(0)():
                k(y)


SLOT = (64 * 1024, 112 * 1024, 64 * 1024, 112 * 1024)
LDS_RL = 112 * 1024
LDS_MODS = 128 * 1024
LDS_MRED = 48 * 1024
LDS_SHARE = 52 * 1024
LDS_MRED2 = 159 * 1024
OFF_MODP = 0x4000


def mega():
    k = Kern(NAME + "_kernel", nvgpr=256, nagpr=256, nsgpr=102)
    k.kid = 1
    vm = VM(k)
    if DIAG:
        k("s_memtime s[60:61]")
        k("s_memrealtime s[62:63]")
        for i in range(G.NST):
            k(f"s_mov_b32 s{64+i}, 0")
    k(f"""
    s_cmp_ge_u32 s2, 256
    s_cbranch_scc1 L_end_{k.name}
    s_load_dwordx16 s[4:19], s[0:1], 0
    s_load_dwordx4 s[20:23], s[0:1], 64
    s_load_dwordx2 s[24:25], s[0:1], 80
    v_lshrrev_b32 v2, 6, v0
    v_and_b32 v1, 63, v0
    v_readfirstlane_b32 s3, v2
    s_and_b32 s36, s2, 7
    s_lshr_b32 s37, s2, 3
    v_lshlrev_b32 v2, 4, v1
    s_getpc_b64 s[38:39]
    L_pc_here:
    s_lshl_b32 s98, s37, 2
    s_add_u32 s98, s98, s3
    s_and_b32 s98, s98, 63
    s_lshl_b32 s98, s98, 10
    s_add_u32 s38, s38, s98
    s_addc_u32 s39, s39, 0
    global_load_dwordx4 a[208:211], v2, s[38:39]
    """)
    VA, VB, RAW, XF, FR, ACC = 8, 16, 24, 88, 216, 24
    WM, CC, MA = 8, 12, 16
    k(f"""
    v_lshrrev_b32 v3, 1, v1
    v_lshlrev_b32 v4, 1, v3              ; c voffset: (l>>1)*2
    v_mul_u32_u24 v3, 6144, v3
    v_and_b32 v5, 1, v1
    v_lshl_add_u32 v3, v5, 4, v3
    v_lshrrev_b32 v6, 3, v1              ; r8
    v_and_b32 v7, 7, v1
    v_and_b32 v248, 2, v6
    v_xor_b32 v7, v7, v248
    s_and_b32 s38, s3, 1
    s_lshl_b32 s38, s38, 2
    v_xor_b32 v7, s38, v7
    v_mul_u32_u24 v5, 3072, v6
    v_lshl_add_u32 v5, v7, 4, v5
    s_and_b32 s93, s37, 7
    s_lshl_b32 s93, s93, 1               ; rotW
    s_lshr_b32 s99, s37, 4
    s_lshl_b32 s99, s99, 3
    s_add_u32 s99, s99, s36
    s_lshl_b32 s99, s99, 2
    s_and_b32 s38, s37, 3
    s_add_u32 s99, s99, s38
    s_bfe_u32 s98, s37, 0x20002          ; k split
    s_lshl_b32 s100, s98, 2
    s_add_u32 s100, s100, s3
    s_lshl_b32 s101, s100, 6             ; c soffset
    s_mul_i32 s100, s100, {32*6144}
    s_lshl_b32 s38, s99, 5
    s_add_u32 s100, s100, s38
    v_mov_b32 v248, 0
    v_mov_b32 v249, 0
    v_mov_b32 v250, 0
    v_mov_b32 v251, 0
    s_lshl_b32 s39, s2, 2
    s_add_u32 s39, s39, s3
    s_and_b32 s39, s39, 0x3e3
    s_waitcnt lgkmcnt(0)
    s_mov_b32 s26, {G.WS_USED:#x}
    s_mov_b32 s27, 0x00020000
    s_cmp_lg_u32 s39, 3
    s_cbranch_scc1 L_nozw
    s_cmp_ge_u32 s2, 4
    s_cbranch_scc1 L_zero_flags
    s_lshl_b32 s38, s2, 12
    s_add_u32 s38, s38, {OFF_MODP}
    """)
    for i in range(4):
        k(f"buffer_store_dwordx4 v[248:251], v2, s[24:27], s38 offen offset:{1024*i} {FL}")
    k("s_branch L_nozw")
    k.label("L_zero_flags")
    k(f"""
    s_mov_b32 s38, {OFF_XID}
    buffer_store_dwordx4 v[248:251], v2, s[24:27], s38 offen {FL}
    buffer_store_dwordx4 v[248:251], v2, s[24:27], s38 offen offset:2048 {FL}
    v_lshlrev_b32 v252, 8, v1
    s_lshl_b32 s38, s36, 16
    s_add_u32 s38, s38, {OFF_FLAG - 4*65536}
    """)
    for i in range(4):
        k(f"buffer_store_dword v248, v252, s[24:27], s38 offen {FL}")
        k("s_add_u32 s38, s38, 16384")
    k.label("L_nozw")
    srd(k, 44, P_WMOD, 512 * 3072 * 2)
    srd(k, 56, P_C, 1024)
    srd(k, 28, P_X, 2048 * 1024)
    stamp(k, 0)
    vm.op(f"buffer_load_ushort v{CC}, v4, s[56:59], s101 offen")
    wmid = vm.op(f"buffer_load_dwordx4 v[{WM}:{WM+3}], v3, s[44:47], s100 offen")
    srd(k, 48, 22, 256)
    srd(k, 32, 20, 2048 * 1024)
    k(f"""
    s_lshr_b32 s20, s36, 1
    s_lshl_b32 s20, s20, 3
    s_and_b32 s38, s37, 7
    s_add_u32 s20, s20, s38        ; tb1
    s_and_b32 s21, s36, 1
    s_lshl_b32 s21, s21, 2
    s_lshr_b32 s101, s37, 3        ; rotX
    s_add_u32 s21, s21, s101       ; cb1
    s_lshl_b32 s22, s21, 2
    s_add_u32 s22, s22, s3         ; head
    s_lshl_b32 s38, s20, 16
    s_lshl_b32 s23, s3, 14
    s_add_u32 s38, s38, s23
    """)
    rowid = []
    for g in range(4):
        k(f"s_xor_b32 s23, s101, {g}")
        k("s_lshl_b32 s23, s23, 12")
        k("s_add_u32 s23, s23, s38")
        for i in range(4):
            r = 4 * g + i
            rowid.append(vm.op(f"buffer_load_dwordx4 v[{RAW+4*r}:{RAW+4*r+3}], v2, s[28:31], s23 offen offset:{i*1024}"))
        if g == 0:
            k(f"""
            s_cmp_lg_u32 s39, 3
            s_cbranch_scc1 L_nozp
            s_lshl_b32 s23, s2, 2
            s_add_u32 s100, s23, 112
            s_cmp_ge_u32 s2, 4
            s_cselect_b32 s23, s100, s23
            v_mov_b32 v249, 1
            s_mov_b64 exec, 1
            s_waitcnt vmcnt(6)
            buffer_store_dword v249, v248, s[48:51], s23 offen {FL}
            s_mov_b64 exec, -1
            L_nozp:
            """)
    srd(k, 40, P_WQKV, 512 * 1536 * 2)
    k(f"""
    s_cmp_lt_u32 s2, 32
    s_cselect_b32 s52, s{P_WO}, s{P_W1}
    s_cselect_b32 s53, s{P_WO+1}, s{P_W1+1}
    s_mov_b32 s54, {512*1792*2:#x}
    s_cselect_b32 s54, {512*512*2:#x}, s54
    s_cmp_ge_u32 s2, 144
    s_cselect_b32 s52, s{P_W2}, s52
    s_cselect_b32 s53, s{P_W2+1}, s53
    s_mov_b32 s55, 0x00020000
    s_lshl_b32 s23, s21, 7
    s_mul_i32 s38, s3, {8*3072}
    s_add_u32 s23, s23, s38
    s_mul_i32 s100, s3, 3072
    """)
    stamp(k, 1)
    wd = {}
    def wdma(s):
        base = SLOT[s // 4] + (s % 4) * 12288
        def f(p):
            out = []
            if p == 0:
                out = [f"s_xor_b32 s39, s93, {s}", f"s_mul_i32 s39, s39, {32*3072}", f"s_add_u32 m0, s100, {base}", "s_add_u32 s39, s39, s23"]
            out.append(f"buffer_load_dwordx4 v5, s[40:43], s39 offen offset:{p*1024} lds")
            wd[s] = vm.tick()
            return out
        return [(lambda p=p: f(p)) for p in range(3)]
    wq = [g for s in range(8) for g in wdma(s)]
    def mod_reduce(mj, MA_, t0, t1, lds_off, lds_base=0):
        mj("s_nop 0")
        for i in range(4):
            mj(f"v_permlane32_swap_b32 v{MA_+i}, v{MA_+4+i}")
        for i in range(0, 4, 2):
            mj(f"v_pk_add_f32 v[{MA_+i}:{MA_+i+1}], v[{MA_+i}:{MA_+i+1}], v[{MA_+4+i}:{MA_+5+i}]")
        mj(f"v_lshrrev_b32 v{t0}, 4, v1")
        mj(f"v_and_b32 v{t1}, 1, v1")
        for i in range(2):
            mj(f"v_permlane16_swap_b32 v{MA_+i}, v{MA_+2+i}")
        mj(f"v_pk_add_f32 v[{MA_}:{MA_+1}], v[{MA_}:{MA_+1}], v[{MA_+2}:{MA_+3}]")
        mj(f"v_lshlrev_b32 v{t0}, 3, v{t0}")
        mj(f"v_lshl_add_u32 v{t0}, v{t1}, 5, v{t0}")
        for n_, ror in enumerate((8, 4, 2)):
            for i in range(2):
                mj(f"v_add_f32_dpp v{MA_+i}, v{MA_+i}, v{MA_+i} row_ror:{ror} row_mask:0xf bank_mask:0xf")
            mj("s_lshl_b32 s38, s3, 6" if n_ == 0 else (f"v_add_u32 v{t0}, s38, v{t0}" if n_ == 1 else f"v_add_u32 v{t0}, {lds_base}, v{t0}"))
        mj(f"ds_write_b64 v{t0}, v[{MA_}:{MA_+1}] offset:{lds_off}")
    def silu(mj, regs, tmp):
        for r, t in zip(regs, tmp):
            mj(f"v_mul_f32 v{t}, 0xbfb8aa3b, v{r}")
        for t in tmp:
            mj(f"v_exp_f32 v{t}, v{t}")
        mj("s_nop 0")
        for t in tmp:
            mj(f"v_add_f32 v{t}, 1.0, v{t}")
        for t in tmp:
            mj(f"v_rcp_f32 v{t}, v{t}")
        mj("s_nop 0")
        for r, t in zip(regs, tmp):
            mj(f"v_mul_f32 v{r}, v{r}, v{t}")
        for r in regs:
            bf16_round(mj, r, r)
    mj = L()
    vm.wait(wmid)
    mj(f"v_lshlrev_b32 v{CC}, 16, v{CC}")
    silu(mj, [CC], [CC + 1])
    for i in range(4):
        mj(f"v_lshlrev_b32 v{MA+2*i}, 16, v{WM+i}")
        mj(f"v_and_b32 v{MA+2*i+1}, 0xffff0000, v{WM+i}")
    for i in range(4):
        mj(f"v_pk_mul_f32 v[{MA+2*i}:{MA+2*i+1}], v[{MA+2*i}:{MA+2*i+1}], v[{CC}:{CC+1}] op_sel_hi:[1,0]")
    mod_reduce(mj, MA, CC, CC + 1, LDS_MRED)
    weave(k, mj, wq, int(os.environ.get("WV0", "8")))
    stamp(k, 2)
    SU, SQ = 216, 232
    WV = int(os.environ.get("WV1", "12"))
    PUBROW = int(os.environ.get("PUBROW", "6"))
    for r in range(16):
        ln = L()
        vm.wait(rowid[r])
        b, t = RAW + 4 * r, XF + 8 * r
        for i in range(4):
            ln(f"v_lshlrev_b32 v{t+2*i}, 16, v{b+i}")
            ln(f"v_and_b32 v{t+2*i+1}, 0xffff0000, v{b+i}")
        ln(f"v_pk_add_f32 v[248:249], v[{t}:{t+1}], v[{t+2}:{t+3}]")
        ln(f"v_pk_mul_f32 v[250:251], v[{t}:{t+1}], v[{t}:{t+1}]")
        ln(f"v_pk_add_f32 v[252:253], v[{t+4}:{t+5}], v[{t+6}:{t+7}]")
        for i in range(1, 4):
            ln(f"v_pk_fma_f32 v[250:251], v[{t+2*i}:{t+2*i+1}], v[{t+2*i}:{t+2*i+1}], v[250:251]")
        ln("v_pk_add_f32 v[248:249], v[248:249], v[252:253]")
        ln(f"v_add_f32 v{SQ+r}, v250, v251")
        ln(f"v_add_f32 v{SU+r}, v248, v249")
        weave(k, ln, wq, WV)
        if r == PUBROW - 2:
            k("s_waitcnt lgkmcnt(0)")
            k("s_load_dwordx4 s[4:7], s[48:49], 0")
        if r == PUBROW:
            k(f"""
            v_lshlrev_b32 v{CC}, 2, v1
            s_waitcnt lgkmcnt(0)
            s_barrier
            s_cmp_lg_u32 s3, 0
            s_cbranch_scc1 L_mod_done
            ds_read_b32 v{MA}, v{CC} offset:{LDS_MRED}
            s_and_b64 s[4:5], s[4:5], s[6:7]
            s_and_b32 s4, s4, s5
            s_cbranch_scc0 L_zspin
            L_zpoll_out:
            s_lshl_b32 s38, s98, 12
            s_lshl_b32 s4, s99, 6
            s_add_u32 s38, s38, s4
            s_add_u32 s38, s38, {OFF_MODP}
            s_waitcnt lgkmcnt(0)
            v_mov_b32 v{MA+1}, v{MA}
            s_nop 1
            v_permlane32_swap_b32 v{MA+1}, v{MA}
            v_add_f32 v{MA}, v{MA+1}, v{MA}
            v_mov_b32 v{MA+1}, v{MA}
            s_nop 1
            v_permlane16_swap_b32 v{MA+1}, v{MA}
            v_add_f32 v{MA}, v{MA+1}, v{MA}
            v_or_b32 v{MA}, 1, v{MA}
            s_mov_b64 exec, 0xffff
            buffer_store_dword v{MA}, v{CC}, s[24:27], s38 offen {FL}
            s_mov_b64 exec, -1
            L_mod_done:
            """)
            OOL.append(["L_zspin:", "s_mov_b32 s4, 0x40000", "s_mov_b64 exec, 15",
                        "L_zspin2:", f"buffer_load_dword v{CC+1}, v{CC}, s[48:51], 0 offen {FL}", "s_sub_u32 s4, s4, 1", "s_waitcnt vmcnt(0)",
                        f"v_cmp_eq_u32 vcc, 0, v{CC+1}", "s_cbranch_scc1 L_zout", "s_sleep 8", "s_cbranch_vccnz L_zspin2", "L_zout:",
                        "s_mov_b64 exec, -1", "s_branch L_zpoll_out"])
    for g in wq:
        for y in g():
            k(y)
    k(f"""
    v_and_b32 v248, 15, v1
    v_lshrrev_b32 v249, 4, v1
    v_mul_u32_u24 v3, 3072, v249
    v_lshrrev_b32 v250, 2, v248
    v_lshl_add_u32 v3, v250, 7, v3
    v_and_b32 v250, 1, v248
    v_lshl_add_u32 v3, v250, 3, v3
    v_bfe_u32 v250, v248, 1, 1
    s_lshl_b32 s38, s3, 1
    v_add_u32 v250, s38, v250
    v_bfe_u32 v251, v248, 3, 1
    v_and_b32 v252, 1, v249
    v_lshl_add_u32 v251, v252, 1, v251
    v_lshlrev_b32 v251, 1, v251
    v_xor_b32 v250, v250, v251
    v_lshl_add_u32 v3, v250, 4, v3
    v_add_u32 v4, 0x10000, v3
    v_add_u32 v6, 0x20000, v3
    """)
    def trreads(b):
        out = []
        for s in range(4 * b, 4 * b + 4):
            for p in range(3):
                for h in range(2):
                    addr = SLOT[b] + (s % 4) * 12288 + p * 1024 + h * 512
                    ar = 12 * s + 4 * p + 2 * h
                    out.append(f"ds_read_b64_tr_b16 a[{ar}:{ar+1}], v{(3, 4, 6)[addr >> 16]} offset:{addr & 0xffff}")
        return out
    def normalize(half):
        out = L()
        for rr in range(8):
            r = 8 * half + rr
            out(f"v_readlane_b32 s{4+2*rr}, v{SQ+4+(r&3)}, {16*(r>>2)}")
            out(f"v_readlane_b32 s{5+2*rr}, v{SU+4+(r&3)}, {16*(r>>2)}")
        for rr in range(8):
            t = XF + 8 * (8 * half + rr)
            for i in range(4):
                out(f"v_pk_fma_f32 v[{t+2*i}:{t+2*i+1}], v[{t+2*i}:{t+2*i+1}], s[{4+2*rr}:{5+2*rr}], s[{4+2*rr}:{5+2*rr}] op_sel:[0,0,1] op_sel_hi:[1,0,1]")
        return out
    stamp(k, 3)
    vm.wait(wd[3]); k("s_barrier")
    ln = L()
    for base in (SQ, SU):
        for r in range(8):
            ln(f"v_permlane32_swap_b32 v{base+r}, v{base+8+r}")
    for base in (SQ, SU):
        for r in range(0, 8, 2):
            ln(f"v_pk_add_f32 v[{base+r}:{base+r+1}], v[{base+r}:{base+r+1}], v[{base+8+r}:{base+9+r}]")
    for base in (SQ, SU):
        for r in range(4):
            ln(f"v_permlane16_swap_b32 v{base+r}, v{base+4+r}")
    for base in (SQ, SU):
        for r in range(0, 4, 2):
            ln(f"v_pk_add_f32 v[{base+r}:{base+r+1}], v[{base+r}:{base+r+1}], v[{base+4+r}:{base+5+r}]")
    for ror in (8, 4, 2, 1):
        for base in (SQ, SU):
            for r in range(4):
                ln(f"v_add_f32_dpp v{base+r}, v{base+r}, v{base+r} row_ror:{ror} row_mask:0xf bank_mask:0xf")
    fin = [L() for _ in range(4)]
    for i in range(4):
        ln_stats_finish(fin[i], SU + i, SQ + i, SU + 4 + i, SQ + 4 + i, SQ + 8 + i)
        fin[i](f"v_mul_f32 v{SU+4+i}, -v{SU+4+i}, v{SQ+4+i}")
    for tup in zip(*fin):
        for x in tup:
            if not x.startswith("s_nop"):
                ln(x)
    weave(k, ln, [(lambda x=x: [x]) for x in trreads(0)], 5)
    k(f"""
    s_lshl_b32 s38, s3, 10
    s_add_u32 s38, s38, {OFF_MODP}
    s_waitcnt lgkmcnt(0)
    s_barrier
    """)
    MP = 8
    def modloads():
        out = []
        for q in range(4):
            out.append(f"s_add_u32 s4, s38, {4096*q}")
            out.append(f"buffer_load_dwordx4 v[{MP+4*q}:{MP+4*q+3}], v2, s[24:27], s4 offen {FL}")
        return out
    def modcheck():
        out = L()
        out(f"v_and_b32 v252, v{MP}, v{MP+1}")
        for i in range(2, 16, 2):
            out(f"v_bitop3_b32 v252, v252, v{MP+i}, v{MP+i+1} bitop3:0x80")
        out("v_and_b32 v252, 1, v252")
        out("v_cmp_eq_u32 vcc, 0, v252")
        return out
    for x in modloads():
        k(x)
        if x.startswith("buffer"):
            modid = vm.tick()
    OOL.append(["L_dbg_spin:", "s_mov_b32 s4, 0x40000", "v_lshlrev_b32 v248, 2, v1", "s_mov_b64 exec, 15",
                "L_dbg_spin2:", f"buffer_load_dword v249, v248, s[48:51], 0 offen offset:128 {FL}", "s_sub_u32 s4, s4, 1", "s_waitcnt vmcnt(0)",
                "v_cmp_eq_u32 vcc, 0, v249", "s_cbranch_scc1 L_dbg_out", "s_sleep 8", "s_cbranch_vccnz L_dbg_spin2", "L_dbg_out:",
                "s_mov_b64 exec, -1", "s_branch L_dbg_ok"])
    OOL.append(["L_mod_spin:", "s_mov_b32 s39, 0x40000", "s_lshl_b32 s38, s3, 10", f"s_add_u32 s38, s38, {OFF_MODP}", "L_mod_spin2:"]
               + modloads() + ["s_sub_u32 s39, s39, 1", "s_waitcnt vmcnt(0)"]
               + list(modcheck()) + ["s_cbranch_scc1 L_mod_ok", "s_nop 1", "s_cbranch_vccnz L_mod_spin2", "s_branch L_mod_ok"])
    wq = [g for s in range(8, 12) for g in wdma(s)]
    weave(k, normalize(0), wq, 4)
    assert not wq
    stamp(k, 4)
    vm.wait(wd[7]); k("s_barrier")
    weave(k, normalize(1), [(lambda x=x: [x]) for x in trreads(1)], 2)
    k(f"""
    s_lshl_b32 s38, s93, 2
    v_xor_b32 v254, s38, v1
    v_lshlrev_b32 v254, 8, v254
    v_and_b32 v253, 7, v1
    v_lshl_add_u32 v254, v253, 4, v254
    s_lshl_b32 s38, s3, 14
    s_lshl_b32 s39, s101, 6
    v_add_u32 v254, s38, v254
    v_xor_b32 v254, s39, v254
    s_lshl_b32 s38, s3, 10
    v_add_u32 v7, s38, v2
    v_lshlrev_b32 v255, 5, v1
    s_cmp_ge_u32 s3, 2
    s_cselect_b32 s5, 1.0, 0
    """)
    vm.wait(modid)
    for x in modcheck(): k(x)
    k("s_nop 0")
    k("s_cbranch_vccnz L_mod_spin")
    k.label("L_mod_ok")
    k(f"v_pk_add_f32 v[{MP}:{MP+1}], v[{MP}:{MP+1}], v[{MP+4}:{MP+5}]")
    k(f"""
    v_pk_add_f32 v[{MP+2}:{MP+3}], v[{MP+2}:{MP+3}], v[{MP+6}:{MP+7}]
    v_pk_add_f32 v[{MP+8}:{MP+9}], v[{MP+8}:{MP+9}], v[{MP+12}:{MP+13}]
    v_pk_add_f32 v[{MP+10}:{MP+11}], v[{MP+10}:{MP+11}], v[{MP+14}:{MP+15}]
    v_pk_add_f32 v[{MP}:{MP+1}], v[{MP}:{MP+1}], v[{MP+8}:{MP+9}]
    v_pk_add_f32 v[{MP+2}:{MP+3}], v[{MP+2}:{MP+3}], v[{MP+10}:{MP+11}]
    """)
    for rep in range(2):
        k(f"v_cvt_pk_bf16_f32 v{MP+4}, v{MP}, v{MP+1}")
        k(f"v_cvt_pk_bf16_f32 v{MP+5}, v{MP+2}, v{MP+3}")
        for i in range(2):
            k(f"v_lshlrev_b32 v{MP+2*i}, 16, v{MP+4+i}")
            k(f"v_and_b32 v{MP+2*i+1}, 0xffff0000, v{MP+4+i}")
        if rep == 0:
            for i in range(4):
                k(f"v_add_f32 v{MP+i}, s5, v{MP+i}")
    k(f"""
    ds_write_b128 v7, v[{MP}:{MP+3}] offset:{LDS_SHARE}
    s_waitcnt lgkmcnt(0)
    s_barrier
    ds_read_b128 v[{VB}:{VB+3}], v255 offset:{LDS_SHARE}
    ds_read_b128 v[{VB+4}:{VB+7}], v255 offset:{LDS_SHARE+16}
    ds_read_b128 v[{VA}:{VA+3}], v255 offset:{LDS_SHARE+2048}
    ds_read_b128 v[{VA+4}:{VA+7}], v255 offset:{LDS_SHARE+2064}
    """)
    wq = [g for s in range(12, 16) for g in wdma(s)]
    for g in wq[:2]:
        for y in g():
            k(y)
    wq = wq[2:]
    k("s_waitcnt lgkmcnt(0)")
    stamp(k, 5)
    md = L()
    def mrow(r):
        t = XF + 8 * r
        for i in range(4):
            md(f"v_pk_fma_f32 v[{t+2*i}:{t+2*i+1}], v[{t+2*i}:{t+2*i+1}], v[{VA+2*i}:{VA+2*i+1}], v[{VB+2*i}:{VB+2*i+1}]")
        for i in range(4):
            md(f"v_cvt_pk_bf16_f32 v{t+i}, v{t+2*i}, v{t+2*i+1}")
        md(f"v_xor_b32 v{t+4}, {r<<4}, v254")
    def mwr(r):
        t = XF + 8 * r
        md(f"ds_write_b128 v{t+4}, v[{t}:{t+3}]")
    mrow(0)
    md("s_barrier")
    for r in range(1, 16):
        mwr(r - 1)
        mrow(r)
    mwr(15)
    weave(k, md, wq, 12)
    assert not wq
    k(f"""
    v_and_b32 v8, 15, v1
    v_lshrrev_b32 v9, 4, v1
    v_xor_b32 v10, v8, v9
    v_lshlrev_b32 v10, 4, v10
    v_lshl_add_u32 v8, v9, 8, v10
    v_xor_b32 v9, 64, v8
    s_waitcnt lgkmcnt(0)
    s_barrier
    """)
    stamp(k, 6)
    def aread(s):
        f = FR + 16 * (s & 1)
        return [f"ds_read_b128 v[{f+4*b}:{f+4*b+3}], v{8 + (s & 1)} offset:{b*16384+s*1024}" for b in range(4)]
    ex2, ex3 = trreads(2), trreads(3)
    for x in aread(0): k(x)
    for s in range(16):
        nxt = aread(s + 1) if s < 15 else []
        k("s_waitcnt lgkmcnt(0)")
        if s == 3:
            vm.wait(wd[11]); k("s_barrier")
        if s == 7:
            vm.wait(wd[15]); k("s_barrier")
        if s == 14:
            k("s_load_dwordx4 s[16:19], s[48:49], 128")
        if 3 <= s < 7:
            nxt += ex2[6 * (s - 3):6 * (s - 3) + 6]
        if 7 <= s < 11:
            nxt += ex3[6 * (s - 7):6 * (s - 7) + 6]
        f = FR + 16 * (s & 1)
        for b in range(4):
            for which in range(3):
                acc = ACC + 4 * (which * 4 + b)
                w = f"a[{12*s+4*which}:{12*s+4*which+3}]"
                h = f"v[{f+4*b}:{f+4*b+3}]"
                c = "0" if s == 0 else f"v[{acc}:{acc+3}]"
                a_, b_ = (w, h) if which < 2 else (h, w)
                k(f"v_mfma_f32_16x16x32_bf16 v[{acc}:{acc+3}], {a_}, {b_}, {c}")
                if nxt:
                    k(nxt.pop(0))
        assert not nxt
    stamp(k, 7)
    C2 = 200
    k(f"""
    v_lshrrev_b32 v221, 1, v1
    v_lshlrev_b32 v220, 3, v221
    s_lshl_b32 s38, s3, 8
    buffer_load_dwordx2 v[{C2}:{C2+1}], v220, s[56:59], s38 offen
    """)
    k(f"""
    s_lshl_b32 s40, s22, 16
    s_lshl_b32 s41, s20, 11
    s_add_u32 s40, s40, s41
    s_add_u32 s40, s40, {OFF_Q}
    s_lshl_b32 s42, s22, 17
    s_lshl_b32 s41, s20, 12
    s_add_u32 s42, s42, s41
    s_add_u32 s42, s42, {OFF_KV}
    v_mov_b32 v12, {QSCALE:#x}
    v_mov_b32 v13, {QSCALE:#x}
    """)
    for which in (1, 2, 0):
        for bp in range(2):
            t = 88 + 4 * (which * 2 + bp)
            for b2 in range(2):
                acc = ACC + 4 * (which * 4 + bp * 2 + b2)
                if which == 0:
                    k(f"v_pk_mul_f32 v[{acc}:{acc+1}], v[12:13], v[{acc}:{acc+1}]")
                    k(f"v_pk_mul_f32 v[{acc+2}:{acc+3}], v[12:13], v[{acc+2}:{acc+3}]")
                k(f"v_cvt_pk_bf16_f32 v{t+2*b2}, v{acc}, v{acc+1}")
                k(f"v_cvt_pk_bf16_f32 v{t+2*b2+1}, v{acc+2}, v{acc+3}")
        op = "v_permlane32_swap_b32" if which == 2 else "v_permlane16_swap_b32"
        for bp in range(2):
            t = 88 + 4 * (which * 2 + bp)
            if bp == 1:
                k("s_nop 0")
            k(f"{op} v{t}, v{t+2}")
            k(f"{op} v{t+1}, v{t+3}")
            if which == 0:
                vm.op(f"buffer_store_dwordx4 v[{t}:{t+3}], v2, s[24:27], s40 offen offset:{bp*1024} {FL}")
            else:
                vm.op(f"buffer_store_dwordx4 v[{t}:{t+3}], v2, s[24:27], s42 offen offset:{bp*2048+(which-1)*1024} {FL}")
    k("""
    s_and_b64 s[16:17], s[16:17], s[18:19]
    s_and_b32 s16, s16, s17
    s_cbranch_scc0 L_dbg_spin
    L_dbg_ok:
    """)
    stamp(k, 25)
    signal(k, 0, 21, 20, 32)
    stamp(k, 26)
    RA, RD, W2M, M2 = 160, 168, 184, 208
    LDS_RLS = 128 * 1024
    k(f"""
    s_cmp_lt_u32 s2, 32
    s_cselect_b32 s4, 0, 32
    s_cselect_b32 s5, 0, 1
    s_cmp_ge_u32 s2, 144
    s_cselect_b32 s4, 144, s4
    s_cselect_b32 s5, 2, s5
    s_sub_u32 s4, s2, s4
    s_lshr_b32 s6, s4, 3
    s_and_b32 s7, s4, 7
    s_mov_b32 s8, 1024
    s_cmp_lg_u32 s5, 1
    s_cbranch_scc1 L_rl_a
    s_mul_i32 s6, s4, 2341
    s_lshr_b32 s6, s6, 16
    s_mul_i32 s7, s6, 28
    s_sub_u32 s7, s4, s7
    s_mov_b32 s8, 3584
    L_rl_a:
    s_lshl_b32 s9, s6, 2
    s_add_u32 s9, s9, s3
    s_lshl_b32 s12, s8, 5
    s_mul_i32 s12, s12, s9
    s_lshl_b32 s11, s7, 7
    s_add_u32 s12, s12, s11
    v_lshrrev_b32 v220, 3, v1
    v_mul_lo_u32 v220, v220, s8
    v_and_b32 v249, 7, v1
    v_lshl_add_u32 v220, v249, 4, v220
    s_lshl_b32 s14, s3, 12
    s_add_u32 s14, s14, {LDS_RLS}
    v_and_b32 v248, 15, v1
    v_lshrrev_b32 v249, 4, v1
    v_lshrrev_b32 v250, 2, v248
    v_and_b32 v248, 3, v248
    v_lshlrev_b32 v248, 3, v248
    v_lshl_add_u32 v248, v250, 7, v248
    v_add_u32 v248, s14, v248
    v_and_b32 v250, 1, v249
    v_lshrrev_b32 v249, 1, v249
    s_cmp_eq_u32 s5, 1
    s_cbranch_scc1 L_rl_c
    v_lshl_add_u32 v248, v250, 5, v248
    s_lshr_b32 s13, s5, 1
    s_add_u32 s23, s13, 9
    v_lshlrev_b32 v249, s23, v249
    v_add_u32 v{RA}, v248, v249
    v_add_u32 v{RA+1}, 64, v{RA}
    v_add_u32 v{RA+2}, 0x800, v{RA}
    v_add_u32 v{RA+3}, 0x840, v{RA}
    s_lshr_b32 s23, 1024, s13
    s_cmp_eq_u32 s5, 0
    s_cselect_b32 s15, 32, 112      ; ksteps
    s_mov_b32 s10, {OFF_W2}
    s_cselect_b32 s10, {OFF_WO}, s10
    s_lshl_b32 s11, s7, 1
    s_mul_i32 s11, s11, s15
    s_lshl_b32 s13, s9, 1
    s_add_u32 s11, s11, s13
    s_lshl_b32 s11, s11, 10
    s_add_u32 s16, s11, s10
    s_lshl_b32 s15, s15, 10
    s_add_u32 s17, s16, s15
    s_add_u32 s18, s16, 1024
    s_add_u32 s19, s17, 1024
    s_branch L_rl_d
    L_rl_c:
    v_lshl_add_u32 v248, v249, 11, v248
    v_lshl_add_u32 v{RA}, v250, 9, v248
    v_add_u32 v{RA+1}, 32, v{RA}
    v_add_u32 v{RA+2}, 64, v{RA}
    v_add_u32 v{RA+3}, 0x60, v{RA}
    s_mov_b32 s23, 1024
    s_lshl_b32 s15, s7, 2
    s_mul_i32 s13, s9, 7
    """)
    for f in range(4):
        k(f"""
        s_mul_i32 s10, s15, 9363
        s_lshr_b32 s10, s10, 16
        s_mul_i32 s11, s10, 105
        s_add_u32 s11, s11, s15
        s_add_u32 s11, s11, s13
        s_lshl_b32 s11, s11, 10
        s_add_u32 s{16+f}, s11, {OFF_W1}
        s_add_u32 s15, s15, 1
        """)
    k.label("L_rl_d")
    for f in range(4):
        k(f"v_add_u32 v{RA+4+f}, s23, v{RA+f}")
    k(f"""
    s_lshl_b32 s13, s8, 3
    s_lshr_b32 s99, s37, 2
    s_lshl_b32 s99, s99, 3
    s_add_u32 s99, s99, s36
    s_lshl_b32 s99, s99, 2
    s_and_b32 s38, s37, 3
    s_add_u32 s99, s99, s38
    s_add_u32 s99, s99, 64
    v_mul_u32_u24 v221, {4*6144}, v221
    v_and_b32 v249, 1, v1
    v_lshl_add_u32 v221, v249, 4, v221
    s_mul_i32 s15, s3, {128*6144}
    s_lshl_b32 s4, s99, 5
    s_add_u32 s15, s15, s4
    s_cmp_ge_u32 s37, 16
    s_cselect_b32 s15, 0x7f000000, s15
    s_lshl_b32 s20, s2, 1
    s_lshr_b32 s21, s3, 1
    s_add_u32 s20, s20, s21
    s_mul_i32 s20, s20, 6144
    s_and_b32 s21, s3, 1
    s_lshl_b32 s21, s21, 11
    s_add_u32 s20, s20, s21
    s_add_u32 s20, s20, 2048
    s_mov_b64 s[4:5], s[44:45]
    s_mov_b32 s6, s46
    s_mov_b32 s7, 0x00020000
    s_mov_b64 s[8:9], s[52:53]
    s_mov_b32 s10, s54
    s_mov_b32 s11, 0x00020000
    v_lshlrev_b32 v{C2+2}, 16, v{C2}
    v_and_b32 v{C2+3}, 0xffff0000, v{C2}
    v_lshlrev_b32 v{C2+4}, 16, v{C2+1}
    v_and_b32 v{C2+5}, 0xffff0000, v{C2+1}
    """)
    silu(k, [C2 + 2 + i for i in range(4)], [M2 + i for i in range(4)])
    stamp(k, 8)
    Q, KF, VF, S, P, O, C = (ATT[x] for x in ("Q", "KF", "VF", "S", "P", "O", "C"))
    k(f"""
    s_lshl_b32 s40, s36, 2
    s_and_b32 s42, s37, 3
    s_add_u32 s40, s40, s42        ; head2
    s_lshr_b32 s54, s37, 2         ; qb256
    s_lshl_b32 s41, s54, 2
    s_add_u32 s41, s41, s3         ; qblock64
    s_lshl_b32 s42, s40, 16
    s_lshl_b32 s43, s41, 11
    s_add_u32 s42, s42, s43
    s_add_u32 s42, s42, {OFF_Q}
    s_lshl_b32 s44, s40, 17
    s_lshl_b32 s45, s3, 10
    s_add_u32 s47, s44, {OFF_KV}
    s_add_u32 s44, s47, s45
    s_lshl_b32 s46, s41, 16
    s_lshl_b32 s43, s40, 10
    s_add_u32 s46, s46, s43
    s_add_u32 s46, s46, {OFF_O}
    s_mov_b32 m0, s45
    v_and_b32 v3, 15, v1
    v_lshlrev_b32 v3, 4, v3
    v_lshrrev_b32 v4, 5, v1
    v_lshl_add_u32 v3, v4, 8, v3
    v_add_u32 v4, 0x10000, v2
    v_add_u32 v5, 0x10000, v3
    s_mov_b32 s48, 0x0000ffff
    s_mov_b32 s49, 0x0000ffff
    v_and_b32 v8, 27, v1
    v_cmp_eq_u32 vcc, 16, v8
    v_mov_b32 v9, 0x3f803f80
    s_nop 0
    v_cndmask_b32 v9, 0, v9, vcc
    """)
    for i in range(16):
        k(f"v_mov_b32 v{VF+i}, v9")
    k(f"""
    s_lshr_b32 s50, s37, 3
    s_lshl_b32 s50, s50, 2
    s_add_u32 s50, s50, s3          ; P3 ncol32
    s_lshl_b32 s51, s50, 15
    s_add_u32 s51, s51, {OFF_WO}
    s_lshr_b32 s52, s37, 2
    s_lshl_b32 s52, s52, 1
    s_lshr_b32 s53, s3, 1
    s_add_u32 s52, s52, s53
    s_xor_b32 s53, s52, 1
    s_mul_i32 s55, s52, {112*1024}
    s_mul_i32 s56, s53, {112*1024}
    s_mul_i32 s53, s3, {28*1024}
    s_add_u32 s53, s53, {OFF_W2}
    s_add_u32 s55, s55, s53
    s_add_u32 s56, s56, s53
    s_lshr_b32 s57, s37, 2
    s_lshl_b32 s57, s57, 1
    s_and_b32 s53, s37, 1
    s_add_u32 s57, s57, s53         ; cb4
    s_mul_i32 s58, s57, {112*1024}
    s_add_u32 s58, s58, {OFF_W1}
    s_mul_i32 s22, s3, 7168
    s_mul_i32 s23, s3, 21504
    s_add_u32 s21, s58, s23
    s_add_u32 s21, s21, {28*1024}
    v_lshrrev_b32 v8, 5, v1
    v_and_b32 v9, 31, v1
    v_lshlrev_b32 v148, 10, v9
    v_lshl_add_u32 v148, v8, 3, v148
    v_lshlrev_b32 v149, 4, v9
    v_lshl_add_u32 v149, v8, 12, v149
    s_lshl_b32 s59, s36, 3
    s_and_b32 s53, s37, 7
    s_add_u32 s59, s59, s53
    s_lshl_b32 s59, s59, 15
    s_lshl_b32 s53, s50, 6
    s_add_u32 s59, s59, s53
    s_lshr_b32 s53, s37, 2
    """)
    wait_edge(k, 0, 36, 32)
    stamp(k, 9)
    vm.n = 0
    rid = []
    def dma():
        i = len(rid)
        out = []
        if i < 4:
            if i:
                out += [f"s_add_u32 m0, s45, {4096*i}", "s_add_u32 s44, s44, 4096"]
            out += [f"buffer_load_dwordx4 v2, s[24:27], s44 offen {FL} lds"]
        else:
            if i % 4 == 0:
                out += [f"s_add_u32 m0, s43, {4096*i}", f"s_add_u32 s44, s41, {4096*i}"]
            out += [f"buffer_load_dwordx4 v2, s[24:27], s44 offen offset:{1024*(i%4)} {FL} lds"]
        rid.append(vm.tick())
        return out
    k("s_lshl_b32 s43, s3, 12")
    k("s_add_u32 s41, s47, s43")
    for x in dma(): k(x)
    vm.op(f"buffer_load_dwordx4 v[{Q}:{Q+3}], v2, s[24:27], s42 offen {FL}")
    qid = vm.op(f"buffer_load_dwordx4 v[{Q+4}:{Q+7}], v2, s[24:27], s42 offen offset:1024 {FL}")
    for r in range(3):
        for x in dma(): k(x)
    fin2 = L()
    fin2(f"""
    s_cmp_lg_u32 s3, 1
    s_cbranch_scc1 L_m2_done
    s_cmp_ge_u32 s37, 16
    s_cbranch_scc1 L_m2_done
    v_lshlrev_b32 v216, 2, v1
    v_add_u32 v217, {LDS_MRED2}, v216
    ds_read_b32 v{M2}, v217
    s_lshr_b32 s38, s99, 5
    s_cmp_eq_u32 s38, 4
    s_cselect_b32 s39, 1.0, 0
    s_waitcnt lgkmcnt(0)
    v_mov_b32 v{M2+1}, v{M2}
    s_nop 1
    v_permlane32_swap_b32 v{M2+1}, v{M2}
    v_add_f32 v{M2}, v{M2+1}, v{M2}
    v_mov_b32 v{M2+1}, v{M2}
    s_nop 1
    v_permlane16_swap_b32 v{M2+1}, v{M2}
    v_add_f32 v{M2}, v{M2+1}, v{M2}
    """)
    bf16_round(fin2, M2, M2)
    fin2(f"v_add_f32 v{M2}, s39, v{M2}")
    bf16_round(fin2, M2, M2)
    fin2(f"""
    s_lshl_b32 s39, s99, 6
    s_mov_b64 exec, 0xffff
    buffer_store_dword v{M2}, v216, s[24:27], s39 offen offset:{OFF_MOD} {FL}
    s_sub_u32 s38, 4, s38
    s_cmp_gt_u32 s38, 1
    s_cbranch_scc1 L_m2_done
    s_lshl_b32 s38, s38, 10
    s_and_b32 s39, s99, 31
    s_lshl_b32 s39, s39, 5
    s_add_u32 s38, s38, s39
    s_add_u32 s38, s38, {OFF_MODB}
    v_bfe_u32 v217, v1, 2, 1
    v_lshlrev_b32 v216, 4, v217
    v_bfe_u32 v217, v1, 3, 1
    v_lshl_add_u32 v216, v217, 3, v216
    v_and_b32 v217, 3, v1
    v_lshl_add_u32 v216, v217, 1, v216
    buffer_store_short_d16_hi v{M2}, v216, s[24:27], s38 offen {FL}
    L_m2_done:
    s_mov_b64 exec, -1
    """)
    vm.wait(qid)
    k("s_barrier")
    def kread(t):
        off = t * 2048
        return f"ds_read_b128 v[{KF}:{KF+3}], v{2 if off < 65536 else 4} offset:{off & 0xffff}"
    def vread(t):
        off = t * 2048 + 1024
        b = VF + 8 * (t & 1)
        a = 3 if off < 65536 else 5
        return ["s_mov_b64 exec, s[48:49]",
                f"ds_read_b128 v[{b}:{b+3}], v{a} offset:{off & 0xffff}",
                f"ds_read_b128 v[{b+4}:{b+7}], v{a} offset:{(off+512) & 0xffff}",
                "s_mov_b64 exec, -1"]
    k(kread(0))
    for x in vread(0): k(x)
    k(f"""
    s_waitcnt lgkmcnt(2)
    v_mfma_f32_32x32x16_bf16 v[{S}:{S+15}], v[{KF}:{KF+3}], v[{Q}:{Q+3}], 0
    v_mfma_f32_32x32x16_bf16 v[{S+16}:{S+31}], v[{KF}:{KF+3}], v[{Q+4}:{Q+7}], 0
    s_nop 10
    """)
    att_max16(k, 6, S, True)
    att_max16(k, 7, S + 16, True)
    k("""
    s_nop 1
    v_permlane32_swap_b32 v6, v7
    v_max_f32 v6, v6, v7
    v_mov_b32 v7, v6
    s_nop 1
    v_permlane32_swap_b32 v6, v7
    v_sub_f32 v6, 0, v6
    v_sub_f32 v7, 0, v7
    """)
    for i in range(16):
        k(f"v_mov_b32 v{C+i}, v6")
    k("s_nop 0")
    k(f"v_mov_b32 v{C+16}, v7")
    k(f"v_mfma_f32_32x32x16_bf16 v[{S}:{S+15}], v[{KF}:{KF+3}], v[{Q}:{Q+3}], v[{C}:{C+15}]")
    for i in range(1, 16):
        k(f"v_mov_b32 v{C+16+i}, v7")
    stamp(k, 10)
    jobs = []
    for s in range(32):
        pre = ["s_add_u32 s51, s51, 4096"] if (s and s % 4 == 0) else []
        jobs.append(pre + [f"buffer_load_dwordx4 {wo_reg(s)}, v2, s[24:27], s51 offen offset:{(s%4)*1024} {FL}"])
    for s in range(28):
        for i, sr in enumerate((55, 56)):
            pre = [f"s_add_u32 s{sr}, s{sr}, 4096"] if (s and s % 4 == 0) else []
            jobs.append(pre + [f"buffer_load_dwordx4 a[{8*s+4*i}:{8*s+4*i+3}], v2, s[24:27], s{sr} offen offset:{(s%4)*1024} {FL}"])
    w1jobs = []
    for i in range(7):
        pre = [f"s_add_u32 m0, s22, {131072 + 4096*(i//4)}", f"s_add_u32 s44, s58, s22"] + ([f"s_add_u32 s44, s44, 4096"] if i else []) if i % 4 == 0 else []
        w1jobs.append(pre + [f"buffer_load_dwordx4 v2, s[24:27], s44 offen offset:{1024*(i%4)} sc1 lds"])
    for i in range(21):
        pre = [f"s_add_u32 m0, s23, {4096*(i//4)}", f"s_add_u32 s44, s21, {4096*(i//4)}"] if i % 4 == 0 else []
        w1jobs.append(pre + [f"buffer_load_dwordx4 v2, s[24:27], s44 offen offset:{1024*(i%4)} sc1 lds"])
    modb = ["s_and_b32 s53, s45, 1024", f"s_add_u32 m0, s53, {LDS_MODB}", f"s_add_u32 s53, s53, {OFF_MODB}",
            "buffer_load_dwordx4 v2, s[24:27], s53 offen sc1 lds"]
    vec1 = [f"s_mov_b32 m0, {LDS_VEC}", "s_lshr_b32 s53, s37, 3", "s_lshl_b32 s53, s53, 9", f"s_add_u32 s53, s53, {OFF_MOD + 2*2048}",
            "buffer_load_dwordx4 v149, s[24:27], s53 offen sc1 lds"]
    vec2 = [f"s_mov_b32 m0, {LDS_VEC + 1024}", "s_lshr_b32 s53, s37, 4", "s_lshl_b32 s53, s53, 10", f"s_add_u32 s53, s53, {OFF_MOD + 5*2048}",
            "buffer_load_dwordx4 v2, s[24:27], s53 offen sc1 lds"]
    xj = [[f"buffer_load_dwordx2 v[{140+2*j}:{141+2*j}], v148, s[28:31], s59 offen offset:{16*j}"] for j in range(4)]
    wo_j, w2_j = jobs[:32], jobs[32:]
    NW2 = int(os.environ.get("NW2", "56"))
    w2_late = w2_j[NW2:]
    jobs = w1jobs[:7] + w2_j[:NW2] + wo_j
    late = w1jobs[7:]
    vecj = [modb, vec1, vec2]
    pfj = [[f"buffer_load_dwordx4 v[{W2M+4*i}:{W2M+4*i+3}], v2, s[4:7], s20 offen offset:{1024*i}"] for i in range(2)]
    rlj = [([f"s_add_u32 m0, s14, {1024*i}", "s_add_u32 s12, s12, s13"] if i else ["s_mov_b32 m0, s14", "s_nop 0"])
           + ["buffer_load_dwordx4 v220, s[8:11], s12 offen lds"] for i in range(4)]
    m2j = [(["s_add_u32 s15, s15, 6144"] if i else []) + [f"buffer_load_dwordx4 v[{W2M+4*i}:{W2M+4*i+3}], v221, s[4:7], s15 offen"]
           for i in range(4)]
    bg = L()
    for p in range(4):
        for i in range(4):
            src = W2M + 4 * p + i
            t_ = 216 + 2 * (i & 1)
            bg(f"v_lshlrev_b32 v{t_}, 16, v{src}")
            bg(f"v_and_b32 v{t_+1}, 0xffff0000, v{src}")
            if p == 0:
                bg(f"v_pk_mul_f32 v[{M2+2*i}:{M2+2*i+1}], v[{t_}:{t_+1}], v[{C2+2}:{C2+3}] op_sel_hi:[1,0]")
            else:
                sel = "op_sel:[0,1,0] op_sel_hi:[1,1,1]" if p & 1 else "op_sel_hi:[1,0,1]"
                cr = C2 + 2 + (p & 2)
                bg(f"v_pk_fma_f32 v[{M2+2*i}:{M2+2*i+1}], v[{t_}:{t_+1}], v[{cr}:{cr+1}], v[{M2+2*i}:{M2+2*i+1}] {sel}")
    mod_reduce(bg, M2, C2, C2 + 1, 0, LDS_MRED2)
    bg = [x for x in bg if not x.startswith("s_nop")]
    U_RL, U_FLAG, U_XL, U_XC = 34, 44, 56, 62
    U_M2, U_BG, U_FIN, U_MFLAG, U_ML, U_MC = 45, 64, 76, 84, 112, 118
    def flagblk(lab, off, cond):
        return cond + ["s_getreg_b32 s38, hwreg(HW_REG_XCC_ID, 0, 4)", "s_add_u32 s38, s38, 1", "s_lshl_b32 s39, s2, 2",
                       f"s_add_u32 s39, s39, {off}", "s_mov_b64 exec, 1", "v_mov_b32 v6, 0", "v_mov_b32 v7, s38",
                       f"buffer_store_dword v7, v6, s[24:27], s39 offen {FL}", "s_mov_b64 exec, -1", f"{lab}:"]
    for u in range(128):
        t = u >> 1
        side = {}
        def add(slot, xs):
            side.setdefault(slot, []).extend(xs)
        def put(d, slot):
            ms = 7 if slot == 1 else 21
            add(ms - 1, d[:-1]); add(ms, d[-1:])
            return vm.tick()
        if len(rid) < 32:
            d = dma()
            add(6, d[:-1]); add(7, d[-1:])
        elif rlj:
            rlid = put(rlj.pop(0), 1)
        elif pfj:
            put(pfj.pop(0), 1)
        elif xj:
            put(xj.pop(0), 1)
        elif U_M2 <= u < U_M2 + 4:
            m2id = put(m2j[u - U_M2], 1)
        elif vecj and u > U_MC:
            put(vecj.pop(0), 1)
        elif jobs and u > U_XC and (u > U_MFLAG or len(jobs) > 24):
            put(jobs.pop(0), 1)
        if u == U_BG:
            add(7, [vm.wait_str(m2id)])
        if u > U_BG:
            for sl in (4, 6, 8, 11, 13, 18, 20, 25):
                if bg:
                    add(sl, [bg.pop(0)])
        if u % 2 == 0 and t < 63:
            pre = []
            if u == 2:
                pre = [vm.wait_str(rid[3]), "s_barrier"]
            elif u == 14:
                pre = [vm.wait_str(rid[15]), "s_barrier"]
            elif u == U_FLAG:
                pre = [vm.wait_str(max(rid[31], rlst)), "s_barrier"] + flagblk("L_noxid", OFF_XID, ["s_cmp_lg_u32 s3, 1", "s_cbranch_scc1 L_noxid"])
            elif u == U_FIN:
                assert not bg
                pre = ["s_barrier"] + list(fin2)
                finid = vm.n
            elif u == U_MFLAG:
                pre = flagblk("L_nomid", OFF_XID + 2048, ["s_cmp_lg_u32 s3, 1", "s_cbranch_scc1 L_nomid", vm.wait_str(finid)])
            elif u == 82:
                pre = ["s_barrier"]
            add(14, pre + [kread(t + 1)])
            add(15, vread(t + 1))
        if u % 2 == 1 or u == 0:
            add(-14, ["s_waitcnt lgkmcnt(0)"])
        if u == U_RL:
            add(16, [vm.wait_str(rlid)])
            for f in range(4):
                add(17 + 2 * f, [f"ds_read_b64_tr_b16 v[{RD+4*f}:{RD+4*f+1}], v{RA+f}"])
                add(18 + 2 * f, [f"ds_read_b64_tr_b16 v[{RD+4*f+2}:{RD+4*f+3}], v{RA+4+f}"])
        if U_RL + 1 <= u < U_RL + 5:
            f = u - U_RL - 1
            rlst = put([f"buffer_store_dwordx4 v[{RD+4*f}:{RD+4*f+3}], v2, s[24:27], s{16+f} offen {FL}"], 17)
        if len(rid) < 32:
            d = dma()
            add(20, d[:-1]); add(21, d[-1:])
        elif u == U_XL:
            vm.tick(); xidid = vm.tick()
            add(7, [f"s_mov_b32 s53, {OFF_XID}", f"buffer_load_dwordx4 v[150:153], v2, s[24:27], s53 offen {FL}"])
            add(21, [f"buffer_load_dwordx4 v[154:157], v2, s[24:27], s53 offen offset:32 {FL}"])
        elif u == U_XC:
            add(17, [vm.wait_str(xidid), "v_min_u32 v158, v150, v151", "v_min_u32 v159, v152, v153"])
            add(18, ["v_min_u32 v158, v158, v159", "v_xor_b32 v154, v154, v150", "v_xor_b32 v155, v155, v151"])
            add(20, ["v_cmp_eq_u32 vcc, 0, v158", "v_xor_b32 v156, v156, v152", "v_xor_b32 v157, v157, v153"])
            add(22, ["s_cbranch_vccnz L_xid_retry", "L_xid_ok:", "v_or3_b32 v154, v154, v155, v156", "v_or_b32 v154, v154, v157"])
            add(24, ["v_cmp_ne_u32 vcc, 0, v154"])
            add(27, ["s_and_b32 s53, vcc_hi, 0x3fffffff", "s_or_b32 s53, s53, vcc_lo", "s_cmp_eq_u32 s53, 0", f"s_cselect_b32 s{S_FAST}, 1, 0"])
        elif u == U_ML:
            midid = put([f"s_mov_b32 s53, {OFF_XID + 2048}", f"buffer_load_dwordx4 v[150:153], v2, s[24:27], s53 offen {FL}"], 17)
        elif u == U_MC:
            add(17, [vm.wait_str(midid), "v_min_u32 v158, v150, v151", "v_min_u32 v159, v152, v153"])
            add(18, ["v_min_u32 v158, v158, v159"])
            add(20, ["v_cmp_eq_u32 vcc, 0, v158"])
            add(24, ["s_cbranch_vccnz L_mid_retry", "L_mid_ok:"])
        elif u >= 83 and late:
            put(late.pop(0), 17)
        elif jobs and u > U_XC + 3 and (u > U_MFLAG or len(jobs) > 24):
            put(jobs.pop(0), 17)
        if DIAG and os.environ.get('ATTST') and u in (8, 16, 34, 36, 46, 56, 64, 86):
            stamp(k, (8, 16, 34, 36, 46, 56, 64, 86).index(u))
        att_unit(k, u, side, last=(u == 127))
    assert not vecj
    assert not jobs and not late, (len(jobs), len(late))
    k(f"""
    s_nop 0
    v_cvt_pk_bf16_f32 v{P+7}, v{S+30}, v{S+31}
    s_nop 1
    v_mfma_f32_32x32x16_bf16 v[{O+16}:{O+31}], v[{VF+12}:{VF+15}], v[{P+4}:{P+7}], v[{O+16}:{O+31}]
    s_mov_b32 s53, 0x53800000
    v_cmp_nge_f32 vcc, s53, v{O+8}
    s_nop 9
    v_cmp_nge_f32 s[42:43], s53, v{O+24}
    s_nop 3
    s_or_b64 vcc, vcc, s[42:43]
    s_cbranch_scc0 L_att_fin
    s_branch L_att_fallback
    """)
    k.label("L_att_fin")
    stamp(k, 11)
    XR, XU, GA, A2 = 140, 44, 108, 124
    k(f"""
    v_rcp_f32 v6, v{O+8}
    v_rcp_f32 v7, v{O+24}
    s_lshl_b32 s42, s36, 3
    s_and_b32 s43, s37, 7
    s_add_u32 s42, s42, s43         ; t3 (tok32)
    v_lshrrev_b32 v8, 5, v1         ; h
    v_and_b32 v9, 31, v1            ; tok
    """)
    dual_begin(k)
    for b_ in range(2):
        for i in range(8):
            k(f"v_mul_f32 v{O+16*b_+i}, v{6+b_}, v{O+16*b_+i}")
        for i in range(4):
            k(f"v_cvt_pk_bf16_f32 v{P+4*b_+i}, v{O+16*b_+2*i}, v{O+16*b_+2*i+1}")
        if b_:
            k("s_add_u32 s46, s46, 32768")
        k(f"buffer_store_dwordx4 v[{P+4*b_}:{P+4*b_+3}], v2, s[24:27], s46 offen {DF}")
    k(f"""
    v_add_u32 v5, 0x20000, v2
    v_lshrrev_b32 v12, 4, v9
    v_lshlrev_b32 v12, 14, v12
    v_and_b32 v13, 15, v9
    v_lshl_add_u32 v12, v13, 4, v12
    v_lshl_add_u32 v12, v8, 8, v12
    v_lshlrev_b32 v13, 3, v9
    s_lshl_b32 s43, s3, 10
    s_lshl_b32 s44, s42, 15
    s_lshl_b32 s45, s50, 10
    s_add_u32 s44, s44, s45
    s_add_u32 s45, s44, {OFF_X2S}
    s_add_u32 s44, s44, {OFF_X2}
    s_lshl_b32 s46, s42, 12
    s_lshl_b32 s47, s50, 8
    s_add_u32 s46, s46, s47
    s_add_u32 s46, s46, {OFF_ST2}
    s_lshl_b32 s47, s42, 15
    s_add_u32 s47, s47, s43
    s_add_u32 s47, s47, {OFF_O}
    s_add_u32 m0, s43, {LDS_OST}
    """)
    def w2some(n):
        for _ in range(n):
            for y in w2_late.pop(0):
                k(y)
        return n
    ND = [int(x) for x in os.environ.get("ND", "0,0,0").split(",")]
    signal(k, 1, 54, 40, 32, nafter=w2some(ND[0]), fl=DF)
    dual_end(k, 'e1')
    stamp(k, 12)
    k(f"""
    s_lshl_b32 s38, s3, 7
    s_add_u32 s38, s38, {LDS_VEC}
    v_lshlrev_b32 v10, 4, v8
    v_add_u32 v10, s38, v10
    """)
    for j in range(4):
        k(f"ds_read_b128 v[{GA+4*j}:{GA+4*j+3}], v10 offset:{32*j}")
        k(f"ds_read_b128 v[{A2+4*j}:{A2+4*j+3}], v10 offset:{512+32*j}")
    for i in range(8):
        k(f"v_lshlrev_b32 v{XU+2*i}, 16, v{XR+i}")
        k(f"v_and_b32 v{XU+2*i+1}, 0xffff0000, v{XR+i}")
    k("s_cmp_eq_u32 s3, 0")
    k("s_cbranch_scc1 L_ut_done")
    MA_, WU, UA = 60, 68, 92
    k(f"""
    s_sub_u32 s38, s43, 1024
    v_add_u32 v14, s38, v2
    v_add_u32 v15, s38, v4
    v_add_u32 v16, s38, v5
    v_and_b32 v17, 15, v1
    v_lshrrev_b32 v18, 4, v1
    v_lshlrev_b32 v17, 10, v17
    v_lshl_add_u32 v17, v18, 4, v17
    v_add_u32 v17, {LDS_MODB}, v17
    s_mov_b32 s38, 0x00030003
    s_mov_b32 s39, 0x00030003
    """)
    for i in range(8):
        k(f"v_mov_b32 v{MA_+i}, 0")
    def uread(s):
        r = WU + 12 * (s & 1)
        k("s_mov_b64 exec, s[38:39]")
        k(f"ds_read_b128 v[{MA_+4*(s&1)}:{MA_+4*(s&1)+3}], v17 offset:{64*s}")
        k("s_mov_b64 exec, -1")
        for h in range(3):
            addr = w1_lds(s * 7) + 3 * h * 1024
            k(f"ds_read_b128 v[{r+4*h}:{r+4*h+3}], v{14 + (addr >> 16)} offset:{addr & 0xffff}")
    uread(0)
    for s in range(16):
        if s < 15:
            uread(s + 1)
            k("s_waitcnt lgkmcnt(4)")
        else:
            k("s_waitcnt lgkmcnt(0)")
        r = WU + 12 * (s & 1)
        for h in range(3):
            u_ = UA + 4 * h
            c = "0" if s == 0 else f"v[{u_}:{u_+3}]"
            k(f"v_mfma_f32_16x16x32_bf16 v[{u_}:{u_+3}], v[{MA_+4*(s&1)}:{MA_+4*(s&1)+3}], v[{r+4*h}:{r+4*h+3}], {c}")
    k("s_nop 5")
    for h in range(3):
        u_ = UA + 4 * h
        d = WU + 4 * h
        for i in range(2):
            bf16_round(k, 18 + i, u_ + i)
        for i in range(2):
            k(f"v_sub_f32 v{20+i}, v{u_+i}, v{18+i}")
        for i in range(2):
            k(f"v_cvt_pk_bf16_f32 v{d+i}, v{18+i}, v{20+i}")
        k(f"v_mov_b32 v{d+2}, 0")
        k(f"v_mov_b32 v{d+3}, 0")
        k(f"ds_write_b128 v15, v[{d}:{d+3}] offset:{LDS_UT + 3*h*1024 - 65536}")
    k.label("L_ut_done")
    stamp(k, 13)
    wait_edge(k, 1, 36, 32)
    stamp(k, 14)
    vm.n = 0
    oid = []
    for i in range(8):
        if i:
            k("s_add_u32 m0, m0, 4096")
            k("s_add_u32 s47, s47, 4096")
        oid.append(vm.op(f"buffer_load_dwordx4 v2, s[24:27], s47 offen {FL} lds"))
    AC, OFR = 20, 60
    chunks = [(0, 8), (8, 20), (20, 32)]
    for (c0, c1) in chunks:
        vm.wait(oid[c1 // 4 - 1])
        k("s_barrier")
        n = c1 - c0
        ahead = 6
        for s in range(c0, min(c1, c0 + ahead)):
            k(lds_rd(f"v[{OFR+4*(s%8)}:{OFR+4*(s%8)+3}]", LDS_OST + s * 1024))
        for s in range(c0, c1):
            issued = min(c1, s + ahead)
            k(f"s_waitcnt lgkmcnt({issued - 1 - s})")
            c = "0" if s == 0 else f"v[{AC}:{AC+15}]"
            k(f"v_mfma_f32_32x32x16_bf16 v[{AC}:{AC+15}], {wo_reg(s)}, v[{OFR+4*(s%8)}:{OFR+4*(s%8)+3}], {c}")
            if s + ahead < c1:
                s2 = s + ahead
                k(lds_rd(f"v[{OFR+4*(s2%8)}:{OFR+4*(s2%8)+3}]", LDS_OST + s2 * 1024))
    k("s_nop 11")
    stamp(k, 15)
    for i in range(8):
        k(f"v_pk_fma_f32 v[{AC+2*i}:{AC+2*i+1}], v[{GA+2*i}:{GA+2*i+1}], v[{AC+2*i}:{AC+2*i+1}], v[{XU+2*i}:{XU+2*i+1}]")
    for i in range(8):
        k(f"v_pk_mul_f32 v[{A2+2*i}:{A2+2*i+1}], v[{A2+2*i}:{A2+2*i+1}], v[{AC+2*i}:{AC+2*i+1}]")
    for i in range(8):
        k(f"v_cvt_pk_bf16_f32 v{60+i}, v{A2+2*i}, v{A2+2*i+1}")
    dual_begin(k)
    k(f"buffer_store_dwordx4 v[60:63], v12, s[24:27], s45 offen {DF}")
    k(f"buffer_store_dwordx4 v[64:67], v12, s[24:27], s45 offen offset:512 {DF}")
    k(f"v_pk_add_f32 v[14:15], v[{AC}:{AC+1}], v[{AC+2}:{AC+3}]")
    k(f"v_pk_mul_f32 v[16:17], v[{AC}:{AC+1}], v[{AC}:{AC+1}]")
    for i in range(1, 8):
        if i >= 2:
            k(f"v_pk_add_f32 v[14:15], v[14:15], v[{AC+2*i}:{AC+2*i+1}]")
        k(f"v_pk_fma_f32 v[16:17], v[{AC+2*i}:{AC+2*i+1}], v[{AC+2*i}:{AC+2*i+1}], v[16:17]")
    k("v_add_f32 v14, v14, v15")
    k("v_add_f32 v15, v16, v17")
    k("v_mov_b32 v16, v14")
    k("v_mov_b32 v17, v15")
    for i in range(2):
        k(f"v_cvt_pk_bf16_f32 v{68+i}, v{AC+2*i}, v{AC+2*i+1}")
    k("v_permlane32_swap_b32 v16, v14")
    k("v_permlane32_swap_b32 v17, v15")
    k("v_pk_add_f32 v[14:15], v[14:15], v[16:17]")
    k("s_mov_b32 exec_hi, 0")
    k(f"buffer_store_dwordx2 v[14:15], v13, s[24:27], s46 offen {DF}")
    k("s_mov_b32 exec_hi, -1")
    for i in range(2, 8):
        k(f"v_cvt_pk_bf16_f32 v{68+i}, v{AC+2*i}, v{AC+2*i+1}")
    k(f"buffer_store_dwordx4 v[68:71], v12, s[24:27], s44 offen {DF}")
    k(f"buffer_store_dwordx4 v[72:75], v12, s[24:27], s44 offen offset:512 {DF}")
    k("""
    s_lshr_b32 s40, s42, 2          ; E3 group
    s_and_b32 s41, s42, 3
    s_lshl_b32 s41, s41, 2
    s_lshr_b32 s43, s37, 3
    s_add_u32 s41, s41, s43         ; member
    """)
    signal(k, 2, 40, 41, 16, nafter=w2some(ND[1]), fl=DF)
    dual_end(k, 'e2')
    stamp(k, 16)
    ACC4, WF, ST, SB = 8, 64, 120, 136
    k(f"""
    s_lshl_b32 s40, s36, 1
    s_bfe_u32 s41, s37, 0x10001
    s_add_u32 s40, s40, s41        ; tb4
    s_lshl_b32 s44, s40, 2
    s_add_u32 s44, s44, s3         ; tok32
    s_lshl_b32 s45, s44, 15
    s_add_u32 s45, s45, {OFF_X2S}
    s_add_u32 s46, s45, 16384
    v_and_b32 v3, 15, v1
    v_lshrrev_b32 v152, 4, v1
    v_lshlrev_b32 v153, 3, v3
    v_lshl_add_u32 v153, v152, 10, v153
    s_lshl_b32 s47, s44, 12
    s_add_u32 s47, s47, {OFF_ST2}
    s_mul_i32 s42, s44, {112*1024}
    s_mul_i32 s43, s57, {7*1024}
    s_add_u32 s42, s42, s43
    s_add_u32 s42, s42, {OFF_H}
    s_add_u32 s43, s42, 4096
    """)
    def wread(s):
        f = WF + 28 * (s & 1)
        return [lds_rd(f"v[{f+4*i}:{f+4*i+3}]", w1_lds(s * 7 + i)) for i in range(7)]
    for x in wread(0): k(x)
    wait_edge(k, 2, 40, 16)
    wbl2(k, "a")
    stamp(k, 17)
    vm.n = 0
    xid = []
    def xload():
        s = len(xid)
        if s >= 16:
            return
        if s and s % 4 == 0:
            k("s_add_u32 s45, s45, 4096")
            k("s_add_u32 s46, s46, 4096")
        vm.op(f"buffer_load_dwordx4 {wo_reg(2*s)}, v2, s[24:27], s45 offen offset:{(s%4)*1024} {FL}")
        xid.append(vm.op(f"buffer_load_dwordx4 {wo_reg(2*s+1)}, v2, s[24:27], s46 offen offset:{(s%4)*1024} {FL}"))
    for s in range(int(os.environ.get("P4D", "6"))):
        xload()
    stl = [f"buffer_load_dwordx2 v[{ST+8*j+2*pp}:{ST+8*j+2*pp+1}], v153, s[24:27], s47 offen offset:{256*pp+128*j} {FL}"
           for j in range(2) for pp in range(4)]
    fill = L()
    for j in range(2):
        b = ST + 8 * j
        fill(f"v_pk_add_f32 v[{b}:{b+1}], v[{b}:{b+1}], v[{b+2}:{b+3}]")
        fill(f"v_pk_add_f32 v[{b+4}:{b+5}], v[{b+4}:{b+5}], v[{b+6}:{b+7}]")
        fill(f"v_pk_add_f32 v[{b}:{b+1}], v[{b}:{b+1}], v[{b+4}:{b+5}]")
    regs = [ST, ST + 1, ST + 8, ST + 9]
    tmp = [ST + 2, ST + 3, ST + 10, ST + 11]
    for op in ("v_permlane16_swap_b32", "v_permlane32_swap_b32"):
        for r, t in zip(regs, tmp):
            fill(f"v_mov_b32 v{t}, v{r}")
        fill("s_nop 1")
        for r, t in zip(regs, tmp):
            fill(f"{op} v{t}, v{r}")
        for r, t in zip(regs, tmp):
            fill(f"v_add_f32 v{r}, v{t}, v{r}")
    for j in range(2):
        b = ST + 8 * j
        ln_stats_finish(fill, b, b + 1, b + 4, b + 5, None, std_out=b + 6)
        fill(f"v_cvt_pk_bf16_f32 v{SB+4*j}, -v{b+4}, -v{b+4}")
        fill(f"v_cvt_pk_bf16_f32 v{SB+4*j+1}, v{b+6}, v{b+6}")
        fill(f"v_mov_b32 v{SB+4*j+2}, 0")
        fill(f"v_mov_b32 v{SB+4*j+3}, 0")
    fill(f"""
    v_lshlrev_b32 v154, 2, v3
    s_lshl_b32 s41, s3, 7
    v_add_u32 v154, s41, v154
    v_add_u32 v154, {LDS_R}, v154
    """)
    for s in range(17):
        nxt = wread(s + 1) if s < 16 else []
        k((vm.wait_str(xid[s]) if s < 16 else "s_waitcnt") + " lgkmcnt(0)")
        if s == 9:
            vm.wait(sid)
        f = WF + 28 * (s & 1)
        n = 0
        for i in range(7):
            for j in range(2):
                a = ACC4 + 4 * (j * 7 + i)
                c = "0" if s == 0 else f"v[{a}:{a+3}]"
                bop = wo_reg(2 * s + j) if s < 16 else f"v[{SB+4*j}:{SB+4*j+3}]"
                k(f"v_mfma_f32_16x16x32_bf16 v[{a}:{a+3}], v[{f+4*i}:{f+4*i+3}], {bop}, {c}")
                if nxt:
                    k(nxt.pop(0))
                elif n == 8:
                    xload()
                elif n in (10, 12) and stl:
                    sid = vm.op(stl.pop(0))
                elif s >= 10 and n in (9, 11, 13) and len(w2_late) > ND[2]:
                    for y in w2_late.pop(0):
                        k(y)
                    vm.tick()
                if s >= 9 and fill:
                    k(fill.pop(0))
                n += 1
    assert not fill and len(w2_late) == ND[2], len(w2_late)
    stamp(k, 18)
    dual_begin(k)
    k(f"ds_write_b32 v154, v{ST+5}")
    k(f"ds_write_b32 v154, v{ST+13} offset:64")
    for i in range(7):
        t = WF + 4 * i
        for j in range(2):
            a = ACC4 + 4 * (j * 7 + i)
            k(f"v_cvt_pk_bf16_f32 v{t+2*j}, v{a}, v{a+1}")
            k(f"v_cvt_pk_bf16_f32 v{t+2*j+1}, v{a+2}, v{a+3}")
        for q in range(4):
            k(f"v_pk_max_i16 v{t+q}, v{t+q}, 0")
        if i:
            tp = WF + 4 * (i - 1)
            k(f"v_permlane16_swap_b32 v{tp}, v{tp+2}")
            k(f"v_permlane16_swap_b32 v{tp+1}, v{tp+3}")
            k(f"buffer_store_dwordx4 v[{tp}:{tp+3}], v2, s[24:27], s{42 if i-1 < 4 else 43} offen offset:{((i-1)%4)*1024} {DF}")
    tp = WF + 24
    k("s_nop 1")
    k(f"v_permlane16_swap_b32 v{tp}, v{tp+2}")
    k(f"v_permlane16_swap_b32 v{tp+1}, v{tp+3}")
    k(f"buffer_store_dwordx4 v[{tp}:{tp+3}], v2, s[24:27], s43 offen offset:2048 {DF}")
    ACC5, RB, DEPTH = 8, 72, 19
    G5, X5, R5 = 224, 240, 248
    k(f"""
    s_lshl_b32 s58, s36, 2
    s_and_b32 s59, s37, 3
    s_add_u32 s58, s58, s59         ; tb5
    s_lshl_b32 s58, s58, 1
    s_and_b32 s59, s3, 1
    s_add_u32 s58, s58, s59
    s_xor_b32 s59, s58, 1
    s_mul_i32 s44, s58, {112*1024}
    s_mul_i32 s45, s59, {112*1024}
    s_mul_i32 s46, s3, {28*1024}
    s_add_u32 s46, s46, {OFF_H}
    s_add_u32 s44, s44, s46
    s_add_u32 s45, s45, s46
    v_lshrrev_b32 v250, 5, v1
    v_and_b32 v251, 31, v1
    v_lshlrev_b32 v252, 4, v250
    s_and_b32 s46, s52, 7
    s_lshl_b32 s46, s46, 7
    s_add_u32 s46, s46, {LDS_VEC + 1024}
    v_add_u32 v252, s46, v252
    v_lshrrev_b32 v253, 4, v251
    v_lshlrev_b32 v253, 14, v253
    v_and_b32 v254, 15, v251
    v_lshl_add_u32 v253, v254, 4, v253
    v_lshl_add_u32 v253, v250, 8, v253
    s_lshl_b32 s47, s58, 15
    s_lshl_b32 s50, s52, 10
    s_add_u32 s47, s47, s50
    s_add_u32 s47, s47, {OFF_X2}
    s_and_b32 s50, s58, 3
    s_lshl_b32 s50, s50, 7
    s_add_u32 s50, s50, {LDS_R}
    v_lshlrev_b32 v254, 2, v251
    v_add_u32 v254, s50, v254
    """)
    for j in range(4):
        k(f"ds_read_b128 v[{G5+4*j}:{G5+4*j+3}], v252 offset:{32*j}")
    k(f"buffer_load_dwordx4 v[{X5}:{X5+3}], v253, s[24:27], s47 offen {FL}")
    k(f"buffer_load_dwordx4 v[{X5+4}:{X5+7}], v253, s[24:27], s47 offen offset:512 {FL}")
    k(f"""
    v_lshlrev_b32 v253, 10, v251
    v_lshl_add_u32 v253, v250, 4, v253
    s_lshl_b32 s47, s58, 15
    s_lshl_b32 s50, s52, 6
    s_add_u32 s47, s47, s50
    """)
    stamp(k, 19)
    signal(k, 3, 40, 57, 16, nafter=2 + w2some(ND[2]), fl=DF)
    dual_end(k, 'e3')
    stamp(k, 20)
    k(f"ds_read_b32 v{R5}, v254")
    k("s_waitcnt lgkmcnt(0)")
    for i in range(16):
        k(f"v_mul_f32 v{G5+i}, v{R5}, v{G5+i}")
    stamp(k, 21)
    wait_edge(k, 3, 40, 16)
    wbl2(k, "b")
    stamp(k, 22)
    vm.n = 0
    hid = []
    def hload():
        s = len(hid)
        if s >= 28:
            return
        r = RB + 8 * (s % DEPTH)
        if s and s % 4 == 0:
            k("s_add_u32 s44, s44, 4096")
            k("s_add_u32 s45, s45, 4096")
        vm.op(f"buffer_load_dwordx4 v[{r}:{r+3}], v2, s[24:27], s44 offen offset:{(s%4)*1024} {FL}")
        hid.append(vm.op(f"buffer_load_dwordx4 v[{r+4}:{r+7}], v2, s[24:27], s45 offen offset:{(s%4)*1024} {FL}"))
    for s in range(int(os.environ.get("P5D", "8"))):
        hload()
    for s in range(28):
        vm.wait(hid[s])
        r = RB + 8 * (s % DEPTH)
        A0, A1 = f"a[{8*s}:{8*s+3}]", f"a[{8*s+4}:{8*s+7}]"
        B0, B1 = f"v[{r}:{r+3}]", f"v[{r+4}:{r+7}]"
        for t, (a, b) in enumerate(((A0, B0), (A0, B1), (A1, B0), (A1, B1))):
            acc = ACC5 + 16 * t
            c = "0" if s == 0 else f"v[{acc}:{acc+15}]"
            k(f"v_mfma_f32_32x32x16_bf16 v[{acc}:{acc+15}], {a}, {b}, {c}")
            if t == 0:
                hload()
    XU5, TMP5 = 72, 88
    stamp(k, 23)
    for t in (1, 2, 3):
        k(f"""
        s_xor_b32 s56, s3, {t}
        s_mul_i32 s56, s56, 12288
        s_add_u32 s56, s56, {(t-1)*4096}
        v_add_u32 v{3+t}, s56, v2
        """)
    for t in (1, 2, 3):
        for q in range(4):
            k(f"ds_write_b128 v{3+t}, v[{ACC5+16*t+4*q}:{ACC5+16*t+4*q+3}] offset:{q*1024}")
    for i in range(8):
        k(f"v_lshlrev_b32 v{XU5+2*i}, 16, v{X5+i}")
        k(f"v_and_b32 v{XU5+2*i+1}, 0xffff0000, v{X5+i}")
    k(f"""
    s_mul_i32 s56, s3, 12288
    v_add_u32 v3, s56, v2
    s_waitcnt lgkmcnt(0)
    s_barrier
    """)
    for i in range(12):
        k(f"ds_read_b128 v[{TMP5+4*i}:{TMP5+4*i+3}], v3 offset:{i*1024}")
    for sl in range(3):
        k(f"s_waitcnt lgkmcnt({8-4*sl})")
        for i in range(8):
            k(f"v_pk_add_f32 v[{ACC5+2*i}:{ACC5+2*i+1}], v[{ACC5+2*i}:{ACC5+2*i+1}], v[{TMP5+16*sl+2*i}:{TMP5+16*sl+2*i+1}]")
    stamp(k, 24)
    for i in range(8):
        k(f"v_pk_fma_f32 v[{ACC5+2*i}:{ACC5+2*i+1}], v[{G5+2*i}:{G5+2*i+1}], v[{ACC5+2*i}:{ACC5+2*i+1}], v[{XU5+2*i}:{XU5+2*i+1}]")
    for i in range(8):
        k(f"v_cvt_pk_bf16_f32 v{TMP5+i}, v{ACC5+2*i}, v{ACC5+2*i+1}")
    k("s_nop 0")
    for p in range(2):
        t = TMP5 + 4 * p
        k(f"v_permlane32_swap_b32 v{t}, v{t+2}")
        k(f"v_permlane32_swap_b32 v{t+1}, v{t+3}")
        k(f"buffer_store_dwordx4 v[{t}:{t+3}], v253, s[32:35], s47 offen offset:{32*p} {os.environ.get('OUTFL', '')}")
    endpgm(k)
    k.label("L_att_fallback")
    k(f"""
    s_mov_b32 s42, 0
    s_mov_b32 s43, s47
    v_mov_b32 v6, 0xff800000
    v_mov_b32 v7, 0xff800000
    """)
    k.label("L_att_maxloop")
    k(f"""
    buffer_load_dwordx4 v[{KF}:{KF+3}], v2, s[24:27], s43 offen {FL}
    s_add_u32 s43, s43, 2048
    s_waitcnt vmcnt(0)
    v_mfma_f32_32x32x16_bf16 v[{S}:{S+15}], v[{KF}:{KF+3}], v[{Q}:{Q+3}], 0
    v_mfma_f32_32x32x16_bf16 v[{S+16}:{S+31}], v[{KF}:{KF+3}], v[{Q+4}:{Q+7}], 0
    s_nop 10
    """)
    att_max16(k, 6, S, False)
    att_max16(k, 7, S + 16, False)
    k(f"""
    s_add_u32 s42, s42, 1
    s_cmp_lt_u32 s42, 64
    s_cbranch_scc1 L_att_maxloop
    s_nop 0
    v_permlane32_swap_b32 v6, v7
    v_max_f32 v6, v6, v7
    v_mov_b32 v7, v6
    s_nop 1
    v_permlane32_swap_b32 v6, v7
    v_sub_f32 v6, 0, v6
    v_sub_f32 v7, 0, v7
    """)
    for i in range(16):
        k(f"v_mov_b32 v{C+i}, v6")
        k(f"v_mov_b32 v{C+16+i}, v7")
        k(f"v_mov_b32 v{O+i}, 0")
        k(f"v_mov_b32 v{O+16+i}, 0")
    k("s_mov_b32 s42, 0")
    k("s_mov_b32 s43, s47")
    k.label("L_att_redo")
    k(f"""
    buffer_load_dwordx4 v[{KF}:{KF+3}], v2, s[24:27], s43 offen {FL}
    s_mov_b64 exec, s[48:49]
    buffer_load_dwordx4 v[{VF}:{VF+3}], v3, s[24:27], s43 offen offset:1024 {FL}
    buffer_load_dwordx4 v[{VF+4}:{VF+7}], v3, s[24:27], s43 offen offset:1536 {FL}
    s_mov_b64 exec, -1
    s_add_u32 s43, s43, 2048
    s_waitcnt vmcnt(0)
    v_mfma_f32_32x32x16_bf16 v[{S}:{S+15}], v[{KF}:{KF+3}], v[{Q}:{Q+3}], v[{C}:{C+15}]
    v_mfma_f32_32x32x16_bf16 v[{S+16}:{S+31}], v[{KF}:{KF+3}], v[{Q+4}:{Q+7}], v[{C+16}:{C+31}]
    s_nop 10
    """)
    for b in range(2):
        for i in range(16):
            k(f"v_exp_f32 v{S+16*b+i}, v{S+16*b+i}")
        k("s_nop 0")
        for j in range(8):
            k(f"v_cvt_pk_bf16_f32 v{P+j}, v{S+16*b+2*j}, v{S+16*b+2*j+1}")
        k("s_nop 1")
        for h in range(2):
            k(f"v_mfma_f32_32x32x16_bf16 v[{O+16*b}:{O+16*b+15}], v[{VF+4*h}:{VF+4*h+3}], v[{P+4*h}:{P+4*h+3}], v[{O+16*b}:{O+16*b+15}]")
    k(f"""
    s_add_u32 s42, s42, 1
    s_cmp_lt_u32 s42, 64
    s_cbranch_scc1 L_att_redo
    s_nop 10
    s_branch L_att_fin
    """)
    k.label("L_xid_retry")
    k(f"""
    s_mov_b32 s39, 0x40000
    s_mov_b32 s53, {OFF_XID}
    """)
    k.label("L_xid_spin")
    k(f"""
    buffer_load_dwordx4 v[150:153], v2, s[24:27], s53 offen {FL}
    buffer_load_dwordx4 v[154:157], v2, s[24:27], s53 offen offset:32 {FL}
    s_sub_u32 s39, s39, 1
    s_waitcnt vmcnt(0)
    v_min_u32 v158, v150, v151
    v_min_u32 v159, v152, v153
    v_min_u32 v158, v158, v159
    v_xor_b32 v154, v154, v150
    v_xor_b32 v155, v155, v151
    v_cmp_eq_u32 vcc, 0, v158
    v_xor_b32 v156, v156, v152
    v_xor_b32 v157, v157, v153
    s_cbranch_scc1 L_xid_ok
    s_sleep 32
    s_cbranch_vccnz L_xid_spin
    s_branch L_xid_ok
    """)
    k(f"""
    L_mid_retry:
    s_mov_b32 s39, 0x40000
    s_mov_b32 s53, {OFF_XID + 2048}
    L_mid_spin:
    buffer_load_dwordx4 v[150:153], v2, s[24:27], s53 offen {FL}
    s_sub_u32 s39, s39, 1
    s_waitcnt vmcnt(0)
    v_min_u32 v158, v150, v151
    v_min_u32 v159, v152, v153
    v_min_u32 v158, v158, v159
    v_cmp_eq_u32 vcc, 0, v158
    s_cbranch_scc1 L_mid_ok
    s_sleep 32
    s_cbranch_vccnz L_mid_spin
    s_branch L_mid_ok
    """)
    for blk in OOL:
        k.lines += blk
    k.label(f"L_end_{k.name}")
    k("s_endpgm")
    k(".fill (65536 + L_pc_here - .) / 4 + 64, 4, 0xbf810000")
    return k, (256, 256, 163840)


def build(path=OUT):
    ks = [mega()]
    errs = []
    for k, _ in ks:
        errs += k.check()
    for e in errs:
        print(e)
    ref = open(OUT + ".ref").read().split("\n")
    hdr = [l for l in ref if l.startswith(";") and "@launch" not in l and "Override" not in l and "grid=ceil" not in l]
    out = "\n".join(hdr) + "\n"
    for k, (g, b, lds) in ks:
        kn = f"kernel={k.name} " if os.environ.get("ASLIST") else ""
        out += f"; @launch {kn}grid=({g},1,1) block=({b},1,1) lds={lds}\n"
    out += '.amdgcn_target "amdgcn-amd-amdhsa--gfx950"\n'
    codes, kds = zip(*[k.text() for k, _ in ks])
    out += "".join(codes)
    out += '.section .rodata,"a"\n' + "".join(kds)
    open(path, "w").write(out)
    print("wrote", path, len(out), "bytes;", len(errs), "checker errors")
    return len(errs)


if __name__ == "__main__":
    sys.exit(1 if build(sys.argv[1] if len(sys.argv) > 1 else OUT) else 0)
```

```python
import sys, os
sys.path.insert(0, "gen")
from asmlib import Kern
import gen as G
from gen import (MB, OFF_MOD, OFF_XHAT, OFF_WQKV, OFF_Q, OFF_KV, OFF_O, OFF_WO, OFF_X2, OFF_X2S, OFF_ST2, OFF_W1,
                 OFF_H, OFF_W2, QSCALE, P_X, P_WQKV, P_WO, P_W1, P_W2, P_C, P_WMOD, P_OUT, P_WS, srd, stamp, endpgm,
                 prologue, prologue_wait, epilogue, bf16_round, ln_stats_finish, role_ln, role_relayout, ATT, att_unit,
                 att_max16, NAME, OUT, DIAG)

OFF_MODB = 0x3000
OFF_FLAG = G.OFF_FLAG
FL = "sc1"
DF = "@DF@"
S_FAST = 98
OFF_XID = G.OFF_XID
OOL = []


def dual_begin(k):
    k._dual = len(k.lines)


def dual_end(k, tag):
    body = k.lines[k._dual:]
    del k.lines[k._dual:]
    import re
    labs = [l[:-1] for l in body if l.endswith(":")]
    def variant(fl, suffix):
        out = []
        for l in body:
            l = l.replace(DF, fl).rstrip()
            for lab in labs:
                l = re.sub(rf"\b{lab}\b", lab + suffix, l)
            out.append(l)
        return out
    if tag not in os.environ.get("FAST", "none").split(","):
        k.lines += variant("sc1", "_s")
        return
    k(f"s_cmp_eq_u32 s{S_FAST}, 0")
    k(f"s_cbranch_scc1 L_slow_{tag}")
    k.lines += variant("", "_f")
    k.label(f"L_join_{tag}")
    OOL.append([f"L_slow_{tag}:"] + variant("sc1", "_s") + [f"s_branch L_join_{tag}"])


class VM:
    def __init__(self, k):
        self.k = k; self.n = 0
    def op(self, text=None):
        if text:
            self.k(text)
        self.n += 1
        return self.n
    def tick(self):
        self.n += 1
        return self.n
    def wait_str(self, idx):
        c = self.n - idx
        return f"s_waitcnt vmcnt({min(c, 63)})"
    def wait(self, idx):
        self.k(self.wait_str(idx))


def signal(k, edge, s_group, s_member, gsize, nafter=0, fl=FL):
    lab = f"L_sig{edge}"
    k(f"""
    s_mul_i32 s38, s{s_group}, {gsize}
    s_add_u32 s38, s38, s{s_member}
    s_lshl_b32 s38, s38, 8
    s_add_u32 s38, s38, {OFF_FLAG + edge * 65536}
    v_mov_b32 v6, 0
    v_mov_b32 v7, 1
    s_waitcnt vmcnt({nafter}) lgkmcnt(0)
    s_barrier
    s_cmp_lg_u32 s3, 0
    s_cbranch_scc1 {lab}
    s_mov_b64 exec, 1
    buffer_store_dword v7, v6, s[24:27], s38 offen {fl}
    s_mov_b64 exec, -1
    """)
    k.label(lab)


def wait_edge(k, edge, s_group, gsize):
    lab = f"L_wait{edge}"
    k(f"""
    s_cmp_lg_u32 s3, 0
    s_cbranch_scc1 {lab}
    s_mul_i32 s38, s{s_group}, {gsize*256}
    s_add_u32 s38, s38, {OFF_FLAG + edge * 65536}
    v_lshlrev_b32 v6, 8, v1
    s_mov_b32 exec_lo, {hex((1 << gsize) - 1)}
    s_mov_b32 exec_hi, 0
    s_mov_b32 s39, 0x40000
    """)
    k.label(f"L_poll{edge}")
    k(f"""
    buffer_load_dword v7, v6, s[24:27], s38 offen {FL}
    s_sub_u32 s39, s39, 1
    s_cbranch_scc1 L_bail{edge}
    s_waitcnt vmcnt(0)
    v_cmp_eq_u32 vcc, 0, v7
    s_cbranch_vccnz L_poll{edge}
    """)
    k.label(f"L_bail{edge}")
    k("s_waitcnt vmcnt(0)")
    k("s_mov_b64 exec, -1")
    k.label(lab)
    k("s_barrier")


def wbl2(k, tag):
    if tag in os.environ.get("WBL2", "").split(","):
        k(f"""
        s_lshl_b32 s38, s37, 2
        s_add_u32 s38, s38, s3
        s_cmp_lg_u32 s38, 1
        s_cbranch_scc1 L_nowb_{tag}
        buffer_wbl2 sc1
        """)
        k.label(f"L_nowb_{tag}")


def wo_reg(s):
    return f"a[{224+4*s}:{227+4*s}]" if s < 8 else f"v[{160+4*(s-8)}:{163+4*(s-8)}]"


def w1_lds(f):
    if f < 28:
        return 131072 + f * 1024
    if f < 112:
        return (f - 28) * 1024
    return LDS_UT + (f - 112) * 1024


LDS_MODB = 156 * 1024
LDS_VEC = 158 * 1024
LDS_OST = 84 * 1024
LDS_UT = 116 * 1024
LDS_R = 125 * 1024


def lds_rd(dst, addr):
    base = (2, 4, 5)[addr >> 16]
    return f"ds_read_b128 {dst}, v{base} offset:{addr & 0xffff}"


class L(list):
    def __call__(self, text):
        for l in text.strip("\n").split("\n"):
            if l.strip():
                self.append(l.strip())


def weave(k, main, side, every):
    n = 0
    for x in main:
        k(x)
        n += 1
        if side and n % every == 0:
            for y in side.pop(0)():
                k(y)


SLOT = (64 * 1024, 112 * 1024, 64 * 1024, 112 * 1024)
LDS_RL = 112 * 1024
LDS_MODS = 128 * 1024
LDS_MRED = 48 * 1024
LDS_SHARE = 52 * 1024
LDS_MRED2 = 159 * 1024
OFF_MODP = 0x4000


def mega():
    k = Kern(NAME + "_kernel", nvgpr=256, nagpr=256, nsgpr=102)
    k.kid = 1
    vm = VM(k)
    if DIAG:
        k("s_memtime s[60:61]")
        k("s_memrealtime s[62:63]")
        for i in range(G.NST):
            k(f"s_mov_b32 s{64+i}, 0")
    k(f"""
    s_cmp_ge_u32 s2, 256
    s_cbranch_scc1 L_end_{k.name}
    s_load_dwordx16 s[4:19], s[0:1], 0
    s_load_dwordx4 s[20:23], s[0:1], 64
    s_load_dwordx2 s[24:25], s[0:1], 80
    v_lshrrev_b32 v2, 6, v0
    v_and_b32 v1, 63, v0
    v_readfirstlane_b32 s3, v2
    s_and_b32 s36, s2, 7
    s_lshr_b32 s37, s2, 3
    v_lshlrev_b32 v2, 4, v1
    s_getpc_b64 s[38:39]
    L_pc_here:
    s_lshl_b32 s98, s37, 2
    s_add_u32 s98, s98, s3
    s_and_b32 s98, s98, 63
    s_lshl_b32 s98, s98, 10
    s_add_u32 s38, s38, s98
    s_addc_u32 s39, s39, 0
    global_load_dwordx4 a[208:211], v2, s[38:39]
    """)
    VA, VB, RAW, XF, FR, ACC = 8, 16, 24, 88, 216, 24
    WM, CC, MA = 8, 12, 16
    k(f"""
    v_lshrrev_b32 v3, 1, v1
    v_lshlrev_b32 v4, 1, v3              ; c voffset: (l>>1)*2
    v_mul_u32_u24 v3, 6144, v3
    v_and_b32 v5, 1, v1
    v_lshl_add_u32 v3, v5, 4, v3
    v_lshrrev_b32 v6, 3, v1              ; r8
    v_and_b32 v7, 7, v1
    v_and_b32 v248, 2, v6
    v_xor_b32 v7, v7, v248
    s_and_b32 s38, s3, 1
    s_lshl_b32 s38, s38, 2
    v_xor_b32 v7, s38, v7
    v_mul_u32_u24 v5, 3072, v6
    v_lshl_add_u32 v5, v7, 4, v5
    s_and_b32 s93, s37, 7
    s_lshl_b32 s93, s93, 1               ; rotW
    s_lshr_b32 s99, s37, 4
    s_lshl_b32 s99, s99, 3
    s_add_u32 s99, s99, s36
    s_lshl_b32 s99, s99, 2
    s_and_b32 s38, s37, 3
    s_add_u32 s99, s99, s38
    s_bfe_u32 s98, s37, 0x20002          ; k split
    s_lshl_b32 s100, s98, 2
    s_add_u32 s100, s100, s3
    s_lshl_b32 s101, s100, 6             ; c soffset
    s_mul_i32 s100, s100, {32*6144}
    s_lshl_b32 s38, s99, 5
    s_add_u32 s100, s100, s38
    v_mov_b32 v248, 0
    v_mov_b32 v249, 0
    v_mov_b32 v250, 0
    v_mov_b32 v251, 0
    s_lshl_b32 s39, s2, 2
    s_add_u32 s39, s39, s3
    s_and_b32 s39, s39, 0x3e3
    s_waitcnt lgkmcnt(0)
    s_mov_b32 s26, {G.WS_USED:#x}
    s_mov_b32 s27, 0x00020000
    s_cmp_lg_u32 s39, 3
    s_cbranch_scc1 L_nozw
    s_cmp_ge_u32 s2, 4
    s_cbranch_scc1 L_zero_flags
    s_lshl_b32 s38, s2, 12
    s_add_u32 s38, s38, {OFF_MODP}
    """)
    for i in range(4):
        k(f"buffer_store_dwordx4 v[248:251], v2, s[24:27], s38 offen offset:{1024*i} {FL}")
    k("s_branch L_nozw")
    k.label("L_zero_flags")
    k(f"""
    s_mov_b32 s38, {OFF_XID}
    buffer_store_dwordx4 v[248:251], v2, s[24:27], s38 offen {FL}
    buffer_store_dwordx4 v[248:251], v2, s[24:27], s38 offen offset:2048 {FL}
    v_lshlrev_b32 v252, 8, v1
    s_lshl_b32 s38, s36, 16
    s_add_u32 s38, s38, {OFF_FLAG - 4*65536}
    """)
    for i in range(4):
        k(f"buffer_store_dword v248, v252, s[24:27], s38 offen {FL}")
        k("s_add_u32 s38, s38, 16384")
    k.label("L_nozw")
    srd(k, 44, P_WMOD, 512 * 3072 * 2)
    srd(k, 56, P_C, 1024)
    srd(k, 28, P_X, 2048 * 1024)
    stamp(k, 0)
    vm.op(f"buffer_load_ushort v{CC}, v4, s[56:59], s101 offen")
    wmid = vm.op(f"buffer_load_dwordx4 v[{WM}:{WM+3}], v3, s[44:47], s100 offen")
    srd(k, 48, 22, 256)
    srd(k, 32, 20, 2048 * 1024)
    k(f"""
    s_lshr_b32 s20, s36, 1
    s_lshl_b32 s20, s20, 3
    s_and_b32 s38, s37, 7
    s_add_u32 s20, s20, s38        ; tb1
    s_and_b32 s21, s36, 1
    s_lshl_b32 s21, s21, 2
    s_lshr_b32 s101, s37, 3        ; rotX
    s_add_u32 s21, s21, s101       ; cb1
    s_lshl_b32 s22, s21, 2
    s_add_u32 s22, s22, s3         ; head
    s_lshl_b32 s38, s20, 16
    s_lshl_b32 s23, s3, 14
    s_add_u32 s38, s38, s23
    """)
    rowid = []
    for g in range(4):
        k(f"s_xor_b32 s23, s101, {g}")
        k("s_lshl_b32 s23, s23, 12")
        k("s_add_u32 s23, s23, s38")
        for i in range(4):
            r = 4 * g + i
            rowid.append(vm.op(f"buffer_load_dwordx4 v[{RAW+4*r}:{RAW+4*r+3}], v2, s[28:31], s23 offen offset:{i*1024}"))
        if g == 0:
            k(f"""
            s_cmp_lg_u32 s39, 3
            s_cbranch_scc1 L_nozp
            s_lshl_b32 s23, s2, 2
            s_add_u32 s100, s23, 112
            s_cmp_ge_u32 s2, 4
            s_cselect_b32 s23, s100, s23
            v_mov_b32 v249, 1
            s_mov_b64 exec, 1
            s_waitcnt vmcnt(6)
            buffer_store_dword v249, v248, s[48:51], s23 offen {FL}
            s_mov_b64 exec, -1
            L_nozp:
            """)
    srd(k, 40, P_WQKV, 512 * 1536 * 2)
    k(f"""
    s_cmp_lt_u32 s2, 32
    s_cselect_b32 s52, s{P_WO}, s{P_W1}
    s_cselect_b32 s53, s{P_WO+1}, s{P_W1+1}
    s_mov_b32 s54, {512*1792*2:#x}
    s_cselect_b32 s54, {512*512*2:#x}, s54
    s_cmp_ge_u32 s2, 144
    s_cselect_b32 s52, s{P_W2}, s52
    s_cselect_b32 s53, s{P_W2+1}, s53
    s_mov_b32 s55, 0x00020000
    s_lshl_b32 s23, s21, 7
    s_mul_i32 s38, s3, {8*3072}
    s_add_u32 s23, s23, s38
    s_mul_i32 s100, s3, 3072
    """)
    stamp(k, 1)
    wd = {}
    def wdma(s):
        base = SLOT[s // 4] + (s % 4) * 12288
        def f(p):
            out = []
            if p == 0:
                out = [f"s_xor_b32 s39, s93, {s}", f"s_mul_i32 s39, s39, {32*3072}", f"s_add_u32 m0, s100, {base}", "s_add_u32 s39, s39, s23"]
            out.append(f"buffer_load_dwordx4 v5, s[40:43], s39 offen offset:{p*1024} lds")
            wd[s] = vm.tick()
            return out
        return [(lambda p=p: f(p)) for p in range(3)]
    wq = [g for s in range(8) for g in wdma(s)]
    def mod_reduce(mj, MA_, t0, t1, lds_off, lds_base=0):
        mj("s_nop 0")
        for i in range(4):
            mj(f"v_permlane32_swap_b32 v{MA_+i}, v{MA_+4+i}")
        for i in range(0, 4, 2):
            mj(f"v_pk_add_f32 v[{MA_+i}:{MA_+i+1}], v[{MA_+i}:{MA_+i+1}], v[{MA_+4+i}:{MA_+5+i}]")
        mj(f"v_lshrrev_b32 v{t0}, 4, v1")
        mj(f"v_and_b32 v{t1}, 1, v1")
        for i in range(2):
            mj(f"v_permlane16_swap_b32 v{MA_+i}, v{MA_+2+i}")
        mj(f"v_pk_add_f32 v[{MA_}:{MA_+1}], v[{MA_}:{MA_+1}], v[{MA_+2}:{MA_+3}]")
        mj(f"v_lshlrev_b32 v{t0}, 3, v{t0}")
        mj(f"v_lshl_add_u32 v{t0}, v{t1}, 5, v{t0}")
        for n_, ror in enumerate((8, 4, 2)):
            for i in range(2):
                mj(f"v_add_f32_dpp v{MA_+i}, v{MA_+i}, v{MA_+i} row_ror:{ror} row_mask:0xf bank_mask:0xf")
            mj("s_lshl_b32 s38, s3, 6" if n_ == 0 else (f"v_add_u32 v{t0}, s38, v{t0}" if n_ == 1 else f"v_add_u32 v{t0}, {lds_base}, v{t0}"))
        mj(f"ds_write_b64 v{t0}, v[{MA_}:{MA_+1}] offset:{lds_off}")
    def silu(mj, regs, tmp):
        for r, t in zip(regs, tmp):
            mj(f"v_mul_f32 v{t}, 0xbfb8aa3b, v{r}")
        for t in tmp:
            mj(f"v_exp_f32 v{t}, v{t}")
        mj("s_nop 0")
        for t in tmp:
            mj(f"v_add_f32 v{t}, 1.0, v{t}")
        for t in tmp:
            mj(f"v_rcp_f32 v{t}, v{t}")
        mj("s_nop 0")
        for r, t in zip(regs, tmp):
            mj(f"v_mul_f32 v{r}, v{r}, v{t}")
        for r in regs:
            bf16_round(mj, r, r)
    mj = L()
    vm.wait(wmid)
    mj(f"v_lshlrev_b32 v{CC}, 16, v{CC}")
    silu(mj, [CC], [CC + 1])
    for i in range(4):
        mj(f"v_lshlrev_b32 v{MA+2*i}, 16, v{WM+i}")
        mj(f"v_and_b32 v{MA+2*i+1}, 0xffff0000, v{WM+i}")
    for i in range(4):
        mj(f"v_pk_mul_f32 v[{MA+2*i}:{MA+2*i+1}], v[{MA+2*i}:{MA+2*i+1}], v[{CC}:{CC+1}] op_sel_hi:[1,0]")
    mod_reduce(mj, MA, CC, CC + 1, LDS_MRED)
    weave(k, mj, wq, int(os.environ.get("WV0", "8")))
    stamp(k, 2)
    SU, SQ = 216, 232
    WV = int(os.environ.get("WV1", "12"))
    PUBROW = int(os.environ.get("PUBROW", "8"))
    for r in range(16):
        ln = L()
        vm.wait(rowid[r])
        b, t = RAW + 4 * r, XF + 8 * r
        for i in range(4):
            ln(f"v_lshlrev_b32 v{t+2*i}, 16, v{b+i}")
            ln(f"v_and_b32 v{t+2*i+1}, 0xffff0000, v{b+i}")
        ln(f"v_pk_add_f32 v[248:249], v[{t}:{t+1}], v[{t+2}:{t+3}]")
        ln(f"v_pk_mul_f32 v[250:251], v[{t}:{t+1}], v[{t}:{t+1}]")
        ln(f"v_pk_add_f32 v[252:253], v[{t+4}:{t+5}], v[{t+6}:{t+7}]")
        for i in range(1, 4):
            ln(f"v_pk_fma_f32 v[250:251], v[{t+2*i}:{t+2*i+1}], v[{t+2*i}:{t+2*i+1}], v[250:251]")
        ln("v_pk_add_f32 v[248:249], v[248:249], v[252:253]")
        ln(f"v_add_f32 v{SQ+r}, v250, v251")
        ln(f"v_add_f32 v{SU+r}, v248, v249")
        weave(k, ln, wq, WV)
        if r == PUBROW - 2:
            k("s_waitcnt lgkmcnt(0)")
            k("s_load_dwordx4 s[4:7], s[48:49], 0")
        if r == PUBROW:
            k(f"""
            v_lshlrev_b32 v{CC}, 2, v1
            s_waitcnt lgkmcnt(0)
            s_barrier
            s_cmp_lg_u32 s3, 0
            s_cbranch_scc1 L_mod_done
            ds_read_b32 v{MA}, v{CC} offset:{LDS_MRED}
            s_and_b64 s[4:5], s[4:5], s[6:7]
            s_and_b32 s4, s4, s5
            s_cbranch_scc0 L_zspin
            L_zpoll_out:
            s_lshl_b32 s38, s98, 12
            s_lshl_b32 s4, s99, 6
            s_add_u32 s38, s38, s4
            s_add_u32 s38, s38, {OFF_MODP}
            s_waitcnt lgkmcnt(0)
            v_mov_b32 v{MA+1}, v{MA}
            s_nop 1
            v_permlane32_swap_b32 v{MA+1}, v{MA}
            v_add_f32 v{MA}, v{MA+1}, v{MA}
            v_mov_b32 v{MA+1}, v{MA}
            s_nop 1
            v_permlane16_swap_b32 v{MA+1}, v{MA}
            v_add_f32 v{MA}, v{MA+1}, v{MA}
            v_or_b32 v{MA}, 1, v{MA}
            s_mov_b64 exec, 0xffff
            buffer_store_dword v{MA}, v{CC}, s[24:27], s38 offen {FL}
            s_mov_b64 exec, -1
            L_mod_done:
            """)
            OOL.append(["L_zspin:", "s_mov_b32 s4, 0x40000", "s_mov_b64 exec, 15",
                        "L_zspin2:", f"buffer_load_dword v{CC+1}, v{CC}, s[48:51], 0 offen {FL}", "s_sub_u32 s4, s4, 1", "s_waitcnt vmcnt(0)",
                        f"v_cmp_eq_u32 vcc, 0, v{CC+1}", "s_cbranch_scc1 L_zout", "s_sleep 8", "s_cbranch_vccnz L_zspin2", "L_zout:",
                        "s_mov_b64 exec, -1", "s_branch L_zpoll_out"])
    for g in wq:
        for y in g():
            k(y)
    k(f"""
    v_and_b32 v248, 15, v1
    v_lshrrev_b32 v249, 4, v1
    v_mul_u32_u24 v3, 3072, v249
    v_lshrrev_b32 v250, 2, v248
    v_lshl_add_u32 v3, v250, 7, v3
    v_and_b32 v250, 1, v248
    v_lshl_add_u32 v3, v250, 3, v3
    v_bfe_u32 v250, v248, 1, 1
    s_lshl_b32 s38, s3, 1
    v_add_u32 v250, s38, v250
    v_bfe_u32 v251, v248, 3, 1
    v_and_b32 v252, 1, v249
    v_lshl_add_u32 v251, v252, 1, v251
    v_lshlrev_b32 v251, 1, v251
    v_xor_b32 v250, v250, v251
    v_lshl_add_u32 v3, v250, 4, v3
    v_add_u32 v4, 0x10000, v3
    v_add_u32 v6, 0x20000, v3
    """)
    def trreads(b):
        out = []
        for s in range(4 * b, 4 * b + 4):
            for p in range(3):
                for h in range(2):
                    addr = SLOT[b] + (s % 4) * 12288 + p * 1024 + h * 512
                    ar = 12 * s + 4 * p + 2 * h
                    out.append(f"ds_read_b64_tr_b16 a[{ar}:{ar+1}], v{(3, 4, 6)[addr >> 16]} offset:{addr & 0xffff}")
        return out
    def normalize(half):
        out = L()
        for rr in range(8):
            r = 8 * half + rr
            out(f"v_readlane_b32 s{4+2*rr}, v{SQ+4+(r&3)}, {16*(r>>2)}")
            out(f"v_readlane_b32 s{5+2*rr}, v{SU+4+(r&3)}, {16*(r>>2)}")
        for rr in range(8):
            t = XF + 8 * (8 * half + rr)
            for i in range(4):
                out(f"v_pk_fma_f32 v[{t+2*i}:{t+2*i+1}], v[{t+2*i}:{t+2*i+1}], s[{4+2*rr}:{5+2*rr}], s[{4+2*rr}:{5+2*rr}] op_sel:[0,0,1] op_sel_hi:[1,0,1]")
        return out
    stamp(k, 3)
    vm.wait(wd[3]); k("s_barrier")
    ln = L()
    for base in (SQ, SU):
        for r in range(8):
            ln(f"v_permlane32_swap_b32 v{base+r}, v{base+8+r}")
    for base in (SQ, SU):
        for r in range(0, 8, 2):
            ln(f"v_pk_add_f32 v[{base+r}:{base+r+1}], v[{base+r}:{base+r+1}], v[{base+8+r}:{base+9+r}]")
    for base in (SQ, SU):
        for r in range(4):
            ln(f"v_permlane16_swap_b32 v{base+r}, v{base+4+r}")
    for base in (SQ, SU):
        for r in range(0, 4, 2):
            ln(f"v_pk_add_f32 v[{base+r}:{base+r+1}], v[{base+r}:{base+r+1}], v[{base+4+r}:{base+5+r}]")
    for ror in (8, 4, 2, 1):
        for base in (SQ, SU):
            for r in range(4):
                ln(f"v_add_f32_dpp v{base+r}, v{base+r}, v{base+r} row_ror:{ror} row_mask:0xf bank_mask:0xf")
    fin = [L() for _ in range(4)]
    for i in range(4):
        ln_stats_finish(fin[i], SU + i, SQ + i, SU + 4 + i, SQ + 4 + i, SQ + 8 + i)
        fin[i](f"v_mul_f32 v{SU+4+i}, -v{SU+4+i}, v{SQ+4+i}")
    for tup in zip(*fin):
        for x in tup:
            if not x.startswith("s_nop"):
                ln(x)
    weave(k, ln, [(lambda x=x: [x]) for x in trreads(0)], 5)
    for x in normalize(0): k(x)
    stamp(k, 4)
    k(f"""
    s_lshl_b32 s38, s3, 10
    s_add_u32 s38, s38, {OFF_MODP}
    """)
    MP = 8
    def modloads():
        out = []
        for q in range(4):
            out.append(f"s_add_u32 s4, s38, {4096*q}")
            out.append(f"buffer_load_dwordx4 v[{MP+4*q}:{MP+4*q+3}], v2, s[24:27], s4 offen {FL}")
        return out
    def modcheck():
        out = L()
        out(f"v_and_b32 v252, v{MP}, v{MP+1}")
        for i in range(2, 16, 2):
            out(f"v_bitop3_b32 v252, v252, v{MP+i}, v{MP+i+1} bitop3:0x80")
        out("v_and_b32 v252, 1, v252")
        out("v_cmp_eq_u32 vcc, 0, v252")
        return out
    for x in modloads():
        k(x)
        if x.startswith("buffer"):
            modid = vm.tick()
    OOL.append(["L_dbg_spin:", "s_mov_b32 s4, 0x40000", "v_lshlrev_b32 v250, 2, v1", "s_mov_b64 exec, 15",
                "L_dbg_spin2:", f"buffer_load_dword v251, v250, s[48:51], 0 offen offset:128 {FL}", "s_sub_u32 s4, s4, 1", "s_waitcnt vmcnt(0)",
                "v_cmp_eq_u32 vcc, 0, v251", "s_cbranch_scc1 L_dbg_out", "s_sleep 8", "s_cbranch_vccnz L_dbg_spin2", "L_dbg_out:",
                "s_mov_b64 exec, -1", "s_branch L_dbg_ok"])
    OOL.append(["L_mod_spin:", "s_mov_b32 s39, 0x40000", "s_lshl_b32 s38, s3, 10", f"s_add_u32 s38, s38, {OFF_MODP}", "L_mod_spin2:"]
               + modloads() + ["s_sub_u32 s39, s39, 1", "s_waitcnt vmcnt(0)"]
               + list(modcheck()) + ["s_cbranch_scc1 L_mod_ok", "s_nop 1", "s_cbranch_vccnz L_mod_spin2", "s_branch L_mod_ok"])
    k(vm.wait_str(wd[7]) + " lgkmcnt(0)"); k("s_barrier")
    wq = [g for s in range(8, 12) for g in wdma(s)]
    t1 = trreads(1)
    mix = []
    for i in range(12):
        mix += [(lambda x=t1[2*i]: [x]), (lambda x=t1[2*i+1]: [x]), wq[i]]
    weave(k, normalize(1), mix, 1)
    assert not mix
    k(f"""
    s_lshl_b32 s38, s93, 2
    v_xor_b32 v254, s38, v1
    v_lshlrev_b32 v254, 8, v254
    v_and_b32 v253, 7, v1
    v_lshl_add_u32 v254, v253, 4, v254
    s_lshl_b32 s38, s3, 14
    s_lshl_b32 s39, s101, 6
    v_add_u32 v254, s38, v254
    v_xor_b32 v254, s39, v254
    s_lshl_b32 s38, s3, 10
    v_add_u32 v7, s38, v2
    v_lshlrev_b32 v255, 5, v1
    s_cmp_ge_u32 s3, 2
    s_cselect_b32 s5, 1.0, 0
    """)
    vm.wait(modid)
    for x in modcheck(): k(x)
    k("s_nop 0")
    k("s_cbranch_vccnz L_mod_spin")
    k.label("L_mod_ok")
    k(f"v_pk_add_f32 v[{MP}:{MP+1}], v[{MP}:{MP+1}], v[{MP+4}:{MP+5}]")
    k(f"""
    v_pk_add_f32 v[{MP+2}:{MP+3}], v[{MP+2}:{MP+3}], v[{MP+6}:{MP+7}]
    v_pk_add_f32 v[{MP+8}:{MP+9}], v[{MP+8}:{MP+9}], v[{MP+12}:{MP+13}]
    v_pk_add_f32 v[{MP+10}:{MP+11}], v[{MP+10}:{MP+11}], v[{MP+14}:{MP+15}]
    v_pk_add_f32 v[{MP}:{MP+1}], v[{MP}:{MP+1}], v[{MP+8}:{MP+9}]
    v_pk_add_f32 v[{MP+2}:{MP+3}], v[{MP+2}:{MP+3}], v[{MP+10}:{MP+11}]
    """)
    for rep in range(2):
        k(f"v_cvt_pk_bf16_f32 v{MP+4}, v{MP}, v{MP+1}")
        k(f"v_cvt_pk_bf16_f32 v{MP+5}, v{MP+2}, v{MP+3}")
        for i in range(2):
            k(f"v_lshlrev_b32 v{MP+2*i}, 16, v{MP+4+i}")
            k(f"v_and_b32 v{MP+2*i+1}, 0xffff0000, v{MP+4+i}")
        if rep == 0:
            for i in range(4):
                k(f"v_add_f32 v{MP+i}, s5, v{MP+i}")
    k(f"""
    ds_write_b128 v7, v[{MP}:{MP+3}] offset:{LDS_SHARE}
    s_waitcnt lgkmcnt(0)
    s_barrier
    ds_read_b128 v[{VB}:{VB+3}], v255 offset:{LDS_SHARE}
    ds_read_b128 v[{VB+4}:{VB+7}], v255 offset:{LDS_SHARE+16}
    ds_read_b128 v[{VA}:{VA+3}], v255 offset:{LDS_SHARE+2048}
    ds_read_b128 v[{VA+4}:{VA+7}], v255 offset:{LDS_SHARE+2064}
    """)
    wq = [g for s in range(12, 16) for g in wdma(s)]
    for g in wq[:2]:
        for y in g():
            k(y)
    wq = wq[2:]
    k("s_waitcnt lgkmcnt(0)")
    stamp(k, 5)
    md = L()
    def mrow(r):
        t = XF + 8 * r
        for i in range(4):
            md(f"v_pk_fma_f32 v[{t+2*i}:{t+2*i+1}], v[{t+2*i}:{t+2*i+1}], v[{VA+2*i}:{VA+2*i+1}], v[{VB+2*i}:{VB+2*i+1}]")
        for i in range(4):
            md(f"v_cvt_pk_bf16_f32 v{t+i}, v{t+2*i}, v{t+2*i+1}")
        md(f"v_xor_b32 v{t+4}, {r<<4}, v254")
    def mwr(r):
        t = XF + 8 * r
        md(f"ds_write_b128 v{t+4}, v[{t}:{t+3}]")
    mrow(0)
    md("s_barrier")
    for r in range(1, 16):
        mwr(r - 1)
        mrow(r)
    mwr(15)
    weave(k, md, wq, 12)
    assert not wq
    k(f"""
    v_and_b32 v8, 15, v1
    v_lshrrev_b32 v9, 4, v1
    v_xor_b32 v10, v8, v9
    v_lshlrev_b32 v10, 4, v10
    v_lshl_add_u32 v8, v9, 8, v10
    v_xor_b32 v9, 64, v8
    s_waitcnt lgkmcnt(0)
    s_barrier
    """)
    stamp(k, 6)
    def aread(s):
        f = FR + 16 * (s & 1)
        return [f"ds_read_b128 v[{f+4*b}:{f+4*b+3}], v{8 + (s & 1)} offset:{b*16384+s*1024}" for b in range(4)]
    ex2, ex3 = trreads(2), trreads(3)
    rs = L()
    rs(f"""
    s_cmp_lt_u32 s2, 32
    s_cselect_b32 s4, 0, 32
    s_cselect_b32 s5, 0, 1
    s_cmp_ge_u32 s2, 144
    s_cselect_b32 s4, 144, s4
    s_cselect_b32 s5, 2, s5
    s_sub_u32 s4, s2, s4
    s_lshr_b32 s6, s4, 3
    s_and_b32 s7, s4, 7
    s_mul_i32 s9, s4, 2341
    s_lshr_b32 s9, s9, 16
    s_mul_i32 s10, s9, 28
    s_sub_u32 s10, s4, s10
    s_mov_b32 s8, 1024
    s_cmp_eq_u32 s5, 1
    s_cselect_b32 s6, s9, s6
    s_cselect_b32 s7, s10, s7
    s_cselect_b32 s8, 3584, s8
    s_lshl_b32 s9, s6, 2
    s_add_u32 s9, s9, s3
    s_lshl_b32 s12, s8, 5
    s_mul_i32 s12, s12, s9
    s_lshl_b32 s11, s7, 7
    s_add_u32 s12, s12, s11
    s_lshl_b32 s13, s8, 3
    v_lshrrev_b32 v248, 3, v1
    v_mul_lo_u32 v248, v248, s8
    v_and_b32 v249, 7, v1
    v_lshl_add_u32 v248, v249, 4, v248
    """)
    for x in aread(0): k(x)
    for s in range(16):
        nxt = aread(s + 1) if s < 15 else []
        k("s_waitcnt lgkmcnt(0)")
        if s == 3:
            vm.wait(wd[11]); k("s_barrier")
        if s == 7:
            vm.wait(wd[15]); k("s_barrier")
        if s == 14:
            k("s_load_dwordx4 s[16:19], s[48:49], 128")
        if 3 <= s < 7:
            nxt += ex2[6 * (s - 3):6 * (s - 3) + 6]
        if 7 <= s < 11:
            nxt += ex3[6 * (s - 7):6 * (s - 7) + 6]
        while rs and len(nxt) < 12:
            nxt.append(rs.pop(0))
        RL0 = int(os.environ.get("RL0", "6"))
        if RL0 <= s < RL0 + 4:
            assert not rs
            i = s - RL0
            nxt += (["s_add_u32 s12, s12, s13"] if i else []) + [f"buffer_load_dwordx4 a[{192+4*i}:{195+4*i}], v248, s[52:55], s12 offen"]
            vm.tick()
        f = FR + 16 * (s & 1)
        for b in range(4):
            for which in range(3):
                acc = ACC + 4 * (which * 4 + b)
                w = f"a[{12*s+4*which}:{12*s+4*which+3}]"
                h = f"v[{f+4*b}:{f+4*b+3}]"
                c = "0" if s == 0 else f"v[{acc}:{acc+3}]"
                a_, b_ = (w, h) if which < 2 else (h, w)
                k(f"v_mfma_f32_16x16x32_bf16 v[{acc}:{acc+3}], {a_}, {b_}, {c}")
                if nxt:
                    k(nxt.pop(0))
        assert not nxt
    stamp(k, 7)
    C2 = 200
    k(f"""
    v_lshrrev_b32 v221, 1, v1
    v_lshlrev_b32 v220, 3, v221
    s_lshl_b32 s38, s3, 8
    buffer_load_dwordx2 v[{C2}:{C2+1}], v220, s[56:59], s38 offen
    """)
    k(f"""
    s_lshl_b32 s40, s22, 16
    s_lshl_b32 s41, s20, 11
    s_add_u32 s40, s40, s41
    s_add_u32 s40, s40, {OFF_Q}
    s_lshl_b32 s42, s22, 17
    s_lshl_b32 s41, s20, 12
    s_add_u32 s42, s42, s41
    s_add_u32 s42, s42, {OFF_KV}
    v_mov_b32 v12, {QSCALE:#x}
    v_mov_b32 v13, {QSCALE:#x}
    """)
    for which in (1, 2, 0):
        for bp in range(2):
            t = 88 + 4 * (which * 2 + bp)
            for b2 in range(2):
                acc = ACC + 4 * (which * 4 + bp * 2 + b2)
                if which == 0:
                    k(f"v_pk_mul_f32 v[{acc}:{acc+1}], v[12:13], v[{acc}:{acc+1}]")
                    k(f"v_pk_mul_f32 v[{acc+2}:{acc+3}], v[12:13], v[{acc+2}:{acc+3}]")
                k(f"v_cvt_pk_bf16_f32 v{t+2*b2}, v{acc}, v{acc+1}")
                k(f"v_cvt_pk_bf16_f32 v{t+2*b2+1}, v{acc+2}, v{acc+3}")
        op = "v_permlane32_swap_b32" if which == 2 else "v_permlane16_swap_b32"
        for bp in range(2):
            t = 88 + 4 * (which * 2 + bp)
            if bp == 1:
                k("s_nop 0")
            k(f"{op} v{t}, v{t+2}")
            k(f"{op} v{t+1}, v{t+3}")
            if which == 0:
                vm.op(f"buffer_store_dwordx4 v[{t}:{t+3}], v2, s[24:27], s40 offen offset:{bp*1024} {FL}")
            else:
                vm.op(f"buffer_store_dwordx4 v[{t}:{t+3}], v2, s[24:27], s42 offen offset:{bp*2048+(which-1)*1024} {FL}")
    k("""
    s_and_b64 s[16:17], s[16:17], s[18:19]
    s_and_b32 s16, s16, s17
    s_cbranch_scc0 L_dbg_spin
    L_dbg_ok:
    """)
    stamp(k, 25)
    signal(k, 0, 21, 20, 32)
    stamp(k, 26)
    RA, RD, W2M, M2 = 160, 168, 184, 208
    LDS_RLS = 128 * 1024
    k(f"""
    s_lshl_b32 s14, s3, 12
    s_add_u32 s14, s14, {LDS_RLS}
    v_and_b32 v248, 15, v1
    v_lshrrev_b32 v249, 4, v1
    v_lshrrev_b32 v250, 2, v248
    v_and_b32 v248, 3, v248
    v_lshlrev_b32 v248, 3, v248
    v_lshl_add_u32 v248, v250, 7, v248
    v_add_u32 v248, s14, v248
    v_and_b32 v250, 1, v249
    v_lshrrev_b32 v249, 1, v249
    s_cmp_eq_u32 s5, 1
    s_cbranch_scc1 L_rl_c
    v_lshl_add_u32 v248, v250, 5, v248
    s_lshr_b32 s13, s5, 1
    s_add_u32 s23, s13, 9
    v_lshlrev_b32 v249, s23, v249
    v_add_u32 v{RA}, v248, v249
    v_add_u32 v{RA+1}, 64, v{RA}
    v_add_u32 v{RA+2}, 0x800, v{RA}
    v_add_u32 v{RA+3}, 0x840, v{RA}
    s_lshr_b32 s23, 1024, s13
    s_cmp_eq_u32 s5, 0
    s_cselect_b32 s15, 32, 112      ; ksteps
    s_mov_b32 s10, {OFF_W2}
    s_cselect_b32 s10, {OFF_WO}, s10
    s_lshl_b32 s11, s7, 1
    s_mul_i32 s11, s11, s15
    s_lshl_b32 s13, s9, 1
    s_add_u32 s11, s11, s13
    s_lshl_b32 s11, s11, 10
    s_add_u32 s16, s11, s10
    s_lshl_b32 s15, s15, 10
    s_add_u32 s17, s16, s15
    s_add_u32 s18, s16, 1024
    s_add_u32 s19, s17, 1024
    s_branch L_rl_d
    L_rl_c:
    v_lshl_add_u32 v248, v249, 11, v248
    v_lshl_add_u32 v{RA}, v250, 9, v248
    v_add_u32 v{RA+1}, 32, v{RA}
    v_add_u32 v{RA+2}, 64, v{RA}
    v_add_u32 v{RA+3}, 0x60, v{RA}
    s_mov_b32 s23, 1024
    s_lshl_b32 s15, s7, 2
    s_mul_i32 s13, s9, 7
    """)
    for f in range(4):
        k(f"""
        s_mul_i32 s10, s15, 9363
        s_lshr_b32 s10, s10, 16
        s_mul_i32 s11, s10, 105
        s_add_u32 s11, s11, s15
        s_add_u32 s11, s11, s13
        s_lshl_b32 s11, s11, 10
        s_add_u32 s{16+f}, s11, {OFF_W1}
        s_add_u32 s15, s15, 1
        """)
    k.label("L_rl_d")
    for f in range(4):
        k(f"v_add_u32 v{RA+4+f}, s23, v{RA+f}")
    k(f"""
    v_add_u32 v220, s14, v2
    s_lshr_b32 s99, s37, 2
    s_lshl_b32 s99, s99, 3
    s_add_u32 s99, s99, s36
    s_lshl_b32 s99, s99, 2
    s_and_b32 s38, s37, 3
    s_add_u32 s99, s99, s38
    s_add_u32 s99, s99, 64
    v_mul_u32_u24 v221, {4*6144}, v221
    v_and_b32 v249, 1, v1
    v_lshl_add_u32 v221, v249, 4, v221
    s_mul_i32 s15, s3, {128*6144}
    s_lshl_b32 s4, s99, 5
    s_add_u32 s15, s15, s4
    s_cmp_ge_u32 s37, 16
    s_cselect_b32 s15, 0x7f000000, s15
    s_lshl_b32 s20, s2, 1
    s_lshr_b32 s21, s3, 1
    s_add_u32 s20, s20, s21
    s_mul_i32 s20, s20, 6144
    s_and_b32 s21, s3, 1
    s_lshl_b32 s21, s21, 11
    s_add_u32 s20, s20, s21
    s_add_u32 s20, s20, 2048
    s_mov_b64 s[4:5], s[44:45]
    s_mov_b32 s6, s46
    s_mov_b32 s7, 0x00020000
    v_lshlrev_b32 v{C2+2}, 16, v{C2}
    v_and_b32 v{C2+3}, 0xffff0000, v{C2}
    v_lshlrev_b32 v{C2+4}, 16, v{C2+1}
    v_and_b32 v{C2+5}, 0xffff0000, v{C2+1}
    """)
    silu(k, [C2 + 2 + i for i in range(4)], [M2 + i for i in range(4)])
    stamp(k, 8)
    Q, KF, VF, S, P, O, C = (ATT[x] for x in ("Q", "KF", "VF", "S", "P", "O", "C"))
    k(f"""
    s_lshl_b32 s40, s36, 2
    s_and_b32 s42, s37, 3
    s_add_u32 s40, s40, s42        ; head2
    s_lshr_b32 s54, s37, 2         ; qb256
    s_lshl_b32 s41, s54, 2
    s_add_u32 s41, s41, s3         ; qblock64
    s_lshl_b32 s42, s40, 16
    s_lshl_b32 s43, s41, 11
    s_add_u32 s42, s42, s43
    s_add_u32 s42, s42, {OFF_Q}
    s_lshl_b32 s44, s40, 17
    s_lshl_b32 s45, s3, 10
    s_add_u32 s47, s44, {OFF_KV}
    s_add_u32 s44, s47, s45
    s_lshl_b32 s46, s41, 16
    s_lshl_b32 s43, s40, 10
    s_add_u32 s46, s46, s43
    s_add_u32 s46, s46, {OFF_O}
    s_mov_b32 m0, s45
    v_and_b32 v3, 15, v1
    v_lshlrev_b32 v3, 4, v3
    v_lshrrev_b32 v4, 5, v1
    v_lshl_add_u32 v3, v4, 8, v3
    v_add_u32 v4, 0x10000, v2
    v_add_u32 v5, 0x10000, v3
    s_mov_b32 s48, 0x0000ffff
    s_mov_b32 s49, 0x0000ffff
    v_and_b32 v8, 27, v1
    v_cmp_eq_u32 vcc, 16, v8
    v_mov_b32 v9, 0x3f803f80
    s_nop 0
    v_cndmask_b32 v9, 0, v9, vcc
    """)
    for i in range(16):
        k(f"v_mov_b32 v{VF+i}, v9")
    k(f"""
    s_lshr_b32 s50, s37, 3
    s_lshl_b32 s50, s50, 2
    s_add_u32 s50, s50, s3          ; P3 ncol32
    s_lshl_b32 s51, s50, 15
    s_add_u32 s51, s51, {OFF_WO}
    s_lshr_b32 s52, s37, 2
    s_lshl_b32 s52, s52, 1
    s_lshr_b32 s53, s3, 1
    s_add_u32 s52, s52, s53
    s_xor_b32 s53, s52, 1
    s_mul_i32 s55, s52, {112*1024}
    s_mul_i32 s56, s53, {112*1024}
    s_mul_i32 s53, s3, {28*1024}
    s_add_u32 s53, s53, {OFF_W2}
    s_add_u32 s55, s55, s53
    s_add_u32 s56, s56, s53
    s_lshr_b32 s57, s37, 2
    s_lshl_b32 s57, s57, 1
    s_and_b32 s53, s37, 1
    s_add_u32 s57, s57, s53         ; cb4
    s_mul_i32 s58, s57, {112*1024}
    s_add_u32 s58, s58, {OFF_W1}
    s_mul_i32 s22, s3, 7168
    s_mul_i32 s23, s3, 21504
    s_add_u32 s21, s58, s23
    s_add_u32 s21, s21, {28*1024}
    v_lshrrev_b32 v8, 5, v1
    v_and_b32 v9, 31, v1
    v_lshlrev_b32 v148, 10, v9
    v_lshl_add_u32 v148, v8, 3, v148
    v_lshlrev_b32 v149, 4, v9
    v_lshl_add_u32 v149, v8, 12, v149
    s_lshl_b32 s59, s36, 3
    s_and_b32 s53, s37, 7
    s_add_u32 s59, s59, s53
    s_lshl_b32 s59, s59, 15
    s_lshl_b32 s53, s50, 6
    s_add_u32 s59, s59, s53
    s_lshr_b32 s53, s37, 2
    """)
    wait_edge(k, 0, 36, 32)
    stamp(k, 9)
    vm.n = 0
    rid = []
    def dma():
        i = len(rid)
        out = []
        if i < 4:
            if i:
                out += [f"s_add_u32 m0, s45, {4096*i}", "s_add_u32 s44, s44, 4096"]
            out += [f"buffer_load_dwordx4 v2, s[24:27], s44 offen {FL} lds"]
        else:
            if i % 4 == 0:
                out += [f"s_add_u32 m0, s43, {4096*i}", f"s_add_u32 s44, s41, {4096*i}"]
            out += [f"buffer_load_dwordx4 v2, s[24:27], s44 offen offset:{1024*(i%4)} {FL} lds"]
        rid.append(vm.tick())
        return out
    k("s_lshl_b32 s43, s3, 12")
    k("s_add_u32 s41, s47, s43")
    for x in dma(): k(x)
    vm.op(f"buffer_load_dwordx4 v[{Q}:{Q+3}], v2, s[24:27], s42 offen {FL}")
    qid = vm.op(f"buffer_load_dwordx4 v[{Q+4}:{Q+7}], v2, s[24:27], s42 offen offset:1024 {FL}")
    for r in range(3):
        for x in dma(): k(x)
    fin2 = L()
    fin2(f"""
    s_cmp_lg_u32 s3, 1
    s_cbranch_scc1 L_m2_done
    s_cmp_ge_u32 s37, 16
    s_cbranch_scc1 L_m2_done
    v_lshlrev_b32 v216, 2, v1
    v_add_u32 v217, {LDS_MRED2}, v216
    ds_read_b32 v{M2}, v217
    s_lshr_b32 s38, s99, 5
    s_cmp_eq_u32 s38, 4
    s_cselect_b32 s39, 1.0, 0
    s_waitcnt lgkmcnt(0)
    v_mov_b32 v{M2+1}, v{M2}
    s_nop 1
    v_permlane32_swap_b32 v{M2+1}, v{M2}
    v_add_f32 v{M2}, v{M2+1}, v{M2}
    v_mov_b32 v{M2+1}, v{M2}
    s_nop 1
    v_permlane16_swap_b32 v{M2+1}, v{M2}
    v_add_f32 v{M2}, v{M2+1}, v{M2}
    """)
    bf16_round(fin2, M2, M2)
    fin2(f"v_add_f32 v{M2}, s39, v{M2}")
    bf16_round(fin2, M2, M2)
    fin2(f"""
    s_lshl_b32 s39, s99, 6
    s_mov_b64 exec, 0xffff
    buffer_store_dword v{M2}, v216, s[24:27], s39 offen offset:{OFF_MOD} {FL}
    s_sub_u32 s38, 4, s38
    s_cmp_gt_u32 s38, 1
    s_cbranch_scc1 L_m2_done
    s_lshl_b32 s38, s38, 10
    s_and_b32 s39, s99, 31
    s_lshl_b32 s39, s39, 5
    s_add_u32 s38, s38, s39
    s_add_u32 s38, s38, {OFF_MODB}
    v_bfe_u32 v217, v1, 2, 1
    v_lshlrev_b32 v216, 4, v217
    v_bfe_u32 v217, v1, 3, 1
    v_lshl_add_u32 v216, v217, 3, v216
    v_and_b32 v217, 3, v1
    v_lshl_add_u32 v216, v217, 1, v216
    buffer_store_short_d16_hi v{M2}, v216, s[24:27], s38 offen {FL}
    L_m2_done:
    s_mov_b64 exec, -1
    """)
    vm.wait(qid)
    k("s_barrier")
    def kread(t):
        off = t * 2048
        return f"ds_read_b128 v[{KF}:{KF+3}], v{2 if off < 65536 else 4} offset:{off & 0xffff}"
    def vread(t):
        off = t * 2048 + 1024
        b = VF + 8 * (t & 1)
        a = 3 if off < 65536 else 5
        return ["s_mov_b64 exec, s[48:49]",
                f"ds_read_b128 v[{b}:{b+3}], v{a} offset:{off & 0xffff}",
                f"ds_read_b128 v[{b+4}:{b+7}], v{a} offset:{(off+512) & 0xffff}",
                "s_mov_b64 exec, -1"]
    k(kread(0))
    for x in vread(0): k(x)
    k(f"""
    s_waitcnt lgkmcnt(2)
    v_mfma_f32_32x32x16_bf16 v[{S}:{S+15}], v[{KF}:{KF+3}], v[{Q}:{Q+3}], 0
    v_mfma_f32_32x32x16_bf16 v[{S+16}:{S+31}], v[{KF}:{KF+3}], v[{Q+4}:{Q+7}], 0
    s_nop 10
    """)
    att_max16(k, 6, S, True)
    att_max16(k, 7, S + 16, True)
    k("""
    s_nop 1
    v_permlane32_swap_b32 v6, v7
    v_max_f32 v6, v6, v7
    v_mov_b32 v7, v6
    s_nop 1
    v_permlane32_swap_b32 v6, v7
    v_sub_f32 v6, 0, v6
    v_sub_f32 v7, 0, v7
    """)
    for i in range(16):
        k(f"v_mov_b32 v{C+i}, v6")
    k("s_nop 0")
    k(f"v_mov_b32 v{C+16}, v7")
    k(f"v_mfma_f32_32x32x16_bf16 v[{S}:{S+15}], v[{KF}:{KF+3}], v[{Q}:{Q+3}], v[{C}:{C+15}]")
    for i in range(1, 16):
        k(f"v_mov_b32 v{C+16+i}, v7")
    stamp(k, 10)
    jobs = []
    for s in range(32):
        pre = ["s_add_u32 s51, s51, 4096"] if (s and s % 4 == 0) else []
        jobs.append(pre + [f"buffer_load_dwordx4 {wo_reg(s)}, v2, s[24:27], s51 offen offset:{(s%4)*1024} {FL}"])
    for s in range(28):
        for i, sr in enumerate((55, 56)):
            pre = [f"s_add_u32 s{sr}, s{sr}, 4096"] if (s and s % 4 == 0) else []
            jobs.append(pre + [f"buffer_load_dwordx4 a[{8*s+4*i}:{8*s+4*i+3}], v2, s[24:27], s{sr} offen offset:{(s%4)*1024} {FL}"])
    w1jobs = []
    for i in range(7):
        pre = [f"s_add_u32 m0, s22, {131072 + 4096*(i//4)}", f"s_add_u32 s44, s58, s22"] + ([f"s_add_u32 s44, s44, 4096"] if i else []) if i % 4 == 0 else []
        w1jobs.append(pre + [f"buffer_load_dwordx4 v2, s[24:27], s44 offen offset:{1024*(i%4)} sc1 lds"])
    for i in range(21):
        pre = [f"s_add_u32 m0, s23, {4096*(i//4)}", f"s_add_u32 s44, s21, {4096*(i//4)}"] if i % 4 == 0 else []
        w1jobs.append(pre + [f"buffer_load_dwordx4 v2, s[24:27], s44 offen offset:{1024*(i%4)} sc1 lds"])
    modb = ["s_and_b32 s53, s45, 1024", f"s_add_u32 m0, s53, {LDS_MODB}", f"s_add_u32 s53, s53, {OFF_MODB}",
            "buffer_load_dwordx4 v2, s[24:27], s53 offen sc1 lds"]
    vec1 = [f"s_mov_b32 m0, {LDS_VEC}", "s_lshr_b32 s53, s37, 3", "s_lshl_b32 s53, s53, 9", f"s_add_u32 s53, s53, {OFF_MOD + 2*2048}",
            "buffer_load_dwordx4 v149, s[24:27], s53 offen sc1 lds"]
    vec2 = [f"s_mov_b32 m0, {LDS_VEC + 1024}", "s_lshr_b32 s53, s37, 4", "s_lshl_b32 s53, s53, 10", f"s_add_u32 s53, s53, {OFF_MOD + 5*2048}",
            "buffer_load_dwordx4 v2, s[24:27], s53 offen sc1 lds"]
    xj = [[f"buffer_load_dwordx2 v[{140+2*j}:{141+2*j}], v148, s[28:31], s59 offen offset:{16*j}"] for j in range(4)]
    wo_j, w2_j = jobs[:32], jobs[32:]
    NW2 = int(os.environ.get("NW2", "56"))
    w2_late = w2_j[NW2:]
    jobs = w1jobs[:7] + w2_j[:NW2] + wo_j
    late = w1jobs[7:]
    vecj = [modb, vec1, vec2]
    pfj = [[f"buffer_load_dwordx4 v[{224+4*i}:{227+4*i}], v2, s[4:7], s20 offen offset:{1024*i}"] for i in range(2)]
    m2j = [(["s_add_u32 s15, s15, 6144"] if i else []) + [f"buffer_load_dwordx4 v[{W2M+4*i}:{W2M+4*i+3}], v221, s[4:7], s15 offen"]
           for i in range(4)]
    bg = L()
    for p in range(4):
        for i in range(4):
            src = W2M + 4 * p + i
            t_ = 216 + 2 * (i & 1)
            bg(f"v_lshlrev_b32 v{t_}, 16, v{src}")
            bg(f"v_and_b32 v{t_+1}, 0xffff0000, v{src}")
            if p == 0:
                bg(f"v_pk_mul_f32 v[{M2+2*i}:{M2+2*i+1}], v[{t_}:{t_+1}], v[{C2+2}:{C2+3}] op_sel_hi:[1,0]")
            else:
                sel = "op_sel:[0,1,0] op_sel_hi:[1,1,1]" if p & 1 else "op_sel_hi:[1,0,1]"
                cr = C2 + 2 + (p & 2)
                bg(f"v_pk_fma_f32 v[{M2+2*i}:{M2+2*i+1}], v[{t_}:{t_+1}], v[{cr}:{cr+1}], v[{M2+2*i}:{M2+2*i+1}] {sel}")
    mod_reduce(bg, M2, C2, C2 + 1, 0, LDS_MRED2)
    bg = [x for x in bg if not x.startswith("s_nop")]
    U_RL, U_FLAG, U_XL, U_XC = 4, 20, 44, 50
    U_M2, U_BG, U_FIN, U_MFLAG, U_ML, U_MC = 32, 52, 64, 72, 112, 118
    def flagblk(lab, off, cond):
        return cond + ["s_getreg_b32 s38, hwreg(HW_REG_XCC_ID, 0, 4)", "s_add_u32 s38, s38, 1", "s_lshl_b32 s39, s2, 2",
                       f"s_add_u32 s39, s39, {off}", "s_mov_b64 exec, 1", "v_mov_b32 v6, 0", "v_mov_b32 v7, s38",
                       f"buffer_store_dword v7, v6, s[24:27], s39 offen {FL}", "s_mov_b64 exec, -1", f"{lab}:"]
    for u in range(128):
        t = u >> 1
        side = {}
        def add(slot, xs):
            side.setdefault(slot, []).extend(xs)
        def put(d, slot):
            ms = 7 if slot == 1 else 21
            add(ms - 1, d[:-1]); add(ms, d[-1:])
            return vm.tick()
        if len(rid) < 32:
            d = dma()
            add(6, d[:-1]); add(7, d[-1:])
        elif pfj:
            put(pfj.pop(0), 1)
        elif xj:
            put(xj.pop(0), 1)
        elif U_M2 <= u < U_M2 + 4:
            m2id = put(m2j[u - U_M2], 1)
        elif vecj and u > U_MC:
            put(vecj.pop(0), 1)
        elif jobs and u > U_XC and (u > U_MFLAG or len(jobs) > 24):
            put(jobs.pop(0), 1)
        if u == U_BG:
            add(7, [vm.wait_str(m2id)])
        if u > U_BG:
            for sl in (4, 6, 8, 11, 13, 18, 20, 25):
                if bg:
                    add(sl, [bg.pop(0)])
        if u % 2 == 0 and t < 63:
            pre = []
            if u == 2:
                pre = [vm.wait_str(rid[3]), "s_barrier"]
            elif u == 14:
                pre = [vm.wait_str(rid[15]), "s_barrier"]
            elif u == U_FLAG:
                pre = [vm.wait_str(max(rid[31], rlst)), "s_barrier"] + flagblk("L_noxid", OFF_XID, ["s_cmp_lg_u32 s3, 1", "s_cbranch_scc1 L_noxid"])
            elif u == U_FIN:
                assert not bg
                pre = ["s_barrier"] + list(fin2)
                finid = vm.n
            elif u == U_MFLAG:
                pre = flagblk("L_nomid", OFF_XID + 2048, ["s_cmp_lg_u32 s3, 1", "s_cbranch_scc1 L_nomid", vm.wait_str(finid)])
            elif u == 82:
                pre = ["s_barrier"]
            add(14, pre + [kread(t + 1)])
            add(15, vread(t + 1))
        if u % 2 == 1 or u == 0:
            add(-14, ["s_waitcnt lgkmcnt(0)"])
        if u == U_RL - 2:
            for i in range(4):
                add(17 + 2 * i, [f"ds_write_b128 v220, a[{192+4*i}:{195+4*i}] offset:{1024*i}"])
        if u == U_RL:
            for f in range(4):
                add(17 + 2 * f, [f"ds_read_b64_tr_b16 v[{RD+4*f}:{RD+4*f+1}], v{RA+f}"])
                add(18 + 2 * f, [f"ds_read_b64_tr_b16 v[{RD+4*f+2}:{RD+4*f+3}], v{RA+4+f}"])
        if U_RL + 1 <= u < U_RL + 9 and u % 2 == 1:
            f = (u - U_RL - 1) // 2
            add(14, [f"buffer_store_dwordx4 v[{RD+4*f}:{RD+4*f+3}], v2, s[24:27], s{16+f} offen {FL}"])
            rlst = vm.tick()
        if len(rid) < 32:
            d = dma()
            add(20, d[:-1]); add(21, d[-1:])
        elif u == U_XL:
            vm.tick(); xidid = vm.tick()
            add(7, [f"s_mov_b32 s53, {OFF_XID}", f"buffer_load_dwordx4 v[150:153], v2, s[24:27], s53 offen {FL}"])
            add(21, [f"buffer_load_dwordx4 v[154:157], v2, s[24:27], s53 offen offset:32 {FL}"])
        elif u == U_XC:
            add(17, [vm.wait_str(xidid), "v_min_u32 v158, v150, v151", "v_min_u32 v159, v152, v153"])
            add(18, ["v_min_u32 v158, v158, v159", "v_xor_b32 v154, v154, v150", "v_xor_b32 v155, v155, v151"])
            add(20, ["v_cmp_eq_u32 vcc, 0, v158", "v_xor_b32 v156, v156, v152", "v_xor_b32 v157, v157, v153"])
            add(22, ["s_cbranch_vccnz L_xid_retry", "L_xid_ok:", "v_or3_b32 v154, v154, v155, v156", "v_or_b32 v154, v154, v157"])
            add(24, ["v_cmp_ne_u32 vcc, 0, v154"])
            add(27, ["s_and_b32 s53, vcc_hi, 0x3fffffff", "s_or_b32 s53, s53, vcc_lo", "s_cmp_eq_u32 s53, 0", f"s_cselect_b32 s{S_FAST}, 1, 0"])
        elif u == U_ML:
            midid = put([f"s_mov_b32 s53, {OFF_XID + 2048}", f"buffer_load_dwordx4 v[150:153], v2, s[24:27], s53 offen {FL}"], 17)
        elif u == U_MC:
            add(17, [vm.wait_str(midid), "v_min_u32 v158, v150, v151", "v_min_u32 v159, v152, v153"])
            add(18, ["v_min_u32 v158, v158, v159"])
            add(20, ["v_cmp_eq_u32 vcc, 0, v158"])
            add(24, ["s_cbranch_vccnz L_mid_retry", "L_mid_ok:"])
        elif u >= 83 and late:
            put(late.pop(0), 17)
        elif jobs and u > U_XC + 7 and u % 2 == 0 and (u > U_MFLAG or len(jobs) > 24):
            put(jobs.pop(0), 17)
        if DIAG and os.environ.get('ATTST') and u in (8, 16, 22, 32, 44, 52, 64, 86):
            stamp(k, (8, 16, 22, 32, 44, 52, 64, 86).index(u))
        att_unit(k, u, side, last=(u == 127))
    assert not vecj
    assert not jobs and not late, (len(jobs), len(late))
    k(f"""
    s_nop 0
    v_cvt_pk_bf16_f32 v{P+7}, v{S+30}, v{S+31}
    s_nop 1
    v_mfma_f32_32x32x16_bf16 v[{O+16}:{O+31}], v[{VF+12}:{VF+15}], v[{P+4}:{P+7}], v[{O+16}:{O+31}]
    s_mov_b32 s53, 0x53800000
    v_cmp_nge_f32 vcc, s53, v{O+8}
    s_nop 9
    v_cmp_nge_f32 s[42:43], s53, v{O+24}
    s_nop 3
    s_or_b64 vcc, vcc, s[42:43]
    s_cbranch_scc0 L_att_fin
    s_branch L_att_fallback
    """)
    k.label("L_att_fin")
    stamp(k, 11)
    XR, XU, GA, A2 = 140, 44, 108, 124
    k(f"""
    v_rcp_f32 v6, v{O+8}
    v_rcp_f32 v7, v{O+24}
    s_lshl_b32 s42, s36, 3
    s_and_b32 s43, s37, 7
    s_add_u32 s42, s42, s43         ; t3 (tok32)
    v_lshrrev_b32 v8, 5, v1         ; h
    v_and_b32 v9, 31, v1            ; tok
    """)
    dual_begin(k)
    for b_ in range(2):
        for i in range(8):
            k(f"v_mul_f32 v{O+16*b_+i}, v{6+b_}, v{O+16*b_+i}")
        for i in range(4):
            k(f"v_cvt_pk_bf16_f32 v{P+4*b_+i}, v{O+16*b_+2*i}, v{O+16*b_+2*i+1}")
        if b_:
            k("s_add_u32 s46, s46, 32768")
        k(f"buffer_store_dwordx4 v[{P+4*b_}:{P+4*b_+3}], v2, s[24:27], s46 offen {DF}")
    k(f"""
    v_add_u32 v5, 0x20000, v2
    v_lshrrev_b32 v12, 4, v9
    v_lshlrev_b32 v12, 14, v12
    v_and_b32 v13, 15, v9
    v_lshl_add_u32 v12, v13, 4, v12
    v_lshl_add_u32 v12, v8, 8, v12
    v_lshlrev_b32 v13, 3, v9
    s_lshl_b32 s43, s3, 10
    s_lshl_b32 s44, s42, 15
    s_lshl_b32 s45, s50, 10
    s_add_u32 s44, s44, s45
    s_add_u32 s45, s44, {OFF_X2S}
    s_add_u32 s44, s44, {OFF_X2}
    s_lshl_b32 s46, s42, 12
    s_lshl_b32 s47, s50, 8
    s_add_u32 s46, s46, s47
    s_add_u32 s46, s46, {OFF_ST2}
    s_lshl_b32 s47, s42, 15
    s_add_u32 s47, s47, s43
    s_add_u32 s47, s47, {OFF_O}
    s_add_u32 m0, s43, {LDS_OST}
    """)
    def w2some(n):
        for _ in range(n):
            for y in w2_late.pop(0):
                k(y)
        return n
    ND = [int(x) for x in os.environ.get("ND", "0,0,0").split(",")]
    signal(k, 1, 54, 40, 32, nafter=w2some(ND[0]), fl=DF)
    dual_end(k, 'e1')
    stamp(k, 12)
    k(f"""
    s_lshl_b32 s38, s3, 7
    s_add_u32 s38, s38, {LDS_VEC}
    v_lshlrev_b32 v10, 4, v8
    v_add_u32 v10, s38, v10
    """)
    for j in range(4):
        k(f"ds_read_b128 v[{GA+4*j}:{GA+4*j+3}], v10 offset:{32*j}")
        k(f"ds_read_b128 v[{A2+4*j}:{A2+4*j+3}], v10 offset:{512+32*j}")
    for i in range(8):
        k(f"v_lshlrev_b32 v{XU+2*i}, 16, v{XR+i}")
        k(f"v_and_b32 v{XU+2*i+1}, 0xffff0000, v{XR+i}")
    k("s_cmp_eq_u32 s3, 0")
    k("s_cbranch_scc1 L_ut_done")
    MA_, WU, UA = 60, 68, 92
    k(f"""
    s_sub_u32 s38, s43, 1024
    v_add_u32 v14, s38, v2
    v_add_u32 v15, s38, v4
    v_add_u32 v16, s38, v5
    v_and_b32 v17, 15, v1
    v_lshrrev_b32 v18, 4, v1
    v_lshlrev_b32 v17, 10, v17
    v_lshl_add_u32 v17, v18, 4, v17
    v_add_u32 v17, {LDS_MODB}, v17
    s_mov_b32 s38, 0x00030003
    s_mov_b32 s39, 0x00030003
    """)
    for i in range(8):
        k(f"v_mov_b32 v{MA_+i}, 0")
    def uread(s):
        r = WU + 12 * (s & 1)
        k("s_mov_b64 exec, s[38:39]")
        k(f"ds_read_b128 v[{MA_+4*(s&1)}:{MA_+4*(s&1)+3}], v17 offset:{64*s}")
        k("s_mov_b64 exec, -1")
        for h in range(3):
            addr = w1_lds(s * 7) + 3 * h * 1024
            k(f"ds_read_b128 v[{r+4*h}:{r+4*h+3}], v{14 + (addr >> 16)} offset:{addr & 0xffff}")
    uread(0)
    for s in range(16):
        if s < 15:
            uread(s + 1)
            k("s_waitcnt lgkmcnt(4)")
        else:
            k("s_waitcnt lgkmcnt(0)")
        r = WU + 12 * (s & 1)
        for h in range(3):
            u_ = UA + 4 * h
            c = "0" if s == 0 else f"v[{u_}:{u_+3}]"
            k(f"v_mfma_f32_16x16x32_bf16 v[{u_}:{u_+3}], v[{MA_+4*(s&1)}:{MA_+4*(s&1)+3}], v[{r+4*h}:{r+4*h+3}], {c}")
    k("s_nop 5")
    for h in range(3):
        u_ = UA + 4 * h
        d = WU + 4 * h
        for i in range(2):
            bf16_round(k, 18 + i, u_ + i)
        for i in range(2):
            k(f"v_sub_f32 v{20+i}, v{u_+i}, v{18+i}")
        for i in range(2):
            k(f"v_cvt_pk_bf16_f32 v{d+i}, v{18+i}, v{20+i}")
        k(f"v_mov_b32 v{d+2}, 0")
        k(f"v_mov_b32 v{d+3}, 0")
        k(f"ds_write_b128 v15, v[{d}:{d+3}] offset:{LDS_UT + 3*h*1024 - 65536}")
    k.label("L_ut_done")
    stamp(k, 13)
    wait_edge(k, 1, 36, 32)
    stamp(k, 14)
    vm.n = 0
    oid = []
    for i in range(8):
        if i:
            k("s_add_u32 m0, m0, 4096")
            k("s_add_u32 s47, s47, 4096")
        oid.append(vm.op(f"buffer_load_dwordx4 v2, s[24:27], s47 offen {FL} lds"))
    AC, OFR = 20, 60
    chunks = [(0, 8), (8, 20), (20, 32)]
    for (c0, c1) in chunks:
        vm.wait(oid[c1 // 4 - 1])
        k("s_barrier")
        n = c1 - c0
        ahead = 6
        for s in range(c0, min(c1, c0 + ahead)):
            k(lds_rd(f"v[{OFR+4*(s%8)}:{OFR+4*(s%8)+3}]", LDS_OST + s * 1024))
        for s in range(c0, c1):
            issued = min(c1, s + ahead)
            k(f"s_waitcnt lgkmcnt({issued - 1 - s})")
            c = "0" if s == 0 else f"v[{AC}:{AC+15}]"
            k(f"v_mfma_f32_32x32x16_bf16 v[{AC}:{AC+15}], {wo_reg(s)}, v[{OFR+4*(s%8)}:{OFR+4*(s%8)+3}], {c}")
            if s + ahead < c1:
                s2 = s + ahead
                k(lds_rd(f"v[{OFR+4*(s2%8)}:{OFR+4*(s2%8)+3}]", LDS_OST + s2 * 1024))
    k("s_nop 11")
    stamp(k, 15)
    for i in range(8):
        k(f"v_pk_fma_f32 v[{AC+2*i}:{AC+2*i+1}], v[{GA+2*i}:{GA+2*i+1}], v[{AC+2*i}:{AC+2*i+1}], v[{XU+2*i}:{XU+2*i+1}]")
    for i in range(8):
        k(f"v_pk_mul_f32 v[{A2+2*i}:{A2+2*i+1}], v[{A2+2*i}:{A2+2*i+1}], v[{AC+2*i}:{AC+2*i+1}]")
    for i in range(8):
        k(f"v_cvt_pk_bf16_f32 v{60+i}, v{A2+2*i}, v{A2+2*i+1}")
    dual_begin(k)
    k(f"buffer_store_dwordx4 v[60:63], v12, s[24:27], s45 offen {DF}")
    k(f"buffer_store_dwordx4 v[64:67], v12, s[24:27], s45 offen offset:512 {DF}")
    k(f"v_pk_add_f32 v[14:15], v[{AC}:{AC+1}], v[{AC+2}:{AC+3}]")
    k(f"v_pk_mul_f32 v[16:17], v[{AC}:{AC+1}], v[{AC}:{AC+1}]")
    for i in range(1, 8):
        if i >= 2:
            k(f"v_pk_add_f32 v[14:15], v[14:15], v[{AC+2*i}:{AC+2*i+1}]")
        k(f"v_pk_fma_f32 v[16:17], v[{AC+2*i}:{AC+2*i+1}], v[{AC+2*i}:{AC+2*i+1}], v[16:17]")
    k("v_add_f32 v14, v14, v15")
    k("v_add_f32 v15, v16, v17")
    k("v_mov_b32 v16, v14")
    k("v_mov_b32 v17, v15")
    for i in range(2):
        k(f"v_cvt_pk_bf16_f32 v{68+i}, v{AC+2*i}, v{AC+2*i+1}")
    k("v_permlane32_swap_b32 v16, v14")
    k("v_permlane32_swap_b32 v17, v15")
    k("v_pk_add_f32 v[14:15], v[14:15], v[16:17]")
    k("s_mov_b32 exec_hi, 0")
    k(f"buffer_store_dwordx2 v[14:15], v13, s[24:27], s46 offen {DF}")
    k("s_mov_b32 exec_hi, -1")
    for i in range(2, 8):
        k(f"v_cvt_pk_bf16_f32 v{68+i}, v{AC+2*i}, v{AC+2*i+1}")
    k(f"buffer_store_dwordx4 v[68:71], v12, s[24:27], s44 offen {DF}")
    k(f"buffer_store_dwordx4 v[72:75], v12, s[24:27], s44 offen offset:512 {DF}")
    k("""
    s_lshr_b32 s40, s42, 2          ; E3 group
    s_and_b32 s41, s42, 3
    s_lshl_b32 s41, s41, 2
    s_lshr_b32 s43, s37, 3
    s_add_u32 s41, s41, s43         ; member
    """)
    signal(k, 2, 40, 41, 16, nafter=w2some(ND[1]), fl=DF)
    dual_end(k, 'e2')
    stamp(k, 16)
    ACC4, WF, ST, SB = 8, 64, 120, 136
    k(f"""
    s_lshl_b32 s40, s36, 1
    s_bfe_u32 s41, s37, 0x10001
    s_add_u32 s40, s40, s41        ; tb4
    s_lshl_b32 s44, s40, 2
    s_add_u32 s44, s44, s3         ; tok32
    s_lshl_b32 s45, s44, 15
    s_add_u32 s45, s45, {OFF_X2S}
    s_add_u32 s46, s45, 16384
    v_and_b32 v3, 15, v1
    v_lshrrev_b32 v152, 4, v1
    v_lshlrev_b32 v153, 3, v3
    v_lshl_add_u32 v153, v152, 10, v153
    s_lshl_b32 s47, s44, 12
    s_add_u32 s47, s47, {OFF_ST2}
    s_mul_i32 s42, s44, {112*1024}
    s_mul_i32 s43, s57, {7*1024}
    s_add_u32 s42, s42, s43
    s_add_u32 s42, s42, {OFF_H}
    s_add_u32 s43, s42, 4096
    """)
    def wread(s):
        f = WF + 28 * (s & 1)
        return [lds_rd(f"v[{f+4*i}:{f+4*i+3}]", w1_lds(s * 7 + i)) for i in range(7)]
    for x in wread(0): k(x)
    wait_edge(k, 2, 40, 16)
    wbl2(k, "a")
    stamp(k, 17)
    vm.n = 0
    xid = []
    def xload():
        s = len(xid)
        if s >= 16:
            return
        if s and s % 4 == 0:
            k("s_add_u32 s45, s45, 4096")
            k("s_add_u32 s46, s46, 4096")
        vm.op(f"buffer_load_dwordx4 {wo_reg(2*s)}, v2, s[24:27], s45 offen offset:{(s%4)*1024} {FL}")
        xid.append(vm.op(f"buffer_load_dwordx4 {wo_reg(2*s+1)}, v2, s[24:27], s46 offen offset:{(s%4)*1024} {FL}"))
    for s in range(int(os.environ.get("P4D", "6"))):
        xload()
    stl = [f"buffer_load_dwordx2 v[{ST+8*j+2*pp}:{ST+8*j+2*pp+1}], v153, s[24:27], s47 offen offset:{256*pp+128*j} {FL}"
           for j in range(2) for pp in range(4)]
    fill = L()
    for j in range(2):
        b = ST + 8 * j
        fill(f"v_pk_add_f32 v[{b}:{b+1}], v[{b}:{b+1}], v[{b+2}:{b+3}]")
        fill(f"v_pk_add_f32 v[{b+4}:{b+5}], v[{b+4}:{b+5}], v[{b+6}:{b+7}]")
        fill(f"v_pk_add_f32 v[{b}:{b+1}], v[{b}:{b+1}], v[{b+4}:{b+5}]")
    regs = [ST, ST + 1, ST + 8, ST + 9]
    tmp = [ST + 2, ST + 3, ST + 10, ST + 11]
    for op in ("v_permlane16_swap_b32", "v_permlane32_swap_b32"):
        for r, t in zip(regs, tmp):
            fill(f"v_mov_b32 v{t}, v{r}")
        fill("s_nop 1")
        for r, t in zip(regs, tmp):
            fill(f"{op} v{t}, v{r}")
        for r, t in zip(regs, tmp):
            fill(f"v_add_f32 v{r}, v{t}, v{r}")
    for j in range(2):
        b = ST + 8 * j
        ln_stats_finish(fill, b, b + 1, b + 4, b + 5, None, std_out=b + 6)
        fill(f"v_cvt_pk_bf16_f32 v{SB+4*j}, -v{b+4}, -v{b+4}")
        fill(f"v_cvt_pk_bf16_f32 v{SB+4*j+1}, v{b+6}, v{b+6}")
        fill(f"v_mov_b32 v{SB+4*j+2}, 0")
        fill(f"v_mov_b32 v{SB+4*j+3}, 0")
    fill(f"""
    v_lshlrev_b32 v154, 2, v3
    s_lshl_b32 s41, s3, 7
    v_add_u32 v154, s41, v154
    v_add_u32 v154, {LDS_R}, v154
    """)
    for s in range(17):
        nxt = wread(s + 1) if s < 16 else []
        k((vm.wait_str(xid[s]) if s < 16 else "s_waitcnt") + " lgkmcnt(0)")
        if s == 9:
            vm.wait(sid)
        f = WF + 28 * (s & 1)
        n = 0
        for i in range(7):
            for j in range(2):
                a = ACC4 + 4 * (j * 7 + i)
                c = "0" if s == 0 else f"v[{a}:{a+3}]"
                bop = wo_reg(2 * s + j) if s < 16 else f"v[{SB+4*j}:{SB+4*j+3}]"
                k(f"v_mfma_f32_16x16x32_bf16 v[{a}:{a+3}], v[{f+4*i}:{f+4*i+3}], {bop}, {c}")
                if nxt:
                    k(nxt.pop(0))
                elif n == 8:
                    xload()
                elif n in (10, 12) and stl:
                    sid = vm.op(stl.pop(0))
                elif s >= 10 and n in (9, 11, 13) and len(w2_late) > ND[2]:
                    for y in w2_late.pop(0):
                        k(y)
                    vm.tick()
                if s >= 9 and fill:
                    k(fill.pop(0))
                n += 1
    assert not fill and len(w2_late) == ND[2], len(w2_late)
    stamp(k, 18)
    dual_begin(k)
    k(f"ds_write_b32 v154, v{ST+5}")
    k(f"ds_write_b32 v154, v{ST+13} offset:64")
    for i in range(7):
        t = WF + 4 * i
        for j in range(2):
            a = ACC4 + 4 * (j * 7 + i)
            k(f"v_cvt_pk_bf16_f32 v{t+2*j}, v{a}, v{a+1}")
            k(f"v_cvt_pk_bf16_f32 v{t+2*j+1}, v{a+2}, v{a+3}")
        for q in range(4):
            k(f"v_pk_max_i16 v{t+q}, v{t+q}, 0")
        if i:
            tp = WF + 4 * (i - 1)
            k(f"v_permlane16_swap_b32 v{tp}, v{tp+2}")
            k(f"v_permlane16_swap_b32 v{tp+1}, v{tp+3}")
            k(f"buffer_store_dwordx4 v[{tp}:{tp+3}], v2, s[24:27], s{42 if i-1 < 4 else 43} offen offset:{((i-1)%4)*1024} {DF}")
    tp = WF + 24
    k("s_nop 1")
    k(f"v_permlane16_swap_b32 v{tp}, v{tp+2}")
    k(f"v_permlane16_swap_b32 v{tp+1}, v{tp+3}")
    k(f"buffer_store_dwordx4 v[{tp}:{tp+3}], v2, s[24:27], s43 offen offset:2048 {DF}")
    ACC5, RB, DEPTH = 8, 72, 19
    G5, X5, R5 = 224, 240, 248
    k(f"""
    s_lshl_b32 s58, s36, 2
    s_and_b32 s59, s37, 3
    s_add_u32 s58, s58, s59         ; tb5
    s_lshl_b32 s58, s58, 1
    s_and_b32 s59, s3, 1
    s_add_u32 s58, s58, s59
    s_xor_b32 s59, s58, 1
    s_mul_i32 s44, s58, {112*1024}
    s_mul_i32 s45, s59, {112*1024}
    s_mul_i32 s46, s3, {28*1024}
    s_add_u32 s46, s46, {OFF_H}
    s_add_u32 s44, s44, s46
    s_add_u32 s45, s45, s46
    v_lshrrev_b32 v250, 5, v1
    v_and_b32 v251, 31, v1
    v_lshlrev_b32 v252, 4, v250
    s_and_b32 s46, s52, 7
    s_lshl_b32 s46, s46, 7
    s_add_u32 s46, s46, {LDS_VEC + 1024}
    v_add_u32 v252, s46, v252
    v_lshrrev_b32 v253, 4, v251
    v_lshlrev_b32 v253, 14, v253
    v_and_b32 v254, 15, v251
    v_lshl_add_u32 v253, v254, 4, v253
    v_lshl_add_u32 v253, v250, 8, v253
    s_lshl_b32 s47, s58, 15
    s_lshl_b32 s50, s52, 10
    s_add_u32 s47, s47, s50
    s_add_u32 s47, s47, {OFF_X2}
    s_and_b32 s50, s58, 3
    s_lshl_b32 s50, s50, 7
    s_add_u32 s50, s50, {LDS_R}
    v_lshlrev_b32 v254, 2, v251
    v_add_u32 v254, s50, v254
    """)
    for j in range(4):
        k(f"ds_read_b128 v[{G5+4*j}:{G5+4*j+3}], v252 offset:{32*j}")
    k(f"buffer_load_dwordx4 v[{X5}:{X5+3}], v253, s[24:27], s47 offen {FL}")
    k(f"buffer_load_dwordx4 v[{X5+4}:{X5+7}], v253, s[24:27], s47 offen offset:512 {FL}")
    k(f"""
    v_lshlrev_b32 v253, 10, v251
    v_lshl_add_u32 v253, v250, 4, v253
    s_lshl_b32 s47, s58, 15
    s_lshl_b32 s50, s52, 6
    s_add_u32 s47, s47, s50
    """)
    stamp(k, 19)
    signal(k, 3, 40, 57, 16, nafter=2 + w2some(ND[2]), fl=DF)
    dual_end(k, 'e3')
    stamp(k, 20)
    k(f"ds_read_b32 v{R5}, v254")
    k("s_waitcnt lgkmcnt(0)")
    for i in range(16):
        k(f"v_mul_f32 v{G5+i}, v{R5}, v{G5+i}")
    stamp(k, 21)
    wait_edge(k, 3, 40, 16)
    wbl2(k, "b")
    stamp(k, 22)
    vm.n = 0
    hid = []
    def hload():
        s = len(hid)
        if s >= 28:
            return
        r = RB + 8 * (s % DEPTH)
        if s and s % 4 == 0:
            k("s_add_u32 s44, s44, 4096")
            k("s_add_u32 s45, s45, 4096")
        vm.op(f"buffer_load_dwordx4 v[{r}:{r+3}], v2, s[24:27], s44 offen offset:{(s%4)*1024} {FL}")
        hid.append(vm.op(f"buffer_load_dwordx4 v[{r+4}:{r+7}], v2, s[24:27], s45 offen offset:{(s%4)*1024} {FL}"))
    for s in range(int(os.environ.get("P5D", "8"))):
        hload()
    for s in range(28):
        vm.wait(hid[s])
        r = RB + 8 * (s % DEPTH)
        A0, A1 = f"a[{8*s}:{8*s+3}]", f"a[{8*s+4}:{8*s+7}]"
        B0, B1 = f"v[{r}:{r+3}]", f"v[{r+4}:{r+7}]"
        for t, (a, b) in enumerate(((A0, B0), (A0, B1), (A1, B0), (A1, B1))):
            acc = ACC5 + 16 * t
            c = "0" if s == 0 else f"v[{acc}:{acc+15}]"
            k(f"v_mfma_f32_32x32x16_bf16 v[{acc}:{acc+15}], {a}, {b}, {c}")
            if t == 0:
                hload()
    XU5, TMP5 = 72, 88
    stamp(k, 23)
    for t in (1, 2, 3):
        k(f"""
        s_xor_b32 s56, s3, {t}
        s_mul_i32 s56, s56, 12288
        s_add_u32 s56, s56, {(t-1)*4096}
        v_add_u32 v{3+t}, s56, v2
        """)
    for t in (1, 2, 3):
        for q in range(4):
            k(f"ds_write_b128 v{3+t}, v[{ACC5+16*t+4*q}:{ACC5+16*t+4*q+3}] offset:{q*1024}")
    for i in range(8):
        k(f"v_lshlrev_b32 v{XU5+2*i}, 16, v{X5+i}")
        k(f"v_and_b32 v{XU5+2*i+1}, 0xffff0000, v{X5+i}")
    k(f"""
    s_mul_i32 s56, s3, 12288
    v_add_u32 v3, s56, v2
    s_waitcnt lgkmcnt(0)
    s_barrier
    """)
    for i in range(12):
        k(f"ds_read_b128 v[{TMP5+4*i}:{TMP5+4*i+3}], v3 offset:{i*1024}")
    for sl in range(3):
        k(f"s_waitcnt lgkmcnt({8-4*sl})")
        for i in range(8):
            k(f"v_pk_add_f32 v[{ACC5+2*i}:{ACC5+2*i+1}], v[{ACC5+2*i}:{ACC5+2*i+1}], v[{TMP5+16*sl+2*i}:{TMP5+16*sl+2*i+1}]")
    stamp(k, 24)
    for i in range(8):
        k(f"v_pk_fma_f32 v[{ACC5+2*i}:{ACC5+2*i+1}], v[{G5+2*i}:{G5+2*i+1}], v[{ACC5+2*i}:{ACC5+2*i+1}], v[{XU5+2*i}:{XU5+2*i+1}]")
    for i in range(8):
        k(f"v_cvt_pk_bf16_f32 v{TMP5+i}, v{ACC5+2*i}, v{ACC5+2*i+1}")
    k("s_nop 0")
    for p in range(2):
        t = TMP5 + 4 * p
        k(f"v_permlane32_swap_b32 v{t}, v{t+2}")
        k(f"v_permlane32_swap_b32 v{t+1}, v{t+3}")
        k(f"buffer_store_dwordx4 v[{t}:{t+3}], v253, s[32:35], s47 offen offset:{32*p} {os.environ.get('OUTFL', '')}")
    endpgm(k)
    k.label("L_att_fallback")
    k(f"""
    s_mov_b32 s42, 0
    s_mov_b32 s43, s47
    v_mov_b32 v6, 0xff800000
    v_mov_b32 v7, 0xff800000
    """)
    k.label("L_att_maxloop")
    k(f"""
    buffer_load_dwordx4 v[{KF}:{KF+3}], v2, s[24:27], s43 offen {FL}
    s_add_u32 s43, s43, 2048
    s_waitcnt vmcnt(0)
    v_mfma_f32_32x32x16_bf16 v[{S}:{S+15}], v[{KF}:{KF+3}], v[{Q}:{Q+3}], 0
    v_mfma_f32_32x32x16_bf16 v[{S+16}:{S+31}], v[{KF}:{KF+3}], v[{Q+4}:{Q+7}], 0
    s_nop 10
    """)
    att_max16(k, 6, S, False)
    att_max16(k, 7, S + 16, False)
    k(f"""
    s_add_u32 s42, s42, 1
    s_cmp_lt_u32 s42, 64
    s_cbranch_scc1 L_att_maxloop
    s_nop 0
    v_permlane32_swap_b32 v6, v7
    v_max_f32 v6, v6, v7
    v_mov_b32 v7, v6
    s_nop 1
    v_permlane32_swap_b32 v6, v7
    v_sub_f32 v6, 0, v6
    v_sub_f32 v7, 0, v7
    """)
    for i in range(16):
        k(f"v_mov_b32 v{C+i}, v6")
        k(f"v_mov_b32 v{C+16+i}, v7")
        k(f"v_mov_b32 v{O+i}, 0")
        k(f"v_mov_b32 v{O+16+i}, 0")
    k("s_mov_b32 s42, 0")
    k("s_mov_b32 s43, s47")
    k.label("L_att_redo")
    k(f"""
    buffer_load_dwordx4 v[{KF}:{KF+3}], v2, s[24:27], s43 offen {FL}
    s_mov_b64 exec, s[48:49]
    buffer_load_dwordx4 v[{VF}:{VF+3}], v3, s[24:27], s43 offen offset:1024 {FL}
    buffer_load_dwordx4 v[{VF+4}:{VF+7}], v3, s[24:27], s43 offen offset:1536 {FL}
    s_mov_b64 exec, -1
    s_add_u32 s43, s43, 2048
    s_waitcnt vmcnt(0)
    v_mfma_f32_32x32x16_bf16 v[{S}:{S+15}], v[{KF}:{KF+3}], v[{Q}:{Q+3}], v[{C}:{C+15}]
    v_mfma_f32_32x32x16_bf16 v[{S+16}:{S+31}], v[{KF}:{KF+3}], v[{Q+4}:{Q+7}], v[{C+16}:{C+31}]
    s_nop 10
    """)
    for b in range(2):
        for i in range(16):
            k(f"v_exp_f32 v{S+16*b+i}, v{S+16*b+i}")
        k("s_nop 0")
        for j in range(8):
            k(f"v_cvt_pk_bf16_f32 v{P+j}, v{S+16*b+2*j}, v{S+16*b+2*j+1}")
        k("s_nop 1")
        for h in range(2):
            k(f"v_mfma_f32_32x32x16_bf16 v[{O+16*b}:{O+16*b+15}], v[{VF+4*h}:{VF+4*h+3}], v[{P+4*h}:{P+4*h+3}], v[{O+16*b}:{O+16*b+15}]")
    k(f"""
    s_add_u32 s42, s42, 1
    s_cmp_lt_u32 s42, 64
    s_cbranch_scc1 L_att_redo
    s_nop 10
    s_branch L_att_fin
    """)
    k.label("L_xid_retry")
    k(f"""
    s_mov_b32 s39, 0x40000
    s_mov_b32 s53, {OFF_XID}
    """)
    k.label("L_xid_spin")
    k(f"""
    buffer_load_dwordx4 v[150:153], v2, s[24:27], s53 offen {FL}
    buffer_load_dwordx4 v[154:157], v2, s[24:27], s53 offen offset:32 {FL}
    s_sub_u32 s39, s39, 1
    s_waitcnt vmcnt(0)
    v_min_u32 v158, v150, v151
    v_min_u32 v159, v152, v153
    v_min_u32 v158, v158, v159
    v_xor_b32 v154, v154, v150
    v_xor_b32 v155, v155, v151
    v_cmp_eq_u32 vcc, 0, v158
    v_xor_b32 v156, v156, v152
    v_xor_b32 v157, v157, v153
    s_cbranch_scc1 L_xid_ok
    s_sleep 32
    s_cbranch_vccnz L_xid_spin
    s_branch L_xid_ok
    """)
    k(f"""
    L_mid_retry:
    s_mov_b32 s39, 0x40000
    s_mov_b32 s53, {OFF_XID + 2048}
    L_mid_spin:
    buffer_load_dwordx4 v[150:153], v2, s[24:27], s53 offen {FL}
    s_sub_u32 s39, s39, 1
    s_waitcnt vmcnt(0)
    v_min_u32 v158, v150, v151
    v_min_u32 v159, v152, v153
    v_min_u32 v158, v158, v159
    v_cmp_eq_u32 vcc, 0, v158
    s_cbranch_scc1 L_mid_ok
    s_sleep 32
    s_cbranch_vccnz L_mid_spin
    s_branch L_mid_ok
    """)
    for blk in OOL:
        k.lines += blk
    if DIAG:
        marks = {"L_zspin:": 1, "L_mod_spin:": 2, "L_dbg_spin:": 4, "L_xid_retry:": 8, "L_mid_retry:": 16}
        out = []
        for l in k.lines:
            out.append(l)
            if l in marks:
                out.append(f"s_or_b32 s91, s91, {marks[l]}")
        k.lines = out
    k.label(f"L_end_{k.name}")
    k("s_endpgm")
    k(".fill (65536 + L_pc_here - .) / 4 + 64, 4, 0xbf810000")
    return k, (256, 256, 163840)


def build(path=OUT):
    ks = [mega()]
    errs = []
    for k, _ in ks:
        errs += k.check()
    for e in errs:
        print(e)
    ref = open(OUT + ".ref").read().split("\n")
    hdr = [l for l in ref if l.startswith(";") and "@launch" not in l and "Override" not in l and "grid=ceil" not in l]
    out = "\n".join(hdr) + "\n"
    for k, (g, b, lds) in ks:
        kn = f"kernel={k.name} " if os.environ.get("ASLIST") else ""
        out += f"; @launch {kn}grid=({g},1,1) block=({b},1,1) lds={lds}\n"
    out += '.amdgcn_target "amdgcn-amd-amdhsa--gfx950"\n'
    codes, kds = zip(*[k.text() for k, _ in ks])
    out += "".join(codes)
    out += '.section .rodata,"a"\n' + "".join(kds)
    open(path, "w").write(out)
    print("wrote", path, len(out), "bytes;", len(errs), "checker errors")
    return len(errs)


if __name__ == "__main__":
    sys.exit(1 if build(sys.argv[1] if len(sys.argv) > 1 else OUT) else 0)
```

```python
import sys
sys.path.insert(0, "gen")
from asmlib import Kern

NAME = "adaLN_cond__mha_block__dense_activation_relu__prompt"
OUT = f"cdna_kernels/{NAME}.s"

MB = 1 << 20
OFF_MOD = 0x0
OFF_UT = 0x4000
OFF_R2 = 0x8000
OFF_XHAT = 0x10000
OFF_WQKV = OFF_XHAT + 2 * MB
OFF_Q = OFF_WQKV + 3 * MB // 2
OFF_KV = OFF_Q + 2 * MB
OFF_O = OFF_KV + 4 * MB
OFF_WO = OFF_O + 2 * MB
OFF_X2 = OFF_WO + MB // 2
OFF_X2S = OFF_X2 + 2 * MB
OFF_ST2 = OFF_X2S + 2 * MB
OFF_W1 = OFF_ST2 + MB // 4
OFF_H = OFF_W1 + 7 * MB // 4
OFF_W2 = OFF_H + 7 * MB
OFF_FLAG = OFF_W2 + 7 * MB // 4
OFF_XID = OFF_FLAG + MB // 4
WS_USED = OFF_XID + 4096
OFF_MODB = 0x3000

import os
DIAG = int(os.environ.get("DIAG", "0"))
OFF_DIAG = (WS_USED + 0xfffff) // MB * MB
if DIAG:
    WS_USED = OFF_DIAG + 8 * MB
QSCALE = 0x3eb8aa3b

P_X, P_WQKV, P_WO, P_BX, P_W1, P_W2, P_C, P_WMOD, P_OUT, P_WS = 4, 6, 8, 10, 12, 14, 16, 18, 20, 22
S_WS = 24
S_W = 3


def srd(k, d, p, size):
    k(f"""
    s_mov_b32 s{d}, s{p}
    s_mov_b32 s{d+1}, s{p+1}
    s_mov_b32 s{d+2}, {size:#x}
    s_mov_b32 s{d+3}, 0x00020000
    """)


NST = 28


def stamp(k, i):
    if DIAG == 1:
        k(f"s_waitcnt lgkmcnt(0)")
        k(f"s_memtime s[94:95]")
        k(f"s_waitcnt lgkmcnt(0)")
        k(f"s_mov_b32 s{64+i}, s94")


def endpgm(k):
    if os.environ.get("PADEND"):
        k(f"""
        s_waitcnt vmcnt(0) lgkmcnt(0)
        s_cmp_lg_u32 s2, {os.environ.get("PADWG", "s2")}
        s_cbranch_scc1 L_padout
        L_padend:
        s_memrealtime s[96:97]
        s_waitcnt lgkmcnt(0)
        s_sub_u32 s96, s96, s62
        s_cmp_lt_u32 s96, {int(os.environ["PADEND"])}
        s_cbranch_scc1 L_padend
        L_padout:
        s_endpgm
        """)
        return
    if DIAG and os.environ.get("DBGST"):
        sel = [int(x) for x in os.environ["DBGST"].split(",")]
        k(f"""
        s_waitcnt vmcnt(0) lgkmcnt(0)
        s_memtime s[94:95]
        s_memrealtime s[96:97]
        s_load_dwordx2 s[4:5], s[0:1], 72
        s_waitcnt lgkmcnt(0)
        s_mov_b32 s6, 256
        s_mov_b32 s7, 0x00020000
        s_lshl_b32 s92, s3, 8
        s_add_u32 s92, s92, s2
        s_cmp_lg_u32 s92, 100
        s_cbranch_scc1 L_dbgst_skip
        s_mov_b64 exec, 1
        v_mov_b32 v0, 0
        s_sub_u32 s96, s96, s62
        s_sub_u32 s94, s94, s60
        """)
        regs = [96, 94]
        for i in sel:
            k(f"s_sub_u32 s{64+i}, s{64+i}, s60")
            regs.append(64 + i)
        for q in range(3):
            for i in range(4):
                k(f"v_mov_b32 v{4+i}, s{regs[4*q+i]}")
            k(f"buffer_store_dwordx4 v[4:7], v0, s[4:7], 0 offen offset:{16+16*q}")
            k("s_nop 1")
        k("L_dbgst_skip:")
    elif DIAG:
        kid = getattr(k, 'kid', None) or int(k.name[1])
        k(f"""
        s_waitcnt vmcnt(0) lgkmcnt(0)
        s_memtime s[94:95]
        s_memrealtime s[96:97]
        s_waitcnt lgkmcnt(0)
        s_mov_b64 exec, 1
        s_lshl_b32 s92, s2, 3
        s_add_u32 s92, s92, s3
        s_lshl_b32 s92, s92, 7
        s_add_u32 s92, s92, {OFF_DIAG + kid * MB}
        v_mov_b32 v0, 0
        """)
        regs = [62, 96, 60, 94] + [64 + i for i in range(NST)]
        for q in range(8):
            for i in range(4):
                k(f"v_mov_b32 v{4+i}, s{regs[4*q+i]}")
            k(f"buffer_store_dwordx4 v[4:7], v0, s[24:27], s92 offen offset:{16*q}")
            k("s_nop 1")
    k("s_endpgm")


def prologue(k, nwg):
    if DIAG:
        k("s_memtime s[60:61]")
        k("s_memrealtime s[62:63]")
        for i in range(NST):
            k(f"s_mov_b32 s{64+i}, 0")
    k(f"""
    s_cmp_ge_u32 s2, {nwg}
    s_cbranch_scc1 L_end_{k.name}
    s_load_dwordx16 s[4:19], s[0:1], 0
    s_load_dwordx2 s[20:21], s[0:1], 64
    s_load_dwordx2 s[22:23], s[0:1], 80
    v_lshrrev_b32 v2, 6, v0
    v_and_b32 v1, 63, v0
    v_readfirstlane_b32 s3, v2
    """)


def prologue_wait(k):
    k("s_waitcnt lgkmcnt(0)")
    srd(k, S_WS, P_WS, WS_USED)
    stamp(k, 0)


def epilogue(k):
    endpgm(k)
    k.label(f"L_end_{k.name}")
    k("s_endpgm")


def bf16_round(k, d, s):
    k(f"v_cvt_pk_bf16_f32 v{d}, v{s}, v{s}")
    k(f"v_and_b32 v{d}, 0xffff0000, v{d}")


def allreduce64(k, regs, tmp):
    for ror in (1, 2, 4, 8):
        for r in regs:
            k(f"v_add_f32_dpp v{r}, v{r}, v{r} row_ror:{ror} row_mask:0xf bank_mask:0xf")
        if len(regs) < 3:
            k(f"s_nop {2 - len(regs)}")
    for op in ("v_permlane16_swap_b32", "v_permlane32_swap_b32"):
        for r, t in zip(regs, tmp):
            k(f"v_mov_b32 v{t}, v{r}")
        k("s_nop 1")
        for r, t in zip(regs, tmp):
            k(f"{op} v{t}, v{r}")
        for r, t in zip(regs, tmp):
            k(f"v_add_f32 v{r}, v{t}, v{r}")


def role_mod(k, sj):
    srd(k, 28, P_WMOD, 512 * 3072 * 2)
    srd(k, 32, P_C, 1024)
    k(f"""
    v_lshlrev_b32 v2, 2, v0
    v_mov_b32 v3, 0
    s_mov_b32 s40, {OFF_XID}
    buffer_store_dword v3, v2, s[24:27], s40 offen
    v_lshlrev_b32 v2, 1, v0
    buffer_load_ushort v4, v2, s[32:35], 0 offen
    v_lshrrev_b32 v3, 2, v0
    v_and_b32 v5, 3, v0
    v_mul_u32_u24 v6, 6144, v3
    v_lshl_add_u32 v6, v5, 4, v6
    s_lshl_b32 s40, s{sj}, 6
    s_add_u32 s41, s40, {128*6144}
    s_add_u32 s42, s40, {256*6144}
    s_add_u32 s43, s40, {384*6144}
    buffer_load_dwordx4 v[8:11], v6, s[28:31], s40 offen
    buffer_load_dwordx4 v[12:15], v6, s[28:31], s41 offen
    buffer_load_dwordx4 v[16:19], v6, s[28:31], s42 offen
    buffer_load_dwordx4 v[20:23], v6, s[28:31], s43 offen
    s_waitcnt vmcnt(4)
    v_lshlrev_b32 v4, 16, v4
    v_mul_f32 v7, 0xbfb8aa3b, v4
    v_exp_f32 v7, v7
    s_nop 0
    v_add_f32 v7, 1.0, v7
    v_rcp_f32 v7, v7
    s_nop 0
    v_mul_f32 v7, v4, v7
    """)
    bf16_round(k, 7, 7)
    k("""
    v_lshlrev_b32 v2, 2, v0
    ds_write_b32 v2, v7
    s_waitcnt lgkmcnt(0)
    s_barrier
    v_lshlrev_b32 v2, 2, v3
    ds_read_b32 v24, v2
    ds_read_b32 v25, v2 offset:512
    ds_read_b32 v26, v2 offset:1024
    ds_read_b32 v27, v2 offset:1536
    """)
    for p in range(4):
        k(f"s_waitcnt vmcnt({3-p}) lgkmcnt({3-p})")
        for i in range(4):
            src = 8 + 4 * p + i
            k(f"v_lshlrev_b32 v40, 16, v{src}")
            k(f"v_and_b32 v41, 0xffff0000, v{src}")
            op = "v_mul_f32" if p == 0 else "v_fmac_f32"
            k(f"{op} v{32+2*i}, v{24+p}, v40")
            k(f"{op} v{33+2*i}, v{24+p}, v41")
    k("s_nop 1")
    for ror in (4, 8):
        for r in range(32, 40):
            k(f"v_add_f32_dpp v{r}, v{r}, v{r} row_ror:{ror} row_mask:0xf bank_mask:0xf")
    k("""
    v_lshrrev_b32 v2, 4, v0
    v_lshlrev_b32 v2, 7, v2
    v_lshl_add_u32 v2, v5, 5, v2
    ds_write_b128 v2, v[32:35] offset:2048
    ds_write_b128 v2, v[36:39] offset:2064
    s_waitcnt lgkmcnt(0)
    s_barrier
    s_cmp_lg_u32 s3, 0
    """)
    k(f"s_cbranch_scc1 L_end_{k.name}")
    k("""
    v_and_b32 v3, 31, v1
    v_lshrrev_b32 v2, 5, v1
    v_lshlrev_b32 v2, 11, v2
    v_lshl_add_u32 v2, v3, 2, v2
    """)
    for i in range(16):
        k(f"ds_read_b32 v{8+i}, v2 offset:{2048+128*i}")
        if i == 7:
            k("s_waitcnt lgkmcnt(0)")
    k("s_waitcnt lgkmcnt(0)")
    n = 16
    while n > 1:
        for i in range(n // 2):
            k(f"v_add_f32 v{8+i}, v{8+i}, v{8+i+n//2}")
        n //= 2
    k("""
    v_mov_b32 v9, v8
    s_nop 1
    v_permlane32_swap_b32 v9, v8
    v_add_f32 v8, v9, v8
    """)
    bf16_round(k, 8, 8)
    k(f"""
    s_lshr_b32 s40, s{sj}, 4
    s_cmp_eq_u32 s40, 1
    s_cselect_b32 s41, 1.0, 0
    s_cmp_eq_u32 s40, 4
    s_cselect_b32 s41, 1.0, s41
    v_add_f32 v8, s41, v8
    """)
    bf16_round(k, 8, 8)
    k(f"""
    v_lshlrev_b32 v3, 2, v3
    s_lshl_b32 s40, s{sj}, 7
    s_add_u32 s40, s40, {OFF_MOD}
    buffer_store_dword v8, v3, s[24:27], s40 offen
    """)
    k(f"""
    s_lshr_b32 s40, s{sj}, 4
    s_sub_u32 s40, 4, s40
    s_cmp_gt_u32 s40, 1
    s_cbranch_scc1 L_k0_mod_done
    s_lshl_b32 s40, s40, 10
    s_and_b32 s41, s{sj}, 15
    s_lshl_b32 s41, s41, 6
    s_add_u32 s40, s40, s41
    s_add_u32 s40, s40, {OFF_MODB}
    v_and_b32 v3, 31, v1
    v_lshrrev_b32 v4, 4, v3
    v_lshlrev_b32 v4, 5, v4
    v_bfe_u32 v5, v3, 2, 1
    v_lshl_add_u32 v4, v5, 4, v4
    v_bfe_u32 v5, v3, 3, 1
    v_lshl_add_u32 v4, v5, 3, v4
    v_and_b32 v5, 3, v3
    v_lshl_add_u32 v4, v5, 1, v4
    buffer_store_short_d16_hi v8, v4, s[24:27], s40 offen
    """)
    k.label("L_k0_mod_done")
    endpgm(k)


def ln_stats_finish(k, s, q, m_out, r_out, t0, std_out=None):
    k(f"""
    v_mul_f32 v{s}, 0x3b000000, v{s}
    v_mul_f32 v{q}, 0x3b000000, v{q}
    v_fma_f32 v{q}, -v{s}, v{s}, v{q}
    v_max_f32 v{q}, 0, v{q}
    """)
    bf16_round(k, m_out, s)
    bf16_round(k, q, q)
    k(f"v_add_f32 v{q}, 0x3727c5ac, v{q}")
    bf16_round(k, q, q)
    k(f"v_sqrt_f32 v{q}, v{q}")
    k("s_nop 0")
    d = std_out if std_out is not None else t0
    bf16_round(k, d, q)
    k(f"v_rcp_f32 v{r_out}, v{d}")
    k("s_nop 0")


def role_ln(k, si):
    srd(k, 28, P_X, 2048 * 1024)
    k(f"""
    s_lshl_b32 s40, s{si}, 3
    s_add_u32 s40, s40, s3
    s_lshl_b32 s40, s40, 8
    s_add_u32 s40, s40, {OFF_FLAG}
    v_lshlrev_b32 v2, 2, v1
    v_mov_b32 v3, 0
    buffer_store_dword v3, v2, s[24:27], s40 offen
    """)
    k(f"""
    v_lshlrev_b32 v2, 4, v1
    s_lshl_b32 s40, s{si}, 14
    s_lshl_b32 s41, s3, 11
    s_add_u32 s40, s40, s41
    buffer_load_dwordx4 v[8:11], v2, s[28:31], s40 offen
    buffer_load_dwordx4 v[12:15], v2, s[28:31], s40 offen offset:1024
    s_add_u32 s40, s40, {OFF_XHAT}
    """)
    for row in range(2):
        k(f"s_waitcnt vmcnt({1-row})")
        b = 16 + 8 * row
        for i in range(4):
            k(f"v_lshlrev_b32 v{b+2*i}, 16, v{8+4*row+i}")
            k(f"v_and_b32 v{b+2*i+1}, 0xffff0000, v{8+4*row+i}")
        s, q = 32 + 2 * row, 33 + 2 * row
        k(f"v_add_f32 v{s}, v{b}, v{b+1}")
        k(f"v_mul_f32 v{q}, v{b}, v{b}")
        for i in range(1, 8):
            if i >= 2:
                k(f"v_add_f32 v{s}, v{s}, v{b+i}")
            k(f"v_fmac_f32 v{q}, v{b+i}, v{b+i}")
    k("s_nop 1")
    allreduce64(k, [32, 33, 34, 35], [36, 37, 38, 39])
    for row in range(2):
        s, q = 32 + 2 * row, 33 + 2 * row
        ln_stats_finish(k, s, q, 40, 41, 42)
        k("v_mul_f32 v40, v40, v41")
        b = 16 + 8 * row
        for i in range(8):
            k(f"v_fma_f32 v{b+i}, v{b+i}, v41, -v40")
        for i in range(4):
            k(f"v_cvt_pk_bf16_f32 v{8+4*row+i}, v{b+2*i}, v{b+2*i+1}")
        k(f"buffer_store_dwordx4 v[{8+4*row}:{11+4*row}], v2, s[24:27], s40 offen offset:{1024*row}")
    endpgm(k)


def role_relayout(k, tag, ptr, nrows, ncols, typ, sjob, ncg, lds_base=0):
    stride = ncols * 2
    srd(k, 28, ptr, nrows * stride)
    magic = (1 << 16) // ncg + 1
    k(f"""
    s_mul_i32 s40, s{sjob}, {magic}
    s_lshr_b32 s40, s40, 16
    s_mul_i32 s41, s40, {ncg}
    s_sub_u32 s41, s{sjob}, s41
    v_lshrrev_b32 v2, 3, v1
    v_and_b32 v3, 7, v1
    v_mul_u32_u24 v2, {stride}, v2
    v_lshl_add_u32 v2, v3, 4, v2
    s_mul_i32 s42, s40, {128*stride}
    s_lshl_b32 s43, s41, 7
    s_add_u32 s42, s42, s43
    s_mul_i32 s43, s3, {16*stride}
    s_add_u32 s42, s42, s43
    s_lshl_b32 s44, s3, 11
    s_add_u32 m0, s44, {lds_base}
    s_add_u32 s43, s42, {8*stride}
    buffer_load_dwordx4 v2, s[28:31], s42 offen lds
    s_add_u32 m0, s44, {lds_base+1024}
    s_nop 0
    buffer_load_dwordx4 v2, s[28:31], s43 offen lds
    """)
    k("""
    v_and_b32 v3, 15, v1
    v_lshrrev_b32 v4, 4, v1
    v_lshrrev_b32 v5, 2, v3
    v_and_b32 v6, 3, v3
    v_lshlrev_b32 v6, 3, v6
    v_lshl_add_u32 v6, v5, 7, v6
    v_and_b32 v7, 1, v4
    v_lshrrev_b32 v8, 1, v4
    """)
    if typ == "A":
        k("v_lshl_add_u32 v6, v4, 10, v6")
        second = 4 * 128
    elif typ == "C":
        k("v_lshl_add_u32 v6, v8, 11, v6")
        k("v_lshl_add_u32 v6, v7, 9, v6")
        second = 8 * 128
    elif typ == "B":
        k("v_lshl_add_u32 v6, v7, 5, v6")
        k("v_lshl_add_u32 v6, v8, 9, v6")
        second = 8 * 128
    elif typ == "D":
        k("v_lshl_add_u32 v6, v7, 5, v6")
        k("v_lshl_add_u32 v6, v8, 10, v6")
        second = 4 * 128
    if typ in "AC":
        k(f"""
        s_lshr_b32 s45, s3, 1
        s_and_b32 s46, s3, 1
        s_lshl_b32 s47, s45, 12
        s_lshl_b32 s48, s46, 6
        s_add_u32 s47, s47, s48
        s_add_u32 s47, s47, {lds_base}
        v_add_u32 v6, s47, v6
        s_lshl_b32 s48, s40, 2
        s_add_u32 s45, s45, s48
        s_lshl_b32 s48, s41, 2
        s_lshl_b32 s46, s46, 1
        s_add_u32 s46, s46, s48
        """)
        frag2 = 32
        for f in range(2):
            sd = 50 + f
            if f:
                k("s_add_u32 s46, s46, 1")
            if typ == "A":
                k(f"""
                s_and_b32 s48, s46, 31
                s_lshl_b32 s48, s48, 4
                s_add_u32 s48, s48, s45
                s_mul_i32 s48, s48, 3
                s_lshr_b32 s49, s46, 5
                s_add_u32 s48, s48, s49
                s_lshl_b32 s48, s48, 10
                s_add_u32 s{sd}, s48, {OFF_WQKV}
                """)
            else:
                k(f"""
                s_mul_i32 s48, s46, 9363
                s_lshr_b32 s48, s48, 16
                s_mul_i32 s49, s48, 7
                s_sub_u32 s49, s46, s49
                s_lshl_b32 s48, s48, 4
                s_add_u32 s48, s48, s45
                s_mul_i32 s48, s48, 7
                s_add_u32 s48, s48, s49
                s_lshl_b32 s48, s48, 10
                s_add_u32 s{sd}, s48, {OFF_W1}
                """)
    else:
        nks = nrows // 16
        off = OFF_WO if typ == "B" else OFF_W2
        k(f"""
        s_lshl_b32 s47, s3, 11
        s_add_u32 s47, s47, {lds_base}
        v_add_u32 v6, s47, v6
        s_lshl_b32 s45, s40, 3
        s_add_u32 s45, s45, s3
        s_mul_i32 s48, s41, {2*nks}
        s_add_u32 s48, s48, s45
        s_lshl_b32 s48, s48, 10
        s_add_u32 s50, s48, {off}
        s_add_u32 s51, s50, {nks*1024}
        """)
        frag2 = 64
    k(f"""
    v_lshlrev_b32 v2, 4, v1
    s_waitcnt vmcnt(0)
    s_barrier
    ds_read_b64_tr_b16 v[8:9], v6
    ds_read_b64_tr_b16 v[10:11], v6 offset:{second}
    ds_read_b64_tr_b16 v[12:13], v6 offset:{frag2}
    ds_read_b64_tr_b16 v[14:15], v6 offset:{frag2+second}
    s_waitcnt lgkmcnt(2)
    buffer_store_dwordx4 v[8:11], v2, s[24:27], s50 offen
    s_waitcnt lgkmcnt(0)
    buffer_store_dwordx4 v[12:15], v2, s[24:27], s51 offen
    """)
    endpgm(k)


def k0():
    k = Kern("k0_prep_kernel", nvgpr=48)
    roles = [("mod", 96), ("ln", 128), ("wqkv", 96), ("wo", 32), ("w1", 112), ("w2", 112)]
    total = sum(n for _, n in roles)
    prologue(k, total)
    prologue_wait(k)
    base = 0
    for name, n in roles:
        k(f"s_sub_u32 s39, s2, {base}")
        k(f"s_cmp_lt_u32 s2, {base+n}")
        k(f"s_cbranch_scc1 L_k0_{name}")
        base += n
    k("s_endpgm")
    k.label("L_k0_mod"); role_mod(k, 39)
    k.label("L_k0_ln"); role_ln(k, 39)
    k.label("L_k0_wqkv"); role_relayout(k, "wqkv", P_WQKV, 512, 1536, "A", 39, 24)
    k.label("L_k0_wo"); role_relayout(k, "wo", P_WO, 512, 512, "B", 39, 8)
    k.label("L_k0_w1"); role_relayout(k, "w1", P_W1, 512, 1792, "C", 39, 28)
    k.label("L_k0_w2"); role_relayout(k, "w2", P_W2, 1792, 512, "D", 39, 8)
    k.label(f"L_end_{k.name}")
    k("s_endpgm")
    return k, (total, 512, 16384)


def k1():
    k = Kern("k1_qkv_kernel", nvgpr=184, nagpr=192)
    prologue(k, 256)
    VA, VB, ROWS, TMP, ACC = 8, 16, 24, 88, 136
    FR = 104
    k(f"""
    s_and_b32 s40, s2, 7
    s_lshr_b32 s41, s2, 3
    s_lshr_b32 s42, s40, 1
    s_lshl_b32 s42, s42, 3
    s_and_b32 s43, s41, 7
    s_add_u32 s42, s42, s43        ; tb
    s_and_b32 s43, s40, 1
    s_lshl_b32 s43, s43, 2
    s_lshr_b32 s44, s41, 3
    s_add_u32 s43, s43, s44        ; cb
    s_lshl_b32 s43, s43, 2
    s_add_u32 s43, s43, s3         ; head
    v_lshlrev_b32 v2, 4, v1        ; lane*16
    v_lshlrev_b32 v3, 5, v1        ; lane*32
    s_lshl_b32 s44, s42, 16
    s_lshl_b32 s45, s3, 14
    s_add_u32 s44, s44, s45
    s_add_u32 s44, s44, {OFF_XHAT}
    s_mul_i32 s46, s43, {48*1024}
    s_add_u32 s46, s46, {OFF_WQKV}
    """)
    prologue_wait(k)
    k(f"""
    buffer_load_dwordx4 v[{VB}:{VB+3}], v3, s[24:27], 0 offen offset:{OFF_MOD}
    buffer_load_dwordx4 v[{VB+4}:{VB+7}], v3, s[24:27], 0 offen offset:{OFF_MOD+16}
    buffer_load_dwordx4 v[{VA}:{VA+3}], v3, s[24:27], 0 offen offset:{OFF_MOD+2048}
    buffer_load_dwordx4 v[{VA+4}:{VA+7}], v3, s[24:27], 0 offen offset:{OFF_MOD+2064}
    """)
    for r in range(16):
        if r and r % 4 == 0:
            k("s_add_u32 s44, s44, 4096")
        k(f"buffer_load_dwordx4 v[{ROWS+4*r}:{ROWS+4*r+3}], v2, s[24:27], s44 offen offset:{(r%4)*1024}")
    NW1 = 40
    def wload(i):
        if i and i % 4 == 0:
            k("s_add_u32 s46, s46, 4096")
        k(f"buffer_load_dwordx4 a[{4*i}:{4*i+3}], v2, s[24:27], s46 offen offset:{(i%4)*1024}")
    for i in range(NW1):
        wload(i)
    k(f"""
    v_and_b32 v4, 7, v1
    v_lshlrev_b32 v4, 4, v4
    v_lshl_add_u32 v4, v1, 8, v4
    v_add_u32 v4, s45, v4
    v_and_b32 v5, 15, v1
    v_lshrrev_b32 v6, 4, v1
    v_xor_b32 v7, v5, v6
    v_lshlrev_b32 v7, 4, v7
    v_lshl_add_u32 v6, v6, 8, v7
    v_xor_b32 v7, 64, v6
    """)
    stamp(k, 1)
    nw = NW1
    for r in range(16):
        k(f"s_waitcnt vmcnt({min(63, (15 - r) + nw)})")
        b = ROWS + 4 * r
        t = TMP + 8 * (r & 1)
        for i in range(4):
            k(f"v_lshlrev_b32 v{t+2*i}, 16, v{b+i}")
            k(f"v_and_b32 v{t+2*i+1}, 0xffff0000, v{b+i}")
        for i in range(4):
            k(f"v_pk_fma_f32 v[{t+2*i}:{t+2*i+1}], v[{t+2*i}:{t+2*i+1}], v[{VA+2*i}:{VA+2*i+1}], v[{VB+2*i}:{VB+2*i+1}]")
        for i in range(4):
            k(f"v_cvt_pk_bf16_f32 v{b+i}, v{t+2*i}, v{t+2*i+1}")
        k(f"v_xor_b32 v5, {r<<4}, v4")
        k(f"ds_write_b128 v5, v[{b}:{b+3}]")
        if nw < 48:
            wload(nw); nw += 1
    k("s_waitcnt lgkmcnt(0)")
    stamp(k, 2)
    k("s_barrier")
    stamp(k, 3)
    def aread(s):
        base = 6 + (s & 1)
        f = FR + 16 * (s & 1)
        for b in range(4):
            k(f"ds_read_b128 v[{f+4*b}:{f+4*b+3}], v{base} offset:{b*16384+s*1024}")
    aread(0)
    for s in range(16):
        if s < 15:
            aread(s + 1)
            k(f"s_waitcnt vmcnt({45-3*s}) lgkmcnt(4)")
        else:
            k("s_waitcnt vmcnt(0) lgkmcnt(0)")
        f = FR + 16 * (s & 1)
        for b in range(4):
            for which in range(3):
                acc = ACC + 4 * (which * 4 + b)
                w = f"a[{12*s+4*which}:{12*s+4*which+3}]"
                h = f"v[{f+4*b}:{f+4*b+3}]"
                c = "0" if s == 0 else f"v[{acc}:{acc+3}]"
                a_, b_ = (w, h) if which < 2 else (h, w)
                k(f"v_mfma_f32_16x16x32_bf16 v[{acc}:{acc+3}], {a_}, {b_}, {c}")
    stamp(k, 4)
    k(f"""
    v_and_b32 v5, 15, v1
    v_lshrrev_b32 v6, 4, v1
    v_and_b32 v7, 1, v6
    v_lshrrev_b32 v6, 1, v6
    v_lshlrev_b32 v5, 4, v5
    v_lshl_add_u32 v8, v6, 9, v5
    v_lshl_add_u32 v8, v7, 3, v8      ; q/k voffset
    v_lshl_add_u32 v9, v7, 8, v5
    v_lshl_add_u32 v9, v6, 3, v9      ; v voffset
    s_lshl_b32 s44, s43, 16
    s_lshl_b32 s45, s42, 11
    s_add_u32 s44, s44, s45
    s_add_u32 s44, s44, {OFF_Q}
    s_lshl_b32 s46, s43, 17
    s_lshl_b32 s45, s42, 12
    s_add_u32 s46, s46, s45
    s_add_u32 s46, s46, {OFF_KV}
    v_mov_b32 v10, {QSCALE:#x}
    """)
    for which in range(3):
        for b in range(4):
            acc = ACC + 4 * (which * 4 + b)
            t = 12 + 2 * (which * 4 + b)
            if which == 0:
                for i in range(4):
                    k(f"v_mul_f32 v{acc+i}, v10, v{acc+i}")
            k(f"v_cvt_pk_bf16_f32 v{t}, v{acc}, v{acc+1}")
            k(f"v_cvt_pk_bf16_f32 v{t+1}, v{acc+2}, v{acc+3}")
            if which == 0:
                k(f"buffer_store_dwordx2 v[{t}:{t+1}], v8, s[24:27], s44 offen offset:{(b>>1)*1024+(b&1)*256}")
            elif which == 1:
                k(f"buffer_store_dwordx2 v[{t}:{t+1}], v8, s[24:27], s46 offen offset:{(b>>1)*2048+(b&1)*256}")
            else:
                k(f"buffer_store_dwordx2 v[{t}:{t+1}], v9, s[24:27], s46 offen offset:{(b>>1)*2048+1024+(b&1)*512}")
    epilogue(k)
    return k, (256, 256, 65536)


def k2():
    k = Kern("k2_attn_kernel", nvgpr=112)
    prologue(k, 256)
    Q, KF, VF, S, P, O, C = 8, 12, 20, 36, 68, 76, 92
    k(f"""
    s_and_b32 s40, s2, 7
    s_lshr_b32 s41, s2, 3
    s_lshl_b32 s40, s40, 2
    s_and_b32 s42, s41, 3
    s_add_u32 s40, s40, s42        ; head
    s_lshr_b32 s41, s41, 2         ; qblock256
    s_lshl_b32 s41, s41, 3
    s_add_u32 s41, s41, s3         ; qblock32
    v_lshlrev_b32 v2, 4, v1        ; lane*16
    s_lshl_b32 s42, s40, 16
    s_lshl_b32 s43, s41, 10
    s_add_u32 s42, s42, s43
    s_add_u32 s42, s42, {OFF_Q}
    s_lshl_b32 s44, s40, 17
    s_lshl_b32 s45, s3, 10
    s_add_u32 s44, s44, s45
    s_add_u32 s44, s44, {OFF_KV}
    s_lshl_b32 s46, s41, 15
    s_lshl_b32 s47, s40, 10
    s_add_u32 s46, s46, s47
    s_add_u32 s46, s46, {OFF_O}
    """)
    prologue_wait(k)
    k(f"buffer_load_dwordx4 v[{Q}:{Q+3}], v2, s[24:27], s42 offen")
    for i in range(16):
        k(f"s_add_u32 m0, s45, {i*8192}")
        if i:
            k("s_add_u32 s44, s44, 8192")
        else:
            k("s_nop 0")
        k("buffer_load_dwordx4 v2, s[24:27], s44 offen lds")
    k(f"""
    v_and_b32 v3, 15, v1
    v_lshlrev_b32 v3, 4, v3
    v_lshrrev_b32 v4, 5, v1
    v_lshl_add_u32 v3, v4, 8, v3
    s_mov_b32 s48, 0x0000ffff
    s_mov_b32 s49, 0x0000ffff
    s_mov_b32 s52, 0
    """)
    for i in range(16):
        k(f"v_mov_b32 v{VF+i}, 0x3f803f80")
    stamp(k, 1)
    k("s_waitcnt vmcnt(15)")
    k("s_barrier")
    stamp(k, 2)
    k(f"""
    ds_read_b128 v[{KF}:{KF+3}], v2
    s_waitcnt lgkmcnt(0)
    v_mfma_f32_32x32x16_bf16 v[{S}:{S+15}], v[{KF}:{KF+3}], v[{Q}:{Q+3}], 0
    s_nop 15
    """)
    def max16(dst, b, first):
        if first:
            k(f"v_max3_f32 v{dst}, v{b}, v{b+1}, v{b+2}")
            k(f"v_max_f32 v{dst}, v{dst}, v{b+3}")
        else:
            k(f"v_max3_f32 v{dst}, v{dst}, v{b}, v{b+1}")
            k(f"v_max3_f32 v{dst}, v{dst}, v{b+2}, v{b+3}")
        for i in range(4, 16, 2):
            k(f"v_max3_f32 v{dst}, v{dst}, v{b+i}, v{b+i+1}")
    max16(5, S, True)
    k.label("L_k2_setmax")
    k("""
    v_mov_b32 v6, v5
    s_nop 1
    v_permlane32_swap_b32 v6, v5
    v_max_f32 v5, v5, v6
    v_sub_f32 v5, 0, v5
    """)
    for i in range(16):
        k(f"v_mov_b32 v{C+i}, v5")
    for i in range(16):
        k(f"v_mov_b32 v{O+i}, 0")
    stamp(k, 3)
    k(f"""
    v_mov_b32 v6, v2
    v_mov_b32 v7, v3
    ds_read_b128 v[{KF}:{KF+3}], v6
    ds_read_b128 v[{KF+4}:{KF+7}], v6 offset:2048
    s_mov_b64 exec, s[48:49]
    ds_read_b128 v[{VF}:{VF+3}], v7 offset:1024
    ds_read_b128 v[{VF+4}:{VF+7}], v7 offset:1536
    s_mov_b64 exec, -1
    s_waitcnt lgkmcnt(3)
    v_mfma_f32_32x32x16_bf16 v[{S}:{S+15}], v[{KF}:{KF+3}], v[{Q}:{Q+3}], v[{C}:{C+15}]
    s_mov_b32 s50, 0
    s_nop 7
    """)
    k.label("L_k2_loop")
    k(f"""
    s_cmp_lg_u32 s52, 0
    s_cbranch_scc1 L_k2_nobar
    s_cmp_eq_u32 s50, 0
    s_cbranch_scc0 L_k2_b2
    s_waitcnt vmcnt(12)
    s_barrier
    s_branch L_k2_nobar
    """)
    k.label("L_k2_b2")
    k(f"""
    s_cmp_eq_u32 s50, 3
    s_cbranch_scc0 L_k2_nobar
    s_waitcnt vmcnt(0)
    s_barrier
    """)
    k.label("L_k2_nobar")
    for u in range(4):
        cur, nxt = u & 1, (u + 1) & 1
        Sc, Sn = S + 16 * cur, S + 16 * nxt
        Kn = KF + 4 * nxt
        Kc = KF + 4 * cur
        Vc, Vn = VF + 8 * cur, VF + 8 * nxt
        k("s_waitcnt lgkmcnt(2)")
        k(f"v_mfma_f32_32x32x16_bf16 v[{Sn}:{Sn+15}], v[{Kn}:{Kn+3}], v[{Q}:{Q+3}], v[{C}:{C+15}]")
        k(f"ds_read_b128 v[{Kc}:{Kc+3}], v6 offset:{(u+2)*2048}")
        k("s_mov_b64 exec, s[48:49]")
        k(f"ds_read_b128 v[{Vn}:{Vn+3}], v7 offset:{(u+1)*2048+1024}")
        k(f"ds_read_b128 v[{Vn+4}:{Vn+7}], v7 offset:{(u+1)*2048+1536}")
        k("s_mov_b64 exec, -1")
        for half in range(2):
            b = Sc + 8 * half
            for i in range(8):
                k(f"v_exp_f32 v{b+i}, v{b+i}")
                if i >= 3 and i % 2 == 1:
                    j = (i - 3) // 2
                    k(f"v_cvt_pk_bf16_f32 v{P+4*half+j}, v{b+2*j}, v{b+2*j+1}")
            if half == 0:
                k("s_waitcnt lgkmcnt(3)")
            else:
                k("s_nop 0")
            k(f"v_cvt_pk_bf16_f32 v{P+4*half+3}, v{b+6}, v{b+7}")
            if half == 1 and u == 3:
                k("v_add_u32 v6, 0x2000, v6")
                k("v_add_u32 v7, 0x2000, v7")
            else:
                k("s_nop 1")
            k(f"v_mfma_f32_32x32x16_bf16 v[{O}:{O+15}], v[{Vc+4*half}:{Vc+4*half+3}], v[{P+4*half}:{P+4*half+3}], v[{O}:{O+15}]")
    k(f"""
    s_add_u32 s50, s50, 1
    s_cmp_lt_u32 s50, 16
    s_cbranch_scc1 L_k2_loop
    s_waitcnt lgkmcnt(0)
    s_nop 15
    """)
    stamp(k, 4)
    k(f"""
    s_mov_b32 s53, 0x53800000
    v_cmp_nge_f32 vcc, s53, v{O+8}
    s_cmp_lg_u32 s52, 0
    s_cbranch_scc1 L_k2_fin
    s_nop 3
    s_cmp_eq_u64 vcc, 0
    s_cbranch_scc1 L_k2_fin
    """)
    k(f"""
    s_mov_b32 s52, 1
    s_mov_b32 s50, 0
    v_mov_b32 v6, v2
    v_mov_b32 v5, 0xff800000
    """)
    k.label("L_k2_maxloop")
    k(f"""
    ds_read_b128 v[{KF}:{KF+3}], v6
    v_add_u32 v6, 0x800, v6
    s_waitcnt lgkmcnt(0)
    v_mfma_f32_32x32x16_bf16 v[{S}:{S+15}], v[{KF}:{KF+3}], v[{Q}:{Q+3}], 0
    s_nop 15
    """)
    max16(5, S, False)
    k(f"""
    s_add_u32 s50, s50, 1
    s_cmp_lt_u32 s50, 64
    s_cbranch_scc1 L_k2_maxloop
    s_branch L_k2_setmax
    """)
    k.label("L_k2_fin")
    k(f"v_rcp_f32 v5, v{O+8}")
    k("s_nop 0")
    for i in range(8):
        k(f"v_mul_f32 v{O+i}, v5, v{O+i}")
    for i in range(4):
        k(f"v_cvt_pk_bf16_f32 v{P+i}, v{O+2*i}, v{O+2*i+1}")
    k(f"buffer_store_dwordx4 v[{P}:{P+3}], v2, s[24:27], s46 offen")
    epilogue(k)
    return k, (256, 512, 131072 + 4096 + 1024)


ATT = dict(Q=8, KF=16, VF=20, S=36, P=68, O=76, C=108)


def att_unit(k, u, side, last=False):
    Q, KF, VF, S, P, O, C = (ATT[x] for x in ("Q", "KF", "VF", "S", "P", "O", "C"))
    blk = u & 1
    t = u >> 1
    Sc, Sp = S + 16 * blk, S + 16 * (blk ^ 1)
    def E(i): return f"v_exp_f32 v{Sc+i}, v{Sc+i}"
    def Cv(j, base=None):
        b = Sc if base is None else base
        return f"v_cvt_pk_bf16_f32 v{P+j}, v{b+2*j}, v{b+2*j+1}"
    def PV(uu, half):
        o = O + 16 * (uu & 1)
        v = VF + 8 * ((uu >> 1) & 1) + 4 * half
        c = "0" if (uu < 2 and half == 0) else f"v[{o}:{o+15}]"
        return f"v_mfma_f32_32x32x16_bf16 v[{o}:{o+15}], v[{v}:{v+3}], v[{P+4*half}:{P+4*half+3}], {c}"
    def QK(uu):
        b = uu & 1
        return f"v_mfma_f32_32x32x16_bf16 v[{S+16*b}:{S+16*b+15}], v[{KF}:{KF+3}], v[{Q+4*b}:{Q+4*b+3}], v[{C+16*b}:{C+16*b+15}]"
    seq = [E(0), E(1), Cv(7, Sp) if u > 0 else None, E(2), Cv(0), E(3), PV(u - 1, 1) if u > 0 else None,
           E(4), Cv(1), E(5), E(6), Cv(2), E(7), QK(u + 1) if not last else None,
           E(8), Cv(3), E(9), E(10), Cv(4), E(11), PV(u, 0), E(12), Cv(5), E(13), E(14), Cv(6), E(15)]
    for i, ins in enumerate(seq, 1):
        for x in side.get(-i, []):
            k(x)
        if ins:
            k(ins)
        for x in side.get(i, []):
            k(x)


def att_max16(k, dst, b, first):
    if first:
        k(f"v_max3_f32 v{dst}, v{b}, v{b+1}, v{b+2}")
        k(f"v_max_f32 v{dst}, v{dst}, v{b+3}")
    else:
        k(f"v_max3_f32 v{dst}, v{dst}, v{b}, v{b+1}")
        k(f"v_max3_f32 v{dst}, v{dst}, v{b+2}, v{b+3}")
    for i in range(4, 16, 2):
        k(f"v_max3_f32 v{dst}, v{dst}, v{b+i}, v{b+i+1}")


def k2b():
    k = Kern("k2_attn_kernel", nvgpr=144)
    prologue(k, 256)
    Q, KF, VF, S, P, O, C = (ATT[x] for x in ("Q", "KF", "VF", "S", "P", "O", "C"))
    k(f"""
    s_and_b32 s40, s2, 7
    s_lshr_b32 s41, s2, 3
    s_lshl_b32 s40, s40, 2
    s_and_b32 s42, s41, 3
    s_add_u32 s40, s40, s42        ; head
    s_lshr_b32 s41, s41, 2         ; qblock256
    s_lshl_b32 s41, s41, 2
    s_add_u32 s41, s41, s3         ; qblock64
    v_lshlrev_b32 v2, 4, v1        ; lane*16
    s_lshl_b32 s42, s40, 16
    s_lshl_b32 s43, s41, 11
    s_add_u32 s42, s42, s43
    s_add_u32 s42, s42, {OFF_Q}
    s_lshl_b32 s44, s40, 17
    s_lshl_b32 s45, s3, 10
    s_add_u32 s47, s44, {OFF_KV}
    s_add_u32 s44, s47, s45
    s_lshl_b32 s46, s41, 16
    s_lshl_b32 s43, s40, 10
    s_add_u32 s46, s46, s43
    s_add_u32 s46, s46, {OFF_O}
    s_mov_b32 m0, s45
    """)
    prologue_wait(k)
    rounds = [0]
    def dma():
        i = rounds[0]; rounds[0] += 1
        out = []
        if i:
            out += ["s_add_u32 m0, m0, 4096", "s_add_u32 s44, s44, 4096"]
        out += ["buffer_load_dwordx4 v2, s[24:27], s44 offen lds"]
        return out
    for x in dma(): k(x)
    k(f"buffer_load_dwordx4 v[{Q}:{Q+3}], v2, s[24:27], s42 offen")
    k(f"buffer_load_dwordx4 v[{Q+4}:{Q+7}], v2, s[24:27], s42 offen offset:1024")
    for r in range(3):
        for x in dma(): k(x)
    k(f"""
    v_and_b32 v3, 15, v1
    v_lshlrev_b32 v3, 4, v3
    v_lshrrev_b32 v4, 5, v1
    v_lshl_add_u32 v3, v4, 8, v3
    v_add_u32 v4, 0x10000, v2
    v_add_u32 v5, 0x10000, v3
    s_mov_b32 s48, 0x0000ffff
    s_mov_b32 s49, 0x0000ffff
    v_and_b32 v6, 27, v1
    v_cmp_eq_u32 vcc, 16, v6
    v_mov_b32 v7, 0x3f803f80
    s_nop 0
    v_cndmask_b32 v7, 0, v7, vcc
    """)
    for i in range(16):
        k(f"v_mov_b32 v{VF+i}, v7")
    stamp(k, 1)
    k("s_waitcnt vmcnt(3)")
    k("s_barrier")
    stamp(k, 2)
    def kread(t):
        off = t * 2048
        return f"ds_read_b128 v[{KF}:{KF+3}], v{2 if off < 65536 else 4} offset:{off & 0xffff}"
    def vread(t):
        off = t * 2048 + 1024
        b = VF + 8 * (t & 1)
        a = 3 if off < 65536 else 5
        return ["s_mov_b64 exec, s[48:49]",
                f"ds_read_b128 v[{b}:{b+3}], v{a} offset:{off & 0xffff}",
                f"ds_read_b128 v[{b+4}:{b+7}], v{a} offset:{(off+512) & 0xffff}",
                "s_mov_b64 exec, -1"]
    k(kread(0))
    for x in vread(0): k(x)
    k(f"""
    s_waitcnt lgkmcnt(2)
    v_mfma_f32_32x32x16_bf16 v[{S}:{S+15}], v[{KF}:{KF+3}], v[{Q}:{Q+3}], 0
    v_mfma_f32_32x32x16_bf16 v[{S+16}:{S+31}], v[{KF}:{KF+3}], v[{Q+4}:{Q+7}], 0
    s_nop 10
    """)
    att_max16(k, 6, S, True)
    att_max16(k, 7, S + 16, True)
    k("""
    s_nop 1
    v_permlane32_swap_b32 v6, v7
    v_max_f32 v6, v6, v7
    v_mov_b32 v7, v6
    s_nop 1
    v_permlane32_swap_b32 v6, v7
    v_sub_f32 v6, 0, v6
    v_sub_f32 v7, 0, v7
    """)
    for i in range(16):
        k(f"v_mov_b32 v{C+i}, v6")
    k("s_nop 0")
    k(f"v_mov_b32 v{C+16}, v7")
    k(f"v_mfma_f32_32x32x16_bf16 v[{S}:{S+15}], v[{KF}:{KF+3}], v[{Q}:{Q+3}], v[{C}:{C+15}]")
    for i in range(1, 16):
        k(f"v_mov_b32 v{C+16+i}, v7")
    stamp(k, 3)
    ROLL = int(os.environ.get("ROLL", "4"))
    NUNR = 16 if ROLL else 64
    for u in range(2 * NUNR):
        t = u >> 1
        side = {}
        if u % 2 == 0 and t < 63:
            pre = []
            if u == 2:
                pre = [f"s_waitcnt vmcnt({rounds[0]-4})", "s_barrier"]
            elif u == 14:
                pre = [f"s_waitcnt vmcnt({rounds[0]-12})", "s_barrier"]
            elif u == 46:
                pre = ["s_waitcnt vmcnt(0)", "s_barrier"]
            side[14] = pre + [kread(t + 1)]
            vr = vread(t + 1)
            side[15] = vr
        if u % 2 == 1 or u == 0:
            side[-14] = ["s_waitcnt lgkmcnt(0)"]
        if rounds[0] < 32:
            d = dma()
            side[1] = d[:2]
            side[2] = d[2:]
        att_unit(k, u, side, last=(u == 127))
    if ROLL:
        k(f"""
        v_add_u32 v4, {NUNR*2048}, v2
        v_add_u32 v5, {NUNR*2048}, v3
        s_mov_b32 s50, {(64-NUNR)//ROLL}
        s_waitcnt vmcnt(0)
        s_barrier
        """)
        k(".p2align 6")
        k.label("L_k2_roll")
        for uu in range(2 * ROLL):
            u = 2 * NUNR + uu
            tt = uu >> 1
            side = {}
            if uu % 2 == 0:
                b = VF + 8 * ((tt + 1) & 1)
                off = (tt + 1) * 2048
                side[14] = [f"ds_read_b128 v[{KF}:{KF+3}], v4 offset:{off}"]
                side[15] = ["s_mov_b64 exec, s[48:49]",
                            f"ds_read_b128 v[{b}:{b+3}], v5 offset:{off+1024}",
                            f"ds_read_b128 v[{b+4}:{b+7}], v5 offset:{off+1536}",
                            "s_mov_b64 exec, -1"]
            else:
                side[-14] = ["s_waitcnt lgkmcnt(0)"]
            if uu == 2 * ROLL - 1:
                side[1] = [f"v_add_u32 v4, {ROLL*2048}, v4"]
                side[4] = [f"v_add_u32 v5, {ROLL*2048}, v5"]
                side[24] = ["s_sub_u32 s50, s50, 1"]
                side[25] = ["s_cmp_lg_u32 s50, 0"]
            att_unit(k, u, side)
        k("s_cbranch_scc1 L_k2_roll")
    k(f"""
    s_nop 0
    v_cvt_pk_bf16_f32 v{P+7}, v{S+30}, v{S+31}
    s_nop 1
    v_mfma_f32_32x32x16_bf16 v[{O+16}:{O+31}], v[{VF+12}:{VF+15}], v[{P+4}:{P+7}], v[{O+16}:{O+31}]
    s_mov_b32 s53, 0x53800000
    s_nop 10
    """)
    stamp(k, 4)
    k(f"""
    v_max_f32 v6, v{O+8}, v{O+24}
    v_cmp_nge_f32 vcc, s53, v{O+8}
    v_cmp_nge_f32 s[50:51], s53, v{O+24}
    s_nop 3
    s_or_b64 vcc, vcc, s[50:51]
    s_cbranch_scc0 L_k2_fin
    """)
    k(f"""
    s_mov_b32 s50, 0
    s_mov_b32 s51, s47
    v_mov_b32 v6, 0xff800000
    v_mov_b32 v7, 0xff800000
    """)
    k.label("L_k2_maxloop")
    k(f"""
    buffer_load_dwordx4 v[{KF}:{KF+3}], v2, s[24:27], s51 offen sc1
    s_add_u32 s51, s51, 2048
    s_waitcnt vmcnt(0)
    v_mfma_f32_32x32x16_bf16 v[{S}:{S+15}], v[{KF}:{KF+3}], v[{Q}:{Q+3}], 0
    v_mfma_f32_32x32x16_bf16 v[{S+16}:{S+31}], v[{KF}:{KF+3}], v[{Q+4}:{Q+7}], 0
    s_nop 10
    """)
    att_max16(k, 6, S, False)
    att_max16(k, 7, S + 16, False)
    k(f"""
    s_add_u32 s50, s50, 1
    s_cmp_lt_u32 s50, 64
    s_cbranch_scc1 L_k2_maxloop
    s_nop 0
    v_permlane32_swap_b32 v6, v7
    v_max_f32 v6, v6, v7
    v_mov_b32 v7, v6
    s_nop 1
    v_permlane32_swap_b32 v6, v7
    v_sub_f32 v6, 0, v6
    v_sub_f32 v7, 0, v7
    """)
    for i in range(16):
        k(f"v_mov_b32 v{C+i}, v6")
        k(f"v_mov_b32 v{C+16+i}, v7")
        k(f"v_mov_b32 v{O+i}, 0")
        k(f"v_mov_b32 v{O+16+i}, 0")
    k("s_mov_b32 s50, 0")
    k("s_mov_b32 s51, s47")
    k.label("L_k2_redo")
    k(f"""
    buffer_load_dwordx4 v[{KF}:{KF+3}], v2, s[24:27], s51 offen sc1
    s_mov_b64 exec, s[48:49]
    buffer_load_dwordx4 v[{VF}:{VF+3}], v3, s[24:27], s51 offen offset:1024 sc1
    buffer_load_dwordx4 v[{VF+4}:{VF+7}], v3, s[24:27], s51 offen offset:1536 sc1
    s_mov_b64 exec, -1
    s_add_u32 s51, s51, 2048
    s_waitcnt vmcnt(0)
    v_mfma_f32_32x32x16_bf16 v[{S}:{S+15}], v[{KF}:{KF+3}], v[{Q}:{Q+3}], v[{C}:{C+15}]
    v_mfma_f32_32x32x16_bf16 v[{S+16}:{S+31}], v[{KF}:{KF+3}], v[{Q+4}:{Q+7}], v[{C+16}:{C+31}]
    s_nop 10
    """)
    for b in range(2):
        for i in range(16):
            k(f"v_exp_f32 v{S+16*b+i}, v{S+16*b+i}")
        k("s_nop 0")
        for j in range(8):
            k(f"v_cvt_pk_bf16_f32 v{P+j}, v{S+16*b+2*j}, v{S+16*b+2*j+1}")
        k("s_nop 1")
        for h in range(2):
            k(f"v_mfma_f32_32x32x16_bf16 v[{O+16*b}:{O+16*b+15}], v[{VF+4*h}:{VF+4*h+3}], v[{P+4*h}:{P+4*h+3}], v[{O+16*b}:{O+16*b+15}]")
    k(f"""
    s_add_u32 s50, s50, 1
    s_cmp_lt_u32 s50, 64
    s_cbranch_scc1 L_k2_redo
    s_nop 10
    """)
    k.label("L_k2_fin")
    k(f"v_rcp_f32 v6, v{O+8}")
    k(f"v_rcp_f32 v7, v{O+24}")
    for b in range(2):
        for i in range(8):
            k(f"v_mul_f32 v{O+16*b+i}, v{6+b}, v{O+16*b+i}")
        for i in range(4):
            k(f"v_cvt_pk_bf16_f32 v{P+4*b+i}, v{O+16*b+2*i}, v{O+16*b+2*i+1}")
        if b:
            k("s_add_u32 s46, s46, 32768")
        k(f"buffer_store_dwordx4 v[{P+4*b}:{P+4*b+3}], v2, s[24:27], s46 offen")
    epilogue(k)
    return k, (256, 256, 131072 + 2048)


def splitk_gemm(k, nks, offA, offB, depth_steps, RB, ACC):
    n = nks // 4
    k(f"""
    s_lshr_b32 s44, s3, 1
    s_and_b32 s45, s3, 1
    s_lshl_b32 s46, s43, 1
    s_add_u32 s47, s46, s44
    s_xor_b32 s48, s47, 1          ; other
    s_lshl_b32 s46, s42, 1
    s_add_u32 s49, s46, s45
    s_xor_b32 s50, s49, 1
    s_mul_i32 s46, s3, {n*1024}
    s_mul_i32 s52, s47, {nks*1024}
    s_mul_i32 s53, s48, {nks*1024}
    s_mul_i32 s54, s49, {nks*1024}
    s_mul_i32 s55, s50, {nks*1024}
    s_add_u32 s51, s46, {offA}
    s_add_u32 s52, s52, s51
    s_add_u32 s53, s53, s51
    s_add_u32 s51, s46, {offB}
    s_add_u32 s54, s54, s51
    s_add_u32 s55, s55, s51
    """)
    def load(s):
        r = RB + 16 * (s % depth_steps)
        if s and s % 4 == 0:
            for sr in (52, 53, 54, 55):
                k(f"s_add_u32 s{sr}, s{sr}, 4096")
        for i, sr in enumerate((52, 54, 53, 55)):
            k(f"buffer_load_dwordx4 v[{r+4*i}:{r+4*i+3}], v2, s[24:27], s{sr} offen offset:{(s%4)*1024}")
    return n, load


def splitk_main(k, n, load, depth_steps, RB, ACC, extra_after=0):
    issued = min(n, depth_steps)
    for s in range(n):
        later = (issued - 1 - s) * 4 + extra_after
        k(f"s_waitcnt vmcnt({min(63, later)})")
        r = RB + 16 * (s % depth_steps)
        A0, B0, A1, B1 = (f"v[{r+4*i}:{r+4*i+3}]" for i in range(4))
        for t, (a, b) in enumerate(((A0, B0), (A0, B1), (A1, B0), (A1, B1))):
            acc = ACC + 16 * t
            c = "0" if s == 0 else f"v[{acc}:{acc+15}]"
            k(f"v_mfma_f32_32x32x16_bf16 v[{acc}:{acc+15}], {a}, {b}, {c}")
        if issued < n:
            load(issued); issued += 1
            extra_after = 0


def splitk_reduce(k, ACC, TMP):
    k("s_nop 7")
    for t in (1, 2, 3):
        k(f"""
        s_xor_b32 s56, s3, {t}
        s_mul_i32 s56, s56, 12288
        s_add_u32 s56, s56, {(t-1)*4096}
        v_add_u32 v3, s56, v2
        """)
        for q in range(4):
            k(f"ds_write_b128 v3, v[{ACC+16*t+4*q}:{ACC+16*t+4*q+3}] offset:{q*1024}")
    k(f"""
    s_mul_i32 s56, s3, 12288
    v_add_u32 v3, s56, v2
    s_waitcnt lgkmcnt(0)
    s_barrier
    """)
    for i in range(12):
        k(f"ds_read_b128 v[{TMP+4*i}:{TMP+4*i+3}], v3 offset:{i*1024}")
    for sl in range(3):
        k(f"s_waitcnt lgkmcnt({8-4*sl})")
        for i in range(16):
            k(f"v_add_f32 v{ACC+i}, v{ACC+i}, v{TMP+16*sl+i}")


def map_4x8(k):
    k("""
    s_and_b32 s40, s2, 7
    s_lshr_b32 s41, s2, 3
    s_lshl_b32 s42, s40, 2
    s_and_b32 s43, s41, 3
    s_add_u32 s42, s42, s43        ; tb
    s_lshr_b32 s43, s41, 2         ; cb
    v_lshlrev_b32 v2, 4, v1
    """)


def k3():
    k = Kern("k3_wo_kernel", nvgpr=248)
    NUT = 28
    prologue(k, 256 + NUT)
    k("s_cmp_ge_u32 s2, 256")
    k("s_cbranch_scc1 L_k3_ut")
    RB, ACC = 8, 136
    G, CBV, X = 200, 216, 232
    map_4x8(k)
    n, load = splitk_gemm(k, 32, OFF_WO, OFF_O, 8, RB, ACC)
    prologue_wait(k)
    srd(k, 28, P_X, 2048 * 1024)
    for s in range(8):
        load(s)
    k(f"""
    v_lshrrev_b32 v4, 5, v1
    v_and_b32 v5, 31, v1
    v_lshlrev_b32 v6, 4, v4             ; h*16 bytes (4 f32)
    s_lshl_b32 s56, s47, 7
    s_add_u32 s57, s56, {OFF_MOD + 2*2048}
    s_add_u32 s58, s56, {OFF_MOD + 4*2048}
    v_lshlrev_b32 v7, 10, v5
    v_lshl_add_u32 v7, v4, 3, v7        ; tok*1024 + h*8
    s_lshl_b32 s59, s49, 15
    s_lshl_b32 s56, s47, 6
    s_add_u32 s59, s59, s56
    """)
    for j in range(4):
        k(f"buffer_load_dwordx4 v[{G+4*j}:{G+4*j+3}], v6, s[24:27], s57 offen offset:{32*j}")
        k(f"buffer_load_dwordx4 v[{CBV+4*j}:{CBV+4*j+3}], v6, s[24:27], s58 offen offset:{32*j}")
        k(f"buffer_load_dwordx2 v[{X+2*j}:{X+2*j+1}], v7, s[28:31], s59 offen offset:{16*j}")
    stamp(k, 1)
    splitk_main(k, n, load, 8, RB, ACC, extra_after=12)
    stamp(k, 2)
    splitk_reduce(k, ACC, 8)
    stamp(k, 3)
    k("s_waitcnt vmcnt(0)")
    T = 8
    for i in range(8):
        k(f"v_cvt_pk_bf16_f32 v{T+i}, v{ACC+2*i}, v{ACC+2*i+1}")
    for i in range(8):
        k(f"v_lshlrev_b32 v{ACC+2*i}, 16, v{T+i}")
        k(f"v_and_b32 v{ACC+2*i+1}, 0xffff0000, v{T+i}")
    for i in range(16):
        k(f"v_mul_f32 v{ACC+i}, v{G+i}, v{ACC+i}")
    for i in range(8):
        k(f"v_cvt_pk_bf16_f32 v{T+i}, v{ACC+2*i}, v{ACC+2*i+1}")
    for i in range(8):
        k(f"v_lshlrev_b32 v{ACC+2*i}, 16, v{T+i}")
        k(f"v_and_b32 v{ACC+2*i+1}, 0xffff0000, v{T+i}")
        k(f"v_lshlrev_b32 v{G+2*i}, 16, v{X+i}")
        k(f"v_and_b32 v{G+2*i+1}, 0xffff0000, v{X+i}")
    for i in range(16):
        k(f"v_add_f32 v{ACC+i}, v{G+i}, v{ACC+i}")
    for i in range(8):
        k(f"v_cvt_pk_bf16_f32 v{T+i}, v{ACC+2*i}, v{ACC+2*i+1}")
    k(f"""
    v_lshrrev_b32 v3, 4, v5
    v_lshlrev_b32 v3, 14, v3
    v_and_b32 v6, 15, v5
    v_lshl_add_u32 v3, v6, 4, v3
    v_lshl_add_u32 v3, v4, 8, v3
    s_lshl_b32 s56, s49, 15
    s_lshl_b32 s57, s47, 10
    s_add_u32 s56, s56, s57
    s_add_u32 s57, s56, {OFF_X2S}
    s_add_u32 s56, s56, {OFF_X2}
    buffer_store_dwordx4 v[{T}:{T+3}], v3, s[24:27], s56 offen
    buffer_store_dwordx4 v[{T+4}:{T+7}], v3, s[24:27], s56 offen offset:512
    """)
    for i in range(8):
        k(f"v_lshlrev_b32 v{ACC+2*i}, 16, v{T+i}")
        k(f"v_and_b32 v{ACC+2*i+1}, 0xffff0000, v{T+i}")
    k(f"v_add_f32 v24, v{ACC}, v{ACC+1}")
    k(f"v_mul_f32 v25, v{ACC}, v{ACC}")
    for i in range(1, 16):
        if i >= 2:
            k(f"v_add_f32 v24, v24, v{ACC+i}")
        k(f"v_fmac_f32 v25, v{ACC+i}, v{ACC+i}")
    for i in range(16):
        k(f"v_mul_f32 v{ACC+i}, v{CBV+i}, v{ACC+i}")
    for i in range(8):
        k(f"v_cvt_pk_bf16_f32 v{16+i}, v{ACC+2*i}, v{ACC+2*i+1}")
    k(f"""
    buffer_store_dwordx4 v[16:19], v3, s[24:27], s57 offen
    buffer_store_dwordx4 v[20:23], v3, s[24:27], s57 offen offset:512
    v_permlane32_swap_b32 v24, v25
    v_add_f32 v24, v24, v25
    v_lshlrev_b32 v3, 7, v5
    v_lshl_add_u32 v3, v4, 2, v3
    s_lshl_b32 s56, s49, 12
    s_lshl_b32 s57, s47, 3
    s_add_u32 s56, s56, s57
    s_add_u32 s56, s56, {OFF_ST2}
    buffer_store_dword v24, v3, s[24:27], s56 offen
    """)
    endpgm(k)
    k.label("L_k3_ut")
    k(f"""
    s_sub_u32 s40, s2, 256
    s_lshl_b32 s40, s40, 2
    s_add_u32 s40, s40, s3          ; nt
    s_mul_i32 s41, s40, 9363
    s_lshr_b32 s41, s41, 16
    s_mul_i32 s42, s41, 7
    s_sub_u32 s42, s40, s42         ; i
    s_mul_i32 s41, s41, {16*7}
    s_add_u32 s41, s41, s42
    s_lshl_b32 s41, s41, 10
    s_add_u32 s41, s41, {OFF_W1}
    v_lshlrev_b32 v2, 4, v1
    v_and_b32 v3, 15, v1            ; col
    v_lshrrev_b32 v4, 4, v1         ; g
    v_and_b32 v5, 1, v4
    v_lshrrev_b32 v6, 1, v4
    v_lshlrev_b32 v6, 6, v6
    v_lshl_add_u32 v6, v5, 4, v6    ; (16(g>>1) + 4(g&1))*4 bytes
    v_and_b32 v7, 1, v3
    v_sub_u32 v7, 4, v7
    v_lshl_add_u32 v6, v7, 11, v6
    """)
    prologue_wait(k)
    for s in range(16):
        k(f"buffer_load_dwordx4 v[{8+4*s}:{11+4*s}], v2, s[24:27], s41 offen")
        k(f"s_add_u32 s41, s41, 7168")
    for s in range(16):
        k(f"buffer_load_dwordx4 v[{72+8*s}:{75+8*s}], v6, s[24:27], 0 offen offset:{OFF_MOD+128*s}")
        k(f"buffer_load_dwordx4 v[{76+8*s}:{79+8*s}], v6, s[24:27], 0 offen offset:{OFF_MOD+128*s+32}")
    k("s_waitcnt vmcnt(0)")
    for s in range(16):
        b = 72 + 8 * s
        for i in range(4):
            k(f"v_cvt_pk_bf16_f32 v{b+i}, v{b+2*i}, v{b+2*i+1}")
    k("s_nop 1")
    for s in range(16):
        b = 72 + 8 * s
        c = "0" if s == 0 else "v[200:203]"
        k(f"v_mfma_f32_16x16x32_bf16 v[200:203], v[{8+4*s}:{11+4*s}], v[{b}:{b+3}], {c}")
    k(f"""
    v_lshlrev_b32 v5, 4, v4
    v_lshl_add_u32 v5, v3, 6, v5
    v_cmp_gt_u32 vcc, 2, v3
    s_lshl_b32 s40, s40, 7
    s_add_u32 s40, s40, {OFF_UT}
    s_nop 7
    s_and_saveexec_b64 s[44:45], vcc
    buffer_store_dwordx4 v[200:203], v5, s[24:27], s40 offen
    """)
    epilogue(k)
    return k, (256 + NUT, 256, 49152)


def k4():
    k = Kern("k4_ffn1_kernel", nvgpr=200, nagpr=128)
    prologue(k, 256)
    ACC = 8
    WF = 64
    UT = 120
    ST = 176
    k(f"""
    s_and_b32 s40, s2, 7
    s_lshr_b32 s41, s2, 3
    s_lshr_b32 s42, s40, 1
    s_lshl_b32 s42, s42, 2
    s_and_b32 s43, s41, 3
    s_add_u32 s42, s42, s43
    s_and_b32 s43, s40, 1
    s_lshl_b32 s43, s43, 3
    s_lshr_b32 s44, s41, 2
    s_add_u32 s43, s43, s44
    v_lshlrev_b32 v2, 4, v1
    s_lshl_b32 s44, s42, 2
    s_add_u32 s44, s44, s3
    s_lshl_b32 s45, s44, 15
    s_add_u32 s45, s45, {OFF_X2S}
    s_add_u32 s46, s45, 16384
    s_mul_i32 s47, s43, {112*1024}
    s_lshl_b32 s48, s3, 10
    s_add_u32 s47, s47, s48
    s_add_u32 s47, s47, {OFF_W1}
    v_and_b32 v3, 15, v1
    v_lshrrev_b32 v4, 4, v1
    v_lshlrev_b32 v5, 7, v3
    v_lshl_add_u32 v5, v4, 5, v5
    s_lshl_b32 s49, s44, 12
    s_add_u32 s49, s49, {OFF_ST2}
    v_lshlrev_b32 v6, 4, v4          ; g*16
    s_mul_i32 s50, s43, {7*128}
    s_add_u32 s50, s50, {OFF_UT}
    """)
    prologue_wait(k)
    for j in range(2):
        k(f"buffer_load_dwordx4 v[{ST+8*j}:{ST+8*j+3}], v5, s[24:27], s49 offen offset:{2048*j}")
        k(f"buffer_load_dwordx4 v[{ST+8*j+4}:{ST+8*j+7}], v5, s[24:27], s49 offen offset:{2048*j+16}")
    for i in range(7):
        k(f"buffer_load_dwordx4 v[{UT+8*i}:{UT+8*i+3}], v6, s[24:27], s50 offen offset:{128*i}")
        k(f"buffer_load_dwordx4 v[{UT+8*i+4}:{UT+8*i+7}], v6, s[24:27], s50 offen offset:{128*i+64}")
    def group(gi):
        for i in range(7):
            idx = gi * 7 + i
            k(f"s_add_u32 m0, s48, {idx*4096}")
            if idx:
                k("s_add_u32 s47, s47, 4096")
            else:
                k("s_nop 0")
            k("buffer_load_dwordx4 v2, s[24:27], s47 offen lds")
        if gi:
            k("s_add_u32 s45, s45, 4096")
            k("s_add_u32 s46, s46, 4096")
        for s in range(4):
            ks = gi * 4 + s
            k(f"buffer_load_dwordx4 a[{8*ks}:{8*ks+3}], v2, s[24:27], s45 offen offset:{s*1024}")
            k(f"buffer_load_dwordx4 a[{8*ks+4}:{8*ks+7}], v2, s[24:27], s46 offen offset:{s*1024}")
    for gi in range(3):
        group(gi)
    stamp(k, 1)
    k("s_waitcnt vmcnt(59)")
    stamp(k, 2)
    for j in range(2):
        b = ST + 8 * j
        k(f"v_add_f32 v{b}, v{b}, v{b+2}")
        k(f"v_add_f32 v{b+1}, v{b+1}, v{b+3}")
        k(f"v_add_f32 v{b+4}, v{b+4}, v{b+6}")
        k(f"v_add_f32 v{b+5}, v{b+5}, v{b+7}")
        k(f"v_add_f32 v{b}, v{b}, v{b+4}")
        k(f"v_add_f32 v{b+1}, v{b+1}, v{b+5}")
    regs = [ST, ST + 1, ST + 8, ST + 9]
    tmp = [ST + 2, ST + 3, ST + 10, ST + 11]
    for op in ("v_permlane16_swap_b32", "v_permlane32_swap_b32"):
        for r, t in zip(regs, tmp):
            k(f"v_mov_b32 v{t}, v{r}")
        k("s_nop 1")
        for r, t in zip(regs, tmp):
            k(f"{op} v{t}, v{r}")
        for r, t in zip(regs, tmp):
            k(f"v_add_f32 v{r}, v{t}, v{r}")
    for j in range(2):
        b = ST + 8 * j
        ln_stats_finish(k, b, b + 1, b + 4, b + 5, None, std_out=b + 6)
    group(3)
    k(f"""
    s_cmp_lg_u32 s43, 0
    s_cbranch_scc1 L_k4_nor
    v_lshlrev_b32 v7, 2, v3
    s_lshl_b32 s51, s44, 7
    s_add_u32 s51, s51, {OFF_R2}
    buffer_store_dword v{ST+5}, v7, s[24:27], s51 offen
    buffer_store_dword v{ST+13}, v7, s[24:27], s51 offen offset:64
    s_waitcnt vmcnt(0)
    """)
    k.label("L_k4_nor")
    k("s_waitcnt vmcnt(60)")
    for j in range(2):
        b = ST + 8 * j
        for i in range(7):
            for r in range(4):
                a = ACC + 4 * (j * 7 + i) + r
                k(f"v_mul_f32 v{a}, v{UT+8*i+4+r}, v{b+6}")
        for i in range(7):
            for r in range(4):
                a = ACC + 4 * (j * 7 + i) + r
                k(f"v_fma_f32 v{a}, -v{b+4}, v{UT+8*i+r}, v{a}")
    def wread(s):
        f = WF + 28 * (s & 1)
        for i in range(7):
            off = (s * 7 + i) * 1024
            base = "v2" if off < 65536 else "v7"
            k(f"ds_read_b128 v[{f+4*i}:{f+4*i+3}], {base} offset:{off & 0xffff}")
    k("v_add_u32 v7, 0x10000, v2")
    stamp(k, 3)
    for gi in range(4):
        k(f"s_waitcnt vmcnt({15*(3-gi)})")
        k("s_barrier")
        stamp(k, 4 + gi)
        for s4 in range(4):
            s = gi * 4 + s4
            if s4 == 0:
                wread(s)
            if s4 < 3:
                wread(s + 1)
                k("s_waitcnt lgkmcnt(7)")
            else:
                k("s_waitcnt lgkmcnt(0)")
            f = WF + 28 * (s & 1)
            for i in range(7):
                for j in range(2):
                    a = ACC + 4 * (j * 7 + i)
                    k(f"v_mfma_f32_16x16x32_bf16 v[{a}:{a+3}], v[{f+4*i}:{f+4*i+3}], a[{8*s+4*j}:{8*s+4*j+3}], v[{a}:{a+3}]")
    stamp(k, 8)
    k(f"""
    v_and_b32 v5, 1, v4
    v_lshrrev_b32 v6, 1, v4
    v_lshlrev_b32 v7, 4, v3
    v_lshl_add_u32 v7, v6, 9, v7
    v_lshl_add_u32 v7, v5, 3, v7
    s_mul_i32 s45, s44, {112*1024}
    s_mul_i32 s46, s43, {7*1024}
    s_add_u32 s45, s45, s46
    s_add_u32 s45, s45, {OFF_H}
    s_add_u32 s46, s45, 4096
    """)
    for i in range(7):
        for j in range(2):
            a = ACC + 4 * (j * 7 + i)
            t = WF + 2 * (i * 2 + j)
            k(f"v_cvt_pk_bf16_f32 v{t}, v{a}, v{a+1}")
            k(f"v_cvt_pk_bf16_f32 v{t+1}, v{a+2}, v{a+3}")
            k(f"v_pk_max_i16 v{t}, v{t}, 0")
            k(f"v_pk_max_i16 v{t+1}, v{t+1}, 0")
            sr = 45 if i < 4 else 46
            k(f"buffer_store_dwordx2 v[{t}:{t+1}], v7, s[24:27], s{sr} offen offset:{(i%4)*1024+j*256}")
    epilogue(k)
    return k, (256, 256, 112 * 1024)


def k5():
    k = Kern("k5_ffn2_kernel", nvgpr=256, nagpr=64)
    prologue(k, 256)
    DEPTH = 13
    RB = 8
    G, X2, R = 216, 232, 240
    map_4x8(k)
    n, load = splitk_gemm(k, 112, OFF_W2, OFF_H, DEPTH, RB, None)
    prologue_wait(k)
    srd(k, 28, P_OUT, 2048 * 1024)
    k(f"""
    v_lshrrev_b32 v4, 5, v1
    v_and_b32 v5, 31, v1
    v_lshlrev_b32 v6, 4, v4
    s_lshl_b32 s56, s47, 7
    s_add_u32 s57, s56, {OFF_MOD + 5*2048}
    v_lshrrev_b32 v3, 4, v5
    v_lshlrev_b32 v3, 14, v3
    v_and_b32 v7, 15, v5
    v_lshl_add_u32 v3, v7, 4, v3
    v_lshl_add_u32 v3, v4, 8, v3
    s_lshl_b32 s58, s49, 15
    s_lshl_b32 s59, s47, 10
    s_add_u32 s58, s58, s59
    s_add_u32 s58, s58, {OFF_X2}
    v_lshlrev_b32 v7, 2, v5
    s_lshl_b32 s59, s49, 7
    s_add_u32 s59, s59, {OFF_R2}
    """)
    for j in range(4):
        k(f"buffer_load_dwordx4 v[{G+4*j}:{G+4*j+3}], v6, s[24:27], s57 offen offset:{32*j}")
    k(f"buffer_load_dwordx4 v[{X2}:{X2+3}], v3, s[24:27], s58 offen")
    k(f"buffer_load_dwordx4 v[{X2+4}:{X2+7}], v3, s[24:27], s58 offen offset:512")
    k(f"buffer_load_dword v{R}, v7, s[24:27], s59 offen")
    for s in range(DEPTH):
        load(s)
    stamp(k, 1)
    issued = DEPTH
    for s in range(n):
        k(f"s_waitcnt vmcnt({(issued-1-s)*4})")
        r = RB + 16 * (s % DEPTH)
        A0, B0, A1, B1 = (f"v[{r+4*i}:{r+4*i+3}]" for i in range(4))
        for t, (a, b) in enumerate(((A0, B0), (A0, B1), (A1, B0), (A1, B1))):
            c = "0" if s == 0 else f"a[{16*t}:{16*t+15}]"
            k(f"v_mfma_f32_32x32x16_bf16 a[{16*t}:{16*t+15}], {a}, {b}, {c}")
        if issued < n:
            load(issued); issued += 1
    stamp(k, 2)
    k("s_nop 7")
    for t in (1, 2, 3):
        k(f"""
        s_xor_b32 s56, s3, {t}
        s_mul_i32 s56, s56, 12288
        s_add_u32 s56, s56, {(t-1)*4096}
        v_add_u32 v3, s56, v2
        """)
        for q in range(4):
            k(f"ds_write_b128 v3, a[{16*t+4*q}:{16*t+4*q+3}] offset:{q*1024}")
    ACC, TMP = 8, 24
    for i in range(16):
        k(f"v_accvgpr_read_b32 v{ACC+i}, a{i}")
    for i in range(16):
        k(f"v_mul_f32 v{G+i}, v{R}, v{G+i}")
    k(f"""
    s_mul_i32 s56, s3, 12288
    v_add_u32 v3, s56, v2
    s_waitcnt lgkmcnt(0)
    s_barrier
    """)
    for i in range(12):
        k(f"ds_read_b128 v[{TMP+4*i}:{TMP+4*i+3}], v3 offset:{i*1024}")
    XU = 80
    stamp(k, 3)
    for i in range(8):
        k(f"v_lshlrev_b32 v{XU+2*i}, 16, v{X2+i}")
        k(f"v_and_b32 v{XU+2*i+1}, 0xffff0000, v{X2+i}")
    for sl in range(3):
        k(f"s_waitcnt lgkmcnt({8-4*sl})")
        for i in range(16):
            k(f"v_add_f32 v{ACC+i}, v{ACC+i}, v{TMP+16*sl+i}")
    for i in range(16):
        k(f"v_fma_f32 v{ACC+i}, v{G+i}, v{ACC+i}, v{XU+i}")
    for i in range(8):
        k(f"v_cvt_pk_bf16_f32 v{TMP+i}, v{ACC+2*i}, v{ACC+2*i+1}")
    k(f"""
    v_lshlrev_b32 v7, 10, v5
    v_lshl_add_u32 v7, v4, 3, v7
    s_lshl_b32 s59, s49, 15
    s_lshl_b32 s56, s47, 6
    s_add_u32 s59, s59, s56
    """)
    for j in range(4):
        k(f"buffer_store_dwordx2 v[{TMP+2*j}:{TMP+2*j+1}], v7, s[28:31], s59 offen offset:{16*j}")
    epilogue(k)
    return k, (256, 256, 49152)


def build(path=OUT):
    ks = [k0(), k1(), k2b(), k3(), k4(), k5()]
    errs = []
    for k, _ in ks:
        errs += k.check()
    for e in errs:
        print(e)
    ref = open(OUT + ".ref").read().split("\n")
    hdr = [l for l in ref if l.startswith(";") and "@launch" not in l and "Override" not in l and "grid=ceil" not in l]
    out = "\n".join(hdr) + "\n"
    for k, (g, b, lds) in ks:
        out += f"; @launch kernel={k.name} grid=({g},1,1) block=({b},1,1) lds={lds}\n"
    out += '.amdgcn_target "amdgcn-amd-amdhsa--gfx950"\n'
    codes, kds = zip(*[k.text() for k, _ in ks])
    out += "".join(codes)
    out += '.section .rodata,"a"\n' + "".join(kds)
    open(path, "w").write(out)
    print("wrote", path, len(out), "bytes;", len(errs), "checker errors")
    return len(errs)


if __name__ == "__main__":
    sys.exit(1 if build(sys.argv[1] if len(sys.argv) > 1 else OUT) else 0)
```

```python
import sys, os
sys.path.insert(0, "gen")
from asmlib import Kern
import gen as G
from gen import (MB, OFF_MOD, OFF_XHAT, OFF_WQKV, OFF_Q, OFF_KV, OFF_O, OFF_WO, OFF_X2, OFF_X2S, OFF_ST2, OFF_W1,
                 OFF_H, OFF_W2, QSCALE, P_X, P_WQKV, P_WO, P_W1, P_W2, P_C, P_WMOD, P_OUT, P_WS, srd, stamp, endpgm,
                 prologue, prologue_wait, epilogue, bf16_round, ln_stats_finish, role_ln, role_relayout, ATT, att_unit,
                 att_max16, NAME, OUT, DIAG)

OFF_MODB = 0x3000
OFF_FLAG = G.OFF_FLAG
FL = "sc1"
DF = "@DF@"
S_FAST = 93
OFF_XID = G.OFF_XID
OOL = []


def dual_begin(k):
    k._dual = len(k.lines)


def dual_end(k, tag):
    body = k.lines[k._dual:]
    del k.lines[k._dual:]
    import re
    labs = [l[:-1] for l in body if l.endswith(":")]
    def variant(fl, suffix):
        out = []
        for l in body:
            l = l.replace(DF, fl).rstrip()
            for lab in labs:
                l = re.sub(rf"\b{lab}\b", lab + suffix, l)
            out.append(l)
        return out
    if tag not in os.environ.get("FAST", "none").split(","):
        k.lines += variant("sc1", "_s")
        return
    k(f"s_cmp_eq_u32 s{S_FAST}, 0")
    k(f"s_cbranch_scc1 L_slow_{tag}")
    k.lines += variant("", "_f")
    k.label(f"L_join_{tag}")
    OOL.append([f"L_slow_{tag}:"] + variant("sc1", "_s") + [f"s_branch L_join_{tag}"])


_stamp = stamp
def stamp(k, i):
    if os.environ.get("P1ST") and i > 8:
        return
    _stamp(k, i)
def stamp1(k, i):
    if os.environ.get("P1ST"):
        _stamp(k, i)


class VM:
    def __init__(self, k):
        self.k = k; self.n = 0
    def op(self, text=None):
        if text:
            self.k(text)
        self.n += 1
        return self.n
    def tick(self):
        self.n += 1
        return self.n
    def wait_str(self, idx):
        c = self.n - idx
        return f"s_waitcnt vmcnt({min(c, 63)})"
    def wait(self, idx):
        self.k(self.wait_str(idx))


def signal(k, edge, s_group, s_member, gsize, nafter=0, fl=FL, fast=False):
    lab = f"L_sig{edge}"
    k(f"""
    s_mul_i32 s38, s{s_group}, {gsize}
    s_add_u32 s38, s38, s{s_member}
    s_lshl_b32 s38, s38, 8
    s_add_u32 s38, s38, {OFF_FLAG + edge * 65536}
    v_mov_b32 v6, 0
    v_mov_b32 v7, s98
    s_cmp_lg_u32 s3, 0
    s_waitcnt vmcnt({nafter}) lgkmcnt(0)
    s_barrier
    s_cbranch_scc1 {lab}
    s_mov_b64 exec, 1
    """)
    if fast and int(os.environ.get("FFLAG", "1")):
        k(f"""
        s_cmp_eq_u32 s{S_FAST}, 0
        s_cbranch_scc1 {lab}_slow
        buffer_store_dword v7, v6, s[24:27], s38 offen
        s_branch {lab}_done
        {lab}_slow:
        buffer_store_dword v7, v6, s[24:27], s38 offen sc1
        {lab}_done:
        """)
    else:
        k("buffer_store_dword v7, v6, s[24:27], s38 offen sc1")
    k("s_mov_b64 exec, -1")
    k.label(lab)


def wait_edge(k, edge, s_group, gsize):
    lab = f"L_wait{edge}"
    k(f"""
    s_cmp_lg_u32 s3, 0
    s_cbranch_scc1 {lab}
    s_mul_i32 s38, s{s_group}, {gsize*256}
    s_add_u32 s38, s38, {OFF_FLAG + edge * 65536}
    v_lshlrev_b32 v6, 8, v1
    s_mov_b32 exec_lo, {hex((1 << gsize) - 1)}
    s_mov_b32 exec_hi, 0
    s_mov_b32 s39, 0x40000
    """)
    k.label(f"L_poll{edge}")
    k(f"""
    buffer_load_dword v7, v6, s[24:27], s38 offen {FL}
    s_sub_u32 s39, s39, 1
    s_cbranch_scc1 L_bail{edge}
    s_waitcnt vmcnt(0)
    v_cmp_ne_u32 vcc, s98, v7
    s_cbranch_vccnz L_poll{edge}
    """)
    k.label(f"L_bail{edge}")
    k("s_waitcnt vmcnt(0)")
    k("s_mov_b64 exec, -1")
    k.label(lab)
    k("s_barrier")


def wbl2(k, tag):
    if tag in os.environ.get("WBL2", "").split(","):
        k(f"""
        s_lshl_b32 s38, s37, 2
        s_add_u32 s38, s38, s3
        s_cmp_lg_u32 s38, 1
        s_cbranch_scc1 L_nowb_{tag}
        buffer_wbl2 sc1
        """)
        k.label(f"L_nowb_{tag}")


def wo_reg(s):
    return f"a[{224+4*s}:{227+4*s}]" if s < 8 else f"v[{160+4*(s-8)}:{163+4*(s-8)}]"


def w1_lds(f):
    if f < 28:
        return 131072 + f * 1024
    if f < 112:
        return (f - 28) * 1024
    return LDS_UT + (f - 112) * 1024


LDS_MODB = 156 * 1024
LDS_VEC = 158 * 1024
LDS_OST = 84 * 1024
LDS_UT = 116 * 1024
LDS_R = 125 * 1024


def lds_rd(dst, addr):
    base = (2, 4, 5)[addr >> 16]
    return f"ds_read_b128 {dst}, v{base} offset:{addr & 0xffff}"


class L(list):
    def __call__(self, text):
        for l in text.strip("\n").split("\n"):
            if l.strip():
                self.append(l.strip())


def weave(k, main, side, every):
    n = 0
    for x in main:
        k(x)
        n += 1
        if side and n % every == 0:
            for y in side.pop(0)():
                k(y)


SLOT = (64 * 1024, 112 * 1024, 64 * 1024, 112 * 1024)
LDS_RL = 112 * 1024
LDS_MODS = 128 * 1024
LDS_MRED = 48 * 1024
LDS_SHARE = 52 * 1024
LDS_MRED2 = 159 * 1024
OFF_MODP = 0x8000


def mega():
    k = Kern(NAME + "_kernel", nvgpr=256, nagpr=256, nsgpr=102)
    k.kid = 1
    vm = VM(k)
    if DIAG:
        k("s_memtime s[60:61]")
        k("s_memrealtime s[62:63]")
        for i in range(G.NST):
            k(f"s_mov_b32 s{64+i}, 0")
    k(f"""
    s_cmp_ge_u32 s2, 256
    s_cbranch_scc1 L_end_{k.name}
    s_load_dwordx16 s[4:19], s[0:1], 0
    s_load_dwordx4 s[20:23], s[0:1], 64
    s_load_dwordx2 s[24:25], s[0:1], 80
    v_lshrrev_b32 v2, 6, v0
    v_and_b32 v1, 63, v0
    v_readfirstlane_b32 s3, v2
    s_and_b32 s36, s2, 7
    s_lshr_b32 s37, s2, 3
    v_lshlrev_b32 v2, 4, v1
    s_getpc_b64 s[38:39]
    L_pc_here:
    s_lshl_b32 s98, s37, 2
    s_add_u32 s98, s98, s3
    s_and_b32 s98, s98, 63
    s_lshl_b32 s98, s98, 10
    s_add_u32 s38, s38, s98
    s_addc_u32 s39, s39, 0
    global_load_dwordx4 a[208:211], v2, s[38:39]
    s_memrealtime s[40:41]
    """)
    VA, VB, RAW, XF, FR, ACC = 8, 16, 24, 88, 216, 24
    WM, CC, MA = 8, 12, 16
    k(f"""
    v_lshrrev_b32 v3, 1, v1
    v_lshlrev_b32 v4, 1, v3              ; c voffset: (l>>1)*2
    v_mul_u32_u24 v3, 6144, v3
    v_and_b32 v5, 1, v1
    v_lshl_add_u32 v3, v5, 4, v3
    v_lshrrev_b32 v6, 3, v1              ; r8
    v_and_b32 v7, 7, v1
    v_and_b32 v248, 2, v6
    v_xor_b32 v7, v7, v248
    s_and_b32 s38, s3, 1
    s_lshl_b32 s38, s38, 2
    v_xor_b32 v7, s38, v7
    v_mul_u32_u24 v5, 3072, v6
    v_lshl_add_u32 v5, v7, 4, v5
    s_and_b32 s93, s37, 7
    s_lshl_b32 s93, s93, 1               ; rotW
    s_lshr_b32 s99, s37, 4
    s_lshl_b32 s99, s99, 3
    s_add_u32 s99, s99, s36
    s_lshl_b32 s99, s99, 2
    s_and_b32 s38, s37, 3
    s_add_u32 s99, s99, s38
    s_bfe_u32 s92, s37, 0x20002          ; k split
    s_lshl_b32 s100, s92, 2
    s_add_u32 s100, s100, s3
    s_lshl_b32 s101, s100, 6             ; c soffset
    s_mul_i32 s100, s100, {32*6144}
    s_lshl_b32 s38, s99, 5
    s_add_u32 s100, s100, s38
    s_lshl_b32 s39, s2, 2
    s_add_u32 s39, s39, s3
    v_lshlrev_b32 v248, 6, v1
    s_waitcnt lgkmcnt(0)
    s_mov_b32 s26, {G.WS_USED:#x}
    s_mov_b32 s27, 0x00020000
    """)
    srd(k, 48, 22, 256)
    k(f"""
    s_cmp_lg_u32 s39, 3
    s_cbranch_scc1 L_nozw
    s_mul_i32 s41, s41, 0x9e3779b1
    s_xor_b32 s40, s40, s41
    s_or_b32 s40, s40, 1
    v_mov_b32 v249, s40
    s_mov_b64 exec, 15
    buffer_store_dword v249, v248, s[48:51], 0 offen {FL}
    s_mov_b64 exec, -1
    L_nozw:
    """)
    srd(k, 44, P_WMOD, 512 * 3072 * 2)
    srd(k, 56, P_C, 1024)
    srd(k, 28, P_X, 2048 * 1024)
    stamp(k, 0)
    vm.op(f"buffer_load_ushort v{CC}, v4, s[56:59], s101 offen")
    wmid = vm.op(f"buffer_load_dwordx4 v[{WM}:{WM+3}], v3, s[44:47], s100 offen")
    srd(k, 32, 20, 2048 * 1024)
    k(f"""
    s_lshr_b32 s20, s36, 1
    s_lshl_b32 s20, s20, 3
    s_and_b32 s38, s37, 7
    s_add_u32 s20, s20, s38        ; tb1
    s_and_b32 s21, s36, 1
    s_lshl_b32 s21, s21, 2
    s_lshr_b32 s101, s37, 3        ; rotX
    s_add_u32 s21, s21, s101       ; cb1
    s_lshl_b32 s22, s21, 2
    s_add_u32 s22, s22, s3         ; head
    s_lshl_b32 s38, s20, 16
    s_lshl_b32 s23, s3, 14
    s_add_u32 s38, s38, s23
    """)
    rowid = {}
    def xrow(r):
        def f():
            out = []
            if r % 4 == 0:
                out = [f"s_xor_b32 s17, s101, {r//4}", "s_lshl_b32 s17, s17, 12", "s_add_u32 s17, s17, s16"]
            out.append(f"buffer_load_dwordx4 v[{RAW+4*r}:{RAW+4*r+3}], v2, s[28:31], s17 offen offset:{(r%4)*1024}")
            rowid[r] = vm.tick()
            return out
        return f
    k("s_mov_b32 s16, s38")
    NX0 = int(os.environ.get("NX0", "8"))
    for r in range(NX0):
        for y in xrow(r)():
            k(y)
    srd(k, 40, P_WQKV, 512 * 1536 * 2)
    k(f"""
    s_cmp_lt_u32 s2, 32
    s_cselect_b32 s52, s{P_WO}, s{P_W1}
    s_cselect_b32 s53, s{P_WO+1}, s{P_W1+1}
    s_mov_b32 s54, {512*1792*2:#x}
    s_cselect_b32 s54, {512*512*2:#x}, s54
    s_cmp_ge_u32 s2, 144
    s_cselect_b32 s52, s{P_W2}, s52
    s_cselect_b32 s53, s{P_W2+1}, s53
    s_mov_b32 s55, 0x00020000
    s_lshl_b32 s23, s21, 7
    s_mul_i32 s38, s3, {8*3072}
    s_add_u32 s23, s23, s38
    s_mul_i32 s100, s3, 3072
    """)
    RS_SCALAR = """
    s_cmp_lt_u32 s2, 32
    s_cselect_b32 s4, 0, 32
    s_cselect_b32 s5, 0, 1
    s_cmp_ge_u32 s2, 144
    s_cselect_b32 s4, 144, s4
    s_cselect_b32 s5, 2, s5
    s_sub_u32 s4, s2, s4
    s_lshr_b32 s6, s4, 3
    s_and_b32 s7, s4, 7
    s_mul_i32 s9, s4, 2341
    s_lshr_b32 s9, s9, 16
    s_mul_i32 s10, s9, 28
    s_sub_u32 s10, s4, s10
    s_mov_b32 s8, 1024
    s_cmp_eq_u32 s5, 1
    s_cselect_b32 s6, s9, s6
    s_cselect_b32 s7, s10, s7
    s_cselect_b32 s8, 3584, s8
    s_lshl_b32 s9, s6, 2
    s_add_u32 s9, s9, s3
    """
    k(RS_SCALAR)
    k(f"""
    s_lshl_b32 s12, s8, 5
    s_mul_i32 s12, s12, s9
    s_lshl_b32 s11, s7, 7
    s_add_u32 s12, s12, s11
    s_lshl_b32 s1, s8, 3
    v_lshrrev_b32 v248, 3, v1
    v_mul_lo_u32 v248, v248, s8
    v_and_b32 v249, 7, v1
    v_lshl_add_u32 v248, v249, 4, v248
    v_add_u32 v248, s12, v248
    v_accvgpr_write_b32 a212, v248
    s_lshl_b32 s0, s3, 16
    s_lshl_b32 s4, s2, 8
    s_add_u32 s0, s0, s4
    s_add_u32 s0, s0, {OFF_FLAG}
    """)
    stamp(k, 1)
    wd = {}
    def wdma(s):
        base = SLOT[s // 4] + (s % 4) * 12288
        def f(p):
            out = []
            if p == 0:
                out = [f"s_xor_b32 s39, s93, {s}", f"s_mul_i32 s39, s39, {32*3072}", f"s_add_u32 m0, s100, {base}", "s_add_u32 s39, s39, s23"]
            out.append(f"buffer_load_dwordx4 v5, s[40:43], s39 offen offset:{p*1024} lds")
            wd[s] = vm.tick()
            return out
        return [(lambda p=p: f(p)) for p in range(3)]
    NWA = int(os.environ.get("NWA", "6"))
    wq = [xrow(r) for r in range(NX0, 16)] + [g for s in range(NWA) for g in wdma(s)]
    def mod_reduce(mj, MA_, t0, t1, lds_off, lds_base=0):
        mj("s_nop 0")
        for i in range(4):
            mj(f"v_permlane32_swap_b32 v{MA_+i}, v{MA_+4+i}")
        for i in range(0, 4, 2):
            mj(f"v_pk_add_f32 v[{MA_+i}:{MA_+i+1}], v[{MA_+i}:{MA_+i+1}], v[{MA_+4+i}:{MA_+5+i}]")
        mj(f"v_lshrrev_b32 v{t0}, 4, v1")
        mj(f"v_and_b32 v{t1}, 1, v1")
        for i in range(2):
            mj(f"v_permlane16_swap_b32 v{MA_+i}, v{MA_+2+i}")
        mj(f"v_pk_add_f32 v[{MA_}:{MA_+1}], v[{MA_}:{MA_+1}], v[{MA_+2}:{MA_+3}]")
        mj(f"v_lshlrev_b32 v{t0}, 3, v{t0}")
        mj(f"v_lshl_add_u32 v{t0}, v{t1}, 5, v{t0}")
        for n_, ror in enumerate((8, 4, 2)):
            for i in range(2):
                mj(f"v_add_f32_dpp v{MA_+i}, v{MA_+i}, v{MA_+i} row_ror:{ror} row_mask:0xf bank_mask:0xf")
            mj("s_lshl_b32 s38, s3, 6" if n_ == 0 else (f"v_add_u32 v{t0}, s38, v{t0}" if n_ == 1 else f"v_add_u32 v{t0}, {lds_base}, v{t0}"))
        mj(f"ds_write_b64 v{t0}, v[{MA_}:{MA_+1}] offset:{lds_off}")
    def silu(mj, regs, tmp):
        for r, t in zip(regs, tmp):
            mj(f"v_mul_f32 v{t}, 0xbfb8aa3b, v{r}")
        for t in tmp:
            mj(f"v_exp_f32 v{t}, v{t}")
        mj("s_nop 0")
        for t in tmp:
            mj(f"v_add_f32 v{t}, 1.0, v{t}")
        for t in tmp:
            mj(f"v_rcp_f32 v{t}, v{t}")
        mj("s_nop 0")
        for r, t in zip(regs, tmp):
            mj(f"v_mul_f32 v{r}, v{r}, v{t}")
        for r in regs:
            bf16_round(mj, r, r)
    mj = L()
    vm.wait(wmid)
    stamp1(k, 13)
    mj(f"v_lshlrev_b32 v{CC}, 16, v{CC}")
    silu(mj, [CC], [CC + 1])
    for i in range(4):
        mj(f"v_lshlrev_b32 v{MA+2*i}, 16, v{WM+i}")
        mj(f"v_and_b32 v{MA+2*i+1}, 0xffff0000, v{WM+i}")
    for i in range(4):
        mj(f"v_pk_mul_f32 v[{MA+2*i}:{MA+2*i+1}], v[{MA+2*i}:{MA+2*i+1}], v[{CC}:{CC+1}] op_sel_hi:[1,0]")
    mod_reduce(mj, MA, CC, CC + 1, LDS_MRED)
    weave(k, mj, wq, int(os.environ.get("WV0", "10")))
    stamp(k, 2)
    SU, SQ = 216, 232
    WV = int(os.environ.get("WV1", "12"))
    PUBROW = int(os.environ.get("PUBROW", "3"))
    for r in range(16):
        ln = L()
        while r not in rowid:
            for y in wq.pop(0)():
                k(y)
        vm.wait(rowid[r])
        b, t = RAW + 4 * r, XF + 8 * r
        for i in range(4):
            ln(f"v_lshlrev_b32 v{t+2*i}, 16, v{b+i}")
            ln(f"v_and_b32 v{t+2*i+1}, 0xffff0000, v{b+i}")
        ln(f"v_pk_add_f32 v[248:249], v[{t}:{t+1}], v[{t+2}:{t+3}]")
        ln(f"v_pk_mul_f32 v[250:251], v[{t}:{t+1}], v[{t}:{t+1}]")
        ln(f"v_pk_add_f32 v[252:253], v[{t+4}:{t+5}], v[{t+6}:{t+7}]")
        for i in range(1, 4):
            ln(f"v_pk_fma_f32 v[250:251], v[{t+2*i}:{t+2*i+1}], v[{t+2*i}:{t+2*i+1}], v[250:251]")
        ln("v_pk_add_f32 v[248:249], v[248:249], v[252:253]")
        ln(f"v_add_f32 v{SQ+r}, v250, v251")
        ln(f"v_add_f32 v{SU+r}, v248, v249")
        weave(k, ln, wq, WV)
        if r in (0, 4, 8, 12):
            stamp1(k, 14 + r // 4)
        if r == PUBROW - 2:
            k("s_waitcnt lgkmcnt(0)")
            k("s_load_dword s98, s[48:49], 0")
        if r == PUBROW:
            k(f"""
            v_lshlrev_b32 v{CC}, 2, v1
            s_waitcnt lgkmcnt(0)
            s_barrier
            ds_read_b32 v{MA}, v{CC} offset:{LDS_MRED}
            s_cmp_eq_u32 s98, 0
            s_cbranch_scc1 L_zspin
            L_zpoll_out:
            s_cmp_lg_u32 s3, 0
            s_cbranch_scc1 L_mod_done
            s_lshl_b32 s38, s92, 13
            s_lshl_b32 s4, s99, 7
            s_add_u32 s38, s38, s4
            s_add_u32 s38, s38, {OFF_MODP}
            v_lshlrev_b32 v{CC}, 3, v1
            s_waitcnt lgkmcnt(0)
            v_mov_b32 v{MA+1}, v{MA}
            s_nop 1
            v_permlane32_swap_b32 v{MA+1}, v{MA}
            v_add_f32 v{MA}, v{MA+1}, v{MA}
            v_mov_b32 v{MA+1}, v{MA}
            s_nop 1
            v_permlane16_swap_b32 v{MA+1}, v{MA}
            v_add_f32 v{MA}, v{MA+1}, v{MA}
            v_mov_b32 v{MA+1}, s98
            s_mov_b64 exec, 0xffff
            buffer_store_dwordx2 v[{MA}:{MA+1}], v{CC}, s[24:27], s38 offen {FL}
            s_mov_b64 exec, -1
            L_mod_done:
            """)
            z = ["L_zspin:"]
            for ln_ in (64, 128, 192):
                z += [f"s_load_dword s98, s[48:49], {ln_}", "s_waitcnt lgkmcnt(0)", "s_cmp_lg_u32 s98, 0", "s_cbranch_scc1 L_zpoll_out", "s_sleep 6"]
            z += ["s_mov_b32 s4, 0x40000", f"v_mov_b32 v{CC+2}, 0",
                  "L_zspin2:", f"buffer_load_dword v{CC+1}, v{CC+2}, s[48:51], 0 offen {FL}", "s_waitcnt vmcnt(0)",
                  f"v_readfirstlane_b32 s98, v{CC+1}", "s_sub_u32 s4, s4, 1", "s_cbranch_scc1 L_zpoll_out", "s_sleep 8", "s_cmp_eq_u32 s98, 0",
                  "s_cbranch_scc1 L_zspin2", "s_branch L_zpoll_out"]
            OOL.append(z)
    k(f"""
    v_and_b32 v248, 15, v1
    v_lshrrev_b32 v249, 4, v1
    v_mul_u32_u24 v3, 3072, v249
    v_lshrrev_b32 v250, 2, v248
    v_lshl_add_u32 v3, v250, 7, v3
    v_and_b32 v250, 1, v248
    v_lshl_add_u32 v3, v250, 3, v3
    v_bfe_u32 v250, v248, 1, 1
    s_lshl_b32 s38, s3, 1
    v_add_u32 v250, s38, v250
    v_bfe_u32 v251, v248, 3, 1
    v_and_b32 v252, 1, v249
    v_lshl_add_u32 v251, v252, 1, v251
    v_lshlrev_b32 v251, 1, v251
    v_xor_b32 v250, v250, v251
    v_lshl_add_u32 v3, v250, 4, v3
    v_add_u32 v4, 0x10000, v3
    v_add_u32 v6, 0x20000, v3
    """)
    def trreads(b):
        out = []
        for s in range(4 * b, 4 * b + 4):
            for p in range(3):
                for h in range(2):
                    addr = SLOT[b] + (s % 4) * 12288 + p * 1024 + h * 512
                    ar = 12 * s + 4 * p + 2 * h
                    out.append(f"ds_read_b64_tr_b16 a[{ar}:{ar+1}], v{(3, 4, 6)[addr >> 16]} offset:{addr & 0xffff}")
        return out
    def normalize(half):
        out = L()
        for rr in range(8):
            r = 8 * half + rr
            out(f"v_readlane_b32 s{4+2*rr}, v{SQ+4+(r&3)}, {16*(r>>2)}")
            out(f"v_readlane_b32 s{5+2*rr}, v{SU+4+(r&3)}, {16*(r>>2)}")
        for rr in range(8):
            t = XF + 8 * (8 * half + rr)
            for i in range(4):
                out(f"v_pk_fma_f32 v[{t+2*i}:{t+2*i+1}], v[{t+2*i}:{t+2*i+1}], s[{4+2*rr}:{5+2*rr}], s[{4+2*rr}:{5+2*rr}] op_sel:[0,0,1] op_sel_hi:[1,0,1]")
        return out
    stamp(k, 3)
    ln = L()
    for base in (SQ, SU):
        for r in range(8):
            ln(f"v_permlane32_swap_b32 v{base+r}, v{base+8+r}")
    for base in (SQ, SU):
        for r in range(0, 8, 2):
            ln(f"v_pk_add_f32 v[{base+r}:{base+r+1}], v[{base+r}:{base+r+1}], v[{base+8+r}:{base+9+r}]")
    for base in (SQ, SU):
        for r in range(4):
            ln(f"v_permlane16_swap_b32 v{base+r}, v{base+4+r}")
    for base in (SQ, SU):
        for r in range(0, 4, 2):
            ln(f"v_pk_add_f32 v[{base+r}:{base+r+1}], v[{base+r}:{base+r+1}], v[{base+4+r}:{base+5+r}]")
    for ror in (8, 4, 2, 1):
        for base in (SQ, SU):
            for r in range(4):
                ln(f"v_add_f32_dpp v{base+r}, v{base+r}, v{base+r} row_ror:{ror} row_mask:0xf bank_mask:0xf")
    fin = [L() for _ in range(4)]
    for i in range(4):
        ln_stats_finish(fin[i], SU + i, SQ + i, SU + 4 + i, SQ + 4 + i, SQ + 8 + i)
        fin[i](f"v_mul_f32 v{SU+4+i}, -v{SU+4+i}, v{SQ+4+i}")
    for tup in zip(*fin):
        for x in tup:
            if not x.startswith("s_nop"):
                ln(x)
    weave(k, ln, wq, 10)
    for g in wq:
        for y in g():
            k(y)
    stamp(k, 4)
    MP = 24
    def modloads():
        out = ["s_lshl_b32 s38, s3, 11", f"s_add_u32 s38, s38, {OFF_MODP}"]
        for q in range(4):
            if q:
                out.append("s_add_u32 s38, s38, 8192")
            for h in range(2):
                r_ = MP + 8 * q + 4 * h
                out.append(f"buffer_load_dwordx4 v[{r_}:{r_+3}], v2, s[24:27], s38 offen offset:{1024*h} {FL}")
        return out
    def modcheck():
        out = L()
        t = [MP + 2 * i + 1 for i in range(16)]
        out(f"v_and_b32 v252, v{t[0]}, v{t[1]}")
        out(f"v_or_b32 v253, v{t[0]}, v{t[1]}")
        for i in range(2, 16, 2):
            out(f"v_bitop3_b32 v252, v252, v{t[i]}, v{t[i+1]} bitop3:0x80")
            out(f"v_or3_b32 v253, v253, v{t[i]}, v{t[i+1]}")
        out("v_xor_b32 v252, s98, v252")
        out("v_xor_b32 v253, s98, v253")
        out("v_or_b32 v252, v252, v253")
        out("v_cmp_ne_u32 vcc, 0, v252")
        return out
    for x in modloads():
        k(x)
        if x.startswith("buffer"):
            modid = vm.tick()
    if int(os.environ.get("PRET", "1")):
        k(f"""
        v_lshlrev_b32 v56, 7, v1
        v_and_b32 v56, 0xfff, v56
        s_sub_u32 s4, {OFF_XID}, s0
        v_add_u32 v56, s4, v56
        s_cmp_eq_u32 s2, 9
        s_cselect_b32 s4, 32, 0
        v_cmp_gt_u32 vcc, s4, v1
        s_nop 1
        v_cndmask_b32 v56, 0, v56, vcc
        """)
        vm.op("buffer_load_dword a213, v56, s[24:27], s0 offen")
        TLBS = int(os.environ.get("TLBS", "0"))
        if TLBS:
            k(f"""
            v_lshlrev_b32 v57, {TLBS}, v1
            s_cmp_eq_u32 s3, 2
            s_cselect_b32 s4, 0, 0x7f000000
            """)
            vm.op("buffer_load_dword a214, v57, s[24:27], s4 offen")
            vm.op("buffer_load_dword a215, v57, s[32:35], s4 offen")
    OOL.append(["L_mod_spin:", "s_mov_b32 s39, 0x40000", "L_mod_spin2:"]
               + modloads() + ["s_sub_u32 s39, s39, 1", "s_waitcnt vmcnt(0)"]
               + list(modcheck()) + ["s_cbranch_scc1 L_mod_ok", "s_sleep 4", "s_cbranch_vccnz L_mod_spin2", "s_branch L_mod_ok"])
    vm.wait(wd[3]); k("s_barrier")
    wq = [g for s in range(NWA, 8) for g in wdma(s)]
    mix = wq + [(lambda x=x: [x]) for x in trreads(0)]
    weave(k, normalize(0) + normalize(1), mix, 3)
    assert not mix
    k(f"""
    s_lshl_b32 s38, s93, 2
    v_xor_b32 v254, s38, v1
    v_lshlrev_b32 v254, 8, v254
    v_and_b32 v253, 7, v1
    v_lshl_add_u32 v254, v253, 4, v254
    s_lshl_b32 s38, s3, 14
    s_lshl_b32 s39, s101, 6
    v_add_u32 v254, s38, v254
    v_xor_b32 v254, s39, v254
    s_lshl_b32 s38, s3, 10
    v_lshlrev_b32 v7, 3, v1
    v_add_u32 v7, s38, v7
    v_lshlrev_b32 v255, 5, v1
    s_cmp_ge_u32 s3, 2
    s_cselect_b32 s5, 1.0, 0
    """)
    vm.wait(modid)
    for x in modcheck(): k(x)
    k("s_nop 0")
    k("s_cbranch_vccnz L_mod_spin")
    k.label("L_mod_ok")
    for i in range(4):
        k(f"v_add_f32 v{8+i}, v{MP+2*i}, v{MP+8+2*i}")
        k(f"v_add_f32 v{12+i}, v{MP+16+2*i}, v{MP+24+2*i}")
    k("v_pk_add_f32 v[8:9], v[8:9], v[12:13]")
    k("v_pk_add_f32 v[10:11], v[10:11], v[14:15]")
    for rep in range(2):
        k("v_cvt_pk_bf16_f32 v12, v8, v9")
        k("v_cvt_pk_bf16_f32 v13, v10, v11")
        for i in range(2):
            k(f"v_lshlrev_b32 v{8+2*i}, 16, v{12+i}")
            k(f"v_and_b32 v{9+2*i}, 0xffff0000, v{12+i}")
        if rep == 0:
            for i in range(4):
                k(f"v_add_f32 v{8+i}, s5, v{8+i}")
    k(f"""
    ds_write_b64 v7, v[8:9] offset:{LDS_SHARE}
    ds_write_b64 v7, v[10:11] offset:{LDS_SHARE+512}
    s_waitcnt lgkmcnt(0)
    s_barrier
    ds_read_b128 v[{VB}:{VB+3}], v255 offset:{LDS_SHARE}
    ds_read_b128 v[{VB+4}:{VB+7}], v255 offset:{LDS_SHARE+16}
    ds_read_b128 v[{VA}:{VA+3}], v255 offset:{LDS_SHARE+2048}
    ds_read_b128 v[{VA+4}:{VA+7}], v255 offset:{LDS_SHARE+2064}
    """)
    wq = [g for s in range(8, 12) for g in wdma(s)]
    for g in wq[:2]:
        for y in g():
            k(y)
    wq = wq[2:]
    k("s_waitcnt lgkmcnt(0)")
    stamp(k, 5)
    md = L()
    def mrow(r):
        t = XF + 8 * r
        for i in range(4):
            md(f"v_pk_fma_f32 v[{t+2*i}:{t+2*i+1}], v[{t+2*i}:{t+2*i+1}], v[{VA+2*i}:{VA+2*i+1}], v[{VB+2*i}:{VB+2*i+1}]")
        for i in range(4):
            md(f"v_cvt_pk_bf16_f32 v{t+i}, v{t+2*i}, v{t+2*i+1}")
        md(f"v_xor_b32 v{t+4}, {r<<4}, v254")
    def mwr(r):
        t = XF + 8 * r
        md(f"ds_write_b128 v{t+4}, v[{t}:{t+3}]")
    mrow(0)
    md("s_barrier")
    for r in range(1, 16):
        mwr(r - 1)
        mrow(r)
    mwr(15)
    weave(k, md, wq, 12)
    assert not wq
    k(f"""
    v_and_b32 v8, 15, v1
    v_lshrrev_b32 v9, 4, v1
    v_xor_b32 v10, v8, v9
    v_lshlrev_b32 v10, 4, v10
    v_lshl_add_u32 v8, v9, 8, v10
    v_xor_b32 v9, 64, v8
    v_accvgpr_read_b32 v248, a212
    """)
    k(vm.wait_str(wd[7]) + " lgkmcnt(0)")
    k("s_barrier")
    stamp(k, 6)
    def aread(s):
        f = FR + 16 * (s & 1)
        return [f"ds_read_b128 v[{f+4*b}:{f+4*b+3}], v{8 + (s & 1)} offset:{b*16384+s*1024}" for b in range(4)]
    ex1, ex2, ex3 = trreads(1), trreads(2), trreads(3)
    RLATT = int(os.environ.get("RLATT", "1"))
    for x in aread(0): k(x)
    for s in range(16):
        nxt = aread(s + 1) if s < 15 else []
        k("s_waitcnt lgkmcnt(0)")
        SB3 = int(os.environ.get("SB3", "10"))
        if s == 3:
            k("s_barrier")
        if s == 5:
            vm.wait(wd[11]); k("s_barrier")
        if s == SB3:
            vm.wait(wd[15]); k("s_barrier")
        if s < 3:
            nxt += ex1[8 * s:8 * s + 8]
        if s in (3, 4):
            for s2_ in (12 + 2 * (s - 3), 13 + 2 * (s - 3)):
                for g in wdma(s2_):
                    nxt.append("\n".join(g()))
        if 5 <= s < 9:
            nxt += ex2[6 * (s - 5):6 * (s - 5) + 6]
        if SB3 <= s < SB3 + 4:
            nxt += ex3[6 * (s - SB3):6 * (s - SB3) + 6]
        RL0 = int(os.environ.get("RL0", "5"))
        if RL0 <= s < RL0 + 4 and not RLATT:
            i = s - RL0
            nxt += ["s_add_u32 s12, s12, s1" if i else "s_mov_b32 s12, 0", f"buffer_load_dwordx4 a[{192+4*i}:{195+4*i}], v248, s[52:55], s12 offen"]
            vm.tick()
        f = FR + 16 * (s & 1)
        for b in range(4):
            for which in range(3):
                acc = ACC + 4 * (which * 4 + b)
                w = f"a[{12*s+4*which}:{12*s+4*which+3}]"
                h = f"v[{f+4*b}:{f+4*b+3}]"
                c = "0" if s == 0 else f"v[{acc}:{acc+3}]"
                a_, b_ = (w, h) if which < 2 else (h, w)
                k(f"v_mfma_f32_16x16x32_bf16 v[{acc}:{acc+3}], {a_}, {b_}, {c}")
                if nxt:
                    k(nxt.pop(0))
        assert not nxt
    stamp(k, 7)
    C2 = 200
    k(f"""
    v_lshrrev_b32 v221, 1, v1
    v_lshlrev_b32 v220, 3, v221
    s_lshl_b32 s38, s3, 8
    buffer_load_dwordx2 v[{C2}:{C2+1}], v220, s[56:59], s38 offen
    """)
    k(f"""
    s_lshl_b32 s40, s22, 16
    s_lshl_b32 s41, s20, 11
    s_add_u32 s40, s40, s41
    s_add_u32 s40, s40, {OFF_Q}
    s_lshl_b32 s42, s22, 17
    s_lshl_b32 s41, s20, 12
    s_add_u32 s42, s42, s41
    s_add_u32 s42, s42, {OFF_KV}
    v_mov_b32 v12, {QSCALE:#x}
    v_mov_b32 v13, {QSCALE:#x}
    """)
    for which in (1, 2, 0):
        for bp in range(2):
            t = 88 + 4 * (which * 2 + bp)
            for b2 in range(2):
                acc = ACC + 4 * (which * 4 + bp * 2 + b2)
                if which == 0:
                    k(f"v_pk_mul_f32 v[{acc}:{acc+1}], v[12:13], v[{acc}:{acc+1}]")
                    k(f"v_pk_mul_f32 v[{acc+2}:{acc+3}], v[12:13], v[{acc+2}:{acc+3}]")
                k(f"v_cvt_pk_bf16_f32 v{t+2*b2}, v{acc}, v{acc+1}")
                k(f"v_cvt_pk_bf16_f32 v{t+2*b2+1}, v{acc+2}, v{acc+3}")
        op = "v_permlane32_swap_b32" if which == 2 else "v_permlane16_swap_b32"
        for bp in range(2):
            t = 88 + 4 * (which * 2 + bp)
            if bp == 1:
                k("s_nop 0")
            k(f"{op} v{t}, v{t+2}")
            k(f"{op} v{t+1}, v{t+3}")
            if which == 0:
                vm.op(f"buffer_store_dwordx4 v[{t}:{t+3}], v2, s[24:27], s40 offen offset:{bp*1024} {FL}")
            else:
                vm.op(f"buffer_store_dwordx4 v[{t}:{t+3}], v2, s[24:27], s42 offen offset:{bp*2048+(which-1)*1024} {FL}")
    stamp(k, 25)
    signal(k, 0, 21, 20, 32)
    stamp(k, 26)
    RA, RD, W2M, M2 = 160, 168, 184, 208
    LDS_RLS = 128 * 1024
    k(RS_SCALAR)
    k(f"""
    s_lshl_b32 s14, s3, 12
    s_add_u32 s14, s14, {LDS_RLS}
    v_and_b32 v248, 15, v1
    v_lshrrev_b32 v249, 4, v1
    v_lshrrev_b32 v250, 2, v248
    v_and_b32 v248, 3, v248
    v_lshlrev_b32 v248, 3, v248
    v_lshl_add_u32 v248, v250, 7, v248
    v_add_u32 v248, s14, v248
    v_and_b32 v250, 1, v249
    v_lshrrev_b32 v249, 1, v249
    s_cmp_eq_u32 s5, 1
    s_cbranch_scc1 L_rl_c
    v_lshl_add_u32 v248, v250, 5, v248
    s_lshr_b32 s13, s5, 1
    s_add_u32 s23, s13, 9
    v_lshlrev_b32 v249, s23, v249
    v_add_u32 v{RA}, v248, v249
    v_add_u32 v{RA+1}, 64, v{RA}
    v_add_u32 v{RA+2}, 0x800, v{RA}
    v_add_u32 v{RA+3}, 0x840, v{RA}
    s_lshr_b32 s23, 1024, s13
    s_cmp_eq_u32 s5, 0
    s_cselect_b32 s15, 32, 112      ; ksteps
    s_mov_b32 s10, {OFF_W2}
    s_cselect_b32 s10, {OFF_WO}, s10
    s_lshl_b32 s11, s7, 1
    s_mul_i32 s11, s11, s15
    s_lshl_b32 s13, s9, 1
    s_add_u32 s11, s11, s13
    s_lshl_b32 s11, s11, 10
    s_add_u32 s16, s11, s10
    s_lshl_b32 s15, s15, 10
    s_add_u32 s17, s16, s15
    s_add_u32 s18, s16, 1024
    s_add_u32 s19, s17, 1024
    s_branch L_rl_d
    L_rl_c:
    v_lshl_add_u32 v248, v249, 11, v248
    v_lshl_add_u32 v{RA}, v250, 9, v248
    v_add_u32 v{RA+1}, 32, v{RA}
    v_add_u32 v{RA+2}, 64, v{RA}
    v_add_u32 v{RA+3}, 0x60, v{RA}
    s_mov_b32 s23, 1024
    s_lshl_b32 s15, s7, 2
    s_mul_i32 s13, s9, 7
    """)
    for f in range(4):
        k(f"""
        s_mul_i32 s10, s15, 9363
        s_lshr_b32 s10, s10, 16
        s_mul_i32 s11, s10, 105
        s_add_u32 s11, s11, s15
        s_add_u32 s11, s11, s13
        s_lshl_b32 s11, s11, 10
        s_add_u32 s{16+f}, s11, {OFF_W1}
        s_add_u32 s15, s15, 1
        """)
    k.label("L_rl_d")
    for f in range(4):
        k(f"v_add_u32 v{RA+4+f}, s23, v{RA+f}")
    k(f"""
    v_add_u32 v220, s14, v2
    s_lshr_b32 s99, s37, 2
    s_lshl_b32 s99, s99, 3
    s_add_u32 s99, s99, s36
    s_lshl_b32 s99, s99, 2
    s_and_b32 s38, s37, 3
    s_add_u32 s99, s99, s38
    s_add_u32 s99, s99, 64
    v_mul_u32_u24 v221, {4*6144}, v221
    v_and_b32 v249, 1, v1
    v_lshl_add_u32 v221, v249, 4, v221
    s_mul_i32 s15, s3, {128*6144}
    s_lshl_b32 s4, s99, 5
    s_add_u32 s15, s15, s4
    s_cmp_ge_u32 s37, 16
    s_cselect_b32 s15, 0x7f000000, s15
    s_lshl_b32 s20, s2, 1
    s_lshr_b32 s21, s3, 1
    s_add_u32 s20, s20, s21
    s_mul_i32 s20, s20, 6144
    s_and_b32 s21, s3, 1
    s_lshl_b32 s21, s21, 11
    s_add_u32 s20, s20, s21
    s_add_u32 s20, s20, 2048
    s_mov_b64 s[8:9], s[52:53]
    s_mov_b32 s10, s54
    s_mov_b32 s11, 0x00020000
    v_accvgpr_read_b32 v222, a212
    s_mov_b64 s[4:5], s[44:45]
    s_mov_b32 s6, s46
    s_mov_b32 s7, 0x00020000
    v_lshlrev_b32 v{C2+2}, 16, v{C2}
    v_and_b32 v{C2+3}, 0xffff0000, v{C2}
    v_lshlrev_b32 v{C2+4}, 16, v{C2+1}
    v_and_b32 v{C2+5}, 0xffff0000, v{C2+1}
    """)
    silu(k, [C2 + 2 + i for i in range(4)], [M2 + i for i in range(4)])
    stamp(k, 8)
    Q, KF, VF, S, P, O, C = (ATT[x] for x in ("Q", "KF", "VF", "S", "P", "O", "C"))
    TOKP = int(os.environ.get("TOKP", "0"))
    MAP2 = "s_mov_b32 s40, s37\n    s_mov_b32 s54, s36" if TOKP else "s_lshl_b32 s40, s36, 2\n    s_and_b32 s42, s37, 3\n    s_add_u32 s40, s40, s42\n    s_lshr_b32 s54, s37, 2"
    k(f"""
    {MAP2}
    s_lshl_b32 s41, s54, 2
    s_add_u32 s41, s41, s3         ; qblock64
    s_lshl_b32 s42, s40, 16
    s_lshl_b32 s43, s41, 11
    s_add_u32 s42, s42, s43
    s_add_u32 s42, s42, {OFF_Q}
    s_lshl_b32 s44, s40, 17
    s_lshl_b32 s45, s3, 10
    s_add_u32 s47, s44, {OFF_KV}
    s_add_u32 s44, s47, s45
    s_lshl_b32 s46, s41, 16
    s_lshl_b32 s43, s40, 10
    s_add_u32 s46, s46, s43
    s_add_u32 s46, s46, {OFF_O}
    s_mov_b32 m0, s45
    v_and_b32 v3, 15, v1
    v_lshlrev_b32 v3, 4, v3
    v_lshrrev_b32 v4, 5, v1
    v_lshl_add_u32 v3, v4, 8, v3
    v_add_u32 v4, 0x10000, v2
    v_add_u32 v5, 0x10000, v3
    s_mov_b32 s48, 0x0000ffff
    s_mov_b32 s49, 0x0000ffff
    v_and_b32 v8, 27, v1
    v_cmp_eq_u32 vcc, 16, v8
    v_mov_b32 v9, 0x3f803f80
    s_nop 0
    v_cndmask_b32 v9, 0, v9, vcc
    """)
    for i in range(16):
        k(f"v_mov_b32 v{VF+i}, v9")
    k(f"""
    s_lshr_b32 s50, s37, 3
    s_lshl_b32 s50, s50, 2
    s_add_u32 s50, s50, s3          ; P3 ncol32
    s_lshl_b32 s51, s50, 15
    s_add_u32 s51, s51, {OFF_WO}
    s_lshr_b32 s52, s37, 2
    s_lshl_b32 s52, s52, 1
    s_lshr_b32 s53, s3, 1
    s_add_u32 s52, s52, s53
    s_xor_b32 s53, s52, 1
    s_mul_i32 s55, s52, {112*1024}
    s_mul_i32 s56, s53, {112*1024}
    s_mul_i32 s53, s3, {28*1024}
    s_add_u32 s53, s53, {OFF_W2}
    s_add_u32 s55, s55, s53
    s_add_u32 s56, s56, s53
    s_lshr_b32 s57, s37, 2
    s_lshl_b32 s57, s57, 1
    s_and_b32 s53, s37, 1
    s_add_u32 s57, s57, s53         ; cb4
    s_mul_i32 s58, s57, {112*1024}
    s_add_u32 s58, s58, {OFF_W1}
    s_mul_i32 s22, s3, 7168
    s_mul_i32 s23, s3, 21504
    s_add_u32 s21, s58, s23
    s_add_u32 s21, s21, {28*1024}
    v_lshrrev_b32 v8, 5, v1
    v_and_b32 v9, 31, v1
    v_lshlrev_b32 v148, 10, v9
    v_lshl_add_u32 v148, v8, 3, v148
    v_lshlrev_b32 v149, 4, v9
    v_lshl_add_u32 v149, v8, 12, v149
    s_lshl_b32 s59, s36, 3
    s_and_b32 s53, s37, 7
    s_add_u32 s59, s59, s53
    s_lshl_b32 s59, s59, 15
    s_lshl_b32 s53, s50, 6
    s_add_u32 s59, s59, s53
    s_lshr_b32 s53, s37, 2
    """)
    wait_edge(k, 0, 53 if TOKP else 36, 32)
    stamp(k, 9)
    vm.n = 0
    rid = []
    def dma():
        i = len(rid)
        out = []
        if i < 4:
            if i:
                out += [f"s_add_u32 m0, s45, {4096*i}", "s_add_u32 s44, s44, 4096"]
            out += [f"buffer_load_dwordx4 v2, s[24:27], s44 offen {FL} lds"]
        else:
            if i % 4 == 0:
                out += [f"s_add_u32 m0, s43, {4096*i}", f"s_add_u32 s44, s41, {4096*i}"]
            out += [f"buffer_load_dwordx4 v2, s[24:27], s44 offen offset:{1024*(i%4)} {FL} lds"]
        rid.append(vm.tick())
        return out
    k("s_lshl_b32 s43, s3, 12")
    k("s_add_u32 s41, s47, s43")
    for x in dma(): k(x)
    vm.op(f"buffer_load_dwordx4 v[{Q}:{Q+3}], v2, s[24:27], s42 offen {FL}")
    qid = vm.op(f"buffer_load_dwordx4 v[{Q+4}:{Q+7}], v2, s[24:27], s42 offen offset:1024 {FL}")
    for r in range(3):
        for x in dma(): k(x)
    fin2 = L()
    fin2(f"""
    s_cmp_lg_u32 s3, 1
    s_cbranch_scc1 L_m2_done
    s_cmp_ge_u32 s37, 16
    s_cbranch_scc1 L_m2_done
    v_lshlrev_b32 v216, 2, v1
    v_add_u32 v217, {LDS_MRED2}, v216
    ds_read_b32 v{M2}, v217
    s_lshr_b32 s38, s99, 5
    s_cmp_eq_u32 s38, 4
    s_cselect_b32 s39, 1.0, 0
    s_waitcnt lgkmcnt(0)
    v_mov_b32 v{M2+1}, v{M2}
    s_nop 1
    v_permlane32_swap_b32 v{M2+1}, v{M2}
    v_add_f32 v{M2}, v{M2+1}, v{M2}
    v_mov_b32 v{M2+1}, v{M2}
    s_nop 1
    v_permlane16_swap_b32 v{M2+1}, v{M2}
    v_add_f32 v{M2}, v{M2+1}, v{M2}
    """)
    bf16_round(fin2, M2, M2)
    fin2(f"v_add_f32 v{M2}, s39, v{M2}")
    bf16_round(fin2, M2, M2)
    fin2(f"""
    s_lshl_b32 s39, s99, 6
    s_mov_b64 exec, 0xffff
    buffer_store_dword v{M2}, v216, s[24:27], s39 offen offset:{OFF_MOD} {FL}
    s_sub_u32 s38, 4, s38
    s_cmp_gt_u32 s38, 1
    s_cbranch_scc1 L_m2_done
    s_lshl_b32 s38, s38, 10
    s_and_b32 s39, s99, 31
    s_lshl_b32 s39, s39, 5
    s_add_u32 s38, s38, s39
    s_add_u32 s38, s38, {OFF_MODB}
    v_bfe_u32 v217, v1, 2, 1
    v_lshlrev_b32 v216, 4, v217
    v_bfe_u32 v217, v1, 3, 1
    v_lshl_add_u32 v216, v217, 3, v216
    v_and_b32 v217, 3, v1
    v_lshl_add_u32 v216, v217, 1, v216
    buffer_store_short_d16_hi v{M2}, v216, s[24:27], s38 offen {FL}
    L_m2_done:
    s_mov_b64 exec, -1
    """)
    vm.wait(qid)
    k("s_barrier")
    def kread(t):
        off = t * 2048
        return f"ds_read_b128 v[{KF}:{KF+3}], v{2 if off < 65536 else 4} offset:{off & 0xffff}"
    def vread(t):
        off = t * 2048 + 1024
        b = VF + 8 * (t & 1)
        a = 3 if off < 65536 else 5
        return ["s_mov_b64 exec, s[48:49]",
                f"ds_read_b128 v[{b}:{b+3}], v{a} offset:{off & 0xffff}",
                f"ds_read_b128 v[{b+4}:{b+7}], v{a} offset:{(off+512) & 0xffff}",
                "s_mov_b64 exec, -1"]
    k(kread(0))
    for x in vread(0): k(x)
    k(f"""
    s_waitcnt lgkmcnt(2)
    v_mfma_f32_32x32x16_bf16 v[{S}:{S+15}], v[{KF}:{KF+3}], v[{Q}:{Q+3}], 0
    v_mfma_f32_32x32x16_bf16 v[{S+16}:{S+31}], v[{KF}:{KF+3}], v[{Q+4}:{Q+7}], 0
    s_nop 10
    """)
    att_max16(k, 6, S, True)
    att_max16(k, 7, S + 16, True)
    k("""
    s_nop 1
    v_permlane32_swap_b32 v6, v7
    v_max_f32 v6, v6, v7
    v_mov_b32 v7, v6
    s_nop 1
    v_permlane32_swap_b32 v6, v7
    v_sub_f32 v6, 0, v6
    v_sub_f32 v7, 0, v7
    """)
    for i in range(16):
        k(f"v_mov_b32 v{C+i}, v6")
    k("s_nop 0")
    k(f"v_mov_b32 v{C+16}, v7")
    k(f"v_mfma_f32_32x32x16_bf16 v[{S}:{S+15}], v[{KF}:{KF+3}], v[{Q}:{Q+3}], v[{C}:{C+15}]")
    for i in range(1, 16):
        k(f"v_mov_b32 v{C+16+i}, v7")
    stamp(k, 10)
    jobs = []
    for s in range(32):
        pre = ["s_add_u32 s51, s51, 4096"] if (s and s % 4 == 0) else []
        jobs.append(pre + [f"buffer_load_dwordx4 {wo_reg(s)}, v2, s[24:27], s51 offen offset:{(s%4)*1024} {FL}"])
    for s in range(28):
        for i, sr in enumerate((55, 56)):
            pre = [f"s_add_u32 s{sr}, s{sr}, 4096"] if (s and s % 4 == 0) else []
            jobs.append(pre + [f"buffer_load_dwordx4 a[{8*s+4*i}:{8*s+4*i+3}], v2, s[24:27], s{sr} offen offset:{(s%4)*1024} {FL}"])
    w1jobs = []
    for i in range(7):
        pre = [f"s_add_u32 m0, s22, {131072 + 4096*(i//4)}", f"s_add_u32 s44, s58, s22"] + ([f"s_add_u32 s44, s44, 4096"] if i else []) if i % 4 == 0 else []
        w1jobs.append(pre + [f"buffer_load_dwordx4 v2, s[24:27], s44 offen offset:{1024*(i%4)} sc1 lds"])
    for i in range(21):
        pre = [f"s_add_u32 m0, s23, {4096*(i//4)}", f"s_add_u32 s44, s21, {4096*(i//4)}"] if i % 4 == 0 else []
        w1jobs.append(pre + [f"buffer_load_dwordx4 v2, s[24:27], s44 offen offset:{1024*(i%4)} sc1 lds"])
    modb = ["s_and_b32 s53, s45, 1024", f"s_add_u32 m0, s53, {LDS_MODB}", f"s_add_u32 s53, s53, {OFF_MODB}",
            "buffer_load_dwordx4 v2, s[24:27], s53 offen sc1 lds"]
    vec1 = [f"s_mov_b32 m0, {LDS_VEC}", "s_lshr_b32 s53, s37, 3", "s_lshl_b32 s53, s53, 9", f"s_add_u32 s53, s53, {OFF_MOD + 2*2048}",
            "buffer_load_dwordx4 v149, s[24:27], s53 offen sc1 lds"]
    vec2 = [f"s_mov_b32 m0, {LDS_VEC + 1024}", "s_lshr_b32 s53, s37, 4", "s_lshl_b32 s53, s53, 10", f"s_add_u32 s53, s53, {OFF_MOD + 5*2048}",
            "buffer_load_dwordx4 v2, s[24:27], s53 offen sc1 lds"]
    xj = [[f"buffer_load_dwordx2 v[{140+2*j}:{141+2*j}], v148, s[28:31], s59 offen offset:{16*j}"] for j in range(4)]
    wo_j, w2_j = jobs[:32], jobs[32:]
    NW2 = int(os.environ.get("NW2", "44"))
    w2_late = w2_j[NW2:]
    jobs = w1jobs[:7] + w2_j[:NW2] + wo_j
    late = w1jobs[7:]
    vecj = [modb, vec1, vec2]
    pfj = [[f"buffer_load_dwordx4 v[{224+4*i}:{227+4*i}], v2, s[4:7], s20 offen offset:{1024*i}"] for i in range(2)]
    rlj = [["s_add_u32 s12, s12, s1" if i else "s_mov_b32 s12, 0", f"buffer_load_dwordx4 a[{192+4*i}:{195+4*i}], v222, s[8:11], s12 offen"]
           for i in range(4)] if RLATT else []
    m2j = [(["s_add_u32 s15, s15, 6144"] if i else []) + [f"buffer_load_dwordx4 v[{W2M+4*i}:{W2M+4*i+3}], v221, s[4:7], s15 offen"]
           for i in range(4)]
    bg = L()
    for p in range(4):
        for i in range(4):
            src = W2M + 4 * p + i
            t_ = 216 + 2 * (i & 1)
            bg(f"v_lshlrev_b32 v{t_}, 16, v{src}")
            bg(f"v_and_b32 v{t_+1}, 0xffff0000, v{src}")
            if p == 0:
                bg(f"v_pk_mul_f32 v[{M2+2*i}:{M2+2*i+1}], v[{t_}:{t_+1}], v[{C2+2}:{C2+3}] op_sel_hi:[1,0]")
            else:
                sel = "op_sel:[0,1,0] op_sel_hi:[1,1,1]" if p & 1 else "op_sel_hi:[1,0,1]"
                cr = C2 + 2 + (p & 2)
                bg(f"v_pk_fma_f32 v[{M2+2*i}:{M2+2*i+1}], v[{t_}:{t_+1}], v[{cr}:{cr+1}], v[{M2+2*i}:{M2+2*i+1}] {sel}")
    mod_reduce(bg, M2, C2, C2 + 1, 0, LDS_MRED2)
    bg = [x for x in bg if not x.startswith("s_nop")]
    U_RL, U_FLAG, U_XL, U_XC = 4, (30 if TOKP else 20), (48 if TOKP else 44), (54 if TOKP else 50)
    U_M2, U_BG, U_FIN, U_MFLAG, U_ML, U_MC = (38 if TOKP else 32), 56, 68, 76, 112, 118
    if RLATT:
        U_RL, U_FLAG, U_XL, U_XC = 34, 46, 60, 66
        U_M2, U_BG, U_FIN, U_MFLAG = 47, 62, 74, 80
    def flagblk(lab, off, cond, xcc=False):
        val = ["s_getreg_b32 s38, hwreg(HW_REG_XCC_ID, 0, 4)", "s_xor_b32 s38, s38, s98"] if xcc else ["s_mov_b32 s38, s98"]
        return cond + val + ["s_lshl_b32 s39, s2, 2", f"s_add_u32 s39, s39, {off}", "s_mov_b64 exec, 1", "v_mov_b32 v6, 0", "v_mov_b32 v7, s38",
                             f"buffer_store_dword v7, v6, s[24:27], s39 offen {FL}", "s_mov_b64 exec, -1", f"{lab}:"]
    def chk(lim):
        return ["v_xor_b32 v150, s98, v150", "v_xor_b32 v151, s98, v151", "v_xor_b32 v152, s98, v152", "v_xor_b32 v153, s98, v153",
                "v_or3_b32 v154, v150, v151, v152", "v_or_b32 v154, v154, v153", f"v_cmp_lt_u32 vcc, {lim}, v154"]
    for tag, off, lim in (("xid", OFF_XID, 0), ("mid", OFF_XID + 2048, 15)):
        OOL.append([f"L_{tag}_retry:", "s_mov_b32 s39, 0x40000", f"s_mov_b32 s53, {off}", f"L_{tag}_spin:",
                    f"buffer_load_dwordx4 v[150:153], v2, s[24:27], s53 offen {FL}", "s_sub_u32 s39, s39, 1", "s_waitcnt vmcnt(0)"] + chk(lim) +
                   [f"s_cbranch_scc1 L_{tag}_ok", "s_sleep 32", f"s_cbranch_vccnz L_{tag}_spin", f"s_branch L_{tag}_ok"])
    for u in range(128):
        t = u >> 1
        side = {}
        def add(slot, xs):
            side.setdefault(slot, []).extend(xs)
        def put(d, slot):
            ms = 7 if slot == 1 else 21
            add(ms - 1, d[:-1]); add(ms, d[-1:])
            return vm.tick()
        if len(rid) < 32:
            d = dma()
            add(6, d[:-1]); add(7, d[-1:])
        elif rlj:
            rlid = put(rlj.pop(0), 1)
        elif pfj:
            put(pfj.pop(0), 1)
        elif xj:
            put(xj.pop(0), 1)
        elif U_M2 <= u < U_M2 + 4:
            m2id = put(m2j[u - U_M2], 1)
        elif vecj and u > U_MC:
            put(vecj.pop(0), 1)
        elif jobs and u > U_XC and (u > U_MFLAG or len(jobs) > 24):
            put(jobs.pop(0), 1)
        if u == U_BG:
            add(7, [vm.wait_str(m2id)])
        if u > U_BG:
            for sl in (4, 6, 8, 11, 13, 18, 20, 25):
                if bg:
                    add(sl, [bg.pop(0)])
        if u % 2 == 0 and t < 63:
            pre = []
            if u == 2:
                pre = [vm.wait_str(rid[3]), "s_barrier"]
            elif u == 14:
                pre = [vm.wait_str(rid[11 if TOKP else 15]), "s_barrier"]
            elif u == U_FLAG:
                pre = [vm.wait_str(max(rid[31], rlst)), "s_barrier"] + flagblk("L_noxid", OFF_XID, ["s_cmp_lg_u32 s3, 1", "s_cbranch_scc1 L_noxid"])
            elif u == U_FIN:
                assert not bg
                pre = ["s_barrier"] + list(fin2)
                finid = vm.n
            elif u == U_MFLAG:
                pre = flagblk("L_nomid", OFF_XID + 2048, ["s_cmp_lg_u32 s3, 1", "s_cbranch_scc1 L_nomid", vm.wait_str(finid)], xcc=True)
            elif u == 82:
                pre = ["s_barrier"]
            add(14, pre + [kread(t + 1)])
            add(15, vread(t + 1))
        if u % 2 == 1 or u == 0:
            add(-14, ["s_waitcnt lgkmcnt(0)"])
        if u == U_RL - 2:
            if RLATT:
                add(16, [vm.wait_str(rlid)])
            for i in range(4):
                add(17 + 2 * i, [f"ds_write_b128 v220, a[{192+4*i}:{195+4*i}] offset:{1024*i}"])
        if u == U_RL:
            for f in range(4):
                add(17 + 2 * f, [f"ds_read_b64_tr_b16 v[{RD+4*f}:{RD+4*f+1}], v{RA+f}"])
                add(18 + 2 * f, [f"ds_read_b64_tr_b16 v[{RD+4*f+2}:{RD+4*f+3}], v{RA+4+f}"])
        if U_RL + 1 <= u < U_RL + 9 and u % 2 == 1:
            f = (u - U_RL - 1) // 2
            add(14, [f"buffer_store_dwordx4 v[{RD+4*f}:{RD+4*f+3}], v2, s[24:27], s{16+f} offen {FL}"])
            rlst = vm.tick()
        if len(rid) < 32 and (not TOKP or u < 4):
            d = dma()
            add(20, d[:-1]); add(21, d[-1:])
        elif u in (U_XL, U_ML):
            off = OFF_XID if u == U_XL else OFF_XID + 2048
            xidid = put([f"s_mov_b32 s53, {off}", f"buffer_load_dwordx4 v[150:153], v2, s[24:27], s53 offen {FL}"], 17)
        elif u in (U_XC, U_MC):
            tag = "xid" if u == U_XC else "mid"
            add(17, [vm.wait_str(xidid)] + chk(0 if u == U_XC else 15))
            add(24, [f"s_cbranch_vccnz L_{tag}_retry", f"L_{tag}_ok:"])
        elif u >= 83 and late:
            put(late.pop(0), 17)
        elif jobs and u > U_XC + (3 if RLATT else 7) and (RLATT or u % 4 != 3) and (u > U_MFLAG or len(jobs) > 24):
            put(jobs.pop(0), 17)
        if DIAG and os.environ.get('ATTST') and u in (8, 16, 22, 32, 44, 52, 64, 86):
            stamp(k, (8, 16, 22, 32, 44, 52, 64, 86).index(u))
        att_unit(k, u, side, last=(u == 127))
    assert not vecj
    assert not jobs and not late, (len(jobs), len(late))
    k(f"""
    s_nop 0
    v_cvt_pk_bf16_f32 v{P+7}, v{S+30}, v{S+31}
    s_nop 1
    v_mfma_f32_32x32x16_bf16 v[{O+16}:{O+31}], v[{VF+12}:{VF+15}], v[{P+4}:{P+7}], v[{O+16}:{O+31}]
    s_mov_b32 s53, 0x53800000
    v_cmp_nge_f32 vcc, s53, v{O+8}
    s_nop 9
    v_cmp_nge_f32 s[42:43], s53, v{O+24}
    s_nop 3
    s_or_b64 vcc, vcc, s[42:43]
    s_cbranch_scc0 L_att_fin
    s_branch L_att_fallback
    """)
    k.label("L_att_fin")
    stamp(k, 11)
    XR, XU, GA, A2 = 140, 44, 108, 124
    k(f"""
    v_rcp_f32 v6, v{O+8}
    v_rcp_f32 v7, v{O+24}
    s_lshl_b32 s42, s36, 3
    s_and_b32 s43, s37, 7
    s_add_u32 s42, s42, s43         ; t3 (tok32)
    v_lshrrev_b32 v8, 5, v1         ; h
    v_and_b32 v9, 31, v1            ; tok
    """)
    dual_begin(k)
    for b_ in range(2):
        for i in range(8):
            k(f"v_mul_f32 v{O+16*b_+i}, v{6+b_}, v{O+16*b_+i}")
        for i in range(4):
            k(f"v_cvt_pk_bf16_f32 v{P+4*b_+i}, v{O+16*b_+2*i}, v{O+16*b_+2*i+1}")
        if b_:
            k("s_add_u32 s46, s46, 32768")
        k(f"buffer_store_dwordx4 v[{P+4*b_}:{P+4*b_+3}], v2, s[24:27], s46 offen {DF}")
    k(f"""
    v_add_u32 v5, 0x20000, v2
    v_lshrrev_b32 v12, 4, v9
    v_lshlrev_b32 v12, 14, v12
    v_and_b32 v13, 15, v9
    v_lshl_add_u32 v12, v13, 4, v12
    v_lshl_add_u32 v12, v8, 8, v12
    v_lshlrev_b32 v13, 3, v9
    s_lshl_b32 s43, s3, 10
    s_lshl_b32 s44, s42, 15
    s_lshl_b32 s45, s50, 10
    s_add_u32 s44, s44, s45
    s_add_u32 s45, s44, {OFF_X2S}
    s_add_u32 s44, s44, {OFF_X2}
    s_lshl_b32 s46, s42, 12
    s_lshl_b32 s47, s50, 8
    s_add_u32 s46, s46, s47
    s_add_u32 s46, s46, {OFF_ST2}
    s_lshl_b32 s47, s42, 15
    s_add_u32 s47, s47, s43
    s_add_u32 s47, s47, {OFF_O}
    s_add_u32 m0, s43, {LDS_OST}
    """)
    k(f"""
    v_lshl_or_b32 v150, v151, 4, v150
    v_lshl_or_b32 v152, v153, 4, v152
    v_lshl_or_b32 v150, v152, 8, v150
    v_and_b32 v151, 1, v1
    v_readlane_b32 s38, v150, 0
    v_readlane_b32 s39, v150, 1
    v_cmp_eq_u32 vcc, 1, v151
    v_mov_b32 v152, s38
    v_mov_b32 v153, s39
    v_cndmask_b32 v152, v152, v153, vcc
    v_cmp_ne_u32 vcc, v152, v150
    s_nop 3
    s_cmp_eq_u64 vcc, 0
    s_cselect_b32 s{S_FAST}, 1, 0
    """)
    def w2some(n):
        for _ in range(n):
            for y in w2_late.pop(0):
                k(y)
        return n
    ND = [int(x) for x in os.environ.get("ND", "0,0,0").split(",")]
    signal(k, 1, 54, 40, 32, nafter=w2some(ND[0]), fast=bool(TOKP))
    dual_end(k, 'e1')
    stamp(k, 12)
    k(f"""
    s_lshl_b32 s38, s3, 7
    s_add_u32 s38, s38, {LDS_VEC}
    v_lshlrev_b32 v10, 4, v8
    v_add_u32 v10, s38, v10
    """)
    for j in range(4):
        k(f"ds_read_b128 v[{GA+4*j}:{GA+4*j+3}], v10 offset:{32*j}")
        k(f"ds_read_b128 v[{A2+4*j}:{A2+4*j+3}], v10 offset:{512+32*j}")
    for i in range(8):
        k(f"v_lshlrev_b32 v{XU+2*i}, 16, v{XR+i}")
        k(f"v_and_b32 v{XU+2*i+1}, 0xffff0000, v{XR+i}")
    MA_, WU, UA = 60, 92, 36
    k(f"""
    v_add_u32 v14, s43, v2
    v_add_u32 v15, s43, v4
    v_add_u32 v16, s43, v5
    v_and_b32 v17, 15, v1
    v_lshrrev_b32 v18, 4, v1
    v_lshlrev_b32 v17, 10, v17
    v_lshl_add_u32 v17, v18, 4, v17
    v_add_u32 v17, {LDS_MODB}, v17
    s_mov_b32 s48, 0x00030003
    s_mov_b32 s49, 0x00030003
    """)
    for i in range(32):
        k(f"v_mov_b32 v{MA_+i}, 0")
    def mread(s0):
        k("s_mov_b64 exec, s[48:49]")
        for s in range(s0, s0 + 8):
            k(f"ds_read_b128 v[{MA_+4*(s%8)}:{MA_+4*(s%8)+3}], v17 offset:{64*s}")
        k("s_mov_b64 exec, -1")
    def uread(s):
        for h in range(2):
            addr = w1_lds(s * 7) + 4 * h * 1024
            r = WU + 8 * (s & 1) + 4 * h
            k(f"ds_read_b128 v[{r}:{r+3}], v{14 + (addr >> 16)} offset:{addr & 0xffff}")
    def ut_steps(s0, s1):
        for s in range(s0, s1):
            if s < 15:
                uread(s + 1)
                k("s_waitcnt lgkmcnt(2)")
            else:
                k("s_waitcnt lgkmcnt(0)")
            for h in range(2):
                u_ = UA + 4 * h
                r = WU + 8 * (s & 1) + 4 * h
                c = "0" if s == 0 else f"v[{u_}:{u_+3}]"
                k(f"v_mfma_f32_16x16x32_bf16 v[{u_}:{u_+3}], v[{MA_+4*(s%8)}:{MA_+4*(s%8)+3}], v[{r}:{r+3}], {c}")
    mread(0)
    uread(0)
    UTE = int(os.environ.get("UTE", "8"))
    ut_steps(0, UTE)
    if UTE == 8:
        mread(8)
    stamp(k, 13)
    wait_edge(k, 1, 36, 32)
    stamp(k, 14)
    vm.n = 0
    oid = []
    for i in range(8):
        if i:
            k("s_add_u32 m0, m0, 4096")
            k("s_add_u32 s47, s47, 4096")
        oid.append(vm.op(f"buffer_load_dwordx4 v2, s[24:27], s47 offen {FL} lds"))
    if UTE < 8:
        ut_steps(UTE, 8)
        mread(8)
    ut_steps(8, 16)
    k("s_nop 6")
    for h in range(2):
        u_ = UA + 4 * h
        d = WU + 4 * h
        for i in range(2):
            bf16_round(k, 18 + i, u_ + i)
        for i in range(2):
            k(f"v_sub_f32 v{u_+i}, v{u_+i}, v{18+i}")
        for i in range(2):
            k(f"v_cvt_pk_bf16_f32 v{d+i}, v{18+i}, v{u_+i}")
        k(f"v_mov_b32 v{d+2}, 0")
        k(f"v_mov_b32 v{d+3}, 0")
        k(f"ds_write_b128 v15, v[{d}:{d+3}] offset:{LDS_UT + 4*h*1024 - 65536}")
    AC, OFR = 20, 60
    chunks = [(0, 8), (8, 20), (20, 32)]
    for (c0, c1) in chunks:
        vm.wait(oid[c1 // 4 - 1])
        k("s_barrier")
        n = c1 - c0
        ahead = 6
        for s in range(c0, min(c1, c0 + ahead)):
            k(lds_rd(f"v[{OFR+4*(s%8)}:{OFR+4*(s%8)+3}]", LDS_OST + s * 1024))
        for s in range(c0, c1):
            issued = min(c1, s + ahead)
            k(f"s_waitcnt lgkmcnt({issued - 1 - s})")
            c = "0" if s == 0 else f"v[{AC}:{AC+15}]"
            k(f"v_mfma_f32_32x32x16_bf16 v[{AC}:{AC+15}], {wo_reg(s)}, v[{OFR+4*(s%8)}:{OFR+4*(s%8)+3}], {c}")
            if s + ahead < c1:
                s2 = s + ahead
                k(lds_rd(f"v[{OFR+4*(s2%8)}:{OFR+4*(s2%8)+3}]", LDS_OST + s2 * 1024))
    k("s_nop 11")
    stamp(k, 15)
    for i in range(8):
        k(f"v_pk_fma_f32 v[{AC+2*i}:{AC+2*i+1}], v[{GA+2*i}:{GA+2*i+1}], v[{AC+2*i}:{AC+2*i+1}], v[{XU+2*i}:{XU+2*i+1}]")
    for i in range(8):
        k(f"v_pk_mul_f32 v[{A2+2*i}:{A2+2*i+1}], v[{A2+2*i}:{A2+2*i+1}], v[{AC+2*i}:{AC+2*i+1}]")
    for i in range(8):
        k(f"v_cvt_pk_bf16_f32 v{60+i}, v{A2+2*i}, v{A2+2*i+1}")
    dual_begin(k)
    k(f"buffer_store_dwordx4 v[60:63], v12, s[24:27], s45 offen {DF}")
    k(f"buffer_store_dwordx4 v[64:67], v12, s[24:27], s45 offen offset:512 {DF}")
    k(f"v_pk_add_f32 v[14:15], v[{AC}:{AC+1}], v[{AC+2}:{AC+3}]")
    k(f"v_pk_mul_f32 v[16:17], v[{AC}:{AC+1}], v[{AC}:{AC+1}]")
    for i in range(1, 8):
        if i >= 2:
            k(f"v_pk_add_f32 v[14:15], v[14:15], v[{AC+2*i}:{AC+2*i+1}]")
        k(f"v_pk_fma_f32 v[16:17], v[{AC+2*i}:{AC+2*i+1}], v[{AC+2*i}:{AC+2*i+1}], v[16:17]")
    k("v_add_f32 v14, v14, v15")
    k("v_add_f32 v15, v16, v17")
    k("v_mov_b32 v16, v14")
    k("v_mov_b32 v17, v15")
    for i in range(2):
        k(f"v_cvt_pk_bf16_f32 v{68+i}, v{AC+2*i}, v{AC+2*i+1}")
    k("v_permlane32_swap_b32 v16, v14")
    k("v_permlane32_swap_b32 v17, v15")
    k("v_pk_add_f32 v[14:15], v[14:15], v[16:17]")
    k("s_mov_b32 exec_hi, 0")
    k(f"buffer_store_dwordx2 v[14:15], v13, s[24:27], s46 offen {DF}")
    k("s_mov_b32 exec_hi, -1")
    for i in range(2, 8):
        k(f"v_cvt_pk_bf16_f32 v{68+i}, v{AC+2*i}, v{AC+2*i+1}")
    k(f"buffer_store_dwordx4 v[68:71], v12, s[24:27], s44 offen {DF}")
    k(f"buffer_store_dwordx4 v[72:75], v12, s[24:27], s44 offen offset:512 {DF}")
    k("""
    s_lshr_b32 s40, s42, 2          ; E3 group
    s_and_b32 s41, s42, 3
    s_lshl_b32 s41, s41, 2
    s_lshr_b32 s43, s37, 3
    s_add_u32 s41, s41, s43         ; member
    """)
    signal(k, 2, 40, 41, 16, nafter=w2some(ND[1]), fast=True)
    dual_end(k, 'e2')
    stamp(k, 16)
    ACC4, WF, ST, SB = 8, 64, 120, 136
    k(f"""
    s_lshl_b32 s40, s36, 1
    s_bfe_u32 s41, s37, 0x10001
    s_add_u32 s40, s40, s41        ; tb4
    s_lshl_b32 s44, s40, 2
    s_add_u32 s44, s44, s3         ; tok32
    s_lshl_b32 s45, s44, 15
    s_add_u32 s45, s45, {OFF_X2S}
    s_add_u32 s46, s45, 16384
    v_and_b32 v3, 15, v1
    v_lshrrev_b32 v152, 4, v1
    v_lshlrev_b32 v153, 3, v3
    v_lshl_add_u32 v153, v152, 10, v153
    s_lshl_b32 s47, s44, 12
    s_add_u32 s47, s47, {OFF_ST2}
    s_mul_i32 s42, s44, {112*1024}
    s_mul_i32 s43, s57, {7*1024}
    s_add_u32 s42, s42, s43
    s_add_u32 s42, s42, {OFF_H}
    s_add_u32 s43, s42, 4096
    """)
    def wread(s):
        f = WF + 28 * (s & 1)
        return [lds_rd(f"v[{f+4*i}:{f+4*i+3}]", w1_lds(s * 7 + i)) for i in range(7)]
    for x in wread(0): k(x)
    wait_edge(k, 2, 40, 16)
    wbl2(k, "a")
    stamp(k, 17)
    vm.n = 0
    xid = []
    def xload():
        s = len(xid)
        if s >= 16:
            return
        if s and s % 4 == 0:
            k("s_add_u32 s45, s45, 4096")
            k("s_add_u32 s46, s46, 4096")
        vm.op(f"buffer_load_dwordx4 {wo_reg(2*s)}, v2, s[24:27], s45 offen offset:{(s%4)*1024} {FL}")
        xid.append(vm.op(f"buffer_load_dwordx4 {wo_reg(2*s+1)}, v2, s[24:27], s46 offen offset:{(s%4)*1024} {FL}"))
    for s in range(int(os.environ.get("P4D", "6"))):
        xload()
    stl = [f"buffer_load_dwordx2 v[{ST+8*j+2*pp}:{ST+8*j+2*pp+1}], v153, s[24:27], s47 offen offset:{256*pp+128*j} {FL}"
           for j in range(2) for pp in range(4)]
    fill = L()
    for j in range(2):
        b = ST + 8 * j
        fill(f"v_pk_add_f32 v[{b}:{b+1}], v[{b}:{b+1}], v[{b+2}:{b+3}]")
        fill(f"v_pk_add_f32 v[{b+4}:{b+5}], v[{b+4}:{b+5}], v[{b+6}:{b+7}]")
        fill(f"v_pk_add_f32 v[{b}:{b+1}], v[{b}:{b+1}], v[{b+4}:{b+5}]")
    regs = [ST, ST + 1, ST + 8, ST + 9]
    tmp = [ST + 2, ST + 3, ST + 10, ST + 11]
    for op in ("v_permlane16_swap_b32", "v_permlane32_swap_b32"):
        for r, t in zip(regs, tmp):
            fill(f"v_mov_b32 v{t}, v{r}")
        fill("s_nop 1")
        for r, t in zip(regs, tmp):
            fill(f"{op} v{t}, v{r}")
        for r, t in zip(regs, tmp):
            fill(f"v_add_f32 v{r}, v{t}, v{r}")
    for j in range(2):
        b = ST + 8 * j
        ln_stats_finish(fill, b, b + 1, b + 4, b + 5, None, std_out=b + 6)
        fill(f"v_cvt_pk_bf16_f32 v{SB+4*j}, -v{b+4}, -v{b+4}")
        fill(f"v_cvt_pk_bf16_f32 v{SB+4*j+1}, v{b+6}, v{b+6}")
        fill(f"v_mov_b32 v{SB+4*j+2}, 0")
        fill(f"v_mov_b32 v{SB+4*j+3}, 0")
    fill(f"""
    v_lshlrev_b32 v154, 2, v3
    s_lshl_b32 s41, s3, 7
    v_add_u32 v154, s41, v154
    v_add_u32 v154, {LDS_R}, v154
    """)
    for s in range(17):
        nxt = wread(s + 1) if s < 16 else []
        k((vm.wait_str(xid[s]) if s < 16 else "s_waitcnt") + " lgkmcnt(0)")
        if s == 9:
            vm.wait(sid)
        f = WF + 28 * (s & 1)
        n = 0
        for i in range(7):
            for j in range(2):
                a = ACC4 + 4 * (j * 7 + i)
                c = "0" if s == 0 else f"v[{a}:{a+3}]"
                bop = wo_reg(2 * s + j) if s < 16 else f"v[{SB+4*j}:{SB+4*j+3}]"
                k(f"v_mfma_f32_16x16x32_bf16 v[{a}:{a+3}], v[{f+4*i}:{f+4*i+3}], {bop}, {c}")
                if nxt:
                    k(nxt.pop(0))
                elif n == 8:
                    xload()
                elif n in (10, 12) and stl:
                    sid = vm.op(stl.pop(0))
                elif s >= int(os.environ.get('W2S', '9')) and n in (9, 10, 11, 13) and len(w2_late) > ND[2]:
                    for y in w2_late.pop(0):
                        k(y)
                    vm.tick()
                if s >= 9 and fill:
                    k(fill.pop(0))
                n += 1
    assert not fill and len(w2_late) == ND[2], len(w2_late)
    stamp(k, 18)
    dual_begin(k)
    k(f"ds_write_b32 v154, v{ST+5}")
    k(f"ds_write_b32 v154, v{ST+13} offset:64")
    for i in range(7):
        t = WF + 4 * i
        for j in range(2):
            a = ACC4 + 4 * (j * 7 + i)
            k(f"v_cvt_pk_bf16_f32 v{t+2*j}, v{a}, v{a+1}")
            k(f"v_cvt_pk_bf16_f32 v{t+2*j+1}, v{a+2}, v{a+3}")
        for q in range(4):
            k(f"v_pk_max_i16 v{t+q}, v{t+q}, 0")
        if i:
            tp = WF + 4 * (i - 1)
            k(f"v_permlane16_swap_b32 v{tp}, v{tp+2}")
            k(f"v_permlane16_swap_b32 v{tp+1}, v{tp+3}")
            k(f"buffer_store_dwordx4 v[{tp}:{tp+3}], v2, s[24:27], s{42 if i-1 < 4 else 43} offen offset:{((i-1)%4)*1024} {DF}")
    tp = WF + 24
    k("s_nop 1")
    k(f"v_permlane16_swap_b32 v{tp}, v{tp+2}")
    k(f"v_permlane16_swap_b32 v{tp+1}, v{tp+3}")
    k(f"buffer_store_dwordx4 v[{tp}:{tp+3}], v2, s[24:27], s43 offen offset:2048 {DF}")
    stamp(k, 19)
    signal(k, 3, 40, 57, 16, nafter=w2some(ND[2]), fast=True)
    dual_end(k, 'e3')
    ACC5, RB, DEPTH = 8, 72, 19
    G5, X5, R5 = 224, 240, 248
    k(f"""
    s_lshl_b32 s58, s36, 2
    s_and_b32 s59, s37, 3
    s_add_u32 s58, s58, s59         ; tb5
    s_lshl_b32 s58, s58, 1
    s_and_b32 s59, s3, 1
    s_add_u32 s58, s58, s59
    s_xor_b32 s59, s58, 1
    s_mul_i32 s44, s58, {112*1024}
    s_mul_i32 s45, s59, {112*1024}
    s_mul_i32 s46, s3, {28*1024}
    s_add_u32 s46, s46, {OFF_H}
    s_add_u32 s44, s44, s46
    s_add_u32 s45, s45, s46
    v_lshrrev_b32 v250, 5, v1
    v_and_b32 v251, 31, v1
    v_lshlrev_b32 v252, 4, v250
    s_and_b32 s46, s52, 7
    s_lshl_b32 s46, s46, 7
    s_add_u32 s46, s46, {LDS_VEC + 1024}
    v_add_u32 v252, s46, v252
    v_lshrrev_b32 v253, 4, v251
    v_lshlrev_b32 v253, 14, v253
    v_and_b32 v254, 15, v251
    v_lshl_add_u32 v253, v254, 4, v253
    v_lshl_add_u32 v253, v250, 8, v253
    s_lshl_b32 s47, s58, 15
    s_lshl_b32 s50, s52, 10
    s_add_u32 s47, s47, s50
    s_add_u32 s47, s47, {OFF_X2}
    s_and_b32 s50, s58, 3
    s_lshl_b32 s50, s50, 7
    s_add_u32 s50, s50, {LDS_R}
    v_lshlrev_b32 v254, 2, v251
    v_add_u32 v254, s50, v254
    """)
    for j in range(4):
        k(f"ds_read_b128 v[{G5+4*j}:{G5+4*j+3}], v252 offset:{32*j}")
    k(f"buffer_load_dwordx4 v[{X5}:{X5+3}], v253, s[24:27], s47 offen {FL}")
    k(f"buffer_load_dwordx4 v[{X5+4}:{X5+7}], v253, s[24:27], s47 offen offset:512 {FL}")
    k(f"""
    v_lshlrev_b32 v253, 10, v251
    v_lshl_add_u32 v253, v250, 4, v253
    s_lshl_b32 s47, s58, 15
    s_lshl_b32 s50, s52, 6
    s_add_u32 s47, s47, s50
    """)
    stamp(k, 20)
    k(f"ds_read_b32 v{R5}, v254")
    k("s_waitcnt lgkmcnt(0)")
    for i in range(16):
        k(f"v_mul_f32 v{G5+i}, v{R5}, v{G5+i}")
    stamp(k, 21)
    wait_edge(k, 3, 40, 16)
    wbl2(k, "b")
    stamp(k, 22)
    vm.n = 0
    hid = []
    def hload():
        s = len(hid)
        if s >= 28:
            return
        r = RB + 8 * (s % DEPTH)
        if s and s % 4 == 0:
            k("s_add_u32 s44, s44, 4096")
            k("s_add_u32 s45, s45, 4096")
        vm.op(f"buffer_load_dwordx4 v[{r}:{r+3}], v2, s[24:27], s44 offen offset:{(s%4)*1024} {FL}")
        hid.append(vm.op(f"buffer_load_dwordx4 v[{r+4}:{r+7}], v2, s[24:27], s45 offen offset:{(s%4)*1024} {FL}"))
    for s in range(int(os.environ.get("P5D", "8"))):
        hload()
    for s in range(28):
        vm.wait(hid[s])
        r = RB + 8 * (s % DEPTH)
        A0, A1 = f"a[{8*s}:{8*s+3}]", f"a[{8*s+4}:{8*s+7}]"
        B0, B1 = f"v[{r}:{r+3}]", f"v[{r+4}:{r+7}]"
        for t, (a, b) in enumerate(((A0, B0), (A0, B1), (A1, B0), (A1, B1))):
            acc = ACC5 + 16 * t
            c = "0" if s == 0 else f"v[{acc}:{acc+15}]"
            k(f"v_mfma_f32_32x32x16_bf16 v[{acc}:{acc+15}], {a}, {b}, {c}")
            if t == 0:
                hload()
    XU5, TMP5 = 72, 88
    stamp(k, 23)
    for t in (1, 2, 3):
        k(f"""
        s_xor_b32 s56, s3, {t}
        s_mul_i32 s56, s56, 12288
        s_add_u32 s56, s56, {(t-1)*4096}
        v_add_u32 v{3+t}, s56, v2
        """)
    for t in (1, 2, 3):
        for q in range(4):
            k(f"ds_write_b128 v{3+t}, v[{ACC5+16*t+4*q}:{ACC5+16*t+4*q+3}] offset:{q*1024}")
    for i in range(8):
        k(f"v_lshlrev_b32 v{XU5+2*i}, 16, v{X5+i}")
        k(f"v_and_b32 v{XU5+2*i+1}, 0xffff0000, v{X5+i}")
    k(f"""
    s_mul_i32 s56, s3, 12288
    v_add_u32 v3, s56, v2
    s_waitcnt lgkmcnt(0)
    s_barrier
    """)
    for i in range(12):
        k(f"ds_read_b128 v[{TMP5+4*i}:{TMP5+4*i+3}], v3 offset:{i*1024}")
    for sl in range(3):
        k(f"s_waitcnt lgkmcnt({8-4*sl})")
        for i in range(8):
            k(f"v_pk_add_f32 v[{ACC5+2*i}:{ACC5+2*i+1}], v[{ACC5+2*i}:{ACC5+2*i+1}], v[{TMP5+16*sl+2*i}:{TMP5+16*sl+2*i+1}]")
    stamp(k, 24)
    for i in range(8):
        k(f"v_pk_fma_f32 v[{ACC5+2*i}:{ACC5+2*i+1}], v[{G5+2*i}:{G5+2*i+1}], v[{ACC5+2*i}:{ACC5+2*i+1}], v[{XU5+2*i}:{XU5+2*i+1}]")
    for i in range(8):
        k(f"v_cvt_pk_bf16_f32 v{TMP5+i}, v{ACC5+2*i}, v{ACC5+2*i+1}")
    k("s_nop 0")
    for p in range(2):
        t = TMP5 + 4 * p
        k(f"v_permlane32_swap_b32 v{t}, v{t+2}")
        k(f"v_permlane32_swap_b32 v{t+1}, v{t+3}")
        k(f"buffer_store_dwordx4 v[{t}:{t+3}], v253, s[32:35], s47 offen offset:{32*p} {os.environ.get('OUTFL', '')}")
    endpgm(k)
    k.label("L_att_fallback")
    k(f"""
    s_mov_b32 s42, 0
    s_mov_b32 s43, s47
    v_mov_b32 v6, 0xff800000
    v_mov_b32 v7, 0xff800000
    """)
    k.label("L_att_maxloop")
    k(f"""
    buffer_load_dwordx4 v[{KF}:{KF+3}], v2, s[24:27], s43 offen {FL}
    s_add_u32 s43, s43, 2048
    s_waitcnt vmcnt(0)
    v_mfma_f32_32x32x16_bf16 v[{S}:{S+15}], v[{KF}:{KF+3}], v[{Q}:{Q+3}], 0
    v_mfma_f32_32x32x16_bf16 v[{S+16}:{S+31}], v[{KF}:{KF+3}], v[{Q+4}:{Q+7}], 0
    s_nop 10
    """)
    att_max16(k, 6, S, False)
    att_max16(k, 7, S + 16, False)
    k(f"""
    s_add_u32 s42, s42, 1
    s_cmp_lt_u32 s42, 64
    s_cbranch_scc1 L_att_maxloop
    s_nop 0
    v_permlane32_swap_b32 v6, v7
    v_max_f32 v6, v6, v7
    v_mov_b32 v7, v6
    s_nop 1
    v_permlane32_swap_b32 v6, v7
    v_sub_f32 v6, 0, v6
    v_sub_f32 v7, 0, v7
    """)
    for i in range(16):
        k(f"v_mov_b32 v{C+i}, v6")
        k(f"v_mov_b32 v{C+16+i}, v7")
        k(f"v_mov_b32 v{O+i}, 0")
        k(f"v_mov_b32 v{O+16+i}, 0")
    k("s_mov_b32 s42, 0")
    k("s_mov_b32 s43, s47")
    k.label("L_att_redo")
    k(f"""
    buffer_load_dwordx4 v[{KF}:{KF+3}], v2, s[24:27], s43 offen {FL}
    s_mov_b64 exec, s[48:49]
    buffer_load_dwordx4 v[{VF}:{VF+3}], v3, s[24:27], s43 offen offset:1024 {FL}
    buffer_load_dwordx4 v[{VF+4}:{VF+7}], v3, s[24:27], s43 offen offset:1536 {FL}
    s_mov_b64 exec, -1
    s_add_u32 s43, s43, 2048
    s_waitcnt vmcnt(0)
    v_mfma_f32_32x32x16_bf16 v[{S}:{S+15}], v[{KF}:{KF+3}], v[{Q}:{Q+3}], v[{C}:{C+15}]
    v_mfma_f32_32x32x16_bf16 v[{S+16}:{S+31}], v[{KF}:{KF+3}], v[{Q+4}:{Q+7}], v[{C+16}:{C+31}]
    s_nop 10
    """)
    for b in range(2):
        for i in range(16):
            k(f"v_exp_f32 v{S+16*b+i}, v{S+16*b+i}")
        k("s_nop 0")
        for j in range(8):
            k(f"v_cvt_pk_bf16_f32 v{P+j}, v{S+16*b+2*j}, v{S+16*b+2*j+1}")
        k("s_nop 1")
        for h in range(2):
            k(f"v_mfma_f32_32x32x16_bf16 v[{O+16*b}:{O+16*b+15}], v[{VF+4*h}:{VF+4*h+3}], v[{P+4*h}:{P+4*h+3}], v[{O+16*b}:{O+16*b+15}]")
    k(f"""
    s_add_u32 s42, s42, 1
    s_cmp_lt_u32 s42, 64
    s_cbranch_scc1 L_att_redo
    s_nop 10
    s_branch L_att_fin
    """)
    for blk in OOL:
        k.lines += blk
    if DIAG:
        marks = {"L_zspin:": 1, "L_mod_spin:": 2, "L_dbg_spin:": 4, "L_xid_retry:": 8, "L_mid_retry:": 16}
        out = []
        for l in k.lines:
            out.append(l)
            if l in marks:
                out.append(f"s_or_b32 s91, s91, {marks[l]}")
        k.lines = out
    k.label(f"L_end_{k.name}")
    k("s_endpgm")
    k(".fill (65536 + L_pc_here - .) / 4 + 64, 4, 0xbf810000")
    return k, (256, 256, 163840)


def build(path=OUT):
    ks = [mega()]
    errs = []
    for k, _ in ks:
        errs += k.check()
    for e in errs:
        print(e)
    ref = open(OUT + ".ref").read().split("\n")
    hdr = [l for l in ref if l.startswith(";") and "@launch" not in l and "Override" not in l and "grid=ceil" not in l]
    out = "\n".join(hdr) + "\n"
    for k, (g, b, lds) in ks:
        kn = f"kernel={k.name} " if os.environ.get("ASLIST") else ""
        out += f"; @launch {kn}grid=({g},1,1) block=({b},1,1) lds={lds}\n"
    out += '.amdgcn_target "amdgcn-amd-amdhsa--gfx950"\n'
    codes, kds = zip(*[k.text() for k, _ in ks])
    out += "".join(codes)
    out += '.section .rodata,"a"\n' + "".join(kds)
    open(path, "w").write(out)
    print("wrote", path, len(out), "bytes;", len(errs), "checker errors")
    return len(errs)


if __name__ == "__main__":
    sys.exit(1 if build(sys.argv[1] if len(sys.argv) > 1 else OUT) else 0)
```

```python
import sys
sys.path.insert(0, "gen")
from asmlib import Kern

NAME = "adaLN_cond__mha_block__dense_activation_relu__prompt"
OUT = f"cdna_kernels/{NAME}.s"

MB = 1 << 20
OFF_MOD = 0x0
OFF_UT = 0x4000
OFF_R2 = 0x8000
OFF_XHAT = 0x10000
OFF_WQKV = OFF_XHAT + 2 * MB
OFF_Q = OFF_WQKV + 3 * MB // 2
OFF_KV = OFF_Q + 2 * MB
OFF_O = OFF_KV + 4 * MB
OFF_WO = OFF_O + 2 * MB
OFF_X2 = OFF_WO + MB // 2
OFF_X2S = OFF_X2 + 2 * MB
OFF_ST2 = OFF_X2S + 2 * MB
OFF_W1 = OFF_ST2 + MB // 4
OFF_H = OFF_W1 + 7 * MB // 4
OFF_W2 = OFF_H + 7 * MB
OFF_FLAG = OFF_W2 + 7 * MB // 4
OFF_XID = OFF_FLAG + MB // 4
WS_USED = OFF_XID + 16384
OFF_MODB = 0x3000

import os
DIAG = int(os.environ.get("DIAG", "0"))
OFF_DIAG = (WS_USED + 0xfffff) // MB * MB
if DIAG:
    WS_USED = OFF_DIAG + 8 * MB
QSCALE = 0x3eb8aa3b

P_X, P_WQKV, P_WO, P_BX, P_W1, P_W2, P_C, P_WMOD, P_OUT, P_WS = 4, 6, 8, 10, 12, 14, 16, 18, 20, 22
S_WS = 24
S_W = 3


def srd(k, d, p, size):
    k(f"""
    s_mov_b32 s{d}, s{p}
    s_mov_b32 s{d+1}, s{p+1}
    s_mov_b32 s{d+2}, {size:#x}
    s_mov_b32 s{d+3}, 0x00020000
    """)


NST = 28


def stamp(k, i):
    if DIAG in (1, 3):
        k(f"s_waitcnt lgkmcnt(0)")
        k(f"s_memtime s[94:95]" if DIAG == 1 else "s_memrealtime s[94:95]")
        k(f"s_waitcnt lgkmcnt(0)")
        k(f"s_mov_b32 s{64+i}, s94")


def endpgm(k):
    if os.environ.get("PADEND"):
        k(f"""
        s_waitcnt vmcnt(0) lgkmcnt(0)
        s_cmp_lg_u32 s2, {os.environ.get("PADWG", "s2")}
        s_cbranch_scc1 L_padout
        L_padend:
        s_memrealtime s[96:97]
        s_waitcnt lgkmcnt(0)
        s_sub_u32 s96, s96, s62
        s_cmp_lt_u32 s96, {int(os.environ["PADEND"])}
        s_cbranch_scc1 L_padend
        L_padout:
        s_endpgm
        """)
        return
    if DIAG and os.environ.get("DBGST"):
        sel = [int(x) for x in os.environ["DBGST"].split(",")]
        k(f"""
        s_waitcnt vmcnt(0) lgkmcnt(0)
        s_memtime s[94:95]
        s_memrealtime s[96:97]
        s_load_dwordx2 s[4:5], s[0:1], 72
        s_waitcnt lgkmcnt(0)
        s_mov_b32 s6, 256
        s_mov_b32 s7, 0x00020000
        s_lshl_b32 s92, s3, 8
        s_add_u32 s92, s92, s2
        s_cmp_lg_u32 s92, 100
        s_cbranch_scc1 L_dbgst_skip
        s_mov_b64 exec, 1
        v_mov_b32 v0, 0
        s_sub_u32 s96, s96, s62
        s_sub_u32 s94, s94, s60
        """)
        regs = [96, 94]
        for i in sel:
            k(f"s_sub_u32 s{64+i}, s{64+i}, s60")
            regs.append(64 + i)
        for q in range(3):
            for i in range(4):
                k(f"v_mov_b32 v{4+i}, s{regs[4*q+i]}")
            k(f"buffer_store_dwordx4 v[4:7], v0, s[4:7], 0 offen offset:{16+16*q}")
            k("s_nop 1")
        k("L_dbgst_skip:")
    elif DIAG:
        kid = getattr(k, 'kid', None) or int(k.name[1])
        k(f"""
        s_waitcnt vmcnt(0) lgkmcnt(0)
        s_memtime s[94:95]
        s_memrealtime s[96:97]
        s_waitcnt lgkmcnt(0)
        s_mov_b64 exec, 1
        s_lshl_b32 s92, s2, 3
        s_add_u32 s92, s92, s3
        s_lshl_b32 s92, s92, 7
        s_add_u32 s92, s92, {OFF_DIAG + kid * MB}
        v_mov_b32 v0, 0
        """)
        regs = [62, 96, 60, 94] + [64 + i for i in range(NST)]
        for q in range(8):
            for i in range(4):
                k(f"v_mov_b32 v{4+i}, s{regs[4*q+i]}")
            k(f"buffer_store_dwordx4 v[4:7], v0, s[24:27], s92 offen offset:{16*q}")
            k("s_nop 1")
    k("s_endpgm")


def prologue(k, nwg):
    if DIAG:
        k("s_memtime s[60:61]")
        k("s_memrealtime s[62:63]")
        for i in range(NST):
            k(f"s_mov_b32 s{64+i}, 0")
    k(f"""
    s_cmp_ge_u32 s2, {nwg}
    s_cbranch_scc1 L_end_{k.name}
    s_load_dwordx16 s[4:19], s[0:1], 0
    s_load_dwordx2 s[20:21], s[0:1], 64
    s_load_dwordx2 s[22:23], s[0:1], 80
    v_lshrrev_b32 v2, 6, v0
    v_and_b32 v1, 63, v0
    v_readfirstlane_b32 s3, v2
    """)


def prologue_wait(k):
    k("s_waitcnt lgkmcnt(0)")
    srd(k, S_WS, P_WS, WS_USED)
    stamp(k, 0)


def epilogue(k):
    endpgm(k)
    k.label(f"L_end_{k.name}")
    k("s_endpgm")


def bf16_round(k, d, s):
    k(f"v_cvt_pk_bf16_f32 v{d}, v{s}, v{s}")
    k(f"v_and_b32 v{d}, 0xffff0000, v{d}")


def allreduce64(k, regs, tmp):
    for ror in (1, 2, 4, 8):
        for r in regs:
            k(f"v_add_f32_dpp v{r}, v{r}, v{r} row_ror:{ror} row_mask:0xf bank_mask:0xf")
        if len(regs) < 3:
            k(f"s_nop {2 - len(regs)}")
    for op in ("v_permlane16_swap_b32", "v_permlane32_swap_b32"):
        for r, t in zip(regs, tmp):
            k(f"v_mov_b32 v{t}, v{r}")
        k("s_nop 1")
        for r, t in zip(regs, tmp):
            k(f"{op} v{t}, v{r}")
        for r, t in zip(regs, tmp):
            k(f"v_add_f32 v{r}, v{t}, v{r}")


def role_mod(k, sj):
    srd(k, 28, P_WMOD, 512 * 3072 * 2)
    srd(k, 32, P_C, 1024)
    k(f"""
    v_lshlrev_b32 v2, 2, v0
    v_mov_b32 v3, 0
    s_mov_b32 s40, {OFF_XID}
    buffer_store_dword v3, v2, s[24:27], s40 offen
    v_lshlrev_b32 v2, 1, v0
    buffer_load_ushort v4, v2, s[32:35], 0 offen
    v_lshrrev_b32 v3, 2, v0
    v_and_b32 v5, 3, v0
    v_mul_u32_u24 v6, 6144, v3
    v_lshl_add_u32 v6, v5, 4, v6
    s_lshl_b32 s40, s{sj}, 6
    s_add_u32 s41, s40, {128*6144}
    s_add_u32 s42, s40, {256*6144}
    s_add_u32 s43, s40, {384*6144}
    buffer_load_dwordx4 v[8:11], v6, s[28:31], s40 offen
    buffer_load_dwordx4 v[12:15], v6, s[28:31], s41 offen
    buffer_load_dwordx4 v[16:19], v6, s[28:31], s42 offen
    buffer_load_dwordx4 v[20:23], v6, s[28:31], s43 offen
    s_waitcnt vmcnt(4)
    v_lshlrev_b32 v4, 16, v4
    v_mul_f32 v7, 0xbfb8aa3b, v4
    v_exp_f32 v7, v7
    s_nop 0
    v_add_f32 v7, 1.0, v7
    v_rcp_f32 v7, v7
    s_nop 0
    v_mul_f32 v7, v4, v7
    """)
    bf16_round(k, 7, 7)
    k("""
    v_lshlrev_b32 v2, 2, v0
    ds_write_b32 v2, v7
    s_waitcnt lgkmcnt(0)
    s_barrier
    v_lshlrev_b32 v2, 2, v3
    ds_read_b32 v24, v2
    ds_read_b32 v25, v2 offset:512
    ds_read_b32 v26, v2 offset:1024
    ds_read_b32 v27, v2 offset:1536
    """)
    for p in range(4):
        k(f"s_waitcnt vmcnt({3-p}) lgkmcnt({3-p})")
        for i in range(4):
            src = 8 + 4 * p + i
            k(f"v_lshlrev_b32 v40, 16, v{src}")
            k(f"v_and_b32 v41, 0xffff0000, v{src}")
            op = "v_mul_f32" if p == 0 else "v_fmac_f32"
            k(f"{op} v{32+2*i}, v{24+p}, v40")
            k(f"{op} v{33+2*i}, v{24+p}, v41")
    k("s_nop 1")
    for ror in (4, 8):
        for r in range(32, 40):
            k(f"v_add_f32_dpp v{r}, v{r}, v{r} row_ror:{ror} row_mask:0xf bank_mask:0xf")
    k("""
    v_lshrrev_b32 v2, 4, v0
    v_lshlrev_b32 v2, 7, v2
    v_lshl_add_u32 v2, v5, 5, v2
    ds_write_b128 v2, v[32:35] offset:2048
    ds_write_b128 v2, v[36:39] offset:2064
    s_waitcnt lgkmcnt(0)
    s_barrier
    s_cmp_lg_u32 s3, 0
    """)
    k(f"s_cbranch_scc1 L_end_{k.name}")
    k("""
    v_and_b32 v3, 31, v1
    v_lshrrev_b32 v2, 5, v1
    v_lshlrev_b32 v2, 11, v2
    v_lshl_add_u32 v2, v3, 2, v2
    """)
    for i in range(16):
        k(f"ds_read_b32 v{8+i}, v2 offset:{2048+128*i}")
        if i == 7:
            k("s_waitcnt lgkmcnt(0)")
    k("s_waitcnt lgkmcnt(0)")
    n = 16
    while n > 1:
        for i in range(n // 2):
            k(f"v_add_f32 v{8+i}, v{8+i}, v{8+i+n//2}")
        n //= 2
    k("""
    v_mov_b32 v9, v8
    s_nop 1
    v_permlane32_swap_b32 v9, v8
    v_add_f32 v8, v9, v8
    """)
    bf16_round(k, 8, 8)
    k(f"""
    s_lshr_b32 s40, s{sj}, 4
    s_cmp_eq_u32 s40, 1
    s_cselect_b32 s41, 1.0, 0
    s_cmp_eq_u32 s40, 4
    s_cselect_b32 s41, 1.0, s41
    v_add_f32 v8, s41, v8
    """)
    bf16_round(k, 8, 8)
    k(f"""
    v_lshlrev_b32 v3, 2, v3
    s_lshl_b32 s40, s{sj}, 7
    s_add_u32 s40, s40, {OFF_MOD}
    buffer_store_dword v8, v3, s[24:27], s40 offen
    """)
    k(f"""
    s_lshr_b32 s40, s{sj}, 4
    s_sub_u32 s40, 4, s40
    s_cmp_gt_u32 s40, 1
    s_cbranch_scc1 L_k0_mod_done
    s_lshl_b32 s40, s40, 10
    s_and_b32 s41, s{sj}, 15
    s_lshl_b32 s41, s41, 6
    s_add_u32 s40, s40, s41
    s_add_u32 s40, s40, {OFF_MODB}
    v_and_b32 v3, 31, v1
    v_lshrrev_b32 v4, 4, v3
    v_lshlrev_b32 v4, 5, v4
    v_bfe_u32 v5, v3, 2, 1
    v_lshl_add_u32 v4, v5, 4, v4
    v_bfe_u32 v5, v3, 3, 1
    v_lshl_add_u32 v4, v5, 3, v4
    v_and_b32 v5, 3, v3
    v_lshl_add_u32 v4, v5, 1, v4
    buffer_store_short_d16_hi v8, v4, s[24:27], s40 offen
    """)
    k.label("L_k0_mod_done")
    endpgm(k)


def ln_stats_finish(k, s, q, m_out, r_out, t0, std_out=None):
    k(f"""
    v_mul_f32 v{s}, 0x3b000000, v{s}
    v_mul_f32 v{q}, 0x3b000000, v{q}
    v_fma_f32 v{q}, -v{s}, v{s}, v{q}
    v_max_f32 v{q}, 0, v{q}
    """)
    bf16_round(k, m_out, s)
    bf16_round(k, q, q)
    k(f"v_add_f32 v{q}, 0x3727c5ac, v{q}")
    bf16_round(k, q, q)
    k(f"v_sqrt_f32 v{q}, v{q}")
    k("s_nop 0")
    d = std_out if std_out is not None else t0
    bf16_round(k, d, q)
    k(f"v_rcp_f32 v{r_out}, v{d}")
    k("s_nop 0")


def role_ln(k, si):
    srd(k, 28, P_X, 2048 * 1024)
    k(f"""
    s_lshl_b32 s40, s{si}, 3
    s_add_u32 s40, s40, s3
    s_lshl_b32 s40, s40, 8
    s_add_u32 s40, s40, {OFF_FLAG}
    v_lshlrev_b32 v2, 2, v1
    v_mov_b32 v3, 0
    buffer_store_dword v3, v2, s[24:27], s40 offen
    """)
    k(f"""
    v_lshlrev_b32 v2, 4, v1
    s_lshl_b32 s40, s{si}, 14
    s_lshl_b32 s41, s3, 11
    s_add_u32 s40, s40, s41
    buffer_load_dwordx4 v[8:11], v2, s[28:31], s40 offen
    buffer_load_dwordx4 v[12:15], v2, s[28:31], s40 offen offset:1024
    s_add_u32 s40, s40, {OFF_XHAT}
    """)
    for row in range(2):
        k(f"s_waitcnt vmcnt({1-row})")
        b = 16 + 8 * row
        for i in range(4):
            k(f"v_lshlrev_b32 v{b+2*i}, 16, v{8+4*row+i}")
            k(f"v_and_b32 v{b+2*i+1}, 0xffff0000, v{8+4*row+i}")
        s, q = 32 + 2 * row, 33 + 2 * row
        k(f"v_add_f32 v{s}, v{b}, v{b+1}")
        k(f"v_mul_f32 v{q}, v{b}, v{b}")
        for i in range(1, 8):
            if i >= 2:
                k(f"v_add_f32 v{s}, v{s}, v{b+i}")
            k(f"v_fmac_f32 v{q}, v{b+i}, v{b+i}")
    k("s_nop 1")
    allreduce64(k, [32, 33, 34, 35], [36, 37, 38, 39])
    for row in range(2):
        s, q = 32 + 2 * row, 33 + 2 * row
        ln_stats_finish(k, s, q, 40, 41, 42)
        k("v_mul_f32 v40, v40, v41")
        b = 16 + 8 * row
        for i in range(8):
            k(f"v_fma_f32 v{b+i}, v{b+i}, v41, -v40")
        for i in range(4):
            k(f"v_cvt_pk_bf16_f32 v{8+4*row+i}, v{b+2*i}, v{b+2*i+1}")
        k(f"buffer_store_dwordx4 v[{8+4*row}:{11+4*row}], v2, s[24:27], s40 offen offset:{1024*row}")
    endpgm(k)


def role_relayout(k, tag, ptr, nrows, ncols, typ, sjob, ncg, lds_base=0):
    stride = ncols * 2
    srd(k, 28, ptr, nrows * stride)
    magic = (1 << 16) // ncg + 1
    k(f"""
    s_mul_i32 s40, s{sjob}, {magic}
    s_lshr_b32 s40, s40, 16
    s_mul_i32 s41, s40, {ncg}
    s_sub_u32 s41, s{sjob}, s41
    v_lshrrev_b32 v2, 3, v1
    v_and_b32 v3, 7, v1
    v_mul_u32_u24 v2, {stride}, v2
    v_lshl_add_u32 v2, v3, 4, v2
    s_mul_i32 s42, s40, {128*stride}
    s_lshl_b32 s43, s41, 7
    s_add_u32 s42, s42, s43
    s_mul_i32 s43, s3, {16*stride}
    s_add_u32 s42, s42, s43
    s_lshl_b32 s44, s3, 11
    s_add_u32 m0, s44, {lds_base}
    s_add_u32 s43, s42, {8*stride}
    buffer_load_dwordx4 v2, s[28:31], s42 offen lds
    s_add_u32 m0, s44, {lds_base+1024}
    s_nop 0
    buffer_load_dwordx4 v2, s[28:31], s43 offen lds
    """)
    k("""
    v_and_b32 v3, 15, v1
    v_lshrrev_b32 v4, 4, v1
    v_lshrrev_b32 v5, 2, v3
    v_and_b32 v6, 3, v3
    v_lshlrev_b32 v6, 3, v6
    v_lshl_add_u32 v6, v5, 7, v6
    v_and_b32 v7, 1, v4
    v_lshrrev_b32 v8, 1, v4
    """)
    if typ == "A":
        k("v_lshl_add_u32 v6, v4, 10, v6")
        second = 4 * 128
    elif typ == "C":
        k("v_lshl_add_u32 v6, v8, 11, v6")
        k("v_lshl_add_u32 v6, v7, 9, v6")
        second = 8 * 128
    elif typ == "B":
        k("v_lshl_add_u32 v6, v7, 5, v6")
        k("v_lshl_add_u32 v6, v8, 9, v6")
        second = 8 * 128
    elif typ == "D":
        k("v_lshl_add_u32 v6, v7, 5, v6")
        k("v_lshl_add_u32 v6, v8, 10, v6")
        second = 4 * 128
    if typ in "AC":
        k(f"""
        s_lshr_b32 s45, s3, 1
        s_and_b32 s46, s3, 1
        s_lshl_b32 s47, s45, 12
        s_lshl_b32 s48, s46, 6
        s_add_u32 s47, s47, s48
        s_add_u32 s47, s47, {lds_base}
        v_add_u32 v6, s47, v6
        s_lshl_b32 s48, s40, 2
        s_add_u32 s45, s45, s48
        s_lshl_b32 s48, s41, 2
        s_lshl_b32 s46, s46, 1
        s_add_u32 s46, s46, s48
        """)
        frag2 = 32
        for f in range(2):
            sd = 50 + f
            if f:
                k("s_add_u32 s46, s46, 1")
            if typ == "A":
                k(f"""
                s_and_b32 s48, s46, 31
                s_lshl_b32 s48, s48, 4
                s_add_u32 s48, s48, s45
                s_mul_i32 s48, s48, 3
                s_lshr_b32 s49, s46, 5
                s_add_u32 s48, s48, s49
                s_lshl_b32 s48, s48, 10
                s_add_u32 s{sd}, s48, {OFF_WQKV}
                """)
            else:
                k(f"""
                s_mul_i32 s48, s46, 9363
                s_lshr_b32 s48, s48, 16
                s_mul_i32 s49, s48, 7
                s_sub_u32 s49, s46, s49
                s_lshl_b32 s48, s48, 4
                s_add_u32 s48, s48, s45
                s_mul_i32 s48, s48, 7
                s_add_u32 s48, s48, s49
                s_lshl_b32 s48, s48, 10
                s_add_u32 s{sd}, s48, {OFF_W1}
                """)
    else:
        nks = nrows // 16
        off = OFF_WO if typ == "B" else OFF_W2
        k(f"""
        s_lshl_b32 s47, s3, 11
        s_add_u32 s47, s47, {lds_base}
        v_add_u32 v6, s47, v6
        s_lshl_b32 s45, s40, 3
        s_add_u32 s45, s45, s3
        s_mul_i32 s48, s41, {2*nks}
        s_add_u32 s48, s48, s45
        s_lshl_b32 s48, s48, 10
        s_add_u32 s50, s48, {off}
        s_add_u32 s51, s50, {nks*1024}
        """)
        frag2 = 64
    k(f"""
    v_lshlrev_b32 v2, 4, v1
    s_waitcnt vmcnt(0)
    s_barrier
    ds_read_b64_tr_b16 v[8:9], v6
    ds_read_b64_tr_b16 v[10:11], v6 offset:{second}
    ds_read_b64_tr_b16 v[12:13], v6 offset:{frag2}
    ds_read_b64_tr_b16 v[14:15], v6 offset:{frag2+second}
    s_waitcnt lgkmcnt(2)
    buffer_store_dwordx4 v[8:11], v2, s[24:27], s50 offen
    s_waitcnt lgkmcnt(0)
    buffer_store_dwordx4 v[12:15], v2, s[24:27], s51 offen
    """)
    endpgm(k)


def k0():
    k = Kern("k0_prep_kernel", nvgpr=48)
    roles = [("mod", 96), ("ln", 128), ("wqkv", 96), ("wo", 32), ("w1", 112), ("w2", 112)]
    total = sum(n for _, n in roles)
    prologue(k, total)
    prologue_wait(k)
    base = 0
    for name, n in roles:
        k(f"s_sub_u32 s39, s2, {base}")
        k(f"s_cmp_lt_u32 s2, {base+n}")
        k(f"s_cbranch_scc1 L_k0_{name}")
        base += n
    k("s_endpgm")
    k.label("L_k0_mod"); role_mod(k, 39)
    k.label("L_k0_ln"); role_ln(k, 39)
    k.label("L_k0_wqkv"); role_relayout(k, "wqkv", P_WQKV, 512, 1536, "A", 39, 24)
    k.label("L_k0_wo"); role_relayout(k, "wo", P_WO, 512, 512, "B", 39, 8)
    k.label("L_k0_w1"); role_relayout(k, "w1", P_W1, 512, 1792, "C", 39, 28)
    k.label("L_k0_w2"); role_relayout(k, "w2", P_W2, 1792, 512, "D", 39, 8)
    k.label(f"L_end_{k.name}")
    k("s_endpgm")
    return k, (total, 512, 16384)


def k1():
    k = Kern("k1_qkv_kernel", nvgpr=184, nagpr=192)
    prologue(k, 256)
    VA, VB, ROWS, TMP, ACC = 8, 16, 24, 88, 136
    FR = 104
    k(f"""
    s_and_b32 s40, s2, 7
    s_lshr_b32 s41, s2, 3
    s_lshr_b32 s42, s40, 1
    s_lshl_b32 s42, s42, 3
    s_and_b32 s43, s41, 7
    s_add_u32 s42, s42, s43        ; tb
    s_and_b32 s43, s40, 1
    s_lshl_b32 s43, s43, 2
    s_lshr_b32 s44, s41, 3
    s_add_u32 s43, s43, s44        ; cb
    s_lshl_b32 s43, s43, 2
    s_add_u32 s43, s43, s3         ; head
    v_lshlrev_b32 v2, 4, v1        ; lane*16
    v_lshlrev_b32 v3, 5, v1        ; lane*32
    s_lshl_b32 s44, s42, 16
    s_lshl_b32 s45, s3, 14
    s_add_u32 s44, s44, s45
    s_add_u32 s44, s44, {OFF_XHAT}
    s_mul_i32 s46, s43, {48*1024}
    s_add_u32 s46, s46, {OFF_WQKV}
    """)
    prologue_wait(k)
    k(f"""
    buffer_load_dwordx4 v[{VB}:{VB+3}], v3, s[24:27], 0 offen offset:{OFF_MOD}
    buffer_load_dwordx4 v[{VB+4}:{VB+7}], v3, s[24:27], 0 offen offset:{OFF_MOD+16}
    buffer_load_dwordx4 v[{VA}:{VA+3}], v3, s[24:27], 0 offen offset:{OFF_MOD+2048}
    buffer_load_dwordx4 v[{VA+4}:{VA+7}], v3, s[24:27], 0 offen offset:{OFF_MOD+2064}
    """)
    for r in range(16):
        if r and r % 4 == 0:
            k("s_add_u32 s44, s44, 4096")
        k(f"buffer_load_dwordx4 v[{ROWS+4*r}:{ROWS+4*r+3}], v2, s[24:27], s44 offen offset:{(r%4)*1024}")
    NW1 = 40
    def wload(i):
        if i and i % 4 == 0:
            k("s_add_u32 s46, s46, 4096")
        k(f"buffer_load_dwordx4 a[{4*i}:{4*i+3}], v2, s[24:27], s46 offen offset:{(i%4)*1024}")
    for i in range(NW1):
        wload(i)
    k(f"""
    v_and_b32 v4, 7, v1
    v_lshlrev_b32 v4, 4, v4
    v_lshl_add_u32 v4, v1, 8, v4
    v_add_u32 v4, s45, v4
    v_and_b32 v5, 15, v1
    v_lshrrev_b32 v6, 4, v1
    v_xor_b32 v7, v5, v6
    v_lshlrev_b32 v7, 4, v7
    v_lshl_add_u32 v6, v6, 8, v7
    v_xor_b32 v7, 64, v6
    """)
    stamp(k, 1)
    nw = NW1
    for r in range(16):
        k(f"s_waitcnt vmcnt({min(63, (15 - r) + nw)})")
        b = ROWS + 4 * r
        t = TMP + 8 * (r & 1)
        for i in range(4):
            k(f"v_lshlrev_b32 v{t+2*i}, 16, v{b+i}")
            k(f"v_and_b32 v{t+2*i+1}, 0xffff0000, v{b+i}")
        for i in range(4):
            k(f"v_pk_fma_f32 v[{t+2*i}:{t+2*i+1}], v[{t+2*i}:{t+2*i+1}], v[{VA+2*i}:{VA+2*i+1}], v[{VB+2*i}:{VB+2*i+1}]")
        for i in range(4):
            k(f"v_cvt_pk_bf16_f32 v{b+i}, v{t+2*i}, v{t+2*i+1}")
        k(f"v_xor_b32 v5, {r<<4}, v4")
        k(f"ds_write_b128 v5, v[{b}:{b+3}]")
        if nw < 48:
            wload(nw); nw += 1
    k("s_waitcnt lgkmcnt(0)")
    stamp(k, 2)
    k("s_barrier")
    stamp(k, 3)
    def aread(s):
        base = 6 + (s & 1)
        f = FR + 16 * (s & 1)
        for b in range(4):
            k(f"ds_read_b128 v[{f+4*b}:{f+4*b+3}], v{base} offset:{b*16384+s*1024}")
    aread(0)
    for s in range(16):
        if s < 15:
            aread(s + 1)
            k(f"s_waitcnt vmcnt({45-3*s}) lgkmcnt(4)")
        else:
            k("s_waitcnt vmcnt(0) lgkmcnt(0)")
        f = FR + 16 * (s & 1)
        for b in range(4):
            for which in range(3):
                acc = ACC + 4 * (which * 4 + b)
                w = f"a[{12*s+4*which}:{12*s+4*which+3}]"
                h = f"v[{f+4*b}:{f+4*b+3}]"
                c = "0" if s == 0 else f"v[{acc}:{acc+3}]"
                a_, b_ = (w, h) if which < 2 else (h, w)
                k(f"v_mfma_f32_16x16x32_bf16 v[{acc}:{acc+3}], {a_}, {b_}, {c}")
    stamp(k, 4)
    k(f"""
    v_and_b32 v5, 15, v1
    v_lshrrev_b32 v6, 4, v1
    v_and_b32 v7, 1, v6
    v_lshrrev_b32 v6, 1, v6
    v_lshlrev_b32 v5, 4, v5
    v_lshl_add_u32 v8, v6, 9, v5
    v_lshl_add_u32 v8, v7, 3, v8      ; q/k voffset
    v_lshl_add_u32 v9, v7, 8, v5
    v_lshl_add_u32 v9, v6, 3, v9      ; v voffset
    s_lshl_b32 s44, s43, 16
    s_lshl_b32 s45, s42, 11
    s_add_u32 s44, s44, s45
    s_add_u32 s44, s44, {OFF_Q}
    s_lshl_b32 s46, s43, 17
    s_lshl_b32 s45, s42, 12
    s_add_u32 s46, s46, s45
    s_add_u32 s46, s46, {OFF_KV}
    v_mov_b32 v10, {QSCALE:#x}
    """)
    for which in range(3):
        for b in range(4):
            acc = ACC + 4 * (which * 4 + b)
            t = 12 + 2 * (which * 4 + b)
            if which == 0:
                for i in range(4):
                    k(f"v_mul_f32 v{acc+i}, v10, v{acc+i}")
            k(f"v_cvt_pk_bf16_f32 v{t}, v{acc}, v{acc+1}")
            k(f"v_cvt_pk_bf16_f32 v{t+1}, v{acc+2}, v{acc+3}")
            if which == 0:
                k(f"buffer_store_dwordx2 v[{t}:{t+1}], v8, s[24:27], s44 offen offset:{(b>>1)*1024+(b&1)*256}")
            elif which == 1:
                k(f"buffer_store_dwordx2 v[{t}:{t+1}], v8, s[24:27], s46 offen offset:{(b>>1)*2048+(b&1)*256}")
            else:
                k(f"buffer_store_dwordx2 v[{t}:{t+1}], v9, s[24:27], s46 offen offset:{(b>>1)*2048+1024+(b&1)*512}")
    epilogue(k)
    return k, (256, 256, 65536)


def k2():
    k = Kern("k2_attn_kernel", nvgpr=112)
    prologue(k, 256)
    Q, KF, VF, S, P, O, C = 8, 12, 20, 36, 68, 76, 92
    k(f"""
    s_and_b32 s40, s2, 7
    s_lshr_b32 s41, s2, 3
    s_lshl_b32 s40, s40, 2
    s_and_b32 s42, s41, 3
    s_add_u32 s40, s40, s42        ; head
    s_lshr_b32 s41, s41, 2         ; qblock256
    s_lshl_b32 s41, s41, 3
    s_add_u32 s41, s41, s3         ; qblock32
    v_lshlrev_b32 v2, 4, v1        ; lane*16
    s_lshl_b32 s42, s40, 16
    s_lshl_b32 s43, s41, 10
    s_add_u32 s42, s42, s43
    s_add_u32 s42, s42, {OFF_Q}
    s_lshl_b32 s44, s40, 17
    s_lshl_b32 s45, s3, 10
    s_add_u32 s44, s44, s45
    s_add_u32 s44, s44, {OFF_KV}
    s_lshl_b32 s46, s41, 15
    s_lshl_b32 s47, s40, 10
    s_add_u32 s46, s46, s47
    s_add_u32 s46, s46, {OFF_O}
    """)
    prologue_wait(k)
    k(f"buffer_load_dwordx4 v[{Q}:{Q+3}], v2, s[24:27], s42 offen")
    for i in range(16):
        k(f"s_add_u32 m0, s45, {i*8192}")
        if i:
            k("s_add_u32 s44, s44, 8192")
        else:
            k("s_nop 0")
        k("buffer_load_dwordx4 v2, s[24:27], s44 offen lds")
    k(f"""
    v_and_b32 v3, 15, v1
    v_lshlrev_b32 v3, 4, v3
    v_lshrrev_b32 v4, 5, v1
    v_lshl_add_u32 v3, v4, 8, v3
    s_mov_b32 s48, 0x0000ffff
    s_mov_b32 s49, 0x0000ffff
    s_mov_b32 s52, 0
    """)
    for i in range(16):
        k(f"v_mov_b32 v{VF+i}, 0x3f803f80")
    stamp(k, 1)
    k("s_waitcnt vmcnt(15)")
    k("s_barrier")
    stamp(k, 2)
    k(f"""
    ds_read_b128 v[{KF}:{KF+3}], v2
    s_waitcnt lgkmcnt(0)
    v_mfma_f32_32x32x16_bf16 v[{S}:{S+15}], v[{KF}:{KF+3}], v[{Q}:{Q+3}], 0
    s_nop 15
    """)
    def max16(dst, b, first):
        if first:
            k(f"v_max3_f32 v{dst}, v{b}, v{b+1}, v{b+2}")
            k(f"v_max_f32 v{dst}, v{dst}, v{b+3}")
        else:
            k(f"v_max3_f32 v{dst}, v{dst}, v{b}, v{b+1}")
            k(f"v_max3_f32 v{dst}, v{dst}, v{b+2}, v{b+3}")
        for i in range(4, 16, 2):
            k(f"v_max3_f32 v{dst}, v{dst}, v{b+i}, v{b+i+1}")
    max16(5, S, True)
    k.label("L_k2_setmax")
    k("""
    v_mov_b32 v6, v5
    s_nop 1
    v_permlane32_swap_b32 v6, v5
    v_max_f32 v5, v5, v6
    v_sub_f32 v5, 0, v5
    """)
    for i in range(16):
        k(f"v_mov_b32 v{C+i}, v5")
    for i in range(16):
        k(f"v_mov_b32 v{O+i}, 0")
    stamp(k, 3)
    k(f"""
    v_mov_b32 v6, v2
    v_mov_b32 v7, v3
    ds_read_b128 v[{KF}:{KF+3}], v6
    ds_read_b128 v[{KF+4}:{KF+7}], v6 offset:2048
    s_mov_b64 exec, s[48:49]
    ds_read_b128 v[{VF}:{VF+3}], v7 offset:1024
    ds_read_b128 v[{VF+4}:{VF+7}], v7 offset:1536
    s_mov_b64 exec, -1
    s_waitcnt lgkmcnt(3)
    v_mfma_f32_32x32x16_bf16 v[{S}:{S+15}], v[{KF}:{KF+3}], v[{Q}:{Q+3}], v[{C}:{C+15}]
    s_mov_b32 s50, 0
    s_nop 7
    """)
    k.label("L_k2_loop")
    k(f"""
    s_cmp_lg_u32 s52, 0
    s_cbranch_scc1 L_k2_nobar
    s_cmp_eq_u32 s50, 0
    s_cbranch_scc0 L_k2_b2
    s_waitcnt vmcnt(12)
    s_barrier
    s_branch L_k2_nobar
    """)
    k.label("L_k2_b2")
    k(f"""
    s_cmp_eq_u32 s50, 3
    s_cbranch_scc0 L_k2_nobar
    s_waitcnt vmcnt(0)
    s_barrier
    """)
    k.label("L_k2_nobar")
    for u in range(4):
        cur, nxt = u & 1, (u + 1) & 1
        Sc, Sn = S + 16 * cur, S + 16 * nxt
        Kn = KF + 4 * nxt
        Kc = KF + 4 * cur
        Vc, Vn = VF + 8 * cur, VF + 8 * nxt
        k("s_waitcnt lgkmcnt(2)")
        k(f"v_mfma_f32_32x32x16_bf16 v[{Sn}:{Sn+15}], v[{Kn}:{Kn+3}], v[{Q}:{Q+3}], v[{C}:{C+15}]")
        k(f"ds_read_b128 v[{Kc}:{Kc+3}], v6 offset:{(u+2)*2048}")
        k("s_mov_b64 exec, s[48:49]")
        k(f"ds_read_b128 v[{Vn}:{Vn+3}], v7 offset:{(u+1)*2048+1024}")
        k(f"ds_read_b128 v[{Vn+4}:{Vn+7}], v7 offset:{(u+1)*2048+1536}")
        k("s_mov_b64 exec, -1")
        for half in range(2):
            b = Sc + 8 * half
            for i in range(8):
                k(f"v_exp_f32 v{b+i}, v{b+i}")
                if i >= 3 and i % 2 == 1:
                    j = (i - 3) // 2
                    k(f"v_cvt_pk_bf16_f32 v{P+4*half+j}, v{b+2*j}, v{b+2*j+1}")
            if half == 0:
                k("s_waitcnt lgkmcnt(3)")
            else:
                k("s_nop 0")
            k(f"v_cvt_pk_bf16_f32 v{P+4*half+3}, v{b+6}, v{b+7}")
            if half == 1 and u == 3:
                k("v_add_u32 v6, 0x2000, v6")
                k("v_add_u32 v7, 0x2000, v7")
            else:
                k("s_nop 1")
            k(f"v_mfma_f32_32x32x16_bf16 v[{O}:{O+15}], v[{Vc+4*half}:{Vc+4*half+3}], v[{P+4*half}:{P+4*half+3}], v[{O}:{O+15}]")
    k(f"""
    s_add_u32 s50, s50, 1
    s_cmp_lt_u32 s50, 16
    s_cbranch_scc1 L_k2_loop
    s_waitcnt lgkmcnt(0)
    s_nop 15
    """)
    stamp(k, 4)
    k(f"""
    s_mov_b32 s53, 0x53800000
    v_cmp_nge_f32 vcc, s53, v{O+8}
    s_cmp_lg_u32 s52, 0
    s_cbranch_scc1 L_k2_fin
    s_nop 3
    s_cmp_eq_u64 vcc, 0
    s_cbranch_scc1 L_k2_fin
    """)
    k(f"""
    s_mov_b32 s52, 1
    s_mov_b32 s50, 0
    v_mov_b32 v6, v2
    v_mov_b32 v5, 0xff800000
    """)
    k.label("L_k2_maxloop")
    k(f"""
    ds_read_b128 v[{KF}:{KF+3}], v6
    v_add_u32 v6, 0x800, v6
    s_waitcnt lgkmcnt(0)
    v_mfma_f32_32x32x16_bf16 v[{S}:{S+15}], v[{KF}:{KF+3}], v[{Q}:{Q+3}], 0
    s_nop 15
    """)
    max16(5, S, False)
    k(f"""
    s_add_u32 s50, s50, 1
    s_cmp_lt_u32 s50, 64
    s_cbranch_scc1 L_k2_maxloop
    s_branch L_k2_setmax
    """)
    k.label("L_k2_fin")
    k(f"v_rcp_f32 v5, v{O+8}")
    k("s_nop 0")
    for i in range(8):
        k(f"v_mul_f32 v{O+i}, v5, v{O+i}")
    for i in range(4):
        k(f"v_cvt_pk_bf16_f32 v{P+i}, v{O+2*i}, v{O+2*i+1}")
    k(f"buffer_store_dwordx4 v[{P}:{P+3}], v2, s[24:27], s46 offen")
    epilogue(k)
    return k, (256, 512, 131072 + 4096 + 1024)


ATT = dict(Q=8, KF=16, VF=20, S=36, P=68, O=76, C=108)


def att_unit(k, u, side, last=False):
    Q, KF, VF, S, P, O, C = (ATT[x] for x in ("Q", "KF", "VF", "S", "P", "O", "C"))
    blk = u & 1
    t = u >> 1
    Sc, Sp = S + 16 * blk, S + 16 * (blk ^ 1)
    def E(i): return f"v_exp_f32 v{Sc+i}, v{Sc+i}"
    def Cv(j, base=None):
        b = Sc if base is None else base
        return f"v_cvt_pk_bf16_f32 v{P+j}, v{b+2*j}, v{b+2*j+1}"
    def PV(uu, half):
        o = O + 16 * (uu & 1)
        v = VF + 8 * ((uu >> 1) & 1) + 4 * half
        c = "0" if (uu < 2 and half == 0) else f"v[{o}:{o+15}]"
        return f"v_mfma_f32_32x32x16_bf16 v[{o}:{o+15}], v[{v}:{v+3}], v[{P+4*half}:{P+4*half+3}], {c}"
    def QK(uu):
        b = uu & 1
        return f"v_mfma_f32_32x32x16_bf16 v[{S+16*b}:{S+16*b+15}], v[{KF}:{KF+3}], v[{Q+4*b}:{Q+4*b+3}], v[{C+16*b}:{C+16*b+15}]"
    seq = [E(0), E(1), Cv(7, Sp) if u > 0 else None, E(2), Cv(0), E(3), PV(u - 1, 1) if u > 0 else None,
           E(4), Cv(1), E(5), E(6), Cv(2), E(7), QK(u + 1) if not last else None,
           E(8), Cv(3), E(9), E(10), Cv(4), E(11), PV(u, 0), E(12), Cv(5), E(13), E(14), Cv(6), E(15)]
    for i, ins in enumerate(seq, 1):
        for x in side.get(-i, []):
            k(x)
        if ins:
            k(ins)
        for x in side.get(i, []):
            k(x)


def att_max16(k, dst, b, first):
    if first:
        k(f"v_max3_f32 v{dst}, v{b}, v{b+1}, v{b+2}")
        k(f"v_max_f32 v{dst}, v{dst}, v{b+3}")
    else:
        k(f"v_max3_f32 v{dst}, v{dst}, v{b}, v{b+1}")
        k(f"v_max3_f32 v{dst}, v{dst}, v{b+2}, v{b+3}")
    for i in range(4, 16, 2):
        k(f"v_max3_f32 v{dst}, v{dst}, v{b+i}, v{b+i+1}")


def k2b():
    k = Kern("k2_attn_kernel", nvgpr=144)
    prologue(k, 256)
    Q, KF, VF, S, P, O, C = (ATT[x] for x in ("Q", "KF", "VF", "S", "P", "O", "C"))
    k(f"""
    s_and_b32 s40, s2, 7
    s_lshr_b32 s41, s2, 3
    s_lshl_b32 s40, s40, 2
    s_and_b32 s42, s41, 3
    s_add_u32 s40, s40, s42        ; head
    s_lshr_b32 s41, s41, 2         ; qblock256
    s_lshl_b32 s41, s41, 2
    s_add_u32 s41, s41, s3         ; qblock64
    v_lshlrev_b32 v2, 4, v1        ; lane*16
    s_lshl_b32 s42, s40, 16
    s_lshl_b32 s43, s41, 11
    s_add_u32 s42, s42, s43
    s_add_u32 s42, s42, {OFF_Q}
    s_lshl_b32 s44, s40, 17
    s_lshl_b32 s45, s3, 10
    s_add_u32 s47, s44, {OFF_KV}
    s_add_u32 s44, s47, s45
    s_lshl_b32 s46, s41, 16
    s_lshl_b32 s43, s40, 10
    s_add_u32 s46, s46, s43
    s_add_u32 s46, s46, {OFF_O}
    s_mov_b32 m0, s45
    """)
    prologue_wait(k)
    rounds = [0]
    def dma():
        i = rounds[0]; rounds[0] += 1
        out = []
        if i:
            out += ["s_add_u32 m0, m0, 4096", "s_add_u32 s44, s44, 4096"]
        out += ["buffer_load_dwordx4 v2, s[24:27], s44 offen lds"]
        return out
    for x in dma(): k(x)
    k(f"buffer_load_dwordx4 v[{Q}:{Q+3}], v2, s[24:27], s42 offen")
    k(f"buffer_load_dwordx4 v[{Q+4}:{Q+7}], v2, s[24:27], s42 offen offset:1024")
    for r in range(3):
        for x in dma(): k(x)
    k(f"""
    v_and_b32 v3, 15, v1
    v_lshlrev_b32 v3, 4, v3
    v_lshrrev_b32 v4, 5, v1
    v_lshl_add_u32 v3, v4, 8, v3
    v_add_u32 v4, 0x10000, v2
    v_add_u32 v5, 0x10000, v3
    s_mov_b32 s48, 0x0000ffff
    s_mov_b32 s49, 0x0000ffff
    v_and_b32 v6, 27, v1
    v_cmp_eq_u32 vcc, 16, v6
    v_mov_b32 v7, 0x3f803f80
    s_nop 0
    v_cndmask_b32 v7, 0, v7, vcc
    """)
    for i in range(16):
        k(f"v_mov_b32 v{VF+i}, v7")
    stamp(k, 1)
    k("s_waitcnt vmcnt(3)")
    k("s_barrier")
    stamp(k, 2)
    def kread(t):
        off = t * 2048
        return f"ds_read_b128 v[{KF}:{KF+3}], v{2 if off < 65536 else 4} offset:{off & 0xffff}"
    def vread(t):
        off = t * 2048 + 1024
        b = VF + 8 * (t & 1)
        a = 3 if off < 65536 else 5
        return ["s_mov_b64 exec, s[48:49]",
                f"ds_read_b128 v[{b}:{b+3}], v{a} offset:{off & 0xffff}",
                f"ds_read_b128 v[{b+4}:{b+7}], v{a} offset:{(off+512) & 0xffff}",
                "s_mov_b64 exec, -1"]
    k(kread(0))
    for x in vread(0): k(x)
    k(f"""
    s_waitcnt lgkmcnt(2)
    v_mfma_f32_32x32x16_bf16 v[{S}:{S+15}], v[{KF}:{KF+3}], v[{Q}:{Q+3}], 0
    v_mfma_f32_32x32x16_bf16 v[{S+16}:{S+31}], v[{KF}:{KF+3}], v[{Q+4}:{Q+7}], 0
    s_nop 10
    """)
    att_max16(k, 6, S, True)
    att_max16(k, 7, S + 16, True)
    k("""
    s_nop 1
    v_permlane32_swap_b32 v6, v7
    v_max_f32 v6, v6, v7
    v_mov_b32 v7, v6
    s_nop 1
    v_permlane32_swap_b32 v6, v7
    v_sub_f32 v6, 0, v6
    v_sub_f32 v7, 0, v7
    """)
    for i in range(16):
        k(f"v_mov_b32 v{C+i}, v6")
    k("s_nop 0")
    k(f"v_mov_b32 v{C+16}, v7")
    k(f"v_mfma_f32_32x32x16_bf16 v[{S}:{S+15}], v[{KF}:{KF+3}], v[{Q}:{Q+3}], v[{C}:{C+15}]")
    for i in range(1, 16):
        k(f"v_mov_b32 v{C+16+i}, v7")
    stamp(k, 3)
    ROLL = int(os.environ.get("ROLL", "4"))
    NUNR = 16 if ROLL else 64
    for u in range(2 * NUNR):
        t = u >> 1
        side = {}
        if u % 2 == 0 and t < 63:
            pre = []
            if u == 2:
                pre = [f"s_waitcnt vmcnt({rounds[0]-4})", "s_barrier"]
            elif u == 14:
                pre = [f"s_waitcnt vmcnt({rounds[0]-12})", "s_barrier"]
            elif u == 46:
                pre = ["s_waitcnt vmcnt(0)", "s_barrier"]
            side[14] = pre + [kread(t + 1)]
            vr = vread(t + 1)
            side[15] = vr
        if u % 2 == 1 or u == 0:
            side[-14] = ["s_waitcnt lgkmcnt(0)"]
        if rounds[0] < 32:
            d = dma()
            side[1] = d[:2]
            side[2] = d[2:]
        att_unit(k, u, side, last=(u == 127))
    if ROLL:
        k(f"""
        v_add_u32 v4, {NUNR*2048}, v2
        v_add_u32 v5, {NUNR*2048}, v3
        s_mov_b32 s50, {(64-NUNR)//ROLL}
        s_waitcnt vmcnt(0)
        s_barrier
        """)
        k(".p2align 6")
        k.label("L_k2_roll")
        for uu in range(2 * ROLL):
            u = 2 * NUNR + uu
            tt = uu >> 1
            side = {}
            if uu % 2 == 0:
                b = VF + 8 * ((tt + 1) & 1)
                off = (tt + 1) * 2048
                side[14] = [f"ds_read_b128 v[{KF}:{KF+3}], v4 offset:{off}"]
                side[15] = ["s_mov_b64 exec, s[48:49]",
                            f"ds_read_b128 v[{b}:{b+3}], v5 offset:{off+1024}",
                            f"ds_read_b128 v[{b+4}:{b+7}], v5 offset:{off+1536}",
                            "s_mov_b64 exec, -1"]
            else:
                side[-14] = ["s_waitcnt lgkmcnt(0)"]
            if uu == 2 * ROLL - 1:
                side[1] = [f"v_add_u32 v4, {ROLL*2048}, v4"]
                side[4] = [f"v_add_u32 v5, {ROLL*2048}, v5"]
                side[24] = ["s_sub_u32 s50, s50, 1"]
                side[25] = ["s_cmp_lg_u32 s50, 0"]
            att_unit(k, u, side)
        k("s_cbranch_scc1 L_k2_roll")
    k(f"""
    s_nop 0
    v_cvt_pk_bf16_f32 v{P+7}, v{S+30}, v{S+31}
    s_nop 1
    v_mfma_f32_32x32x16_bf16 v[{O+16}:{O+31}], v[{VF+12}:{VF+15}], v[{P+4}:{P+7}], v[{O+16}:{O+31}]
    s_mov_b32 s53, 0x53800000
    s_nop 10
    """)
    stamp(k, 4)
    k(f"""
    v_max_f32 v6, v{O+8}, v{O+24}
    v_cmp_nge_f32 vcc, s53, v{O+8}
    v_cmp_nge_f32 s[50:51], s53, v{O+24}
    s_nop 3
    s_or_b64 vcc, vcc, s[50:51]
    s_cbranch_scc0 L_k2_fin
    """)
    k(f"""
    s_mov_b32 s50, 0
    s_mov_b32 s51, s47
    v_mov_b32 v6, 0xff800000
    v_mov_b32 v7, 0xff800000
    """)
    k.label("L_k2_maxloop")
    k(f"""
    buffer_load_dwordx4 v[{KF}:{KF+3}], v2, s[24:27], s51 offen sc1
    s_add_u32 s51, s51, 2048
    s_waitcnt vmcnt(0)
    v_mfma_f32_32x32x16_bf16 v[{S}:{S+15}], v[{KF}:{KF+3}], v[{Q}:{Q+3}], 0
    v_mfma_f32_32x32x16_bf16 v[{S+16}:{S+31}], v[{KF}:{KF+3}], v[{Q+4}:{Q+7}], 0
    s_nop 10
    """)
    att_max16(k, 6, S, False)
    att_max16(k, 7, S + 16, False)
    k(f"""
    s_add_u32 s50, s50, 1
    s_cmp_lt_u32 s50, 64
    s_cbranch_scc1 L_k2_maxloop
    s_nop 0
    v_permlane32_swap_b32 v6, v7
    v_max_f32 v6, v6, v7
    v_mov_b32 v7, v6
    s_nop 1
    v_permlane32_swap_b32 v6, v7
    v_sub_f32 v6, 0, v6
    v_sub_f32 v7, 0, v7
    """)
    for i in range(16):
        k(f"v_mov_b32 v{C+i}, v6")
        k(f"v_mov_b32 v{C+16+i}, v7")
        k(f"v_mov_b32 v{O+i}, 0")
        k(f"v_mov_b32 v{O+16+i}, 0")
    k("s_mov_b32 s50, 0")
    k("s_mov_b32 s51, s47")
    k.label("L_k2_redo")
    k(f"""
    buffer_load_dwordx4 v[{KF}:{KF+3}], v2, s[24:27], s51 offen sc1
    s_mov_b64 exec, s[48:49]
    buffer_load_dwordx4 v[{VF}:{VF+3}], v3, s[24:27], s51 offen offset:1024 sc1
    buffer_load_dwordx4 v[{VF+4}:{VF+7}], v3, s[24:27], s51 offen offset:1536 sc1
    s_mov_b64 exec, -1
    s_add_u32 s51, s51, 2048
    s_waitcnt vmcnt(0)
    v_mfma_f32_32x32x16_bf16 v[{S}:{S+15}], v[{KF}:{KF+3}], v[{Q}:{Q+3}], v[{C}:{C+15}]
    v_mfma_f32_32x32x16_bf16 v[{S+16}:{S+31}], v[{KF}:{KF+3}], v[{Q+4}:{Q+7}], v[{C+16}:{C+31}]
    s_nop 10
    """)
    for b in range(2):
        for i in range(16):
            k(f"v_exp_f32 v{S+16*b+i}, v{S+16*b+i}")
        k("s_nop 0")
        for j in range(8):
            k(f"v_cvt_pk_bf16_f32 v{P+j}, v{S+16*b+2*j}, v{S+16*b+2*j+1}")
        k("s_nop 1")
        for h in range(2):
            k(f"v_mfma_f32_32x32x16_bf16 v[{O+16*b}:{O+16*b+15}], v[{VF+4*h}:{VF+4*h+3}], v[{P+4*h}:{P+4*h+3}], v[{O+16*b}:{O+16*b+15}]")
    k(f"""
    s_add_u32 s50, s50, 1
    s_cmp_lt_u32 s50, 64
    s_cbranch_scc1 L_k2_redo
    s_nop 10
    """)
    k.label("L_k2_fin")
    k(f"v_rcp_f32 v6, v{O+8}")
    k(f"v_rcp_f32 v7, v{O+24}")
    for b in range(2):
        for i in range(8):
            k(f"v_mul_f32 v{O+16*b+i}, v{6+b}, v{O+16*b+i}")
        for i in range(4):
            k(f"v_cvt_pk_bf16_f32 v{P+4*b+i}, v{O+16*b+2*i}, v{O+16*b+2*i+1}")
        if b:
            k("s_add_u32 s46, s46, 32768")
        k(f"buffer_store_dwordx4 v[{P+4*b}:{P+4*b+3}], v2, s[24:27], s46 offen")
    epilogue(k)
    return k, (256, 256, 131072 + 2048)


def splitk_gemm(k, nks, offA, offB, depth_steps, RB, ACC):
    n = nks // 4
    k(f"""
    s_lshr_b32 s44, s3, 1
    s_and_b32 s45, s3, 1
    s_lshl_b32 s46, s43, 1
    s_add_u32 s47, s46, s44
    s_xor_b32 s48, s47, 1          ; other
    s_lshl_b32 s46, s42, 1
    s_add_u32 s49, s46, s45
    s_xor_b32 s50, s49, 1
    s_mul_i32 s46, s3, {n*1024}
    s_mul_i32 s52, s47, {nks*1024}
    s_mul_i32 s53, s48, {nks*1024}
    s_mul_i32 s54, s49, {nks*1024}
    s_mul_i32 s55, s50, {nks*1024}
    s_add_u32 s51, s46, {offA}
    s_add_u32 s52, s52, s51
    s_add_u32 s53, s53, s51
    s_add_u32 s51, s46, {offB}
    s_add_u32 s54, s54, s51
    s_add_u32 s55, s55, s51
    """)
    def load(s):
        r = RB + 16 * (s % depth_steps)
        if s and s % 4 == 0:
            for sr in (52, 53, 54, 55):
                k(f"s_add_u32 s{sr}, s{sr}, 4096")
        for i, sr in enumerate((52, 54, 53, 55)):
            k(f"buffer_load_dwordx4 v[{r+4*i}:{r+4*i+3}], v2, s[24:27], s{sr} offen offset:{(s%4)*1024}")
    return n, load


def splitk_main(k, n, load, depth_steps, RB, ACC, extra_after=0):
    issued = min(n, depth_steps)
    for s in range(n):
        later = (issued - 1 - s) * 4 + extra_after
        k(f"s_waitcnt vmcnt({min(63, later)})")
        r = RB + 16 * (s % depth_steps)
        A0, B0, A1, B1 = (f"v[{r+4*i}:{r+4*i+3}]" for i in range(4))
        for t, (a, b) in enumerate(((A0, B0), (A0, B1), (A1, B0), (A1, B1))):
            acc = ACC + 16 * t
            c = "0" if s == 0 else f"v[{acc}:{acc+15}]"
            k(f"v_mfma_f32_32x32x16_bf16 v[{acc}:{acc+15}], {a}, {b}, {c}")
        if issued < n:
            load(issued); issued += 1
            extra_after = 0


def splitk_reduce(k, ACC, TMP):
    k("s_nop 7")
    for t in (1, 2, 3):
        k(f"""
        s_xor_b32 s56, s3, {t}
        s_mul_i32 s56, s56, 12288
        s_add_u32 s56, s56, {(t-1)*4096}
        v_add_u32 v3, s56, v2
        """)
        for q in range(4):
            k(f"ds_write_b128 v3, v[{ACC+16*t+4*q}:{ACC+16*t+4*q+3}] offset:{q*1024}")
    k(f"""
    s_mul_i32 s56, s3, 12288
    v_add_u32 v3, s56, v2
    s_waitcnt lgkmcnt(0)
    s_barrier
    """)
    for i in range(12):
        k(f"ds_read_b128 v[{TMP+4*i}:{TMP+4*i+3}], v3 offset:{i*1024}")
    for sl in range(3):
        k(f"s_waitcnt lgkmcnt({8-4*sl})")
        for i in range(16):
            k(f"v_add_f32 v{ACC+i}, v{ACC+i}, v{TMP+16*sl+i}")


def map_4x8(k):
    k("""
    s_and_b32 s40, s2, 7
    s_lshr_b32 s41, s2, 3
    s_lshl_b32 s42, s40, 2
    s_and_b32 s43, s41, 3
    s_add_u32 s42, s42, s43        ; tb
    s_lshr_b32 s43, s41, 2         ; cb
    v_lshlrev_b32 v2, 4, v1
    """)


def k3():
    k = Kern("k3_wo_kernel", nvgpr=248)
    NUT = 28
    prologue(k, 256 + NUT)
    k("s_cmp_ge_u32 s2, 256")
    k("s_cbranch_scc1 L_k3_ut")
    RB, ACC = 8, 136
    G, CBV, X = 200, 216, 232
    map_4x8(k)
    n, load = splitk_gemm(k, 32, OFF_WO, OFF_O, 8, RB, ACC)
    prologue_wait(k)
    srd(k, 28, P_X, 2048 * 1024)
    for s in range(8):
        load(s)
    k(f"""
    v_lshrrev_b32 v4, 5, v1
    v_and_b32 v5, 31, v1
    v_lshlrev_b32 v6, 4, v4             ; h*16 bytes (4 f32)
    s_lshl_b32 s56, s47, 7
    s_add_u32 s57, s56, {OFF_MOD + 2*2048}
    s_add_u32 s58, s56, {OFF_MOD + 4*2048}
    v_lshlrev_b32 v7, 10, v5
    v_lshl_add_u32 v7, v4, 3, v7        ; tok*1024 + h*8
    s_lshl_b32 s59, s49, 15
    s_lshl_b32 s56, s47, 6
    s_add_u32 s59, s59, s56
    """)
    for j in range(4):
        k(f"buffer_load_dwordx4 v[{G+4*j}:{G+4*j+3}], v6, s[24:27], s57 offen offset:{32*j}")
        k(f"buffer_load_dwordx4 v[{CBV+4*j}:{CBV+4*j+3}], v6, s[24:27], s58 offen offset:{32*j}")
        k(f"buffer_load_dwordx2 v[{X+2*j}:{X+2*j+1}], v7, s[28:31], s59 offen offset:{16*j}")
    stamp(k, 1)
    splitk_main(k, n, load, 8, RB, ACC, extra_after=12)
    stamp(k, 2)
    splitk_reduce(k, ACC, 8)
    stamp(k, 3)
    k("s_waitcnt vmcnt(0)")
    T = 8
    for i in range(8):
        k(f"v_cvt_pk_bf16_f32 v{T+i}, v{ACC+2*i}, v{ACC+2*i+1}")
    for i in range(8):
        k(f"v_lshlrev_b32 v{ACC+2*i}, 16, v{T+i}")
        k(f"v_and_b32 v{ACC+2*i+1}, 0xffff0000, v{T+i}")
    for i in range(16):
        k(f"v_mul_f32 v{ACC+i}, v{G+i}, v{ACC+i}")
    for i in range(8):
        k(f"v_cvt_pk_bf16_f32 v{T+i}, v{ACC+2*i}, v{ACC+2*i+1}")
    for i in range(8):
        k(f"v_lshlrev_b32 v{ACC+2*i}, 16, v{T+i}")
        k(f"v_and_b32 v{ACC+2*i+1}, 0xffff0000, v{T+i}")
        k(f"v_lshlrev_b32 v{G+2*i}, 16, v{X+i}")
        k(f"v_and_b32 v{G+2*i+1}, 0xffff0000, v{X+i}")
    for i in range(16):
        k(f"v_add_f32 v{ACC+i}, v{G+i}, v{ACC+i}")
    for i in range(8):
        k(f"v_cvt_pk_bf16_f32 v{T+i}, v{ACC+2*i}, v{ACC+2*i+1}")
    k(f"""
    v_lshrrev_b32 v3, 4, v5
    v_lshlrev_b32 v3, 14, v3
    v_and_b32 v6, 15, v5
    v_lshl_add_u32 v3, v6, 4, v3
    v_lshl_add_u32 v3, v4, 8, v3
    s_lshl_b32 s56, s49, 15
    s_lshl_b32 s57, s47, 10
    s_add_u32 s56, s56, s57
    s_add_u32 s57, s56, {OFF_X2S}
    s_add_u32 s56, s56, {OFF_X2}
    buffer_store_dwordx4 v[{T}:{T+3}], v3, s[24:27], s56 offen
    buffer_store_dwordx4 v[{T+4}:{T+7}], v3, s[24:27], s56 offen offset:512
    """)
    for i in range(8):
        k(f"v_lshlrev_b32 v{ACC+2*i}, 16, v{T+i}")
        k(f"v_and_b32 v{ACC+2*i+1}, 0xffff0000, v{T+i}")
    k(f"v_add_f32 v24, v{ACC}, v{ACC+1}")
    k(f"v_mul_f32 v25, v{ACC}, v{ACC}")
    for i in range(1, 16):
        if i >= 2:
            k(f"v_add_f32 v24, v24, v{ACC+i}")
        k(f"v_fmac_f32 v25, v{ACC+i}, v{ACC+i}")
    for i in range(16):
        k(f"v_mul_f32 v{ACC+i}, v{CBV+i}, v{ACC+i}")
    for i in range(8):
        k(f"v_cvt_pk_bf16_f32 v{16+i}, v{ACC+2*i}, v{ACC+2*i+1}")
    k(f"""
    buffer_store_dwordx4 v[16:19], v3, s[24:27], s57 offen
    buffer_store_dwordx4 v[20:23], v3, s[24:27], s57 offen offset:512
    v_permlane32_swap_b32 v24, v25
    v_add_f32 v24, v24, v25
    v_lshlrev_b32 v3, 7, v5
    v_lshl_add_u32 v3, v4, 2, v3
    s_lshl_b32 s56, s49, 12
    s_lshl_b32 s57, s47, 3
    s_add_u32 s56, s56, s57
    s_add_u32 s56, s56, {OFF_ST2}
    buffer_store_dword v24, v3, s[24:27], s56 offen
    """)
    endpgm(k)
    k.label("L_k3_ut")
    k(f"""
    s_sub_u32 s40, s2, 256
    s_lshl_b32 s40, s40, 2
    s_add_u32 s40, s40, s3          ; nt
    s_mul_i32 s41, s40, 9363
    s_lshr_b32 s41, s41, 16
    s_mul_i32 s42, s41, 7
    s_sub_u32 s42, s40, s42         ; i
    s_mul_i32 s41, s41, {16*7}
    s_add_u32 s41, s41, s42
    s_lshl_b32 s41, s41, 10
    s_add_u32 s41, s41, {OFF_W1}
    v_lshlrev_b32 v2, 4, v1
    v_and_b32 v3, 15, v1            ; col
    v_lshrrev_b32 v4, 4, v1         ; g
    v_and_b32 v5, 1, v4
    v_lshrrev_b32 v6, 1, v4
    v_lshlrev_b32 v6, 6, v6
    v_lshl_add_u32 v6, v5, 4, v6    ; (16(g>>1) + 4(g&1))*4 bytes
    v_and_b32 v7, 1, v3
    v_sub_u32 v7, 4, v7
    v_lshl_add_u32 v6, v7, 11, v6
    """)
    prologue_wait(k)
    for s in range(16):
        k(f"buffer_load_dwordx4 v[{8+4*s}:{11+4*s}], v2, s[24:27], s41 offen")
        k(f"s_add_u32 s41, s41, 7168")
    for s in range(16):
        k(f"buffer_load_dwordx4 v[{72+8*s}:{75+8*s}], v6, s[24:27], 0 offen offset:{OFF_MOD+128*s}")
        k(f"buffer_load_dwordx4 v[{76+8*s}:{79+8*s}], v6, s[24:27], 0 offen offset:{OFF_MOD+128*s+32}")
    k("s_waitcnt vmcnt(0)")
    for s in range(16):
        b = 72 + 8 * s
        for i in range(4):
            k(f"v_cvt_pk_bf16_f32 v{b+i}, v{b+2*i}, v{b+2*i+1}")
    k("s_nop 1")
    for s in range(16):
        b = 72 + 8 * s
        c = "0" if s == 0 else "v[200:203]"
        k(f"v_mfma_f32_16x16x32_bf16 v[200:203], v[{8+4*s}:{11+4*s}], v[{b}:{b+3}], {c}")
    k(f"""
    v_lshlrev_b32 v5, 4, v4
    v_lshl_add_u32 v5, v3, 6, v5
    v_cmp_gt_u32 vcc, 2, v3
    s_lshl_b32 s40, s40, 7
    s_add_u32 s40, s40, {OFF_UT}
    s_nop 7
    s_and_saveexec_b64 s[44:45], vcc
    buffer_store_dwordx4 v[200:203], v5, s[24:27], s40 offen
    """)
    epilogue(k)
    return k, (256 + NUT, 256, 49152)


def k4():
    k = Kern("k4_ffn1_kernel", nvgpr=200, nagpr=128)
    prologue(k, 256)
    ACC = 8
    WF = 64
    UT = 120
    ST = 176
    k(f"""
    s_and_b32 s40, s2, 7
    s_lshr_b32 s41, s2, 3
    s_lshr_b32 s42, s40, 1
    s_lshl_b32 s42, s42, 2
    s_and_b32 s43, s41, 3
    s_add_u32 s42, s42, s43
    s_and_b32 s43, s40, 1
    s_lshl_b32 s43, s43, 3
    s_lshr_b32 s44, s41, 2
    s_add_u32 s43, s43, s44
    v_lshlrev_b32 v2, 4, v1
    s_lshl_b32 s44, s42, 2
    s_add_u32 s44, s44, s3
    s_lshl_b32 s45, s44, 15
    s_add_u32 s45, s45, {OFF_X2S}
    s_add_u32 s46, s45, 16384
    s_mul_i32 s47, s43, {112*1024}
    s_lshl_b32 s48, s3, 10
    s_add_u32 s47, s47, s48
    s_add_u32 s47, s47, {OFF_W1}
    v_and_b32 v3, 15, v1
    v_lshrrev_b32 v4, 4, v1
    v_lshlrev_b32 v5, 7, v3
    v_lshl_add_u32 v5, v4, 5, v5
    s_lshl_b32 s49, s44, 12
    s_add_u32 s49, s49, {OFF_ST2}
    v_lshlrev_b32 v6, 4, v4          ; g*16
    s_mul_i32 s50, s43, {7*128}
    s_add_u32 s50, s50, {OFF_UT}
    """)
    prologue_wait(k)
    for j in range(2):
        k(f"buffer_load_dwordx4 v[{ST+8*j}:{ST+8*j+3}], v5, s[24:27], s49 offen offset:{2048*j}")
        k(f"buffer_load_dwordx4 v[{ST+8*j+4}:{ST+8*j+7}], v5, s[24:27], s49 offen offset:{2048*j+16}")
    for i in range(7):
        k(f"buffer_load_dwordx4 v[{UT+8*i}:{UT+8*i+3}], v6, s[24:27], s50 offen offset:{128*i}")
        k(f"buffer_load_dwordx4 v[{UT+8*i+4}:{UT+8*i+7}], v6, s[24:27], s50 offen offset:{128*i+64}")
    def group(gi):
        for i in range(7):
            idx = gi * 7 + i
            k(f"s_add_u32 m0, s48, {idx*4096}")
            if idx:
                k("s_add_u32 s47, s47, 4096")
            else:
                k("s_nop 0")
            k("buffer_load_dwordx4 v2, s[24:27], s47 offen lds")
        if gi:
            k("s_add_u32 s45, s45, 4096")
            k("s_add_u32 s46, s46, 4096")
        for s in range(4):
            ks = gi * 4 + s
            k(f"buffer_load_dwordx4 a[{8*ks}:{8*ks+3}], v2, s[24:27], s45 offen offset:{s*1024}")
            k(f"buffer_load_dwordx4 a[{8*ks+4}:{8*ks+7}], v2, s[24:27], s46 offen offset:{s*1024}")
    for gi in range(3):
        group(gi)
    stamp(k, 1)
    k("s_waitcnt vmcnt(59)")
    stamp(k, 2)
    for j in range(2):
        b = ST + 8 * j
        k(f"v_add_f32 v{b}, v{b}, v{b+2}")
        k(f"v_add_f32 v{b+1}, v{b+1}, v{b+3}")
        k(f"v_add_f32 v{b+4}, v{b+4}, v{b+6}")
        k(f"v_add_f32 v{b+5}, v{b+5}, v{b+7}")
        k(f"v_add_f32 v{b}, v{b}, v{b+4}")
        k(f"v_add_f32 v{b+1}, v{b+1}, v{b+5}")
    regs = [ST, ST + 1, ST + 8, ST + 9]
    tmp = [ST + 2, ST + 3, ST + 10, ST + 11]
    for op in ("v_permlane16_swap_b32", "v_permlane32_swap_b32"):
        for r, t in zip(regs, tmp):
            k(f"v_mov_b32 v{t}, v{r}")
        k("s_nop 1")
        for r, t in zip(regs, tmp):
            k(f"{op} v{t}, v{r}")
        for r, t in zip(regs, tmp):
            k(f"v_add_f32 v{r}, v{t}, v{r}")
    for j in range(2):
        b = ST + 8 * j
        ln_stats_finish(k, b, b + 1, b + 4, b + 5, None, std_out=b + 6)
    group(3)
    k(f"""
    s_cmp_lg_u32 s43, 0
    s_cbranch_scc1 L_k4_nor
    v_lshlrev_b32 v7, 2, v3
    s_lshl_b32 s51, s44, 7
    s_add_u32 s51, s51, {OFF_R2}
    buffer_store_dword v{ST+5}, v7, s[24:27], s51 offen
    buffer_store_dword v{ST+13}, v7, s[24:27], s51 offen offset:64
    s_waitcnt vmcnt(0)
    """)
    k.label("L_k4_nor")
    k("s_waitcnt vmcnt(60)")
    for j in range(2):
        b = ST + 8 * j
        for i in range(7):
            for r in range(4):
                a = ACC + 4 * (j * 7 + i) + r
                k(f"v_mul_f32 v{a}, v{UT+8*i+4+r}, v{b+6}")
        for i in range(7):
            for r in range(4):
                a = ACC + 4 * (j * 7 + i) + r
                k(f"v_fma_f32 v{a}, -v{b+4}, v{UT+8*i+r}, v{a}")
    def wread(s):
        f = WF + 28 * (s & 1)
        for i in range(7):
            off = (s * 7 + i) * 1024
            base = "v2" if off < 65536 else "v7"
            k(f"ds_read_b128 v[{f+4*i}:{f+4*i+3}], {base} offset:{off & 0xffff}")
    k("v_add_u32 v7, 0x10000, v2")
    stamp(k, 3)
    for gi in range(4):
        k(f"s_waitcnt vmcnt({15*(3-gi)})")
        k("s_barrier")
        stamp(k, 4 + gi)
        for s4 in range(4):
            s = gi * 4 + s4
            if s4 == 0:
                wread(s)
            if s4 < 3:
                wread(s + 1)
                k("s_waitcnt lgkmcnt(7)")
            else:
                k("s_waitcnt lgkmcnt(0)")
            f = WF + 28 * (s & 1)
            for i in range(7):
                for j in range(2):
                    a = ACC + 4 * (j * 7 + i)
                    k(f"v_mfma_f32_16x16x32_bf16 v[{a}:{a+3}], v[{f+4*i}:{f+4*i+3}], a[{8*s+4*j}:{8*s+4*j+3}], v[{a}:{a+3}]")
    stamp(k, 8)
    k(f"""
    v_and_b32 v5, 1, v4
    v_lshrrev_b32 v6, 1, v4
    v_lshlrev_b32 v7, 4, v3
    v_lshl_add_u32 v7, v6, 9, v7
    v_lshl_add_u32 v7, v5, 3, v7
    s_mul_i32 s45, s44, {112*1024}
    s_mul_i32 s46, s43, {7*1024}
    s_add_u32 s45, s45, s46
    s_add_u32 s45, s45, {OFF_H}
    s_add_u32 s46, s45, 4096
    """)
    for i in range(7):
        for j in range(2):
            a = ACC + 4 * (j * 7 + i)
            t = WF + 2 * (i * 2 + j)
            k(f"v_cvt_pk_bf16_f32 v{t}, v{a}, v{a+1}")
            k(f"v_cvt_pk_bf16_f32 v{t+1}, v{a+2}, v{a+3}")
            k(f"v_pk_max_i16 v{t}, v{t}, 0")
            k(f"v_pk_max_i16 v{t+1}, v{t+1}, 0")
            sr = 45 if i < 4 else 46
            k(f"buffer_store_dwordx2 v[{t}:{t+1}], v7, s[24:27], s{sr} offen offset:{(i%4)*1024+j*256}")
    epilogue(k)
    return k, (256, 256, 112 * 1024)


def k5():
    k = Kern("k5_ffn2_kernel", nvgpr=256, nagpr=64)
    prologue(k, 256)
    DEPTH = 13
    RB = 8
    G, X2, R = 216, 232, 240
    map_4x8(k)
    n, load = splitk_gemm(k, 112, OFF_W2, OFF_H, DEPTH, RB, None)
    prologue_wait(k)
    srd(k, 28, P_OUT, 2048 * 1024)
    k(f"""
    v_lshrrev_b32 v4, 5, v1
    v_and_b32 v5, 31, v1
    v_lshlrev_b32 v6, 4, v4
    s_lshl_b32 s56, s47, 7
    s_add_u32 s57, s56, {OFF_MOD + 5*2048}
    v_lshrrev_b32 v3, 4, v5
    v_lshlrev_b32 v3, 14, v3
    v_and_b32 v7, 15, v5
    v_lshl_add_u32 v3, v7, 4, v3
    v_lshl_add_u32 v3, v4, 8, v3
    s_lshl_b32 s58, s49, 15
    s_lshl_b32 s59, s47, 10
    s_add_u32 s58, s58, s59
    s_add_u32 s58, s58, {OFF_X2}
    v_lshlrev_b32 v7, 2, v5
    s_lshl_b32 s59, s49, 7
    s_add_u32 s59, s59, {OFF_R2}
    """)
    for j in range(4):
        k(f"buffer_load_dwordx4 v[{G+4*j}:{G+4*j+3}], v6, s[24:27], s57 offen offset:{32*j}")
    k(f"buffer_load_dwordx4 v[{X2}:{X2+3}], v3, s[24:27], s58 offen")
    k(f"buffer_load_dwordx4 v[{X2+4}:{X2+7}], v3, s[24:27], s58 offen offset:512")
    k(f"buffer_load_dword v{R}, v7, s[24:27], s59 offen")
    for s in range(DEPTH):
        load(s)
    stamp(k, 1)
    issued = DEPTH
    for s in range(n):
        k(f"s_waitcnt vmcnt({(issued-1-s)*4})")
        r = RB + 16 * (s % DEPTH)
        A0, B0, A1, B1 = (f"v[{r+4*i}:{r+4*i+3}]" for i in range(4))
        for t, (a, b) in enumerate(((A0, B0), (A0, B1), (A1, B0), (A1, B1))):
            c = "0" if s == 0 else f"a[{16*t}:{16*t+15}]"
            k(f"v_mfma_f32_32x32x16_bf16 a[{16*t}:{16*t+15}], {a}, {b}, {c}")
        if issued < n:
            load(issued); issued += 1
    stamp(k, 2)
    k("s_nop 7")
    for t in (1, 2, 3):
        k(f"""
        s_xor_b32 s56, s3, {t}
        s_mul_i32 s56, s56, 12288
        s_add_u32 s56, s56, {(t-1)*4096}
        v_add_u32 v3, s56, v2
        """)
        for q in range(4):
            k(f"ds_write_b128 v3, a[{16*t+4*q}:{16*t+4*q+3}] offset:{q*1024}")
    ACC, TMP = 8, 24
    for i in range(16):
        k(f"v_accvgpr_read_b32 v{ACC+i}, a{i}")
    for i in range(16):
        k(f"v_mul_f32 v{G+i}, v{R}, v{G+i}")
    k(f"""
    s_mul_i32 s56, s3, 12288
    v_add_u32 v3, s56, v2
    s_waitcnt lgkmcnt(0)
    s_barrier
    """)
    for i in range(12):
        k(f"ds_read_b128 v[{TMP+4*i}:{TMP+4*i+3}], v3 offset:{i*1024}")
    XU = 80
    stamp(k, 3)
    for i in range(8):
        k(f"v_lshlrev_b32 v{XU+2*i}, 16, v{X2+i}")
        k(f"v_and_b32 v{XU+2*i+1}, 0xffff0000, v{X2+i}")
    for sl in range(3):
        k(f"s_waitcnt lgkmcnt({8-4*sl})")
        for i in range(16):
            k(f"v_add_f32 v{ACC+i}, v{ACC+i}, v{TMP+16*sl+i}")
    for i in range(16):
        k(f"v_fma_f32 v{ACC+i}, v{G+i}, v{ACC+i}, v{XU+i}")
    for i in range(8):
        k(f"v_cvt_pk_bf16_f32 v{TMP+i}, v{ACC+2*i}, v{ACC+2*i+1}")
    k(f"""
    v_lshlrev_b32 v7, 10, v5
    v_lshl_add_u32 v7, v4, 3, v7
    s_lshl_b32 s59, s49, 15
    s_lshl_b32 s56, s47, 6
    s_add_u32 s59, s59, s56
    """)
    for j in range(4):
        k(f"buffer_store_dwordx2 v[{TMP+2*j}:{TMP+2*j+1}], v7, s[28:31], s59 offen offset:{16*j}")
    epilogue(k)
    return k, (256, 256, 49152)


def build(path=OUT):
    ks = [k0(), k1(), k2b(), k3(), k4(), k5()]
    errs = []
    for k, _ in ks:
        errs += k.check()
    for e in errs:
        print(e)
    ref = open(OUT + ".ref").read().split("\n")
    hdr = [l for l in ref if l.startswith(";") and "@launch" not in l and "Override" not in l and "grid=ceil" not in l]
    out = "\n".join(hdr) + "\n"
    for k, (g, b, lds) in ks:
        out += f"; @launch kernel={k.name} grid=({g},1,1) block=({b},1,1) lds={lds}\n"
    out += '.amdgcn_target "amdgcn-amd-amdhsa--gfx950"\n'
    codes, kds = zip(*[k.text() for k, _ in ks])
    out += "".join(codes)
    out += '.section .rodata,"a"\n' + "".join(kds)
    open(path, "w").write(out)
    print("wrote", path, len(out), "bytes;", len(errs), "checker errors")
    return len(errs)


if __name__ == "__main__":
    sys.exit(1 if build(sys.argv[1] if len(sys.argv) > 1 else OUT) else 0)
```

```python
import sys, os
sys.path.insert(0, "gen")
from asmlib import Kern
import gen as G
from gen import (MB, OFF_MOD, OFF_XHAT, OFF_WQKV, OFF_Q, OFF_KV, OFF_O, OFF_WO, OFF_X2, OFF_X2S, OFF_ST2, OFF_W1,
                 OFF_H, OFF_W2, QSCALE, P_X, P_WQKV, P_WO, P_W1, P_W2, P_C, P_WMOD, P_OUT, P_WS, srd, stamp, endpgm,
                 prologue, prologue_wait, epilogue, bf16_round, ln_stats_finish, role_ln, role_relayout, ATT, att_unit,
                 att_max16, NAME, OUT, DIAG)

OFF_MODB = 0x3000
OFF_FLAG = G.OFF_FLAG
FL = "sc1"
DF = "@DF@"
S_FAST = 93
OFF_XID = G.OFF_XID
OOL = []


def dual_begin(k):
    k._dual = len(k.lines)


def dual_end(k, tag):
    body = k.lines[k._dual:]
    del k.lines[k._dual:]
    import re
    labs = [l[:-1] for l in body if l.endswith(":")]
    def variant(fl, suffix):
        out = []
        for l in body:
            l = l.replace(DF, fl).rstrip()
            for lab in labs:
                l = re.sub(rf"\b{lab}\b", lab + suffix, l)
            out.append(l)
        return out
    if tag not in os.environ.get("FAST", "none").split(","):
        k.lines += variant("sc1", "_s")
        return
    k(f"s_cmp_eq_u32 s{S_FAST}, 0")
    k(f"s_cbranch_scc1 L_slow_{tag}")
    k.lines += variant("", "_f")
    k.label(f"L_join_{tag}")
    OOL.append([f"L_slow_{tag}:"] + variant("sc1", "_s") + [f"s_branch L_join_{tag}"])


_stamp = stamp
def stamp(k, i):
    if os.environ.get("P1ST") and i > 8:
        return
    _stamp(k, i)
def stamp1(k, i):
    if os.environ.get("P1ST"):
        _stamp(k, i)


class VM:
    def __init__(self, k):
        self.k = k; self.n = 0
    def op(self, text=None):
        if text:
            self.k(text)
        self.n += 1
        return self.n
    def tick(self):
        self.n += 1
        return self.n
    def wait_str(self, idx):
        c = self.n - idx
        return f"s_waitcnt vmcnt({min(c, 63)})"
    def wait(self, idx):
        self.k(self.wait_str(idx))


def signal(k, edge, s_group, s_member, gsize, nafter=0, fl=FL, fast=False):
    lab = f"L_sig{edge}"
    k(f"""
    s_mul_i32 s38, s{s_group}, {gsize}
    s_add_u32 s38, s38, s{s_member}
    s_lshl_b32 s38, s38, 8
    s_add_u32 s38, s38, {OFF_FLAG + edge * 65536}
    v_mov_b32 v6, 0
    v_mov_b32 v7, s98
    s_cmp_lg_u32 s3, 0
    s_waitcnt vmcnt({nafter}) lgkmcnt(0)
    s_barrier
    s_cbranch_scc1 {lab}
    s_mov_b64 exec, 1
    """)
    if fast and int(os.environ.get("FFLAG", "1")):
        k(f"""
        s_cmp_eq_u32 s{S_FAST}, 0
        s_cbranch_scc1 {lab}_slow
        buffer_store_dword v7, v6, s[24:27], s38 offen
        s_branch {lab}_done
        {lab}_slow:
        buffer_store_dword v7, v6, s[24:27], s38 offen sc1
        {lab}_done:
        """)
    else:
        k("buffer_store_dword v7, v6, s[24:27], s38 offen sc1")
    k("s_mov_b64 exec, -1")
    k.label(lab)


def flag_store(lab, soff, imm):
    return ["s_cmp_lg_u32 s3, 0", f"s_cbranch_scc1 {lab}", "s_mov_b64 exec, 1", f"s_cmp_eq_u32 s{S_FAST}, 0", f"s_cbranch_scc1 {lab}_slow",
            f"buffer_store_dword v159, v158, s[24:27], s{soff} offen offset:{imm}", f"s_branch {lab}_done", f"{lab}_slow:",
            f"buffer_store_dword v159, v158, s[24:27], s{soff} offen offset:{imm} sc1", f"{lab}_done:", "s_mov_b64 exec, -1", f"{lab}:"]


def wait_edge(k, edge, s_group, gsize):
    lab = f"L_wait{edge}"
    k(f"""
    s_cmp_lg_u32 s3, 0
    s_cbranch_scc1 {lab}
    s_mul_i32 s38, s{s_group}, {gsize*256}
    s_add_u32 s38, s38, {OFF_FLAG + edge * 65536}
    v_lshlrev_b32 v6, 8, v1
    s_mov_b32 exec_lo, {hex((1 << gsize) - 1)}
    s_mov_b32 exec_hi, 0
    s_mov_b32 s39, 0x40000
    """)
    k.label(f"L_poll{edge}")
    k(f"""
    buffer_load_dword v7, v6, s[24:27], s38 offen {FL}
    s_sub_u32 s39, s39, 1
    s_cbranch_scc1 L_bail{edge}
    s_waitcnt vmcnt(0)
    v_cmp_ne_u32 vcc, s98, v7
    s_cbranch_vccnz L_poll{edge}
    """)
    k.label(f"L_bail{edge}")
    k("s_waitcnt vmcnt(0)")
    k("s_mov_b64 exec, -1")
    k.label(lab)
    k("s_barrier")


def wbl2(k, tag):
    if tag in os.environ.get("WBL2", "").split(","):
        k(f"""
        s_lshl_b32 s38, s37, 2
        s_add_u32 s38, s38, s3
        s_cmp_lg_u32 s38, 1
        s_cbranch_scc1 L_nowb_{tag}
        buffer_wbl2 sc1
        """)
        k.label(f"L_nowb_{tag}")


def wo_reg(s):
    return f"a[{224+4*s}:{227+4*s}]" if s < 8 else f"v[{160+4*(s-8)}:{163+4*(s-8)}]"


def w1_lds(f):
    if f < 28:
        return LDS_W1A + f * 1024
    if f < 112:
        return (f - 28) * 1024
    return LDS_UT + (f - 112) * 1024


TS = 2080
LDS_W1A = 130 * 1024
LDS_MODB = 84 * 1024
LDS_VEC = 86 * 1024
LDS_OST = 88 * 1024
LDS_UT = 120 * 1024
LDS_R = 128 * 1024


def lds_rd(dst, addr):
    base = (2, 4, 5)[addr >> 16]
    return f"ds_read_b128 {dst}, v{base} offset:{addr & 0xffff}"


class L(list):
    def __call__(self, text):
        for l in text.strip("\n").split("\n"):
            if l.strip():
                self.append(l.strip())


def weave(k, main, side, every):
    n = 0
    for x in main:
        k(x)
        n += 1
        if side and n % every == 0:
            for y in side.pop(0)():
                k(y)


SLOT = (64 * 1024, 112 * 1024, 64 * 1024, 112 * 1024)
LDS_RL = 112 * 1024
LDS_MODS = 128 * 1024
LDS_MRED = 48 * 1024
LDS_SHARE = 52 * 1024
LDS_MRED2 = 159 * 1024
OFF_MODP = 0x8000


def mega():
    k = Kern(NAME + "_kernel", nvgpr=256, nagpr=256, nsgpr=102)
    k.kid = 1
    vm = VM(k)
    if DIAG:
        k("s_memtime s[60:61]")
        k("s_memrealtime s[62:63]")
        for i in range(G.NST):
            k(f"s_mov_b32 s{64+i}, 0")
    k(f"""
    s_cmp_ge_u32 s2, 256
    s_cbranch_scc1 L_end_{k.name}
    s_load_dwordx16 s[4:19], s[0:1], 0
    s_load_dwordx4 s[20:23], s[0:1], 64
    s_load_dwordx2 s[24:25], s[0:1], 80
    v_lshrrev_b32 v2, 6, v0
    v_and_b32 v1, 63, v0
    v_readfirstlane_b32 s3, v2
    s_and_b32 s36, s2, 7
    s_lshr_b32 s37, s2, 3
    v_lshlrev_b32 v2, 4, v1
    s_getpc_b64 s[38:39]
    L_pc_here:
    s_lshl_b32 s98, s37, 2
    s_add_u32 s98, s98, s3
    s_and_b32 s98, s98, 63
    s_lshl_b32 s98, s98, 10
    s_add_u32 s38, s38, s98
    s_addc_u32 s39, s39, 0
    global_load_dwordx4 a[208:211], v2, s[38:39]
    s_memrealtime s[40:41]
    """)
    VA, VB, RAW, XF, FR, ACC = 8, 16, 24, 88, 216, 24
    WM, CC, MA = 8, 12, 16
    k(f"""
    v_lshrrev_b32 v3, 1, v1
    v_lshlrev_b32 v4, 1, v3              ; c voffset: (l>>1)*2
    v_mul_u32_u24 v3, 6144, v3
    v_and_b32 v5, 1, v1
    v_lshl_add_u32 v3, v5, 4, v3
    v_lshrrev_b32 v6, 3, v1              ; r8
    v_and_b32 v7, 7, v1
    v_and_b32 v248, 2, v6
    v_xor_b32 v7, v7, v248
    s_and_b32 s38, s3, 1
    s_lshl_b32 s38, s38, 2
    v_xor_b32 v7, s38, v7
    v_mul_u32_u24 v5, 3072, v6
    v_lshl_add_u32 v5, v7, 4, v5
    s_and_b32 s93, s37, 7
    s_lshl_b32 s93, s93, 1               ; rotW
    s_lshr_b32 s99, s37, 4
    s_lshl_b32 s99, s99, 3
    s_add_u32 s99, s99, s36
    s_lshl_b32 s99, s99, 2
    s_and_b32 s38, s37, 3
    s_add_u32 s99, s99, s38
    s_bfe_u32 s92, s37, 0x20002          ; k split
    s_lshl_b32 s100, s92, 2
    s_add_u32 s100, s100, s3
    s_lshl_b32 s101, s100, 6             ; c soffset
    s_mul_i32 s100, s100, {32*6144}
    s_lshl_b32 s38, s99, 5
    s_add_u32 s100, s100, s38
    s_lshl_b32 s39, s2, 2
    s_add_u32 s39, s39, s3
    v_lshlrev_b32 v248, 6, v1
    s_waitcnt lgkmcnt(0)
    s_mov_b32 s26, {G.WS_USED:#x}
    s_mov_b32 s27, 0x00020000
    """)
    srd(k, 48, 22, 256)
    k(f"""
    s_cmp_lg_u32 s39, 3
    s_cbranch_scc1 L_nozw
    s_mul_i32 s41, s41, 0x9e3779b1
    s_xor_b32 s40, s40, s41
    s_or_b32 s40, s40, 1
    v_mov_b32 v249, s40
    s_mov_b64 exec, 15
    buffer_store_dword v249, v248, s[48:51], 0 offen {FL}
    s_mov_b64 exec, -1
    L_nozw:
    """)
    srd(k, 44, P_WMOD, 512 * 3072 * 2)
    srd(k, 56, P_C, 1024)
    srd(k, 28, P_X, 2048 * 1024)
    stamp(k, 0)
    vm.op(f"buffer_load_ushort v{CC}, v4, s[56:59], s101 offen")
    wmid = vm.op(f"buffer_load_dwordx4 v[{WM}:{WM+3}], v3, s[44:47], s100 offen")
    srd(k, 32, 20, 2048 * 1024)
    k(f"""
    s_lshr_b32 s20, s36, 1
    s_lshl_b32 s20, s20, 3
    s_and_b32 s38, s37, 7
    s_add_u32 s20, s20, s38        ; tb1
    s_and_b32 s21, s36, 1
    s_lshl_b32 s21, s21, 2
    s_lshr_b32 s101, s37, 3        ; rotX
    s_add_u32 s21, s21, s101       ; cb1
    s_lshl_b32 s22, s21, 2
    s_add_u32 s22, s22, s3         ; head
    s_lshl_b32 s38, s20, 16
    s_lshl_b32 s23, s3, 14
    s_add_u32 s38, s38, s23
    """)
    rowid = {}
    def xrow(r):
        def f():
            out = []
            if r % 4 == 0:
                out = [f"s_xor_b32 s17, s101, {r//4}", "s_lshl_b32 s17, s17, 12", "s_add_u32 s17, s17, s16"]
            out.append(f"buffer_load_dwordx4 v[{RAW+4*r}:{RAW+4*r+3}], v2, s[28:31], s17 offen offset:{(r%4)*1024}")
            rowid[r] = vm.tick()
            return out
        return f
    k("s_mov_b32 s16, s38")
    NX0 = int(os.environ.get("NX0", "8"))
    for r in range(NX0):
        for y in xrow(r)():
            k(y)
    srd(k, 40, P_WQKV, 512 * 1536 * 2)
    k(f"""
    s_cmp_lt_u32 s2, 32
    s_cselect_b32 s52, s{P_WO}, s{P_W1}
    s_cselect_b32 s53, s{P_WO+1}, s{P_W1+1}
    s_mov_b32 s54, {512*1792*2:#x}
    s_cselect_b32 s54, {512*512*2:#x}, s54
    s_cmp_ge_u32 s2, 144
    s_cselect_b32 s52, s{P_W2}, s52
    s_cselect_b32 s53, s{P_W2+1}, s53
    s_mov_b32 s55, 0x00020000
    s_lshl_b32 s23, s21, 7
    s_mul_i32 s38, s3, {8*3072}
    s_add_u32 s23, s23, s38
    s_mul_i32 s100, s3, 3072
    """)
    RS_SCALAR = """
    s_cmp_lt_u32 s2, 32
    s_cselect_b32 s4, 0, 32
    s_cselect_b32 s5, 0, 1
    s_cmp_ge_u32 s2, 144
    s_cselect_b32 s4, 144, s4
    s_cselect_b32 s5, 2, s5
    s_sub_u32 s4, s2, s4
    s_lshr_b32 s6, s4, 3
    s_and_b32 s7, s4, 7
    s_mul_i32 s9, s4, 2341
    s_lshr_b32 s9, s9, 16
    s_mul_i32 s10, s9, 28
    s_sub_u32 s10, s4, s10
    s_mov_b32 s8, 1024
    s_cmp_eq_u32 s5, 1
    s_cselect_b32 s6, s9, s6
    s_cselect_b32 s7, s10, s7
    s_cselect_b32 s8, 3584, s8
    s_lshl_b32 s9, s6, 2
    s_add_u32 s9, s9, s3
    """
    k(RS_SCALAR)
    k(f"""
    s_lshl_b32 s12, s8, 5
    s_mul_i32 s12, s12, s9
    s_lshl_b32 s11, s7, 7
    s_add_u32 s12, s12, s11
    s_lshl_b32 s1, s8, 3
    v_lshrrev_b32 v248, 3, v1
    v_mul_lo_u32 v248, v248, s8
    v_and_b32 v249, 7, v1
    v_lshl_add_u32 v248, v249, 4, v248
    v_add_u32 v248, s12, v248
    v_accvgpr_write_b32 a212, v248
    s_lshl_b32 s0, s3, 16
    s_lshl_b32 s4, s2, 8
    s_add_u32 s0, s0, s4
    s_add_u32 s0, s0, {OFF_FLAG}
    """)
    stamp(k, 1)
    wd = {}
    def wdma(s):
        base = SLOT[s // 4] + (s % 4) * 12288
        def f(p):
            out = []
            if p == 0:
                out = [f"s_xor_b32 s39, s93, {s}", f"s_mul_i32 s39, s39, {32*3072}", f"s_add_u32 m0, s100, {base}", "s_add_u32 s39, s39, s23"]
            out.append(f"buffer_load_dwordx4 v5, s[40:43], s39 offen offset:{p*1024} lds")
            wd[s] = vm.tick()
            return out
        return [(lambda p=p: f(p)) for p in range(3)]
    NWA = int(os.environ.get("NWA", "6"))
    wq = [xrow(r) for r in range(NX0, 16)] + [g for s in range(NWA) for g in wdma(s)]
    def mod_reduce(mj, MA_, t0, t1, lds_off, lds_base=0):
        mj("s_nop 0")
        for i in range(4):
            mj(f"v_permlane32_swap_b32 v{MA_+i}, v{MA_+4+i}")
        for i in range(0, 4, 2):
            mj(f"v_pk_add_f32 v[{MA_+i}:{MA_+i+1}], v[{MA_+i}:{MA_+i+1}], v[{MA_+4+i}:{MA_+5+i}]")
        mj(f"v_lshrrev_b32 v{t0}, 4, v1")
        mj(f"v_and_b32 v{t1}, 1, v1")
        for i in range(2):
            mj(f"v_permlane16_swap_b32 v{MA_+i}, v{MA_+2+i}")
        mj(f"v_pk_add_f32 v[{MA_}:{MA_+1}], v[{MA_}:{MA_+1}], v[{MA_+2}:{MA_+3}]")
        mj(f"v_lshlrev_b32 v{t0}, 3, v{t0}")
        mj(f"v_lshl_add_u32 v{t0}, v{t1}, 5, v{t0}")
        for n_, ror in enumerate((8, 4, 2)):
            for i in range(2):
                mj(f"v_add_f32_dpp v{MA_+i}, v{MA_+i}, v{MA_+i} row_ror:{ror} row_mask:0xf bank_mask:0xf")
            mj("s_lshl_b32 s38, s3, 6" if n_ == 0 else (f"v_add_u32 v{t0}, s38, v{t0}" if n_ == 1 else f"v_add_u32 v{t0}, {lds_base}, v{t0}"))
        mj(f"ds_write_b64 v{t0}, v[{MA_}:{MA_+1}] offset:{lds_off}")
    def silu(mj, regs, tmp):
        for r, t in zip(regs, tmp):
            mj(f"v_mul_f32 v{t}, 0xbfb8aa3b, v{r}")
        for t in tmp:
            mj(f"v_exp_f32 v{t}, v{t}")
        mj("s_nop 0")
        for t in tmp:
            mj(f"v_add_f32 v{t}, 1.0, v{t}")
        for t in tmp:
            mj(f"v_rcp_f32 v{t}, v{t}")
        mj("s_nop 0")
        for r, t in zip(regs, tmp):
            mj(f"v_mul_f32 v{r}, v{r}, v{t}")
        for r in regs:
            bf16_round(mj, r, r)
    mj = L()
    vm.wait(wmid)
    stamp1(k, 13)
    mj(f"v_lshlrev_b32 v{CC}, 16, v{CC}")
    silu(mj, [CC], [CC + 1])
    for i in range(4):
        mj(f"v_lshlrev_b32 v{MA+2*i}, 16, v{WM+i}")
        mj(f"v_and_b32 v{MA+2*i+1}, 0xffff0000, v{WM+i}")
    for i in range(4):
        mj(f"v_pk_mul_f32 v[{MA+2*i}:{MA+2*i+1}], v[{MA+2*i}:{MA+2*i+1}], v[{CC}:{CC+1}] op_sel_hi:[1,0]")
    mod_reduce(mj, MA, CC, CC + 1, LDS_MRED)
    weave(k, mj, wq, int(os.environ.get("WV0", "10")))
    stamp(k, 2)
    SU, SQ = 216, 232
    WV = int(os.environ.get("WV1", "12"))
    PUBROW = int(os.environ.get("PUBROW", "3"))
    for r in range(16):
        ln = L()
        while r not in rowid:
            for y in wq.pop(0)():
                k(y)
        vm.wait(rowid[r])
        b, t = RAW + 4 * r, XF + 8 * r
        for i in range(4):
            ln(f"v_lshlrev_b32 v{t+2*i}, 16, v{b+i}")
            ln(f"v_and_b32 v{t+2*i+1}, 0xffff0000, v{b+i}")
        ln(f"v_pk_add_f32 v[248:249], v[{t}:{t+1}], v[{t+2}:{t+3}]")
        ln(f"v_pk_mul_f32 v[250:251], v[{t}:{t+1}], v[{t}:{t+1}]")
        ln(f"v_pk_add_f32 v[252:253], v[{t+4}:{t+5}], v[{t+6}:{t+7}]")
        for i in range(1, 4):
            ln(f"v_pk_fma_f32 v[250:251], v[{t+2*i}:{t+2*i+1}], v[{t+2*i}:{t+2*i+1}], v[250:251]")
        ln("v_pk_add_f32 v[248:249], v[248:249], v[252:253]")
        ln(f"v_add_f32 v{SQ+r}, v250, v251")
        ln(f"v_add_f32 v{SU+r}, v248, v249")
        weave(k, ln, wq, WV)
        if r in (0, 4, 8, 12):
            stamp1(k, 14 + r // 4)
        if r == PUBROW - 2:
            k("s_waitcnt lgkmcnt(0)")
            k("s_load_dword s98, s[48:49], 0")
        if r == PUBROW:
            k(f"""
            v_lshlrev_b32 v{CC}, 2, v1
            s_waitcnt lgkmcnt(0)
            s_barrier
            ds_read_b32 v{MA}, v{CC} offset:{LDS_MRED}
            s_cmp_eq_u32 s98, 0
            s_cbranch_scc1 L_zspin
            L_zpoll_out:
            s_cmp_lg_u32 s3, 0
            s_cbranch_scc1 L_mod_done
            s_lshl_b32 s38, s92, 13
            s_lshl_b32 s4, s99, 7
            s_add_u32 s38, s38, s4
            s_add_u32 s38, s38, {OFF_MODP}
            v_lshlrev_b32 v{CC}, 3, v1
            s_waitcnt lgkmcnt(0)
            v_mov_b32 v{MA+1}, v{MA}
            s_nop 1
            v_permlane32_swap_b32 v{MA+1}, v{MA}
            v_add_f32 v{MA}, v{MA+1}, v{MA}
            v_mov_b32 v{MA+1}, v{MA}
            s_nop 1
            v_permlane16_swap_b32 v{MA+1}, v{MA}
            v_add_f32 v{MA}, v{MA+1}, v{MA}
            v_mov_b32 v{MA+1}, s98
            s_mov_b64 exec, 0xffff
            buffer_store_dwordx2 v[{MA}:{MA+1}], v{CC}, s[24:27], s38 offen {FL}
            s_mov_b64 exec, -1
            L_mod_done:
            """)
            z = ["L_zspin:"]
            for ln_ in (64, 128, 192):
                z += [f"s_load_dword s98, s[48:49], {ln_}", "s_waitcnt lgkmcnt(0)", "s_cmp_lg_u32 s98, 0", "s_cbranch_scc1 L_zpoll_out", "s_sleep 6"]
            z += ["s_mov_b32 s4, 0x40000", f"v_mov_b32 v{CC+2}, 0",
                  "L_zspin2:", f"buffer_load_dword v{CC+1}, v{CC+2}, s[48:51], 0 offen {FL}", "s_waitcnt vmcnt(0)",
                  f"v_readfirstlane_b32 s98, v{CC+1}", "s_sub_u32 s4, s4, 1", "s_cbranch_scc1 L_zpoll_out", "s_sleep 8", "s_cmp_eq_u32 s98, 0",
                  "s_cbranch_scc1 L_zspin2", "s_branch L_zpoll_out"]
            OOL.append(z)
    k(f"""
    v_and_b32 v248, 15, v1
    v_lshrrev_b32 v249, 4, v1
    v_mul_u32_u24 v3, 3072, v249
    v_lshrrev_b32 v250, 2, v248
    v_lshl_add_u32 v3, v250, 7, v3
    v_and_b32 v250, 1, v248
    v_lshl_add_u32 v3, v250, 3, v3
    v_bfe_u32 v250, v248, 1, 1
    s_lshl_b32 s38, s3, 1
    v_add_u32 v250, s38, v250
    v_bfe_u32 v251, v248, 3, 1
    v_and_b32 v252, 1, v249
    v_lshl_add_u32 v251, v252, 1, v251
    v_lshlrev_b32 v251, 1, v251
    v_xor_b32 v250, v250, v251
    v_lshl_add_u32 v3, v250, 4, v3
    v_add_u32 v4, 0x10000, v3
    v_add_u32 v6, 0x20000, v3
    """)
    def trreads(b):
        out = []
        for s in range(4 * b, 4 * b + 4):
            for p in range(3):
                for h in range(2):
                    addr = SLOT[b] + (s % 4) * 12288 + p * 1024 + h * 512
                    ar = 12 * s + 4 * p + 2 * h
                    out.append(f"ds_read_b64_tr_b16 a[{ar}:{ar+1}], v{(3, 4, 6)[addr >> 16]} offset:{addr & 0xffff}")
        return out
    def normalize(half):
        out = L()
        for rr in range(8):
            r = 8 * half + rr
            out(f"v_readlane_b32 s{4+2*rr}, v{SQ+4+(r&3)}, {16*(r>>2)}")
            out(f"v_readlane_b32 s{5+2*rr}, v{SU+4+(r&3)}, {16*(r>>2)}")
        for rr in range(8):
            t = XF + 8 * (8 * half + rr)
            for i in range(4):
                out(f"v_pk_fma_f32 v[{t+2*i}:{t+2*i+1}], v[{t+2*i}:{t+2*i+1}], s[{4+2*rr}:{5+2*rr}], s[{4+2*rr}:{5+2*rr}] op_sel:[0,0,1] op_sel_hi:[1,0,1]")
        return out
    stamp(k, 3)
    ln = L()
    for base in (SQ, SU):
        for r in range(8):
            ln(f"v_permlane32_swap_b32 v{base+r}, v{base+8+r}")
    for base in (SQ, SU):
        for r in range(0, 8, 2):
            ln(f"v_pk_add_f32 v[{base+r}:{base+r+1}], v[{base+r}:{base+r+1}], v[{base+8+r}:{base+9+r}]")
    for base in (SQ, SU):
        for r in range(4):
            ln(f"v_permlane16_swap_b32 v{base+r}, v{base+4+r}")
    for base in (SQ, SU):
        for r in range(0, 4, 2):
            ln(f"v_pk_add_f32 v[{base+r}:{base+r+1}], v[{base+r}:{base+r+1}], v[{base+4+r}:{base+5+r}]")
    for ror in (8, 4, 2, 1):
        for base in (SQ, SU):
            for r in range(4):
                ln(f"v_add_f32_dpp v{base+r}, v{base+r}, v{base+r} row_ror:{ror} row_mask:0xf bank_mask:0xf")
    fin = [L() for _ in range(4)]
    for i in range(4):
        ln_stats_finish(fin[i], SU + i, SQ + i, SU + 4 + i, SQ + 4 + i, SQ + 8 + i)
        fin[i](f"v_mul_f32 v{SU+4+i}, -v{SU+4+i}, v{SQ+4+i}")
    for tup in zip(*fin):
        for x in tup:
            if not x.startswith("s_nop"):
                ln(x)
    weave(k, ln, wq, 10)
    for g in wq:
        for y in g():
            k(y)
    stamp(k, 4)
    MP = 24
    def modloads():
        out = ["s_lshl_b32 s38, s3, 11", f"s_add_u32 s38, s38, {OFF_MODP}"]
        for q in range(4):
            if q:
                out.append("s_add_u32 s38, s38, 8192")
            for h in range(2):
                r_ = MP + 8 * q + 4 * h
                out.append(f"buffer_load_dwordx4 v[{r_}:{r_+3}], v2, s[24:27], s38 offen offset:{1024*h} {FL}")
        return out
    def modcheck():
        out = L()
        t = [MP + 2 * i + 1 for i in range(16)]
        out(f"v_and_b32 v252, v{t[0]}, v{t[1]}")
        out(f"v_or_b32 v253, v{t[0]}, v{t[1]}")
        for i in range(2, 16, 2):
            out(f"v_bitop3_b32 v252, v252, v{t[i]}, v{t[i+1]} bitop3:0x80")
            out(f"v_or3_b32 v253, v253, v{t[i]}, v{t[i+1]}")
        out("v_xor_b32 v252, s98, v252")
        out("v_xor_b32 v253, s98, v253")
        out("v_or_b32 v252, v252, v253")
        out("v_cmp_ne_u32 vcc, 0, v252")
        return out
    for x in modloads():
        k(x)
        if x.startswith("buffer"):
            modid = vm.tick()
    if int(os.environ.get("PRET", "1")):
        k(f"""
        v_lshlrev_b32 v56, 7, v1
        s_lshl_b32 s4, s3, 12
        s_add_u32 s4, s4, {OFF_XID}
        s_sub_u32 s4, s4, s0
        v_add_u32 v56, s4, v56
        s_cmp_eq_u32 s2, 9
        s_cselect_b32 s4, 32, 0
        v_cmp_gt_u32 vcc, s4, v1
        v_and_b32 v57, 1, v1
        v_lshlrev_b32 v57, 7, v57
        v_cndmask_b32 v56, v57, v56, vcc
        """)
        vm.op("buffer_load_dword a213, v56, s[24:27], s0 offen")
        TLBS = int(os.environ.get("TLBS", "0"))
        if TLBS:
            k(f"""
            v_lshlrev_b32 v57, {TLBS}, v1
            s_cmp_eq_u32 s3, 2
            s_cselect_b32 s4, 0, 0x7f000000
            """)
            vm.op("buffer_load_dword a214, v57, s[24:27], s4 offen")
            vm.op("buffer_load_dword a215, v57, s[32:35], s4 offen")
    OOL.append(["L_mod_spin:", "s_mov_b32 s39, 0x40000", "L_mod_spin2:"]
               + modloads() + ["s_sub_u32 s39, s39, 1", "s_waitcnt vmcnt(0)"]
               + list(modcheck()) + ["s_cbranch_scc1 L_mod_ok", "s_sleep 4", "s_cbranch_vccnz L_mod_spin2", "s_branch L_mod_ok"])
    vm.wait(wd[3]); k("s_barrier")
    wq = [g for s in range(NWA, 8) for g in wdma(s)]
    mix = wq + [(lambda x=x: [x]) for x in trreads(0)]
    weave(k, normalize(0) + normalize(1), mix, 3)
    assert not mix
    k(f"""
    s_lshl_b32 s38, s93, 2
    v_xor_b32 v254, s38, v1
    v_lshlrev_b32 v254, 8, v254
    v_and_b32 v253, 7, v1
    v_lshl_add_u32 v254, v253, 4, v254
    s_lshl_b32 s38, s3, 14
    s_lshl_b32 s39, s101, 6
    v_add_u32 v254, s38, v254
    v_xor_b32 v254, s39, v254
    s_lshl_b32 s38, s3, 10
    v_lshlrev_b32 v7, 3, v1
    v_add_u32 v7, s38, v7
    v_lshlrev_b32 v255, 5, v1
    s_cmp_ge_u32 s3, 2
    s_cselect_b32 s5, 1.0, 0
    """)
    vm.wait(modid)
    for x in modcheck(): k(x)
    k("s_nop 0")
    k("s_cbranch_vccnz L_mod_spin")
    k.label("L_mod_ok")
    for i in range(4):
        k(f"v_add_f32 v{8+i}, v{MP+2*i}, v{MP+8+2*i}")
        k(f"v_add_f32 v{12+i}, v{MP+16+2*i}, v{MP+24+2*i}")
    k("v_pk_add_f32 v[8:9], v[8:9], v[12:13]")
    k("v_pk_add_f32 v[10:11], v[10:11], v[14:15]")
    for rep in range(2):
        k("v_cvt_pk_bf16_f32 v12, v8, v9")
        k("v_cvt_pk_bf16_f32 v13, v10, v11")
        for i in range(2):
            k(f"v_lshlrev_b32 v{8+2*i}, 16, v{12+i}")
            k(f"v_and_b32 v{9+2*i}, 0xffff0000, v{12+i}")
        if rep == 0:
            for i in range(4):
                k(f"v_add_f32 v{8+i}, s5, v{8+i}")
    k(f"""
    ds_write_b64 v7, v[8:9] offset:{LDS_SHARE}
    ds_write_b64 v7, v[10:11] offset:{LDS_SHARE+512}
    s_waitcnt lgkmcnt(0)
    s_barrier
    ds_read_b128 v[{VB}:{VB+3}], v255 offset:{LDS_SHARE}
    ds_read_b128 v[{VB+4}:{VB+7}], v255 offset:{LDS_SHARE+16}
    ds_read_b128 v[{VA}:{VA+3}], v255 offset:{LDS_SHARE+2048}
    ds_read_b128 v[{VA+4}:{VA+7}], v255 offset:{LDS_SHARE+2064}
    """)
    wq = [g for s in range(8, 12) for g in wdma(s)]
    for g in wq[:2]:
        for y in g():
            k(y)
    wq = wq[2:]
    k("s_waitcnt lgkmcnt(0)")
    stamp(k, 5)
    md = L()
    def mrow(r):
        t = XF + 8 * r
        for i in range(4):
            md(f"v_pk_fma_f32 v[{t+2*i}:{t+2*i+1}], v[{t+2*i}:{t+2*i+1}], v[{VA+2*i}:{VA+2*i+1}], v[{VB+2*i}:{VB+2*i+1}]")
        for i in range(4):
            md(f"v_cvt_pk_bf16_f32 v{t+i}, v{t+2*i}, v{t+2*i+1}")
        md(f"v_xor_b32 v{t+4}, {r<<4}, v254")
    def mwr(r):
        t = XF + 8 * r
        md(f"ds_write_b128 v{t+4}, v[{t}:{t+3}]")
    mrow(0)
    md("s_barrier")
    for r in range(1, 16):
        mwr(r - 1)
        mrow(r)
    mwr(15)
    weave(k, md, wq, 12)
    assert not wq
    k(f"""
    v_and_b32 v8, 15, v1
    v_lshrrev_b32 v9, 4, v1
    v_xor_b32 v10, v8, v9
    v_lshlrev_b32 v10, 4, v10
    v_lshl_add_u32 v8, v9, 8, v10
    v_xor_b32 v9, 64, v8
    v_accvgpr_read_b32 v248, a212
    """)
    k(vm.wait_str(wd[7]) + " lgkmcnt(0)")
    k("s_barrier")
    stamp(k, 6)
    def aread(s):
        f = FR + 16 * (s & 1)
        return [f"ds_read_b128 v[{f+4*b}:{f+4*b+3}], v{8 + (s & 1)} offset:{b*16384+s*1024}" for b in range(4)]
    ex1, ex2, ex3 = trreads(1), trreads(2), trreads(3)
    RLATT = int(os.environ.get("RLATT", "1"))
    for x in aread(0): k(x)
    for s in range(16):
        nxt = aread(s + 1) if s < 15 else []
        k("s_waitcnt lgkmcnt(0)")
        SB3 = int(os.environ.get("SB3", "10"))
        if s == 3:
            k("s_barrier")
        if s == 5:
            vm.wait(wd[11]); k("s_barrier")
        if s == SB3:
            vm.wait(wd[15]); k("s_barrier")
        if s < 3:
            nxt += ex1[8 * s:8 * s + 8]
        if s in (3, 4):
            for s2_ in (12 + 2 * (s - 3), 13 + 2 * (s - 3)):
                for g in wdma(s2_):
                    nxt.append("\n".join(g()))
        if 5 <= s < 9:
            nxt += ex2[6 * (s - 5):6 * (s - 5) + 6]
        if SB3 <= s < SB3 + 4:
            nxt += ex3[6 * (s - SB3):6 * (s - SB3) + 6]
        RL0 = int(os.environ.get("RL0", "5"))
        if RL0 <= s < RL0 + 4 and not RLATT:
            i = s - RL0
            nxt += ["s_add_u32 s12, s12, s1" if i else "s_mov_b32 s12, 0", f"buffer_load_dwordx4 a[{192+4*i}:{195+4*i}], v248, s[52:55], s12 offen"]
            vm.tick()
        f = FR + 16 * (s & 1)
        for b in range(4):
            for which in range(3):
                acc = ACC + 4 * (which * 4 + b)
                w = f"a[{12*s+4*which}:{12*s+4*which+3}]"
                h = f"v[{f+4*b}:{f+4*b+3}]"
                c = "0" if s == 0 else f"v[{acc}:{acc+3}]"
                a_, b_ = (w, h) if which < 2 else (h, w)
                k(f"v_mfma_f32_16x16x32_bf16 v[{acc}:{acc+3}], {a_}, {b_}, {c}")
                if nxt:
                    k(nxt.pop(0))
        assert not nxt
    stamp(k, 7)
    C2 = 200
    k(f"""
    v_lshrrev_b32 v221, 1, v1
    v_lshlrev_b32 v220, 3, v221
    s_lshl_b32 s38, s3, 8
    buffer_load_dwordx2 v[{C2}:{C2+1}], v220, s[56:59], s38 offen
    """)
    k(f"""
    s_lshl_b32 s40, s22, 16
    s_lshl_b32 s41, s20, 11
    s_add_u32 s40, s40, s41
    s_add_u32 s40, s40, {OFF_Q}
    s_lshl_b32 s42, s22, 17
    s_lshl_b32 s41, s20, 12
    s_add_u32 s42, s42, s41
    s_add_u32 s42, s42, {OFF_KV}
    v_mov_b32 v12, {QSCALE:#x}
    v_mov_b32 v13, {QSCALE:#x}
    """)
    for which in (1, 2, 0):
        for bp in range(2):
            t = 88 + 4 * (which * 2 + bp)
            for b2 in range(2):
                acc = ACC + 4 * (which * 4 + bp * 2 + b2)
                if which == 0:
                    k(f"v_pk_mul_f32 v[{acc}:{acc+1}], v[12:13], v[{acc}:{acc+1}]")
                    k(f"v_pk_mul_f32 v[{acc+2}:{acc+3}], v[12:13], v[{acc+2}:{acc+3}]")
                k(f"v_cvt_pk_bf16_f32 v{t+2*b2}, v{acc}, v{acc+1}")
                k(f"v_cvt_pk_bf16_f32 v{t+2*b2+1}, v{acc+2}, v{acc+3}")
        op = "v_permlane32_swap_b32" if which == 2 else "v_permlane16_swap_b32"
        for bp in range(2):
            t = 88 + 4 * (which * 2 + bp)
            if bp == 1:
                k("s_nop 0")
            k(f"{op} v{t}, v{t+2}")
            k(f"{op} v{t+1}, v{t+3}")
            if which == 0:
                vm.op(f"buffer_store_dwordx4 v[{t}:{t+3}], v2, s[24:27], s40 offen offset:{bp*1024} {FL}")
            else:
                vm.op(f"buffer_store_dwordx4 v[{t}:{t+3}], v2, s[24:27], s42 offen offset:{bp*2048+(which-1)*1024} {FL}")
    stamp(k, 25)
    signal(k, 0, 21, 20, 32)
    stamp(k, 26)
    RA, RD, W2M, M2 = 160, 168, 184, 208
    LDS_RLS = LDS_W1A
    k(RS_SCALAR)
    k(f"""
    s_lshl_b32 s14, s3, 12
    s_add_u32 s14, s14, {LDS_RLS}
    v_and_b32 v248, 15, v1
    v_lshrrev_b32 v249, 4, v1
    v_lshrrev_b32 v250, 2, v248
    v_and_b32 v248, 3, v248
    v_lshlrev_b32 v248, 3, v248
    v_lshl_add_u32 v248, v250, 7, v248
    v_add_u32 v248, s14, v248
    v_and_b32 v250, 1, v249
    v_lshrrev_b32 v249, 1, v249
    s_cmp_eq_u32 s5, 1
    s_cbranch_scc1 L_rl_c
    v_lshl_add_u32 v248, v250, 5, v248
    s_lshr_b32 s13, s5, 1
    s_add_u32 s23, s13, 9
    v_lshlrev_b32 v249, s23, v249
    v_add_u32 v{RA}, v248, v249
    v_add_u32 v{RA+1}, 64, v{RA}
    v_add_u32 v{RA+2}, 0x800, v{RA}
    v_add_u32 v{RA+3}, 0x840, v{RA}
    s_lshr_b32 s23, 1024, s13
    s_cmp_eq_u32 s5, 0
    s_cselect_b32 s15, 32, 112      ; ksteps
    s_mov_b32 s10, {OFF_W2}
    s_cselect_b32 s10, {OFF_WO}, s10
    s_lshl_b32 s11, s7, 1
    s_mul_i32 s11, s11, s15
    s_lshl_b32 s13, s9, 1
    s_add_u32 s11, s11, s13
    s_lshl_b32 s11, s11, 10
    s_add_u32 s16, s11, s10
    s_lshl_b32 s15, s15, 10
    s_add_u32 s17, s16, s15
    s_add_u32 s18, s16, 1024
    s_add_u32 s19, s17, 1024
    s_branch L_rl_d
    L_rl_c:
    v_lshl_add_u32 v248, v249, 11, v248
    v_lshl_add_u32 v{RA}, v250, 9, v248
    v_add_u32 v{RA+1}, 32, v{RA}
    v_add_u32 v{RA+2}, 64, v{RA}
    v_add_u32 v{RA+3}, 0x60, v{RA}
    s_mov_b32 s23, 1024
    s_lshl_b32 s15, s7, 2
    s_mul_i32 s13, s9, 7
    """)
    for f in range(4):
        k(f"""
        s_mul_i32 s10, s15, 9363
        s_lshr_b32 s10, s10, 16
        s_mul_i32 s11, s10, 105
        s_add_u32 s11, s11, s15
        s_add_u32 s11, s11, s13
        s_lshl_b32 s11, s11, 10
        s_add_u32 s{16+f}, s11, {OFF_W1}
        s_add_u32 s15, s15, 1
        """)
    k.label("L_rl_d")
    for f in range(4):
        k(f"v_add_u32 v{RA+4+f}, s23, v{RA+f}")
    k(f"""
    v_add_u32 v220, s14, v2
    s_lshr_b32 s99, s37, 2
    s_lshl_b32 s99, s99, 3
    s_add_u32 s99, s99, s36
    s_lshl_b32 s99, s99, 2
    s_and_b32 s38, s37, 3
    s_add_u32 s99, s99, s38
    s_add_u32 s99, s99, 64
    v_mul_u32_u24 v221, {4*6144}, v221
    v_and_b32 v249, 1, v1
    v_lshl_add_u32 v221, v249, 4, v221
    s_mul_i32 s15, s3, {128*6144}
    s_lshl_b32 s4, s99, 5
    s_add_u32 s15, s15, s4
    s_cmp_ge_u32 s37, 16
    s_cselect_b32 s15, 0x7f000000, s15
    s_lshl_b32 s20, s2, 1
    s_lshr_b32 s21, s3, 1
    s_add_u32 s20, s20, s21
    s_mul_i32 s20, s20, 6144
    s_and_b32 s21, s3, 1
    s_lshl_b32 s21, s21, 11
    s_add_u32 s20, s20, s21
    s_add_u32 s20, s20, 2048
    s_mov_b64 s[8:9], s[52:53]
    s_mov_b32 s10, s54
    s_mov_b32 s11, 0x00020000
    v_accvgpr_read_b32 v222, a212
    s_mov_b64 s[4:5], s[44:45]
    s_mov_b32 s6, s46
    s_mov_b32 s7, 0x00020000
    v_lshlrev_b32 v{C2+2}, 16, v{C2}
    v_and_b32 v{C2+3}, 0xffff0000, v{C2}
    v_lshlrev_b32 v{C2+4}, 16, v{C2+1}
    v_and_b32 v{C2+5}, 0xffff0000, v{C2+1}
    """)
    silu(k, [C2 + 2 + i for i in range(4)], [M2 + i for i in range(4)])
    stamp(k, 8)
    Q, KF, VF, S, P, O, C = (ATT[x] for x in ("Q", "KF", "VF", "S", "P", "O", "C"))
    TOKP = int(os.environ.get("TOKP", "0"))
    MAP2 = "s_mov_b32 s40, s37\n    s_mov_b32 s54, s36" if TOKP else "s_lshl_b32 s40, s36, 2\n    s_and_b32 s42, s37, 3\n    s_add_u32 s40, s40, s42\n    s_lshr_b32 s54, s37, 2"
    k(f"""
    {MAP2}
    s_lshl_b32 s41, s54, 2
    s_add_u32 s41, s41, s3         ; qblock64
    s_lshl_b32 s42, s40, 16
    s_lshl_b32 s43, s41, 11
    s_add_u32 s42, s42, s43
    s_add_u32 s42, s42, {OFF_Q}
    s_lshl_b32 s44, s40, 17
    s_lshl_b32 s45, s3, 10
    s_add_u32 s47, s44, {OFF_KV}
    s_add_u32 s44, s47, s45
    s_lshl_b32 s46, s41, 16
    s_lshl_b32 s43, s40, 10
    s_add_u32 s46, s46, s43
    s_add_u32 s46, s46, {OFF_O}
    s_lshr_b32 s38, s3, 1
    s_mul_i32 s38, s38, {TS}
    s_and_b32 s39, s45, 1024
    s_add_u32 s13, s38, s39
    s_mov_b32 m0, s13
    v_and_b32 v3, 15, v1
    v_lshlrev_b32 v3, 4, v3
    v_lshrrev_b32 v4, 5, v1
    v_lshl_add_u32 v3, v4, 8, v3
    v_add_u32 v3, 0x400, v3
    v_add_u32 v156, 0x200, v3
    s_mov_b32 s48, 0x0000ffff
    s_mov_b32 s49, 0x0000ffff
    v_and_b32 v8, 27, v1
    v_cmp_eq_u32 vcc, 16, v8
    v_mov_b32 v9, 0x800
    v_mov_b32 v10, 0x810
    v_cndmask_b32 v9, v10, v9, vcc
    v_cndmask_b32 v3, v9, v3, s[48:49]
    v_cndmask_b32 v156, v9, v156, s[48:49]
    v_add_u32 v4, 0x10000, v2
    v_add_u32 v5, 0x10000, v3
    v_add_u32 v157, 0x10000, v156
    v_mul_u32_u24 v8, {TS}, v1
    v_mov_b32 v12, 0x3f803f80
    v_mov_b32 v13, 0x3f803f80
    v_mov_b32 v14, 0x3f803f80
    v_mov_b32 v15, 0x3f803f80
    v_mov_b32 v16, 0
    v_mov_b32 v17, 0
    v_mov_b32 v18, 0
    v_mov_b32 v19, 0
    ds_write_b128 v8, v[12:15] offset:2048
    ds_write_b128 v8, v[16:19] offset:2064
    s_waitcnt lgkmcnt(0)
    """)
    k(f"""
    s_lshr_b32 s50, s37, 3
    s_lshl_b32 s50, s50, 2
    s_add_u32 s50, s50, s3          ; P3 ncol32
    s_lshl_b32 s51, s50, 15
    s_add_u32 s51, s51, {OFF_WO}
    s_lshr_b32 s52, s37, 3
    s_lshl_b32 s52, s52, 1
    s_and_b32 s53, s37, 1
    s_add_u32 s52, s52, s53         ; cb5
    s_lshl_b32 s52, s52, 1
    s_lshr_b32 s53, s3, 1
    s_add_u32 s52, s52, s53
    s_xor_b32 s53, s52, 1
    s_mul_i32 s55, s52, {112*1024}
    s_mul_i32 s56, s53, {112*1024}
    s_mul_i32 s53, s3, {28*1024}
    s_add_u32 s53, s53, {OFF_W2}
    s_add_u32 s55, s55, s53
    s_add_u32 s56, s56, s53
    s_lshr_b32 s57, s37, 3
    s_lshl_b32 s57, s57, 2
    s_and_b32 s53, s37, 3
    s_add_u32 s57, s57, s53         ; cb4
    s_mul_i32 s58, s57, {112*1024}
    s_add_u32 s58, s58, {OFF_W1}
    s_mul_i32 s22, s3, 7168
    s_mul_i32 s23, s3, 21504
    s_add_u32 s21, s58, s23
    s_add_u32 s21, s21, {28*1024}
    v_lshrrev_b32 v8, 5, v1
    v_and_b32 v9, 31, v1
    v_lshlrev_b32 v148, 10, v9
    v_lshl_add_u32 v148, v8, 3, v148
    v_lshlrev_b32 v149, 4, v9
    v_lshl_add_u32 v149, v8, 12, v149
    s_lshl_b32 s59, s36, 3
    s_and_b32 s53, s37, 7
    s_add_u32 s59, s59, s53
    s_lshl_b32 s59, s59, 15
    s_lshl_b32 s53, s50, 6
    s_add_u32 s59, s59, s53
    v_lshlrev_b32 v155, 7, v1
    s_lshr_b32 s0, s2, 2
    s_lshl_b32 s0, s0, 7
    s_and_b32 s53, s2, 3
    s_lshl_b32 s53, s53, 2
    s_add_u32 s0, s0, s53
    s_lshr_b32 s53, s37, 2
    """)
    wait_edge(k, 0, 53 if TOKP else 36, 32)
    stamp(k, 9)
    vm.n = 0
    rid = []
    def dma():
        i = len(rid)
        out = []
        if i < 4:
            if i:
                out += [f"s_add_u32 m0, s13, {2*TS*i}", "s_add_u32 s44, s44, 4096"]
            out += [f"buffer_load_dwordx4 v2, s[24:27], s44 offen {FL} lds"]
        else:
            if i % 4 == 0:
                out += [f"s_add_u32 m0, s43, {2*TS*i}", f"s_add_u32 s44, s41, {4096*i}"]
            if i % 4 == 2:
                out += [f"s_add_u32 m0, s43, {2*TS*(i-2) + TS - 2048}"]
            out += [f"buffer_load_dwordx4 v2, s[24:27], s44 offen offset:{1024*(i%4)} {FL} lds"]
        rid.append(vm.tick())
        return out
    k("s_lshl_b32 s43, s3, 12")
    k("s_add_u32 s41, s47, s43")
    k(f"s_mul_i32 s43, s3, {2*TS}")
    for x in dma(): k(x)
    vm.op(f"buffer_load_dwordx4 v[{Q}:{Q+3}], v2, s[24:27], s42 offen {FL}")
    qid = vm.op(f"buffer_load_dwordx4 v[{Q+4}:{Q+7}], v2, s[24:27], s42 offen offset:1024 {FL}")
    for r in range(3):
        for x in dma(): k(x)
    fin2 = L()
    fin2(f"""
    s_cmp_lg_u32 s3, 1
    s_cbranch_scc1 L_m2_done
    s_cmp_ge_u32 s37, 16
    s_cbranch_scc1 L_m2_done
    v_lshlrev_b32 v216, 2, v1
    v_add_u32 v217, {LDS_MRED2}, v216
    ds_read_b32 v{M2}, v217
    s_lshr_b32 s38, s99, 5
    s_cmp_eq_u32 s38, 4
    s_cselect_b32 s39, 1.0, 0
    s_waitcnt lgkmcnt(0)
    v_mov_b32 v{M2+1}, v{M2}
    s_nop 1
    v_permlane32_swap_b32 v{M2+1}, v{M2}
    v_add_f32 v{M2}, v{M2+1}, v{M2}
    v_mov_b32 v{M2+1}, v{M2}
    s_nop 1
    v_permlane16_swap_b32 v{M2+1}, v{M2}
    v_add_f32 v{M2}, v{M2+1}, v{M2}
    """)
    bf16_round(fin2, M2, M2)
    fin2(f"v_add_f32 v{M2}, s39, v{M2}")
    bf16_round(fin2, M2, M2)
    fin2(f"""
    s_lshl_b32 s39, s99, 6
    s_mov_b64 exec, 0xffff
    buffer_store_dword v{M2}, v216, s[24:27], s39 offen offset:{OFF_MOD} {FL}
    s_sub_u32 s38, 4, s38
    s_cmp_gt_u32 s38, 1
    s_cbranch_scc1 L_m2_done
    s_lshl_b32 s38, s38, 10
    s_and_b32 s39, s99, 31
    s_lshl_b32 s39, s39, 5
    s_add_u32 s38, s38, s39
    s_add_u32 s38, s38, {OFF_MODB}
    v_bfe_u32 v217, v1, 2, 1
    v_lshlrev_b32 v216, 4, v217
    v_bfe_u32 v217, v1, 3, 1
    v_lshl_add_u32 v216, v217, 3, v216
    v_and_b32 v217, 3, v1
    v_lshl_add_u32 v216, v217, 1, v216
    buffer_store_short_d16_hi v{M2}, v216, s[24:27], s38 offen {FL}
    L_m2_done:
    s_mov_b64 exec, -1
    """)
    vm.wait(qid)
    k("s_barrier")
    def kread(t):
        off = t * TS
        return f"ds_read_b128 v[{KF}:{KF+3}], v{2 if off < 65536 else 4} offset:{off & 0xffff}"
    def vread(t):
        off = t * TS
        b = VF + 8 * (t & 1)
        return [f"ds_read_b128 v[{b}:{b+3}], v{3 if off < 65536 else 5} offset:{off & 0xffff}",
                f"ds_read_b128 v[{b+4}:{b+7}], v{156 if off < 65536 else 157} offset:{off & 0xffff}"]
    k(kread(0))
    for x in vread(0): k(x)
    k(f"""
    s_waitcnt lgkmcnt(2)
    v_mfma_f32_32x32x16_bf16 v[{S}:{S+15}], v[{KF}:{KF+3}], v[{Q}:{Q+3}], 0
    v_mfma_f32_32x32x16_bf16 v[{S+16}:{S+31}], v[{KF}:{KF+3}], v[{Q+4}:{Q+7}], 0
    s_nop 10
    """)
    att_max16(k, 6, S, True)
    att_max16(k, 7, S + 16, True)
    k("""
    s_nop 1
    v_permlane32_swap_b32 v6, v7
    v_max_f32 v6, v6, v7
    v_mov_b32 v7, v6
    s_nop 1
    v_permlane32_swap_b32 v6, v7
    v_sub_f32 v6, 0, v6
    v_sub_f32 v7, 0, v7
    """)
    for i in range(16):
        k(f"v_mov_b32 v{C+i}, v6")
    k("s_nop 0")
    k(f"v_mov_b32 v{C+16}, v7")
    k(f"v_mfma_f32_32x32x16_bf16 v[{S}:{S+15}], v[{KF}:{KF+3}], v[{Q}:{Q+3}], v[{C}:{C+15}]")
    for i in range(1, 16):
        k(f"v_mov_b32 v{C+16+i}, v7")
    stamp(k, 10)
    jobs = []
    for s in range(32):
        pre = ["s_add_u32 s51, s51, 4096"] if (s and s % 4 == 0) else []
        jobs.append(pre + [f"buffer_load_dwordx4 {wo_reg(s)}, v2, s[24:27], s51 offen offset:{(s%4)*1024} {FL}"])
    for s in range(28):
        for i, sr in enumerate((55, 56)):
            pre = [f"s_add_u32 s{sr}, s{sr}, 4096"] if (s and s % 4 == 0) else []
            jobs.append(pre + [f"buffer_load_dwordx4 a[{8*s+4*i}:{8*s+4*i+3}], v2, s[24:27], s{sr} offen offset:{(s%4)*1024} {FL}"])
    w1jobs = []
    for i in range(7):
        pre = [f"s_add_u32 m0, s22, {LDS_W1A + 4096*(i//4)}", f"s_add_u32 s44, s58, s22"] + ([f"s_add_u32 s44, s44, 4096"] if i else []) if i % 4 == 0 else []
        w1jobs.append(pre + [f"buffer_load_dwordx4 v2, s[24:27], s44 offen offset:{1024*(i%4)} sc1 lds"])
    for i in range(21):
        pre = [f"s_add_u32 m0, s23, {4096*(i//4)}", f"s_add_u32 s44, s21, {4096*(i//4)}"] if i % 4 == 0 else []
        w1jobs.append(pre + [f"buffer_load_dwordx4 v2, s[24:27], s44 offen offset:{1024*(i%4)} sc1 lds"])
    modb = ["s_and_b32 s53, s45, 1024", f"s_add_u32 m0, s53, {LDS_MODB}", f"s_add_u32 s53, s53, {OFF_MODB}",
            "buffer_load_dwordx4 v2, s[24:27], s53 offen sc1 lds"]
    vec1 = [f"s_mov_b32 m0, {LDS_VEC}", "s_lshr_b32 s53, s37, 3", "s_lshl_b32 s53, s53, 9", f"s_add_u32 s53, s53, {OFF_MOD + 2*2048}",
            "buffer_load_dwordx4 v149, s[24:27], s53 offen sc1 lds"]
    vec2 = [f"s_mov_b32 m0, {LDS_VEC + 1024}", "s_lshr_b32 s53, s37, 4", "s_lshl_b32 s53, s53, 10", f"s_add_u32 s53, s53, {OFF_MOD + 5*2048}",
            "buffer_load_dwordx4 v2, s[24:27], s53 offen sc1 lds"]
    xj = [[f"buffer_load_dwordx2 v[{140+2*j}:{141+2*j}], v148, s[28:31], s59 offen offset:{16*j}"] for j in range(4)]
    wo_j, w2_j = jobs[:32], jobs[32:]
    NW2 = int(os.environ.get("NW2", "44"))
    w2_late = w2_j[NW2:]
    jobs = w1jobs[:7] + w2_j[:NW2] + wo_j
    late = w1jobs[7:]
    vecj = [modb, vec1, vec2]
    pfj = [[f"buffer_load_dwordx4 v[{224+4*i}:{227+4*i}], v2, s[4:7], s20 offen offset:{1024*i}"] for i in range(2)]
    rlj = [["s_add_u32 s12, s12, s1" if i else "s_mov_b32 s12, 0", f"buffer_load_dwordx4 a[{192+4*i}:{195+4*i}], v222, s[8:11], s12 offen"]
           for i in range(4)] if RLATT else []
    m2j = [(["s_add_u32 s15, s15, 6144"] if i else []) + [f"buffer_load_dwordx4 v[{W2M+4*i}:{W2M+4*i+3}], v221, s[4:7], s15 offen"]
           for i in range(4)]
    bg = L()
    for p in range(4):
        for i in range(4):
            src = W2M + 4 * p + i
            t_ = 216 + 2 * (i & 1)
            bg(f"v_lshlrev_b32 v{t_}, 16, v{src}")
            bg(f"v_and_b32 v{t_+1}, 0xffff0000, v{src}")
            if p == 0:
                bg(f"v_pk_mul_f32 v[{M2+2*i}:{M2+2*i+1}], v[{t_}:{t_+1}], v[{C2+2}:{C2+3}] op_sel_hi:[1,0]")
            else:
                sel = "op_sel:[0,1,0] op_sel_hi:[1,1,1]" if p & 1 else "op_sel_hi:[1,0,1]"
                cr = C2 + 2 + (p & 2)
                bg(f"v_pk_fma_f32 v[{M2+2*i}:{M2+2*i+1}], v[{t_}:{t_+1}], v[{cr}:{cr+1}], v[{M2+2*i}:{M2+2*i+1}] {sel}")
    mod_reduce(bg, M2, C2, C2 + 1, 0, LDS_MRED2)
    bg = [x for x in bg if not x.startswith("s_nop")]
    U_RL, U_FLAG, U_XL, U_XC = 4, (30 if TOKP else 20), (48 if TOKP else 44), (54 if TOKP else 50)
    U_M2, U_BG, U_FIN, U_MFLAG, U_ML, U_MC = (38 if TOKP else 32), 56, 68, 76, 112, 118
    if RLATT:
        U_RL, U_FLAG, U_XL, U_XC = 34, 46, 60, 66
        U_M2, U_BG, U_FIN, U_MFLAG = 47, 62, 74, 80
    def flagblk(lab, off, cond, xcc=False):
        val = ["s_getreg_b32 s38, hwreg(HW_REG_XCC_ID, 0, 4)", "s_xor_b32 s38, s38, s98"] if xcc else ["s_mov_b32 s38, s98"]
        return cond + val + [f"s_add_u32 s39, s0, {off}", "s_mov_b64 exec, 1", "v_mov_b32 v6, 0", "v_mov_b32 v7, s38",
                             f"buffer_store_dword v7, v6, s[24:27], s39 offen {FL}", "s_mov_b64 exec, -1", f"{lab}:"]
    def chk(lim):
        return ["v_xor_b32 v150, s98, v150", "v_xor_b32 v151, s98, v151", "v_xor_b32 v152, s98, v152", "v_xor_b32 v153, s98, v153",
                "v_or3_b32 v154, v150, v151, v152", "v_or_b32 v154, v154, v153", f"v_cmp_lt_u32 vcc, {lim}, v154"]
    for tag, off, lim in (("xid", OFF_XID, 0), ("mid", OFF_XID + 8192, 15)):
        OOL.append([f"L_{tag}_retry:", "s_mov_b32 s39, 0x40000", f"s_mov_b32 s53, {off}", f"L_{tag}_spin:",
                    f"buffer_load_dwordx4 v[150:153], v155, s[24:27], s53 offen {FL}", "s_sub_u32 s39, s39, 1", "s_waitcnt vmcnt(0)"] + chk(lim) +
                   [f"s_cbranch_scc1 L_{tag}_ok", "s_sleep 32", f"s_cbranch_vccnz L_{tag}_spin", f"s_branch L_{tag}_ok"])
    for u in range(128):
        t = u >> 1
        side = {}
        def add(slot, xs):
            side.setdefault(slot, []).extend(xs)
        def place(d, slot):
            ms = (7 if u % 2 == 0 else 14) if slot == 1 else 21
            if len(d) == 2 and d[0].startswith("s_add_u32 m0"):
                add(ms - 1, d[:1]); add(ms, d[1:])
            else:
                add(ms, d)
        def put(d, slot):
            place(d, slot)
            return vm.tick()
        if u % 2 == 1 or u == 0:
            add(7, ["s_waitcnt lgkmcnt(0)"])
        if len(rid) < 32:
            place(dma(), 1)
        elif rlj:
            rlid = put(rlj.pop(0), 1)
        elif pfj:
            put(pfj.pop(0), 1)
        elif xj:
            put(xj.pop(0), 1)
        elif U_M2 <= u < U_M2 + 4:
            m2id = put(m2j[u - U_M2], 1)
        elif vecj and u > U_MC:
            put(vecj.pop(0), 1)
        elif jobs and u > U_XC and (u > U_MFLAG or len(jobs) > 24):
            put(jobs.pop(0), 1)
        if u == U_BG:
            add(7, [vm.wait_str(m2id)])
        if u > U_BG:
            for sl in (4, 6, 8, 11, 13, 18, 20, 25):
                if bg:
                    add(sl, [bg.pop(0)])
        if u % 2 == 0 and t < 63:
            pre = []
            if u == 2:
                pre = [vm.wait_str(rid[3]), "s_barrier"]
            elif u == 14:
                pre = [vm.wait_str(rid[11 if TOKP else 15]), "s_barrier"]
            elif u == U_FLAG:
                pre = [vm.wait_str(max(rid[31], rlst)), "s_barrier"] + flagblk("L_noxid", OFF_XID, ["s_cmp_lg_u32 s3, 1", "s_cbranch_scc1 L_noxid"])
            elif u == U_FIN:
                assert not bg
                pre = ["s_barrier"] + list(fin2)
                finid = vm.n
            elif u == U_MFLAG:
                pre = flagblk("L_nomid", OFF_XID + 8192, ["s_cmp_lg_u32 s3, 1", "s_cbranch_scc1 L_nomid", vm.wait_str(finid)], xcc=True)
            elif u == 86:
                pre = ["s_barrier"]
            add(14, pre + [kread(t + 1)] + vread(t + 1))
        if u == U_RL - 2:
            if RLATT:
                add(16, [vm.wait_str(rlid)])
            for i in range(4):
                add(17 + 2 * i, [f"ds_write_b128 v220, a[{192+4*i}:{195+4*i}] offset:{1024*i}"])
        if u == U_RL:
            for f in range(4):
                add(17 + 2 * f, [f"ds_read_b64_tr_b16 v[{RD+4*f}:{RD+4*f+1}], v{RA+f}"])
                add(18 + 2 * f, [f"ds_read_b64_tr_b16 v[{RD+4*f+2}:{RD+4*f+3}], v{RA+4+f}"])
        if U_RL + 1 <= u < U_RL + 9 and u % 2 == 1:
            f = (u - U_RL - 1) // 2
            add(14, [f"buffer_store_dwordx4 v[{RD+4*f}:{RD+4*f+3}], v2, s[24:27], s{16+f} offen {FL}"])
            rlst = vm.tick()
        if len(rid) < 32 and (not TOKP or u < 4):
            place(dma(), 17)
        elif u in (U_XL, U_ML):
            off = OFF_XID if u == U_XL else OFF_XID + 8192
            xidid = put([f"s_mov_b32 s53, {off}", f"buffer_load_dwordx4 v[150:153], v155, s[24:27], s53 offen {FL}"], 17)
        elif u in (U_XC, U_MC):
            tag = "xid" if u == U_XC else "mid"
            add(17, [vm.wait_str(xidid)] + chk(0 if u == U_XC else 15))
            add(24, [f"s_cbranch_vccnz L_{tag}_retry", f"L_{tag}_ok:"])
        elif u >= 87 and late:
            put(late.pop(0), 17)
        elif jobs and u > U_XC + (3 if RLATT else 7) and (RLATT or u % 4 != 3) and (u > U_MFLAG or len(jobs) > 24):
            put(jobs.pop(0), 17)
        if DIAG and os.environ.get('ATTST') and u in (8, 16, 22, 32, 44, 52, 64, 86):
            stamp(k, (8, 16, 22, 32, 44, 52, 64, 86).index(u))
        att_unit(k, u, side, last=(u == 127))
    assert not vecj
    assert not jobs and not late, (len(jobs), len(late))
    k(f"""
    s_nop 0
    v_cvt_pk_bf16_f32 v{P+7}, v{S+30}, v{S+31}
    s_nop 1
    v_mfma_f32_32x32x16_bf16 v[{O+16}:{O+31}], v[{VF+12}:{VF+15}], v[{P+4}:{P+7}], v[{O+16}:{O+31}]
    s_mov_b32 s53, 0x53800000
    v_cmp_nge_f32 vcc, s53, v{O+8}
    s_nop 9
    v_cmp_nge_f32 s[42:43], s53, v{O+24}
    s_nop 3
    s_or_b64 vcc, vcc, s[42:43]
    s_cbranch_scc0 L_att_fin
    s_branch L_att_fallback
    """)
    k.label("L_att_fin")
    stamp(k, 11)
    XR, XU, GA, A2 = 140, 44, 108, 124
    k(f"""
    v_rcp_f32 v6, v{O+8}
    v_rcp_f32 v7, v{O+24}
    s_lshl_b32 s42, s36, 3
    s_and_b32 s43, s37, 7
    s_add_u32 s42, s42, s43         ; t3 (tok32)
    v_lshrrev_b32 v8, 5, v1         ; h
    v_and_b32 v9, 31, v1            ; tok
    """)
    dual_begin(k)
    for b_ in range(2):
        for i in range(8):
            k(f"v_mul_f32 v{O+16*b_+i}, v{6+b_}, v{O+16*b_+i}")
        for i in range(4):
            k(f"v_cvt_pk_bf16_f32 v{P+4*b_+i}, v{O+16*b_+2*i}, v{O+16*b_+2*i+1}")
        if b_:
            k("s_add_u32 s46, s46, 32768")
        k(f"buffer_store_dwordx4 v[{P+4*b_}:{P+4*b_+3}], v2, s[24:27], s46 offen {DF}")
    k(f"""
    v_add_u32 v5, 0x20000, v2
    v_lshrrev_b32 v12, 4, v9
    v_lshlrev_b32 v12, 14, v12
    v_and_b32 v13, 15, v9
    v_lshl_add_u32 v12, v13, 4, v12
    v_lshl_add_u32 v12, v8, 8, v12
    v_lshlrev_b32 v13, 3, v9
    s_lshl_b32 s43, s3, 10
    s_lshl_b32 s44, s42, 15
    s_lshl_b32 s45, s50, 10
    s_add_u32 s44, s44, s45
    s_add_u32 s45, s44, {OFF_X2S}
    s_add_u32 s44, s44, {OFF_X2}
    s_lshl_b32 s46, s42, 12
    s_lshl_b32 s47, s50, 8
    s_add_u32 s46, s46, s47
    s_add_u32 s46, s46, {OFF_ST2}
    s_lshl_b32 s47, s42, 15
    s_add_u32 s47, s47, s43
    s_add_u32 s47, s47, {OFF_O}
    s_add_u32 m0, s43, {LDS_OST}
    """)
    k(f"""
    v_lshl_or_b32 v150, v151, 4, v150
    v_lshl_or_b32 v152, v153, 4, v152
    v_lshl_or_b32 v150, v152, 8, v150
    v_and_b32 v151, 1, v1
    v_readlane_b32 s38, v150, 0
    v_readlane_b32 s39, v150, 1
    v_cmp_eq_u32 vcc, 1, v151
    v_mov_b32 v152, s38
    v_mov_b32 v153, s39
    v_cndmask_b32 v152, v152, v153, vcc
    v_cmp_ne_u32 vcc, v152, v150
    s_nop 3
    s_cmp_eq_u64 vcc, 0
    s_cselect_b32 s{S_FAST}, 1, 0
    """)
    def w2some(n):
        for _ in range(n):
            for y in w2_late.pop(0):
                k(y)
        return n
    ND = [int(x) for x in os.environ.get("ND", "0,0,0").split(",")]
    signal(k, 1, 54, 40, 32, nafter=w2some(ND[0]), fast=bool(TOKP))
    dual_end(k, 'e1')
    stamp(k, 12)
    k(f"""
    s_lshl_b32 s38, s3, 7
    s_add_u32 s38, s38, {LDS_VEC}
    v_lshlrev_b32 v10, 4, v8
    v_add_u32 v10, s38, v10
    """)
    for j in range(4):
        k(f"ds_read_b128 v[{GA+4*j}:{GA+4*j+3}], v10 offset:{32*j}")
        k(f"ds_read_b128 v[{A2+4*j}:{A2+4*j+3}], v10 offset:{512+32*j}")
    for i in range(8):
        k(f"v_lshlrev_b32 v{XU+2*i}, 16, v{XR+i}")
        k(f"v_and_b32 v{XU+2*i+1}, 0xffff0000, v{XR+i}")
    MA_, WU, UA = 60, 92, 36
    k(f"""
    v_add_u32 v14, s43, v2
    v_add_u32 v15, s43, v4
    v_add_u32 v16, s43, v5
    v_and_b32 v17, 15, v1
    v_lshrrev_b32 v18, 4, v1
    v_lshlrev_b32 v17, 10, v17
    v_lshl_add_u32 v17, v18, 4, v17
    v_add_u32 v17, {LDS_MODB}, v17
    s_mov_b32 s48, 0x00030003
    s_mov_b32 s49, 0x00030003
    """)
    for i in range(32):
        k(f"v_mov_b32 v{MA_+i}, 0")
    def mread(s0):
        k("s_mov_b64 exec, s[48:49]")
        for s in range(s0, s0 + 8):
            k(f"ds_read_b128 v[{MA_+4*(s%8)}:{MA_+4*(s%8)+3}], v17 offset:{64*s}")
        k("s_mov_b64 exec, -1")
    def uread(s):
        for h in range(2):
            addr = w1_lds(s * 7) + 4 * h * 1024
            r = WU + 8 * (s & 1) + 4 * h
            k(f"ds_read_b128 v[{r}:{r+3}], v{14 + (addr >> 16)} offset:{addr & 0xffff}")
    def ut_steps(s0, s1):
        for s in range(s0, s1):
            if s < 15:
                uread(s + 1)
                k("s_waitcnt lgkmcnt(2)")
            else:
                k("s_waitcnt lgkmcnt(0)")
            for h in range(2):
                u_ = UA + 4 * h
                r = WU + 8 * (s & 1) + 4 * h
                c = "0" if s == 0 else f"v[{u_}:{u_+3}]"
                k(f"v_mfma_f32_16x16x32_bf16 v[{u_}:{u_+3}], v[{MA_+4*(s%8)}:{MA_+4*(s%8)+3}], v[{r}:{r+3}], {c}")
    mread(0)
    uread(0)
    UTE = int(os.environ.get("UTE", "8"))
    ut_steps(0, UTE)
    if UTE == 8:
        mread(8)
    stamp(k, 13)
    wait_edge(k, 1, 36, 32)
    stamp(k, 14)
    vm.n = 0
    oid = []
    for i in range(8):
        if i:
            k("s_add_u32 m0, m0, 4096")
            k("s_add_u32 s47, s47, 4096")
        oid.append(vm.op(f"buffer_load_dwordx4 v2, s[24:27], s47 offen {FL} lds"))
    if UTE < 8:
        ut_steps(UTE, 8)
        mread(8)
    ut_steps(8, 16)
    k("s_nop 6")
    for h in range(2):
        u_ = UA + 4 * h
        d = WU + 4 * h
        for i in range(2):
            bf16_round(k, 18 + i, u_ + i)
        for i in range(2):
            k(f"v_sub_f32 v{u_+i}, v{u_+i}, v{18+i}")
        for i in range(2):
            k(f"v_cvt_pk_bf16_f32 v{d+i}, v{18+i}, v{u_+i}")
        k(f"v_mov_b32 v{d+2}, 0")
        k(f"v_mov_b32 v{d+3}, 0")
        k(f"ds_write_b128 v15, v[{d}:{d+3}] offset:{LDS_UT + 4*h*1024 - 65536}")
    AC, OFR = 20, 60
    chunks = [(0, 8), (8, 20), (20, 32)]
    for (c0, c1) in chunks:
        vm.wait(oid[c1 // 4 - 1])
        k("s_barrier")
        n = c1 - c0
        ahead = 6
        for s in range(c0, min(c1, c0 + ahead)):
            k(lds_rd(f"v[{OFR+4*(s%8)}:{OFR+4*(s%8)+3}]", LDS_OST + s * 1024))
        for s in range(c0, c1):
            issued = min(c1, s + ahead)
            k(f"s_waitcnt lgkmcnt({issued - 1 - s})")
            c = "0" if s == 0 else f"v[{AC}:{AC+15}]"
            k(f"v_mfma_f32_32x32x16_bf16 v[{AC}:{AC+15}], {wo_reg(s)}, v[{OFR+4*(s%8)}:{OFR+4*(s%8)+3}], {c}")
            if s + ahead < c1:
                s2 = s + ahead
                k(lds_rd(f"v[{OFR+4*(s2%8)}:{OFR+4*(s2%8)+3}]", LDS_OST + s2 * 1024))
    k("s_nop 11")
    stamp(k, 15)
    for i in range(8):
        k(f"v_pk_fma_f32 v[{AC+2*i}:{AC+2*i+1}], v[{GA+2*i}:{GA+2*i+1}], v[{AC+2*i}:{AC+2*i+1}], v[{XU+2*i}:{XU+2*i+1}]")
    for i in range(8):
        k(f"v_pk_mul_f32 v[{A2+2*i}:{A2+2*i+1}], v[{A2+2*i}:{A2+2*i+1}], v[{AC+2*i}:{AC+2*i+1}]")
    for i in range(8):
        k(f"v_cvt_pk_bf16_f32 v{60+i}, v{A2+2*i}, v{A2+2*i+1}")
    dual_begin(k)
    k(f"buffer_store_dwordx4 v[60:63], v12, s[24:27], s45 offen {DF}")
    k(f"buffer_store_dwordx4 v[64:67], v12, s[24:27], s45 offen offset:512 {DF}")
    k(f"v_pk_add_f32 v[14:15], v[{AC}:{AC+1}], v[{AC+2}:{AC+3}]")
    k(f"v_pk_mul_f32 v[16:17], v[{AC}:{AC+1}], v[{AC}:{AC+1}]")
    for i in range(1, 8):
        if i >= 2:
            k(f"v_pk_add_f32 v[14:15], v[14:15], v[{AC+2*i}:{AC+2*i+1}]")
        k(f"v_pk_fma_f32 v[16:17], v[{AC+2*i}:{AC+2*i+1}], v[{AC+2*i}:{AC+2*i+1}], v[16:17]")
    k("v_add_f32 v14, v14, v15")
    k("v_add_f32 v15, v16, v17")
    k("v_mov_b32 v16, v14")
    k("v_mov_b32 v17, v15")
    for i in range(2):
        k(f"v_cvt_pk_bf16_f32 v{144+i}, v{AC+2*i}, v{AC+2*i+1}")
    k("v_permlane32_swap_b32 v16, v14")
    k("v_permlane32_swap_b32 v17, v15")
    k("v_pk_add_f32 v[14:15], v[14:15], v[16:17]")
    k("s_mov_b32 exec_hi, 0")
    k(f"buffer_store_dwordx2 v[14:15], v13, s[24:27], s46 offen {DF}")
    k("s_mov_b32 exec_hi, -1")
    for i in range(2, 8):
        k(f"v_cvt_pk_bf16_f32 v{144+i}, v{AC+2*i}, v{AC+2*i+1}")
    k("v_mov_b32 v156, v12")
    k("s_mov_b32 s59, s44")
    x2st = [f"buffer_store_dwordx4 v[144:147], v156, s[24:27], s59 offen {FL}", f"buffer_store_dwordx4 v[148:151], v156, s[24:27], s59 offen offset:512 {FL}"]
    k("""
    s_lshr_b32 s40, s42, 2          ; E3 group
    s_and_b32 s41, s42, 3
    s_lshl_b32 s41, s41, 2
    s_lshr_b32 s43, s37, 3
    s_add_u32 s41, s41, s43         ; member
    """)
    signal(k, 2, 40, 41, 16, nafter=w2some(ND[1]), fast=True)
    dual_end(k, 'e2')
    stamp(k, 16)
    ACC4, WF, ST, SB = 8, 64, 120, 136
    k(f"""
    s_lshl_b32 s40, s36, 1
    s_bfe_u32 s41, s37, 0x10002
    s_add_u32 s40, s40, s41        ; tb4
    s_lshl_b32 s44, s40, 2
    s_add_u32 s44, s44, s3         ; tok32
    s_lshl_b32 s45, s44, 15
    s_add_u32 s45, s45, {OFF_X2S}
    s_add_u32 s46, s45, 16384
    v_and_b32 v3, 15, v1
    v_lshrrev_b32 v152, 4, v1
    v_lshlrev_b32 v153, 3, v3
    v_lshl_add_u32 v153, v152, 10, v153
    s_lshl_b32 s47, s44, 12
    s_add_u32 s47, s47, {OFF_ST2}
    s_mul_i32 s42, s44, {112*1024}
    s_mul_i32 s43, s57, {7*1024}
    s_add_u32 s42, s42, s43
    s_add_u32 s42, s42, {OFF_H}
    s_add_u32 s43, s42, 4096
    """)
    NA = int(os.environ.get("P4A", "4"))
    passes = [list(range(NA)), list(range(NA, 7))] if NA < 7 else [list(range(7))]
    fseq = [(s, i) for ps in passes for s in range(17) for i in ps]
    RING, LA = 14, int(os.environ.get("P4LA", "10"))
    def wreg(n):
        return f"v[{WF+4*(n%RING)}:{WF+4*(n%RING)+3}]"
    def wrd(n):
        s, i = fseq[n]
        return lds_rd(wreg(n), w1_lds(s * 7 + i))
    for n in range(LA):
        k(wrd(n))
    wait_edge(k, 2, 40, 16)
    wbl2(k, "a")
    stamp(k, 17)
    vm.n = 0
    xid = []
    def xload():
        s = len(xid)
        if s >= 16:
            return
        if s and s % 4 == 0:
            k("s_add_u32 s45, s45, 4096")
            k("s_add_u32 s46, s46, 4096")
        vm.op(f"buffer_load_dwordx4 {wo_reg(2*s)}, v2, s[24:27], s45 offen offset:{(s%4)*1024} {FL}")
        xid.append(vm.op(f"buffer_load_dwordx4 {wo_reg(2*s+1)}, v2, s[24:27], s46 offen offset:{(s%4)*1024} {FL}"))
    for s in range(int(os.environ.get("P4D", "7"))):
        xload()
    stl = [f"buffer_load_dwordx2 v[{ST+8*j+2*pp}:{ST+8*j+2*pp+1}], v153, s[24:27], s47 offen offset:{256*pp+128*j} {FL}"
           for j in range(2) for pp in range(4)]
    fill = L()
    for j in range(2):
        b = ST + 8 * j
        fill(f"v_pk_add_f32 v[{b}:{b+1}], v[{b}:{b+1}], v[{b+2}:{b+3}]")
        fill(f"v_pk_add_f32 v[{b+4}:{b+5}], v[{b+4}:{b+5}], v[{b+6}:{b+7}]")
        fill(f"v_pk_add_f32 v[{b}:{b+1}], v[{b}:{b+1}], v[{b+4}:{b+5}]")
    regs = [ST, ST + 1, ST + 8, ST + 9]
    tmp = [ST + 2, ST + 3, ST + 10, ST + 11]
    for op in ("v_permlane16_swap_b32", "v_permlane32_swap_b32"):
        for r, t in zip(regs, tmp):
            fill(f"v_mov_b32 v{t}, v{r}")
        fill("s_nop 1")
        for r, t in zip(regs, tmp):
            fill(f"{op} v{t}, v{r}")
        for r, t in zip(regs, tmp):
            fill(f"v_add_f32 v{r}, v{t}, v{r}")
    for j in range(2):
        b = ST + 8 * j
        ln_stats_finish(fill, b, b + 1, b + 4, b + 5, None, std_out=b + 6)
        fill(f"v_cvt_pk_bf16_f32 v{SB+4*j}, -v{b+4}, -v{b+4}")
        fill(f"v_cvt_pk_bf16_f32 v{SB+4*j+1}, v{b+6}, v{b+6}")
        fill(f"v_mov_b32 v{SB+4*j+2}, 0")
        fill(f"v_mov_b32 v{SB+4*j+3}, 0")
    fill(f"""
    v_lshlrev_b32 v154, 2, v3
    s_lshl_b32 s41, s3, 7
    v_add_u32 v154, s41, v154
    v_add_u32 v154, {LDS_R}, v154
    """)
    def tile_epi(i):
        a = ACC4 + 8 * i
        e = L()
        for q in range(4):
            e(f"v_cvt_pk_bf16_f32 v{a+q}, v{a+2*q}, v{a+2*q+1}")
        for q in range(4):
            e(f"v_pk_max_i16 v{a+q}, v{a+q}, 0")
        t = L()
        t(f"v_permlane16_swap_b32 v{a}, v{a+2}")
        t(f"v_permlane16_swap_b32 v{a+1}, v{a+3}")
        t(f"buffer_store_dwordx4 v[{a}:{a+3}], v2, s[24:27], s{42 if i < 4 else 43} offen offset:{(i%4)*1024} {FL}")
        return e, t
    def epi_seq(tiles):
        out = []
        prev = None
        for i in tiles:
            e, t = tile_epi(i)
            out += e
            if prev:
                out += prev
            prev = t
        return out + ["s_nop 1"] + prev
    FS = int(os.environ.get("P4FS", "7"))
    nrd = LA
    n = 0
    for pi, ps in enumerate(passes):
        for s in range(17):
            last = n + len(ps) - 1
            w = f"lgkmcnt({nrd - 1 - last})"
            if pi == 0 and s < 16:
                k(vm.wait_str(xid[s]) + " " + w)
            else:
                k("s_waitcnt " + w)
            if pi == 0 and s == FS:
                vm.wait(sid)
            if pi == 0 and s == 16:
                while fill:
                    k(fill.pop(0))
                k("s_nop 1")
            if pi == 1 and s == 0:
                fill = L()
                fill(f"""
                ds_write_b32 v154, v{ST+5}
                ds_write_b32 v154, v{ST+13} offset:64
                v_lshlrev_b32 v158, 8, v3
                v_mov_b32 v159, s98
                s_lshl_b32 s50, s40, 12
                s_add_u32 s50, s50, {OFF_FLAG + 3*65536}
                """)
                extra_lgkm = 2
            if pi == 1 and s == 1:
                fill = epi_seq(passes[0])
                fill = [x for x in fill if not x.startswith("s_nop")]
                fill += [l.strip() for l in f"""s_lshl_b32 s51, s57, 8
                s_add_u32 s51, s51, s50
                s_lshl_b32 s58, s36, 2
                s_bfe_u32 s41, s37, 0x20001
                s_add_u32 s58, s58, s41
                s_lshl_b32 s58, s58, 1
                s_and_b32 s41, s3, 1
                s_add_u32 s58, s58, s41
                s_xor_b32 s41, s58, 1
                s_mul_i32 s46, s58, {112*1024}
                s_mul_i32 s47, s41, {112*1024}
                s_mul_i32 s41, s3, {28*1024}
                s_add_u32 s41, s41, {OFF_H}
                s_add_u32 s46, s46, s41
                s_add_u32 s47, s47, s41""".split("\n")]
            if pi == 1 and s == int(os.environ.get("SIGA", "15")):
                assert not fill
                k("s_waitcnt vmcnt(0)")
                k("s_barrier")
                for x in flag_store("L_f4a", 51, 0): k(x)
            m_ = 0
            for i in ps:
                for j in range(2):
                    a = ACC4 + 8 * i + 4 * j
                    c = "0" if s == 0 else f"v[{a}:{a+3}]"
                    bop = wo_reg(2 * s + j) if s < 16 else f"v[{SB+4*j}:{SB+4*j+3}]"
                    k(f"v_mfma_f32_16x16x32_bf16 v[{a}:{a+3}], {wreg(n)}, {bop}, {c}")
                    if j == 1 and nrd < len(fseq):
                        k(wrd(nrd)); nrd += 1
                    elif pi == 0 and m_ == 0:
                        xload()
                    elif pi == 0 and m_ in (2, 4, 6) and stl and s >= 1:
                        sid = vm.op(stl.pop(0))
                    elif pi == 0 and s >= 10 and m_ == 6 and x2st:
                        vm.op(x2st.pop(0))
                    elif pi == 0 and s >= 10 and m_ in (2, 4) and len(w2_late) > ND[2]:
                        for y in w2_late.pop(0):
                            k(y)
                        vm.tick()
                    if (pi == 1 or s >= FS) and fill:
                        k(fill.pop(0))
                        if fill and j == 0:
                            k(fill.pop(0))
                    m_ += 1
                n += 1
    assert not fill and not x2st and len(w2_late) == ND[2], (len(fill), len(w2_late))
    stamp(k, 18)
    vm.n = 0
    pa = vm.op(f"buffer_load_dword v157, v158, s[24:27], s50 offen {FL}")
    k("s_nop 4")
    for x in epi_seq(passes[-1]):
        k(x)
        if x.startswith("buffer"):
            vm.tick()
    stamp(k, 19)
    vm.wait(pa)
    k("v_cmp_ne_u32 vcc, s98, v157")
    for tag, imm in (("a", 0), ("b", 128)):
        OOL.append([f"L_p4{tag}_spin:", "s_mov_b32 s39, 0x40000", f"L_p4{tag}_spin2:",
                    f"buffer_load_dword v157, v158, s[24:27], s50 offen offset:{imm} {FL}", "s_sub_u32 s39, s39, 1", "s_waitcnt vmcnt(0)",
                    "v_cmp_ne_u32 vcc, s98, v157", f"s_cbranch_scc1 L_p4{tag}_ok", "s_nop 1", f"s_cbranch_vccnz L_p4{tag}_spin2", f"s_branch L_p4{tag}_ok"])
    ACC5, RB, DEPTH = 8, 72, 10
    G5, X5, R5 = 224, 240, 248
    kord = [7 * p + i for p in range(4) for i in passes[0]] + [7 * p + i for p in range(4) for i in passes[1]]
    NAK = 4 * len(passes[0])
    hid = []
    base = [None]
    def hload():
        s = len(hid)
        if s >= 28:
            return
        r = RB + 8 * (s % DEPTH)
        ks = kord[s]
        if base[0] is None or not (0 <= ks - base[0] < 4):
            base[0] = ks
            k(f"s_add_u32 s44, s46, {1024*ks}")
            k(f"s_add_u32 s45, s47, {1024*ks}")
        off = (ks - base[0]) * 1024
        vm.op(f"buffer_load_dwordx4 v[{r}:{r+3}], v2, s[24:27], s44 offen offset:{off} {FL}")
        hid.append(vm.op(f"buffer_load_dwordx4 v[{r+4}:{r+7}], v2, s[24:27], s45 offen offset:{off} {FL}"))
    k("s_nop 1")
    k("s_cbranch_vccnz L_p4a_spin")
    k.label("L_p4a_ok")
    stamp(k, 22)
    P5D = int(os.environ.get("P5D", "6"))
    for s in range(P5D):
        hload()
    f5 = L()
    f5(f"""
    v_lshrrev_b32 v250, 5, v1
    v_and_b32 v251, 31, v1
    v_lshlrev_b32 v252, 4, v250
    s_and_b32 s41, s52, 7
    s_lshl_b32 s41, s41, 7
    s_add_u32 s41, s41, {LDS_VEC + 1024}
    v_add_u32 v252, s41, v252
    v_lshrrev_b32 v249, 4, v251
    v_lshlrev_b32 v249, 14, v249
    v_and_b32 v254, 15, v251
    v_lshl_add_u32 v249, v254, 4, v249
    v_lshl_add_u32 v249, v250, 8, v249
    s_lshl_b32 s42, s58, 15
    s_lshl_b32 s41, s52, 10
    s_add_u32 s43, s42, s41
    s_add_u32 s43, s43, {OFF_X2}
    s_and_b32 s41, s58, 3
    s_lshl_b32 s41, s41, 7
    s_add_u32 s41, s41, {LDS_R}
    v_lshlrev_b32 v254, 2, v251
    v_add_u32 v254, s41, v254
    v_lshlrev_b32 v253, 10, v251
    v_lshl_add_u32 v253, v250, 4, v253
    s_lshl_b32 s41, s52, 6
    s_add_u32 s42, s42, s41
    """)
    for j in range(4):
        f5(f"ds_read_b128 v[{G5+4*j}:{G5+4*j+3}], v252 offset:{32*j}")
    f5(f"ds_read_b32 v{R5}, v254")
    for x in f5: k(x)
    f5 = L()
    f5("s_waitcnt lgkmcnt(0)")
    for i in range(16):
        f5(f"v_mul_f32 v{G5+i}, v{R5}, v{G5+i}")
    for t in (1, 2, 3):
        f5(f"""
        s_xor_b32 s56, s3, {t}
        s_mul_i32 s56, s56, 12288
        s_add_u32 s56, s56, {(t-1)*4096}
        v_add_u32 v{3+t}, s56, v2
        """)
    f5("s_mul_i32 s56, s3, 12288")
    f5("v_add_u32 v3, s56, v2")
    PBS = int(os.environ.get("PBS", "4"))
    checked = False
    for s in range(28):
        vm.wait(hid[s])
        if s == 1:
            k("s_barrier")
            for x in flag_store("L_f4b", 51, 128): k(x)
        if len(hid) == NAK and not checked and hid[s] > pb:
            k("v_cmp_ne_u32 vcc, s98, v157")
        r = RB + 8 * (s % DEPTH)
        ks = kord[s]
        A0, A1 = f"a[{8*ks}:{8*ks+3}]", f"a[{8*ks+4}:{8*ks+7}]"
        B0, B1 = f"v[{r}:{r+3}]", f"v[{r+4}:{r+7}]"
        for t, (a, b) in enumerate(((A0, B0), (A0, B1), (A1, B0), (A1, B1))):
            acc = ACC5 + 16 * t
            c = "0" if s == 0 else f"v[{acc}:{acc+15}]"
            k(f"v_mfma_f32_32x32x16_bf16 v[{acc}:{acc+15}], {a}, {b}, {c}")
            if t == 0 and s == PBS:
                pb = vm.op(f"buffer_load_dword v157, v158, s[24:27], s50 offen offset:128 {FL}")
            if t == 1 and len(hid) == NAK and not checked and hid[s] > pb:
                k("s_cbranch_vccnz L_p4b_spin")
                k.label("L_p4b_ok")
                checked = True
            if t in (0, 1, 2) and (len(hid) < NAK or checked) and len(hid) - s <= P5D:
                hload()
            if t == 2 and s in (14, 15):
                vm.op(f"buffer_load_dwordx4 v[{X5+4*(s-14)}:{X5+4*(s-14)+3}], v249, s[24:27], s43 offen offset:{512*(s-14)} {FL}")
            if t == 3:
                for _ in range(3):
                    if f5:
                        k(f5.pop(0))
    assert not f5 and checked
    XU5, TMP5 = 72, 88
    stamp(k, 23)
    XU5, TMP5 = 160, 176
    for i in range(5):
        k(f"v_lshlrev_b32 v{XU5+2*i}, 16, v{X5+i}")
        k(f"v_and_b32 v{XU5+2*i+1}, 0xffff0000, v{X5+i}")
    for t in (1, 2, 3):
        for q in range(4):
            k(f"ds_write_b128 v{3+t}, v[{ACC5+16*t+4*q}:{ACC5+16*t+4*q+3}] offset:{q*1024}")
    for i in range(5, 8):
        k(f"v_lshlrev_b32 v{XU5+2*i}, 16, v{X5+i}")
        k(f"v_and_b32 v{XU5+2*i+1}, 0xffff0000, v{X5+i}")
    k(f"""
    s_waitcnt lgkmcnt(0)
    s_barrier
    """)
    for i in range(12):
        k(f"ds_read_b128 v[{TMP5+4*i}:{TMP5+4*i+3}], v3 offset:{i*1024}")
    for sl in range(3):
        k(f"s_waitcnt lgkmcnt({8-4*sl})")
        for i in range(8):
            k(f"v_pk_add_f32 v[{ACC5+2*i}:{ACC5+2*i+1}], v[{ACC5+2*i}:{ACC5+2*i+1}], v[{TMP5+16*sl+2*i}:{TMP5+16*sl+2*i+1}]")
    stamp(k, 24)
    for i in range(8):
        k(f"v_pk_fma_f32 v[{ACC5+2*i}:{ACC5+2*i+1}], v[{G5+2*i}:{G5+2*i+1}], v[{ACC5+2*i}:{ACC5+2*i+1}], v[{XU5+2*i}:{XU5+2*i+1}]")
    for i in range(8):
        k(f"v_cvt_pk_bf16_f32 v{TMP5+i}, v{ACC5+2*i}, v{ACC5+2*i+1}")
    k("s_nop 0")
    for p in range(2):
        t = TMP5 + 4 * p
        k(f"v_permlane32_swap_b32 v{t}, v{t+2}")
        k(f"v_permlane32_swap_b32 v{t+1}, v{t+3}")
        k(f"buffer_store_dwordx4 v[{t}:{t+3}], v253, s[32:35], s42 offen offset:{32*p} {os.environ.get('OUTFL', '')}")
    endpgm(k)
    k.label("L_att_fallback")
    k(f"""
    s_mov_b32 s42, 0
    s_mov_b32 s43, s47
    v_mov_b32 v6, 0xff800000
    v_mov_b32 v7, 0xff800000
    """)
    k.label("L_att_maxloop")
    k(f"""
    buffer_load_dwordx4 v[{KF}:{KF+3}], v2, s[24:27], s43 offen {FL}
    s_add_u32 s43, s43, 2048
    s_waitcnt vmcnt(0)
    v_mfma_f32_32x32x16_bf16 v[{S}:{S+15}], v[{KF}:{KF+3}], v[{Q}:{Q+3}], 0
    v_mfma_f32_32x32x16_bf16 v[{S+16}:{S+31}], v[{KF}:{KF+3}], v[{Q+4}:{Q+7}], 0
    s_nop 10
    """)
    att_max16(k, 6, S, False)
    att_max16(k, 7, S + 16, False)
    k(f"""
    s_add_u32 s42, s42, 1
    s_cmp_lt_u32 s42, 64
    s_cbranch_scc1 L_att_maxloop
    s_nop 0
    v_permlane32_swap_b32 v6, v7
    v_max_f32 v6, v6, v7
    v_mov_b32 v7, v6
    s_nop 1
    v_permlane32_swap_b32 v6, v7
    v_sub_f32 v6, 0, v6
    v_sub_f32 v7, 0, v7
    """)
    for i in range(16):
        k(f"v_mov_b32 v{C+i}, v6")
        k(f"v_mov_b32 v{C+16+i}, v7")
        k(f"v_mov_b32 v{O+i}, 0")
        k(f"v_mov_b32 v{O+16+i}, 0")
    k("s_mov_b32 s42, 0")
    k("s_mov_b32 s43, s47")
    k.label("L_att_redo")
    k(f"""
    buffer_load_dwordx4 v[{KF}:{KF+3}], v2, s[24:27], s43 offen {FL}
    s_mov_b64 exec, s[48:49]
    buffer_load_dwordx4 v[{VF}:{VF+3}], v3, s[24:27], s43 offen {FL}
    buffer_load_dwordx4 v[{VF+4}:{VF+7}], v3, s[24:27], s43 offen offset:512 {FL}
    s_mov_b64 exec, -1
    s_add_u32 s43, s43, 2048
    s_waitcnt vmcnt(0)
    v_mfma_f32_32x32x16_bf16 v[{S}:{S+15}], v[{KF}:{KF+3}], v[{Q}:{Q+3}], v[{C}:{C+15}]
    v_mfma_f32_32x32x16_bf16 v[{S+16}:{S+31}], v[{KF}:{KF+3}], v[{Q+4}:{Q+7}], v[{C+16}:{C+31}]
    s_nop 10
    """)
    for b in range(2):
        for i in range(16):
            k(f"v_exp_f32 v{S+16*b+i}, v{S+16*b+i}")
        k("s_nop 0")
        for j in range(8):
            k(f"v_cvt_pk_bf16_f32 v{P+j}, v{S+16*b+2*j}, v{S+16*b+2*j+1}")
        k("s_nop 1")
        for h in range(2):
            k(f"v_mfma_f32_32x32x16_bf16 v[{O+16*b}:{O+16*b+15}], v[{VF+4*h}:{VF+4*h+3}], v[{P+4*h}:{P+4*h+3}], v[{O+16*b}:{O+16*b+15}]")
    k(f"""
    s_add_u32 s42, s42, 1
    s_cmp_lt_u32 s42, 64
    s_cbranch_scc1 L_att_redo
    s_nop 10
    s_branch L_att_fin
    """)
    for blk in OOL:
        k.lines += blk
    if DIAG:
        marks = {"L_zspin:": 1, "L_mod_spin:": 2, "L_dbg_spin:": 4, "L_xid_retry:": 8, "L_mid_retry:": 16}
        out = []
        for l in k.lines:
            out.append(l)
            if l in marks:
                out.append(f"s_or_b32 s91, s91, {marks[l]}")
        k.lines = out
    k.label(f"L_end_{k.name}")
    k("s_endpgm")
    k(".fill (65536 + L_pc_here - .) / 4 + 64, 4, 0xbf810000")
    return k, (256, 256, 163840)


def build(path=OUT):
    ks = [mega()]
    errs = []
    for k, _ in ks:
        errs += k.check()
    for e in errs:
        print(e)
    ref = open(OUT + ".ref").read().split("\n")
    hdr = [l for l in ref if l.startswith(";") and "@launch" not in l and "Override" not in l and "grid=ceil" not in l]
    out = "\n".join(hdr) + "\n"
    for k, (g, b, lds) in ks:
        kn = f"kernel={k.name} " if os.environ.get("ASLIST") else ""
        out += f"; @launch {kn}grid=({g},1,1) block=({b},1,1) lds={lds}\n"
    out += '.amdgcn_target "amdgcn-amd-amdhsa--gfx950"\n'
    codes, kds = zip(*[k.text() for k, _ in ks])
    out += "".join(codes)
    out += '.section .rodata,"a"\n' + "".join(kds)
    open(path, "w").write(out)
    print("wrote", path, len(out), "bytes;", len(errs), "checker errors")
    return len(errs)


if __name__ == "__main__":
    sys.exit(1 if build(sys.argv[1] if len(sys.argv) > 1 else OUT) else 0)
```

```python
import sys
sys.path.insert(0, "gen")
from asmlib import Kern

NAME = "adaLN_cond__mha_block__dense_activation_relu__prompt"
OUT = f"cdna_kernels/{NAME}.s"

MB = 1 << 20
OFF_MOD = 0x0
OFF_UT = 0x4000
OFF_R2 = 0x8000
OFF_XHAT = 0x10000
OFF_WQKV = OFF_XHAT + 2 * MB
OFF_Q = OFF_WQKV + 3 * MB // 2
OFF_KV = OFF_Q + 2 * MB
OFF_O = OFF_KV + 4 * MB
OFF_WO = OFF_O + 2 * MB
OFF_X2 = OFF_WO + MB // 2
OFF_X2S = OFF_X2 + 2 * MB
OFF_ST2 = OFF_X2S + 2 * MB
OFF_W1 = OFF_ST2 + MB // 4
OFF_H = OFF_W1 + 7 * MB // 4
OFF_W2 = OFF_H + 7 * MB
OFF_FLAG = OFF_W2 + 7 * MB // 4
OFF_XID = OFF_FLAG + MB // 4
WS_USED = OFF_XID + 16384
OFF_MODB = 0x3000

import os
DIAG = int(os.environ.get("DIAG", "0"))
OFF_DIAG = (WS_USED + 0xfffff) // MB * MB
if DIAG:
    WS_USED = OFF_DIAG + 8 * MB
QSCALE = 0x3eb8aa3b

P_X, P_WQKV, P_WO, P_BX, P_W1, P_W2, P_C, P_WMOD, P_OUT, P_WS = 4, 6, 8, 10, 12, 14, 16, 18, 20, 22
S_WS = 24
S_W = 3


def srd(k, d, p, size):
    k(f"""
    s_mov_b32 s{d}, s{p}
    s_mov_b32 s{d+1}, s{p+1}
    s_mov_b32 s{d+2}, {size:#x}
    s_mov_b32 s{d+3}, 0x00020000
    """)


NST = 28


def stamp(k, i):
    if DIAG in (1, 3):
        k(f"s_waitcnt lgkmcnt(0)")
        k(f"s_memtime s[94:95]" if DIAG == 1 else "s_memrealtime s[94:95]")
        k(f"s_waitcnt lgkmcnt(0)")
        k(f"s_mov_b32 s{64+i}, s94")


def endpgm(k):
    if os.environ.get("PADEND"):
        k(f"""
        s_waitcnt vmcnt(0) lgkmcnt(0)
        s_cmp_lg_u32 s2, {os.environ.get("PADWG", "s2")}
        s_cbranch_scc1 L_padout
        L_padend:
        s_memrealtime s[96:97]
        s_waitcnt lgkmcnt(0)
        s_sub_u32 s96, s96, s{os.environ.get('PADBASE', '62')}
        s_cmp_lt_u32 s96, {int(os.environ["PADEND"])}
        s_cbranch_scc1 L_padend
        L_padout:
        s_endpgm
        """)
        return
    if DIAG and os.environ.get("DBGST"):
        sel = [int(x) for x in os.environ["DBGST"].split(",")]
        k(f"""
        s_waitcnt vmcnt(0) lgkmcnt(0)
        s_memtime s[94:95]
        s_memrealtime s[96:97]
        s_load_dwordx2 s[4:5], s[0:1], 72
        s_waitcnt lgkmcnt(0)
        s_mov_b32 s6, 256
        s_mov_b32 s7, 0x00020000
        s_lshl_b32 s92, s3, 8
        s_add_u32 s92, s92, s2
        s_cmp_lg_u32 s92, 100
        s_cbranch_scc1 L_dbgst_skip
        s_mov_b64 exec, 1
        v_mov_b32 v0, 0
        s_sub_u32 s96, s96, s62
        s_sub_u32 s94, s94, s60
        """)
        regs = [96, 94]
        for i in sel:
            k(f"s_sub_u32 s{64+i}, s{64+i}, s60")
            regs.append(64 + i)
        for q in range(3):
            for i in range(4):
                k(f"v_mov_b32 v{4+i}, s{regs[4*q+i]}")
            k(f"buffer_store_dwordx4 v[4:7], v0, s[4:7], 0 offen offset:{16+16*q}")
            k("s_nop 1")
        k("L_dbgst_skip:")
    elif DIAG:
        kid = getattr(k, 'kid', None) or int(k.name[1])
        k(f"""
        s_waitcnt vmcnt(0) lgkmcnt(0)
        s_memtime s[94:95]
        s_memrealtime s[96:97]
        s_waitcnt lgkmcnt(0)
        s_mov_b64 exec, 1
        s_lshl_b32 s92, s2, 3
        s_add_u32 s92, s92, s3
        s_lshl_b32 s92, s92, 7
        s_add_u32 s92, s92, {OFF_DIAG + kid * MB}
        v_mov_b32 v0, 0
        """)
        regs = [62, 96, 60, 94] + [64 + i for i in range(NST)]
        for q in range(8):
            for i in range(4):
                k(f"v_mov_b32 v{4+i}, s{regs[4*q+i]}")
            k(f"buffer_store_dwordx4 v[4:7], v0, s[24:27], s92 offen offset:{16*q}")
            k("s_nop 1")
    k("s_endpgm")


def prologue(k, nwg):
    if DIAG:
        k("s_memtime s[60:61]")
        k("s_memrealtime s[62:63]")
        for i in range(NST):
            k(f"s_mov_b32 s{64+i}, 0")
    k(f"""
    s_cmp_ge_u32 s2, {nwg}
    s_cbranch_scc1 L_end_{k.name}
    s_load_dwordx16 s[4:19], s[0:1], 0
    s_load_dwordx2 s[20:21], s[0:1], 64
    s_load_dwordx2 s[22:23], s[0:1], 80
    v_lshrrev_b32 v2, 6, v0
    v_and_b32 v1, 63, v0
    v_readfirstlane_b32 s3, v2
    """)


def prologue_wait(k):
    k("s_waitcnt lgkmcnt(0)")
    srd(k, S_WS, P_WS, WS_USED)
    stamp(k, 0)


def epilogue(k):
    endpgm(k)
    k.label(f"L_end_{k.name}")
    k("s_endpgm")


def bf16_round(k, d, s):
    k(f"v_cvt_pk_bf16_f32 v{d}, v{s}, v{s}")
    k(f"v_and_b32 v{d}, 0xffff0000, v{d}")


def allreduce64(k, regs, tmp):
    for ror in (1, 2, 4, 8):
        for r in regs:
            k(f"v_add_f32_dpp v{r}, v{r}, v{r} row_ror:{ror} row_mask:0xf bank_mask:0xf")
        if len(regs) < 3:
            k(f"s_nop {2 - len(regs)}")
    for op in ("v_permlane16_swap_b32", "v_permlane32_swap_b32"):
        for r, t in zip(regs, tmp):
            k(f"v_mov_b32 v{t}, v{r}")
        k("s_nop 1")
        for r, t in zip(regs, tmp):
            k(f"{op} v{t}, v{r}")
        for r, t in zip(regs, tmp):
            k(f"v_add_f32 v{r}, v{t}, v{r}")


def role_mod(k, sj):
    srd(k, 28, P_WMOD, 512 * 3072 * 2)
    srd(k, 32, P_C, 1024)
    k(f"""
    v_lshlrev_b32 v2, 2, v0
    v_mov_b32 v3, 0
    s_mov_b32 s40, {OFF_XID}
    buffer_store_dword v3, v2, s[24:27], s40 offen
    v_lshlrev_b32 v2, 1, v0
    buffer_load_ushort v4, v2, s[32:35], 0 offen
    v_lshrrev_b32 v3, 2, v0
    v_and_b32 v5, 3, v0
    v_mul_u32_u24 v6, 6144, v3
    v_lshl_add_u32 v6, v5, 4, v6
    s_lshl_b32 s40, s{sj}, 6
    s_add_u32 s41, s40, {128*6144}
    s_add_u32 s42, s40, {256*6144}
    s_add_u32 s43, s40, {384*6144}
    buffer_load_dwordx4 v[8:11], v6, s[28:31], s40 offen
    buffer_load_dwordx4 v[12:15], v6, s[28:31], s41 offen
    buffer_load_dwordx4 v[16:19], v6, s[28:31], s42 offen
    buffer_load_dwordx4 v[20:23], v6, s[28:31], s43 offen
    s_waitcnt vmcnt(4)
    v_lshlrev_b32 v4, 16, v4
    v_mul_f32 v7, 0xbfb8aa3b, v4
    v_exp_f32 v7, v7
    s_nop 0
    v_add_f32 v7, 1.0, v7
    v_rcp_f32 v7, v7
    s_nop 0
    v_mul_f32 v7, v4, v7
    """)
    bf16_round(k, 7, 7)
    k("""
    v_lshlrev_b32 v2, 2, v0
    ds_write_b32 v2, v7
    s_waitcnt lgkmcnt(0)
    s_barrier
    v_lshlrev_b32 v2, 2, v3
    ds_read_b32 v24, v2
    ds_read_b32 v25, v2 offset:512
    ds_read_b32 v26, v2 offset:1024
    ds_read_b32 v27, v2 offset:1536
    """)
    for p in range(4):
        k(f"s_waitcnt vmcnt({3-p}) lgkmcnt({3-p})")
        for i in range(4):
            src = 8 + 4 * p + i
            k(f"v_lshlrev_b32 v40, 16, v{src}")
            k(f"v_and_b32 v41, 0xffff0000, v{src}")
            op = "v_mul_f32" if p == 0 else "v_fmac_f32"
            k(f"{op} v{32+2*i}, v{24+p}, v40")
            k(f"{op} v{33+2*i}, v{24+p}, v41")
    k("s_nop 1")
    for ror in (4, 8):
        for r in range(32, 40):
            k(f"v_add_f32_dpp v{r}, v{r}, v{r} row_ror:{ror} row_mask:0xf bank_mask:0xf")
    k("""
    v_lshrrev_b32 v2, 4, v0
    v_lshlrev_b32 v2, 7, v2
    v_lshl_add_u32 v2, v5, 5, v2
    ds_write_b128 v2, v[32:35] offset:2048
    ds_write_b128 v2, v[36:39] offset:2064
    s_waitcnt lgkmcnt(0)
    s_barrier
    s_cmp_lg_u32 s3, 0
    """)
    k(f"s_cbranch_scc1 L_end_{k.name}")
    k("""
    v_and_b32 v3, 31, v1
    v_lshrrev_b32 v2, 5, v1
    v_lshlrev_b32 v2, 11, v2
    v_lshl_add_u32 v2, v3, 2, v2
    """)
    for i in range(16):
        k(f"ds_read_b32 v{8+i}, v2 offset:{2048+128*i}")
        if i == 7:
            k("s_waitcnt lgkmcnt(0)")
    k("s_waitcnt lgkmcnt(0)")
    n = 16
    while n > 1:
        for i in range(n // 2):
            k(f"v_add_f32 v{8+i}, v{8+i}, v{8+i+n//2}")
        n //= 2
    k("""
    v_mov_b32 v9, v8
    s_nop 1
    v_permlane32_swap_b32 v9, v8
    v_add_f32 v8, v9, v8
    """)
    bf16_round(k, 8, 8)
    k(f"""
    s_lshr_b32 s40, s{sj}, 4
    s_cmp_eq_u32 s40, 1
    s_cselect_b32 s41, 1.0, 0
    s_cmp_eq_u32 s40, 4
    s_cselect_b32 s41, 1.0, s41
    v_add_f32 v8, s41, v8
    """)
    bf16_round(k, 8, 8)
    k(f"""
    v_lshlrev_b32 v3, 2, v3
    s_lshl_b32 s40, s{sj}, 7
    s_add_u32 s40, s40, {OFF_MOD}
    buffer_store_dword v8, v3, s[24:27], s40 offen
    """)
    k(f"""
    s_lshr_b32 s40, s{sj}, 4
    s_sub_u32 s40, 4, s40
    s_cmp_gt_u32 s40, 1
    s_cbranch_scc1 L_k0_mod_done
    s_lshl_b32 s40, s40, 10
    s_and_b32 s41, s{sj}, 15
    s_lshl_b32 s41, s41, 6
    s_add_u32 s40, s40, s41
    s_add_u32 s40, s40, {OFF_MODB}
    v_and_b32 v3, 31, v1
    v_lshrrev_b32 v4, 4, v3
    v_lshlrev_b32 v4, 5, v4
    v_bfe_u32 v5, v3, 2, 1
    v_lshl_add_u32 v4, v5, 4, v4
    v_bfe_u32 v5, v3, 3, 1
    v_lshl_add_u32 v4, v5, 3, v4
    v_and_b32 v5, 3, v3
    v_lshl_add_u32 v4, v5, 1, v4
    buffer_store_short_d16_hi v8, v4, s[24:27], s40 offen
    """)
    k.label("L_k0_mod_done")
    endpgm(k)


def ln_stats_finish(k, s, q, m_out, r_out, t0, std_out=None):
    k(f"""
    v_mul_f32 v{s}, 0x3b000000, v{s}
    v_mul_f32 v{q}, 0x3b000000, v{q}
    v_fma_f32 v{q}, -v{s}, v{s}, v{q}
    v_max_f32 v{q}, 0, v{q}
    """)
    bf16_round(k, m_out, s)
    bf16_round(k, q, q)
    k(f"v_add_f32 v{q}, 0x3727c5ac, v{q}")
    bf16_round(k, q, q)
    k(f"v_sqrt_f32 v{q}, v{q}")
    k("s_nop 0")
    d = std_out if std_out is not None else t0
    bf16_round(k, d, q)
    k(f"v_rcp_f32 v{r_out}, v{d}")
    k("s_nop 0")


def role_ln(k, si):
    srd(k, 28, P_X, 2048 * 1024)
    k(f"""
    s_lshl_b32 s40, s{si}, 3
    s_add_u32 s40, s40, s3
    s_lshl_b32 s40, s40, 8
    s_add_u32 s40, s40, {OFF_FLAG}
    v_lshlrev_b32 v2, 2, v1
    v_mov_b32 v3, 0
    buffer_store_dword v3, v2, s[24:27], s40 offen
    """)
    k(f"""
    v_lshlrev_b32 v2, 4, v1
    s_lshl_b32 s40, s{si}, 14
    s_lshl_b32 s41, s3, 11
    s_add_u32 s40, s40, s41
    buffer_load_dwordx4 v[8:11], v2, s[28:31], s40 offen
    buffer_load_dwordx4 v[12:15], v2, s[28:31], s40 offen offset:1024
    s_add_u32 s40, s40, {OFF_XHAT}
    """)
    for row in range(2):
        k(f"s_waitcnt vmcnt({1-row})")
        b = 16 + 8 * row
        for i in range(4):
            k(f"v_lshlrev_b32 v{b+2*i}, 16, v{8+4*row+i}")
            k(f"v_and_b32 v{b+2*i+1}, 0xffff0000, v{8+4*row+i}")
        s, q = 32 + 2 * row, 33 + 2 * row
        k(f"v_add_f32 v{s}, v{b}, v{b+1}")
        k(f"v_mul_f32 v{q}, v{b}, v{b}")
        for i in range(1, 8):
            if i >= 2:
                k(f"v_add_f32 v{s}, v{s}, v{b+i}")
            k(f"v_fmac_f32 v{q}, v{b+i}, v{b+i}")
    k("s_nop 1")
    allreduce64(k, [32, 33, 34, 35], [36, 37, 38, 39])
    for row in range(2):
        s, q = 32 + 2 * row, 33 + 2 * row
        ln_stats_finish(k, s, q, 40, 41, 42)
        k("v_mul_f32 v40, v40, v41")
        b = 16 + 8 * row
        for i in range(8):
            k(f"v_fma_f32 v{b+i}, v{b+i}, v41, -v40")
        for i in range(4):
            k(f"v_cvt_pk_bf16_f32 v{8+4*row+i}, v{b+2*i}, v{b+2*i+1}")
        k(f"buffer_store_dwordx4 v[{8+4*row}:{11+4*row}], v2, s[24:27], s40 offen offset:{1024*row}")
    endpgm(k)


def role_relayout(k, tag, ptr, nrows, ncols, typ, sjob, ncg, lds_base=0):
    stride = ncols * 2
    srd(k, 28, ptr, nrows * stride)
    magic = (1 << 16) // ncg + 1
    k(f"""
    s_mul_i32 s40, s{sjob}, {magic}
    s_lshr_b32 s40, s40, 16
    s_mul_i32 s41, s40, {ncg}
    s_sub_u32 s41, s{sjob}, s41
    v_lshrrev_b32 v2, 3, v1
    v_and_b32 v3, 7, v1
    v_mul_u32_u24 v2, {stride}, v2
    v_lshl_add_u32 v2, v3, 4, v2
    s_mul_i32 s42, s40, {128*stride}
    s_lshl_b32 s43, s41, 7
    s_add_u32 s42, s42, s43
    s_mul_i32 s43, s3, {16*stride}
    s_add_u32 s42, s42, s43
    s_lshl_b32 s44, s3, 11
    s_add_u32 m0, s44, {lds_base}
    s_add_u32 s43, s42, {8*stride}
    buffer_load_dwordx4 v2, s[28:31], s42 offen lds
    s_add_u32 m0, s44, {lds_base+1024}
    s_nop 0
    buffer_load_dwordx4 v2, s[28:31], s43 offen lds
    """)
    k("""
    v_and_b32 v3, 15, v1
    v_lshrrev_b32 v4, 4, v1
    v_lshrrev_b32 v5, 2, v3
    v_and_b32 v6, 3, v3
    v_lshlrev_b32 v6, 3, v6
    v_lshl_add_u32 v6, v5, 7, v6
    v_and_b32 v7, 1, v4
    v_lshrrev_b32 v8, 1, v4
    """)
    if typ == "A":
        k("v_lshl_add_u32 v6, v4, 10, v6")
        second = 4 * 128
    elif typ == "C":
        k("v_lshl_add_u32 v6, v8, 11, v6")
        k("v_lshl_add_u32 v6, v7, 9, v6")
        second = 8 * 128
    elif typ == "B":
        k("v_lshl_add_u32 v6, v7, 5, v6")
        k("v_lshl_add_u32 v6, v8, 9, v6")
        second = 8 * 128
    elif typ == "D":
        k("v_lshl_add_u32 v6, v7, 5, v6")
        k("v_lshl_add_u32 v6, v8, 10, v6")
        second = 4 * 128
    if typ in "AC":
        k(f"""
        s_lshr_b32 s45, s3, 1
        s_and_b32 s46, s3, 1
        s_lshl_b32 s47, s45, 12
        s_lshl_b32 s48, s46, 6
        s_add_u32 s47, s47, s48
        s_add_u32 s47, s47, {lds_base}
        v_add_u32 v6, s47, v6
        s_lshl_b32 s48, s40, 2
        s_add_u32 s45, s45, s48
        s_lshl_b32 s48, s41, 2
        s_lshl_b32 s46, s46, 1
        s_add_u32 s46, s46, s48
        """)
        frag2 = 32
        for f in range(2):
            sd = 50 + f
            if f:
                k("s_add_u32 s46, s46, 1")
            if typ == "A":
                k(f"""
                s_and_b32 s48, s46, 31
                s_lshl_b32 s48, s48, 4
                s_add_u32 s48, s48, s45
                s_mul_i32 s48, s48, 3
                s_lshr_b32 s49, s46, 5
                s_add_u32 s48, s48, s49
                s_lshl_b32 s48, s48, 10
                s_add_u32 s{sd}, s48, {OFF_WQKV}
                """)
            else:
                k(f"""
                s_mul_i32 s48, s46, 9363
                s_lshr_b32 s48, s48, 16
                s_mul_i32 s49, s48, 7
                s_sub_u32 s49, s46, s49
                s_lshl_b32 s48, s48, 4
                s_add_u32 s48, s48, s45
                s_mul_i32 s48, s48, 7
                s_add_u32 s48, s48, s49
                s_lshl_b32 s48, s48, 10
                s_add_u32 s{sd}, s48, {OFF_W1}
                """)
    else:
        nks = nrows // 16
        off = OFF_WO if typ == "B" else OFF_W2
        k(f"""
        s_lshl_b32 s47, s3, 11
        s_add_u32 s47, s47, {lds_base}
        v_add_u32 v6, s47, v6
        s_lshl_b32 s45, s40, 3
        s_add_u32 s45, s45, s3
        s_mul_i32 s48, s41, {2*nks}
        s_add_u32 s48, s48, s45
        s_lshl_b32 s48, s48, 10
        s_add_u32 s50, s48, {off}
        s_add_u32 s51, s50, {nks*1024}
        """)
        frag2 = 64
    k(f"""
    v_lshlrev_b32 v2, 4, v1
    s_waitcnt vmcnt(0)
    s_barrier
    ds_read_b64_tr_b16 v[8:9], v6
    ds_read_b64_tr_b16 v[10:11], v6 offset:{second}
    ds_read_b64_tr_b16 v[12:13], v6 offset:{frag2}
    ds_read_b64_tr_b16 v[14:15], v6 offset:{frag2+second}
    s_waitcnt lgkmcnt(2)
    buffer_store_dwordx4 v[8:11], v2, s[24:27], s50 offen
    s_waitcnt lgkmcnt(0)
    buffer_store_dwordx4 v[12:15], v2, s[24:27], s51 offen
    """)
    endpgm(k)


def k0():
    k = Kern("k0_prep_kernel", nvgpr=48)
    roles = [("mod", 96), ("ln", 128), ("wqkv", 96), ("wo", 32), ("w1", 112), ("w2", 112)]
    total = sum(n for _, n in roles)
    prologue(k, total)
    prologue_wait(k)
    base = 0
    for name, n in roles:
        k(f"s_sub_u32 s39, s2, {base}")
        k(f"s_cmp_lt_u32 s2, {base+n}")
        k(f"s_cbranch_scc1 L_k0_{name}")
        base += n
    k("s_endpgm")
    k.label("L_k0_mod"); role_mod(k, 39)
    k.label("L_k0_ln"); role_ln(k, 39)
    k.label("L_k0_wqkv"); role_relayout(k, "wqkv", P_WQKV, 512, 1536, "A", 39, 24)
    k.label("L_k0_wo"); role_relayout(k, "wo", P_WO, 512, 512, "B", 39, 8)
    k.label("L_k0_w1"); role_relayout(k, "w1", P_W1, 512, 1792, "C", 39, 28)
    k.label("L_k0_w2"); role_relayout(k, "w2", P_W2, 1792, 512, "D", 39, 8)
    k.label(f"L_end_{k.name}")
    k("s_endpgm")
    return k, (total, 512, 16384)


def k1():
    k = Kern("k1_qkv_kernel", nvgpr=184, nagpr=192)
    prologue(k, 256)
    VA, VB, ROWS, TMP, ACC = 8, 16, 24, 88, 136
    FR = 104
    k(f"""
    s_and_b32 s40, s2, 7
    s_lshr_b32 s41, s2, 3
    s_lshr_b32 s42, s40, 1
    s_lshl_b32 s42, s42, 3
    s_and_b32 s43, s41, 7
    s_add_u32 s42, s42, s43        ; tb
    s_and_b32 s43, s40, 1
    s_lshl_b32 s43, s43, 2
    s_lshr_b32 s44, s41, 3
    s_add_u32 s43, s43, s44        ; cb
    s_lshl_b32 s43, s43, 2
    s_add_u32 s43, s43, s3         ; head
    v_lshlrev_b32 v2, 4, v1        ; lane*16
    v_lshlrev_b32 v3, 5, v1        ; lane*32
    s_lshl_b32 s44, s42, 16
    s_lshl_b32 s45, s3, 14
    s_add_u32 s44, s44, s45
    s_add_u32 s44, s44, {OFF_XHAT}
    s_mul_i32 s46, s43, {48*1024}
    s_add_u32 s46, s46, {OFF_WQKV}
    """)
    prologue_wait(k)
    k(f"""
    buffer_load_dwordx4 v[{VB}:{VB+3}], v3, s[24:27], 0 offen offset:{OFF_MOD}
    buffer_load_dwordx4 v[{VB+4}:{VB+7}], v3, s[24:27], 0 offen offset:{OFF_MOD+16}
    buffer_load_dwordx4 v[{VA}:{VA+3}], v3, s[24:27], 0 offen offset:{OFF_MOD+2048}
    buffer_load_dwordx4 v[{VA+4}:{VA+7}], v3, s[24:27], 0 offen offset:{OFF_MOD+2064}
    """)
    for r in range(16):
        if r and r % 4 == 0:
            k("s_add_u32 s44, s44, 4096")
        k(f"buffer_load_dwordx4 v[{ROWS+4*r}:{ROWS+4*r+3}], v2, s[24:27], s44 offen offset:{(r%4)*1024}")
    NW1 = 40
    def wload(i):
        if i and i % 4 == 0:
            k("s_add_u32 s46, s46, 4096")
        k(f"buffer_load_dwordx4 a[{4*i}:{4*i+3}], v2, s[24:27], s46 offen offset:{(i%4)*1024}")
    for i in range(NW1):
        wload(i)
    k(f"""
    v_and_b32 v4, 7, v1
    v_lshlrev_b32 v4, 4, v4
    v_lshl_add_u32 v4, v1, 8, v4
    v_add_u32 v4, s45, v4
    v_and_b32 v5, 15, v1
    v_lshrrev_b32 v6, 4, v1
    v_xor_b32 v7, v5, v6
    v_lshlrev_b32 v7, 4, v7
    v_lshl_add_u32 v6, v6, 8, v7
    v_xor_b32 v7, 64, v6
    """)
    stamp(k, 1)
    nw = NW1
    for r in range(16):
        k(f"s_waitcnt vmcnt({min(63, (15 - r) + nw)})")
        b = ROWS + 4 * r
        t = TMP + 8 * (r & 1)
        for i in range(4):
            k(f"v_lshlrev_b32 v{t+2*i}, 16, v{b+i}")
            k(f"v_and_b32 v{t+2*i+1}, 0xffff0000, v{b+i}")
        for i in range(4):
            k(f"v_pk_fma_f32 v[{t+2*i}:{t+2*i+1}], v[{t+2*i}:{t+2*i+1}], v[{VA+2*i}:{VA+2*i+1}], v[{VB+2*i}:{VB+2*i+1}]")
        for i in range(4):
            k(f"v_cvt_pk_bf16_f32 v{b+i}, v{t+2*i}, v{t+2*i+1}")
        k(f"v_xor_b32 v5, {r<<4}, v4")
        k(f"ds_write_b128 v5, v[{b}:{b+3}]")
        if nw < 48:
            wload(nw); nw += 1
    k("s_waitcnt lgkmcnt(0)")
    stamp(k, 2)
    k("s_barrier")
    stamp(k, 3)
    def aread(s):
        base = 6 + (s & 1)
        f = FR + 16 * (s & 1)
        for b in range(4):
            k(f"ds_read_b128 v[{f+4*b}:{f+4*b+3}], v{base} offset:{b*16384+s*1024}")
    aread(0)
    for s in range(16):
        if s < 15:
            aread(s + 1)
            k(f"s_waitcnt vmcnt({45-3*s}) lgkmcnt(4)")
        else:
            k("s_waitcnt vmcnt(0) lgkmcnt(0)")
        f = FR + 16 * (s & 1)
        for b in range(4):
            for which in range(3):
                acc = ACC + 4 * (which * 4 + b)
                w = f"a[{12*s+4*which}:{12*s+4*which+3}]"
                h = f"v[{f+4*b}:{f+4*b+3}]"
                c = "0" if s == 0 else f"v[{acc}:{acc+3}]"
                a_, b_ = (w, h) if which < 2 else (h, w)
                k(f"v_mfma_f32_16x16x32_bf16 v[{acc}:{acc+3}], {a_}, {b_}, {c}")
    stamp(k, 4)
    k(f"""
    v_and_b32 v5, 15, v1
    v_lshrrev_b32 v6, 4, v1
    v_and_b32 v7, 1, v6
    v_lshrrev_b32 v6, 1, v6
    v_lshlrev_b32 v5, 4, v5
    v_lshl_add_u32 v8, v6, 9, v5
    v_lshl_add_u32 v8, v7, 3, v8      ; q/k voffset
    v_lshl_add_u32 v9, v7, 8, v5
    v_lshl_add_u32 v9, v6, 3, v9      ; v voffset
    s_lshl_b32 s44, s43, 16
    s_lshl_b32 s45, s42, 11
    s_add_u32 s44, s44, s45
    s_add_u32 s44, s44, {OFF_Q}
    s_lshl_b32 s46, s43, 17
    s_lshl_b32 s45, s42, 12
    s_add_u32 s46, s46, s45
    s_add_u32 s46, s46, {OFF_KV}
    v_mov_b32 v10, {QSCALE:#x}
    """)
    for which in range(3):
        for b in range(4):
            acc = ACC + 4 * (which * 4 + b)
            t = 12 + 2 * (which * 4 + b)
            if which == 0:
                for i in range(4):
                    k(f"v_mul_f32 v{acc+i}, v10, v{acc+i}")
            k(f"v_cvt_pk_bf16_f32 v{t}, v{acc}, v{acc+1}")
            k(f"v_cvt_pk_bf16_f32 v{t+1}, v{acc+2}, v{acc+3}")
            if which == 0:
                k(f"buffer_store_dwordx2 v[{t}:{t+1}], v8, s[24:27], s44 offen offset:{(b>>1)*1024+(b&1)*256}")
            elif which == 1:
                k(f"buffer_store_dwordx2 v[{t}:{t+1}], v8, s[24:27], s46 offen offset:{(b>>1)*2048+(b&1)*256}")
            else:
                k(f"buffer_store_dwordx2 v[{t}:{t+1}], v9, s[24:27], s46 offen offset:{(b>>1)*2048+1024+(b&1)*512}")
    epilogue(k)
    return k, (256, 256, 65536)


def k2():
    k = Kern("k2_attn_kernel", nvgpr=112)
    prologue(k, 256)
    Q, KF, VF, S, P, O, C = 8, 12, 20, 36, 68, 76, 92
    k(f"""
    s_and_b32 s40, s2, 7
    s_lshr_b32 s41, s2, 3
    s_lshl_b32 s40, s40, 2
    s_and_b32 s42, s41, 3
    s_add_u32 s40, s40, s42        ; head
    s_lshr_b32 s41, s41, 2         ; qblock256
    s_lshl_b32 s41, s41, 3
    s_add_u32 s41, s41, s3         ; qblock32
    v_lshlrev_b32 v2, 4, v1        ; lane*16
    s_lshl_b32 s42, s40, 16
    s_lshl_b32 s43, s41, 10
    s_add_u32 s42, s42, s43
    s_add_u32 s42, s42, {OFF_Q}
    s_lshl_b32 s44, s40, 17
    s_lshl_b32 s45, s3, 10
    s_add_u32 s44, s44, s45
    s_add_u32 s44, s44, {OFF_KV}
    s_lshl_b32 s46, s41, 15
    s_lshl_b32 s47, s40, 10
    s_add_u32 s46, s46, s47
    s_add_u32 s46, s46, {OFF_O}
    """)
    prologue_wait(k)
    k(f"buffer_load_dwordx4 v[{Q}:{Q+3}], v2, s[24:27], s42 offen")
    for i in range(16):
        k(f"s_add_u32 m0, s45, {i*8192}")
        if i:
            k("s_add_u32 s44, s44, 8192")
        else:
            k("s_nop 0")
        k("buffer_load_dwordx4 v2, s[24:27], s44 offen lds")
    k(f"""
    v_and_b32 v3, 15, v1
    v_lshlrev_b32 v3, 4, v3
    v_lshrrev_b32 v4, 5, v1
    v_lshl_add_u32 v3, v4, 8, v3
    s_mov_b32 s48, 0x0000ffff
    s_mov_b32 s49, 0x0000ffff
    s_mov_b32 s52, 0
    """)
    for i in range(16):
        k(f"v_mov_b32 v{VF+i}, 0x3f803f80")
    stamp(k, 1)
    k("s_waitcnt vmcnt(15)")
    k("s_barrier")
    stamp(k, 2)
    k(f"""
    ds_read_b128 v[{KF}:{KF+3}], v2
    s_waitcnt lgkmcnt(0)
    v_mfma_f32_32x32x16_bf16 v[{S}:{S+15}], v[{KF}:{KF+3}], v[{Q}:{Q+3}], 0
    s_nop 15
    """)
    def max16(dst, b, first):
        if first:
            k(f"v_max3_f32 v{dst}, v{b}, v{b+1}, v{b+2}")
            k(f"v_max_f32 v{dst}, v{dst}, v{b+3}")
        else:
            k(f"v_max3_f32 v{dst}, v{dst}, v{b}, v{b+1}")
            k(f"v_max3_f32 v{dst}, v{dst}, v{b+2}, v{b+3}")
        for i in range(4, 16, 2):
            k(f"v_max3_f32 v{dst}, v{dst}, v{b+i}, v{b+i+1}")
    max16(5, S, True)
    k.label("L_k2_setmax")
    k("""
    v_mov_b32 v6, v5
    s_nop 1
    v_permlane32_swap_b32 v6, v5
    v_max_f32 v5, v5, v6
    v_sub_f32 v5, 0, v5
    """)
    for i in range(16):
        k(f"v_mov_b32 v{C+i}, v5")
    for i in range(16):
        k(f"v_mov_b32 v{O+i}, 0")
    stamp(k, 3)
    k(f"""
    v_mov_b32 v6, v2
    v_mov_b32 v7, v3
    ds_read_b128 v[{KF}:{KF+3}], v6
    ds_read_b128 v[{KF+4}:{KF+7}], v6 offset:2048
    s_mov_b64 exec, s[48:49]
    ds_read_b128 v[{VF}:{VF+3}], v7 offset:1024
    ds_read_b128 v[{VF+4}:{VF+7}], v7 offset:1536
    s_mov_b64 exec, -1
    s_waitcnt lgkmcnt(3)
    v_mfma_f32_32x32x16_bf16 v[{S}:{S+15}], v[{KF}:{KF+3}], v[{Q}:{Q+3}], v[{C}:{C+15}]
    s_mov_b32 s50, 0
    s_nop 7
    """)
    k.label("L_k2_loop")
    k(f"""
    s_cmp_lg_u32 s52, 0
    s_cbranch_scc1 L_k2_nobar
    s_cmp_eq_u32 s50, 0
    s_cbranch_scc0 L_k2_b2
    s_waitcnt vmcnt(12)
    s_barrier
    s_branch L_k2_nobar
    """)
    k.label("L_k2_b2")
    k(f"""
    s_cmp_eq_u32 s50, 3
    s_cbranch_scc0 L_k2_nobar
    s_waitcnt vmcnt(0)
    s_barrier
    """)
    k.label("L_k2_nobar")
    for u in range(4):
        cur, nxt = u & 1, (u + 1) & 1
        Sc, Sn = S + 16 * cur, S + 16 * nxt
        Kn = KF + 4 * nxt
        Kc = KF + 4 * cur
        Vc, Vn = VF + 8 * cur, VF + 8 * nxt
        k("s_waitcnt lgkmcnt(2)")
        k(f"v_mfma_f32_32x32x16_bf16 v[{Sn}:{Sn+15}], v[{Kn}:{Kn+3}], v[{Q}:{Q+3}], v[{C}:{C+15}]")
        k(f"ds_read_b128 v[{Kc}:{Kc+3}], v6 offset:{(u+2)*2048}")
        k("s_mov_b64 exec, s[48:49]")
        k(f"ds_read_b128 v[{Vn}:{Vn+3}], v7 offset:{(u+1)*2048+1024}")
        k(f"ds_read_b128 v[{Vn+4}:{Vn+7}], v7 offset:{(u+1)*2048+1536}")
        k("s_mov_b64 exec, -1")
        for half in range(2):
            b = Sc + 8 * half
            for i in range(8):
                k(f"v_exp_f32 v{b+i}, v{b+i}")
                if i >= 3 and i % 2 == 1:
                    j = (i - 3) // 2
                    k(f"v_cvt_pk_bf16_f32 v{P+4*half+j}, v{b+2*j}, v{b+2*j+1}")
            if half == 0:
                k("s_waitcnt lgkmcnt(3)")
            else:
                k("s_nop 0")
            k(f"v_cvt_pk_bf16_f32 v{P+4*half+3}, v{b+6}, v{b+7}")
            if half == 1 and u == 3:
                k("v_add_u32 v6, 0x2000, v6")
                k("v_add_u32 v7, 0x2000, v7")
            else:
                k("s_nop 1")
            k(f"v_mfma_f32_32x32x16_bf16 v[{O}:{O+15}], v[{Vc+4*half}:{Vc+4*half+3}], v[{P+4*half}:{P+4*half+3}], v[{O}:{O+15}]")
    k(f"""
    s_add_u32 s50, s50, 1
    s_cmp_lt_u32 s50, 16
    s_cbranch_scc1 L_k2_loop
    s_waitcnt lgkmcnt(0)
    s_nop 15
    """)
    stamp(k, 4)
    k(f"""
    s_mov_b32 s53, 0x53800000
    v_cmp_nge_f32 vcc, s53, v{O+8}
    s_cmp_lg_u32 s52, 0
    s_cbranch_scc1 L_k2_fin
    s_nop 3
    s_cmp_eq_u64 vcc, 0
    s_cbranch_scc1 L_k2_fin
    """)
    k(f"""
    s_mov_b32 s52, 1
    s_mov_b32 s50, 0
    v_mov_b32 v6, v2
    v_mov_b32 v5, 0xff800000
    """)
    k.label("L_k2_maxloop")
    k(f"""
    ds_read_b128 v[{KF}:{KF+3}], v6
    v_add_u32 v6, 0x800, v6
    s_waitcnt lgkmcnt(0)
    v_mfma_f32_32x32x16_bf16 v[{S}:{S+15}], v[{KF}:{KF+3}], v[{Q}:{Q+3}], 0
    s_nop 15
    """)
    max16(5, S, False)
    k(f"""
    s_add_u32 s50, s50, 1
    s_cmp_lt_u32 s50, 64
    s_cbranch_scc1 L_k2_maxloop
    s_branch L_k2_setmax
    """)
    k.label("L_k2_fin")
    k(f"v_rcp_f32 v5, v{O+8}")
    k("s_nop 0")
    for i in range(8):
        k(f"v_mul_f32 v{O+i}, v5, v{O+i}")
    for i in range(4):
        k(f"v_cvt_pk_bf16_f32 v{P+i}, v{O+2*i}, v{O+2*i+1}")
    k(f"buffer_store_dwordx4 v[{P}:{P+3}], v2, s[24:27], s46 offen")
    epilogue(k)
    return k, (256, 512, 131072 + 4096 + 1024)


ATT = dict(Q=8, KF=16, VF=20, S=36, P=68, O=76, C=108)


def att_unit(k, u, side, last=False):
    Q, KF, VF, S, P, O, C = (ATT[x] for x in ("Q", "KF", "VF", "S", "P", "O", "C"))
    blk = u & 1
    t = u >> 1
    Sc, Sp = S + 16 * blk, S + 16 * (blk ^ 1)
    def E(i): return f"v_exp_f32 v{Sc+i}, v{Sc+i}"
    def Cv(j, base=None):
        b = Sc if base is None else base
        if os.environ.get("PROBE") == "perm":
            return f"v_perm_b32 v{P+j}, v{b+2*j+1}, v{b+2*j}, s100"
        return f"v_cvt_pk_bf16_f32 v{P+j}, v{b+2*j}, v{b+2*j+1}"
    def PV(uu, half):
        o = O + 16 * (uu & 1)
        v = VF + 8 * ((uu >> 1) & 1) + 4 * half
        c = "0" if (uu < 2 and half == 0) else f"v[{o}:{o+15}]"
        if os.environ.get("PROBE") == "swap":
            return f"v_mfma_f32_32x32x16_bf16 v[{o}:{o+15}], v[{P+4*half}:{P+4*half+3}], v[{v}:{v+3}], {c}"
        if os.environ.get("PROBE") == "nopv":
            return "s_nop 0"
        if os.environ.get("PROBE") == "pv16":
            return f"v_mfma_f32_16x16x32_bf16 v[{o+4*half}:{o+4*half+3}], v[{KF}:{KF+3}], v[{P+4*half}:{P+4*half+3}], v[{o+4*half}:{o+4*half+3}]"
        return f"v_mfma_f32_32x32x16_bf16 v[{o}:{o+15}], v[{v}:{v+3}], v[{P+4*half}:{P+4*half+3}], {c}"
    def QK(uu):
        b = uu & 1
        return f"v_mfma_f32_32x32x16_bf16 v[{S+16*b}:{S+16*b+15}], v[{KF}:{KF+3}], v[{Q+4*b}:{Q+4*b+3}], v[{C+16*b}:{C+16*b+15}]"
    order = os.environ.get("ORDER", "EECECEMECEECEMECEECEMECEECE")
    seq = []
    ei, ci, mi = 0, -1, 0
    mpos = []
    for ch in order:
        if ch == "E":
            seq.append(E(ei)); ei += 1
        elif ch == "C":
            seq.append((Cv(7, Sp) if u > 0 else None) if ci < 0 else Cv(ci)); ci += 1
        else:
            seq.append([PV(u - 1, 1) if u > 0 else None, QK(u + 1) if not last else None, PV(u, 0)][mi]); mi += 1
            mpos.append(len(seq))
    remap = {7: mpos[0], 14: mpos[1], 21: mpos[2], 6: mpos[0] - 1, 13: mpos[1] - 1, 20: mpos[2] - 1}
    first, other = {}, {}
    for key in sorted(side):
        (first if key in (7, 14, 21) else other).setdefault(remap.get(key, key), []).extend(side[key])
    for i, ins in enumerate(seq, 1):
        if ins:
            k(ins)
        for x in first.get(i, []) + other.get(i, []):
            k(x)


def att_max16(k, dst, b, first):
    if first:
        k(f"v_max3_f32 v{dst}, v{b}, v{b+1}, v{b+2}")
        k(f"v_max_f32 v{dst}, v{dst}, v{b+3}")
    else:
        k(f"v_max3_f32 v{dst}, v{dst}, v{b}, v{b+1}")
        k(f"v_max3_f32 v{dst}, v{dst}, v{b+2}, v{b+3}")
    for i in range(4, 16, 2):
        k(f"v_max3_f32 v{dst}, v{dst}, v{b+i}, v{b+i+1}")


def k2b():
    k = Kern("k2_attn_kernel", nvgpr=144)
    prologue(k, 256)
    Q, KF, VF, S, P, O, C = (ATT[x] for x in ("Q", "KF", "VF", "S", "P", "O", "C"))
    k(f"""
    s_and_b32 s40, s2, 7
    s_lshr_b32 s41, s2, 3
    s_lshl_b32 s40, s40, 2
    s_and_b32 s42, s41, 3
    s_add_u32 s40, s40, s42        ; head
    s_lshr_b32 s41, s41, 2         ; qblock256
    s_lshl_b32 s41, s41, 2
    s_add_u32 s41, s41, s3         ; qblock64
    v_lshlrev_b32 v2, 4, v1        ; lane*16
    s_lshl_b32 s42, s40, 16
    s_lshl_b32 s43, s41, 11
    s_add_u32 s42, s42, s43
    s_add_u32 s42, s42, {OFF_Q}
    s_lshl_b32 s44, s40, 17
    s_lshl_b32 s45, s3, 10
    s_add_u32 s47, s44, {OFF_KV}
    s_add_u32 s44, s47, s45
    s_lshl_b32 s46, s41, 16
    s_lshl_b32 s43, s40, 10
    s_add_u32 s46, s46, s43
    s_add_u32 s46, s46, {OFF_O}
    s_mov_b32 m0, s45
    """)
    prologue_wait(k)
    rounds = [0]
    def dma():
        i = rounds[0]; rounds[0] += 1
        out = []
        if i:
            out += ["s_add_u32 m0, m0, 4096", "s_add_u32 s44, s44, 4096"]
        out += ["buffer_load_dwordx4 v2, s[24:27], s44 offen lds"]
        return out
    for x in dma(): k(x)
    k(f"buffer_load_dwordx4 v[{Q}:{Q+3}], v2, s[24:27], s42 offen")
    k(f"buffer_load_dwordx4 v[{Q+4}:{Q+7}], v2, s[24:27], s42 offen offset:1024")
    for r in range(3):
        for x in dma(): k(x)
    k(f"""
    v_and_b32 v3, 15, v1
    v_lshlrev_b32 v3, 4, v3
    v_lshrrev_b32 v4, 5, v1
    v_lshl_add_u32 v3, v4, 8, v3
    v_add_u32 v4, 0x10000, v2
    v_add_u32 v5, 0x10000, v3
    s_mov_b32 s48, 0x0000ffff
    s_mov_b32 s49, 0x0000ffff
    v_and_b32 v6, 27, v1
    v_cmp_eq_u32 vcc, 16, v6
    v_mov_b32 v7, 0x3f803f80
    s_nop 0
    v_cndmask_b32 v7, 0, v7, vcc
    """)
    for i in range(16):
        k(f"v_mov_b32 v{VF+i}, v7")
    stamp(k, 1)
    k("s_waitcnt vmcnt(3)")
    k("s_barrier")
    stamp(k, 2)
    def kread(t):
        off = t * 2048
        return f"ds_read_b128 v[{KF}:{KF+3}], v{2 if off < 65536 else 4} offset:{off & 0xffff}"
    def vread(t):
        off = t * 2048 + 1024
        b = VF + 8 * (t & 1)
        a = 3 if off < 65536 else 5
        return ["s_mov_b64 exec, s[48:49]",
                f"ds_read_b128 v[{b}:{b+3}], v{a} offset:{off & 0xffff}",
                f"ds_read_b128 v[{b+4}:{b+7}], v{a} offset:{(off+512) & 0xffff}",
                "s_mov_b64 exec, -1"]
    k(kread(0))
    for x in vread(0): k(x)
    k(f"""
    s_waitcnt lgkmcnt(2)
    v_mfma_f32_32x32x16_bf16 v[{S}:{S+15}], v[{KF}:{KF+3}], v[{Q}:{Q+3}], 0
    v_mfma_f32_32x32x16_bf16 v[{S+16}:{S+31}], v[{KF}:{KF+3}], v[{Q+4}:{Q+7}], 0
    s_nop 10
    """)
    att_max16(k, 6, S, True)
    att_max16(k, 7, S + 16, True)
    k("""
    s_nop 1
    v_permlane32_swap_b32 v6, v7
    v_max_f32 v6, v6, v7
    v_mov_b32 v7, v6
    s_nop 1
    v_permlane32_swap_b32 v6, v7
    v_sub_f32 v6, 0, v6
    v_sub_f32 v7, 0, v7
    """)
    for i in range(16):
        k(f"v_mov_b32 v{C+i}, v6")
    k("s_nop 0")
    k(f"v_mov_b32 v{C+16}, v7")
    k(f"v_mfma_f32_32x32x16_bf16 v[{S}:{S+15}], v[{KF}:{KF+3}], v[{Q}:{Q+3}], v[{C}:{C+15}]")
    for i in range(1, 16):
        k(f"v_mov_b32 v{C+16+i}, v7")
    stamp(k, 3)
    ROLL = int(os.environ.get("ROLL", "4"))
    NUNR = 16 if ROLL else 64
    for u in range(2 * NUNR):
        t = u >> 1
        side = {}
        if u % 2 == 0 and t < 63:
            pre = []
            if u == 2:
                pre = [f"s_waitcnt vmcnt({rounds[0]-4})", "s_barrier"]
            elif u == 14:
                pre = [f"s_waitcnt vmcnt({rounds[0]-12})", "s_barrier"]
            elif u == 46:
                pre = ["s_waitcnt vmcnt(0)", "s_barrier"]
            side[14] = pre + [kread(t + 1)]
            vr = vread(t + 1)
            side[15] = vr
        if u % 2 == 1 or u == 0:
            side[-14] = ["s_waitcnt lgkmcnt(0)"]
        if rounds[0] < 32:
            d = dma()
            side[1] = d[:2]
            side[2] = d[2:]
        att_unit(k, u, side, last=(u == 127))
    if ROLL:
        k(f"""
        v_add_u32 v4, {NUNR*2048}, v2
        v_add_u32 v5, {NUNR*2048}, v3
        s_mov_b32 s50, {(64-NUNR)//ROLL}
        s_waitcnt vmcnt(0)
        s_barrier
        """)
        k(".p2align 6")
        k.label("L_k2_roll")
        for uu in range(2 * ROLL):
            u = 2 * NUNR + uu
            tt = uu >> 1
            side = {}
            if uu % 2 == 0:
                b = VF + 8 * ((tt + 1) & 1)
                off = (tt + 1) * 2048
                side[14] = [f"ds_read_b128 v[{KF}:{KF+3}], v4 offset:{off}"]
                side[15] = ["s_mov_b64 exec, s[48:49]",
                            f"ds_read_b128 v[{b}:{b+3}], v5 offset:{off+1024}",
                            f"ds_read_b128 v[{b+4}:{b+7}], v5 offset:{off+1536}",
                            "s_mov_b64 exec, -1"]
            else:
                side[-14] = ["s_waitcnt lgkmcnt(0)"]
            if uu == 2 * ROLL - 1:
                side[1] = [f"v_add_u32 v4, {ROLL*2048}, v4"]
                side[4] = [f"v_add_u32 v5, {ROLL*2048}, v5"]
                side[24] = ["s_sub_u32 s50, s50, 1"]
                side[25] = ["s_cmp_lg_u32 s50, 0"]
            att_unit(k, u, side)
        k("s_cbranch_scc1 L_k2_roll")
    k(f"""
    s_nop 0
    v_cvt_pk_bf16_f32 v{P+7}, v{S+30}, v{S+31}
    s_nop 1
    v_mfma_f32_32x32x16_bf16 v[{O+16}:{O+31}], v[{VF+12}:{VF+15}], v[{P+4}:{P+7}], v[{O+16}:{O+31}]
    s_mov_b32 s53, 0x53800000
    s_nop 10
    """)
    stamp(k, 4)
    k(f"""
    v_max_f32 v6, v{O+8}, v{O+24}
    v_cmp_nge_f32 vcc, s53, v{O+8}
    v_cmp_nge_f32 s[50:51], s53, v{O+24}
    s_nop 3
    s_or_b64 vcc, vcc, s[50:51]
    s_cbranch_scc0 L_k2_fin
    """)
    k(f"""
    s_mov_b32 s50, 0
    s_mov_b32 s51, s47
    v_mov_b32 v6, 0xff800000
    v_mov_b32 v7, 0xff800000
    """)
    k.label("L_k2_maxloop")
    k(f"""
    buffer_load_dwordx4 v[{KF}:{KF+3}], v2, s[24:27], s51 offen sc1
    s_add_u32 s51, s51, 2048
    s_waitcnt vmcnt(0)
    v_mfma_f32_32x32x16_bf16 v[{S}:{S+15}], v[{KF}:{KF+3}], v[{Q}:{Q+3}], 0
    v_mfma_f32_32x32x16_bf16 v[{S+16}:{S+31}], v[{KF}:{KF+3}], v[{Q+4}:{Q+7}], 0
    s_nop 10
    """)
    att_max16(k, 6, S, False)
    att_max16(k, 7, S + 16, False)
    k(f"""
    s_add_u32 s50, s50, 1
    s_cmp_lt_u32 s50, 64
    s_cbranch_scc1 L_k2_maxloop
    s_nop 0
    v_permlane32_swap_b32 v6, v7
    v_max_f32 v6, v6, v7
    v_mov_b32 v7, v6
    s_nop 1
    v_permlane32_swap_b32 v6, v7
    v_sub_f32 v6, 0, v6
    v_sub_f32 v7, 0, v7
    """)
    for i in range(16):
        k(f"v_mov_b32 v{C+i}, v6")
        k(f"v_mov_b32 v{C+16+i}, v7")
        k(f"v_mov_b32 v{O+i}, 0")
        k(f"v_mov_b32 v{O+16+i}, 0")
    k("s_mov_b32 s50, 0")
    k("s_mov_b32 s51, s47")
    k.label("L_k2_redo")
    k(f"""
    buffer_load_dwordx4 v[{KF}:{KF+3}], v2, s[24:27], s51 offen sc1
    s_mov_b64 exec, s[48:49]
    buffer_load_dwordx4 v[{VF}:{VF+3}], v3, s[24:27], s51 offen offset:1024 sc1
    buffer_load_dwordx4 v[{VF+4}:{VF+7}], v3, s[24:27], s51 offen offset:1536 sc1
    s_mov_b64 exec, -1
    s_add_u32 s51, s51, 2048
    s_waitcnt vmcnt(0)
    v_mfma_f32_32x32x16_bf16 v[{S}:{S+15}], v[{KF}:{KF+3}], v[{Q}:{Q+3}], v[{C}:{C+15}]
    v_mfma_f32_32x32x16_bf16 v[{S+16}:{S+31}], v[{KF}:{KF+3}], v[{Q+4}:{Q+7}], v[{C+16}:{C+31}]
    s_nop 10
    """)
    for b in range(2):
        for i in range(16):
            k(f"v_exp_f32 v{S+16*b+i}, v{S+16*b+i}")
        k("s_nop 0")
        for j in range(8):
            k(f"v_cvt_pk_bf16_f32 v{P+j}, v{S+16*b+2*j}, v{S+16*b+2*j+1}")
        k("s_nop 1")
        for h in range(2):
            k(f"v_mfma_f32_32x32x16_bf16 v[{O+16*b}:{O+16*b+15}], v[{VF+4*h}:{VF+4*h+3}], v[{P+4*h}:{P+4*h+3}], v[{O+16*b}:{O+16*b+15}]")
    k(f"""
    s_add_u32 s50, s50, 1
    s_cmp_lt_u32 s50, 64
    s_cbranch_scc1 L_k2_redo
    s_nop 10
    """)
    k.label("L_k2_fin")
    k(f"v_rcp_f32 v6, v{O+8}")
    k(f"v_rcp_f32 v7, v{O+24}")
    for b in range(2):
        for i in range(8):
            k(f"v_mul_f32 v{O+16*b+i}, v{6+b}, v{O+16*b+i}")
        for i in range(4):
            k(f"v_cvt_pk_bf16_f32 v{P+4*b+i}, v{O+16*b+2*i}, v{O+16*b+2*i+1}")
        if b:
            k("s_add_u32 s46, s46, 32768")
        k(f"buffer_store_dwordx4 v[{P+4*b}:{P+4*b+3}], v2, s[24:27], s46 offen")
    epilogue(k)
    return k, (256, 256, 131072 + 2048)


def splitk_gemm(k, nks, offA, offB, depth_steps, RB, ACC):
    n = nks // 4
    k(f"""
    s_lshr_b32 s44, s3, 1
    s_and_b32 s45, s3, 1
    s_lshl_b32 s46, s43, 1
    s_add_u32 s47, s46, s44
    s_xor_b32 s48, s47, 1          ; other
    s_lshl_b32 s46, s42, 1
    s_add_u32 s49, s46, s45
    s_xor_b32 s50, s49, 1
    s_mul_i32 s46, s3, {n*1024}
    s_mul_i32 s52, s47, {nks*1024}
    s_mul_i32 s53, s48, {nks*1024}
    s_mul_i32 s54, s49, {nks*1024}
    s_mul_i32 s55, s50, {nks*1024}
    s_add_u32 s51, s46, {offA}
    s_add_u32 s52, s52, s51
    s_add_u32 s53, s53, s51
    s_add_u32 s51, s46, {offB}
    s_add_u32 s54, s54, s51
    s_add_u32 s55, s55, s51
    """)
    def load(s):
        r = RB + 16 * (s % depth_steps)
        if s and s % 4 == 0:
            for sr in (52, 53, 54, 55):
                k(f"s_add_u32 s{sr}, s{sr}, 4096")
        for i, sr in enumerate((52, 54, 53, 55)):
            k(f"buffer_load_dwordx4 v[{r+4*i}:{r+4*i+3}], v2, s[24:27], s{sr} offen offset:{(s%4)*1024}")
    return n, load


def splitk_main(k, n, load, depth_steps, RB, ACC, extra_after=0):
    issued = min(n, depth_steps)
    for s in range(n):
        later = (issued - 1 - s) * 4 + extra_after
        k(f"s_waitcnt vmcnt({min(63, later)})")
        r = RB + 16 * (s % depth_steps)
        A0, B0, A1, B1 = (f"v[{r+4*i}:{r+4*i+3}]" for i in range(4))
        for t, (a, b) in enumerate(((A0, B0), (A0, B1), (A1, B0), (A1, B1))):
            acc = ACC + 16 * t
            c = "0" if s == 0 else f"v[{acc}:{acc+15}]"
            k(f"v_mfma_f32_32x32x16_bf16 v[{acc}:{acc+15}], {a}, {b}, {c}")
        if issued < n:
            load(issued); issued += 1
            extra_after = 0


def splitk_reduce(k, ACC, TMP):
    k("s_nop 7")
    for t in (1, 2, 3):
        k(f"""
        s_xor_b32 s56, s3, {t}
        s_mul_i32 s56, s56, 12288
        s_add_u32 s56, s56, {(t-1)*4096}
        v_add_u32 v3, s56, v2
        """)
        for q in range(4):
            k(f"ds_write_b128 v3, v[{ACC+16*t+4*q}:{ACC+16*t+4*q+3}] offset:{q*1024}")
    k(f"""
    s_mul_i32 s56, s3, 12288
    v_add_u32 v3, s56, v2
    s_waitcnt lgkmcnt(0)
    s_barrier
    """)
    for i in range(12):
        k(f"ds_read_b128 v[{TMP+4*i}:{TMP+4*i+3}], v3 offset:{i*1024}")
    for sl in range(3):
        k(f"s_waitcnt lgkmcnt({8-4*sl})")
        for i in range(16):
            k(f"v_add_f32 v{ACC+i}, v{ACC+i}, v{TMP+16*sl+i}")


def map_4x8(k):
    k("""
    s_and_b32 s40, s2, 7
    s_lshr_b32 s41, s2, 3
    s_lshl_b32 s42, s40, 2
    s_and_b32 s43, s41, 3
    s_add_u32 s42, s42, s43        ; tb
    s_lshr_b32 s43, s41, 2         ; cb
    v_lshlrev_b32 v2, 4, v1
    """)


def k3():
    k = Kern("k3_wo_kernel", nvgpr=248)
    NUT = 28
    prologue(k, 256 + NUT)
    k("s_cmp_ge_u32 s2, 256")
    k("s_cbranch_scc1 L_k3_ut")
    RB, ACC = 8, 136
    G, CBV, X = 200, 216, 232
    map_4x8(k)
    n, load = splitk_gemm(k, 32, OFF_WO, OFF_O, 8, RB, ACC)
    prologue_wait(k)
    srd(k, 28, P_X, 2048 * 1024)
    for s in range(8):
        load(s)
    k(f"""
    v_lshrrev_b32 v4, 5, v1
    v_and_b32 v5, 31, v1
    v_lshlrev_b32 v6, 4, v4             ; h*16 bytes (4 f32)
    s_lshl_b32 s56, s47, 7
    s_add_u32 s57, s56, {OFF_MOD + 2*2048}
    s_add_u32 s58, s56, {OFF_MOD + 4*2048}
    v_lshlrev_b32 v7, 10, v5
    v_lshl_add_u32 v7, v4, 3, v7        ; tok*1024 + h*8
    s_lshl_b32 s59, s49, 15
    s_lshl_b32 s56, s47, 6
    s_add_u32 s59, s59, s56
    """)
    for j in range(4):
        k(f"buffer_load_dwordx4 v[{G+4*j}:{G+4*j+3}], v6, s[24:27], s57 offen offset:{32*j}")
        k(f"buffer_load_dwordx4 v[{CBV+4*j}:{CBV+4*j+3}], v6, s[24:27], s58 offen offset:{32*j}")
        k(f"buffer_load_dwordx2 v[{X+2*j}:{X+2*j+1}], v7, s[28:31], s59 offen offset:{16*j}")
    stamp(k, 1)
    splitk_main(k, n, load, 8, RB, ACC, extra_after=12)
    stamp(k, 2)
    splitk_reduce(k, ACC, 8)
    stamp(k, 3)
    k("s_waitcnt vmcnt(0)")
    T = 8
    for i in range(8):
        k(f"v_cvt_pk_bf16_f32 v{T+i}, v{ACC+2*i}, v{ACC+2*i+1}")
    for i in range(8):
        k(f"v_lshlrev_b32 v{ACC+2*i}, 16, v{T+i}")
        k(f"v_and_b32 v{ACC+2*i+1}, 0xffff0000, v{T+i}")
    for i in range(16):
        k(f"v_mul_f32 v{ACC+i}, v{G+i}, v{ACC+i}")
    for i in range(8):
        k(f"v_cvt_pk_bf16_f32 v{T+i}, v{ACC+2*i}, v{ACC+2*i+1}")
    for i in range(8):
        k(f"v_lshlrev_b32 v{ACC+2*i}, 16, v{T+i}")
        k(f"v_and_b32 v{ACC+2*i+1}, 0xffff0000, v{T+i}")
        k(f"v_lshlrev_b32 v{G+2*i}, 16, v{X+i}")
        k(f"v_and_b32 v{G+2*i+1}, 0xffff0000, v{X+i}")
    for i in range(16):
        k(f"v_add_f32 v{ACC+i}, v{G+i}, v{ACC+i}")
    for i in range(8):
        k(f"v_cvt_pk_bf16_f32 v{T+i}, v{ACC+2*i}, v{ACC+2*i+1}")
    k(f"""
    v_lshrrev_b32 v3, 4, v5
    v_lshlrev_b32 v3, 14, v3
    v_and_b32 v6, 15, v5
    v_lshl_add_u32 v3, v6, 4, v3
    v_lshl_add_u32 v3, v4, 8, v3
    s_lshl_b32 s56, s49, 15
    s_lshl_b32 s57, s47, 10
    s_add_u32 s56, s56, s57
    s_add_u32 s57, s56, {OFF_X2S}
    s_add_u32 s56, s56, {OFF_X2}
    buffer_store_dwordx4 v[{T}:{T+3}], v3, s[24:27], s56 offen
    buffer_store_dwordx4 v[{T+4}:{T+7}], v3, s[24:27], s56 offen offset:512
    """)
    for i in range(8):
        k(f"v_lshlrev_b32 v{ACC+2*i}, 16, v{T+i}")
        k(f"v_and_b32 v{ACC+2*i+1}, 0xffff0000, v{T+i}")
    k(f"v_add_f32 v24, v{ACC}, v{ACC+1}")
    k(f"v_mul_f32 v25, v{ACC}, v{ACC}")
    for i in range(1, 16):
        if i >= 2:
            k(f"v_add_f32 v24, v24, v{ACC+i}")
        k(f"v_fmac_f32 v25, v{ACC+i}, v{ACC+i}")
    for i in range(16):
        k(f"v_mul_f32 v{ACC+i}, v{CBV+i}, v{ACC+i}")
    for i in range(8):
        k(f"v_cvt_pk_bf16_f32 v{16+i}, v{ACC+2*i}, v{ACC+2*i+1}")
    k(f"""
    buffer_store_dwordx4 v[16:19], v3, s[24:27], s57 offen
    buffer_store_dwordx4 v[20:23], v3, s[24:27], s57 offen offset:512
    v_permlane32_swap_b32 v24, v25
    v_add_f32 v24, v24, v25
    v_lshlrev_b32 v3, 7, v5
    v_lshl_add_u32 v3, v4, 2, v3
    s_lshl_b32 s56, s49, 12
    s_lshl_b32 s57, s47, 3
    s_add_u32 s56, s56, s57
    s_add_u32 s56, s56, {OFF_ST2}
    buffer_store_dword v24, v3, s[24:27], s56 offen
    """)
    endpgm(k)
    k.label("L_k3_ut")
    k(f"""
    s_sub_u32 s40, s2, 256
    s_lshl_b32 s40, s40, 2
    s_add_u32 s40, s40, s3          ; nt
    s_mul_i32 s41, s40, 9363
    s_lshr_b32 s41, s41, 16
    s_mul_i32 s42, s41, 7
    s_sub_u32 s42, s40, s42         ; i
    s_mul_i32 s41, s41, {16*7}
    s_add_u32 s41, s41, s42
    s_lshl_b32 s41, s41, 10
    s_add_u32 s41, s41, {OFF_W1}
    v_lshlrev_b32 v2, 4, v1
    v_and_b32 v3, 15, v1            ; col
    v_lshrrev_b32 v4, 4, v1         ; g
    v_and_b32 v5, 1, v4
    v_lshrrev_b32 v6, 1, v4
    v_lshlrev_b32 v6, 6, v6
    v_lshl_add_u32 v6, v5, 4, v6    ; (16(g>>1) + 4(g&1))*4 bytes
    v_and_b32 v7, 1, v3
    v_sub_u32 v7, 4, v7
    v_lshl_add_u32 v6, v7, 11, v6
    """)
    prologue_wait(k)
    for s in range(16):
        k(f"buffer_load_dwordx4 v[{8+4*s}:{11+4*s}], v2, s[24:27], s41 offen")
        k(f"s_add_u32 s41, s41, 7168")
    for s in range(16):
        k(f"buffer_load_dwordx4 v[{72+8*s}:{75+8*s}], v6, s[24:27], 0 offen offset:{OFF_MOD+128*s}")
        k(f"buffer_load_dwordx4 v[{76+8*s}:{79+8*s}], v6, s[24:27], 0 offen offset:{OFF_MOD+128*s+32}")
    k("s_waitcnt vmcnt(0)")
    for s in range(16):
        b = 72 + 8 * s
        for i in range(4):
            k(f"v_cvt_pk_bf16_f32 v{b+i}, v{b+2*i}, v{b+2*i+1}")
    k("s_nop 1")
    for s in range(16):
        b = 72 + 8 * s
        c = "0" if s == 0 else "v[200:203]"
        k(f"v_mfma_f32_16x16x32_bf16 v[200:203], v[{8+4*s}:{11+4*s}], v[{b}:{b+3}], {c}")
    k(f"""
    v_lshlrev_b32 v5, 4, v4
    v_lshl_add_u32 v5, v3, 6, v5
    v_cmp_gt_u32 vcc, 2, v3
    s_lshl_b32 s40, s40, 7
    s_add_u32 s40, s40, {OFF_UT}
    s_nop 7
    s_and_saveexec_b64 s[44:45], vcc
    buffer_store_dwordx4 v[200:203], v5, s[24:27], s40 offen
    """)
    epilogue(k)
    return k, (256 + NUT, 256, 49152)


def k4():
    k = Kern("k4_ffn1_kernel", nvgpr=200, nagpr=128)
    prologue(k, 256)
    ACC = 8
    WF = 64
    UT = 120
    ST = 176
    k(f"""
    s_and_b32 s40, s2, 7
    s_lshr_b32 s41, s2, 3
    s_lshr_b32 s42, s40, 1
    s_lshl_b32 s42, s42, 2
    s_and_b32 s43, s41, 3
    s_add_u32 s42, s42, s43
    s_and_b32 s43, s40, 1
    s_lshl_b32 s43, s43, 3
    s_lshr_b32 s44, s41, 2
    s_add_u32 s43, s43, s44
    v_lshlrev_b32 v2, 4, v1
    s_lshl_b32 s44, s42, 2
    s_add_u32 s44, s44, s3
    s_lshl_b32 s45, s44, 15
    s_add_u32 s45, s45, {OFF_X2S}
    s_add_u32 s46, s45, 16384
    s_mul_i32 s47, s43, {112*1024}
    s_lshl_b32 s48, s3, 10
    s_add_u32 s47, s47, s48
    s_add_u32 s47, s47, {OFF_W1}
    v_and_b32 v3, 15, v1
    v_lshrrev_b32 v4, 4, v1
    v_lshlrev_b32 v5, 7, v3
    v_lshl_add_u32 v5, v4, 5, v5
    s_lshl_b32 s49, s44, 12
    s_add_u32 s49, s49, {OFF_ST2}
    v_lshlrev_b32 v6, 4, v4          ; g*16
    s_mul_i32 s50, s43, {7*128}
    s_add_u32 s50, s50, {OFF_UT}
    """)
    prologue_wait(k)
    for j in range(2):
        k(f"buffer_load_dwordx4 v[{ST+8*j}:{ST+8*j+3}], v5, s[24:27], s49 offen offset:{2048*j}")
        k(f"buffer_load_dwordx4 v[{ST+8*j+4}:{ST+8*j+7}], v5, s[24:27], s49 offen offset:{2048*j+16}")
    for i in range(7):
        k(f"buffer_load_dwordx4 v[{UT+8*i}:{UT+8*i+3}], v6, s[24:27], s50 offen offset:{128*i}")
        k(f"buffer_load_dwordx4 v[{UT+8*i+4}:{UT+8*i+7}], v6, s[24:27], s50 offen offset:{128*i+64}")
    def group(gi):
        for i in range(7):
            idx = gi * 7 + i
            k(f"s_add_u32 m0, s48, {idx*4096}")
            if idx:
                k("s_add_u32 s47, s47, 4096")
            else:
                k("s_nop 0")
            k("buffer_load_dwordx4 v2, s[24:27], s47 offen lds")
        if gi:
            k("s_add_u32 s45, s45, 4096")
            k("s_add_u32 s46, s46, 4096")
        for s in range(4):
            ks = gi * 4 + s
            k(f"buffer_load_dwordx4 a[{8*ks}:{8*ks+3}], v2, s[24:27], s45 offen offset:{s*1024}")
            k(f"buffer_load_dwordx4 a[{8*ks+4}:{8*ks+7}], v2, s[24:27], s46 offen offset:{s*1024}")
    for gi in range(3):
        group(gi)
    stamp(k, 1)
    k("s_waitcnt vmcnt(59)")
    stamp(k, 2)
    for j in range(2):
        b = ST + 8 * j
        k(f"v_add_f32 v{b}, v{b}, v{b+2}")
        k(f"v_add_f32 v{b+1}, v{b+1}, v{b+3}")
        k(f"v_add_f32 v{b+4}, v{b+4}, v{b+6}")
        k(f"v_add_f32 v{b+5}, v{b+5}, v{b+7}")
        k(f"v_add_f32 v{b}, v{b}, v{b+4}")
        k(f"v_add_f32 v{b+1}, v{b+1}, v{b+5}")
    regs = [ST, ST + 1, ST + 8, ST + 9]
    tmp = [ST + 2, ST + 3, ST + 10, ST + 11]
    for op in ("v_permlane16_swap_b32", "v_permlane32_swap_b32"):
        for r, t in zip(regs, tmp):
            k(f"v_mov_b32 v{t}, v{r}")
        k("s_nop 1")
        for r, t in zip(regs, tmp):
            k(f"{op} v{t}, v{r}")
        for r, t in zip(regs, tmp):
            k(f"v_add_f32 v{r}, v{t}, v{r}")
    for j in range(2):
        b = ST + 8 * j
        ln_stats_finish(k, b, b + 1, b + 4, b + 5, None, std_out=b + 6)
    group(3)
    k(f"""
    s_cmp_lg_u32 s43, 0
    s_cbranch_scc1 L_k4_nor
    v_lshlrev_b32 v7, 2, v3
    s_lshl_b32 s51, s44, 7
    s_add_u32 s51, s51, {OFF_R2}
    buffer_store_dword v{ST+5}, v7, s[24:27], s51 offen
    buffer_store_dword v{ST+13}, v7, s[24:27], s51 offen offset:64
    s_waitcnt vmcnt(0)
    """)
    k.label("L_k4_nor")
    k("s_waitcnt vmcnt(60)")
    for j in range(2):
        b = ST + 8 * j
        for i in range(7):
            for r in range(4):
                a = ACC + 4 * (j * 7 + i) + r
                k(f"v_mul_f32 v{a}, v{UT+8*i+4+r}, v{b+6}")
        for i in range(7):
            for r in range(4):
                a = ACC + 4 * (j * 7 + i) + r
                k(f"v_fma_f32 v{a}, -v{b+4}, v{UT+8*i+r}, v{a}")
    def wread(s):
        f = WF + 28 * (s & 1)
        for i in range(7):
            off = (s * 7 + i) * 1024
            base = "v2" if off < 65536 else "v7"
            k(f"ds_read_b128 v[{f+4*i}:{f+4*i+3}], {base} offset:{off & 0xffff}")
    k("v_add_u32 v7, 0x10000, v2")
    stamp(k, 3)
    for gi in range(4):
        k(f"s_waitcnt vmcnt({15*(3-gi)})")
        k("s_barrier")
        stamp(k, 4 + gi)
        for s4 in range(4):
            s = gi * 4 + s4
            if s4 == 0:
                wread(s)
            if s4 < 3:
                wread(s + 1)
                k("s_waitcnt lgkmcnt(7)")
            else:
                k("s_waitcnt lgkmcnt(0)")
            f = WF + 28 * (s & 1)
            for i in range(7):
                for j in range(2):
                    a = ACC + 4 * (j * 7 + i)
                    k(f"v_mfma_f32_16x16x32_bf16 v[{a}:{a+3}], v[{f+4*i}:{f+4*i+3}], a[{8*s+4*j}:{8*s+4*j+3}], v[{a}:{a+3}]")
    stamp(k, 8)
    k(f"""
    v_and_b32 v5, 1, v4
    v_lshrrev_b32 v6, 1, v4
    v_lshlrev_b32 v7, 4, v3
    v_lshl_add_u32 v7, v6, 9, v7
    v_lshl_add_u32 v7, v5, 3, v7
    s_mul_i32 s45, s44, {112*1024}
    s_mul_i32 s46, s43, {7*1024}
    s_add_u32 s45, s45, s46
    s_add_u32 s45, s45, {OFF_H}
    s_add_u32 s46, s45, 4096
    """)
    for i in range(7):
        for j in range(2):
            a = ACC + 4 * (j * 7 + i)
            t = WF + 2 * (i * 2 + j)
            k(f"v_cvt_pk_bf16_f32 v{t}, v{a}, v{a+1}")
            k(f"v_cvt_pk_bf16_f32 v{t+1}, v{a+2}, v{a+3}")
            k(f"v_pk_max_i16 v{t}, v{t}, 0")
            k(f"v_pk_max_i16 v{t+1}, v{t+1}, 0")
            sr = 45 if i < 4 else 46
            k(f"buffer_store_dwordx2 v[{t}:{t+1}], v7, s[24:27], s{sr} offen offset:{(i%4)*1024+j*256}")
    epilogue(k)
    return k, (256, 256, 112 * 1024)


def k5():
    k = Kern("k5_ffn2_kernel", nvgpr=256, nagpr=64)
    prologue(k, 256)
    DEPTH = 13
    RB = 8
    G, X2, R = 216, 232, 240
    map_4x8(k)
    n, load = splitk_gemm(k, 112, OFF_W2, OFF_H, DEPTH, RB, None)
    prologue_wait(k)
    srd(k, 28, P_OUT, 2048 * 1024)
    k(f"""
    v_lshrrev_b32 v4, 5, v1
    v_and_b32 v5, 31, v1
    v_lshlrev_b32 v6, 4, v4
    s_lshl_b32 s56, s47, 7
    s_add_u32 s57, s56, {OFF_MOD + 5*2048}
    v_lshrrev_b32 v3, 4, v5
    v_lshlrev_b32 v3, 14, v3
    v_and_b32 v7, 15, v5
    v_lshl_add_u32 v3, v7, 4, v3
    v_lshl_add_u32 v3, v4, 8, v3
    s_lshl_b32 s58, s49, 15
    s_lshl_b32 s59, s47, 10
    s_add_u32 s58, s58, s59
    s_add_u32 s58, s58, {OFF_X2}
    v_lshlrev_b32 v7, 2, v5
    s_lshl_b32 s59, s49, 7
    s_add_u32 s59, s59, {OFF_R2}
    """)
    for j in range(4):
        k(f"buffer_load_dwordx4 v[{G+4*j}:{G+4*j+3}], v6, s[24:27], s57 offen offset:{32*j}")
    k(f"buffer_load_dwordx4 v[{X2}:{X2+3}], v3, s[24:27], s58 offen")
    k(f"buffer_load_dwordx4 v[{X2+4}:{X2+7}], v3, s[24:27], s58 offen offset:512")
    k(f"buffer_load_dword v{R}, v7, s[24:27], s59 offen")
    for s in range(DEPTH):
        load(s)
    stamp(k, 1)
    issued = DEPTH
    for s in range(n):
        k(f"s_waitcnt vmcnt({(issued-1-s)*4})")
        r = RB + 16 * (s % DEPTH)
        A0, B0, A1, B1 = (f"v[{r+4*i}:{r+4*i+3}]" for i in range(4))
        for t, (a, b) in enumerate(((A0, B0), (A0, B1), (A1, B0), (A1, B1))):
            c = "0" if s == 0 else f"a[{16*t}:{16*t+15}]"
            k(f"v_mfma_f32_32x32x16_bf16 a[{16*t}:{16*t+15}], {a}, {b}, {c}")
        if issued < n:
            load(issued); issued += 1
    stamp(k, 2)
    k("s_nop 7")
    for t in (1, 2, 3):
        k(f"""
        s_xor_b32 s56, s3, {t}
        s_mul_i32 s56, s56, 12288
        s_add_u32 s56, s56, {(t-1)*4096}
        v_add_u32 v3, s56, v2
        """)
        for q in range(4):
            k(f"ds_write_b128 v3, a[{16*t+4*q}:{16*t+4*q+3}] offset:{q*1024}")
    ACC, TMP = 8, 24
    for i in range(16):
        k(f"v_accvgpr_read_b32 v{ACC+i}, a{i}")
    for i in range(16):
        k(f"v_mul_f32 v{G+i}, v{R}, v{G+i}")
    k(f"""
    s_mul_i32 s56, s3, 12288
    v_add_u32 v3, s56, v2
    s_waitcnt lgkmcnt(0)
    s_barrier
    """)
    for i in range(12):
        k(f"ds_read_b128 v[{TMP+4*i}:{TMP+4*i+3}], v3 offset:{i*1024}")
    XU = 80
    stamp(k, 3)
    for i in range(8):
        k(f"v_lshlrev_b32 v{XU+2*i}, 16, v{X2+i}")
        k(f"v_and_b32 v{XU+2*i+1}, 0xffff0000, v{X2+i}")
    for sl in range(3):
        k(f"s_waitcnt lgkmcnt({8-4*sl})")
        for i in range(16):
            k(f"v_add_f32 v{ACC+i}, v{ACC+i}, v{TMP+16*sl+i}")
    for i in range(16):
        k(f"v_fma_f32 v{ACC+i}, v{G+i}, v{ACC+i}, v{XU+i}")
    for i in range(8):
        k(f"v_cvt_pk_bf16_f32 v{TMP+i}, v{ACC+2*i}, v{ACC+2*i+1}")
    k(f"""
    v_lshlrev_b32 v7, 10, v5
    v_lshl_add_u32 v7, v4, 3, v7
    s_lshl_b32 s59, s49, 15
    s_lshl_b32 s56, s47, 6
    s_add_u32 s59, s59, s56
    """)
    for j in range(4):
        k(f"buffer_store_dwordx2 v[{TMP+2*j}:{TMP+2*j+1}], v7, s[28:31], s59 offen offset:{16*j}")
    epilogue(k)
    return k, (256, 256, 49152)


def build(path=OUT):
    ks = [k0(), k1(), k2b(), k3(), k4(), k5()]
    errs = []
    for k, _ in ks:
        errs += k.check()
    for e in errs:
        print(e)
    ref = open(OUT + ".ref").read().split("\n")
    hdr = [l for l in ref if l.startswith(";") and "@launch" not in l and "Override" not in l and "grid=ceil" not in l]
    out = "\n".join(hdr) + "\n"
    for k, (g, b, lds) in ks:
        out += f"; @launch kernel={k.name} grid=({g},1,1) block=({b},1,1) lds={lds}\n"
    out += '.amdgcn_target "amdgcn-amd-amdhsa--gfx950"\n'
    codes, kds = zip(*[k.text() for k, _ in ks])
    out += "".join(codes)
    out += '.section .rodata,"a"\n' + "".join(kds)
    open(path, "w").write(out)
    print("wrote", path, len(out), "bytes;", len(errs), "checker errors")
    return len(errs)


if __name__ == "__main__":
    sys.exit(1 if build(sys.argv[1] if len(sys.argv) > 1 else OUT) else 0)
```

```python
import sys, os
sys.path.insert(0, "gen")
from asmlib import Kern
import gen as G
from gen import (MB, OFF_MOD, OFF_XHAT, OFF_WQKV, OFF_Q, OFF_KV, OFF_O, OFF_WO, OFF_X2, OFF_X2S, OFF_ST2, OFF_W1,
                 OFF_H, OFF_W2, QSCALE, P_X, P_WQKV, P_WO, P_W1, P_W2, P_C, P_WMOD, P_OUT, P_WS, srd, stamp, endpgm,
                 prologue, prologue_wait, epilogue, bf16_round, ln_stats_finish, role_ln, role_relayout, ATT, att_unit,
                 att_max16, NAME, OUT, DIAG)

OFF_MODB = 0x3000
OFF_FLAG = G.OFF_FLAG
FL = "sc1"
DF = "@DF@"
S_FAST = 93
OFF_XID = G.OFF_XID
OOL = []


def dual_begin(k):
    k._dual = len(k.lines)


def dual_end(k, tag):
    body = k.lines[k._dual:]
    del k.lines[k._dual:]
    import re
    labs = [l[:-1] for l in body if l.endswith(":")]
    def variant(fl, suffix):
        out = []
        for l in body:
            l = l.replace(DF, fl).rstrip()
            for lab in labs:
                l = re.sub(rf"\b{lab}\b", lab + suffix, l)
            out.append(l)
        return out
    if tag not in os.environ.get("FAST", "none").split(","):
        k.lines += variant("sc1", "_s")
        return
    k(f"s_cmp_eq_u32 s{S_FAST}, 0")
    k(f"s_cbranch_scc1 L_slow_{tag}")
    k.lines += variant("", "_f")
    k.label(f"L_join_{tag}")
    OOL.append([f"L_slow_{tag}:"] + variant("sc1", "_s") + [f"s_branch L_join_{tag}"])


_stamp = stamp
def stamp(k, i):
    if os.environ.get("P1ST") and i > 8:
        return
    _stamp(k, i)
def stamp1(k, i):
    if os.environ.get("P1ST"):
        _stamp(k, i)


class VM:
    def __init__(self, k):
        self.k = k; self.n = 0
    def op(self, text=None):
        if text:
            self.k(text)
        self.n += 1
        return self.n
    def tick(self):
        self.n += 1
        return self.n
    def wait_str(self, idx):
        c = self.n - idx
        return f"s_waitcnt vmcnt({min(c, 63)})"
    def wait(self, idx):
        self.k(self.wait_str(idx))


def signal(k, edge, s_group, s_member, gsize, nafter=0, fl=FL, fast=False):
    lab = f"L_sig{edge}"
    k(f"""
    s_mul_i32 s38, s{s_group}, {gsize}
    s_add_u32 s38, s38, s{s_member}
    s_lshl_b32 s38, s38, 8
    s_add_u32 s38, s38, {OFF_FLAG + edge * 65536}
    v_mov_b32 v6, 0
    v_mov_b32 v7, s98
    s_cmp_lg_u32 s3, 0
    s_waitcnt vmcnt({nafter}) lgkmcnt(0)
    s_barrier
    s_cbranch_scc1 {lab}
    s_mov_b64 exec, 1
    """)
    if fast and int(os.environ.get("FFLAG", "1")):
        k(f"""
        s_cmp_eq_u32 s{S_FAST}, 0
        s_cbranch_scc1 {lab}_slow
        buffer_store_dword v7, v6, s[24:27], s38 offen
        s_branch {lab}_done
        {lab}_slow:
        buffer_store_dword v7, v6, s[24:27], s38 offen sc1
        {lab}_done:
        """)
    else:
        k("buffer_store_dword v7, v6, s[24:27], s38 offen sc1")
    k("s_mov_b64 exec, -1")
    k.label(lab)


def flag_store(lab, soff, imm):
    return ["s_cmp_lg_u32 s3, 0", f"s_cbranch_scc1 {lab}", "s_mov_b64 exec, 1", f"s_cmp_eq_u32 s{S_FAST}, 0", f"s_cbranch_scc1 {lab}_slow",
            f"buffer_store_dword v159, v158, s[24:27], s{soff} offen offset:{imm}", f"s_branch {lab}_done", f"{lab}_slow:",
            f"buffer_store_dword v159, v158, s[24:27], s{soff} offen offset:{imm} sc1", f"{lab}_done:", "s_mov_b64 exec, -1", f"{lab}:"]


def wait_edge(k, edge, s_group, gsize):
    lab = f"L_wait{edge}"
    k(f"""
    s_cmp_lg_u32 s3, 0
    s_cbranch_scc1 {lab}
    s_mul_i32 s38, s{s_group}, {gsize*256}
    s_add_u32 s38, s38, {OFF_FLAG + edge * 65536}
    v_lshlrev_b32 v6, 8, v1
    s_mov_b32 exec_lo, {hex((1 << gsize) - 1)}
    s_mov_b32 exec_hi, 0
    s_mov_b32 s39, 0x40000
    """)
    k.label(f"L_poll{edge}")
    k(f"""
    buffer_load_dword v7, v6, s[24:27], s38 offen {FL}
    s_sub_u32 s39, s39, 1
    s_cbranch_scc1 L_bail{edge}
    s_waitcnt vmcnt(0)
    v_cmp_ne_u32 vcc, s98, v7
    s_cbranch_vccnz L_poll{edge}
    """)
    k.label(f"L_bail{edge}")
    k("s_waitcnt vmcnt(0)")
    k("s_mov_b64 exec, -1")
    k.label(lab)
    k("s_barrier")


def wbl2(k, tag):
    if tag in os.environ.get("WBL2", "").split(","):
        k(f"""
        s_lshl_b32 s38, s37, 2
        s_add_u32 s38, s38, s3
        s_cmp_lg_u32 s38, 1
        s_cbranch_scc1 L_nowb_{tag}
        buffer_wbl2 sc1
        """)
        k.label(f"L_nowb_{tag}")


def wo_reg(s):
    return f"a[{224+4*s}:{227+4*s}]" if s < 8 else f"v[{160+4*(s-8)}:{163+4*(s-8)}]"


def w1_lds(f):
    if f < 28:
        return LDS_W1A + f * 1024
    if f < 112:
        return (f - 28) * 1024
    return LDS_UT + (f - 112) * 1024


TS = 2080
LDS_W1A = 130 * 1024
LDS_MODB = 84 * 1024
LDS_VEC = 86 * 1024
LDS_OST = 88 * 1024
LDS_UT = 120 * 1024
LDS_R = 128 * 1024


def lds_rd(dst, addr):
    base = (2, 4, 5)[addr >> 16]
    return f"ds_read_b128 {dst}, v{base} offset:{addr & 0xffff}"


class L(list):
    def __call__(self, text):
        for l in text.strip("\n").split("\n"):
            if l.strip():
                self.append(l.strip())


def weave(k, main, side, every):
    n = 0
    for x in main:
        k(x)
        n += 1
        if side and n % every == 0:
            for y in side.pop(0)():
                k(y)


SLOT = (64 * 1024, 112 * 1024, 64 * 1024, 112 * 1024)
LDS_RL = 112 * 1024
LDS_MODS = 128 * 1024
LDS_MRED = 48 * 1024
LDS_SHARE = 52 * 1024
LDS_MRED2 = 159 * 1024
OFF_MODP = 0x8000


def mega():
    k = Kern(NAME + "_kernel", nvgpr=256, nagpr=256, nsgpr=102)
    k.kid = 1
    vm = VM(k)
    if DIAG:
        k("s_memtime s[60:61]")
        k("s_memrealtime s[62:63]")
        for i in range(G.NST):
            k(f"s_mov_b32 s{64+i}, 0")
    k(f"""
    s_cmp_ge_u32 s2, 256
    s_cbranch_scc1 L_end_{k.name}
    s_load_dwordx16 s[4:19], s[0:1], 0
    s_load_dwordx4 s[20:23], s[0:1], 64
    s_load_dwordx2 s[24:25], s[0:1], 80
    v_lshrrev_b32 v2, 6, v0
    v_and_b32 v1, 63, v0
    v_readfirstlane_b32 s3, v2
    s_and_b32 s36, s2, 7
    s_lshr_b32 s37, s2, 3
    v_lshlrev_b32 v2, 4, v1
    s_getpc_b64 s[38:39]
    L_pc_here:
    s_lshl_b32 s98, s37, 2
    s_add_u32 s98, s98, s3
    s_and_b32 s98, s98, 63
    s_lshl_b32 s98, s98, 10
    s_add_u32 s38, s38, s98
    s_addc_u32 s39, s39, 0
    global_load_dwordx4 a[208:211], v2, s[38:39]
    s_memrealtime s[40:41]
    """)
    VA, VB, RAW, XF, FR, ACC = 8, 16, 24, 88, 216, 24
    WM, CC, MA = 8, 12, 16
    k(f"""
    v_lshrrev_b32 v3, 1, v1
    v_lshlrev_b32 v4, 1, v3              ; c voffset: (l>>1)*2
    v_mul_u32_u24 v3, 6144, v3
    v_and_b32 v5, 1, v1
    v_lshl_add_u32 v3, v5, 4, v3
    v_lshrrev_b32 v6, 3, v1              ; r8
    v_and_b32 v7, 7, v1
    v_and_b32 v248, 2, v6
    v_xor_b32 v7, v7, v248
    s_and_b32 s38, s3, 1
    s_lshl_b32 s38, s38, 2
    v_xor_b32 v7, s38, v7
    v_mul_u32_u24 v5, 3072, v6
    v_lshl_add_u32 v5, v7, 4, v5
    s_and_b32 s93, s37, 7
    s_lshl_b32 s93, s93, 1               ; rotW
    s_lshr_b32 s99, s37, 4
    s_lshl_b32 s99, s99, 3
    s_add_u32 s99, s99, s36
    s_lshl_b32 s99, s99, 2
    s_and_b32 s38, s37, 3
    s_add_u32 s99, s99, s38
    s_bfe_u32 s92, s37, 0x20002          ; k split
    s_lshl_b32 s100, s92, 2
    s_add_u32 s100, s100, s3
    s_lshl_b32 s101, s100, 6             ; c soffset
    s_mul_i32 s100, s100, {32*6144}
    s_lshl_b32 s38, s99, 5
    s_add_u32 s100, s100, s38
    s_lshl_b32 s39, s2, 2
    s_add_u32 s39, s39, s3
    v_lshlrev_b32 v248, 6, v1
    s_waitcnt lgkmcnt(0)
    s_mov_b32 s26, {G.WS_USED:#x}
    s_mov_b32 s27, 0x00020000
    """)
    srd(k, 48, 22, 256)
    k(f"""
    s_cmp_lg_u32 s39, 3
    s_cbranch_scc1 L_nozw
    s_mul_i32 s41, s41, 0x9e3779b1
    s_xor_b32 s40, s40, s41
    s_or_b32 s40, s40, 1
    v_mov_b32 v249, s40
    s_mov_b64 exec, 15
    buffer_store_dword v249, v248, s[48:51], 0 offen {FL}
    s_mov_b64 exec, -1
    L_nozw:
    """)
    srd(k, 44, P_WMOD, 512 * 3072 * 2)
    srd(k, 56, P_C, 1024)
    srd(k, 28, P_X, 2048 * 1024)
    stamp(k, 0)
    vm.op(f"buffer_load_ushort v{CC}, v4, s[56:59], s101 offen")
    wmid = vm.op(f"buffer_load_dwordx4 v[{WM}:{WM+3}], v3, s[44:47], s100 offen")
    srd(k, 32, 20, 2048 * 1024)
    k(f"""
    s_lshr_b32 s20, s36, 1
    s_lshl_b32 s20, s20, 3
    s_and_b32 s38, s37, 7
    s_add_u32 s20, s20, s38        ; tb1
    s_and_b32 s21, s36, 1
    s_lshl_b32 s21, s21, 2
    s_lshr_b32 s101, s37, 3        ; rotX
    s_add_u32 s21, s21, s101       ; cb1
    s_lshl_b32 s22, s21, 2
    s_add_u32 s22, s22, s3         ; head
    s_lshl_b32 s38, s20, 16
    s_lshl_b32 s23, s3, 14
    s_add_u32 s38, s38, s23
    """)
    rowid = {}
    def xrow(r):
        def f():
            out = []
            if r % 4 == 0:
                out = [f"s_xor_b32 s17, s101, {r//4}", "s_lshl_b32 s17, s17, 12", "s_add_u32 s17, s17, s16"]
            out.append(f"buffer_load_dwordx4 v[{RAW+4*r}:{RAW+4*r+3}], v2, s[28:31], s17 offen offset:{(r%4)*1024}")
            rowid[r] = vm.tick()
            return out
        return f
    k("s_mov_b32 s16, s38")
    NX0 = int(os.environ.get("NX0", "8"))
    for r in range(NX0):
        for y in xrow(r)():
            k(y)
    srd(k, 40, P_WQKV, 512 * 1536 * 2)
    k(f"""
    s_cmp_lt_u32 s2, 32
    s_cselect_b32 s52, s{P_WO}, s{P_W1}
    s_cselect_b32 s53, s{P_WO+1}, s{P_W1+1}
    s_mov_b32 s54, {512*1792*2:#x}
    s_cselect_b32 s54, {512*512*2:#x}, s54
    s_cmp_ge_u32 s2, 144
    s_cselect_b32 s52, s{P_W2}, s52
    s_cselect_b32 s53, s{P_W2+1}, s53
    s_mov_b32 s55, 0x00020000
    s_lshl_b32 s23, s21, 7
    s_mul_i32 s38, s3, {8*3072}
    s_add_u32 s23, s23, s38
    s_mul_i32 s100, s3, 3072
    """)
    RS_SCALAR = """
    s_cmp_lt_u32 s2, 32
    s_cselect_b32 s4, 0, 32
    s_cselect_b32 s5, 0, 1
    s_cmp_ge_u32 s2, 144
    s_cselect_b32 s4, 144, s4
    s_cselect_b32 s5, 2, s5
    s_sub_u32 s4, s2, s4
    s_lshr_b32 s6, s4, 3
    s_and_b32 s7, s4, 7
    s_mul_i32 s9, s4, 2341
    s_lshr_b32 s9, s9, 16
    s_mul_i32 s10, s9, 28
    s_sub_u32 s10, s4, s10
    s_mov_b32 s8, 1024
    s_cmp_eq_u32 s5, 1
    s_cselect_b32 s6, s9, s6
    s_cselect_b32 s7, s10, s7
    s_cselect_b32 s8, 3584, s8
    s_lshl_b32 s9, s6, 2
    s_add_u32 s9, s9, s3
    """
    k(RS_SCALAR)
    k(f"""
    s_lshl_b32 s12, s8, 5
    s_mul_i32 s12, s12, s9
    s_lshl_b32 s11, s7, 7
    s_add_u32 s12, s12, s11
    s_lshl_b32 s1, s8, 3
    v_lshrrev_b32 v248, 3, v1
    v_mul_lo_u32 v248, v248, s8
    v_and_b32 v249, 7, v1
    v_lshl_add_u32 v248, v249, 4, v248
    v_add_u32 v248, s12, v248
    v_accvgpr_write_b32 a212, v248
    s_lshl_b32 s0, s3, 16
    s_lshl_b32 s4, s2, 8
    s_add_u32 s0, s0, s4
    s_add_u32 s0, s0, {OFF_FLAG}
    """)
    stamp(k, 1)
    wd = {}
    def wdma(s):
        base = SLOT[s // 4] + (s % 4) * 12288
        def f(p):
            out = []
            if p == 0:
                out = [f"s_xor_b32 s39, s93, {s}", f"s_mul_i32 s39, s39, {32*3072}", f"s_add_u32 m0, s100, {base}", "s_add_u32 s39, s39, s23"]
            out.append(f"buffer_load_dwordx4 v5, s[40:43], s39 offen offset:{p*1024} lds")
            wd[s] = vm.tick()
            return out
        return [(lambda p=p: f(p)) for p in range(3)]
    NWA = int(os.environ.get("NWA", "6"))
    wq = [xrow(r) for r in range(NX0, 16)] + [g for s in range(NWA) for g in wdma(s)]
    def mod_reduce(mj, MA_, t0, t1, lds_off, lds_base=0):
        mj("s_nop 0")
        for i in range(4):
            mj(f"v_permlane32_swap_b32 v{MA_+i}, v{MA_+4+i}")
        for i in range(0, 4, 2):
            mj(f"v_pk_add_f32 v[{MA_+i}:{MA_+i+1}], v[{MA_+i}:{MA_+i+1}], v[{MA_+4+i}:{MA_+5+i}]")
        mj(f"v_lshrrev_b32 v{t0}, 4, v1")
        mj(f"v_and_b32 v{t1}, 1, v1")
        for i in range(2):
            mj(f"v_permlane16_swap_b32 v{MA_+i}, v{MA_+2+i}")
        mj(f"v_pk_add_f32 v[{MA_}:{MA_+1}], v[{MA_}:{MA_+1}], v[{MA_+2}:{MA_+3}]")
        mj(f"v_lshlrev_b32 v{t0}, 3, v{t0}")
        mj(f"v_lshl_add_u32 v{t0}, v{t1}, 5, v{t0}")
        for n_, ror in enumerate((8, 4, 2)):
            for i in range(2):
                mj(f"v_add_f32_dpp v{MA_+i}, v{MA_+i}, v{MA_+i} row_ror:{ror} row_mask:0xf bank_mask:0xf")
            mj("s_lshl_b32 s38, s3, 6" if n_ == 0 else (f"v_add_u32 v{t0}, s38, v{t0}" if n_ == 1 else f"v_add_u32 v{t0}, {lds_base}, v{t0}"))
        mj(f"ds_write_b64 v{t0}, v[{MA_}:{MA_+1}] offset:{lds_off}")
    def silu(mj, regs, tmp):
        for r, t in zip(regs, tmp):
            mj(f"v_mul_f32 v{t}, 0xbfb8aa3b, v{r}")
        for t in tmp:
            mj(f"v_exp_f32 v{t}, v{t}")
        mj("s_nop 0")
        for t in tmp:
            mj(f"v_add_f32 v{t}, 1.0, v{t}")
        for t in tmp:
            mj(f"v_rcp_f32 v{t}, v{t}")
        mj("s_nop 0")
        for r, t in zip(regs, tmp):
            mj(f"v_mul_f32 v{r}, v{r}, v{t}")
        for r in regs:
            bf16_round(mj, r, r)
    mj = L()
    vm.wait(wmid)
    stamp1(k, 13)
    mj(f"v_lshlrev_b32 v{CC}, 16, v{CC}")
    silu(mj, [CC], [CC + 1])
    for i in range(4):
        mj(f"v_lshlrev_b32 v{MA+2*i}, 16, v{WM+i}")
        mj(f"v_and_b32 v{MA+2*i+1}, 0xffff0000, v{WM+i}")
    for i in range(4):
        mj(f"v_pk_mul_f32 v[{MA+2*i}:{MA+2*i+1}], v[{MA+2*i}:{MA+2*i+1}], v[{CC}:{CC+1}] op_sel_hi:[1,0]")
    mod_reduce(mj, MA, CC, CC + 1, LDS_MRED)
    weave(k, mj, wq, int(os.environ.get("WV0", "10")))
    stamp(k, 2)
    SU, SQ = 216, 232
    WV = int(os.environ.get("WV1", "12"))
    PUBROW = int(os.environ.get("PUBROW", "3"))
    for r in range(16):
        ln = L()
        while r not in rowid:
            for y in wq.pop(0)():
                k(y)
        vm.wait(rowid[r])
        b, t = RAW + 4 * r, XF + 8 * r
        for i in range(4):
            ln(f"v_lshlrev_b32 v{t+2*i}, 16, v{b+i}")
            ln(f"v_and_b32 v{t+2*i+1}, 0xffff0000, v{b+i}")
        ln(f"v_pk_add_f32 v[248:249], v[{t}:{t+1}], v[{t+2}:{t+3}]")
        ln(f"v_pk_mul_f32 v[250:251], v[{t}:{t+1}], v[{t}:{t+1}]")
        ln(f"v_pk_add_f32 v[252:253], v[{t+4}:{t+5}], v[{t+6}:{t+7}]")
        for i in range(1, 4):
            ln(f"v_pk_fma_f32 v[250:251], v[{t+2*i}:{t+2*i+1}], v[{t+2*i}:{t+2*i+1}], v[250:251]")
        ln("v_pk_add_f32 v[248:249], v[248:249], v[252:253]")
        ln(f"v_add_f32 v{SQ+r}, v250, v251")
        ln(f"v_add_f32 v{SU+r}, v248, v249")
        weave(k, ln, wq, WV)
        if r in (0, 4, 8, 12):
            stamp1(k, 14 + r // 4)
        if r == PUBROW - 2:
            k("s_waitcnt lgkmcnt(0)")
            k("s_load_dword s98, s[48:49], 0")
        if r == PUBROW:
            k(f"""
            v_lshlrev_b32 v{CC}, 2, v1
            s_waitcnt lgkmcnt(0)
            s_barrier
            ds_read_b32 v{MA}, v{CC} offset:{LDS_MRED}
            s_cmp_eq_u32 s98, 0
            s_cbranch_scc1 L_zspin
            L_zpoll_out:
            s_cmp_lg_u32 s3, 0
            s_cbranch_scc1 L_mod_done
            s_lshl_b32 s38, s92, 13
            s_lshl_b32 s4, s99, 7
            s_add_u32 s38, s38, s4
            s_add_u32 s38, s38, {OFF_MODP}
            v_lshlrev_b32 v{CC}, 3, v1
            s_waitcnt lgkmcnt(0)
            v_mov_b32 v{MA+1}, v{MA}
            s_nop 1
            v_permlane32_swap_b32 v{MA+1}, v{MA}
            v_add_f32 v{MA}, v{MA+1}, v{MA}
            v_mov_b32 v{MA+1}, v{MA}
            s_nop 1
            v_permlane16_swap_b32 v{MA+1}, v{MA}
            v_add_f32 v{MA}, v{MA+1}, v{MA}
            v_mov_b32 v{MA+1}, s98
            s_mov_b64 exec, 0xffff
            buffer_store_dwordx2 v[{MA}:{MA+1}], v{CC}, s[24:27], s38 offen {FL}
            s_mov_b64 exec, -1
            L_mod_done:
            """)
            z = ["L_zspin:"]
            for ln_ in (64, 128, 192):
                z += [f"s_load_dword s98, s[48:49], {ln_}", "s_waitcnt lgkmcnt(0)", "s_cmp_lg_u32 s98, 0", "s_cbranch_scc1 L_zpoll_out", "s_sleep 6"]
            z += ["s_mov_b32 s4, 0x40000", f"v_mov_b32 v{CC+2}, 0",
                  "L_zspin2:", f"buffer_load_dword v{CC+1}, v{CC+2}, s[48:51], 0 offen {FL}", "s_waitcnt vmcnt(0)",
                  f"v_readfirstlane_b32 s98, v{CC+1}", "s_sub_u32 s4, s4, 1", "s_cbranch_scc1 L_zpoll_out", "s_sleep 8", "s_cmp_eq_u32 s98, 0",
                  "s_cbranch_scc1 L_zspin2", "s_branch L_zpoll_out"]
            OOL.append(z)
    k(f"""
    v_and_b32 v248, 15, v1
    v_lshrrev_b32 v249, 4, v1
    v_mul_u32_u24 v3, 3072, v249
    v_lshrrev_b32 v250, 2, v248
    v_lshl_add_u32 v3, v250, 7, v3
    v_and_b32 v250, 1, v248
    v_lshl_add_u32 v3, v250, 3, v3
    v_bfe_u32 v250, v248, 1, 1
    s_lshl_b32 s38, s3, 1
    v_add_u32 v250, s38, v250
    v_bfe_u32 v251, v248, 3, 1
    v_and_b32 v252, 1, v249
    v_lshl_add_u32 v251, v252, 1, v251
    v_lshlrev_b32 v251, 1, v251
    v_xor_b32 v250, v250, v251
    v_lshl_add_u32 v3, v250, 4, v3
    v_add_u32 v4, 0x10000, v3
    v_add_u32 v6, 0x20000, v3
    """)
    def trreads(b):
        out = []
        for s in range(4 * b, 4 * b + 4):
            for p in range(3):
                for h in range(2):
                    addr = SLOT[b] + (s % 4) * 12288 + p * 1024 + h * 512
                    ar = 12 * s + 4 * p + 2 * h
                    out.append(f"ds_read_b64_tr_b16 a[{ar}:{ar+1}], v{(3, 4, 6)[addr >> 16]} offset:{addr & 0xffff}")
        return out
    def normalize(half):
        out = L()
        for rr in range(8):
            r = 8 * half + rr
            out(f"v_readlane_b32 s{4+2*rr}, v{SQ+4+(r&3)}, {16*(r>>2)}")
            out(f"v_readlane_b32 s{5+2*rr}, v{SU+4+(r&3)}, {16*(r>>2)}")
        for rr in range(8):
            t = XF + 8 * (8 * half + rr)
            for i in range(4):
                out(f"v_pk_fma_f32 v[{t+2*i}:{t+2*i+1}], v[{t+2*i}:{t+2*i+1}], s[{4+2*rr}:{5+2*rr}], s[{4+2*rr}:{5+2*rr}] op_sel:[0,0,1] op_sel_hi:[1,0,1]")
        return out
    stamp(k, 3)
    ln = L()
    for base in (SQ, SU):
        for r in range(8):
            ln(f"v_permlane32_swap_b32 v{base+r}, v{base+8+r}")
    for base in (SQ, SU):
        for r in range(0, 8, 2):
            ln(f"v_pk_add_f32 v[{base+r}:{base+r+1}], v[{base+r}:{base+r+1}], v[{base+8+r}:{base+9+r}]")
    for base in (SQ, SU):
        for r in range(4):
            ln(f"v_permlane16_swap_b32 v{base+r}, v{base+4+r}")
    for base in (SQ, SU):
        for r in range(0, 4, 2):
            ln(f"v_pk_add_f32 v[{base+r}:{base+r+1}], v[{base+r}:{base+r+1}], v[{base+4+r}:{base+5+r}]")
    for ror in (8, 4, 2, 1):
        for base in (SQ, SU):
            for r in range(4):
                ln(f"v_add_f32_dpp v{base+r}, v{base+r}, v{base+r} row_ror:{ror} row_mask:0xf bank_mask:0xf")
    fin = [L() for _ in range(4)]
    for i in range(4):
        ln_stats_finish(fin[i], SU + i, SQ + i, SU + 4 + i, SQ + 4 + i, SQ + 8 + i)
        fin[i](f"v_mul_f32 v{SU+4+i}, -v{SU+4+i}, v{SQ+4+i}")
    for tup in zip(*fin):
        for x in tup:
            if not x.startswith("s_nop"):
                ln(x)
    weave(k, ln, wq, 10)
    for g in wq:
        for y in g():
            k(y)
    stamp(k, 4)
    MP = 24
    def modloads():
        out = ["s_lshl_b32 s38, s3, 11", f"s_add_u32 s38, s38, {OFF_MODP}"]
        for q in range(4):
            if q:
                out.append("s_add_u32 s38, s38, 8192")
            for h in range(2):
                r_ = MP + 8 * q + 4 * h
                out.append(f"buffer_load_dwordx4 v[{r_}:{r_+3}], v2, s[24:27], s38 offen offset:{1024*h} {FL}")
        return out
    def modcheck():
        out = L()
        t = [MP + 2 * i + 1 for i in range(16)]
        out(f"v_and_b32 v252, v{t[0]}, v{t[1]}")
        out(f"v_or_b32 v253, v{t[0]}, v{t[1]}")
        for i in range(2, 16, 2):
            out(f"v_bitop3_b32 v252, v252, v{t[i]}, v{t[i+1]} bitop3:0x80")
            out(f"v_or3_b32 v253, v253, v{t[i]}, v{t[i+1]}")
        out("v_xor_b32 v252, s98, v252")
        out("v_xor_b32 v253, s98, v253")
        out("v_or_b32 v252, v252, v253")
        out("v_cmp_ne_u32 vcc, 0, v252")
        return out
    for x in modloads():
        k(x)
        if x.startswith("buffer"):
            modid = vm.tick()
    if int(os.environ.get("PRET", "1")):
        k(f"""
        v_lshlrev_b32 v56, 7, v1
        s_lshl_b32 s4, s3, 12
        s_add_u32 s4, s4, {OFF_XID}
        s_sub_u32 s4, s4, s0
        v_add_u32 v56, s4, v56
        s_cmp_eq_u32 s2, 9
        s_cselect_b32 s4, 32, 0
        v_cmp_gt_u32 vcc, s4, v1
        v_and_b32 v57, 1, v1
        v_lshlrev_b32 v57, 7, v57
        v_cndmask_b32 v56, v57, v56, vcc
        """)
        vm.op("buffer_load_dword a213, v56, s[24:27], s0 offen")
        TLBS = int(os.environ.get("TLBS", "0"))
        if TLBS:
            k(f"""
            v_lshlrev_b32 v57, {TLBS}, v1
            s_cmp_eq_u32 s3, 2
            s_cselect_b32 s4, 0, 0x7f000000
            """)
            vm.op("buffer_load_dword a214, v57, s[24:27], s4 offen")
            vm.op("buffer_load_dword a215, v57, s[32:35], s4 offen")
    OOL.append(["L_mod_spin:", "s_mov_b32 s39, 0x40000", "L_mod_spin2:"]
               + modloads() + ["s_sub_u32 s39, s39, 1", "s_waitcnt vmcnt(0)"]
               + list(modcheck()) + ["s_cbranch_scc1 L_mod_ok", "s_sleep 4", "s_cbranch_vccnz L_mod_spin2", "s_branch L_mod_ok"])
    vm.wait(wd[3]); k("s_barrier")
    wq = [g for s in range(NWA, 8) for g in wdma(s)]
    mix = wq + [(lambda x=x: [x]) for x in trreads(0)]
    weave(k, normalize(0) + normalize(1), mix, 3)
    assert not mix
    k(f"""
    s_lshl_b32 s38, s93, 2
    v_xor_b32 v254, s38, v1
    v_lshlrev_b32 v254, 8, v254
    v_and_b32 v253, 7, v1
    v_lshl_add_u32 v254, v253, 4, v254
    s_lshl_b32 s38, s3, 14
    s_lshl_b32 s39, s101, 6
    v_add_u32 v254, s38, v254
    v_xor_b32 v254, s39, v254
    s_lshl_b32 s38, s3, 10
    v_lshlrev_b32 v7, 3, v1
    v_add_u32 v7, s38, v7
    v_lshlrev_b32 v255, 5, v1
    s_cmp_ge_u32 s3, 2
    s_cselect_b32 s5, 1.0, 0
    """)
    vm.wait(modid)
    for x in modcheck(): k(x)
    k("s_nop 0")
    k("s_cbranch_vccnz L_mod_spin")
    k.label("L_mod_ok")
    for i in range(4):
        k(f"v_add_f32 v{8+i}, v{MP+2*i}, v{MP+8+2*i}")
        k(f"v_add_f32 v{12+i}, v{MP+16+2*i}, v{MP+24+2*i}")
    k("v_pk_add_f32 v[8:9], v[8:9], v[12:13]")
    k("v_pk_add_f32 v[10:11], v[10:11], v[14:15]")
    for rep in range(2):
        k("v_cvt_pk_bf16_f32 v12, v8, v9")
        k("v_cvt_pk_bf16_f32 v13, v10, v11")
        for i in range(2):
            k(f"v_lshlrev_b32 v{8+2*i}, 16, v{12+i}")
            k(f"v_and_b32 v{9+2*i}, 0xffff0000, v{12+i}")
        if rep == 0:
            for i in range(4):
                k(f"v_add_f32 v{8+i}, s5, v{8+i}")
    k(f"""
    ds_write_b64 v7, v[8:9] offset:{LDS_SHARE}
    ds_write_b64 v7, v[10:11] offset:{LDS_SHARE+512}
    s_waitcnt lgkmcnt(0)
    s_barrier
    ds_read_b128 v[{VB}:{VB+3}], v255 offset:{LDS_SHARE}
    ds_read_b128 v[{VB+4}:{VB+7}], v255 offset:{LDS_SHARE+16}
    ds_read_b128 v[{VA}:{VA+3}], v255 offset:{LDS_SHARE+2048}
    ds_read_b128 v[{VA+4}:{VA+7}], v255 offset:{LDS_SHARE+2064}
    """)
    wq = [g for s in range(8, 12) for g in wdma(s)]
    for g in wq[:2]:
        for y in g():
            k(y)
    wq = wq[2:]
    k("s_waitcnt lgkmcnt(0)")
    stamp(k, 5)
    md = L()
    def mrow(r):
        t = XF + 8 * r
        for i in range(4):
            md(f"v_pk_fma_f32 v[{t+2*i}:{t+2*i+1}], v[{t+2*i}:{t+2*i+1}], v[{VA+2*i}:{VA+2*i+1}], v[{VB+2*i}:{VB+2*i+1}]")
        for i in range(4):
            md(f"v_cvt_pk_bf16_f32 v{t+i}, v{t+2*i}, v{t+2*i+1}")
        md(f"v_xor_b32 v{t+4}, {r<<4}, v254")
    def mwr(r):
        t = XF + 8 * r
        md(f"ds_write_b128 v{t+4}, v[{t}:{t+3}]")
    mrow(0)
    md("s_barrier")
    for r in range(1, 16):
        mwr(r - 1)
        mrow(r)
    mwr(15)
    weave(k, md, wq, 12)
    assert not wq
    k(f"""
    v_and_b32 v8, 15, v1
    v_lshrrev_b32 v9, 4, v1
    v_xor_b32 v10, v8, v9
    v_lshlrev_b32 v10, 4, v10
    v_lshl_add_u32 v8, v9, 8, v10
    v_xor_b32 v9, 64, v8
    v_accvgpr_read_b32 v248, a212
    """)
    k(vm.wait_str(wd[7]) + " lgkmcnt(0)")
    k("s_barrier")
    stamp(k, 6)
    def aread(s):
        f = FR + 16 * (s & 1)
        return [f"ds_read_b128 v[{f+4*b}:{f+4*b+3}], v{8 + (s & 1)} offset:{b*16384+s*1024}" for b in range(4)]
    ex1, ex2, ex3 = trreads(1), trreads(2), trreads(3)
    RLATT = int(os.environ.get("RLATT", "1"))
    for x in aread(0): k(x)
    for s in range(16):
        nxt = aread(s + 1) if s < 15 else []
        k("s_waitcnt lgkmcnt(0)")
        SB3 = int(os.environ.get("SB3", "10"))
        if s == 3:
            k("s_barrier")
        if s == 5:
            vm.wait(wd[11]); k("s_barrier")
        if s == SB3:
            vm.wait(wd[15]); k("s_barrier")
        if s < 3:
            nxt += ex1[8 * s:8 * s + 8]
        if s in (3, 4):
            for s2_ in (12 + 2 * (s - 3), 13 + 2 * (s - 3)):
                for g in wdma(s2_):
                    nxt.append("\n".join(g()))
        if 5 <= s < 9:
            nxt += ex2[6 * (s - 5):6 * (s - 5) + 6]
        if SB3 <= s < SB3 + 4:
            nxt += ex3[6 * (s - SB3):6 * (s - SB3) + 6]
        RL0 = int(os.environ.get("RL0", "5"))
        if RL0 <= s < RL0 + 4 and not RLATT:
            i = s - RL0
            nxt += ["s_add_u32 s12, s12, s1" if i else "s_mov_b32 s12, 0", f"buffer_load_dwordx4 a[{192+4*i}:{195+4*i}], v248, s[52:55], s12 offen"]
            vm.tick()
        f = FR + 16 * (s & 1)
        for b in range(4):
            for which in range(3):
                acc = ACC + 4 * (which * 4 + b)
                w = f"a[{12*s+4*which}:{12*s+4*which+3}]"
                h = f"v[{f+4*b}:{f+4*b+3}]"
                c = "0" if s == 0 else f"v[{acc}:{acc+3}]"
                a_, b_ = (w, h) if which < 2 else (h, w)
                k(f"v_mfma_f32_16x16x32_bf16 v[{acc}:{acc+3}], {a_}, {b_}, {c}")
                if nxt:
                    k(nxt.pop(0))
        assert not nxt
    stamp(k, 7)
    C2 = 200
    k(f"""
    v_lshrrev_b32 v221, 1, v1
    v_lshlrev_b32 v220, 3, v221
    s_lshl_b32 s38, s3, 8
    buffer_load_dwordx2 v[{C2}:{C2+1}], v220, s[56:59], s38 offen
    """)
    k(f"""
    s_lshl_b32 s40, s22, 16
    s_lshl_b32 s41, s20, 11
    s_add_u32 s40, s40, s41
    s_add_u32 s40, s40, {OFF_Q}
    s_lshl_b32 s42, s22, 17
    s_lshl_b32 s41, s20, 12
    s_add_u32 s42, s42, s41
    s_add_u32 s42, s42, {OFF_KV}
    v_mov_b32 v12, {QSCALE:#x}
    v_mov_b32 v13, {QSCALE:#x}
    """)
    for which in (1, 2, 0):
        for bp in range(2):
            t = 88 + 4 * (which * 2 + bp)
            for b2 in range(2):
                acc = ACC + 4 * (which * 4 + bp * 2 + b2)
                if which == 0:
                    k(f"v_pk_mul_f32 v[{acc}:{acc+1}], v[12:13], v[{acc}:{acc+1}]")
                    k(f"v_pk_mul_f32 v[{acc+2}:{acc+3}], v[12:13], v[{acc+2}:{acc+3}]")
                k(f"v_cvt_pk_bf16_f32 v{t+2*b2}, v{acc}, v{acc+1}")
                k(f"v_cvt_pk_bf16_f32 v{t+2*b2+1}, v{acc+2}, v{acc+3}")
        op = "v_permlane32_swap_b32" if which == 2 else "v_permlane16_swap_b32"
        for bp in range(2):
            t = 88 + 4 * (which * 2 + bp)
            if bp == 1:
                k("s_nop 0")
            k(f"{op} v{t}, v{t+2}")
            k(f"{op} v{t+1}, v{t+3}")
            if which == 0:
                vm.op(f"buffer_store_dwordx4 v[{t}:{t+3}], v2, s[24:27], s40 offen offset:{bp*1024} {FL}")
            else:
                vm.op(f"buffer_store_dwordx4 v[{t}:{t+3}], v2, s[24:27], s42 offen offset:{bp*2048+(which-1)*1024} {FL}")
    stamp(k, 25)
    signal(k, 0, 21, 20, 32)
    stamp(k, 26)
    RA, RD, W2M, M2 = 160, 168, 184, 208
    LDS_RLS = LDS_W1A
    k(RS_SCALAR)
    k(f"""
    s_lshl_b32 s14, s3, 12
    s_add_u32 s14, s14, {LDS_RLS}
    v_and_b32 v248, 15, v1
    v_lshrrev_b32 v249, 4, v1
    v_lshrrev_b32 v250, 2, v248
    v_and_b32 v248, 3, v248
    v_lshlrev_b32 v248, 3, v248
    v_lshl_add_u32 v248, v250, 7, v248
    v_add_u32 v248, s14, v248
    v_and_b32 v250, 1, v249
    v_lshrrev_b32 v249, 1, v249
    s_cmp_eq_u32 s5, 1
    s_cbranch_scc1 L_rl_c
    v_lshl_add_u32 v248, v250, 5, v248
    s_lshr_b32 s13, s5, 1
    s_add_u32 s23, s13, 9
    v_lshlrev_b32 v249, s23, v249
    v_add_u32 v{RA}, v248, v249
    v_add_u32 v{RA+1}, 64, v{RA}
    v_add_u32 v{RA+2}, 0x800, v{RA}
    v_add_u32 v{RA+3}, 0x840, v{RA}
    s_lshr_b32 s23, 1024, s13
    s_cmp_eq_u32 s5, 0
    s_cselect_b32 s15, 32, 112      ; ksteps
    s_mov_b32 s10, {OFF_W2}
    s_cselect_b32 s10, {OFF_WO}, s10
    s_lshl_b32 s11, s7, 1
    s_mul_i32 s11, s11, s15
    s_lshl_b32 s13, s9, 1
    s_add_u32 s11, s11, s13
    s_lshl_b32 s11, s11, 10
    s_add_u32 s16, s11, s10
    s_lshl_b32 s15, s15, 10
    s_add_u32 s17, s16, s15
    s_add_u32 s18, s16, 1024
    s_add_u32 s19, s17, 1024
    s_branch L_rl_d
    L_rl_c:
    v_lshl_add_u32 v248, v249, 11, v248
    v_lshl_add_u32 v{RA}, v250, 9, v248
    v_add_u32 v{RA+1}, 32, v{RA}
    v_add_u32 v{RA+2}, 64, v{RA}
    v_add_u32 v{RA+3}, 0x60, v{RA}
    s_mov_b32 s23, 1024
    s_lshl_b32 s15, s7, 2
    s_mul_i32 s13, s9, 7
    """)
    for f in range(4):
        k(f"""
        s_mul_i32 s10, s15, 9363
        s_lshr_b32 s10, s10, 16
        s_mul_i32 s11, s10, 105
        s_add_u32 s11, s11, s15
        s_add_u32 s11, s11, s13
        s_lshl_b32 s11, s11, 10
        s_add_u32 s{16+f}, s11, {OFF_W1}
        s_add_u32 s15, s15, 1
        """)
    k.label("L_rl_d")
    for f in range(4):
        k(f"v_add_u32 v{RA+4+f}, s23, v{RA+f}")
    k(f"""
    v_add_u32 v220, s14, v2
    s_lshr_b32 s99, s37, 2
    s_lshl_b32 s99, s99, 3
    s_add_u32 s99, s99, s36
    s_lshl_b32 s99, s99, 2
    s_and_b32 s38, s37, 3
    s_add_u32 s99, s99, s38
    s_add_u32 s99, s99, 64
    v_mul_u32_u24 v221, {4*6144}, v221
    v_and_b32 v249, 1, v1
    v_lshl_add_u32 v221, v249, 4, v221
    s_mul_i32 s15, s3, {128*6144}
    s_lshl_b32 s4, s99, 5
    s_add_u32 s15, s15, s4
    s_cmp_ge_u32 s37, 16
    s_cselect_b32 s15, 0x7f000000, s15
    s_lshl_b32 s20, s2, 1
    s_lshr_b32 s21, s3, 1
    s_add_u32 s20, s20, s21
    s_mul_i32 s20, s20, 6144
    s_and_b32 s21, s3, 1
    s_lshl_b32 s21, s21, 11
    s_add_u32 s20, s20, s21
    s_add_u32 s20, s20, 2048
    s_mov_b64 s[8:9], s[52:53]
    s_mov_b32 s10, s54
    s_mov_b32 s11, 0x00020000
    v_accvgpr_read_b32 v222, a212
    s_mov_b64 s[4:5], s[44:45]
    s_mov_b32 s6, s46
    s_mov_b32 s7, 0x00020000
    v_lshlrev_b32 v{C2+2}, 16, v{C2}
    v_and_b32 v{C2+3}, 0xffff0000, v{C2}
    v_lshlrev_b32 v{C2+4}, 16, v{C2+1}
    v_and_b32 v{C2+5}, 0xffff0000, v{C2+1}
    """)
    silu(k, [C2 + 2 + i for i in range(4)], [M2 + i for i in range(4)])
    stamp(k, 8)
    Q, KF, VF, S, P, O, C = (ATT[x] for x in ("Q", "KF", "VF", "S", "P", "O", "C"))
    TOKP = int(os.environ.get("TOKP", "0"))
    MAP2 = "s_mov_b32 s40, s37\n    s_mov_b32 s54, s36" if TOKP else "s_lshl_b32 s40, s36, 2\n    s_and_b32 s42, s37, 3\n    s_add_u32 s40, s40, s42\n    s_lshr_b32 s54, s37, 2"
    k(f"""
    {MAP2}
    s_lshl_b32 s41, s54, 2
    s_add_u32 s41, s41, s3         ; qblock64
    s_lshl_b32 s42, s40, 16
    s_lshl_b32 s43, s41, 11
    s_add_u32 s42, s42, s43
    s_add_u32 s42, s42, {OFF_Q}
    s_lshl_b32 s44, s40, 17
    s_lshl_b32 s45, s3, 10
    s_add_u32 s47, s44, {OFF_KV}
    s_add_u32 s44, s47, s45
    s_lshl_b32 s46, s41, 16
    s_lshl_b32 s43, s40, 10
    s_add_u32 s46, s46, s43
    s_add_u32 s46, s46, {OFF_O}
    s_lshr_b32 s38, s3, 1
    s_mul_i32 s38, s38, {TS}
    s_and_b32 s39, s45, 1024
    s_add_u32 s13, s38, s39
    s_mov_b32 m0, s13
    v_and_b32 v3, 15, v1
    v_lshlrev_b32 v3, 4, v3
    v_lshrrev_b32 v4, 5, v1
    v_lshl_add_u32 v3, v4, 8, v3
    v_add_u32 v3, 0x400, v3
    v_add_u32 v156, 0x200, v3
    s_mov_b32 s48, 0x0000ffff
    s_mov_b32 s49, 0x0000ffff
    v_and_b32 v8, 27, v1
    v_cmp_eq_u32 vcc, 16, v8
    v_mov_b32 v9, 0x800
    v_mov_b32 v10, 0x810
    v_cndmask_b32 v9, v10, v9, vcc
    v_cndmask_b32 v3, v9, v3, s[48:49]
    v_cndmask_b32 v156, v9, v156, s[48:49]
    v_add_u32 v4, 0x10000, v2
    v_add_u32 v5, 0x10000, v3
    v_add_u32 v157, 0x10000, v156
    v_mul_u32_u24 v8, {TS}, v1
    v_mov_b32 v12, 0x3f803f80
    v_mov_b32 v13, 0x3f803f80
    v_mov_b32 v14, 0x3f803f80
    v_mov_b32 v15, 0x3f803f80
    v_mov_b32 v16, 0
    v_mov_b32 v17, 0
    v_mov_b32 v18, 0
    v_mov_b32 v19, 0
    ds_write_b128 v8, v[12:15] offset:2048
    ds_write_b128 v8, v[16:19] offset:2064
    s_waitcnt lgkmcnt(0)
    """)
    k(f"""
    s_lshr_b32 s50, s37, 3
    s_lshl_b32 s50, s50, 2
    s_add_u32 s50, s50, s3          ; P3 ncol32
    s_lshl_b32 s51, s50, 15
    s_add_u32 s51, s51, {OFF_WO}
    s_lshr_b32 s52, s37, 3
    s_lshl_b32 s52, s52, 1
    s_and_b32 s53, s37, 1
    s_add_u32 s52, s52, s53         ; cb5
    s_lshl_b32 s52, s52, 1
    s_lshr_b32 s53, s3, 1
    s_add_u32 s52, s52, s53
    s_xor_b32 s53, s52, 1
    s_mul_i32 s55, s52, {112*1024}
    s_mul_i32 s56, s53, {112*1024}
    s_mul_i32 s53, s3, {28*1024}
    s_add_u32 s53, s53, {OFF_W2}
    s_add_u32 s55, s55, s53
    s_add_u32 s56, s56, s53
    s_lshr_b32 s57, s37, 3
    s_lshl_b32 s57, s57, 2
    s_and_b32 s53, s37, 3
    s_add_u32 s57, s57, s53         ; cb4
    s_mul_i32 s58, s57, {112*1024}
    s_add_u32 s58, s58, {OFF_W1}
    s_mul_i32 s22, s3, 7168
    s_mul_i32 s23, s3, 21504
    s_add_u32 s21, s58, s23
    s_add_u32 s21, s21, {28*1024}
    v_lshrrev_b32 v8, 5, v1
    v_and_b32 v9, 31, v1
    v_lshlrev_b32 v148, 10, v9
    v_lshl_add_u32 v148, v8, 3, v148
    v_lshlrev_b32 v149, 4, v9
    v_lshl_add_u32 v149, v8, 12, v149
    s_lshl_b32 s59, s36, 3
    s_and_b32 s53, s37, 7
    s_add_u32 s59, s59, s53
    s_lshl_b32 s59, s59, 15
    s_lshl_b32 s53, s50, 6
    s_add_u32 s59, s59, s53
    v_lshlrev_b32 v155, 7, v1
    s_lshr_b32 s0, s2, 2
    s_lshl_b32 s0, s0, 7
    s_and_b32 s53, s2, 3
    s_lshl_b32 s53, s53, 2
    s_add_u32 s0, s0, s53
    s_lshr_b32 s53, s37, 2
    """)
    wait_edge(k, 0, 53 if TOKP else 36, 32)
    stamp(k, 9)
    vm.n = 0
    rid = []
    def dma():
        i = len(rid)
        out = []
        if i < 4:
            if i:
                out += [f"s_add_u32 m0, s13, {2*TS*i}", "s_add_u32 s44, s44, 4096"]
            out += [f"buffer_load_dwordx4 v2, s[24:27], s44 offen {FL} lds"]
        else:
            if i % 4 == 0:
                out += [f"s_add_u32 m0, s43, {2*TS*i}", f"s_add_u32 s44, s41, {4096*i}"]
            if i % 4 == 2:
                out += [f"s_add_u32 m0, s43, {2*TS*(i-2) + TS - 2048}"]
            out += [f"buffer_load_dwordx4 v2, s[24:27], s44 offen offset:{1024*(i%4)} {FL} lds"]
        rid.append(vm.tick())
        return out
    k("s_lshl_b32 s43, s3, 12")
    k("s_add_u32 s41, s47, s43")
    k(f"s_mul_i32 s43, s3, {2*TS}")
    k("s_mov_b32 s100, 0x07060302")
    for x in dma(): k(x)
    vm.op(f"buffer_load_dwordx4 v[{Q}:{Q+3}], v2, s[24:27], s42 offen {FL}")
    qid = vm.op(f"buffer_load_dwordx4 v[{Q+4}:{Q+7}], v2, s[24:27], s42 offen offset:1024 {FL}")
    for r in range(3):
        for x in dma(): k(x)
    fin2 = L()
    fin2(f"""
    s_cmp_lg_u32 s3, 1
    s_cbranch_scc1 L_m2_done
    s_cmp_ge_u32 s37, 16
    s_cbranch_scc1 L_m2_done
    v_lshlrev_b32 v216, 2, v1
    v_add_u32 v217, {LDS_MRED2}, v216
    ds_read_b32 v{M2}, v217
    s_lshr_b32 s38, s99, 5
    s_cmp_eq_u32 s38, 4
    s_cselect_b32 s39, 1.0, 0
    s_waitcnt lgkmcnt(0)
    v_mov_b32 v{M2+1}, v{M2}
    s_nop 1
    v_permlane32_swap_b32 v{M2+1}, v{M2}
    v_add_f32 v{M2}, v{M2+1}, v{M2}
    v_mov_b32 v{M2+1}, v{M2}
    s_nop 1
    v_permlane16_swap_b32 v{M2+1}, v{M2}
    v_add_f32 v{M2}, v{M2+1}, v{M2}
    """)
    bf16_round(fin2, M2, M2)
    fin2(f"v_add_f32 v{M2}, s39, v{M2}")
    bf16_round(fin2, M2, M2)
    fin2(f"""
    s_lshl_b32 s39, s99, 6
    s_mov_b64 exec, 0xffff
    buffer_store_dword v{M2}, v216, s[24:27], s39 offen offset:{OFF_MOD} {FL}
    s_sub_u32 s38, 4, s38
    s_cmp_gt_u32 s38, 1
    s_cbranch_scc1 L_m2_done
    s_lshl_b32 s38, s38, 10
    s_and_b32 s39, s99, 31
    s_lshl_b32 s39, s39, 5
    s_add_u32 s38, s38, s39
    s_add_u32 s38, s38, {OFF_MODB}
    v_bfe_u32 v217, v1, 2, 1
    v_lshlrev_b32 v216, 4, v217
    v_bfe_u32 v217, v1, 3, 1
    v_lshl_add_u32 v216, v217, 3, v216
    v_and_b32 v217, 3, v1
    v_lshl_add_u32 v216, v217, 1, v216
    buffer_store_short_d16_hi v{M2}, v216, s[24:27], s38 offen {FL}
    L_m2_done:
    s_mov_b64 exec, -1
    """)
    vm.wait(qid)
    k("s_barrier")
    def kread(t):
        off = t * TS
        return f"ds_read_b128 v[{KF}:{KF+3}], v{2 if off < 65536 else 4} offset:{off & 0xffff}"
    def vread(t):
        off = t * TS
        b = VF + 8 * (t & 1)
        r_ = [f"ds_read_b128 v[{b}:{b+3}], v{3 if off < 65536 else 5} offset:{off & 0xffff}",
              f"ds_read_b128 v[{b+4}:{b+7}], v{156 if off < 65536 else 157} offset:{off & 0xffff}"]
        if os.environ.get("PROBE") == "mask" and t >= 2:
            r_ = ["s_mov_b64 exec, s[48:49]"] + r_ + ["s_mov_b64 exec, -1"]
        return r_
    k(kread(0))
    for x in vread(0): k(x)
    k(f"""
    s_waitcnt lgkmcnt(2)
    v_mfma_f32_32x32x16_bf16 v[{S}:{S+15}], v[{KF}:{KF+3}], v[{Q}:{Q+3}], 0
    v_mfma_f32_32x32x16_bf16 v[{S+16}:{S+31}], v[{KF}:{KF+3}], v[{Q+4}:{Q+7}], 0
    s_nop 10
    """)
    att_max16(k, 6, S, True)
    att_max16(k, 7, S + 16, True)
    k("""
    s_nop 1
    v_permlane32_swap_b32 v6, v7
    v_max_f32 v6, v6, v7
    v_mov_b32 v7, v6
    s_nop 1
    v_permlane32_swap_b32 v6, v7
    v_sub_f32 v6, 0, v6
    v_sub_f32 v7, 0, v7
    """)
    for i in range(16):
        k(f"v_mov_b32 v{C+i}, v6")
    k("s_nop 0")
    k(f"v_mov_b32 v{C+16}, v7")
    k(f"v_mfma_f32_32x32x16_bf16 v[{S}:{S+15}], v[{KF}:{KF+3}], v[{Q}:{Q+3}], v[{C}:{C+15}]")
    for i in range(1, 16):
        k(f"v_mov_b32 v{C+16+i}, v7")
    stamp(k, 10)
    jobs = []
    for s in range(32):
        pre = ["s_add_u32 s51, s51, 4096"] if (s and s % 4 == 0) else []
        jobs.append(pre + [f"buffer_load_dwordx4 {wo_reg(s)}, v2, s[24:27], s51 offen offset:{(s%4)*1024} {FL}"])
    for s in range(28):
        for i, sr in enumerate((55, 56)):
            pre = [f"s_add_u32 s{sr}, s{sr}, 4096"] if (s and s % 4 == 0) else []
            jobs.append(pre + [f"buffer_load_dwordx4 a[{8*s+4*i}:{8*s+4*i+3}], v2, s[24:27], s{sr} offen offset:{(s%4)*1024} {FL}"])
    w1jobs = []
    for i in range(7):
        pre = [f"s_add_u32 m0, s22, {LDS_W1A + 4096*(i//4)}", f"s_add_u32 s44, s58, s22"] + ([f"s_add_u32 s44, s44, 4096"] if i else []) if i % 4 == 0 else []
        w1jobs.append(pre + [f"buffer_load_dwordx4 v2, s[24:27], s44 offen offset:{1024*(i%4)} sc1 lds"])
    for i in range(21):
        pre = [f"s_add_u32 m0, s23, {4096*(i//4)}", f"s_add_u32 s44, s21, {4096*(i//4)}"] if i % 4 == 0 else []
        w1jobs.append(pre + [f"buffer_load_dwordx4 v2, s[24:27], s44 offen offset:{1024*(i%4)} sc1 lds"])
    modb = ["s_and_b32 s53, s45, 1024", f"s_add_u32 m0, s53, {LDS_MODB}", f"s_add_u32 s53, s53, {OFF_MODB}",
            "buffer_load_dwordx4 v2, s[24:27], s53 offen sc1 lds"]
    vec1 = [f"s_mov_b32 m0, {LDS_VEC}", "s_lshr_b32 s53, s37, 3", "s_lshl_b32 s53, s53, 9", f"s_add_u32 s53, s53, {OFF_MOD + 2*2048}",
            "buffer_load_dwordx4 v149, s[24:27], s53 offen sc1 lds"]
    vec2 = [f"s_mov_b32 m0, {LDS_VEC + 1024}", "s_lshr_b32 s53, s37, 4", "s_lshl_b32 s53, s53, 10", f"s_add_u32 s53, s53, {OFF_MOD + 5*2048}",
            "buffer_load_dwordx4 v2, s[24:27], s53 offen sc1 lds"]
    xj = [[f"buffer_load_dwordx2 v[{140+2*j}:{141+2*j}], v148, s[28:31], s59 offen offset:{16*j}"] for j in range(4)]
    wo_j, w2_j = jobs[:32], jobs[32:]
    NW2 = int(os.environ.get("NW2", "44"))
    w2_late = w2_j[NW2:]
    jobs = w1jobs[:7] + w2_j[:NW2] + wo_j
    late = w1jobs[7:]
    if os.environ.get("PROBE") == "nopf":
        jobs = []; late = []
    vecj = [modb, vec1, vec2]
    pfj = [[f"buffer_load_dwordx4 v[{224+4*i}:{227+4*i}], v2, s[4:7], s20 offen offset:{1024*i}"] for i in range(2)]
    rlj = [["s_add_u32 s12, s12, s1" if i else "s_mov_b32 s12, 0", f"buffer_load_dwordx4 a[{192+4*i}:{195+4*i}], v222, s[8:11], s12 offen"]
           for i in range(4)] if RLATT else []
    m2j = [(["s_add_u32 s15, s15, 6144"] if i else []) + [f"buffer_load_dwordx4 v[{W2M+4*i}:{W2M+4*i+3}], v221, s[4:7], s15 offen"]
           for i in range(4)]
    bg = L()
    for p in range(4):
        for i in range(4):
            src = W2M + 4 * p + i
            t_ = 216 + 2 * (i & 1)
            bg(f"v_lshlrev_b32 v{t_}, 16, v{src}")
            bg(f"v_and_b32 v{t_+1}, 0xffff0000, v{src}")
            if p == 0:
                bg(f"v_pk_mul_f32 v[{M2+2*i}:{M2+2*i+1}], v[{t_}:{t_+1}], v[{C2+2}:{C2+3}] op_sel_hi:[1,0]")
            else:
                sel = "op_sel:[0,1,0] op_sel_hi:[1,1,1]" if p & 1 else "op_sel_hi:[1,0,1]"
                cr = C2 + 2 + (p & 2)
                bg(f"v_pk_fma_f32 v[{M2+2*i}:{M2+2*i+1}], v[{t_}:{t_+1}], v[{cr}:{cr+1}], v[{M2+2*i}:{M2+2*i+1}] {sel}")
    mod_reduce(bg, M2, C2, C2 + 1, 0, LDS_MRED2)
    bg = [x for x in bg if not x.startswith("s_nop")]
    U_RL, U_FLAG, U_XL, U_XC = 4, (30 if TOKP else 20), (48 if TOKP else 44), (54 if TOKP else 50)
    U_M2, U_BG, U_FIN, U_MFLAG, U_ML, U_MC = (38 if TOKP else 32), 56, 68, 76, 112, 118
    if RLATT:
        U_RL, U_FLAG, U_XL, U_XC = 34, 46, 60, 66
        U_M2, U_BG, U_FIN, U_MFLAG = 47, 62, 74, 80
    def flagblk(lab, off, cond, xcc=False):
        val = ["s_getreg_b32 s38, hwreg(HW_REG_XCC_ID, 0, 4)", "s_xor_b32 s38, s38, s98"] if xcc else ["s_mov_b32 s38, s98"]
        return cond + val + [f"s_add_u32 s39, s0, {off}", "s_mov_b64 exec, 1", "v_mov_b32 v6, 0", "v_mov_b32 v7, s38",
                             f"buffer_store_dword v7, v6, s[24:27], s39 offen {FL}", "s_mov_b64 exec, -1", f"{lab}:"]
    def chk(lim):
        return ["v_xor_b32 v150, s98, v150", "v_xor_b32 v151, s98, v151", "v_xor_b32 v152, s98, v152", "v_xor_b32 v153, s98, v153",
                "v_or3_b32 v154, v150, v151, v152", "v_or_b32 v154, v154, v153", f"v_cmp_lt_u32 vcc, {lim}, v154"]
    for tag, off, lim in (("xid", OFF_XID, 0), ("mid", OFF_XID + 8192, 15)):
        OOL.append([f"L_{tag}_retry:", "s_mov_b32 s39, 0x40000", f"s_mov_b32 s53, {off}", f"L_{tag}_spin:",
                    f"buffer_load_dwordx4 v[150:153], v155, s[24:27], s53 offen {FL}", "s_sub_u32 s39, s39, 1", "s_waitcnt vmcnt(0)"] + chk(lim) +
                   [f"s_cbranch_scc1 L_{tag}_ok", "s_sleep 32", f"s_cbranch_vccnz L_{tag}_spin", f"s_branch L_{tag}_ok"])
    for u in range(128):
        t = u >> 1
        side = {}
        def add(slot, xs):
            side.setdefault(slot, []).extend(xs)
        def place(d, slot):
            ms = (7 if u % 2 == 0 else 14) if slot == 1 else 21
            if len(d) == 2 and d[0].startswith("s_add_u32 m0"):
                add(ms - 1, d[:1]); add(ms, d[1:])
            else:
                add(ms, d)
        def put(d, slot):
            place(d, slot)
            return vm.tick()
        if u % 2 == 1 or u == 0:
            add(7, ["s_waitcnt lgkmcnt(0)"])
        if len(rid) < 32:
            place(dma(), 1)
        elif rlj:
            rlid = put(rlj.pop(0), 1)
        elif pfj:
            put(pfj.pop(0), 1)
        elif xj:
            put(xj.pop(0), 1)
        elif U_M2 <= u < U_M2 + 4:
            m2id = put(m2j[u - U_M2], 1)
        elif vecj and u > U_MC:
            put(vecj.pop(0), 1)
        elif jobs and u > U_XC and (u > U_MFLAG or len(jobs) > 24):
            put(jobs.pop(0), 1)
        if u == U_BG:
            add(7, [vm.wait_str(m2id)])
        if u > U_BG:
            for sl in (4, 6, 8, 11, 13, 18, 20, 25):
                if bg:
                    add(sl, [bg.pop(0)])
        if u % 2 == 0 and t < 63:
            pre = []
            if u == 2:
                pre = [vm.wait_str(rid[3]), "s_barrier"]
            elif u == 14:
                pre = [vm.wait_str(rid[11 if TOKP else 15]), "s_barrier"]
            elif u == U_FLAG:
                pre = [vm.wait_str(max(rid[31], rlst)), "s_barrier"] + flagblk("L_noxid", OFF_XID, ["s_cmp_lg_u32 s3, 1", "s_cbranch_scc1 L_noxid"])
            elif u == U_FIN:
                assert not bg
                pre = ["s_barrier"] + list(fin2)
                finid = vm.n
            elif u == U_MFLAG:
                pre = flagblk("L_nomid", OFF_XID + 8192, ["s_cmp_lg_u32 s3, 1", "s_cbranch_scc1 L_nomid", vm.wait_str(finid)], xcc=True)
            elif u == 86:
                pre = ["s_barrier"]
            add(14, pre + [kread(t + 1)] + vread(t + 1))
        if u == U_RL - 2:
            if RLATT:
                add(16, [vm.wait_str(rlid)])
            for i in range(4):
                add(17 + 2 * i, [f"ds_write_b128 v220, a[{192+4*i}:{195+4*i}] offset:{1024*i}"])
        if u == U_RL:
            for f in range(4):
                add(17 + 2 * f, [f"ds_read_b64_tr_b16 v[{RD+4*f}:{RD+4*f+1}], v{RA+f}"])
                add(18 + 2 * f, [f"ds_read_b64_tr_b16 v[{RD+4*f+2}:{RD+4*f+3}], v{RA+4+f}"])
        if U_RL + 1 <= u < U_RL + 9 and u % 2 == 1:
            f = (u - U_RL - 1) // 2
            add(14, [f"buffer_store_dwordx4 v[{RD+4*f}:{RD+4*f+3}], v2, s[24:27], s{16+f} offen {FL}"])
            rlst = vm.tick()
        if len(rid) < 32 and (not TOKP or u < 4):
            place(dma(), 17)
        elif u in (U_XL, U_ML):
            off = OFF_XID if u == U_XL else OFF_XID + 8192
            xidid = put([f"s_mov_b32 s53, {off}", f"buffer_load_dwordx4 v[150:153], v155, s[24:27], s53 offen {FL}"], 17)
        elif u in (U_XC, U_MC):
            tag = "xid" if u == U_XC else "mid"
            add(17, [vm.wait_str(xidid)] + chk(0 if u == U_XC else 15))
            add(24, [f"s_cbranch_vccnz L_{tag}_retry", f"L_{tag}_ok:"])
        elif u >= 87 and late:
            put(late.pop(0), 17)
        elif jobs and u > U_XC + (3 if RLATT else 7) and (RLATT or u % 4 != 3) and (u > U_MFLAG or len(jobs) > 24):
            put(jobs.pop(0), 17)
        if DIAG and os.environ.get('ATTST') and u in (14, 24, 32, 52, 60, 76, 88, 108):
            stamp(k, (14, 24, 32, 52, 60, 76, 88, 108).index(u))
        att_unit(k, u, side, last=(u == 127))
    assert not vecj
    assert not jobs and not late, (len(jobs), len(late))
    k(f"""
    s_nop 0
    v_cvt_pk_bf16_f32 v{P+7}, v{S+30}, v{S+31}
    s_nop 1
    v_mfma_f32_32x32x16_bf16 v[{O+16}:{O+31}], v[{VF+12}:{VF+15}], v[{P+4}:{P+7}], v[{O+16}:{O+31}]
    s_mov_b32 s53, 0x53800000
    v_cmp_nge_f32 vcc, s53, v{O+8}
    s_nop 9
    v_cmp_nge_f32 s[42:43], s53, v{O+24}
    s_nop 3
    s_or_b64 vcc, vcc, s[42:43]
    s_cbranch_scc0 L_att_fin
    s_branch {'L_att_fin' if os.environ.get('PROBE') else 'L_att_fallback'}
    """)
    k.label("L_att_fin")
    stamp(k, 11)
    XR, XU, GA, A2 = 140, 44, 108, 124
    k(f"""
    v_rcp_f32 v6, v{O+8}
    v_rcp_f32 v7, v{O+24}
    s_lshl_b32 s42, s36, 3
    s_and_b32 s43, s37, 7
    s_add_u32 s42, s42, s43         ; t3 (tok32)
    v_lshrrev_b32 v8, 5, v1         ; h
    v_and_b32 v9, 31, v1            ; tok
    """)
    dual_begin(k)
    for b_ in range(2):
        for i in range(8):
            k(f"v_mul_f32 v{O+16*b_+i}, v{6+b_}, v{O+16*b_+i}")
        for i in range(4):
            k(f"v_cvt_pk_bf16_f32 v{P+4*b_+i}, v{O+16*b_+2*i}, v{O+16*b_+2*i+1}")
        if b_:
            k("s_add_u32 s46, s46, 32768")
        k(f"buffer_store_dwordx4 v[{P+4*b_}:{P+4*b_+3}], v2, s[24:27], s46 offen {DF}")
    k(f"""
    v_add_u32 v5, 0x20000, v2
    v_lshrrev_b32 v12, 4, v9
    v_lshlrev_b32 v12, 14, v12
    v_and_b32 v13, 15, v9
    v_lshl_add_u32 v12, v13, 4, v12
    v_lshl_add_u32 v12, v8, 8, v12
    v_lshlrev_b32 v13, 3, v9
    s_lshl_b32 s43, s3, 10
    s_lshl_b32 s44, s42, 15
    s_lshl_b32 s45, s50, 10
    s_add_u32 s44, s44, s45
    s_add_u32 s45, s44, {OFF_X2S}
    s_add_u32 s44, s44, {OFF_X2}
    s_lshl_b32 s46, s42, 12
    s_lshl_b32 s47, s50, 8
    s_add_u32 s46, s46, s47
    s_add_u32 s46, s46, {OFF_ST2}
    s_lshl_b32 s47, s42, 15
    s_add_u32 s47, s47, s43
    s_add_u32 s47, s47, {OFF_O}
    s_add_u32 m0, s43, {LDS_OST}
    """)
    k(f"""
    v_lshl_or_b32 v150, v151, 4, v150
    v_lshl_or_b32 v152, v153, 4, v152
    v_lshl_or_b32 v150, v152, 8, v150
    v_and_b32 v151, 1, v1
    v_readlane_b32 s38, v150, 0
    v_readlane_b32 s39, v150, 1
    v_cmp_eq_u32 vcc, 1, v151
    v_mov_b32 v152, s38
    v_mov_b32 v153, s39
    v_cndmask_b32 v152, v152, v153, vcc
    v_cmp_ne_u32 vcc, v152, v150
    s_nop 3
    s_cmp_eq_u64 vcc, 0
    s_cselect_b32 s{S_FAST}, 1, 0
    """)
    def w2some(n):
        for _ in range(n):
            for y in w2_late.pop(0):
                k(y)
        return n
    ND = [int(x) for x in os.environ.get("ND", "0,0,0").split(",")]
    signal(k, 1, 54, 40, 32, nafter=w2some(ND[0]), fast=bool(TOKP))
    dual_end(k, 'e1')
    stamp(k, 12)
    k(f"""
    s_lshl_b32 s38, s3, 7
    s_add_u32 s38, s38, {LDS_VEC}
    v_lshlrev_b32 v10, 4, v8
    v_add_u32 v10, s38, v10
    """)
    for j in range(4):
        k(f"ds_read_b128 v[{GA+4*j}:{GA+4*j+3}], v10 offset:{32*j}")
        k(f"ds_read_b128 v[{A2+4*j}:{A2+4*j+3}], v10 offset:{512+32*j}")
    for i in range(8):
        k(f"v_lshlrev_b32 v{XU+2*i}, 16, v{XR+i}")
        k(f"v_and_b32 v{XU+2*i+1}, 0xffff0000, v{XR+i}")
    MA_, WU, UA = 60, 92, 36
    k(f"""
    v_add_u32 v14, s43, v2
    v_add_u32 v15, s43, v4
    v_add_u32 v16, s43, v5
    v_and_b32 v17, 15, v1
    v_lshrrev_b32 v18, 4, v1
    v_lshlrev_b32 v17, 10, v17
    v_lshl_add_u32 v17, v18, 4, v17
    v_add_u32 v17, {LDS_MODB}, v17
    s_mov_b32 s48, 0x00030003
    s_mov_b32 s49, 0x00030003
    """)
    for i in range(32):
        k(f"v_mov_b32 v{MA_+i}, 0")
    def mread(s0):
        k("s_mov_b64 exec, s[48:49]")
        for s in range(s0, s0 + 8):
            k(f"ds_read_b128 v[{MA_+4*(s%8)}:{MA_+4*(s%8)+3}], v17 offset:{64*s}")
        k("s_mov_b64 exec, -1")
    def uread(s):
        for h in range(2):
            addr = w1_lds(s * 7) + 4 * h * 1024
            r = WU + 8 * (s & 1) + 4 * h
            k(f"ds_read_b128 v[{r}:{r+3}], v{14 + (addr >> 16)} offset:{addr & 0xffff}")
    def ut_steps(s0, s1):
        for s in range(s0, s1):
            if s < 15:
                uread(s + 1)
                k("s_waitcnt lgkmcnt(2)")
            else:
                k("s_waitcnt lgkmcnt(0)")
            for h in range(2):
                u_ = UA + 4 * h
                r = WU + 8 * (s & 1) + 4 * h
                c = "0" if s == 0 else f"v[{u_}:{u_+3}]"
                k(f"v_mfma_f32_16x16x32_bf16 v[{u_}:{u_+3}], v[{MA_+4*(s%8)}:{MA_+4*(s%8)+3}], v[{r}:{r+3}], {c}")
    mread(0)
    uread(0)
    UTE = int(os.environ.get("UTE", "8"))
    ut_steps(0, UTE)
    if UTE == 8:
        mread(8)
    stamp(k, 13)
    wait_edge(k, 1, 36, 32)
    stamp(k, 14)
    vm.n = 0
    oid = []
    for i in range(8):
        if i:
            k("s_add_u32 m0, m0, 4096")
            k("s_add_u32 s47, s47, 4096")
        oid.append(vm.op(f"buffer_load_dwordx4 v2, s[24:27], s47 offen {FL} lds"))
    if UTE < 8:
        ut_steps(UTE, 8)
        mread(8)
    ut_steps(8, 16)
    k("s_nop 6")
    for h in range(2):
        u_ = UA + 4 * h
        d = WU + 4 * h
        for i in range(2):
            bf16_round(k, 18 + i, u_ + i)
        for i in range(2):
            k(f"v_sub_f32 v{u_+i}, v{u_+i}, v{18+i}")
        for i in range(2):
            k(f"v_cvt_pk_bf16_f32 v{d+i}, v{18+i}, v{u_+i}")
        k(f"v_mov_b32 v{d+2}, 0")
        k(f"v_mov_b32 v{d+3}, 0")
        k(f"ds_write_b128 v15, v[{d}:{d+3}] offset:{LDS_UT + 4*h*1024 - 65536}")
    AC, OFR = 20, 60
    chunks = [(0, 8), (8, 20), (20, 32)]
    for (c0, c1) in chunks:
        vm.wait(oid[c1 // 4 - 1])
        k("s_barrier")
        n = c1 - c0
        ahead = 6
        for s in range(c0, min(c1, c0 + ahead)):
            k(lds_rd(f"v[{OFR+4*(s%8)}:{OFR+4*(s%8)+3}]", LDS_OST + s * 1024))
        for s in range(c0, c1):
            issued = min(c1, s + ahead)
            k(f"s_waitcnt lgkmcnt({issued - 1 - s})")
            c = "0" if s == 0 else f"v[{AC}:{AC+15}]"
            k(f"v_mfma_f32_32x32x16_bf16 v[{AC}:{AC+15}], {wo_reg(s)}, v[{OFR+4*(s%8)}:{OFR+4*(s%8)+3}], {c}")
            if s + ahead < c1:
                s2 = s + ahead
                k(lds_rd(f"v[{OFR+4*(s2%8)}:{OFR+4*(s2%8)+3}]", LDS_OST + s2 * 1024))
    k("s_nop 11")
    stamp(k, 15)
    for i in range(8):
        k(f"v_pk_fma_f32 v[{AC+2*i}:{AC+2*i+1}], v[{GA+2*i}:{GA+2*i+1}], v[{AC+2*i}:{AC+2*i+1}], v[{XU+2*i}:{XU+2*i+1}]")
    for i in range(8):
        k(f"v_pk_mul_f32 v[{A2+2*i}:{A2+2*i+1}], v[{A2+2*i}:{A2+2*i+1}], v[{AC+2*i}:{AC+2*i+1}]")
    for i in range(8):
        k(f"v_cvt_pk_bf16_f32 v{60+i}, v{A2+2*i}, v{A2+2*i+1}")
    dual_begin(k)
    k(f"buffer_store_dwordx4 v[60:63], v12, s[24:27], s45 offen {DF}")
    k(f"buffer_store_dwordx4 v[64:67], v12, s[24:27], s45 offen offset:512 {DF}")
    k(f"v_pk_add_f32 v[14:15], v[{AC}:{AC+1}], v[{AC+2}:{AC+3}]")
    k(f"v_pk_mul_f32 v[16:17], v[{AC}:{AC+1}], v[{AC}:{AC+1}]")
    for i in range(1, 8):
        if i >= 2:
            k(f"v_pk_add_f32 v[14:15], v[14:15], v[{AC+2*i}:{AC+2*i+1}]")
        k(f"v_pk_fma_f32 v[16:17], v[{AC+2*i}:{AC+2*i+1}], v[{AC+2*i}:{AC+2*i+1}], v[16:17]")
    k("v_add_f32 v14, v14, v15")
    k("v_add_f32 v15, v16, v17")
    k("v_mov_b32 v16, v14")
    k("v_mov_b32 v17, v15")
    for i in range(2):
        k(f"v_cvt_pk_bf16_f32 v{144+i}, v{AC+2*i}, v{AC+2*i+1}")
    k("v_permlane32_swap_b32 v16, v14")
    k("v_permlane32_swap_b32 v17, v15")
    k("v_pk_add_f32 v[14:15], v[14:15], v[16:17]")
    k("s_mov_b32 exec_hi, 0")
    k(f"buffer_store_dwordx2 v[14:15], v13, s[24:27], s46 offen {DF}")
    k("s_mov_b32 exec_hi, -1")
    for i in range(2, 8):
        k(f"v_cvt_pk_bf16_f32 v{144+i}, v{AC+2*i}, v{AC+2*i+1}")
    k("v_mov_b32 v156, v12")
    k("s_mov_b32 s59, s44")
    x2st = [f"buffer_store_dwordx4 v[144:147], v156, s[24:27], s59 offen {FL}", f"buffer_store_dwordx4 v[148:151], v156, s[24:27], s59 offen offset:512 {FL}"]
    k("""
    s_lshr_b32 s40, s42, 2          ; E3 group
    s_and_b32 s41, s42, 3
    s_lshl_b32 s41, s41, 2
    s_lshr_b32 s43, s37, 3
    s_add_u32 s41, s41, s43         ; member
    """)
    signal(k, 2, 40, 41, 16, nafter=w2some(ND[1]), fast=True)
    dual_end(k, 'e2')
    stamp(k, 16)
    ACC4, WF, ST, SB = 8, 64, 120, 136
    k(f"""
    s_lshl_b32 s40, s36, 1
    s_bfe_u32 s41, s37, 0x10002
    s_add_u32 s40, s40, s41        ; tb4
    s_lshl_b32 s44, s40, 2
    s_add_u32 s44, s44, s3         ; tok32
    s_lshl_b32 s45, s44, 15
    s_add_u32 s45, s45, {OFF_X2S}
    s_add_u32 s46, s45, 16384
    v_and_b32 v3, 15, v1
    v_lshrrev_b32 v152, 4, v1
    v_lshlrev_b32 v153, 3, v3
    v_lshl_add_u32 v153, v152, 10, v153
    s_lshl_b32 s47, s44, 12
    s_add_u32 s47, s47, {OFF_ST2}
    s_mul_i32 s42, s44, {112*1024}
    s_mul_i32 s43, s57, {7*1024}
    s_add_u32 s42, s42, s43
    s_add_u32 s42, s42, {OFF_H}
    s_add_u32 s43, s42, 4096
    """)
    NA = int(os.environ.get("P4A", "4"))
    passes = [list(range(NA)), list(range(NA, 7))] if NA < 7 else [list(range(7))]
    fseq = [(s, i) for ps in passes for s in range(17) for i in ps]
    RING, LA = 14, int(os.environ.get("P4LA", "10"))
    def wreg(n):
        return f"v[{WF+4*(n%RING)}:{WF+4*(n%RING)+3}]"
    def wrd(n):
        s, i = fseq[n]
        return lds_rd(wreg(n), w1_lds(s * 7 + i))
    for n in range(LA):
        k(wrd(n))
    wait_edge(k, 2, 40, 16)
    wbl2(k, "a")
    stamp(k, 17)
    vm.n = 0
    xid = []
    def xload():
        s = len(xid)
        if s >= 16:
            return
        if s and s % 4 == 0:
            k("s_add_u32 s45, s45, 4096")
            k("s_add_u32 s46, s46, 4096")
        vm.op(f"buffer_load_dwordx4 {wo_reg(2*s)}, v2, s[24:27], s45 offen offset:{(s%4)*1024} {FL}")
        xid.append(vm.op(f"buffer_load_dwordx4 {wo_reg(2*s+1)}, v2, s[24:27], s46 offen offset:{(s%4)*1024} {FL}"))
    for s in range(int(os.environ.get("P4D", "7"))):
        xload()
    stl = [f"buffer_load_dwordx2 v[{ST+8*j+2*pp}:{ST+8*j+2*pp+1}], v153, s[24:27], s47 offen offset:{256*pp+128*j} {FL}"
           for j in range(2) for pp in range(4)]
    fill = L()
    for j in range(2):
        b = ST + 8 * j
        fill(f"v_pk_add_f32 v[{b}:{b+1}], v[{b}:{b+1}], v[{b+2}:{b+3}]")
        fill(f"v_pk_add_f32 v[{b+4}:{b+5}], v[{b+4}:{b+5}], v[{b+6}:{b+7}]")
        fill(f"v_pk_add_f32 v[{b}:{b+1}], v[{b}:{b+1}], v[{b+4}:{b+5}]")
    regs = [ST, ST + 1, ST + 8, ST + 9]
    tmp = [ST + 2, ST + 3, ST + 10, ST + 11]
    for op in ("v_permlane16_swap_b32", "v_permlane32_swap_b32"):
        for r, t in zip(regs, tmp):
            fill(f"v_mov_b32 v{t}, v{r}")
        fill("s_nop 1")
        for r, t in zip(regs, tmp):
            fill(f"{op} v{t}, v{r}")
        for r, t in zip(regs, tmp):
            fill(f"v_add_f32 v{r}, v{t}, v{r}")
    for j in range(2):
        b = ST + 8 * j
        ln_stats_finish(fill, b, b + 1, b + 4, b + 5, None, std_out=b + 6)
        fill(f"v_cvt_pk_bf16_f32 v{SB+4*j}, -v{b+4}, -v{b+4}")
        fill(f"v_cvt_pk_bf16_f32 v{SB+4*j+1}, v{b+6}, v{b+6}")
        fill(f"v_mov_b32 v{SB+4*j+2}, 0")
        fill(f"v_mov_b32 v{SB+4*j+3}, 0")
    fill(f"""
    v_lshlrev_b32 v154, 2, v3
    s_lshl_b32 s41, s3, 7
    v_add_u32 v154, s41, v154
    v_add_u32 v154, {LDS_R}, v154
    """)
    def tile_epi(i):
        a = ACC4 + 8 * i
        e = L()
        for q in range(4):
            e(f"v_cvt_pk_bf16_f32 v{a+q}, v{a+2*q}, v{a+2*q+1}")
        for q in range(4):
            e(f"v_pk_max_i16 v{a+q}, v{a+q}, 0")
        t = L()
        t(f"v_permlane16_swap_b32 v{a}, v{a+2}")
        t(f"v_permlane16_swap_b32 v{a+1}, v{a+3}")
        t(f"buffer_store_dwordx4 v[{a}:{a+3}], v2, s[24:27], s{42 if i < 4 else 43} offen offset:{(i%4)*1024} {FL}")
        return e, t
    def epi_seq(tiles):
        out = []
        prev = None
        for i in tiles:
            e, t = tile_epi(i)
            out += e
            if prev:
                out += prev
            prev = t
        return out + ["s_nop 1"] + prev
    FS = int(os.environ.get("P4FS", "7"))
    nrd = LA
    n = 0
    for pi, ps in enumerate(passes):
        for s in range(17):
            last = n + len(ps) - 1
            w = f"lgkmcnt({nrd - 1 - last})"
            if pi == 0 and s < 16:
                k(vm.wait_str(xid[s]) + " " + w)
            else:
                k("s_waitcnt " + w)
            if pi == 0 and s == FS:
                vm.wait(sid)
            if pi == 0 and s == 16:
                while fill:
                    k(fill.pop(0))
                k("s_nop 1")
            if pi == 1 and s == 0:
                fill = L()
                fill(f"""
                ds_write_b32 v154, v{ST+5}
                ds_write_b32 v154, v{ST+13} offset:64
                v_lshlrev_b32 v158, 8, v3
                v_mov_b32 v159, s98
                s_lshl_b32 s50, s40, 12
                s_add_u32 s50, s50, {OFF_FLAG + 3*65536}
                """)
                extra_lgkm = 2
            if pi == 1 and s == 1:
                fill = epi_seq(passes[0])
                fill = [x for x in fill if not x.startswith("s_nop")]
                fill += [l.strip() for l in f"""s_lshl_b32 s51, s57, 8
                s_add_u32 s51, s51, s50
                s_lshl_b32 s58, s36, 2
                s_bfe_u32 s41, s37, 0x20001
                s_add_u32 s58, s58, s41
                s_lshl_b32 s58, s58, 1
                s_and_b32 s41, s3, 1
                s_add_u32 s58, s58, s41
                s_xor_b32 s41, s58, 1
                s_mul_i32 s46, s58, {112*1024}
                s_mul_i32 s47, s41, {112*1024}
                s_mul_i32 s41, s3, {28*1024}
                s_add_u32 s41, s41, {OFF_H}
                s_add_u32 s46, s46, s41
                s_add_u32 s47, s47, s41""".split("\n")]
            if pi == 1 and s == int(os.environ.get("SIGA", "15")):
                assert not fill
                k("s_waitcnt vmcnt(0)")
                k("s_barrier")
                for x in flag_store("L_f4a", 51, 0): k(x)
            m_ = 0
            for i in ps:
                for j in range(2):
                    a = ACC4 + 8 * i + 4 * j
                    c = "0" if s == 0 else f"v[{a}:{a+3}]"
                    bop = wo_reg(2 * s + j) if s < 16 else f"v[{SB+4*j}:{SB+4*j+3}]"
                    k(f"v_mfma_f32_16x16x32_bf16 v[{a}:{a+3}], {wreg(n)}, {bop}, {c}")
                    if j == 1 and nrd < len(fseq):
                        k(wrd(nrd)); nrd += 1
                    elif pi == 0 and m_ == 0:
                        xload()
                    elif pi == 0 and m_ in (2, 4, 6) and stl and s >= 1:
                        sid = vm.op(stl.pop(0))
                    elif pi == 0 and s >= 10 and m_ == 6 and x2st:
                        vm.op(x2st.pop(0))
                    elif pi == 0 and s >= 10 and m_ in (2, 4) and len(w2_late) > ND[2]:
                        for y in w2_late.pop(0):
                            k(y)
                        vm.tick()
                    if (pi == 1 or s >= FS) and fill:
                        k(fill.pop(0))
                        if fill and j == 0:
                            k(fill.pop(0))
                    m_ += 1
                n += 1
    assert not fill and not x2st and len(w2_late) == ND[2], (len(fill), len(w2_late))
    stamp(k, 18)
    vm.n = 0
    pa = vm.op(f"buffer_load_dword v157, v158, s[24:27], s50 offen {FL}")
    k("s_nop 4")
    for x in epi_seq(passes[-1]):
        k(x)
        if x.startswith("buffer"):
            vm.tick()
    stamp(k, 19)
    vm.wait(pa)
    k("v_cmp_ne_u32 vcc, s98, v157")
    for tag, imm in (("a", 0), ("b", 128)):
        OOL.append([f"L_p4{tag}_spin:", "s_mov_b32 s39, 0x40000", f"L_p4{tag}_spin2:",
                    f"buffer_load_dword v157, v158, s[24:27], s50 offen offset:{imm} {FL}", "s_sub_u32 s39, s39, 1", "s_waitcnt vmcnt(0)",
                    "v_cmp_ne_u32 vcc, s98, v157", f"s_cbranch_scc1 L_p4{tag}_ok", "s_nop 1", f"s_cbranch_vccnz L_p4{tag}_spin2", f"s_branch L_p4{tag}_ok"])
    ACC5, RB, DEPTH = 8, 72, 10
    G5, X5, R5 = 224, 240, 248
    kord = [7 * p + i for p in range(4) for i in passes[0]] + [7 * p + i for p in range(4) for i in passes[1]]
    NAK = 4 * len(passes[0])
    hid = []
    base = [None]
    def hload():
        s = len(hid)
        if s >= 28:
            return
        r = RB + 8 * (s % DEPTH)
        ks = kord[s]
        if base[0] is None or not (0 <= ks - base[0] < 4):
            base[0] = ks
            k(f"s_add_u32 s44, s46, {1024*ks}")
            k(f"s_add_u32 s45, s47, {1024*ks}")
        off = (ks - base[0]) * 1024
        vm.op(f"buffer_load_dwordx4 v[{r}:{r+3}], v2, s[24:27], s44 offen offset:{off} {FL}")
        hid.append(vm.op(f"buffer_load_dwordx4 v[{r+4}:{r+7}], v2, s[24:27], s45 offen offset:{off} {FL}"))
    k("s_nop 1")
    k("s_cbranch_vccnz L_p4a_spin")
    k.label("L_p4a_ok")
    stamp(k, 22)
    P5D = int(os.environ.get("P5D", "6"))
    for s in range(P5D):
        hload()
    f5 = L()
    f5(f"""
    v_lshrrev_b32 v250, 5, v1
    v_and_b32 v251, 31, v1
    v_lshlrev_b32 v252, 4, v250
    s_and_b32 s41, s52, 7
    s_lshl_b32 s41, s41, 7
    s_add_u32 s41, s41, {LDS_VEC + 1024}
    v_add_u32 v252, s41, v252
    v_lshrrev_b32 v249, 4, v251
    v_lshlrev_b32 v249, 14, v249
    v_and_b32 v254, 15, v251
    v_lshl_add_u32 v249, v254, 4, v249
    v_lshl_add_u32 v249, v250, 8, v249
    s_lshl_b32 s42, s58, 15
    s_lshl_b32 s41, s52, 10
    s_add_u32 s43, s42, s41
    s_add_u32 s43, s43, {OFF_X2}
    s_and_b32 s41, s58, 3
    s_lshl_b32 s41, s41, 7
    s_add_u32 s41, s41, {LDS_R}
    v_lshlrev_b32 v254, 2, v251
    v_add_u32 v254, s41, v254
    v_lshlrev_b32 v253, 10, v251
    v_lshl_add_u32 v253, v250, 4, v253
    s_lshl_b32 s41, s52, 6
    s_add_u32 s42, s42, s41
    """)
    for j in range(4):
        f5(f"ds_read_b128 v[{G5+4*j}:{G5+4*j+3}], v252 offset:{32*j}")
    f5(f"ds_read_b32 v{R5}, v254")
    for x in f5: k(x)
    f5 = L()
    f5("s_waitcnt lgkmcnt(0)")
    for i in range(16):
        f5(f"v_mul_f32 v{G5+i}, v{R5}, v{G5+i}")
    for t in (1, 2, 3):
        f5(f"""
        s_xor_b32 s56, s3, {t}
        s_mul_i32 s56, s56, 12288
        s_add_u32 s56, s56, {(t-1)*4096}
        v_add_u32 v{3+t}, s56, v2
        """)
    f5("s_mul_i32 s56, s3, 12288")
    f5("v_add_u32 v3, s56, v2")
    PBS = int(os.environ.get("PBS", "4"))
    checked = False
    for s in range(28):
        vm.wait(hid[s])
        if s == 1:
            k("s_barrier")
            for x in flag_store("L_f4b", 51, 128): k(x)
        if len(hid) == NAK and not checked and hid[s] > pb:
            k("v_cmp_ne_u32 vcc, s98, v157")
        r = RB + 8 * (s % DEPTH)
        ks = kord[s]
        A0, A1 = f"a[{8*ks}:{8*ks+3}]", f"a[{8*ks+4}:{8*ks+7}]"
        B0, B1 = f"v[{r}:{r+3}]", f"v[{r+4}:{r+7}]"
        for t, (a, b) in enumerate(((A0, B0), (A0, B1), (A1, B0), (A1, B1))):
            acc = ACC5 + 16 * t
            c = "0" if s == 0 else f"v[{acc}:{acc+15}]"
            k(f"v_mfma_f32_32x32x16_bf16 v[{acc}:{acc+15}], {a}, {b}, {c}")
            if t == 0 and s == PBS:
                pb = vm.op(f"buffer_load_dword v157, v158, s[24:27], s50 offen offset:128 {FL}")
            if t == 1 and len(hid) == NAK and not checked and hid[s] > pb:
                k("s_cbranch_vccnz L_p4b_spin")
                k.label("L_p4b_ok")
                checked = True
            if t in (0, 1, 2) and (len(hid) < NAK or checked) and len(hid) - s <= P5D:
                hload()
            if t == 2 and s in (14, 15):
                vm.op(f"buffer_load_dwordx4 v[{X5+4*(s-14)}:{X5+4*(s-14)+3}], v249, s[24:27], s43 offen offset:{512*(s-14)} {FL}")
            if t == 3:
                for _ in range(3):
                    if f5:
                        k(f5.pop(0))
    assert not f5 and checked
    XU5, TMP5 = 72, 88
    stamp(k, 23)
    XU5, TMP5 = 160, 176
    for i in range(5):
        k(f"v_lshlrev_b32 v{XU5+2*i}, 16, v{X5+i}")
        k(f"v_and_b32 v{XU5+2*i+1}, 0xffff0000, v{X5+i}")
    for t in (1, 2, 3):
        for q in range(4):
            k(f"ds_write_b128 v{3+t}, v[{ACC5+16*t+4*q}:{ACC5+16*t+4*q+3}] offset:{q*1024}")
    for i in range(5, 8):
        k(f"v_lshlrev_b32 v{XU5+2*i}, 16, v{X5+i}")
        k(f"v_and_b32 v{XU5+2*i+1}, 0xffff0000, v{X5+i}")
    k(f"""
    s_waitcnt lgkmcnt(0)
    s_barrier
    """)
    for i in range(12):
        k(f"ds_read_b128 v[{TMP5+4*i}:{TMP5+4*i+3}], v3 offset:{i*1024}")
    for sl in range(3):
        k(f"s_waitcnt lgkmcnt({8-4*sl})")
        for i in range(8):
            k(f"v_pk_add_f32 v[{ACC5+2*i}:{ACC5+2*i+1}], v[{ACC5+2*i}:{ACC5+2*i+1}], v[{TMP5+16*sl+2*i}:{TMP5+16*sl+2*i+1}]")
    stamp(k, 24)
    for i in range(8):
        k(f"v_pk_fma_f32 v[{ACC5+2*i}:{ACC5+2*i+1}], v[{G5+2*i}:{G5+2*i+1}], v[{ACC5+2*i}:{ACC5+2*i+1}], v[{XU5+2*i}:{XU5+2*i+1}]")
    for i in range(8):
        k(f"v_cvt_pk_bf16_f32 v{TMP5+i}, v{ACC5+2*i}, v{ACC5+2*i+1}")
    k("s_nop 0")
    for p in range(2):
        t = TMP5 + 4 * p
        k(f"v_permlane32_swap_b32 v{t}, v{t+2}")
        k(f"v_permlane32_swap_b32 v{t+1}, v{t+3}")
        k(f"buffer_store_dwordx4 v[{t}:{t+3}], v253, s[32:35], s42 offen offset:{32*p} {os.environ.get('OUTFL', '')}")
    endpgm(k)
    k.label("L_att_fallback")
    k(f"""
    s_mov_b32 s42, 0
    s_mov_b32 s43, s47
    v_mov_b32 v6, 0xff800000
    v_mov_b32 v7, 0xff800000
    """)
    k.label("L_att_maxloop")
    k(f"""
    buffer_load_dwordx4 v[{KF}:{KF+3}], v2, s[24:27], s43 offen {FL}
    s_add_u32 s43, s43, 2048
    s_waitcnt vmcnt(0)
    v_mfma_f32_32x32x16_bf16 v[{S}:{S+15}], v[{KF}:{KF+3}], v[{Q}:{Q+3}], 0
    v_mfma_f32_32x32x16_bf16 v[{S+16}:{S+31}], v[{KF}:{KF+3}], v[{Q+4}:{Q+7}], 0
    s_nop 10
    """)
    att_max16(k, 6, S, False)
    att_max16(k, 7, S + 16, False)
    k(f"""
    s_add_u32 s42, s42, 1
    s_cmp_lt_u32 s42, 64
    s_cbranch_scc1 L_att_maxloop
    s_nop 0
    v_permlane32_swap_b32 v6, v7
    v_max_f32 v6, v6, v7
    v_mov_b32 v7, v6
    s_nop 1
    v_permlane32_swap_b32 v6, v7
    v_sub_f32 v6, 0, v6
    v_sub_f32 v7, 0, v7
    """)
    for i in range(16):
        k(f"v_mov_b32 v{C+i}, v6")
        k(f"v_mov_b32 v{C+16+i}, v7")
        k(f"v_mov_b32 v{O+i}, 0")
        k(f"v_mov_b32 v{O+16+i}, 0")
    k("s_mov_b32 s42, 0")
    k("s_mov_b32 s43, s47")
    k.label("L_att_redo")
    k(f"""
    buffer_load_dwordx4 v[{KF}:{KF+3}], v2, s[24:27], s43 offen {FL}
    s_mov_b64 exec, s[48:49]
    buffer_load_dwordx4 v[{VF}:{VF+3}], v3, s[24:27], s43 offen {FL}
    buffer_load_dwordx4 v[{VF+4}:{VF+7}], v3, s[24:27], s43 offen offset:512 {FL}
    s_mov_b64 exec, -1
    s_add_u32 s43, s43, 2048
    s_waitcnt vmcnt(0)
    v_mfma_f32_32x32x16_bf16 v[{S}:{S+15}], v[{KF}:{KF+3}], v[{Q}:{Q+3}], v[{C}:{C+15}]
    v_mfma_f32_32x32x16_bf16 v[{S+16}:{S+31}], v[{KF}:{KF+3}], v[{Q+4}:{Q+7}], v[{C+16}:{C+31}]
    s_nop 10
    """)
    for b in range(2):
        for i in range(16):
            k(f"v_exp_f32 v{S+16*b+i}, v{S+16*b+i}")
        k("s_nop 0")
        for j in range(8):
            k(f"v_cvt_pk_bf16_f32 v{P+j}, v{S+16*b+2*j}, v{S+16*b+2*j+1}")
        k("s_nop 1")
        for h in range(2):
            k(f"v_mfma_f32_32x32x16_bf16 v[{O+16*b}:{O+16*b+15}], v[{VF+4*h}:{VF+4*h+3}], v[{P+4*h}:{P+4*h+3}], v[{O+16*b}:{O+16*b+15}]")
    k(f"""
    s_add_u32 s42, s42, 1
    s_cmp_lt_u32 s42, 64
    s_cbranch_scc1 L_att_redo
    s_nop 10
    s_branch L_att_fin
    """)
    for blk in OOL:
        k.lines += blk
    if DIAG:
        marks = {"L_zspin:": 1, "L_mod_spin:": 2, "L_dbg_spin:": 4, "L_xid_retry:": 8, "L_mid_retry:": 16}
        out = []
        for l in k.lines:
            out.append(l)
            if l in marks:
                out.append(f"s_or_b32 s91, s91, {marks[l]}")
        k.lines = out
    k.label(f"L_end_{k.name}")
    k("s_endpgm")
    k(".fill (65536 + L_pc_here - .) / 4 + 64, 4, 0xbf810000")
    return k, (256, 256, 163840)


def build(path=OUT):
    ks = [mega()]
    errs = []
    for k, _ in ks:
        errs += k.check()
    for e in errs:
        print(e)
    ref = open(OUT + ".ref").read().split("\n")
    hdr = [l for l in ref if l.startswith(";") and "@launch" not in l and "Override" not in l and "grid=ceil" not in l]
    out = "\n".join(hdr) + "\n"
    for k, (g, b, lds) in ks:
        kn = f"kernel={k.name} " if os.environ.get("ASLIST") else ""
        out += f"; @launch {kn}grid=({g},1,1) block=({b},1,1) lds={lds}\n"
    out += '.amdgcn_target "amdgcn-amd-amdhsa--gfx950"\n'
    codes, kds = zip(*[k.text() for k, _ in ks])
    out += "".join(codes)
    out += '.section .rodata,"a"\n' + "".join(kds)
    open(path, "w").write(out)
    print("wrote", path, len(out), "bytes;", len(errs), "checker errors")
    return len(errs)


if __name__ == "__main__":
    sys.exit(1 if build(sys.argv[1] if len(sys.argv) > 1 else OUT) else 0)
```

```python
import sys, os
sys.path.insert(0, "gen")
from asmlib import Kern
import gen as G
from gen import (MB, OFF_MOD, OFF_XHAT, OFF_WQKV, OFF_Q, OFF_KV, OFF_O, OFF_WO, OFF_X2, OFF_X2S, OFF_ST2, OFF_W1,
                 OFF_H, OFF_W2, QSCALE, P_X, P_WQKV, P_WO, P_W1, P_W2, P_C, P_WMOD, P_OUT, P_WS, srd, stamp, endpgm,
                 prologue, prologue_wait, epilogue, bf16_round, ln_stats_finish, role_ln, role_relayout, ATT, att_unit,
                 att_max16, NAME, OUT, DIAG)

OFF_MODB = 0x3000
OFF_FLAG = G.OFF_FLAG
FL = "sc1"
DF = "@DF@"
S_FAST = 93
OFF_XID = G.OFF_XID
OOL = []


def dual_begin(k):
    k._dual = len(k.lines)


def dual_end(k, tag):
    body = k.lines[k._dual:]
    del k.lines[k._dual:]
    import re
    labs = [l[:-1] for l in body if l.endswith(":")]
    def variant(fl, suffix):
        out = []
        for l in body:
            l = l.replace(DF, fl).rstrip()
            for lab in labs:
                l = re.sub(rf"\b{lab}\b", lab + suffix, l)
            out.append(l)
        return out
    if tag not in os.environ.get("FAST", "none").split(","):
        k.lines += variant("sc1", "_s")
        return
    k(f"s_cmp_eq_u32 s{S_FAST}, 0")
    k(f"s_cbranch_scc1 L_slow_{tag}")
    k.lines += variant("", "_f")
    k.label(f"L_join_{tag}")
    OOL.append([f"L_slow_{tag}:"] + variant("sc1", "_s") + [f"s_branch L_join_{tag}"])


_stamp = stamp
def stamp(k, i):
    if os.environ.get("P1ST") and i > 8:
        return
    _stamp(k, i)
def stamp1(k, i):
    if os.environ.get("P1ST"):
        _stamp(k, i)


class VM:
    def __init__(self, k):
        self.k = k; self.n = 0
    def op(self, text=None):
        if text:
            self.k(text)
        self.n += 1
        return self.n
    def tick(self):
        self.n += 1
        return self.n
    def wait_str(self, idx):
        c = self.n - idx
        return f"s_waitcnt vmcnt({min(c, 63)})"
    def wait(self, idx):
        self.k(self.wait_str(idx))


def signal(k, edge, s_group, s_member, gsize, nafter=0, fl=FL, fast=False):
    lab = f"L_sig{edge}"
    k(f"""
    s_mul_i32 s38, s{s_group}, {gsize}
    s_add_u32 s38, s38, s{s_member}
    s_lshl_b32 s38, s38, 8
    s_add_u32 s38, s38, {OFF_FLAG + edge * 65536}
    v_mov_b32 v6, 0
    v_mov_b32 v7, s98
    s_cmp_lg_u32 s3, 0
    s_waitcnt vmcnt({nafter}) lgkmcnt(0)
    s_barrier
    s_cbranch_scc1 {lab}
    s_mov_b64 exec, 1
    """)
    if fast and int(os.environ.get("FFLAG", "1")):
        k(f"""
        s_cmp_eq_u32 s{S_FAST}, 0
        s_cbranch_scc1 {lab}_slow
        buffer_store_dword v7, v6, s[24:27], s38 offen
        s_branch {lab}_done
        {lab}_slow:
        buffer_store_dword v7, v6, s[24:27], s38 offen sc1
        {lab}_done:
        """)
    else:
        k("buffer_store_dword v7, v6, s[24:27], s38 offen sc1")
    k("s_mov_b64 exec, -1")
    k.label(lab)


def flag_store(lab, soff, imm):
    return ["s_cmp_lg_u32 s3, 0", f"s_cbranch_scc1 {lab}", "s_mov_b64 exec, 1", f"s_cmp_eq_u32 s{S_FAST}, 0", f"s_cbranch_scc1 {lab}_slow",
            f"buffer_store_dword v159, v158, s[24:27], s{soff} offen offset:{imm}", f"s_branch {lab}_done", f"{lab}_slow:",
            f"buffer_store_dword v159, v158, s[24:27], s{soff} offen offset:{imm} sc1", f"{lab}_done:", "s_mov_b64 exec, -1", f"{lab}:"]


def wait_edge(k, edge, s_group, gsize):
    lab = f"L_wait{edge}"
    k(f"""
    s_cmp_lg_u32 s3, 0
    s_cbranch_scc1 {lab}
    s_mul_i32 s38, s{s_group}, {gsize*256}
    s_add_u32 s38, s38, {OFF_FLAG + edge * 65536}
    v_lshlrev_b32 v6, 8, v1
    s_mov_b32 exec_lo, {hex((1 << gsize) - 1)}
    s_mov_b32 exec_hi, 0
    s_mov_b32 s39, 0x40000
    """)
    k.label(f"L_poll{edge}")
    k(f"""
    buffer_load_dword v7, v6, s[24:27], s38 offen {FL}
    s_sub_u32 s39, s39, 1
    s_cbranch_scc1 L_bail{edge}
    s_waitcnt vmcnt(0)
    v_cmp_ne_u32 vcc, s98, v7
    s_cbranch_vccnz L_poll{edge}
    """)
    k.label(f"L_bail{edge}")
    k("s_waitcnt vmcnt(0)")
    k("s_mov_b64 exec, -1")
    k.label(lab)
    k("s_barrier")


def wbl2(k, tag):
    if tag in os.environ.get("WBL2", "").split(","):
        k(f"""
        s_lshl_b32 s38, s37, 2
        s_add_u32 s38, s38, s3
        s_cmp_lg_u32 s38, 1
        s_cbranch_scc1 L_nowb_{tag}
        buffer_wbl2 sc1
        """)
        k.label(f"L_nowb_{tag}")


def wo_reg(s):
    return f"a[{224+4*s}:{227+4*s}]" if s < 8 else f"v[{160+4*(s-8)}:{163+4*(s-8)}]"


def w1_lds(f):
    if f < 28:
        return LDS_W1A + f * 1024
    if f < 112:
        return (f - 28) * 1024
    return LDS_UT + (f - 112) * 1024


TS = 2080
LDS_W1A = 130 * 1024
LDS_MODB = 84 * 1024
LDS_VEC = 86 * 1024
LDS_OST = 88 * 1024
LDS_UT = 120 * 1024
LDS_R = 128 * 1024


def lds_rd(dst, addr):
    base = (2, 4, 5)[addr >> 16]
    return f"ds_read_b128 {dst}, v{base} offset:{addr & 0xffff}"


class L(list):
    def __call__(self, text):
        for l in text.strip("\n").split("\n"):
            if l.strip():
                self.append(l.strip())


def weave(k, main, side, every):
    n = 0
    for x in main:
        k(x)
        n += 1
        if side and n % every == 0:
            for y in side.pop(0)():
                k(y)


SLOT = (64 * 1024, 112 * 1024, 64 * 1024, 112 * 1024)
LDS_RL = 112 * 1024
LDS_MODS = 128 * 1024
LDS_MRED = 48 * 1024
LDS_SHARE = 52 * 1024
LDS_MRED2 = 159 * 1024
OFF_MODP = 0x8000


def mega():
    k = Kern(NAME + "_kernel", nvgpr=256, nagpr=256, nsgpr=102)
    k.kid = 1
    vm = VM(k)
    if DIAG:
        k("s_memtime s[60:61]")
        k("s_memrealtime s[62:63]")
        for i in range(G.NST):
            k(f"s_mov_b32 s{64+i}, 0")
    k(f"""
    s_cmp_ge_u32 s2, 256
    s_cbranch_scc1 L_end_{k.name}
    s_load_dwordx16 s[4:19], s[0:1], 0
    s_load_dwordx4 s[20:23], s[0:1], 64
    s_load_dwordx2 s[24:25], s[0:1], 80
    v_lshrrev_b32 v2, 6, v0
    v_and_b32 v1, 63, v0
    v_readfirstlane_b32 s3, v2
    s_and_b32 s36, s2, 7
    s_lshr_b32 s37, s2, 3
    v_lshlrev_b32 v2, 4, v1
    s_getpc_b64 s[38:39]
    L_pc_here:
    s_lshl_b32 s98, s37, 2
    s_add_u32 s98, s98, s3
    s_and_b32 s98, s98, 63
    s_lshl_b32 s98, s98, 10
    s_add_u32 s38, s38, s98
    s_addc_u32 s39, s39, 0
    global_load_dwordx4 a[208:211], v2, s[38:39]
    s_memrealtime s[40:41]
    """)
    VA, VB, RAW, XF, FR, ACC = 8, 16, 24, 88, 216, 24
    WM, CC, MA = 8, 12, 16
    k(f"""
    v_lshrrev_b32 v3, 1, v1
    v_lshlrev_b32 v4, 1, v3              ; c voffset: (l>>1)*2
    v_mul_u32_u24 v3, 6144, v3
    v_and_b32 v5, 1, v1
    v_lshl_add_u32 v3, v5, 4, v3
    v_lshrrev_b32 v6, 3, v1              ; r8
    v_and_b32 v7, 7, v1
    v_and_b32 v248, 2, v6
    v_xor_b32 v7, v7, v248
    s_and_b32 s38, s3, 1
    s_lshl_b32 s38, s38, 2
    v_xor_b32 v7, s38, v7
    v_mul_u32_u24 v5, 3072, v6
    v_lshl_add_u32 v5, v7, 4, v5
    s_and_b32 s93, s37, 7
    s_lshl_b32 s93, s93, 1               ; rotW
    s_lshr_b32 s99, s37, 4
    s_lshl_b32 s99, s99, 3
    s_add_u32 s99, s99, s36
    s_lshl_b32 s99, s99, 2
    s_and_b32 s38, s37, 3
    s_add_u32 s99, s99, s38
    s_bfe_u32 s92, s37, 0x20002          ; k split
    s_lshl_b32 s100, s92, 2
    s_add_u32 s100, s100, s3
    s_lshl_b32 s101, s100, 6             ; c soffset
    s_mul_i32 s100, s100, {32*6144}
    s_lshl_b32 s38, s99, 5
    s_add_u32 s100, s100, s38
    s_lshl_b32 s39, s2, 2
    s_add_u32 s39, s39, s3
    v_lshlrev_b32 v248, 6, v1
    s_waitcnt lgkmcnt(0)
    s_mov_b32 s26, {G.WS_USED:#x}
    s_mov_b32 s27, 0x00020000
    """)
    srd(k, 48, 22, 256)
    k(f"""
    s_cmp_lg_u32 s39, 3
    s_cbranch_scc1 L_nozw
    s_mul_i32 s41, s41, 0x9e3779b1
    s_xor_b32 s40, s40, s41
    s_or_b32 s40, s40, 1
    v_mov_b32 v249, s40
    s_mov_b64 exec, 15
    buffer_store_dword v249, v248, s[48:51], 0 offen {FL}
    s_mov_b64 exec, -1
    L_nozw:
    """)
    srd(k, 44, P_WMOD, 512 * 3072 * 2)
    srd(k, 56, P_C, 1024)
    srd(k, 28, P_X, 2048 * 1024)
    stamp(k, 0)
    vm.op(f"buffer_load_ushort v{CC}, v4, s[56:59], s101 offen")
    wmid = vm.op(f"buffer_load_dwordx4 v[{WM}:{WM+3}], v3, s[44:47], s100 offen")
    srd(k, 32, 20, 2048 * 1024)
    k(f"""
    s_lshr_b32 s20, s36, 1
    s_lshl_b32 s20, s20, 3
    s_and_b32 s38, s37, 7
    s_add_u32 s20, s20, s38        ; tb1
    s_and_b32 s21, s36, 1
    s_lshl_b32 s21, s21, 2
    s_lshr_b32 s101, s37, 3        ; rotX
    s_add_u32 s21, s21, s101       ; cb1
    s_lshl_b32 s22, s21, 2
    s_add_u32 s22, s22, s3         ; head
    s_lshl_b32 s38, s20, 16
    s_lshl_b32 s23, s3, 14
    s_add_u32 s38, s38, s23
    """)
    rowid = {}
    def xrow(r):
        def f():
            out = []
            if r % 4 == 0:
                out = [f"s_xor_b32 s17, s101, {r//4}", "s_lshl_b32 s17, s17, 12", "s_add_u32 s17, s17, s16"]
            out.append(f"buffer_load_dwordx4 v[{RAW+4*r}:{RAW+4*r+3}], v2, s[28:31], s17 offen offset:{(r%4)*1024}")
            rowid[r] = vm.tick()
            return out
        return f
    k("s_mov_b32 s16, s38")
    NX0 = int(os.environ.get("NX0", "8"))
    for r in range(NX0):
        for y in xrow(r)():
            k(y)
    srd(k, 40, P_WQKV, 512 * 1536 * 2)
    k(f"""
    s_cmp_lt_u32 s2, 32
    s_cselect_b32 s52, s{P_WO}, s{P_W1}
    s_cselect_b32 s53, s{P_WO+1}, s{P_W1+1}
    s_mov_b32 s54, {512*1792*2:#x}
    s_cselect_b32 s54, {512*512*2:#x}, s54
    s_cmp_ge_u32 s2, 144
    s_cselect_b32 s52, s{P_W2}, s52
    s_cselect_b32 s53, s{P_W2+1}, s53
    s_mov_b32 s55, 0x00020000
    s_lshl_b32 s23, s21, 7
    s_mul_i32 s38, s3, {8*3072}
    s_add_u32 s23, s23, s38
    s_mul_i32 s100, s3, 3072
    """)
    RS_SCALAR = """
    s_cmp_lt_u32 s2, 32
    s_cselect_b32 s4, 0, 32
    s_cselect_b32 s5, 0, 1
    s_cmp_ge_u32 s2, 144
    s_cselect_b32 s4, 144, s4
    s_cselect_b32 s5, 2, s5
    s_sub_u32 s4, s2, s4
    s_lshr_b32 s6, s4, 3
    s_and_b32 s7, s4, 7
    s_mul_i32 s9, s4, 2341
    s_lshr_b32 s9, s9, 16
    s_mul_i32 s10, s9, 28
    s_sub_u32 s10, s4, s10
    s_mov_b32 s8, 1024
    s_cmp_eq_u32 s5, 1
    s_cselect_b32 s6, s9, s6
    s_cselect_b32 s7, s10, s7
    s_cselect_b32 s8, 3584, s8
    s_lshl_b32 s9, s6, 2
    s_add_u32 s9, s9, s3
    """
    WT = int(os.environ.get("WT", "0"))
    if WT:
        k(f"""
        v_lshrrev_b32 v248, 4, v1
        v_mul_u32_u24 v248, 3072, v248
        v_bfe_u32 v249, v1, 2, 2
        v_lshl_add_u32 v248, v249, 10, v248
        v_and_b32 v249, 3, v1
        v_lshl_add_u32 v248, v249, 7, v248
        s_lshl_b32 s4, s37, 2
        s_add_u32 s4, s4, s3
        s_mul_i32 s4, s4, 12288
        s_and_b32 s5, s36, 1
        s_lshl_b32 s5, s5, 9
        s_add_u32 s4, s4, s5
        s_mov_b32 s6, 0x0fff0fff
        s_mov_b32 s7, 0x0fff0fff
        s_mov_b64 exec, s[6:7]
        """)
        vm.op("buffer_load_dword a216, v248, s[40:43], s4 offen")
        k("s_mov_b64 exec, -1")
    k(RS_SCALAR)
    k(f"""
    s_lshl_b32 s12, s8, 5
    s_mul_i32 s12, s12, s9
    s_lshl_b32 s11, s7, 7
    s_add_u32 s12, s12, s11
    s_lshl_b32 s1, s8, 3
    v_lshrrev_b32 v248, 3, v1
    v_mul_lo_u32 v248, v248, s8
    v_and_b32 v249, 7, v1
    v_lshl_add_u32 v248, v249, 4, v248
    v_add_u32 v248, s12, v248
    v_accvgpr_write_b32 a212, v248
    s_lshl_b32 s0, s3, 16
    s_lshl_b32 s4, s2, 8
    s_add_u32 s0, s0, s4
    s_add_u32 s0, s0, {OFF_FLAG}
    """)
    stamp(k, 1)
    wd = {}
    def wdma(s):
        base = SLOT[s // 4] + (s % 4) * 12288
        def f(p):
            out = []
            if p == 0:
                out = [f"s_xor_b32 s39, s93, {s}", f"s_mul_i32 s39, s39, {32*3072}", f"s_add_u32 m0, s100, {base}", "s_add_u32 s39, s39, s23"]
            out.append(f"buffer_load_dwordx4 v5, s[40:43], s39 offen offset:{p*1024} lds")
            wd[s] = vm.tick()
            return out
        return [(lambda p=p: f(p)) for p in range(3)]
    NWA = int(os.environ.get("NWA", "6"))
    wq = [xrow(r) for r in range(NX0, 16)] + [g for s in range(NWA) for g in wdma(s)]
    def mod_reduce(mj, MA_, t0, t1, lds_off, lds_base=0):
        mj("s_nop 0")
        for i in range(4):
            mj(f"v_permlane32_swap_b32 v{MA_+i}, v{MA_+4+i}")
        for i in range(0, 4, 2):
            mj(f"v_pk_add_f32 v[{MA_+i}:{MA_+i+1}], v[{MA_+i}:{MA_+i+1}], v[{MA_+4+i}:{MA_+5+i}]")
        mj(f"v_lshrrev_b32 v{t0}, 4, v1")
        mj(f"v_and_b32 v{t1}, 1, v1")
        for i in range(2):
            mj(f"v_permlane16_swap_b32 v{MA_+i}, v{MA_+2+i}")
        mj(f"v_pk_add_f32 v[{MA_}:{MA_+1}], v[{MA_}:{MA_+1}], v[{MA_+2}:{MA_+3}]")
        mj(f"v_lshlrev_b32 v{t0}, 3, v{t0}")
        mj(f"v_lshl_add_u32 v{t0}, v{t1}, 5, v{t0}")
        for n_, ror in enumerate((8, 4, 2)):
            for i in range(2):
                mj(f"v_add_f32_dpp v{MA_+i}, v{MA_+i}, v{MA_+i} row_ror:{ror} row_mask:0xf bank_mask:0xf")
            mj("s_lshl_b32 s38, s3, 6" if n_ == 0 else (f"v_add_u32 v{t0}, s38, v{t0}" if n_ == 1 else f"v_add_u32 v{t0}, {lds_base}, v{t0}"))
        mj(f"ds_write_b64 v{t0}, v[{MA_}:{MA_+1}] offset:{lds_off}")
    def silu(mj, regs, tmp):
        for r, t in zip(regs, tmp):
            mj(f"v_mul_f32 v{t}, 0xbfb8aa3b, v{r}")
        for t in tmp:
            mj(f"v_exp_f32 v{t}, v{t}")
        mj("s_nop 0")
        for t in tmp:
            mj(f"v_add_f32 v{t}, 1.0, v{t}")
        for t in tmp:
            mj(f"v_rcp_f32 v{t}, v{t}")
        mj("s_nop 0")
        for r, t in zip(regs, tmp):
            mj(f"v_mul_f32 v{r}, v{r}, v{t}")
        for r in regs:
            bf16_round(mj, r, r)
    mj = L()
    vm.wait(wmid)
    stamp1(k, 13)
    mj(f"v_lshlrev_b32 v{CC}, 16, v{CC}")
    silu(mj, [CC], [CC + 1])
    for i in range(4):
        mj(f"v_lshlrev_b32 v{MA+2*i}, 16, v{WM+i}")
        mj(f"v_and_b32 v{MA+2*i+1}, 0xffff0000, v{WM+i}")
    for i in range(4):
        mj(f"v_pk_mul_f32 v[{MA+2*i}:{MA+2*i+1}], v[{MA+2*i}:{MA+2*i+1}], v[{CC}:{CC+1}] op_sel_hi:[1,0]")
    mod_reduce(mj, MA, CC, CC + 1, LDS_MRED)
    weave(k, mj, wq, int(os.environ.get("WV0", "10")))
    stamp(k, 2)
    SU, SQ = 216, 232
    WV = int(os.environ.get("WV1", "12"))
    PUBROW = int(os.environ.get("PUBROW", "3"))
    for r in range(16):
        ln = L()
        while r not in rowid:
            for y in wq.pop(0)():
                k(y)
        vm.wait(rowid[r])
        b, t = RAW + 4 * r, XF + 8 * r
        for i in range(4):
            ln(f"v_lshlrev_b32 v{t+2*i}, 16, v{b+i}")
            ln(f"v_and_b32 v{t+2*i+1}, 0xffff0000, v{b+i}")
        ln(f"v_pk_add_f32 v[248:249], v[{t}:{t+1}], v[{t+2}:{t+3}]")
        ln(f"v_pk_mul_f32 v[250:251], v[{t}:{t+1}], v[{t}:{t+1}]")
        ln(f"v_pk_add_f32 v[252:253], v[{t+4}:{t+5}], v[{t+6}:{t+7}]")
        for i in range(1, 4):
            ln(f"v_pk_fma_f32 v[250:251], v[{t+2*i}:{t+2*i+1}], v[{t+2*i}:{t+2*i+1}], v[250:251]")
        ln("v_pk_add_f32 v[248:249], v[248:249], v[252:253]")
        ln(f"v_add_f32 v{SQ+r}, v250, v251")
        ln(f"v_add_f32 v{SU+r}, v248, v249")
        weave(k, ln, wq, WV)
        if r in (0, 4, 8, 12):
            stamp1(k, 14 + r // 4)
        if r == PUBROW - 2:
            k("s_waitcnt lgkmcnt(0)")
            k("s_load_dword s98, s[48:49], 0")
        if r == PUBROW:
            k(f"""
            v_lshlrev_b32 v{CC}, 2, v1
            s_waitcnt lgkmcnt(0)
            s_barrier
            ds_read_b32 v{MA}, v{CC} offset:{LDS_MRED}
            s_cmp_eq_u32 s98, 0
            s_cbranch_scc1 L_zspin
            L_zpoll_out:
            s_cmp_lg_u32 s3, 0
            s_cbranch_scc1 L_mod_done
            s_lshl_b32 s38, s92, 13
            s_lshl_b32 s4, s99, 7
            s_add_u32 s38, s38, s4
            s_add_u32 s38, s38, {OFF_MODP}
            v_lshlrev_b32 v{CC}, 3, v1
            s_waitcnt lgkmcnt(0)
            v_mov_b32 v{MA+1}, v{MA}
            s_nop 1
            v_permlane32_swap_b32 v{MA+1}, v{MA}
            v_add_f32 v{MA}, v{MA+1}, v{MA}
            v_mov_b32 v{MA+1}, v{MA}
            s_nop 1
            v_permlane16_swap_b32 v{MA+1}, v{MA}
            v_add_f32 v{MA}, v{MA+1}, v{MA}
            v_mov_b32 v{MA+1}, s98
            s_mov_b64 exec, 0xffff
            buffer_store_dwordx2 v[{MA}:{MA+1}], v{CC}, s[24:27], s38 offen {FL}
            s_mov_b64 exec, -1
            L_mod_done:
            """)
            z = ["L_zspin:"]
            for ln_ in (64, 128, 192):
                z += [f"s_load_dword s98, s[48:49], {ln_}", "s_waitcnt lgkmcnt(0)", "s_cmp_lg_u32 s98, 0", "s_cbranch_scc1 L_zpoll_out", "s_sleep 6"]
            z += ["s_mov_b32 s4, 0x40000", f"v_mov_b32 v{CC+2}, 0",
                  "L_zspin2:", f"buffer_load_dword v{CC+1}, v{CC+2}, s[48:51], 0 offen {FL}", "s_waitcnt vmcnt(0)",
                  f"v_readfirstlane_b32 s98, v{CC+1}", "s_sub_u32 s4, s4, 1", "s_cbranch_scc1 L_zpoll_out", "s_sleep 8", "s_cmp_eq_u32 s98, 0",
                  "s_cbranch_scc1 L_zspin2", "s_branch L_zpoll_out"]
            OOL.append(z)
    k(f"""
    v_and_b32 v248, 15, v1
    v_lshrrev_b32 v249, 4, v1
    v_mul_u32_u24 v3, 3072, v249
    v_lshrrev_b32 v250, 2, v248
    v_lshl_add_u32 v3, v250, 7, v3
    v_and_b32 v250, 1, v248
    v_lshl_add_u32 v3, v250, 3, v3
    v_bfe_u32 v250, v248, 1, 1
    s_lshl_b32 s38, s3, 1
    v_add_u32 v250, s38, v250
    v_bfe_u32 v251, v248, 3, 1
    v_and_b32 v252, 1, v249
    v_lshl_add_u32 v251, v252, 1, v251
    v_lshlrev_b32 v251, 1, v251
    v_xor_b32 v250, v250, v251
    v_lshl_add_u32 v3, v250, 4, v3
    v_add_u32 v4, 0x10000, v3
    v_add_u32 v6, 0x20000, v3
    """)
    def trreads(b):
        out = []
        for s in range(4 * b, 4 * b + 4):
            for p in range(3):
                for h in range(2):
                    addr = SLOT[b] + (s % 4) * 12288 + p * 1024 + h * 512
                    ar = 12 * s + 4 * p + 2 * h
                    out.append(f"ds_read_b64_tr_b16 a[{ar}:{ar+1}], v{(3, 4, 6)[addr >> 16]} offset:{addr & 0xffff}")
        return out
    def normalize(half):
        out = L()
        for rr in range(8):
            r = 8 * half + rr
            out(f"v_readlane_b32 s{4+2*rr}, v{SQ+4+(r&3)}, {16*(r>>2)}")
            out(f"v_readlane_b32 s{5+2*rr}, v{SU+4+(r&3)}, {16*(r>>2)}")
        for rr in range(8):
            t = XF + 8 * (8 * half + rr)
            for i in range(4):
                out(f"v_pk_fma_f32 v[{t+2*i}:{t+2*i+1}], v[{t+2*i}:{t+2*i+1}], s[{4+2*rr}:{5+2*rr}], s[{4+2*rr}:{5+2*rr}] op_sel:[0,0,1] op_sel_hi:[1,0,1]")
        return out
    stamp(k, 3)
    ln = L()
    for base in (SQ, SU):
        for r in range(8):
            ln(f"v_permlane32_swap_b32 v{base+r}, v{base+8+r}")
    for base in (SQ, SU):
        for r in range(0, 8, 2):
            ln(f"v_pk_add_f32 v[{base+r}:{base+r+1}], v[{base+r}:{base+r+1}], v[{base+8+r}:{base+9+r}]")
    for base in (SQ, SU):
        for r in range(4):
            ln(f"v_permlane16_swap_b32 v{base+r}, v{base+4+r}")
    for base in (SQ, SU):
        for r in range(0, 4, 2):
            ln(f"v_pk_add_f32 v[{base+r}:{base+r+1}], v[{base+r}:{base+r+1}], v[{base+4+r}:{base+5+r}]")
    for ror in (8, 4, 2, 1):
        for base in (SQ, SU):
            for r in range(4):
                ln(f"v_add_f32_dpp v{base+r}, v{base+r}, v{base+r} row_ror:{ror} row_mask:0xf bank_mask:0xf")
    fin = [L() for _ in range(4)]
    for i in range(4):
        ln_stats_finish(fin[i], SU + i, SQ + i, SU + 4 + i, SQ + 4 + i, SQ + 8 + i)
        fin[i](f"v_mul_f32 v{SU+4+i}, -v{SU+4+i}, v{SQ+4+i}")
    for tup in zip(*fin):
        for x in tup:
            if not x.startswith("s_nop"):
                ln(x)
    weave(k, ln, wq, 10)
    for g in wq:
        for y in g():
            k(y)
    stamp(k, 4)
    MP = 24
    def modloads():
        out = ["s_lshl_b32 s38, s3, 11", f"s_add_u32 s38, s38, {OFF_MODP}"]
        for q in range(4):
            if q:
                out.append("s_add_u32 s38, s38, 8192")
            for h in range(2):
                r_ = MP + 8 * q + 4 * h
                out.append(f"buffer_load_dwordx4 v[{r_}:{r_+3}], v2, s[24:27], s38 offen offset:{1024*h} {FL}")
        return out
    def modcheck():
        out = L()
        t = [MP + 2 * i + 1 for i in range(16)]
        out(f"v_and_b32 v252, v{t[0]}, v{t[1]}")
        out(f"v_or_b32 v253, v{t[0]}, v{t[1]}")
        for i in range(2, 16, 2):
            out(f"v_bitop3_b32 v252, v252, v{t[i]}, v{t[i+1]} bitop3:0x80")
            out(f"v_or3_b32 v253, v253, v{t[i]}, v{t[i+1]}")
        out("v_xor_b32 v252, s98, v252")
        out("v_xor_b32 v253, s98, v253")
        out("v_or_b32 v252, v252, v253")
        out("v_cmp_ne_u32 vcc, 0, v252")
        return out
    for x in modloads():
        k(x)
        if x.startswith("buffer"):
            modid = vm.tick()
    if int(os.environ.get("PRET", "1")):
        k(f"""
        v_lshlrev_b32 v56, 7, v1
        s_lshl_b32 s4, s3, 12
        s_add_u32 s4, s4, {OFF_XID}
        s_sub_u32 s4, s4, s0
        v_add_u32 v56, s4, v56
        s_cmp_eq_u32 s2, 9
        s_cselect_b32 s4, 32, 0
        v_cmp_gt_u32 vcc, s4, v1
        v_and_b32 v57, 1, v1
        v_lshlrev_b32 v57, 7, v57
        v_cndmask_b32 v56, v57, v56, vcc
        """)
        vm.op("buffer_load_dword a213, v56, s[24:27], s0 offen")
        TLBS = int(os.environ.get("TLBS", "0"))
        if TLBS:
            k(f"""
            v_lshlrev_b32 v57, {TLBS}, v1
            s_cmp_eq_u32 s3, 2
            s_cselect_b32 s4, 0, 0x7f000000
            """)
            vm.op("buffer_load_dword a214, v57, s[24:27], s4 offen")
            vm.op("buffer_load_dword a215, v57, s[32:35], s4 offen")
    OOL.append(["L_mod_spin:", "s_mov_b32 s39, 0x40000", "L_mod_spin2:"]
               + modloads() + ["s_sub_u32 s39, s39, 1", "s_waitcnt vmcnt(0)"]
               + list(modcheck()) + ["s_cbranch_scc1 L_mod_ok", "s_sleep 4", "s_cbranch_vccnz L_mod_spin2", "s_branch L_mod_ok"])
    vm.wait(wd[3]); k("s_barrier")
    wq = [g for s in range(NWA, 8) for g in wdma(s)]
    mix = wq + [(lambda x=x: [x]) for x in trreads(0)]
    weave(k, normalize(0) + normalize(1), mix, 3)
    assert not mix
    k(f"""
    s_lshl_b32 s38, s93, 2
    v_xor_b32 v254, s38, v1
    v_lshlrev_b32 v254, 8, v254
    v_and_b32 v253, 7, v1
    v_lshl_add_u32 v254, v253, 4, v254
    s_lshl_b32 s38, s3, 14
    s_lshl_b32 s39, s101, 6
    v_add_u32 v254, s38, v254
    v_xor_b32 v254, s39, v254
    s_lshl_b32 s38, s3, 10
    v_lshlrev_b32 v7, 3, v1
    v_add_u32 v7, s38, v7
    v_lshlrev_b32 v255, 5, v1
    s_cmp_ge_u32 s3, 2
    s_cselect_b32 s5, 1.0, 0
    """)
    vm.wait(modid)
    for x in modcheck(): k(x)
    k("s_nop 0")
    k("s_cbranch_vccnz L_mod_spin")
    k.label("L_mod_ok")
    for i in range(4):
        k(f"v_add_f32 v{8+i}, v{MP+2*i}, v{MP+8+2*i}")
        k(f"v_add_f32 v{12+i}, v{MP+16+2*i}, v{MP+24+2*i}")
    k("v_pk_add_f32 v[8:9], v[8:9], v[12:13]")
    k("v_pk_add_f32 v[10:11], v[10:11], v[14:15]")
    for rep in range(2):
        k("v_cvt_pk_bf16_f32 v12, v8, v9")
        k("v_cvt_pk_bf16_f32 v13, v10, v11")
        for i in range(2):
            k(f"v_lshlrev_b32 v{8+2*i}, 16, v{12+i}")
            k(f"v_and_b32 v{9+2*i}, 0xffff0000, v{12+i}")
        if rep == 0:
            for i in range(4):
                k(f"v_add_f32 v{8+i}, s5, v{8+i}")
    k(f"""
    ds_write_b64 v7, v[8:9] offset:{LDS_SHARE}
    ds_write_b64 v7, v[10:11] offset:{LDS_SHARE+512}
    s_waitcnt lgkmcnt(0)
    s_barrier
    ds_read_b128 v[{VB}:{VB+3}], v255 offset:{LDS_SHARE}
    ds_read_b128 v[{VB+4}:{VB+7}], v255 offset:{LDS_SHARE+16}
    ds_read_b128 v[{VA}:{VA+3}], v255 offset:{LDS_SHARE+2048}
    ds_read_b128 v[{VA+4}:{VA+7}], v255 offset:{LDS_SHARE+2064}
    """)
    wq = [g for s in range(8, 12) for g in wdma(s)]
    for g in wq[:2]:
        for y in g():
            k(y)
    wq = wq[2:]
    k("s_waitcnt lgkmcnt(0)")
    stamp(k, 5)
    md = L()
    def mrow(r):
        t = XF + 8 * r
        for i in range(4):
            md(f"v_pk_fma_f32 v[{t+2*i}:{t+2*i+1}], v[{t+2*i}:{t+2*i+1}], v[{VA+2*i}:{VA+2*i+1}], v[{VB+2*i}:{VB+2*i+1}]")
        for i in range(4):
            md(f"v_cvt_pk_bf16_f32 v{t+i}, v{t+2*i}, v{t+2*i+1}")
        md(f"v_xor_b32 v{t+4}, {r<<4}, v254")
    def mwr(r):
        t = XF + 8 * r
        md(f"ds_write_b128 v{t+4}, v[{t}:{t+3}]")
    mrow(0)
    md("s_barrier")
    for r in range(1, 16):
        mwr(r - 1)
        mrow(r)
    mwr(15)
    weave(k, md, wq, 12)
    assert not wq
    k(f"""
    v_and_b32 v8, 15, v1
    v_lshrrev_b32 v9, 4, v1
    v_xor_b32 v10, v8, v9
    v_lshlrev_b32 v10, 4, v10
    v_lshl_add_u32 v8, v9, 8, v10
    v_xor_b32 v9, 64, v8
    v_accvgpr_read_b32 v248, a212
    """)
    k(vm.wait_str(wd[7]) + " lgkmcnt(0)")
    k("s_barrier")
    stamp(k, 6)
    def aread(s):
        f = FR + 16 * (s & 1)
        return [f"ds_read_b128 v[{f+4*b}:{f+4*b+3}], v{8 + (s & 1)} offset:{b*16384+s*1024}" for b in range(4)]
    ex1, ex2, ex3 = trreads(1), trreads(2), trreads(3)
    RLATT = int(os.environ.get("RLATT", "1"))
    for x in aread(0): k(x)
    for s in range(16):
        nxt = aread(s + 1) if s < 15 else []
        k("s_waitcnt lgkmcnt(0)")
        SB3 = int(os.environ.get("SB3", "10"))
        if s == 3:
            k("s_barrier")
        if s == 5:
            vm.wait(wd[11]); k("s_barrier")
        if s == SB3:
            vm.wait(wd[15]); k("s_barrier")
        if s < 3:
            nxt += ex1[8 * s:8 * s + 8]
        if s in (3, 4):
            for s2_ in (12 + 2 * (s - 3), 13 + 2 * (s - 3)):
                for g in wdma(s2_):
                    nxt.append("\n".join(g()))
        if 5 <= s < 9:
            nxt += ex2[6 * (s - 5):6 * (s - 5) + 6]
        if SB3 <= s < SB3 + 4:
            nxt += ex3[6 * (s - SB3):6 * (s - SB3) + 6]
        RL0 = int(os.environ.get("RL0", "5"))
        if RL0 <= s < RL0 + 4 and not RLATT:
            i = s - RL0
            nxt += ["s_add_u32 s12, s12, s1" if i else "s_mov_b32 s12, 0", f"buffer_load_dwordx4 a[{192+4*i}:{195+4*i}], v248, s[52:55], s12 offen"]
            vm.tick()
        f = FR + 16 * (s & 1)
        for b in range(4):
            for which in range(3):
                acc = ACC + 4 * (which * 4 + b)
                w = f"a[{12*s+4*which}:{12*s+4*which+3}]"
                h = f"v[{f+4*b}:{f+4*b+3}]"
                c = "0" if s == 0 else f"v[{acc}:{acc+3}]"
                a_, b_ = (w, h) if which < 2 else (h, w)
                k(f"v_mfma_f32_16x16x32_bf16 v[{acc}:{acc+3}], {a_}, {b_}, {c}")
                if nxt:
                    k(nxt.pop(0))
        assert not nxt
    stamp(k, 7)
    C2 = 200
    k(f"""
    v_lshrrev_b32 v221, 1, v1
    v_lshlrev_b32 v220, 3, v221
    s_lshl_b32 s38, s3, 8
    buffer_load_dwordx2 v[{C2}:{C2+1}], v220, s[56:59], s38 offen
    """)
    k(f"""
    s_lshl_b32 s40, s22, 16
    s_lshl_b32 s41, s20, 11
    s_add_u32 s40, s40, s41
    s_add_u32 s40, s40, {OFF_Q}
    s_lshl_b32 s42, s22, 17
    s_lshl_b32 s41, s20, 12
    s_add_u32 s42, s42, s41
    s_add_u32 s42, s42, {OFF_KV}
    v_mov_b32 v12, {QSCALE:#x}
    v_mov_b32 v13, {QSCALE:#x}
    """)
    for which in (1, 2, 0):
        for bp in range(2):
            t = 88 + 4 * (which * 2 + bp)
            for b2 in range(2):
                acc = ACC + 4 * (which * 4 + bp * 2 + b2)
                if which == 0:
                    k(f"v_pk_mul_f32 v[{acc}:{acc+1}], v[12:13], v[{acc}:{acc+1}]")
                    k(f"v_pk_mul_f32 v[{acc+2}:{acc+3}], v[12:13], v[{acc+2}:{acc+3}]")
                k(f"v_cvt_pk_bf16_f32 v{t+2*b2}, v{acc}, v{acc+1}")
                k(f"v_cvt_pk_bf16_f32 v{t+2*b2+1}, v{acc+2}, v{acc+3}")
        op = "v_permlane32_swap_b32" if which == 2 else "v_permlane16_swap_b32"
        for bp in range(2):
            t = 88 + 4 * (which * 2 + bp)
            if bp == 1:
                k("s_nop 0")
            k(f"{op} v{t}, v{t+2}")
            k(f"{op} v{t+1}, v{t+3}")
            if which == 0:
                vm.op(f"buffer_store_dwordx4 v[{t}:{t+3}], v2, s[24:27], s40 offen offset:{bp*1024} {FL}")
            else:
                vm.op(f"buffer_store_dwordx4 v[{t}:{t+3}], v2, s[24:27], s42 offen offset:{bp*2048+(which-1)*1024} {FL}")
    stamp(k, 25)
    signal(k, 0, 21, 20, 32)
    stamp(k, 26)
    RA, RD, W2M, M2 = 160, 168, 184, 208
    LDS_RLS = LDS_W1A
    k(RS_SCALAR)
    k(f"""
    s_lshl_b32 s14, s3, 12
    s_add_u32 s14, s14, {LDS_RLS}
    v_and_b32 v248, 15, v1
    v_lshrrev_b32 v249, 4, v1
    v_lshrrev_b32 v250, 2, v248
    v_and_b32 v248, 3, v248
    v_lshlrev_b32 v248, 3, v248
    v_lshl_add_u32 v248, v250, 7, v248
    v_add_u32 v248, s14, v248
    v_and_b32 v250, 1, v249
    v_lshrrev_b32 v249, 1, v249
    s_cmp_eq_u32 s5, 1
    s_cbranch_scc1 L_rl_c
    v_lshl_add_u32 v248, v250, 5, v248
    s_lshr_b32 s13, s5, 1
    s_add_u32 s23, s13, 9
    v_lshlrev_b32 v249, s23, v249
    v_add_u32 v{RA}, v248, v249
    v_add_u32 v{RA+1}, 64, v{RA}
    v_add_u32 v{RA+2}, 0x800, v{RA}
    v_add_u32 v{RA+3}, 0x840, v{RA}
    s_lshr_b32 s23, 1024, s13
    s_cmp_eq_u32 s5, 0
    s_cselect_b32 s15, 32, 112      ; ksteps
    s_mov_b32 s10, {OFF_W2}
    s_cselect_b32 s10, {OFF_WO}, s10
    s_lshl_b32 s11, s7, 1
    s_mul_i32 s11, s11, s15
    s_lshl_b32 s13, s9, 1
    s_add_u32 s11, s11, s13
    s_lshl_b32 s11, s11, 10
    s_add_u32 s16, s11, s10
    s_lshl_b32 s15, s15, 10
    s_add_u32 s17, s16, s15
    s_add_u32 s18, s16, 1024
    s_add_u32 s19, s17, 1024
    s_branch L_rl_d
    L_rl_c:
    v_lshl_add_u32 v248, v249, 11, v248
    v_lshl_add_u32 v{RA}, v250, 9, v248
    v_add_u32 v{RA+1}, 32, v{RA}
    v_add_u32 v{RA+2}, 64, v{RA}
    v_add_u32 v{RA+3}, 0x60, v{RA}
    s_mov_b32 s23, 1024
    s_lshl_b32 s15, s7, 2
    s_mul_i32 s13, s9, 7
    """)
    for f in range(4):
        k(f"""
        s_mul_i32 s10, s15, 9363
        s_lshr_b32 s10, s10, 16
        s_mul_i32 s11, s10, 105
        s_add_u32 s11, s11, s15
        s_add_u32 s11, s11, s13
        s_lshl_b32 s11, s11, 10
        s_add_u32 s{16+f}, s11, {OFF_W1}
        s_add_u32 s15, s15, 1
        """)
    k.label("L_rl_d")
    for f in range(4):
        k(f"v_add_u32 v{RA+4+f}, s23, v{RA+f}")
    k(f"""
    v_add_u32 v220, s14, v2
    s_lshr_b32 s99, s37, 2
    s_lshl_b32 s99, s99, 3
    s_add_u32 s99, s99, s36
    s_lshl_b32 s99, s99, 2
    s_and_b32 s38, s37, 3
    s_add_u32 s99, s99, s38
    s_add_u32 s99, s99, 64
    v_mul_u32_u24 v221, {4*6144}, v221
    v_and_b32 v249, 1, v1
    v_lshl_add_u32 v221, v249, 4, v221
    s_mul_i32 s15, s3, {128*6144}
    s_lshl_b32 s4, s99, 5
    s_add_u32 s15, s15, s4
    s_cmp_ge_u32 s37, 16
    s_cselect_b32 s15, 0x7f000000, s15
    s_lshl_b32 s20, s2, 1
    s_lshr_b32 s21, s3, 1
    s_add_u32 s20, s20, s21
    s_mul_i32 s20, s20, 6144
    s_and_b32 s21, s3, 1
    s_lshl_b32 s21, s21, 11
    s_add_u32 s20, s20, s21
    s_add_u32 s20, s20, 2048
    s_mov_b64 s[8:9], s[52:53]
    s_mov_b32 s10, s54
    s_mov_b32 s11, 0x00020000
    v_accvgpr_read_b32 v222, a212
    s_mov_b64 s[4:5], s[44:45]
    s_mov_b32 s6, s46
    s_mov_b32 s7, 0x00020000
    v_lshlrev_b32 v{C2+2}, 16, v{C2}
    v_and_b32 v{C2+3}, 0xffff0000, v{C2}
    v_lshlrev_b32 v{C2+4}, 16, v{C2+1}
    v_and_b32 v{C2+5}, 0xffff0000, v{C2+1}
    """)
    silu(k, [C2 + 2 + i for i in range(4)], [M2 + i for i in range(4)])
    stamp(k, 8)
    Q, KF, VF, S, P, O, C = (ATT[x] for x in ("Q", "KF", "VF", "S", "P", "O", "C"))
    TOKP = int(os.environ.get("TOKP", "0"))
    MAP2 = "s_mov_b32 s40, s37\n    s_mov_b32 s54, s36" if TOKP else "s_lshl_b32 s40, s36, 2\n    s_and_b32 s42, s37, 3\n    s_add_u32 s40, s40, s42\n    s_lshr_b32 s54, s37, 2"
    k(f"""
    {MAP2}
    s_lshl_b32 s41, s54, 2
    s_add_u32 s41, s41, s3         ; qblock64
    s_lshl_b32 s42, s40, 16
    s_lshl_b32 s43, s41, 11
    s_add_u32 s42, s42, s43
    s_add_u32 s42, s42, {OFF_Q}
    s_lshl_b32 s44, s40, 17
    s_lshl_b32 s45, s3, 10
    s_add_u32 s47, s44, {OFF_KV}
    s_add_u32 s44, s47, s45
    s_lshl_b32 s46, s41, 16
    s_lshl_b32 s43, s40, 10
    s_add_u32 s46, s46, s43
    s_add_u32 s46, s46, {OFF_O}
    s_lshr_b32 s38, s3, 1
    s_mul_i32 s38, s38, {TS}
    s_and_b32 s39, s45, 1024
    s_add_u32 s13, s38, s39
    s_mov_b32 m0, s13
    v_and_b32 v3, 15, v1
    v_lshlrev_b32 v3, 4, v3
    v_lshrrev_b32 v4, 5, v1
    v_lshl_add_u32 v3, v4, 8, v3
    v_add_u32 v3, 0x400, v3
    v_add_u32 v156, 0x200, v3
    s_mov_b32 s48, 0x0000ffff
    s_mov_b32 s49, 0x0000ffff
    v_and_b32 v8, 27, v1
    v_cmp_eq_u32 vcc, 16, v8
    v_mov_b32 v9, 0x800
    v_mov_b32 v10, 0x810
    v_cndmask_b32 v9, v10, v9, vcc
    v_cndmask_b32 v3, v9, v3, s[48:49]
    v_cndmask_b32 v156, v9, v156, s[48:49]
    v_add_u32 v4, 0x10000, v2
    v_add_u32 v5, 0x10000, v3
    v_add_u32 v157, 0x10000, v156
    v_mul_u32_u24 v8, {TS}, v1
    v_mov_b32 v12, 0x3f803f80
    v_mov_b32 v13, 0x3f803f80
    v_mov_b32 v14, 0x3f803f80
    v_mov_b32 v15, 0x3f803f80
    v_mov_b32 v16, 0
    v_mov_b32 v17, 0
    v_mov_b32 v18, 0
    v_mov_b32 v19, 0
    ds_write_b128 v8, v[12:15] offset:2048
    ds_write_b128 v8, v[16:19] offset:2064
    s_waitcnt lgkmcnt(0)
    """)
    k(f"""
    s_lshr_b32 s50, s37, 3
    s_lshl_b32 s50, s50, 2
    s_add_u32 s50, s50, s3          ; P3 ncol32
    s_lshl_b32 s51, s50, 15
    s_add_u32 s51, s51, {OFF_WO}
    s_lshr_b32 s52, s37, 3
    s_lshl_b32 s52, s52, 1
    s_and_b32 s53, s37, 1
    s_add_u32 s52, s52, s53         ; cb5
    s_lshl_b32 s52, s52, 1
    s_lshr_b32 s53, s3, 1
    s_add_u32 s52, s52, s53
    s_xor_b32 s53, s52, 1
    s_mul_i32 s55, s52, {112*1024}
    s_mul_i32 s56, s53, {112*1024}
    s_mul_i32 s53, s3, {28*1024}
    s_add_u32 s53, s53, {OFF_W2}
    s_add_u32 s55, s55, s53
    s_add_u32 s56, s56, s53
    s_lshr_b32 s57, s37, 3
    s_lshl_b32 s57, s57, 2
    s_and_b32 s53, s37, 3
    s_add_u32 s57, s57, s53         ; cb4
    s_mul_i32 s58, s57, {112*1024}
    s_add_u32 s58, s58, {OFF_W1}
    s_mul_i32 s22, s3, 7168
    s_mul_i32 s23, s3, 21504
    s_add_u32 s21, s58, s23
    s_add_u32 s21, s21, {28*1024}
    v_lshrrev_b32 v8, 5, v1
    v_and_b32 v9, 31, v1
    v_lshlrev_b32 v148, 10, v9
    v_lshl_add_u32 v148, v8, 3, v148
    v_lshlrev_b32 v149, 4, v9
    v_lshl_add_u32 v149, v8, 12, v149
    s_lshl_b32 s59, s36, 3
    s_and_b32 s53, s37, 7
    s_add_u32 s59, s59, s53
    s_lshl_b32 s59, s59, 15
    s_lshl_b32 s53, s50, 6
    s_add_u32 s59, s59, s53
    v_lshlrev_b32 v155, 7, v1
    s_lshr_b32 s0, s2, 2
    s_lshl_b32 s0, s0, 7
    s_and_b32 s53, s2, 3
    s_lshl_b32 s53, s53, 2
    s_add_u32 s0, s0, s53
    s_lshr_b32 s53, s37, 2
    """)
    wait_edge(k, 0, 53 if TOKP else 36, 32)
    stamp(k, 9)
    vm.n = 0
    rid = []
    def dma():
        i = len(rid)
        out = []
        if i < 4:
            if i:
                out += [f"s_add_u32 m0, s13, {2*TS*i}", "s_add_u32 s44, s44, 4096"]
            out += [f"buffer_load_dwordx4 v2, s[24:27], s44 offen {FL} lds"]
        else:
            if i % 4 == 0:
                out += [f"s_add_u32 m0, s43, {2*TS*i}", f"s_add_u32 s44, s41, {4096*i}"]
            if i % 4 == 2:
                out += [f"s_add_u32 m0, s43, {2*TS*(i-2) + TS - 2048}"]
            out += [f"buffer_load_dwordx4 v2, s[24:27], s44 offen offset:{1024*(i%4)} {FL} lds"]
        rid.append(vm.tick())
        return out
    k("s_lshl_b32 s43, s3, 12")
    k("s_add_u32 s41, s47, s43")
    k(f"s_mul_i32 s43, s3, {2*TS}")
    k("s_mov_b32 s100, 0x07060302")
    vm.op(f"buffer_load_dwordx4 v[{KF}:{KF+3}], v2, s[24:27], s47 offen {FL}")
    vm.op(f"buffer_load_dwordx4 v[{Q}:{Q+3}], v2, s[24:27], s42 offen {FL}")
    qid = vm.op(f"buffer_load_dwordx4 v[{Q+4}:{Q+7}], v2, s[24:27], s42 offen offset:1024 {FL}")
    for r in range(4):
        for x in dma(): k(x)
    fin2 = L()
    fin2(f"""
    s_cmp_lg_u32 s3, 1
    s_cbranch_scc1 L_m2_done
    s_cmp_ge_u32 s37, 16
    s_cbranch_scc1 L_m2_done
    v_lshlrev_b32 v216, 2, v1
    v_add_u32 v217, {LDS_MRED2}, v216
    ds_read_b32 v{M2}, v217
    s_lshr_b32 s38, s99, 5
    s_cmp_eq_u32 s38, 4
    s_cselect_b32 s39, 1.0, 0
    s_waitcnt lgkmcnt(0)
    v_mov_b32 v{M2+1}, v{M2}
    s_nop 1
    v_permlane32_swap_b32 v{M2+1}, v{M2}
    v_add_f32 v{M2}, v{M2+1}, v{M2}
    v_mov_b32 v{M2+1}, v{M2}
    s_nop 1
    v_permlane16_swap_b32 v{M2+1}, v{M2}
    v_add_f32 v{M2}, v{M2+1}, v{M2}
    """)
    bf16_round(fin2, M2, M2)
    fin2(f"v_add_f32 v{M2}, s39, v{M2}")
    bf16_round(fin2, M2, M2)
    fin2(f"""
    s_lshl_b32 s39, s99, 6
    s_mov_b64 exec, 0xffff
    buffer_store_dword v{M2}, v216, s[24:27], s39 offen offset:{OFF_MOD} {FL}
    s_sub_u32 s38, 4, s38
    s_cmp_gt_u32 s38, 1
    s_cbranch_scc1 L_m2_done
    s_lshl_b32 s38, s38, 10
    s_and_b32 s39, s99, 31
    s_lshl_b32 s39, s39, 5
    s_add_u32 s38, s38, s39
    s_add_u32 s38, s38, {OFF_MODB}
    v_bfe_u32 v217, v1, 2, 1
    v_lshlrev_b32 v216, 4, v217
    v_bfe_u32 v217, v1, 3, 1
    v_lshl_add_u32 v216, v217, 3, v216
    v_and_b32 v217, 3, v1
    v_lshl_add_u32 v216, v217, 1, v216
    buffer_store_short_d16_hi v{M2}, v216, s[24:27], s38 offen {FL}
    L_m2_done:
    s_mov_b64 exec, -1
    """)
    vm.wait(qid)
    def kread(t):
        off = t * TS
        return f"ds_read_b128 v[{KF}:{KF+3}], v{2 if off < 65536 else 4} offset:{off & 0xffff}"
    def vread(t):
        off = t * TS
        b = VF + 8 * (t & 1)
        r_ = [f"ds_read_b128 v[{b}:{b+3}], v{3 if off < 65536 else 5} offset:{off & 0xffff}",
              f"ds_read_b128 v[{b+4}:{b+7}], v{156 if off < 65536 else 157} offset:{off & 0xffff}"]
        if os.environ.get("PROBE") == "mask" and t >= 2:
            r_ = ["s_mov_b64 exec, s[48:49]"] + r_ + ["s_mov_b64 exec, -1"]
        return r_
    k(f"""
    v_mfma_f32_32x32x16_bf16 v[{S}:{S+15}], v[{KF}:{KF+3}], v[{Q}:{Q+3}], 0
    v_mfma_f32_32x32x16_bf16 v[{S+16}:{S+31}], v[{KF}:{KF+3}], v[{Q+4}:{Q+7}], 0
    s_nop 10
    """)
    att_max16(k, 6, S, True)
    att_max16(k, 7, S + 16, True)
    k("""
    s_nop 1
    v_permlane32_swap_b32 v6, v7
    v_max_f32 v6, v6, v7
    v_sub_f32 v6, 0, v6
    v_mov_b32 v7, v6
    s_nop 1
    v_permlane32_swap_b32 v6, v7
    """)
    for i in range(0, 16, 2):
        k(f"v_pk_mov_b32 v[{C+i}:{C+i+1}], v[6:7], v[6:7] op_sel:[0,0]")
    for i in range(0, 4, 2):
        k(f"v_pk_mov_b32 v[{C+16+i}:{C+17+i}], v[6:7], v[6:7] op_sel:[1,1]")
    k(f"v_mfma_f32_32x32x16_bf16 v[{S}:{S+15}], v[{KF}:{KF+3}], v[{Q}:{Q+3}], v[{C}:{C+15}]")
    for i in range(4, 16, 2):
        k(f"v_pk_mov_b32 v[{C+16+i}:{C+17+i}], v[6:7], v[6:7] op_sel:[1,1]")
    vm.wait(rid[0])
    k("s_barrier")
    for x in vread(0): k(x)
    k("s_nop 1")
    for _ in range(int(os.environ.get('IDLE', '0'))):
        k('s_sleep 32')
    stamp(k, 10)
    jobs = []
    for s in range(32):
        pre = ["s_add_u32 s51, s51, 4096"] if (s and s % 4 == 0) else []
        jobs.append(pre + [f"buffer_load_dwordx4 {wo_reg(s)}, v2, s[24:27], s51 offen offset:{(s%4)*1024} {FL}"])
    for s in range(28):
        for i, sr in enumerate((55, 56)):
            pre = [f"s_add_u32 s{sr}, s{sr}, 4096"] if (s and s % 4 == 0) else []
            jobs.append(pre + [f"buffer_load_dwordx4 a[{8*s+4*i}:{8*s+4*i+3}], v2, s[24:27], s{sr} offen offset:{(s%4)*1024} {FL}"])
    w1jobs = []
    for i in range(7):
        pre = [f"s_add_u32 m0, s22, {LDS_W1A + 4096*(i//4)}", f"s_add_u32 s44, s58, s22"] + ([f"s_add_u32 s44, s44, 4096"] if i else []) if i % 4 == 0 else []
        w1jobs.append(pre + [f"buffer_load_dwordx4 v2, s[24:27], s44 offen offset:{1024*(i%4)} sc1 lds"])
    for i in range(21):
        pre = [f"s_add_u32 m0, s23, {4096*(i//4)}", f"s_add_u32 s44, s21, {4096*(i//4)}"] if i % 4 == 0 else []
        w1jobs.append(pre + [f"buffer_load_dwordx4 v2, s[24:27], s44 offen offset:{1024*(i%4)} sc1 lds"])
    modb = ["s_and_b32 s53, s45, 1024", f"s_add_u32 m0, s53, {LDS_MODB}", f"s_add_u32 s53, s53, {OFF_MODB}",
            "buffer_load_dwordx4 v2, s[24:27], s53 offen sc1 lds"]
    vec1 = [f"s_mov_b32 m0, {LDS_VEC}", "s_lshr_b32 s53, s37, 3", "s_lshl_b32 s53, s53, 9", f"s_add_u32 s53, s53, {OFF_MOD + 2*2048}",
            "buffer_load_dwordx4 v149, s[24:27], s53 offen sc1 lds"]
    vec2 = [f"s_mov_b32 m0, {LDS_VEC + 1024}", "s_lshr_b32 s53, s37, 4", "s_lshl_b32 s53, s53, 10", f"s_add_u32 s53, s53, {OFF_MOD + 5*2048}",
            "buffer_load_dwordx4 v2, s[24:27], s53 offen sc1 lds"]
    xj = [[f"buffer_load_dwordx2 v[{140+2*j}:{141+2*j}], v148, s[28:31], s59 offen offset:{16*j}"] for j in range(4)]
    wo_j, w2_j = jobs[:32], jobs[32:]
    NW2 = int(os.environ.get("NW2", "44"))
    w2_late = w2_j[NW2:]
    jobs = w1jobs[:7] + w2_j[:NW2] + wo_j
    late = w1jobs[7:]
    if os.environ.get("PROBE") == "nopf":
        jobs = []; late = []
    vecj = [modb, vec1, vec2]
    pfj = [[f"buffer_load_dwordx4 v[{224+4*i}:{227+4*i}], v2, s[4:7], s20 offen offset:{1024*i}"] for i in range(2)]
    rlj = [["s_add_u32 s12, s12, s1" if i else "s_mov_b32 s12, 0", f"buffer_load_dwordx4 a[{192+4*i}:{195+4*i}], v222, s[8:11], s12 offen"]
           for i in range(4)] if RLATT else []
    m2j = [(["s_add_u32 s15, s15, 6144"] if i else []) + [f"buffer_load_dwordx4 v[{W2M+4*i}:{W2M+4*i+3}], v221, s[4:7], s15 offen"]
           for i in range(4)]
    bg = L()
    for p in range(4):
        for i in range(4):
            src = W2M + 4 * p + i
            t_ = 216 + 2 * (i & 1)
            bg(f"v_lshlrev_b32 v{t_}, 16, v{src}")
            bg(f"v_and_b32 v{t_+1}, 0xffff0000, v{src}")
            if p == 0:
                bg(f"v_pk_mul_f32 v[{M2+2*i}:{M2+2*i+1}], v[{t_}:{t_+1}], v[{C2+2}:{C2+3}] op_sel_hi:[1,0]")
            else:
                sel = "op_sel:[0,1,0] op_sel_hi:[1,1,1]" if p & 1 else "op_sel_hi:[1,0,1]"
                cr = C2 + 2 + (p & 2)
                bg(f"v_pk_fma_f32 v[{M2+2*i}:{M2+2*i+1}], v[{t_}:{t_+1}], v[{cr}:{cr+1}], v[{M2+2*i}:{M2+2*i+1}] {sel}")
    mod_reduce(bg, M2, C2, C2 + 1, 0, LDS_MRED2)
    bg = [x for x in bg if not x.startswith("s_nop")]
    U_RL, U_FLAG, U_XL, U_XC = 4, (30 if TOKP else 20), (48 if TOKP else 44), (54 if TOKP else 50)
    U_M2, U_BG, U_FIN, U_MFLAG, U_ML, U_MC = (38 if TOKP else 32), 56, 68, 76, 112, 118
    if RLATT:
        U_RL, U_FLAG, U_XL, U_XC = 34, 46, 60, 66
        U_M2, U_BG, U_FIN, U_MFLAG = 47, 62, 74, 80
    def flagblk(lab, off, cond, xcc=False):
        val = ["s_getreg_b32 s38, hwreg(HW_REG_XCC_ID, 0, 4)", "s_xor_b32 s38, s38, s98"] if xcc else ["s_mov_b32 s38, s98"]
        return cond + val + [f"s_add_u32 s39, s0, {off}", "s_mov_b64 exec, 1", "v_mov_b32 v6, 0", "v_mov_b32 v7, s38",
                             f"buffer_store_dword v7, v6, s[24:27], s39 offen {FL}", "s_mov_b64 exec, -1", f"{lab}:"]
    def chk(lim):
        return ["v_xor_b32 v150, s98, v150", "v_xor_b32 v151, s98, v151", "v_xor_b32 v152, s98, v152", "v_xor_b32 v153, s98, v153",
                "v_or3_b32 v154, v150, v151, v152", "v_or_b32 v154, v154, v153", f"v_cmp_lt_u32 vcc, {lim}, v154"]
    for tag, off, lim in (("xid", OFF_XID, 0), ("mid", OFF_XID + 8192, 15)):
        OOL.append([f"L_{tag}_retry:", "s_mov_b32 s39, 0x40000", f"s_mov_b32 s53, {off}", f"L_{tag}_spin:",
                    f"buffer_load_dwordx4 v[150:153], v155, s[24:27], s53 offen {FL}", "s_sub_u32 s39, s39, 1", "s_waitcnt vmcnt(0)"] + chk(lim) +
                   [f"s_cbranch_scc1 L_{tag}_ok", "s_sleep 32", f"s_cbranch_vccnz L_{tag}_spin", f"s_branch L_{tag}_ok"])
    for u in range(128):
        t = u >> 1
        side = {}
        def add(slot, xs):
            side.setdefault(slot, []).extend(xs)
        def place(d, slot):
            ms = (7 if u % 2 == 0 else 14) if slot == 1 else 21
            if len(d) == 2 and d[0].startswith("s_add_u32 m0"):
                add(ms - 1, d[:1]); add(ms, d[1:])
            else:
                add(ms, d)
        def put(d, slot):
            place(d, slot)
            return vm.tick()
        if u % 2 == 1 or u == 0:
            add(7, ["s_waitcnt lgkmcnt(0)"])
        if len(rid) < 32:
            place(dma(), 1)
        elif rlj:
            rlid = put(rlj.pop(0), 1)
        elif pfj:
            put(pfj.pop(0), 1)
        elif xj:
            put(xj.pop(0), 1)
        elif U_M2 <= u < U_M2 + 4:
            m2id = put(m2j[u - U_M2], 1)
        elif vecj and u > U_MC:
            put(vecj.pop(0), 1)
        elif jobs and u > U_XC and (u > U_MFLAG or len(jobs) > 24):
            put(jobs.pop(0), 1)
        if u == U_BG:
            add(7, [vm.wait_str(m2id)])
        if u > U_BG:
            for sl in (4, 6, 8, 11, 13, 18, 20, 25):
                if bg:
                    add(sl, [bg.pop(0)])
        if u % 2 == 0 and t < 63:
            pre = []
            if u == 2:
                pre = [vm.wait_str(rid[3]), "s_barrier"]
            elif u == 14:
                pre = [vm.wait_str(rid[11 if TOKP else 15]), "s_barrier"]
            elif u == U_FLAG:
                pre = [vm.wait_str(max(rid[31], rlst)), "s_barrier"] + flagblk("L_noxid", OFF_XID, ["s_cmp_lg_u32 s3, 1", "s_cbranch_scc1 L_noxid"])
            elif u == U_FIN:
                assert not bg
                pre = ["s_barrier"] + list(fin2)
                finid = vm.n
            elif u == U_MFLAG:
                pre = flagblk("L_nomid", OFF_XID + 8192, ["s_cmp_lg_u32 s3, 1", "s_cbranch_scc1 L_nomid", vm.wait_str(finid)], xcc=True)
            elif u == 86:
                pre = ["s_barrier"]
            add(14, pre + [kread(t + 1)] + vread(t + 1))
        if u == U_RL - 2:
            if RLATT:
                add(16, [vm.wait_str(rlid)])
            for i in range(4):
                add(17 + 2 * i, [f"ds_write_b128 v220, a[{192+4*i}:{195+4*i}] offset:{1024*i}"])
        if u == U_RL:
            for f in range(4):
                add(17 + 2 * f, [f"ds_read_b64_tr_b16 v[{RD+4*f}:{RD+4*f+1}], v{RA+f}"])
                add(18 + 2 * f, [f"ds_read_b64_tr_b16 v[{RD+4*f+2}:{RD+4*f+3}], v{RA+4+f}"])
        if U_RL + 1 <= u < U_RL + 9 and u % 2 == 1:
            f = (u - U_RL - 1) // 2
            add(14, [f"buffer_store_dwordx4 v[{RD+4*f}:{RD+4*f+3}], v2, s[24:27], s{16+f} offen {FL}"])
            rlst = vm.tick()
        if len(rid) < 32 and (not TOKP or u < 4):
            place(dma(), 17)
        elif u in (U_XL, U_ML):
            off = OFF_XID if u == U_XL else OFF_XID + 8192
            xidid = put([f"s_mov_b32 s53, {off}", f"buffer_load_dwordx4 v[150:153], v155, s[24:27], s53 offen {FL}"], 17)
        elif u in (U_XC, U_MC):
            tag = "xid" if u == U_XC else "mid"
            add(17, [vm.wait_str(xidid)] + chk(0 if u == U_XC else 15))
            add(24, [f"s_cbranch_vccnz L_{tag}_retry", f"L_{tag}_ok:"])
        elif u >= 87 and late:
            put(late.pop(0), 17)
        elif jobs and u > U_XC + (3 if RLATT else 7) and (RLATT or u % 4 != 3) and (u > U_MFLAG or len(jobs) > 24):
            put(jobs.pop(0), 17)
        if DIAG and os.environ.get('ATTST') and u in (14, 24, 32, 52, 60, 76, 88, 108):
            stamp(k, (14, 24, 32, 52, 60, 76, 88, 108).index(u))
        att_unit(k, u, side, last=(u == 127))
    assert not vecj
    assert not jobs and not late, (len(jobs), len(late))
    k(f"""
    s_nop 0
    v_cvt_pk_bf16_f32 v{P+7}, v{S+30}, v{S+31}
    s_nop 1
    v_mfma_f32_32x32x16_bf16 v[{O+16}:{O+31}], v[{VF+12}:{VF+15}], v[{P+4}:{P+7}], v[{O+16}:{O+31}]
    s_mov_b32 s53, 0x53800000
    v_cmp_nge_f32 vcc, s53, v{O+8}
    s_nop 9
    v_cmp_nge_f32 s[42:43], s53, v{O+24}
    s_nop 3
    s_or_b64 vcc, vcc, s[42:43]
    s_cbranch_scc0 L_att_fin
    s_branch {'L_att_fin' if os.environ.get('PROBE') else 'L_att_fallback'}
    """)
    k.label("L_att_fin")
    stamp(k, 11)
    XR, XU, GA, A2 = 140, 44, 108, 124
    k(f"""
    v_rcp_f32 v6, v{O+8}
    v_rcp_f32 v7, v{O+24}
    s_lshl_b32 s42, s36, 3
    s_and_b32 s43, s37, 7
    s_add_u32 s42, s42, s43         ; t3 (tok32)
    v_lshrrev_b32 v8, 5, v1         ; h
    v_and_b32 v9, 31, v1            ; tok
    """)
    dual_begin(k)
    for b_ in range(2):
        for i in range(8):
            k(f"v_mul_f32 v{O+16*b_+i}, v{6+b_}, v{O+16*b_+i}")
        for i in range(4):
            k(f"v_cvt_pk_bf16_f32 v{P+4*b_+i}, v{O+16*b_+2*i}, v{O+16*b_+2*i+1}")
        if b_:
            k("s_add_u32 s46, s46, 32768")
        k(f"buffer_store_dwordx4 v[{P+4*b_}:{P+4*b_+3}], v2, s[24:27], s46 offen {DF}")
    k(f"""
    v_add_u32 v5, 0x20000, v2
    v_lshrrev_b32 v12, 4, v9
    v_lshlrev_b32 v12, 14, v12
    v_and_b32 v13, 15, v9
    v_lshl_add_u32 v12, v13, 4, v12
    v_lshl_add_u32 v12, v8, 8, v12
    v_lshlrev_b32 v13, 3, v9
    s_lshl_b32 s43, s3, 10
    s_lshl_b32 s44, s42, 15
    s_lshl_b32 s45, s50, 10
    s_add_u32 s44, s44, s45
    s_add_u32 s45, s44, {OFF_X2S}
    s_add_u32 s44, s44, {OFF_X2}
    s_lshl_b32 s46, s42, 12
    s_lshl_b32 s47, s50, 8
    s_add_u32 s46, s46, s47
    s_add_u32 s46, s46, {OFF_ST2}
    s_lshl_b32 s47, s42, 15
    s_add_u32 s47, s47, s43
    s_add_u32 s47, s47, {OFF_O}
    s_add_u32 m0, s43, {LDS_OST}
    """)
    k(f"""
    v_lshl_or_b32 v150, v151, 4, v150
    v_lshl_or_b32 v152, v153, 4, v152
    v_lshl_or_b32 v150, v152, 8, v150
    v_and_b32 v151, 1, v1
    v_readlane_b32 s38, v150, 0
    v_readlane_b32 s39, v150, 1
    v_cmp_eq_u32 vcc, 1, v151
    v_mov_b32 v152, s38
    v_mov_b32 v153, s39
    v_cndmask_b32 v152, v152, v153, vcc
    v_cmp_ne_u32 vcc, v152, v150
    s_nop 3
    s_cmp_eq_u64 vcc, 0
    s_cselect_b32 s{S_FAST}, 1, 0
    """)
    def w2some(n):
        for _ in range(n):
            for y in w2_late.pop(0):
                k(y)
        return n
    ND = [int(x) for x in os.environ.get("ND", "0,0,0").split(",")]
    signal(k, 1, 54, 40, 32, nafter=w2some(ND[0]), fast=bool(TOKP))
    dual_end(k, 'e1')
    stamp(k, 12)
    k(f"""
    s_lshl_b32 s38, s3, 7
    s_add_u32 s38, s38, {LDS_VEC}
    v_lshlrev_b32 v10, 4, v8
    v_add_u32 v10, s38, v10
    """)
    for j in range(4):
        k(f"ds_read_b128 v[{GA+4*j}:{GA+4*j+3}], v10 offset:{32*j}")
        k(f"ds_read_b128 v[{A2+4*j}:{A2+4*j+3}], v10 offset:{512+32*j}")
    for i in range(8):
        k(f"v_lshlrev_b32 v{XU+2*i}, 16, v{XR+i}")
        k(f"v_and_b32 v{XU+2*i+1}, 0xffff0000, v{XR+i}")
    MA_, WU, UA = 60, 92, 36
    k(f"""
    v_add_u32 v14, s43, v2
    v_add_u32 v15, s43, v4
    v_add_u32 v16, s43, v5
    v_and_b32 v17, 15, v1
    v_lshrrev_b32 v18, 4, v1
    v_lshlrev_b32 v17, 10, v17
    v_lshl_add_u32 v17, v18, 4, v17
    v_add_u32 v17, {LDS_MODB}, v17
    s_mov_b32 s48, 0x00030003
    s_mov_b32 s49, 0x00030003
    """)
    for i in range(32):
        k(f"v_mov_b32 v{MA_+i}, 0")
    def mread(s0):
        k("s_mov_b64 exec, s[48:49]")
        for s in range(s0, s0 + 8):
            k(f"ds_read_b128 v[{MA_+4*(s%8)}:{MA_+4*(s%8)+3}], v17 offset:{64*s}")
        k("s_mov_b64 exec, -1")
    def uread(s):
        for h in range(2):
            addr = w1_lds(s * 7) + 4 * h * 1024
            r = WU + 8 * (s & 1) + 4 * h
            k(f"ds_read_b128 v[{r}:{r+3}], v{14 + (addr >> 16)} offset:{addr & 0xffff}")
    def ut_steps(s0, s1):
        for s in range(s0, s1):
            if s < 15:
                uread(s + 1)
                k("s_waitcnt lgkmcnt(2)")
            else:
                k("s_waitcnt lgkmcnt(0)")
            for h in range(2):
                u_ = UA + 4 * h
                r = WU + 8 * (s & 1) + 4 * h
                c = "0" if s == 0 else f"v[{u_}:{u_+3}]"
                k(f"v_mfma_f32_16x16x32_bf16 v[{u_}:{u_+3}], v[{MA_+4*(s%8)}:{MA_+4*(s%8)+3}], v[{r}:{r+3}], {c}")
    mread(0)
    uread(0)
    UTE = int(os.environ.get("UTE", "8"))
    ut_steps(0, UTE)
    if UTE == 8:
        mread(8)
    stamp(k, 13)
    wait_edge(k, 1, 36, 32)
    stamp(k, 14)
    vm.n = 0
    oid = []
    for i in range(8):
        if i:
            k("s_add_u32 m0, m0, 4096")
            k("s_add_u32 s47, s47, 4096")
        oid.append(vm.op(f"buffer_load_dwordx4 v2, s[24:27], s47 offen {FL} lds"))
    if UTE < 8:
        ut_steps(UTE, 8)
        mread(8)
    ut_steps(8, 16)
    k("s_nop 6")
    for h in range(2):
        u_ = UA + 4 * h
        d = WU + 4 * h
        for i in range(2):
            bf16_round(k, 18 + i, u_ + i)
        for i in range(2):
            k(f"v_sub_f32 v{u_+i}, v{u_+i}, v{18+i}")
        for i in range(2):
            k(f"v_cvt_pk_bf16_f32 v{d+i}, v{18+i}, v{u_+i}")
        k(f"v_mov_b32 v{d+2}, 0")
        k(f"v_mov_b32 v{d+3}, 0")
        k(f"ds_write_b128 v15, v[{d}:{d+3}] offset:{LDS_UT + 4*h*1024 - 65536}")
    AC, OFR = 20, 60
    bounds = [int(x) for x in os.environ.get("P3B", "0,8,20").split(",")] + [32]
    ahead = 6
    def ord_(s2):
        if s2 in bounds:
            vm.wait(oid[bounds[bounds.index(s2) + 1] // 4 - 1])
            k("s_barrier")
        k(lds_rd(f"v[{OFR+4*(s2%8)}:{OFR+4*(s2%8)+3}]", LDS_OST + s2 * 1024))
    for s in range(ahead):
        ord_(s)
    for s in range(32):
        issued = min(32, s + ahead)
        k(f"s_waitcnt lgkmcnt({issued - 1 - s})")
        c = "0" if s == 0 else f"v[{AC}:{AC+15}]"
        k(f"v_mfma_f32_32x32x16_bf16 v[{AC}:{AC+15}], {wo_reg(s)}, v[{OFR+4*(s%8)}:{OFR+4*(s%8)+3}], {c}")
        if s + ahead < 32:
            ord_(s + ahead)
    k("s_nop 11")
    stamp(k, 15)
    for i in range(8):
        k(f"v_pk_fma_f32 v[{AC+2*i}:{AC+2*i+1}], v[{GA+2*i}:{GA+2*i+1}], v[{AC+2*i}:{AC+2*i+1}], v[{XU+2*i}:{XU+2*i+1}]")
    for i in range(8):
        k(f"v_pk_mul_f32 v[{A2+2*i}:{A2+2*i+1}], v[{A2+2*i}:{A2+2*i+1}], v[{AC+2*i}:{AC+2*i+1}]")
    for i in range(8):
        k(f"v_cvt_pk_bf16_f32 v{60+i}, v{A2+2*i}, v{A2+2*i+1}")
    dual_begin(k)
    k(f"buffer_store_dwordx4 v[60:63], v12, s[24:27], s45 offen {DF}")
    k(f"buffer_store_dwordx4 v[64:67], v12, s[24:27], s45 offen offset:512 {DF}")
    k(f"v_pk_add_f32 v[14:15], v[{AC}:{AC+1}], v[{AC+2}:{AC+3}]")
    k(f"v_pk_mul_f32 v[16:17], v[{AC}:{AC+1}], v[{AC}:{AC+1}]")
    for i in range(1, 8):
        if i >= 2:
            k(f"v_pk_add_f32 v[14:15], v[14:15], v[{AC+2*i}:{AC+2*i+1}]")
        k(f"v_pk_fma_f32 v[16:17], v[{AC+2*i}:{AC+2*i+1}], v[{AC+2*i}:{AC+2*i+1}], v[16:17]")
    k("v_add_f32 v14, v14, v15")
    k("v_add_f32 v15, v16, v17")
    k("v_mov_b32 v16, v14")
    k("v_mov_b32 v17, v15")
    for i in range(2):
        k(f"v_cvt_pk_bf16_f32 v{144+i}, v{AC+2*i}, v{AC+2*i+1}")
    k("v_permlane32_swap_b32 v16, v14")
    k("v_permlane32_swap_b32 v17, v15")
    k("v_pk_add_f32 v[14:15], v[14:15], v[16:17]")
    k("s_mov_b32 exec_hi, 0")
    k(f"buffer_store_dwordx2 v[14:15], v13, s[24:27], s46 offen {DF}")
    k("s_mov_b32 exec_hi, -1")
    for i in range(2, 8):
        k(f"v_cvt_pk_bf16_f32 v{144+i}, v{AC+2*i}, v{AC+2*i+1}")
    k("v_mov_b32 v156, v12")
    k("s_mov_b32 s59, s44")
    x2st = [f"buffer_store_dwordx4 v[144:147], v156, s[24:27], s59 offen {FL}", f"buffer_store_dwordx4 v[148:151], v156, s[24:27], s59 offen offset:512 {FL}"]
    k("""
    s_lshr_b32 s40, s42, 2          ; E3 group
    s_and_b32 s41, s42, 3
    s_lshl_b32 s41, s41, 2
    s_lshr_b32 s43, s37, 3
    s_add_u32 s41, s41, s43         ; member
    """)
    signal(k, 2, 40, 41, 16, nafter=w2some(ND[1]), fast=True)
    dual_end(k, 'e2')
    stamp(k, 16)
    ACC4, WF, ST, SB = 8, 64, 120, 136
    k(f"""
    s_lshl_b32 s40, s36, 1
    s_bfe_u32 s41, s37, 0x10002
    s_add_u32 s40, s40, s41        ; tb4
    s_lshl_b32 s44, s40, 2
    s_add_u32 s44, s44, s3         ; tok32
    s_lshl_b32 s45, s44, 15
    s_add_u32 s45, s45, {OFF_X2S}
    s_add_u32 s46, s45, 16384
    v_and_b32 v3, 15, v1
    v_lshrrev_b32 v152, 4, v1
    v_lshlrev_b32 v153, 3, v3
    v_lshl_add_u32 v153, v152, 10, v153
    s_lshl_b32 s47, s44, 12
    s_add_u32 s47, s47, {OFF_ST2}
    s_mul_i32 s42, s44, {112*1024}
    s_mul_i32 s43, s57, {7*1024}
    s_add_u32 s42, s42, s43
    s_add_u32 s42, s42, {OFF_H}
    s_add_u32 s43, s42, 4096
    """)
    NA = int(os.environ.get("P4A", "4"))
    passes = [list(range(NA)), list(range(NA, 7))] if NA < 7 else [list(range(7))]
    fseq = [(s, i) for ps in passes for s in range(17) for i in ps]
    RING, LA = 14, int(os.environ.get("P4LA", "10"))
    def wreg(n):
        return f"v[{WF+4*(n%RING)}:{WF+4*(n%RING)+3}]"
    def wrd(n):
        s, i = fseq[n]
        return lds_rd(wreg(n), w1_lds(s * 7 + i))
    for n in range(LA):
        k(wrd(n))
    wait_edge(k, 2, 40, 16)
    wbl2(k, "a")
    stamp(k, 17)
    vm.n = 0
    xid = []
    def xload():
        s = len(xid)
        if s >= 16:
            return
        if s and s % 4 == 0:
            k("s_add_u32 s45, s45, 4096")
            k("s_add_u32 s46, s46, 4096")
        vm.op(f"buffer_load_dwordx4 {wo_reg(2*s)}, v2, s[24:27], s45 offen offset:{(s%4)*1024} {FL}")
        xid.append(vm.op(f"buffer_load_dwordx4 {wo_reg(2*s+1)}, v2, s[24:27], s46 offen offset:{(s%4)*1024} {FL}"))
    for s in range(int(os.environ.get("P4D", "7"))):
        xload()
    stl = [f"buffer_load_dwordx2 v[{ST+8*j+2*pp}:{ST+8*j+2*pp+1}], v153, s[24:27], s47 offen offset:{256*pp+128*j} {FL}"
           for j in range(2) for pp in range(4)]
    fill = L()
    for j in range(2):
        b = ST + 8 * j
        fill(f"v_pk_add_f32 v[{b}:{b+1}], v[{b}:{b+1}], v[{b+2}:{b+3}]")
        fill(f"v_pk_add_f32 v[{b+4}:{b+5}], v[{b+4}:{b+5}], v[{b+6}:{b+7}]")
        fill(f"v_pk_add_f32 v[{b}:{b+1}], v[{b}:{b+1}], v[{b+4}:{b+5}]")
    regs = [ST, ST + 1, ST + 8, ST + 9]
    tmp = [ST + 2, ST + 3, ST + 10, ST + 11]
    for op in ("v_permlane16_swap_b32", "v_permlane32_swap_b32"):
        for r, t in zip(regs, tmp):
            fill(f"v_mov_b32 v{t}, v{r}")
        fill("s_nop 1")
        for r, t in zip(regs, tmp):
            fill(f"{op} v{t}, v{r}")
        for r, t in zip(regs, tmp):
            fill(f"v_add_f32 v{r}, v{t}, v{r}")
    for j in range(2):
        b = ST + 8 * j
        ln_stats_finish(fill, b, b + 1, b + 4, b + 5, None, std_out=b + 6)
        fill(f"v_cvt_pk_bf16_f32 v{SB+4*j}, -v{b+4}, -v{b+4}")
        fill(f"v_cvt_pk_bf16_f32 v{SB+4*j+1}, v{b+6}, v{b+6}")
        fill(f"v_mov_b32 v{SB+4*j+2}, 0")
        fill(f"v_mov_b32 v{SB+4*j+3}, 0")
    fill(f"""
    v_lshlrev_b32 v154, 2, v3
    s_lshl_b32 s41, s3, 7
    v_add_u32 v154, s41, v154
    v_add_u32 v154, {LDS_R}, v154
    """)
    def tile_epi(i):
        a = ACC4 + 8 * i
        e = L()
        for q in range(4):
            e(f"v_cvt_pk_bf16_f32 v{a+q}, v{a+2*q}, v{a+2*q+1}")
        for q in range(4):
            e(f"v_pk_max_i16 v{a+q}, v{a+q}, 0")
        t = L()
        t(f"v_permlane16_swap_b32 v{a}, v{a+2}")
        t(f"v_permlane16_swap_b32 v{a+1}, v{a+3}")
        t(f"buffer_store_dwordx4 v[{a}:{a+3}], v2, s[24:27], s{42 if i < 4 else 43} offen offset:{(i%4)*1024} {FL}")
        return e, t
    def epi_seq(tiles):
        out = []
        prev = None
        for i in tiles:
            e, t = tile_epi(i)
            out += e
            if prev:
                out += prev
            prev = t
        return out + ["s_nop 1"] + prev
    FS = int(os.environ.get("P4FS", "7"))
    nrd = LA
    n = 0
    for pi, ps in enumerate(passes):
        for s in range(17):
            last = n + len(ps) - 1
            w = f"lgkmcnt({nrd - 1 - last})"
            if pi == 0 and s < 16:
                k(vm.wait_str(xid[s]) + " " + w)
            else:
                k("s_waitcnt " + w)
            if pi == 0 and s == FS:
                vm.wait(sid)
            if pi == 0 and s == 16:
                while fill:
                    k(fill.pop(0))
                k("s_nop 1")
            if pi == 1 and s == 0:
                fill = L()
                fill(f"""
                ds_write_b32 v154, v{ST+5}
                ds_write_b32 v154, v{ST+13} offset:64
                v_lshlrev_b32 v158, 8, v3
                v_mov_b32 v159, s98
                s_lshl_b32 s50, s40, 12
                s_add_u32 s50, s50, {OFF_FLAG + 3*65536}
                """)
                extra_lgkm = 2
            if pi == 1 and s == 1:
                fill = epi_seq(passes[0])
                fill = [x for x in fill if not x.startswith("s_nop")]
                fill += [l.strip() for l in f"""s_lshl_b32 s51, s57, 8
                s_add_u32 s51, s51, s50
                s_lshl_b32 s58, s36, 2
                s_bfe_u32 s41, s37, 0x20001
                s_add_u32 s58, s58, s41
                s_lshl_b32 s58, s58, 1
                s_and_b32 s41, s3, 1
                s_add_u32 s58, s58, s41
                s_xor_b32 s41, s58, 1
                s_mul_i32 s46, s58, {112*1024}
                s_mul_i32 s47, s41, {112*1024}
                s_mul_i32 s41, s3, {28*1024}
                s_add_u32 s41, s41, {OFF_H}
                s_add_u32 s46, s46, s41
                s_add_u32 s47, s47, s41""".split("\n")]
            if pi == 1 and s == int(os.environ.get("SIGA", "15")):
                assert not fill
                k("s_waitcnt vmcnt(0)")
                k("s_barrier")
                for x in flag_store("L_f4a", 51, 0): k(x)
            m_ = 0
            for i in ps:
                for j in range(2):
                    a = ACC4 + 8 * i + 4 * j
                    c = "0" if s == 0 else f"v[{a}:{a+3}]"
                    bop = wo_reg(2 * s + j) if s < 16 else f"v[{SB+4*j}:{SB+4*j+3}]"
                    k(f"v_mfma_f32_16x16x32_bf16 v[{a}:{a+3}], {wreg(n)}, {bop}, {c}")
                    if j == 1 and nrd < len(fseq):
                        k(wrd(nrd)); nrd += 1
                    elif pi == 0 and m_ == 0:
                        xload()
                    elif pi == 0 and m_ in (2, 4, 6) and stl and s >= 1:
                        sid = vm.op(stl.pop(0))
                    elif pi == 0 and s >= 10 and m_ == 6 and x2st:
                        vm.op(x2st.pop(0))
                    elif pi == 0 and s >= 10 and m_ in (2, 4) and len(w2_late) > ND[2]:
                        for y in w2_late.pop(0):
                            k(y)
                        vm.tick()
                    if (pi == 1 or s >= FS) and fill:
                        k(fill.pop(0))
                        if fill and j == 0:
                            k(fill.pop(0))
                    m_ += 1
                n += 1
    assert not fill and not x2st and len(w2_late) == ND[2], (len(fill), len(w2_late))
    stamp(k, 18)
    vm.n = 0
    pa = vm.op(f"buffer_load_dword v157, v158, s[24:27], s50 offen {FL}")
    k("s_nop 4")
    for x in epi_seq(passes[-1]):
        k(x)
        if x.startswith("buffer"):
            vm.tick()
    stamp(k, 19)
    vm.wait(pa)
    k("v_cmp_ne_u32 vcc, s98, v157")
    for tag, imm in (("a", 0), ("b", 128)):
        OOL.append([f"L_p4{tag}_spin:", "s_mov_b32 s39, 0x40000", f"L_p4{tag}_spin2:",
                    f"buffer_load_dword v157, v158, s[24:27], s50 offen offset:{imm} {FL}", "s_sub_u32 s39, s39, 1", "s_waitcnt vmcnt(0)",
                    "v_cmp_ne_u32 vcc, s98, v157", f"s_cbranch_scc1 L_p4{tag}_ok", "s_nop 1", f"s_cbranch_vccnz L_p4{tag}_spin2", f"s_branch L_p4{tag}_ok"])
    ACC5, RB, DEPTH = 8, 72, 10
    G5, X5, R5 = 224, 240, 248
    kord = [7 * p + i for p in range(4) for i in passes[0]] + [7 * p + i for p in range(4) for i in passes[1]]
    NAK = 4 * len(passes[0])
    hid = []
    base = [None]
    def hload():
        s = len(hid)
        if s >= 28:
            return
        r = RB + 8 * (s % DEPTH)
        ks = kord[s]
        if base[0] is None or not (0 <= ks - base[0] < 4):
            base[0] = ks
            k(f"s_add_u32 s44, s46, {1024*ks}")
            k(f"s_add_u32 s45, s47, {1024*ks}")
        off = (ks - base[0]) * 1024
        vm.op(f"buffer_load_dwordx4 v[{r}:{r+3}], v2, s[24:27], s44 offen offset:{off} {FL}")
        hid.append(vm.op(f"buffer_load_dwordx4 v[{r+4}:{r+7}], v2, s[24:27], s45 offen offset:{off} {FL}"))
    k("s_nop 1")
    k("s_cbranch_vccnz L_p4a_spin")
    k.label("L_p4a_ok")
    stamp(k, 22)
    P5D = int(os.environ.get("P5D", "6"))
    for s in range(P5D):
        hload()
    f5 = L()
    f5(f"""
    v_lshrrev_b32 v250, 5, v1
    v_and_b32 v251, 31, v1
    v_lshlrev_b32 v252, 4, v250
    s_and_b32 s41, s52, 7
    s_lshl_b32 s41, s41, 7
    s_add_u32 s41, s41, {LDS_VEC + 1024}
    v_add_u32 v252, s41, v252
    v_lshrrev_b32 v249, 4, v251
    v_lshlrev_b32 v249, 14, v249
    v_and_b32 v254, 15, v251
    v_lshl_add_u32 v249, v254, 4, v249
    v_lshl_add_u32 v249, v250, 8, v249
    s_lshl_b32 s42, s58, 15
    s_lshl_b32 s41, s52, 10
    s_add_u32 s43, s42, s41
    s_add_u32 s43, s43, {OFF_X2}
    s_and_b32 s41, s58, 3
    s_lshl_b32 s41, s41, 7
    s_add_u32 s41, s41, {LDS_R}
    v_lshlrev_b32 v254, 2, v251
    v_add_u32 v254, s41, v254
    v_lshlrev_b32 v253, 10, v251
    v_lshl_add_u32 v253, v250, 4, v253
    s_lshl_b32 s41, s52, 6
    s_add_u32 s42, s42, s41
    """)
    for j in range(4):
        f5(f"ds_read_b128 v[{G5+4*j}:{G5+4*j+3}], v252 offset:{32*j}")
    f5(f"ds_read_b32 v{R5}, v254")
    for x in f5: k(x)
    f5 = L()
    f5("s_waitcnt lgkmcnt(0)")
    for i in range(16):
        f5(f"v_mul_f32 v{G5+i}, v{R5}, v{G5+i}")
    for t in (1, 2, 3):
        f5(f"""
        s_xor_b32 s56, s3, {t}
        s_mul_i32 s56, s56, 12288
        s_add_u32 s56, s56, {(t-1)*4096}
        v_add_u32 v{3+t}, s56, v2
        """)
    f5("s_mul_i32 s56, s3, 12288")
    f5("v_add_u32 v3, s56, v2")
    PBS = int(os.environ.get("PBS", "4"))
    checked = False
    for s in range(28):
        vm.wait(hid[s])
        if s == 1:
            k("s_barrier")
            for x in flag_store("L_f4b", 51, 128): k(x)
        if len(hid) == NAK and not checked and hid[s] > pb:
            k("v_cmp_ne_u32 vcc, s98, v157")
        r = RB + 8 * (s % DEPTH)
        ks = kord[s]
        A0, A1 = f"a[{8*ks}:{8*ks+3}]", f"a[{8*ks+4}:{8*ks+7}]"
        B0, B1 = f"v[{r}:{r+3}]", f"v[{r+4}:{r+7}]"
        for t, (a, b) in enumerate(((A0, B0), (A0, B1), (A1, B0), (A1, B1))):
            acc = ACC5 + 16 * t
            c = "0" if s == 0 else f"v[{acc}:{acc+15}]"
            k(f"v_mfma_f32_32x32x16_bf16 v[{acc}:{acc+15}], {a}, {b}, {c}")
            if t == 0 and s == PBS:
                pb = vm.op(f"buffer_load_dword v157, v158, s[24:27], s50 offen offset:128 {FL}")
            if t == 1 and len(hid) == NAK and not checked and hid[s] > pb:
                k("s_cbranch_vccnz L_p4b_spin")
                k.label("L_p4b_ok")
                checked = True
            if t in (0, 1, 2) and (len(hid) < NAK or checked) and len(hid) - s <= P5D:
                hload()
            if t == 2 and s in (14, 15):
                vm.op(f"buffer_load_dwordx4 v[{X5+4*(s-14)}:{X5+4*(s-14)+3}], v249, s[24:27], s43 offen offset:{512*(s-14)} {FL}")
            if t == 3:
                for _ in range(3):
                    if f5:
                        k(f5.pop(0))
    assert not f5 and checked
    XU5, TMP5 = 72, 88
    stamp(k, 23)
    XU5, TMP5 = 160, 176
    for i in range(5):
        k(f"v_lshlrev_b32 v{XU5+2*i}, 16, v{X5+i}")
        k(f"v_and_b32 v{XU5+2*i+1}, 0xffff0000, v{X5+i}")
    for t in (1, 2, 3):
        for q in range(4):
            k(f"ds_write_b128 v{3+t}, v[{ACC5+16*t+4*q}:{ACC5+16*t+4*q+3}] offset:{q*1024}")
    for i in range(5, 8):
        k(f"v_lshlrev_b32 v{XU5+2*i}, 16, v{X5+i}")
        k(f"v_and_b32 v{XU5+2*i+1}, 0xffff0000, v{X5+i}")
    k(f"""
    s_waitcnt lgkmcnt(0)
    s_barrier
    """)
    for i in range(12):
        k(f"ds_read_b128 v[{TMP5+4*i}:{TMP5+4*i+3}], v3 offset:{i*1024}")
    for sl in range(3):
        k(f"s_waitcnt lgkmcnt({8-4*sl})")
        for i in range(8):
            k(f"v_pk_add_f32 v[{ACC5+2*i}:{ACC5+2*i+1}], v[{ACC5+2*i}:{ACC5+2*i+1}], v[{TMP5+16*sl+2*i}:{TMP5+16*sl+2*i+1}]")
    stamp(k, 24)
    for i in range(8):
        k(f"v_pk_fma_f32 v[{ACC5+2*i}:{ACC5+2*i+1}], v[{G5+2*i}:{G5+2*i+1}], v[{ACC5+2*i}:{ACC5+2*i+1}], v[{XU5+2*i}:{XU5+2*i+1}]")
    for i in range(8):
        k(f"v_cvt_pk_bf16_f32 v{TMP5+i}, v{ACC5+2*i}, v{ACC5+2*i+1}")
    k("s_nop 0")
    for p in range(2):
        t = TMP5 + 4 * p
        k(f"v_permlane32_swap_b32 v{t}, v{t+2}")
        k(f"v_permlane32_swap_b32 v{t+1}, v{t+3}")
        k(f"buffer_store_dwordx4 v[{t}:{t+3}], v253, s[32:35], s42 offen offset:{32*p} {os.environ.get('OUTFL', '')}")
    endpgm(k)
    k.label("L_att_fallback")
    k(f"""
    s_mov_b32 s42, 0
    s_mov_b32 s43, s47
    v_mov_b32 v6, 0xff800000
    v_mov_b32 v7, 0xff800000
    """)
    k.label("L_att_maxloop")
    k(f"""
    buffer_load_dwordx4 v[{KF}:{KF+3}], v2, s[24:27], s43 offen {FL}
    s_add_u32 s43, s43, 2048
    s_waitcnt vmcnt(0)
    v_mfma_f32_32x32x16_bf16 v[{S}:{S+15}], v[{KF}:{KF+3}], v[{Q}:{Q+3}], 0
    v_mfma_f32_32x32x16_bf16 v[{S+16}:{S+31}], v[{KF}:{KF+3}], v[{Q+4}:{Q+7}], 0
    s_nop 10
    """)
    att_max16(k, 6, S, False)
    att_max16(k, 7, S + 16, False)
    k(f"""
    s_add_u32 s42, s42, 1
    s_cmp_lt_u32 s42, 64
    s_cbranch_scc1 L_att_maxloop
    s_nop 0
    v_permlane32_swap_b32 v6, v7
    v_max_f32 v6, v6, v7
    v_mov_b32 v7, v6
    s_nop 1
    v_permlane32_swap_b32 v6, v7
    v_sub_f32 v6, 0, v6
    v_sub_f32 v7, 0, v7
    """)
    for i in range(16):
        k(f"v_mov_b32 v{C+i}, v6")
        k(f"v_mov_b32 v{C+16+i}, v7")
        k(f"v_mov_b32 v{O+i}, 0")
        k(f"v_mov_b32 v{O+16+i}, 0")
    k("s_mov_b32 s42, 0")
    k("s_mov_b32 s43, s47")
    k.label("L_att_redo")
    k(f"""
    buffer_load_dwordx4 v[{KF}:{KF+3}], v2, s[24:27], s43 offen {FL}
    s_mov_b64 exec, s[48:49]
    buffer_load_dwordx4 v[{VF}:{VF+3}], v3, s[24:27], s43 offen {FL}
    buffer_load_dwordx4 v[{VF+4}:{VF+7}], v3, s[24:27], s43 offen offset:512 {FL}
    s_mov_b64 exec, -1
    s_add_u32 s43, s43, 2048
    s_waitcnt vmcnt(0)
    v_mfma_f32_32x32x16_bf16 v[{S}:{S+15}], v[{KF}:{KF+3}], v[{Q}:{Q+3}], v[{C}:{C+15}]
    v_mfma_f32_32x32x16_bf16 v[{S+16}:{S+31}], v[{KF}:{KF+3}], v[{Q+4}:{Q+7}], v[{C+16}:{C+31}]
    s_nop 10
    """)
    for b in range(2):
        for i in range(16):
            k(f"v_exp_f32 v{S+16*b+i}, v{S+16*b+i}")
        k("s_nop 0")
        for j in range(8):
            k(f"v_cvt_pk_bf16_f32 v{P+j}, v{S+16*b+2*j}, v{S+16*b+2*j+1}")
        k("s_nop 1")
        for h in range(2):
            k(f"v_mfma_f32_32x32x16_bf16 v[{O+16*b}:{O+16*b+15}], v[{VF+4*h}:{VF+4*h+3}], v[{P+4*h}:{P+4*h+3}], v[{O+16*b}:{O+16*b+15}]")
    k(f"""
    s_add_u32 s42, s42, 1
    s_cmp_lt_u32 s42, 64
    s_cbranch_scc1 L_att_redo
    s_nop 10
    s_branch L_att_fin
    """)
    for blk in OOL:
        k.lines += blk
    if DIAG:
        marks = {"L_zspin:": 1, "L_mod_spin:": 2, "L_dbg_spin:": 4, "L_xid_retry:": 8, "L_mid_retry:": 16}
        out = []
        for l in k.lines:
            out.append(l)
            if l in marks:
                out.append(f"s_or_b32 s91, s91, {marks[l]}")
        k.lines = out
    k.label(f"L_end_{k.name}")
    k("s_endpgm")
    k(".fill (65536 + L_pc_here - .) / 4 + 64, 4, 0xbf810000")
    return k, (256, 256, 163840)


def build(path=OUT):
    ks = [mega()]
    errs = []
    for k, _ in ks:
        errs += k.check()
    for e in errs:
        print(e)
    ref = open(OUT + ".ref").read().split("\n")
    hdr = [l for l in ref if l.startswith(";") and "@launch" not in l and "Override" not in l and "grid=ceil" not in l]
    out = "\n".join(hdr) + "\n"
    for k, (g, b, lds) in ks:
        kn = f"kernel={k.name} " if os.environ.get("ASLIST") else ""
        out += f"; @launch {kn}grid=({g},1,1) block=({b},1,1) lds={lds}\n"
    out += '.amdgcn_target "amdgcn-amd-amdhsa--gfx950"\n'
    codes, kds = zip(*[k.text() for k, _ in ks])
    out += "".join(codes)
    out += '.section .rodata,"a"\n' + "".join(kds)
    open(path, "w").write(out)
    print("wrote", path, len(out), "bytes;", len(errs), "checker errors")
    return len(errs)


if __name__ == "__main__":
    sys.exit(1 if build(sys.argv[1] if len(sys.argv) > 1 else OUT) else 0)
```

```python
import sys, os
sys.path.insert(0, "gen")
from asmlib import Kern
import gen as G
from gen import (MB, OFF_MOD, OFF_XHAT, OFF_WQKV, OFF_Q, OFF_KV, OFF_O, OFF_WO, OFF_X2, OFF_X2S, OFF_ST2, OFF_W1,
                 OFF_H, OFF_W2, QSCALE, P_X, P_WQKV, P_WO, P_W1, P_W2, P_C, P_WMOD, P_OUT, P_WS, srd, stamp, endpgm,
                 prologue, prologue_wait, epilogue, bf16_round, ln_stats_finish, role_ln, role_relayout, ATT, att_unit,
                 att_max16, NAME, OUT, DIAG)

OFF_MODB = 0x3000
OFF_FLAG = G.OFF_FLAG
FL = "sc1"
DF = "@DF@"
S_FAST = 93
OFF_XID = G.OFF_XID
OOL = []


def dual_begin(k):
    k._dual = len(k.lines)


def dual_end(k, tag):
    body = k.lines[k._dual:]
    del k.lines[k._dual:]
    import re
    labs = [l[:-1] for l in body if l.endswith(":")]
    def variant(fl, suffix):
        out = []
        for l in body:
            l = l.replace(DF, fl).rstrip()
            for lab in labs:
                l = re.sub(rf"\b{lab}\b", lab + suffix, l)
            out.append(l)
        return out
    if tag not in os.environ.get("FAST", "none").split(","):
        k.lines += variant("sc1", "_s")
        return
    k(f"s_cmp_eq_u32 s{S_FAST}, 0")
    k(f"s_cbranch_scc1 L_slow_{tag}")
    k.lines += variant("", "_f")
    k.label(f"L_join_{tag}")
    OOL.append([f"L_slow_{tag}:"] + variant("sc1", "_s") + [f"s_branch L_join_{tag}"])


_stamp = stamp
def stamp(k, i):
    if os.environ.get("P1ST") and i > 8:
        return
    _stamp(k, i)
def stamp1(k, i):
    if os.environ.get("P1ST"):
        _stamp(k, i)


class VM:
    def __init__(self, k):
        self.k = k; self.n = 0
    def op(self, text=None):
        if text:
            self.k(text)
        self.n += 1
        return self.n
    def tick(self):
        self.n += 1
        return self.n
    def wait_str(self, idx):
        c = self.n - idx
        return f"s_waitcnt vmcnt({min(c, 63)})"
    def wait(self, idx):
        self.k(self.wait_str(idx))


def signal(k, edge, s_group, s_member, gsize, nafter=0, fl=FL, fast=False):
    lab = f"L_sig{edge}"
    k(f"""
    s_mul_i32 s38, s{s_group}, {gsize}
    s_add_u32 s38, s38, s{s_member}
    s_lshl_b32 s38, s38, 8
    s_add_u32 s38, s38, {OFF_FLAG + edge * 65536}
    v_mov_b32 v6, 0
    v_mov_b32 v7, s98
    s_cmp_lg_u32 s3, 0
    s_waitcnt vmcnt({nafter}) lgkmcnt(0)
    s_barrier
    s_cbranch_scc1 {lab}
    s_mov_b64 exec, 1
    """)
    if fast and int(os.environ.get("FFLAG", "1")):
        k(f"""
        s_cmp_eq_u32 s{S_FAST}, 0
        s_cbranch_scc1 {lab}_slow
        buffer_store_dword v7, v6, s[24:27], s38 offen
        s_branch {lab}_done
        {lab}_slow:
        buffer_store_dword v7, v6, s[24:27], s38 offen sc1
        {lab}_done:
        """)
    else:
        k("buffer_store_dword v7, v6, s[24:27], s38 offen sc1")
    k("s_mov_b64 exec, -1")
    k.label(lab)


def flag_store(lab, soff, imm):
    return ["s_cmp_lg_u32 s3, 0", f"s_cbranch_scc1 {lab}", "s_mov_b64 exec, 1", f"s_cmp_eq_u32 s{S_FAST}, 0", f"s_cbranch_scc1 {lab}_slow",
            f"buffer_store_dword v159, v158, s[24:27], s{soff} offen offset:{imm}", f"s_branch {lab}_done", f"{lab}_slow:",
            f"buffer_store_dword v159, v158, s[24:27], s{soff} offen offset:{imm} sc1", f"{lab}_done:", "s_mov_b64 exec, -1", f"{lab}:"]


def wait_edge(k, edge, s_group, gsize):
    lab = f"L_wait{edge}"
    k(f"""
    s_cmp_lg_u32 s3, 0
    s_cbranch_scc1 {lab}
    s_mul_i32 s38, s{s_group}, {gsize*256}
    s_add_u32 s38, s38, {OFF_FLAG + edge * 65536}
    v_lshlrev_b32 v6, 8, v1
    s_mov_b32 exec_lo, {hex((1 << gsize) - 1)}
    s_mov_b32 exec_hi, 0
    s_mov_b32 s39, 0x40000
    """)
    k.label(f"L_poll{edge}")
    k(f"""
    buffer_load_dword v7, v6, s[24:27], s38 offen {FL}
    s_sub_u32 s39, s39, 1
    s_cbranch_scc1 L_bail{edge}
    s_waitcnt vmcnt(0)
    v_cmp_ne_u32 vcc, s98, v7
    s_cbranch_vccnz L_poll{edge}
    """)
    k.label(f"L_bail{edge}")
    k("s_waitcnt vmcnt(0)")
    k("s_mov_b64 exec, -1")
    k.label(lab)
    k("s_barrier")


def wbl2(k, tag):
    if tag in os.environ.get("WBL2", "").split(","):
        k(f"""
        s_lshl_b32 s38, s37, 2
        s_add_u32 s38, s38, s3
        s_cmp_lg_u32 s38, 1
        s_cbranch_scc1 L_nowb_{tag}
        buffer_wbl2 sc1
        """)
        k.label(f"L_nowb_{tag}")


def wo_reg(s):
    return f"a[{224+4*s}:{227+4*s}]" if s < 8 else f"v[{160+4*(s-8)}:{163+4*(s-8)}]"


def w1_lds(f):
    if f < 28:
        return LDS_W1A + f * 1024
    if f < 112:
        return (f - 28) * 1024
    return LDS_UT + (f - 112) * 1024


TS = 2080
LDS_W1A = 130 * 1024
LDS_MODB = 84 * 1024
LDS_VEC = 86 * 1024
LDS_OST = 88 * 1024
LDS_UT = 120 * 1024
LDS_R = 128 * 1024


def lds_rd(dst, addr):
    base = (2, 4, 5)[addr >> 16]
    return f"ds_read_b128 {dst}, v{base} offset:{addr & 0xffff}"


class L(list):
    def __call__(self, text):
        for l in text.strip("\n").split("\n"):
            if l.strip():
                self.append(l.strip())


def weave(k, main, side, every):
    n = 0
    for x in main:
        k(x)
        n += 1
        if side and n % every == 0:
            for y in side.pop(0)():
                k(y)


SLOT = (64 * 1024, 112 * 1024, 64 * 1024, 112 * 1024)
LDS_RL = 112 * 1024
LDS_MODS = 128 * 1024
LDS_MRED = 48 * 1024
LDS_SHARE = 52 * 1024
LDS_MRED2 = 159 * 1024
OFF_MODP = 0x8000


def mega():
    k = Kern(NAME + "_kernel", nvgpr=256, nagpr=256, nsgpr=102)
    k.kid = 1
    vm = VM(k)
    if DIAG:
        k("s_memtime s[60:61]")
        k("s_memrealtime s[62:63]")
        for i in range(G.NST):
            k(f"s_mov_b32 s{64+i}, 0")
    k(f"""
    s_cmp_ge_u32 s2, 256
    s_cbranch_scc1 L_end_{k.name}
    s_load_dwordx16 s[4:19], s[0:1], 0
    s_load_dwordx4 s[20:23], s[0:1], 64
    s_load_dwordx2 s[24:25], s[0:1], 80
    v_lshrrev_b32 v2, 6, v0
    v_and_b32 v1, 63, v0
    v_readfirstlane_b32 s3, v2
    s_and_b32 s36, s2, 7
    s_lshr_b32 s37, s2, 3
    v_lshlrev_b32 v2, 4, v1
    s_getpc_b64 s[38:39]
    L_pc_here:
    s_lshl_b32 s98, s37, 2
    s_add_u32 s98, s98, s3
    s_and_b32 s98, s98, 63
    s_lshl_b32 s98, s98, 10
    s_add_u32 s38, s38, s98
    s_addc_u32 s39, s39, 0
    global_load_dwordx4 a[208:211], v2, s[38:39]
    s_memrealtime s[40:41]
    """)
    VA, VB, RAW, XF, FR, ACC = 8, 16, 24, 88, 216, 24
    WM, CC, MA = 8, 12, 16
    k(f"""
    v_lshrrev_b32 v3, 1, v1
    v_lshlrev_b32 v4, 1, v3              ; c voffset: (l>>1)*2
    v_mul_u32_u24 v3, 6144, v3
    v_and_b32 v5, 1, v1
    v_lshl_add_u32 v3, v5, 4, v3
    v_lshrrev_b32 v6, 3, v1              ; r8
    v_and_b32 v7, 7, v1
    v_and_b32 v248, 2, v6
    v_xor_b32 v7, v7, v248
    s_and_b32 s38, s3, 1
    s_lshl_b32 s38, s38, 2
    v_xor_b32 v7, s38, v7
    v_mul_u32_u24 v5, 3072, v6
    v_lshl_add_u32 v5, v7, 4, v5
    s_and_b32 s93, s37, 7
    s_lshl_b32 s93, s93, 1               ; rotW
    s_lshr_b32 s99, s37, 4
    s_lshl_b32 s99, s99, 3
    s_add_u32 s99, s99, s36
    s_lshl_b32 s99, s99, 2
    s_and_b32 s38, s37, 3
    s_add_u32 s99, s99, s38
    s_bfe_u32 s92, s37, 0x20002          ; k split
    s_lshl_b32 s100, s92, 2
    s_add_u32 s100, s100, s3
    s_lshl_b32 s101, s100, 6             ; c soffset
    s_mul_i32 s100, s100, {32*6144}
    s_lshl_b32 s38, s99, 5
    s_add_u32 s100, s100, s38
    s_lshl_b32 s39, s2, 2
    s_add_u32 s39, s39, s3
    v_lshlrev_b32 v248, 6, v1
    s_waitcnt lgkmcnt(0)
    s_mov_b32 s26, {G.WS_USED:#x}
    s_mov_b32 s27, 0x00020000
    """)
    srd(k, 48, 22, 256)
    k(f"""
    s_cmp_lg_u32 s39, 3
    s_cbranch_scc1 L_nozw
    s_mul_i32 s41, s41, 0x9e3779b1
    s_xor_b32 s40, s40, s41
    s_or_b32 s40, s40, 1
    v_mov_b32 v249, s40
    s_mov_b64 exec, 15
    buffer_store_dword v249, v248, s[48:51], 0 offen {FL}
    s_mov_b64 exec, -1
    L_nozw:
    """)
    srd(k, 44, P_WMOD, 512 * 3072 * 2)
    srd(k, 56, P_C, 1024)
    srd(k, 28, P_X, 2048 * 1024)
    stamp(k, 0)
    vm.op(f"buffer_load_ushort v{CC}, v4, s[56:59], s101 offen")
    wmid = vm.op(f"buffer_load_dwordx4 v[{WM}:{WM+3}], v3, s[44:47], s100 offen")
    srd(k, 32, 20, 2048 * 1024)
    k(f"""
    s_lshr_b32 s20, s36, 1
    s_lshl_b32 s20, s20, 3
    s_and_b32 s38, s37, 7
    s_add_u32 s20, s20, s38        ; tb1
    s_and_b32 s21, s36, 1
    s_lshl_b32 s21, s21, 2
    s_lshr_b32 s101, s37, 3        ; rotX
    s_add_u32 s21, s21, s101       ; cb1
    s_lshl_b32 s22, s21, 2
    s_add_u32 s22, s22, s3         ; head
    s_lshl_b32 s38, s20, 16
    s_lshl_b32 s23, s3, 14
    s_add_u32 s38, s38, s23
    """)
    rowid = {}
    def xrow(r):
        def f():
            out = []
            if r % 4 == 0:
                out = [f"s_xor_b32 s17, s101, {r//4}", "s_lshl_b32 s17, s17, 12", "s_add_u32 s17, s17, s16"]
            out.append(f"buffer_load_dwordx4 v[{RAW+4*r}:{RAW+4*r+3}], v2, s[28:31], s17 offen offset:{(r%4)*1024}")
            rowid[r] = vm.tick()
            return out
        return f
    k("s_mov_b32 s16, s38")
    NX0 = int(os.environ.get("NX0", "8"))
    for r in range(NX0):
        for y in xrow(r)():
            k(y)
    srd(k, 40, P_WQKV, 512 * 1536 * 2)
    k(f"""
    s_cmp_lt_u32 s2, 32
    s_cselect_b32 s52, s{P_WO}, s{P_W1}
    s_cselect_b32 s53, s{P_WO+1}, s{P_W1+1}
    s_mov_b32 s54, {512*1792*2:#x}
    s_cselect_b32 s54, {512*512*2:#x}, s54
    s_cmp_ge_u32 s2, 144
    s_cselect_b32 s52, s{P_W2}, s52
    s_cselect_b32 s53, s{P_W2+1}, s53
    s_mov_b32 s55, 0x00020000
    s_lshl_b32 s23, s21, 7
    s_mul_i32 s38, s3, {8*3072}
    s_add_u32 s23, s23, s38
    s_mul_i32 s100, s3, 3072
    """)
    RS_SCALAR = """
    s_cmp_lt_u32 s2, 32
    s_cselect_b32 s4, 0, 32
    s_cselect_b32 s5, 0, 1
    s_cmp_ge_u32 s2, 144
    s_cselect_b32 s4, 144, s4
    s_cselect_b32 s5, 2, s5
    s_sub_u32 s4, s2, s4
    s_lshr_b32 s6, s4, 3
    s_and_b32 s7, s4, 7
    s_mul_i32 s9, s4, 2341
    s_lshr_b32 s9, s9, 16
    s_mul_i32 s10, s9, 28
    s_sub_u32 s10, s4, s10
    s_mov_b32 s8, 1024
    s_cmp_eq_u32 s5, 1
    s_cselect_b32 s6, s9, s6
    s_cselect_b32 s7, s10, s7
    s_cselect_b32 s8, 3584, s8
    s_lshl_b32 s9, s6, 2
    s_add_u32 s9, s9, s3
    """
    WT = int(os.environ.get("WT", "0"))
    if WT:
        k(f"""
        v_lshrrev_b32 v248, 4, v1
        v_mul_u32_u24 v248, 3072, v248
        v_bfe_u32 v249, v1, 2, 2
        v_lshl_add_u32 v248, v249, 10, v248
        v_and_b32 v249, 3, v1
        v_lshl_add_u32 v248, v249, 7, v248
        s_lshl_b32 s4, s37, 2
        s_add_u32 s4, s4, s3
        s_mul_i32 s4, s4, 12288
        s_and_b32 s5, s36, 1
        s_lshl_b32 s5, s5, 9
        s_add_u32 s4, s4, s5
        s_mov_b32 s6, 0x0fff0fff
        s_mov_b32 s7, 0x0fff0fff
        s_mov_b64 exec, s[6:7]
        """)
        vm.op("buffer_load_dword a216, v248, s[40:43], s4 offen")
        k("s_mov_b64 exec, -1")
    k(RS_SCALAR)
    k(f"""
    s_lshl_b32 s12, s8, 5
    s_mul_i32 s12, s12, s9
    s_lshl_b32 s11, s7, 7
    s_add_u32 s12, s12, s11
    s_lshl_b32 s1, s8, 3
    v_lshrrev_b32 v248, 3, v1
    v_mul_lo_u32 v248, v248, s8
    v_and_b32 v249, 7, v1
    v_lshl_add_u32 v248, v249, 4, v248
    v_add_u32 v248, s12, v248
    v_accvgpr_write_b32 a212, v248
    s_lshl_b32 s0, s3, 16
    s_lshl_b32 s4, s2, 8
    s_add_u32 s0, s0, s4
    s_add_u32 s0, s0, {OFF_FLAG}
    """)
    stamp(k, 1)
    wd = {}
    def wdma(s):
        base = SLOT[s // 4] + (s % 4) * 12288
        def f(p):
            out = []
            if p == 0:
                out = [f"s_xor_b32 s39, s93, {s}", f"s_mul_i32 s39, s39, {32*3072}", f"s_add_u32 m0, s100, {base}", "s_add_u32 s39, s39, s23"]
            out.append(f"buffer_load_dwordx4 v5, s[40:43], s39 offen offset:{p*1024} lds")
            wd[s] = vm.tick()
            return out
        return [(lambda p=p: f(p)) for p in range(3)]
    NWA = int(os.environ.get("NWA", "6"))
    wq = [xrow(r) for r in range(NX0, 16)] + [g for s in range(NWA) for g in wdma(s)]
    def mod_reduce(mj, MA_, t0, t1, lds_off, lds_base=0):
        mj("s_nop 0")
        for i in range(4):
            mj(f"v_permlane32_swap_b32 v{MA_+i}, v{MA_+4+i}")
        for i in range(0, 4, 2):
            mj(f"v_pk_add_f32 v[{MA_+i}:{MA_+i+1}], v[{MA_+i}:{MA_+i+1}], v[{MA_+4+i}:{MA_+5+i}]")
        mj(f"v_lshrrev_b32 v{t0}, 4, v1")
        mj(f"v_and_b32 v{t1}, 1, v1")
        for i in range(2):
            mj(f"v_permlane16_swap_b32 v{MA_+i}, v{MA_+2+i}")
        mj(f"v_pk_add_f32 v[{MA_}:{MA_+1}], v[{MA_}:{MA_+1}], v[{MA_+2}:{MA_+3}]")
        mj(f"v_lshlrev_b32 v{t0}, 3, v{t0}")
        mj(f"v_lshl_add_u32 v{t0}, v{t1}, 5, v{t0}")
        for n_, ror in enumerate((8, 4, 2)):
            for i in range(2):
                mj(f"v_add_f32_dpp v{MA_+i}, v{MA_+i}, v{MA_+i} row_ror:{ror} row_mask:0xf bank_mask:0xf")
            mj("s_lshl_b32 s38, s3, 6" if n_ == 0 else (f"v_add_u32 v{t0}, s38, v{t0}" if n_ == 1 else f"v_add_u32 v{t0}, {lds_base}, v{t0}"))
        mj(f"ds_write_b64 v{t0}, v[{MA_}:{MA_+1}] offset:{lds_off}")
    def silu(mj, regs, tmp):
        for r, t in zip(regs, tmp):
            mj(f"v_mul_f32 v{t}, 0xbfb8aa3b, v{r}")
        for t in tmp:
            mj(f"v_exp_f32 v{t}, v{t}")
        mj("s_nop 0")
        for t in tmp:
            mj(f"v_add_f32 v{t}, 1.0, v{t}")
        for t in tmp:
            mj(f"v_rcp_f32 v{t}, v{t}")
        mj("s_nop 0")
        for r, t in zip(regs, tmp):
            mj(f"v_mul_f32 v{r}, v{r}, v{t}")
        for r in regs:
            bf16_round(mj, r, r)
    mj = L()
    vm.wait(wmid)
    mj(f"v_lshlrev_b32 v{CC}, 16, v{CC}")
    silu(mj, [CC], [CC + 1])
    for i in range(4):
        mj(f"v_lshlrev_b32 v{MA+2*i}, 16, v{WM+i}")
        mj(f"v_and_b32 v{MA+2*i+1}, 0xffff0000, v{WM+i}")
    for i in range(4):
        mj(f"v_pk_mul_f32 v[{MA+2*i}:{MA+2*i+1}], v[{MA+2*i}:{MA+2*i+1}], v[{CC}:{CC+1}] op_sel_hi:[1,0]")
    mod_reduce(mj, MA, CC, CC + 1, LDS_MRED)
    weave(k, mj, wq, int(os.environ.get("WV0", "10")))
    stamp(k, 2)
    SU, SQ = 216, 232
    WV = int(os.environ.get("WV1", "12"))
    PUBROW = int(os.environ.get("PUBROW", "3"))
    for r in range(16):
        ln = L()
        while r not in rowid:
            for y in wq.pop(0)():
                k(y)
        vm.wait(rowid[r])
        b, t = RAW + 4 * r, XF + 8 * r
        for i in range(4):
            ln(f"v_lshlrev_b32 v{t+2*i}, 16, v{b+i}")
            ln(f"v_and_b32 v{t+2*i+1}, 0xffff0000, v{b+i}")
        ln(f"v_pk_add_f32 v[248:249], v[{t}:{t+1}], v[{t+2}:{t+3}]")
        ln(f"v_pk_mul_f32 v[250:251], v[{t}:{t+1}], v[{t}:{t+1}]")
        ln(f"v_pk_add_f32 v[252:253], v[{t+4}:{t+5}], v[{t+6}:{t+7}]")
        for i in range(1, 4):
            ln(f"v_pk_fma_f32 v[250:251], v[{t+2*i}:{t+2*i+1}], v[{t+2*i}:{t+2*i+1}], v[250:251]")
        ln("v_pk_add_f32 v[248:249], v[248:249], v[252:253]")
        ln(f"v_add_f32 v{SQ+r}, v250, v251")
        ln(f"v_add_f32 v{SU+r}, v248, v249")
        weave(k, ln, wq, WV)
        if r in (0, 4, 8, 12):
            stamp1(k, 14 + r // 4)
        if r == PUBROW - 2:
            k("s_waitcnt lgkmcnt(0)")
            k("s_load_dword s98, s[48:49], 0")
        if r == PUBROW:
            k(f"""
            v_lshlrev_b32 v{CC}, 2, v1
            s_waitcnt lgkmcnt(0)
            s_barrier
            ds_read_b32 v{MA}, v{CC} offset:{LDS_MRED}
            s_cmp_eq_u32 s98, 0
            s_cbranch_scc1 L_zspin
            L_zpoll_out:
            s_cmp_lg_u32 s3, 0
            s_cbranch_scc1 L_mod_done
            s_lshl_b32 s38, s92, 13
            s_lshl_b32 s4, s99, 7
            s_add_u32 s38, s38, s4
            s_add_u32 s38, s38, {OFF_MODP}
            v_lshlrev_b32 v{CC}, 3, v1
            s_waitcnt lgkmcnt(0)
            v_mov_b32 v{MA+1}, v{MA}
            s_nop 1
            v_permlane32_swap_b32 v{MA+1}, v{MA}
            v_add_f32 v{MA}, v{MA+1}, v{MA}
            v_mov_b32 v{MA+1}, v{MA}
            s_nop 1
            v_permlane16_swap_b32 v{MA+1}, v{MA}
            v_add_f32 v{MA}, v{MA+1}, v{MA}
            v_mov_b32 v{MA+1}, s98
            s_mov_b64 exec, 0xffff
            buffer_store_dwordx2 v[{MA}:{MA+1}], v{CC}, s[24:27], s38 offen {FL}
            s_mov_b64 exec, -1
            L_mod_done:
            """)
            z = ["L_zspin:"]
            for ln_ in (64, 128, 192):
                z += [f"s_load_dword s98, s[48:49], {ln_}", "s_waitcnt lgkmcnt(0)", "s_cmp_lg_u32 s98, 0", "s_cbranch_scc1 L_zpoll_out", "s_sleep 6"]
            z += ["s_mov_b32 s4, 0x40000", f"v_mov_b32 v{CC+2}, 0",
                  "L_zspin2:", f"buffer_load_dword v{CC+1}, v{CC+2}, s[48:51], 0 offen {FL}", "s_waitcnt vmcnt(0)",
                  f"v_readfirstlane_b32 s98, v{CC+1}", "s_sub_u32 s4, s4, 1", "s_cbranch_scc1 L_zpoll_out", "s_sleep 8", "s_cmp_eq_u32 s98, 0",
                  "s_cbranch_scc1 L_zspin2", "s_branch L_zpoll_out"]
            OOL.append(z)
    k(f"""
    v_and_b32 v248, 15, v1
    v_lshrrev_b32 v249, 4, v1
    v_mul_u32_u24 v3, 3072, v249
    v_lshrrev_b32 v250, 2, v248
    v_lshl_add_u32 v3, v250, 7, v3
    v_and_b32 v250, 1, v248
    v_lshl_add_u32 v3, v250, 3, v3
    v_bfe_u32 v250, v248, 1, 1
    s_lshl_b32 s38, s3, 1
    v_add_u32 v250, s38, v250
    v_bfe_u32 v251, v248, 3, 1
    v_and_b32 v252, 1, v249
    v_lshl_add_u32 v251, v252, 1, v251
    v_lshlrev_b32 v251, 1, v251
    v_xor_b32 v250, v250, v251
    v_lshl_add_u32 v3, v250, 4, v3
    v_add_u32 v4, 0x10000, v3
    v_add_u32 v6, 0x20000, v3
    """)
    def trreads(b):
        out = []
        for s in range(4 * b, 4 * b + 4):
            for p in range(3):
                for h in range(2):
                    addr = SLOT[b] + (s % 4) * 12288 + p * 1024 + h * 512
                    ar = 12 * s + 4 * p + 2 * h
                    out.append(f"ds_read_b64_tr_b16 a[{ar}:{ar+1}], v{(3, 4, 6)[addr >> 16]} offset:{addr & 0xffff}")
        return out
    def normalize(half):
        out = L()
        for rr in range(8):
            r = 8 * half + rr
            out(f"v_readlane_b32 s{4+2*rr}, v{SQ+4}, {16*(r>>2) + 4*(r&3)}")
            out(f"v_readlane_b32 s{5+2*rr}, v{SU+4}, {16*(r>>2) + 4*(r&3)}")
        for rr in range(8):
            t = XF + 8 * (8 * half + rr)
            for i in range(4):
                out(f"v_pk_fma_f32 v[{t+2*i}:{t+2*i+1}], v[{t+2*i}:{t+2*i+1}], s[{4+2*rr}:{5+2*rr}], s[{4+2*rr}:{5+2*rr}] op_sel:[0,0,1] op_sel_hi:[1,0,1]")
        return out
    stamp(k, 3)
    ln = L()
    for base in (SQ, SU):
        for r in range(8):
            ln(f"v_permlane32_swap_b32 v{base+r}, v{base+8+r}")
    for base in (SQ, SU):
        for r in range(0, 8, 2):
            ln(f"v_pk_add_f32 v[{base+r}:{base+r+1}], v[{base+r}:{base+r+1}], v[{base+8+r}:{base+9+r}]")
    for base in (SQ, SU):
        for r in range(4):
            ln(f"v_permlane16_swap_b32 v{base+r}, v{base+4+r}")
    for base in (SQ, SU):
        for r in range(0, 4, 2):
            ln(f"v_pk_add_f32 v[{base+r}:{base+r+1}], v[{base+r}:{base+r+1}], v[{base+4+r}:{base+5+r}]")
    ln("""
    s_mov_b32 s4, 0x00f000f0
    s_mov_b32 s5, 0x00f000f0
    s_mov_b32 s6, 0x0f000f00
    s_mov_b32 s7, 0x0f000f00
    s_mov_b32 s8, 0xf000f000
    s_mov_b32 s9, 0xf000f000
    """)
    for ror in (8, 4):
        for base in (SQ, SU):
            for r in range(4):
                ln(f"v_add_f32_dpp v{base+r}, v{base+r}, v{base+r} row_ror:{ror} row_mask:0xf bank_mask:0xf")
    for i in range(1, 4):
        for base in (SQ, SU):
            ln(f"v_cndmask_b32 v{base}, v{base}, v{base+i}, s[{2+2*i}:{3+2*i}]")
    ln("s_nop 0")
    for qp in ("[1,0,3,2]", "[2,3,0,1]"):
        for base in (SQ, SU):
            ln(f"v_add_f32_dpp v{base}, v{base}, v{base} quad_perm:{qp} row_mask:0xf bank_mask:0xf")
        ln("s_nop 0")
    ln_stats_finish(ln, SU, SQ, SU + 4, SQ + 4, SQ + 8)
    ln(f"v_mul_f32 v{SU+4}, -v{SU+4}, v{SQ+4}")
    weave(k, ln, wq, int(os.environ.get('WV2', '8')))
    for g in wq:
        for y in g():
            k(y)
    stamp(k, 4)
    MP = 24
    def modloads():
        out = ["s_lshl_b32 s38, s3, 11", f"s_add_u32 s38, s38, {OFF_MODP}"]
        for q in range(4):
            if q:
                out.append("s_add_u32 s38, s38, 8192")
            for h in range(2):
                r_ = MP + 8 * q + 4 * h
                out.append(f"buffer_load_dwordx4 v[{r_}:{r_+3}], v2, s[24:27], s38 offen offset:{1024*h} {FL}")
        return out
    def modcheck():
        out = L()
        t = [MP + 2 * i + 1 for i in range(16)]
        out(f"v_and_b32 v252, v{t[0]}, v{t[1]}")
        out(f"v_or_b32 v253, v{t[0]}, v{t[1]}")
        for i in range(2, 16, 2):
            out(f"v_bitop3_b32 v252, v252, v{t[i]}, v{t[i+1]} bitop3:0x80")
            out(f"v_or3_b32 v253, v253, v{t[i]}, v{t[i+1]}")
        out("v_xor_b32 v252, s98, v252")
        out("v_xor_b32 v253, s98, v253")
        out("v_or_b32 v252, v252, v253")
        out("v_cmp_ne_u32 vcc, 0, v252")
        return out
    for x in modloads():
        k(x)
        if x.startswith("buffer"):
            modid = vm.tick()
    if int(os.environ.get("PRET", "1")):
        k(f"""
        v_lshlrev_b32 v56, 7, v1
        s_lshl_b32 s4, s3, 12
        s_add_u32 s4, s4, {OFF_XID}
        s_sub_u32 s4, s4, s0
        v_add_u32 v56, s4, v56
        s_cmp_eq_u32 s2, 9
        s_cselect_b32 s4, 32, 0
        v_cmp_gt_u32 vcc, s4, v1
        v_and_b32 v57, 1, v1
        v_lshlrev_b32 v57, 7, v57
        v_cndmask_b32 v56, v57, v56, vcc
        """)
        vm.op("buffer_load_dword a213, v56, s[24:27], s0 offen")
        TLBS = int(os.environ.get("TLBS", "0"))
        if TLBS:
            k(f"""
            v_lshlrev_b32 v57, {TLBS}, v1
            s_cmp_eq_u32 s3, 2
            s_cselect_b32 s4, 0, 0x7f000000
            """)
            vm.op("buffer_load_dword a214, v57, s[24:27], s4 offen")
            vm.op("buffer_load_dword a215, v57, s[32:35], s4 offen")
    OOL.append(["L_mod_spin:", "s_mov_b32 s39, 0x40000", "L_mod_spin2:"]
               + modloads() + ["s_sub_u32 s39, s39, 1", "s_waitcnt vmcnt(0)"]
               + list(modcheck()) + ["s_cbranch_scc1 L_mod_ok", "s_sleep 4", "s_cbranch_vccnz L_mod_spin2", "s_branch L_mod_ok"])
    stamp1(k, 9)
    vm.wait(wd[3]); k("s_barrier")
    stamp1(k, 10)
    wq = [g for s in range(NWA, 8) for g in wdma(s)]
    NWB = int(os.environ.get("NWB", "8"))
    wq = [g for s in range(NWA, NWB) for g in wdma(s)]
    tr0 = [(lambda x=x: [x]) for x in trreads(0)]
    mix = []
    while wq or tr0:
        mix += tr0[:2] + wq[:1]
        tr0, wq = tr0[2:], wq[1:]
    weave(k, normalize(0) + normalize(1), mix, 96 // len(mix))
    assert not mix
    stamp1(k, 11)
    k(f"""
    s_lshl_b32 s38, s93, 2
    v_xor_b32 v254, s38, v1
    v_lshlrev_b32 v254, 8, v254
    v_and_b32 v253, 7, v1
    v_lshl_add_u32 v254, v253, 4, v254
    s_lshl_b32 s38, s3, 14
    s_lshl_b32 s39, s101, 6
    v_add_u32 v254, s38, v254
    v_xor_b32 v254, s39, v254
    s_lshl_b32 s38, s3, 10
    v_lshlrev_b32 v7, 3, v1
    v_add_u32 v7, s38, v7
    v_lshlrev_b32 v255, 5, v1
    s_cmp_ge_u32 s3, 2
    s_cselect_b32 s5, 1.0, 0
    """)
    vm.wait(modid)
    stamp1(k, 12)
    for x in modcheck(): k(x)
    k("s_nop 0")
    k("s_cbranch_vccnz L_mod_spin")
    k.label("L_mod_ok")
    for i in range(4):
        k(f"v_add_f32 v{8+i}, v{MP+2*i}, v{MP+8+2*i}")
        k(f"v_add_f32 v{12+i}, v{MP+16+2*i}, v{MP+24+2*i}")
    k("v_pk_add_f32 v[8:9], v[8:9], v[12:13]")
    k("v_pk_add_f32 v[10:11], v[10:11], v[14:15]")
    for rep in range(2):
        k("v_cvt_pk_bf16_f32 v12, v8, v9")
        k("v_cvt_pk_bf16_f32 v13, v10, v11")
        for i in range(2):
            k(f"v_lshlrev_b32 v{8+2*i}, 16, v{12+i}")
            k(f"v_and_b32 v{9+2*i}, 0xffff0000, v{12+i}")
        if rep == 0:
            for i in range(4):
                k(f"v_add_f32 v{8+i}, s5, v{8+i}")
    k(f"""
    ds_write_b64 v7, v[8:9] offset:{LDS_SHARE}
    ds_write_b64 v7, v[10:11] offset:{LDS_SHARE+512}
    s_waitcnt lgkmcnt(0)
    s_barrier
    ds_read_b128 v[{VB}:{VB+3}], v255 offset:{LDS_SHARE}
    ds_read_b128 v[{VB+4}:{VB+7}], v255 offset:{LDS_SHARE+16}
    ds_read_b128 v[{VA}:{VA+3}], v255 offset:{LDS_SHARE+2048}
    ds_read_b128 v[{VA+4}:{VA+7}], v255 offset:{LDS_SHARE+2064}
    """)
    wq = [g for s in range(NWB, 12) for g in wdma(s)]
    for g in wq[:2]:
        for y in g():
            k(y)
    wq = wq[2:]
    k("s_waitcnt lgkmcnt(0)")
    stamp(k, 5)
    md = L()
    def mrow(r):
        t = XF + 8 * r
        for i in range(4):
            md(f"v_pk_fma_f32 v[{t+2*i}:{t+2*i+1}], v[{t+2*i}:{t+2*i+1}], v[{VA+2*i}:{VA+2*i+1}], v[{VB+2*i}:{VB+2*i+1}]")
        for i in range(4):
            md(f"v_cvt_pk_bf16_f32 v{t+i}, v{t+2*i}, v{t+2*i+1}")
        md(f"v_xor_b32 v{t+4}, {r<<4}, v254")
    def mwr(r):
        t = XF + 8 * r
        md(f"ds_write_b128 v{t+4}, v[{t}:{t+3}]")
    mrow(0)
    md("s_barrier")
    for r in range(1, 16):
        mwr(r - 1)
        mrow(r)
    mwr(15)
    weave(k, md, wq, 160 // len(wq))
    assert not wq
    k(f"""
    v_and_b32 v8, 15, v1
    v_lshrrev_b32 v9, 4, v1
    v_xor_b32 v10, v8, v9
    v_lshlrev_b32 v10, 4, v10
    v_lshl_add_u32 v8, v9, 8, v10
    v_xor_b32 v9, 64, v8
    v_accvgpr_read_b32 v248, a212
    """)
    stamp1(k, 13)
    k(vm.wait_str(wd[7]) + " lgkmcnt(0)")
    k("s_barrier")
    stamp(k, 6)
    def aread(s):
        f = FR + 16 * (s & 1)
        return [f"ds_read_b128 v[{f+4*b}:{f+4*b+3}], v{8 + (s & 1)} offset:{b*16384+s*1024}" for b in range(4)]
    ex1, ex2, ex3 = trreads(1), trreads(2), trreads(3)
    RLATT = int(os.environ.get("RLATT", "1"))
    for x in aread(0): k(x)
    for s in range(16):
        nxt = aread(s + 1) if s < 15 else []
        k("s_waitcnt lgkmcnt(0)")
        if s in (3, 5, 8, 10, 13):
            stamp1(k, 18 + (3, 5, 8, 10, 13).index(s))
        SB3 = int(os.environ.get("SB3", "10"))
        if s == 3:
            k("s_barrier")
        if s == 5:
            vm.wait(wd[11]); k("s_barrier")
        if s == SB3:
            vm.wait(wd[15]); k("s_barrier")
        if s < 3:
            nxt += ex1[8 * s:8 * s + 8]
        if s in (3, 4):
            for s2_ in (12 + 2 * (s - 3), 13 + 2 * (s - 3)):
                for g in wdma(s2_):
                    nxt.append("\n".join(g()))
        if 5 <= s < 9:
            nxt += ex2[6 * (s - 5):6 * (s - 5) + 6]
        if SB3 <= s < SB3 + 4:
            nxt += ex3[6 * (s - SB3):6 * (s - SB3) + 6]
        RL0 = int(os.environ.get("RL0", "5"))
        if RL0 <= s < RL0 + 4 and not RLATT:
            i = s - RL0
            nxt += ["s_add_u32 s12, s12, s1" if i else "s_mov_b32 s12, 0", f"buffer_load_dwordx4 a[{192+4*i}:{195+4*i}], v248, s[52:55], s12 offen"]
            vm.tick()
        f = FR + 16 * (s & 1)
        for b in range(4):
            for which in range(3):
                acc = ACC + 4 * (which * 4 + b)
                w = f"a[{12*s+4*which}:{12*s+4*which+3}]"
                h = f"v[{f+4*b}:{f+4*b+3}]"
                c = "0" if s == 0 else f"v[{acc}:{acc+3}]"
                a_, b_ = (w, h) if which < 2 else (h, w)
                k(f"v_mfma_f32_16x16x32_bf16 v[{acc}:{acc+3}], {a_}, {b_}, {c}")
                if nxt:
                    k(nxt.pop(0))
        assert not nxt
    stamp(k, 7)
    C2 = 200
    k(f"""
    v_lshrrev_b32 v221, 1, v1
    v_lshlrev_b32 v220, 3, v221
    s_lshl_b32 s38, s3, 8
    buffer_load_dwordx2 v[{C2}:{C2+1}], v220, s[56:59], s38 offen
    """)
    k(f"""
    s_lshl_b32 s40, s22, 16
    s_lshl_b32 s41, s20, 11
    s_add_u32 s40, s40, s41
    s_add_u32 s40, s40, {OFF_Q}
    s_lshl_b32 s42, s22, 17
    s_lshl_b32 s41, s20, 12
    s_add_u32 s42, s42, s41
    s_add_u32 s42, s42, {OFF_KV}
    v_mov_b32 v12, {QSCALE:#x}
    v_mov_b32 v13, {QSCALE:#x}
    """)
    for which in (1, 2, 0):
        for bp in range(2):
            t = 88 + 4 * (which * 2 + bp)
            for b2 in range(2):
                acc = ACC + 4 * (which * 4 + bp * 2 + b2)
                if which == 0:
                    k(f"v_pk_mul_f32 v[{acc}:{acc+1}], v[12:13], v[{acc}:{acc+1}]")
                    k(f"v_pk_mul_f32 v[{acc+2}:{acc+3}], v[12:13], v[{acc+2}:{acc+3}]")
                k(f"v_cvt_pk_bf16_f32 v{t+2*b2}, v{acc}, v{acc+1}")
                k(f"v_cvt_pk_bf16_f32 v{t+2*b2+1}, v{acc+2}, v{acc+3}")
        op = "v_permlane32_swap_b32" if which == 2 else "v_permlane16_swap_b32"
        for bp in range(2):
            t = 88 + 4 * (which * 2 + bp)
            if bp == 1:
                k("s_nop 0")
            k(f"{op} v{t}, v{t+2}")
            k(f"{op} v{t+1}, v{t+3}")
            if which == 0:
                vm.op(f"buffer_store_dwordx4 v[{t}:{t+3}], v2, s[24:27], s40 offen offset:{bp*1024} {FL}")
            else:
                vm.op(f"buffer_store_dwordx4 v[{t}:{t+3}], v2, s[24:27], s42 offen offset:{bp*2048+(which-1)*1024} {FL}")
    stamp(k, 25)
    signal(k, 0, 21, 20, 32)
    stamp(k, 26)
    RA, RD, W2M, M2 = 160, 168, 184, 208
    LDS_RLS = LDS_W1A
    k(RS_SCALAR)
    k(f"""
    s_lshl_b32 s14, s3, 12
    s_add_u32 s14, s14, {LDS_RLS}
    v_and_b32 v248, 15, v1
    v_lshrrev_b32 v249, 4, v1
    v_lshrrev_b32 v250, 2, v248
    v_and_b32 v248, 3, v248
    v_lshlrev_b32 v248, 3, v248
    v_lshl_add_u32 v248, v250, 7, v248
    v_add_u32 v248, s14, v248
    v_and_b32 v250, 1, v249
    v_lshrrev_b32 v249, 1, v249
    s_cmp_eq_u32 s5, 1
    s_cbranch_scc1 L_rl_c
    v_lshl_add_u32 v248, v250, 5, v248
    s_lshr_b32 s13, s5, 1
    s_add_u32 s23, s13, 9
    v_lshlrev_b32 v249, s23, v249
    v_add_u32 v{RA}, v248, v249
    v_add_u32 v{RA+1}, 64, v{RA}
    v_add_u32 v{RA+2}, 0x800, v{RA}
    v_add_u32 v{RA+3}, 0x840, v{RA}
    s_lshr_b32 s23, 1024, s13
    s_cmp_eq_u32 s5, 0
    s_cselect_b32 s15, 32, 112      ; ksteps
    s_mov_b32 s10, {OFF_W2}
    s_cselect_b32 s10, {OFF_WO}, s10
    s_lshl_b32 s11, s7, 1
    s_mul_i32 s11, s11, s15
    s_lshl_b32 s13, s9, 1
    s_add_u32 s11, s11, s13
    s_lshl_b32 s11, s11, 10
    s_add_u32 s16, s11, s10
    s_lshl_b32 s15, s15, 10
    s_add_u32 s17, s16, s15
    s_add_u32 s18, s16, 1024
    s_add_u32 s19, s17, 1024
    s_branch L_rl_d
    L_rl_c:
    v_lshl_add_u32 v248, v249, 11, v248
    v_lshl_add_u32 v{RA}, v250, 9, v248
    v_add_u32 v{RA+1}, 32, v{RA}
    v_add_u32 v{RA+2}, 64, v{RA}
    v_add_u32 v{RA+3}, 0x60, v{RA}
    s_mov_b32 s23, 1024
    s_lshl_b32 s15, s7, 2
    s_mul_i32 s13, s9, 7
    """)
    for f in range(4):
        k(f"""
        s_mul_i32 s10, s15, 9363
        s_lshr_b32 s10, s10, 16
        s_mul_i32 s11, s10, 105
        s_add_u32 s11, s11, s15
        s_add_u32 s11, s11, s13
        s_lshl_b32 s11, s11, 10
        s_add_u32 s{16+f}, s11, {OFF_W1}
        s_add_u32 s15, s15, 1
        """)
    k.label("L_rl_d")
    for f in range(4):
        k(f"v_add_u32 v{RA+4+f}, s23, v{RA+f}")
    k(f"""
    v_add_u32 v220, s14, v2
    s_lshr_b32 s99, s37, 2
    s_lshl_b32 s99, s99, 3
    s_add_u32 s99, s99, s36
    s_lshl_b32 s99, s99, 2
    s_and_b32 s38, s37, 3
    s_add_u32 s99, s99, s38
    s_add_u32 s99, s99, 64
    v_mul_u32_u24 v221, {4*6144}, v221
    v_and_b32 v249, 1, v1
    v_lshl_add_u32 v221, v249, 4, v221
    s_mul_i32 s15, s3, {128*6144}
    s_lshl_b32 s4, s99, 5
    s_add_u32 s15, s15, s4
    s_cmp_ge_u32 s37, 16
    s_cselect_b32 s15, 0x7f000000, s15
    s_lshl_b32 s20, s2, 1
    s_lshr_b32 s21, s3, 1
    s_add_u32 s20, s20, s21
    s_mul_i32 s20, s20, 6144
    s_and_b32 s21, s3, 1
    s_lshl_b32 s21, s21, 11
    s_add_u32 s20, s20, s21
    s_add_u32 s20, s20, 2048
    s_mov_b64 s[8:9], s[52:53]
    s_mov_b32 s10, s54
    s_mov_b32 s11, 0x00020000
    v_accvgpr_read_b32 v222, a212
    s_mov_b64 s[4:5], s[44:45]
    s_mov_b32 s6, s46
    s_mov_b32 s7, 0x00020000
    v_lshlrev_b32 v{C2+2}, 16, v{C2}
    v_and_b32 v{C2+3}, 0xffff0000, v{C2}
    v_lshlrev_b32 v{C2+4}, 16, v{C2+1}
    v_and_b32 v{C2+5}, 0xffff0000, v{C2+1}
    """)
    silu(k, [C2 + 2 + i for i in range(4)], [M2 + i for i in range(4)])
    stamp(k, 8)
    Q, KF, VF, S, P, O, C = (ATT[x] for x in ("Q", "KF", "VF", "S", "P", "O", "C"))
    TOKP = int(os.environ.get("TOKP", "0"))
    MAP2 = "s_mov_b32 s40, s37\n    s_mov_b32 s54, s36" if TOKP else "s_lshl_b32 s40, s36, 2\n    s_and_b32 s42, s37, 3\n    s_add_u32 s40, s40, s42\n    s_lshr_b32 s54, s37, 2"
    k(f"""
    {MAP2}
    s_lshl_b32 s41, s54, 2
    s_add_u32 s41, s41, s3         ; qblock64
    s_lshl_b32 s42, s40, 16
    s_lshl_b32 s43, s41, 11
    s_add_u32 s42, s42, s43
    s_add_u32 s42, s42, {OFF_Q}
    s_lshl_b32 s44, s40, 17
    s_lshl_b32 s45, s3, 10
    s_add_u32 s47, s44, {OFF_KV}
    s_add_u32 s44, s47, s45
    s_lshl_b32 s46, s41, 16
    s_lshl_b32 s43, s40, 10
    s_add_u32 s46, s46, s43
    s_add_u32 s46, s46, {OFF_O}
    s_lshr_b32 s38, s3, 1
    s_mul_i32 s38, s38, {TS}
    s_and_b32 s39, s45, 1024
    s_add_u32 s13, s38, s39
    s_mov_b32 m0, s13
    v_and_b32 v3, 15, v1
    v_lshlrev_b32 v3, 4, v3
    v_lshrrev_b32 v4, 5, v1
    v_lshl_add_u32 v3, v4, 8, v3
    v_add_u32 v3, 0x400, v3
    v_add_u32 v156, 0x200, v3
    s_mov_b32 s48, 0x0000ffff
    s_mov_b32 s49, 0x0000ffff
    v_and_b32 v8, 27, v1
    v_cmp_eq_u32 vcc, 16, v8
    v_mov_b32 v9, 0x800
    v_mov_b32 v10, 0x810
    v_cndmask_b32 v9, v10, v9, vcc
    v_cndmask_b32 v3, v9, v3, s[48:49]
    v_cndmask_b32 v156, v9, v156, s[48:49]
    v_add_u32 v4, 0x10000, v2
    v_add_u32 v5, 0x10000, v3
    v_add_u32 v157, 0x10000, v156
    v_mul_u32_u24 v8, {TS}, v1
    v_mov_b32 v12, 0x3f803f80
    v_mov_b32 v13, 0x3f803f80
    v_mov_b32 v14, 0x3f803f80
    v_mov_b32 v15, 0x3f803f80
    v_mov_b32 v16, 0
    v_mov_b32 v17, 0
    v_mov_b32 v18, 0
    v_mov_b32 v19, 0
    ds_write_b128 v8, v[12:15] offset:2048
    ds_write_b128 v8, v[16:19] offset:2064
    s_waitcnt lgkmcnt(0)
    """)
    k(f"""
    s_lshr_b32 s50, s37, 3
    s_lshl_b32 s50, s50, 2
    s_add_u32 s50, s50, s3          ; P3 ncol32
    s_lshl_b32 s51, s50, 15
    s_add_u32 s51, s51, {OFF_WO}
    s_lshr_b32 s52, s37, 3
    s_lshl_b32 s52, s52, 1
    s_and_b32 s53, s37, 1
    s_add_u32 s52, s52, s53         ; cb5
    s_lshl_b32 s52, s52, 1
    s_lshr_b32 s53, s3, 1
    s_add_u32 s52, s52, s53
    s_xor_b32 s53, s52, 1
    s_mul_i32 s55, s52, {112*1024}
    s_mul_i32 s56, s53, {112*1024}
    s_mul_i32 s53, s3, {28*1024}
    s_add_u32 s53, s53, {OFF_W2}
    s_add_u32 s55, s55, s53
    s_add_u32 s56, s56, s53
    s_lshr_b32 s57, s37, 3
    s_lshl_b32 s57, s57, 2
    s_and_b32 s53, s37, 3
    s_add_u32 s57, s57, s53         ; cb4
    s_mul_i32 s58, s57, {112*1024}
    s_add_u32 s58, s58, {OFF_W1}
    s_mul_i32 s22, s3, 7168
    s_mul_i32 s23, s3, 21504
    s_add_u32 s21, s58, s23
    s_add_u32 s21, s21, {28*1024}
    v_lshrrev_b32 v8, 5, v1
    v_and_b32 v9, 31, v1
    v_lshlrev_b32 v148, 10, v9
    v_lshl_add_u32 v148, v8, 3, v148
    v_lshlrev_b32 v149, 4, v9
    v_lshl_add_u32 v149, v8, 12, v149
    s_lshl_b32 s59, s36, 3
    s_and_b32 s53, s37, 7
    s_add_u32 s59, s59, s53
    s_lshl_b32 s59, s59, 15
    s_lshl_b32 s53, s50, 6
    s_add_u32 s59, s59, s53
    v_lshlrev_b32 v155, 7, v1
    s_lshr_b32 s0, s2, 2
    s_lshl_b32 s0, s0, 7
    s_and_b32 s53, s2, 3
    s_lshl_b32 s53, s53, 2
    s_add_u32 s0, s0, s53
    s_lshr_b32 s53, s37, 2
    """)
    wait_edge(k, 0, 53 if TOKP else 36, 32)
    stamp(k, 9)
    vm.n = 0
    rid = []
    def dma():
        i = len(rid)
        out = []
        if i < 4:
            if i:
                out += [f"s_add_u32 m0, s13, {2*TS*i}", "s_add_u32 s44, s44, 4096"]
            out += [f"buffer_load_dwordx4 v2, s[24:27], s44 offen {FL} lds"]
        else:
            if i % 4 == 0:
                out += [f"s_add_u32 m0, s43, {2*TS*i}", f"s_add_u32 s44, s41, {4096*i}"]
            if i % 4 == 2:
                out += [f"s_add_u32 m0, s43, {2*TS*(i-2) + TS - 2048}"]
            out += [f"buffer_load_dwordx4 v2, s[24:27], s44 offen offset:{1024*(i%4)} {FL} lds"]
        rid.append(vm.tick())
        return out
    k("s_lshl_b32 s43, s3, 12")
    k("s_add_u32 s41, s47, s43")
    k(f"s_mul_i32 s43, s3, {2*TS}")
    k("s_mov_b32 s100, 0x07060302")
    vm.op(f"buffer_load_dwordx4 v[{KF}:{KF+3}], v2, s[24:27], s47 offen {FL}")
    vm.op(f"buffer_load_dwordx4 v[{Q}:{Q+3}], v2, s[24:27], s42 offen {FL}")
    qid = vm.op(f"buffer_load_dwordx4 v[{Q+4}:{Q+7}], v2, s[24:27], s42 offen offset:1024 {FL}")
    for r in range(4):
        for x in dma(): k(x)
    fin2 = L()
    fin2(f"""
    s_cmp_lg_u32 s3, 1
    s_cbranch_scc1 L_m2_done
    s_cmp_ge_u32 s37, 16
    s_cbranch_scc1 L_m2_done
    v_lshlrev_b32 v216, 2, v1
    v_add_u32 v217, {LDS_MRED2}, v216
    ds_read_b32 v{M2}, v217
    s_lshr_b32 s38, s99, 5
    s_cmp_eq_u32 s38, 4
    s_cselect_b32 s39, 1.0, 0
    s_waitcnt lgkmcnt(0)
    v_mov_b32 v{M2+1}, v{M2}
    s_nop 1
    v_permlane32_swap_b32 v{M2+1}, v{M2}
    v_add_f32 v{M2}, v{M2+1}, v{M2}
    v_mov_b32 v{M2+1}, v{M2}
    s_nop 1
    v_permlane16_swap_b32 v{M2+1}, v{M2}
    v_add_f32 v{M2}, v{M2+1}, v{M2}
    """)
    bf16_round(fin2, M2, M2)
    fin2(f"v_add_f32 v{M2}, s39, v{M2}")
    bf16_round(fin2, M2, M2)
    fin2(f"""
    s_lshl_b32 s39, s99, 6
    s_mov_b64 exec, 0xffff
    buffer_store_dword v{M2}, v216, s[24:27], s39 offen offset:{OFF_MOD} {FL}
    s_sub_u32 s38, 4, s38
    s_cmp_gt_u32 s38, 1
    s_cbranch_scc1 L_m2_done
    s_lshl_b32 s38, s38, 10
    s_and_b32 s39, s99, 31
    s_lshl_b32 s39, s39, 5
    s_add_u32 s38, s38, s39
    s_add_u32 s38, s38, {OFF_MODB}
    v_bfe_u32 v217, v1, 2, 1
    v_lshlrev_b32 v216, 4, v217
    v_bfe_u32 v217, v1, 3, 1
    v_lshl_add_u32 v216, v217, 3, v216
    v_and_b32 v217, 3, v1
    v_lshl_add_u32 v216, v217, 1, v216
    buffer_store_short_d16_hi v{M2}, v216, s[24:27], s38 offen {FL}
    L_m2_done:
    s_mov_b64 exec, -1
    """)
    vm.wait(qid)
    def kread(t):
        off = t * TS
        return f"ds_read_b128 v[{KF}:{KF+3}], v{2 if off < 65536 else 4} offset:{off & 0xffff}"
    def vread(t):
        off = t * TS
        b = VF + 8 * (t & 1)
        r_ = [f"ds_read_b128 v[{b}:{b+3}], v{3 if off < 65536 else 5} offset:{off & 0xffff}",
              f"ds_read_b128 v[{b+4}:{b+7}], v{156 if off < 65536 else 157} offset:{off & 0xffff}"]
        if os.environ.get("PROBE") == "mask" and t >= 2:
            r_ = ["s_mov_b64 exec, s[48:49]"] + r_ + ["s_mov_b64 exec, -1"]
        return r_
    k(f"""
    v_mfma_f32_32x32x16_bf16 v[{S}:{S+15}], v[{KF}:{KF+3}], v[{Q}:{Q+3}], 0
    v_mfma_f32_32x32x16_bf16 v[{S+16}:{S+31}], v[{KF}:{KF+3}], v[{Q+4}:{Q+7}], 0
    s_nop 10
    """)
    att_max16(k, 6, S, True)
    att_max16(k, 7, S + 16, True)
    k("""
    s_nop 1
    v_permlane32_swap_b32 v6, v7
    v_max_f32 v6, v6, v7
    v_sub_f32 v6, 0, v6
    v_mov_b32 v7, v6
    s_nop 1
    v_permlane32_swap_b32 v6, v7
    """)
    for i in range(0, 16, 2):
        k(f"v_pk_mov_b32 v[{C+i}:{C+i+1}], v[6:7], v[6:7] op_sel:[0,0]")
    for i in range(0, 4, 2):
        k(f"v_pk_mov_b32 v[{C+16+i}:{C+17+i}], v[6:7], v[6:7] op_sel:[1,1]")
    k(f"v_mfma_f32_32x32x16_bf16 v[{S}:{S+15}], v[{KF}:{KF+3}], v[{Q}:{Q+3}], v[{C}:{C+15}]")
    for i in range(4, 16, 2):
        k(f"v_pk_mov_b32 v[{C+16+i}:{C+17+i}], v[6:7], v[6:7] op_sel:[1,1]")
    vm.wait(rid[0])
    k("s_barrier")
    for x in vread(0): k(x)
    k("s_nop 1")
    for _ in range(int(os.environ.get('IDLE', '0'))):
        k('s_sleep 32')
    stamp(k, 10)
    jobs = []
    for s in range(32):
        pre = ["s_add_u32 s51, s51, 4096"] if (s and s % 4 == 0) else []
        jobs.append(pre + [f"buffer_load_dwordx4 {wo_reg(s)}, v2, s[24:27], s51 offen offset:{(s%4)*1024} {FL}"])
    for s in range(28):
        for i, sr in enumerate((55, 56)):
            pre = [f"s_add_u32 s{sr}, s{sr}, 4096"] if (s and s % 4 == 0) else []
            jobs.append(pre + [f"buffer_load_dwordx4 a[{8*s+4*i}:{8*s+4*i+3}], v2, s[24:27], s{sr} offen offset:{(s%4)*1024} {FL}"])
    w1jobs = []
    for i in range(7):
        pre = [f"s_add_u32 m0, s22, {LDS_W1A + 4096*(i//4)}", f"s_add_u32 s44, s58, s22"] + ([f"s_add_u32 s44, s44, 4096"] if i else []) if i % 4 == 0 else []
        w1jobs.append(pre + [f"buffer_load_dwordx4 v2, s[24:27], s44 offen offset:{1024*(i%4)} sc1 lds"])
    for i in range(21):
        pre = [f"s_add_u32 m0, s23, {4096*(i//4)}", f"s_add_u32 s44, s21, {4096*(i//4)}"] if i % 4 == 0 else []
        w1jobs.append(pre + [f"buffer_load_dwordx4 v2, s[24:27], s44 offen offset:{1024*(i%4)} sc1 lds"])
    modb = ["s_and_b32 s53, s45, 1024", f"s_add_u32 m0, s53, {LDS_MODB}", f"s_add_u32 s53, s53, {OFF_MODB}",
            "buffer_load_dwordx4 v2, s[24:27], s53 offen sc1 lds"]
    vec1 = [f"s_mov_b32 m0, {LDS_VEC}", "s_lshr_b32 s53, s37, 3", "s_lshl_b32 s53, s53, 9", f"s_add_u32 s53, s53, {OFF_MOD + 2*2048}",
            "buffer_load_dwordx4 v149, s[24:27], s53 offen sc1 lds"]
    vec2 = [f"s_mov_b32 m0, {LDS_VEC + 1024}", "s_lshr_b32 s53, s37, 4", "s_lshl_b32 s53, s53, 10", f"s_add_u32 s53, s53, {OFF_MOD + 5*2048}",
            "buffer_load_dwordx4 v2, s[24:27], s53 offen sc1 lds"]
    xj = [[f"buffer_load_dwordx2 v[{140+2*j}:{141+2*j}], v148, s[28:31], s59 offen offset:{16*j}"] for j in range(4)]
    wo_j, w2_j = jobs[:32], jobs[32:]
    NW2 = int(os.environ.get("NW2", "44"))
    w2_late = w2_j[NW2:]
    jobs = w1jobs[:7] + w2_j[:NW2] + wo_j
    late = w1jobs[7:]
    if os.environ.get("PROBE") == "nopf":
        jobs = []; late = []
    vecj = [modb, vec1, vec2]
    pfj = [[f"buffer_load_dwordx4 v[{224+4*i}:{227+4*i}], v2, s[4:7], s20 offen offset:{1024*i}"] for i in range(2)]
    rlj = [["s_add_u32 s12, s12, s1" if i else "s_mov_b32 s12, 0", f"buffer_load_dwordx4 a[{192+4*i}:{195+4*i}], v222, s[8:11], s12 offen"]
           for i in range(4)] if RLATT else []
    m2j = [(["s_add_u32 s15, s15, 6144"] if i else []) + [f"buffer_load_dwordx4 v[{W2M+4*i}:{W2M+4*i+3}], v221, s[4:7], s15 offen"]
           for i in range(4)]
    bg = L()
    for p in range(4):
        for i in range(4):
            src = W2M + 4 * p + i
            t_ = 216 + 2 * (i & 1)
            bg(f"v_lshlrev_b32 v{t_}, 16, v{src}")
            bg(f"v_and_b32 v{t_+1}, 0xffff0000, v{src}")
            if p == 0:
                bg(f"v_pk_mul_f32 v[{M2+2*i}:{M2+2*i+1}], v[{t_}:{t_+1}], v[{C2+2}:{C2+3}] op_sel_hi:[1,0]")
            else:
                sel = "op_sel:[0,1,0] op_sel_hi:[1,1,1]" if p & 1 else "op_sel_hi:[1,0,1]"
                cr = C2 + 2 + (p & 2)
                bg(f"v_pk_fma_f32 v[{M2+2*i}:{M2+2*i+1}], v[{t_}:{t_+1}], v[{cr}:{cr+1}], v[{M2+2*i}:{M2+2*i+1}] {sel}")
    mod_reduce(bg, M2, C2, C2 + 1, 0, LDS_MRED2)
    bg = [x for x in bg if not x.startswith("s_nop")]
    U_RL, U_FLAG, U_XL, U_XC = 4, (30 if TOKP else 20), (48 if TOKP else 44), (54 if TOKP else 50)
    U_M2, U_BG, U_FIN, U_MFLAG, U_ML, U_MC = (38 if TOKP else 32), 56, 68, 76, 112, 118
    if RLATT:
        U_RL, U_FLAG, U_XL, U_XC = 34, 46, 60, 66
        U_M2, U_BG, U_FIN, U_MFLAG = 47, 62, 74, 80
    def flagblk(lab, off, cond, xcc=False):
        val = ["s_getreg_b32 s38, hwreg(HW_REG_XCC_ID, 0, 4)", "s_xor_b32 s38, s38, s98"] if xcc else ["s_mov_b32 s38, s98"]
        return cond + val + [f"s_add_u32 s39, s0, {off}", "s_mov_b64 exec, 1", "v_mov_b32 v6, 0", "v_mov_b32 v7, s38",
                             f"buffer_store_dword v7, v6, s[24:27], s39 offen {FL}", "s_mov_b64 exec, -1", f"{lab}:"]
    def chk(lim):
        return ["v_xor_b32 v150, s98, v150", "v_xor_b32 v151, s98, v151", "v_xor_b32 v152, s98, v152", "v_xor_b32 v153, s98, v153",
                "v_or3_b32 v154, v150, v151, v152", "v_or_b32 v154, v154, v153", f"v_cmp_lt_u32 vcc, {lim}, v154"]
    for tag, off, lim in (("xid", OFF_XID, 0), ("mid", OFF_XID + 8192, 15)):
        OOL.append([f"L_{tag}_retry:", "s_mov_b32 s39, 0x40000", f"s_mov_b32 s53, {off}", f"L_{tag}_spin:",
                    f"buffer_load_dwordx4 v[150:153], v155, s[24:27], s53 offen {FL}", "s_sub_u32 s39, s39, 1", "s_waitcnt vmcnt(0)"] + chk(lim) +
                   [f"s_cbranch_scc1 L_{tag}_ok", "s_sleep 32", f"s_cbranch_vccnz L_{tag}_spin", f"s_branch L_{tag}_ok"])
    for u in range(128):
        t = u >> 1
        side = {}
        def add(slot, xs):
            side.setdefault(slot, []).extend(xs)
        def place(d, slot):
            ms = (7 if u % 2 == 0 else 14) if slot == 1 else 21
            if len(d) == 2 and d[0].startswith("s_add_u32 m0"):
                add(ms - 1, d[:1]); add(ms, d[1:])
            else:
                add(ms, d)
        def put(d, slot):
            place(d, slot)
            return vm.tick()
        if u % 2 == 1 or u == 0:
            add(7, ["s_waitcnt lgkmcnt(0)"])
        if len(rid) < 32:
            place(dma(), 1)
        elif rlj:
            rlid = put(rlj.pop(0), 1)
        elif pfj:
            put(pfj.pop(0), 1)
        elif xj:
            put(xj.pop(0), 1)
        elif U_M2 <= u < U_M2 + 4:
            m2id = put(m2j[u - U_M2], 1)
        elif vecj and u > U_MC:
            put(vecj.pop(0), 1)
        elif jobs and u > U_XC and (u > U_MFLAG or len(jobs) > 24):
            put(jobs.pop(0), 1)
        if u == U_BG:
            add(7, [vm.wait_str(m2id)])
        if u > U_BG:
            for sl in (4, 6, 8, 11, 13, 18, 20, 25):
                if bg:
                    add(sl, [bg.pop(0)])
        if u % 2 == 0 and t < 63:
            pre = []
            if u == 2:
                pre = [vm.wait_str(rid[3]), "s_barrier"]
            elif u == 14:
                pre = [vm.wait_str(rid[11 if TOKP else 15]), "s_barrier"]
            elif u == U_FLAG:
                pre = [vm.wait_str(max(rid[31], rlst)), "s_barrier"] + flagblk("L_noxid", OFF_XID, ["s_cmp_lg_u32 s3, 1", "s_cbranch_scc1 L_noxid"])
            elif u == U_FIN:
                assert not bg
                pre = ["s_barrier"] + list(fin2)
                finid = vm.n
            elif u == U_MFLAG:
                pre = flagblk("L_nomid", OFF_XID + 8192, ["s_cmp_lg_u32 s3, 1", "s_cbranch_scc1 L_nomid", vm.wait_str(finid)], xcc=True)
            elif u == 86:
                pre = ["s_barrier"]
            add(14, pre + [kread(t + 1)] + vread(t + 1))
        if u == U_RL - 2:
            if RLATT:
                add(16, [vm.wait_str(rlid)])
            for i in range(4):
                add(17 + 2 * i, [f"ds_write_b128 v220, a[{192+4*i}:{195+4*i}] offset:{1024*i}"])
        if u == U_RL:
            for f in range(4):
                add(17 + 2 * f, [f"ds_read_b64_tr_b16 v[{RD+4*f}:{RD+4*f+1}], v{RA+f}"])
                add(18 + 2 * f, [f"ds_read_b64_tr_b16 v[{RD+4*f+2}:{RD+4*f+3}], v{RA+4+f}"])
        if U_RL + 1 <= u < U_RL + 9 and u % 2 == 1:
            f = (u - U_RL - 1) // 2
            add(14, [f"buffer_store_dwordx4 v[{RD+4*f}:{RD+4*f+3}], v2, s[24:27], s{16+f} offen {FL}"])
            rlst = vm.tick()
        if len(rid) < 32 and (not TOKP or u < 4):
            place(dma(), 17)
        elif u in (U_XL, U_ML):
            off = OFF_XID if u == U_XL else OFF_XID + 8192
            xidid = put([f"s_mov_b32 s53, {off}", f"buffer_load_dwordx4 v[150:153], v155, s[24:27], s53 offen {FL}"], 17)
        elif u in (U_XC, U_MC):
            tag = "xid" if u == U_XC else "mid"
            add(17, [vm.wait_str(xidid)] + chk(0 if u == U_XC else 15))
            add(24, [f"s_cbranch_vccnz L_{tag}_retry", f"L_{tag}_ok:"])
        elif u >= 87 and late:
            put(late.pop(0), 17)
        elif jobs and u > U_XC + (3 if RLATT else 7) and (RLATT or u % 4 != 3) and (u > U_MFLAG or len(jobs) > 24):
            put(jobs.pop(0), 17)
        if DIAG and os.environ.get('ATTST') and u in (14, 24, 32, 52, 60, 76, 88, 108):
            stamp(k, (14, 24, 32, 52, 60, 76, 88, 108).index(u))
        att_unit(k, u, side, last=(u == 127))
    assert not vecj
    assert not jobs and not late, (len(jobs), len(late))
    k(f"""
    s_nop 0
    v_cvt_pk_bf16_f32 v{P+7}, v{S+30}, v{S+31}
    s_nop 1
    v_mfma_f32_32x32x16_bf16 v[{O+16}:{O+31}], v[{VF+12}:{VF+15}], v[{P+4}:{P+7}], v[{O+16}:{O+31}]
    s_mov_b32 s53, 0x53800000
    v_cmp_nge_f32 vcc, s53, v{O+8}
    s_nop 9
    v_cmp_nge_f32 s[42:43], s53, v{O+24}
    s_nop 3
    s_or_b64 vcc, vcc, s[42:43]
    s_cbranch_scc0 L_att_fin
    s_branch {'L_att_fin' if os.environ.get('PROBE') else 'L_att_fallback'}
    """)
    k.label("L_att_fin")
    stamp(k, 11)
    XR, XU, GA, A2 = 140, 44, 108, 124
    k(f"""
    v_rcp_f32 v6, v{O+8}
    v_rcp_f32 v7, v{O+24}
    s_lshl_b32 s42, s36, 3
    s_and_b32 s43, s37, 7
    s_add_u32 s42, s42, s43         ; t3 (tok32)
    v_lshrrev_b32 v8, 5, v1         ; h
    v_and_b32 v9, 31, v1            ; tok
    """)
    dual_begin(k)
    for b_ in range(2):
        for i in range(8):
            k(f"v_mul_f32 v{O+16*b_+i}, v{6+b_}, v{O+16*b_+i}")
        for i in range(4):
            k(f"v_cvt_pk_bf16_f32 v{P+4*b_+i}, v{O+16*b_+2*i}, v{O+16*b_+2*i+1}")
        if b_:
            k("s_add_u32 s46, s46, 32768")
        k(f"buffer_store_dwordx4 v[{P+4*b_}:{P+4*b_+3}], v2, s[24:27], s46 offen {DF}")
    k(f"""
    v_add_u32 v5, 0x20000, v2
    v_lshrrev_b32 v12, 4, v9
    v_lshlrev_b32 v12, 14, v12
    v_and_b32 v13, 15, v9
    v_lshl_add_u32 v12, v13, 4, v12
    v_lshl_add_u32 v12, v8, 8, v12
    v_lshlrev_b32 v13, 3, v9
    s_lshl_b32 s43, s3, 10
    s_lshl_b32 s44, s42, 15
    s_lshl_b32 s45, s50, 10
    s_add_u32 s44, s44, s45
    s_add_u32 s45, s44, {OFF_X2S}
    s_add_u32 s44, s44, {OFF_X2}
    s_lshl_b32 s46, s42, 12
    s_lshl_b32 s47, s50, 8
    s_add_u32 s46, s46, s47
    s_add_u32 s46, s46, {OFF_ST2}
    s_lshl_b32 s47, s42, 15
    s_add_u32 s47, s47, s43
    s_add_u32 s47, s47, {OFF_O}
    s_add_u32 m0, s43, {LDS_OST}
    """)
    k(f"""
    v_lshl_or_b32 v150, v151, 4, v150
    v_lshl_or_b32 v152, v153, 4, v152
    v_lshl_or_b32 v150, v152, 8, v150
    v_and_b32 v151, 1, v1
    v_readlane_b32 s38, v150, 0
    v_readlane_b32 s39, v150, 1
    v_cmp_eq_u32 vcc, 1, v151
    v_mov_b32 v152, s38
    v_mov_b32 v153, s39
    v_cndmask_b32 v152, v152, v153, vcc
    v_cmp_ne_u32 vcc, v152, v150
    s_nop 3
    s_cmp_eq_u64 vcc, 0
    s_cselect_b32 s{S_FAST}, 1, 0
    """)
    def w2some(n):
        for _ in range(n):
            for y in w2_late.pop(0):
                k(y)
        return n
    ND = [int(x) for x in os.environ.get("ND", "0,0,0").split(",")]
    signal(k, 1, 54, 40, 32, nafter=w2some(ND[0]), fast=bool(TOKP))
    dual_end(k, 'e1')
    stamp(k, 12)
    k(f"""
    s_lshl_b32 s38, s3, 7
    s_add_u32 s38, s38, {LDS_VEC}
    v_lshlrev_b32 v10, 4, v8
    v_add_u32 v10, s38, v10
    """)
    for j in range(4):
        k(f"ds_read_b128 v[{GA+4*j}:{GA+4*j+3}], v10 offset:{32*j}")
        k(f"ds_read_b128 v[{A2+4*j}:{A2+4*j+3}], v10 offset:{512+32*j}")
    for i in range(8):
        k(f"v_lshlrev_b32 v{XU+2*i}, 16, v{XR+i}")
        k(f"v_and_b32 v{XU+2*i+1}, 0xffff0000, v{XR+i}")
    MA_, WU, UA = 60, 92, 36
    k(f"""
    v_add_u32 v14, s43, v2
    v_add_u32 v15, s43, v4
    v_add_u32 v16, s43, v5
    v_and_b32 v17, 15, v1
    v_lshrrev_b32 v18, 4, v1
    v_lshlrev_b32 v17, 10, v17
    v_lshl_add_u32 v17, v18, 4, v17
    v_add_u32 v17, {LDS_MODB}, v17
    s_mov_b32 s48, 0x00030003
    s_mov_b32 s49, 0x00030003
    """)
    for i in range(32):
        k(f"v_mov_b32 v{MA_+i}, 0")
    def mread(s0):
        k("s_mov_b64 exec, s[48:49]")
        for s in range(s0, s0 + 8):
            k(f"ds_read_b128 v[{MA_+4*(s%8)}:{MA_+4*(s%8)+3}], v17 offset:{64*s}")
        k("s_mov_b64 exec, -1")
    def uread(s):
        for h in range(2):
            addr = w1_lds(s * 7) + 4 * h * 1024
            r = WU + 8 * (s & 1) + 4 * h
            k(f"ds_read_b128 v[{r}:{r+3}], v{14 + (addr >> 16)} offset:{addr & 0xffff}")
    def ut_steps(s0, s1):
        for s in range(s0, s1):
            if s < 15:
                uread(s + 1)
                k("s_waitcnt lgkmcnt(2)")
            else:
                k("s_waitcnt lgkmcnt(0)")
            for h in range(2):
                u_ = UA + 4 * h
                r = WU + 8 * (s & 1) + 4 * h
                c = "0" if s == 0 else f"v[{u_}:{u_+3}]"
                k(f"v_mfma_f32_16x16x32_bf16 v[{u_}:{u_+3}], v[{MA_+4*(s%8)}:{MA_+4*(s%8)+3}], v[{r}:{r+3}], {c}")
    mread(0)
    uread(0)
    UTE = int(os.environ.get("UTE", "8"))
    ut_steps(0, UTE)
    if UTE == 8:
        mread(8)
    stamp(k, 13)
    wait_edge(k, 1, 36, 32)
    stamp(k, 14)
    vm.n = 0
    oid = []
    for i in range(8):
        if i:
            k("s_add_u32 m0, m0, 4096")
            k("s_add_u32 s47, s47, 4096")
        oid.append(vm.op(f"buffer_load_dwordx4 v2, s[24:27], s47 offen {FL} lds"))
    if UTE < 8:
        ut_steps(UTE, 8)
        mread(8)
    ut_steps(8, 16)
    k("s_nop 6")
    for h in range(2):
        u_ = UA + 4 * h
        d = WU + 4 * h
        for i in range(2):
            bf16_round(k, 18 + i, u_ + i)
        for i in range(2):
            k(f"v_sub_f32 v{u_+i}, v{u_+i}, v{18+i}")
        for i in range(2):
            k(f"v_cvt_pk_bf16_f32 v{d+i}, v{18+i}, v{u_+i}")
        k(f"v_mov_b32 v{d+2}, 0")
        k(f"v_mov_b32 v{d+3}, 0")
        k(f"ds_write_b128 v15, v[{d}:{d+3}] offset:{LDS_UT + 4*h*1024 - 65536}")
    AC, OFR = 20, 60
    bounds = [int(x) for x in os.environ.get("P3B", "0,8,20").split(",")] + [32]
    ahead = 6
    def ord_(s2):
        if s2 in bounds:
            vm.wait(oid[bounds[bounds.index(s2) + 1] // 4 - 1])
            k("s_barrier")
        k(lds_rd(f"v[{OFR+4*(s2%8)}:{OFR+4*(s2%8)+3}]", LDS_OST + s2 * 1024))
    for s in range(ahead):
        ord_(s)
    for s in range(32):
        issued = min(32, s + ahead)
        k(f"s_waitcnt lgkmcnt({issued - 1 - s})")
        c = "0" if s == 0 else f"v[{AC}:{AC+15}]"
        k(f"v_mfma_f32_32x32x16_bf16 v[{AC}:{AC+15}], {wo_reg(s)}, v[{OFR+4*(s%8)}:{OFR+4*(s%8)+3}], {c}")
        if s + ahead < 32:
            ord_(s + ahead)
    k("s_nop 11")
    stamp(k, 15)
    for i in range(8):
        k(f"v_pk_fma_f32 v[{AC+2*i}:{AC+2*i+1}], v[{GA+2*i}:{GA+2*i+1}], v[{AC+2*i}:{AC+2*i+1}], v[{XU+2*i}:{XU+2*i+1}]")
    for i in range(8):
        k(f"v_pk_mul_f32 v[{A2+2*i}:{A2+2*i+1}], v[{A2+2*i}:{A2+2*i+1}], v[{AC+2*i}:{AC+2*i+1}]")
    for i in range(8):
        k(f"v_cvt_pk_bf16_f32 v{60+i}, v{A2+2*i}, v{A2+2*i+1}")
    dual_begin(k)
    k(f"buffer_store_dwordx4 v[60:63], v12, s[24:27], s45 offen {DF}")
    k(f"buffer_store_dwordx4 v[64:67], v12, s[24:27], s45 offen offset:512 {DF}")
    k(f"v_pk_add_f32 v[14:15], v[{AC}:{AC+1}], v[{AC+2}:{AC+3}]")
    k(f"v_pk_mul_f32 v[16:17], v[{AC}:{AC+1}], v[{AC}:{AC+1}]")
    for i in range(1, 8):
        if i >= 2:
            k(f"v_pk_add_f32 v[14:15], v[14:15], v[{AC+2*i}:{AC+2*i+1}]")
        k(f"v_pk_fma_f32 v[16:17], v[{AC+2*i}:{AC+2*i+1}], v[{AC+2*i}:{AC+2*i+1}], v[16:17]")
    k("v_add_f32 v14, v14, v15")
    k("v_add_f32 v15, v16, v17")
    k("v_mov_b32 v16, v14")
    k("v_mov_b32 v17, v15")
    for i in range(2):
        k(f"v_cvt_pk_bf16_f32 v{144+i}, v{AC+2*i}, v{AC+2*i+1}")
    k("v_permlane32_swap_b32 v16, v14")
    k("v_permlane32_swap_b32 v17, v15")
    k("v_pk_add_f32 v[14:15], v[14:15], v[16:17]")
    k("s_mov_b32 exec_hi, 0")
    k(f"buffer_store_dwordx2 v[14:15], v13, s[24:27], s46 offen {DF}")
    k("s_mov_b32 exec_hi, -1")
    for i in range(2, 8):
        k(f"v_cvt_pk_bf16_f32 v{144+i}, v{AC+2*i}, v{AC+2*i+1}")
    k("v_mov_b32 v156, v12")
    k("s_mov_b32 s59, s44")
    x2st = [f"buffer_store_dwordx4 v[144:147], v156, s[24:27], s59 offen {FL}", f"buffer_store_dwordx4 v[148:151], v156, s[24:27], s59 offen offset:512 {FL}"]
    k("""
    s_lshr_b32 s40, s42, 2          ; E3 group
    s_and_b32 s41, s42, 3
    s_lshl_b32 s41, s41, 2
    s_lshr_b32 s43, s37, 3
    s_add_u32 s41, s41, s43         ; member
    """)
    signal(k, 2, 40, 41, 16, nafter=w2some(ND[1]), fast=True)
    dual_end(k, 'e2')
    stamp(k, 16)
    ACC4, WF, ST, SB = 8, 64, 120, 136
    k(f"""
    s_lshl_b32 s40, s36, 1
    s_bfe_u32 s41, s37, 0x10002
    s_add_u32 s40, s40, s41        ; tb4
    s_lshl_b32 s44, s40, 2
    s_add_u32 s44, s44, s3         ; tok32
    s_lshl_b32 s45, s44, 15
    s_add_u32 s45, s45, {OFF_X2S}
    s_add_u32 s46, s45, 16384
    v_and_b32 v3, 15, v1
    v_lshrrev_b32 v152, 4, v1
    v_lshlrev_b32 v153, 3, v3
    v_lshl_add_u32 v153, v152, 10, v153
    s_lshl_b32 s47, s44, 12
    s_add_u32 s47, s47, {OFF_ST2}
    s_mul_i32 s42, s44, {112*1024}
    s_mul_i32 s43, s57, {7*1024}
    s_add_u32 s42, s42, s43
    s_add_u32 s42, s42, {OFF_H}
    s_add_u32 s43, s42, 4096
    """)
    NA = int(os.environ.get("P4A", "4"))
    passes = [list(range(NA)), list(range(NA, 7))] if NA < 7 else [list(range(7))]
    fseq = [(s, i) for ps in passes for s in range(17) for i in ps]
    RING, LA = 14, int(os.environ.get("P4LA", "10"))
    def wreg(n):
        return f"v[{WF+4*(n%RING)}:{WF+4*(n%RING)+3}]"
    def wrd(n):
        s, i = fseq[n]
        return lds_rd(wreg(n), w1_lds(s * 7 + i))
    for n in range(LA):
        k(wrd(n))
    wait_edge(k, 2, 40, 16)
    wbl2(k, "a")
    stamp(k, 17)
    vm.n = 0
    xid = []
    def xload():
        s = len(xid)
        if s >= 16:
            return
        if s and s % 4 == 0:
            k("s_add_u32 s45, s45, 4096")
            k("s_add_u32 s46, s46, 4096")
        vm.op(f"buffer_load_dwordx4 {wo_reg(2*s)}, v2, s[24:27], s45 offen offset:{(s%4)*1024} {FL}")
        xid.append(vm.op(f"buffer_load_dwordx4 {wo_reg(2*s+1)}, v2, s[24:27], s46 offen offset:{(s%4)*1024} {FL}"))
    for s in range(int(os.environ.get("P4D", "7"))):
        xload()
    stl = [f"buffer_load_dwordx2 v[{ST+8*j+2*pp}:{ST+8*j+2*pp+1}], v153, s[24:27], s47 offen offset:{256*pp+128*j} {FL}"
           for j in range(2) for pp in range(4)]
    fill = L()
    for j in range(2):
        b = ST + 8 * j
        fill(f"v_pk_add_f32 v[{b}:{b+1}], v[{b}:{b+1}], v[{b+2}:{b+3}]")
        fill(f"v_pk_add_f32 v[{b+4}:{b+5}], v[{b+4}:{b+5}], v[{b+6}:{b+7}]")
        fill(f"v_pk_add_f32 v[{b}:{b+1}], v[{b}:{b+1}], v[{b+4}:{b+5}]")
    regs = [ST, ST + 1, ST + 8, ST + 9]
    tmp = [ST + 2, ST + 3, ST + 10, ST + 11]
    for op in ("v_permlane16_swap_b32", "v_permlane32_swap_b32"):
        for r, t in zip(regs, tmp):
            fill(f"v_mov_b32 v{t}, v{r}")
        fill("s_nop 1")
        for r, t in zip(regs, tmp):
            fill(f"{op} v{t}, v{r}")
        for r, t in zip(regs, tmp):
            fill(f"v_add_f32 v{r}, v{t}, v{r}")
    for j in range(2):
        b = ST + 8 * j
        ln_stats_finish(fill, b, b + 1, b + 4, b + 5, None, std_out=b + 6)
        fill(f"v_cvt_pk_bf16_f32 v{SB+4*j}, -v{b+4}, -v{b+4}")
        fill(f"v_cvt_pk_bf16_f32 v{SB+4*j+1}, v{b+6}, v{b+6}")
        fill(f"v_mov_b32 v{SB+4*j+2}, 0")
        fill(f"v_mov_b32 v{SB+4*j+3}, 0")
    fill(f"""
    v_lshlrev_b32 v154, 2, v3
    s_lshl_b32 s41, s3, 7
    v_add_u32 v154, s41, v154
    v_add_u32 v154, {LDS_R}, v154
    """)
    def tile_epi(i):
        a = ACC4 + 8 * i
        e = L()
        for q in range(4):
            e(f"v_cvt_pk_bf16_f32 v{a+q}, v{a+2*q}, v{a+2*q+1}")
        for q in range(4):
            e(f"v_pk_max_i16 v{a+q}, v{a+q}, 0")
        t = L()
        t(f"v_permlane16_swap_b32 v{a}, v{a+2}")
        t(f"v_permlane16_swap_b32 v{a+1}, v{a+3}")
        t(f"buffer_store_dwordx4 v[{a}:{a+3}], v2, s[24:27], s{42 if i < 4 else 43} offen offset:{(i%4)*1024} {FL}")
        return e, t
    def epi_seq(tiles):
        out = []
        prev = None
        for i in tiles:
            e, t = tile_epi(i)
            out += e
            if prev:
                out += prev
            prev = t
        return out + ["s_nop 1"] + prev
    FS = int(os.environ.get("P4FS", "7"))
    nrd = LA
    n = 0
    for pi, ps in enumerate(passes):
        for s in range(17):
            last = n + len(ps) - 1
            w = f"lgkmcnt({nrd - 1 - last})"
            if pi == 0 and s < 16:
                k(vm.wait_str(xid[s]) + " " + w)
            else:
                k("s_waitcnt " + w)
            if pi == 0 and s == FS:
                vm.wait(sid)
            if pi == 0 and s == 16:
                while fill:
                    k(fill.pop(0))
                k("s_nop 1")
            if pi == 1 and s == 0:
                fill = L()
                fill(f"""
                ds_write_b32 v154, v{ST+5}
                ds_write_b32 v154, v{ST+13} offset:64
                v_lshlrev_b32 v158, 8, v3
                v_mov_b32 v159, s98
                s_lshl_b32 s50, s40, 12
                s_add_u32 s50, s50, {OFF_FLAG + 3*65536}
                """)
                extra_lgkm = 2
            if pi == 1 and s == 1:
                fill = epi_seq(passes[0])
                fill = [x for x in fill if not x.startswith("s_nop")]
                fill += [l.strip() for l in f"""s_lshl_b32 s51, s57, 8
                s_add_u32 s51, s51, s50
                s_lshl_b32 s58, s36, 2
                s_bfe_u32 s41, s37, 0x20001
                s_add_u32 s58, s58, s41
                s_lshl_b32 s58, s58, 1
                s_and_b32 s41, s3, 1
                s_add_u32 s58, s58, s41
                s_xor_b32 s41, s58, 1
                s_mul_i32 s46, s58, {112*1024}
                s_mul_i32 s47, s41, {112*1024}
                s_mul_i32 s41, s3, {28*1024}
                s_add_u32 s41, s41, {OFF_H}
                s_add_u32 s46, s46, s41
                s_add_u32 s47, s47, s41""".split("\n")]
            if pi == 1 and s == int(os.environ.get("SIGA", "15")):
                assert not fill
                k("s_waitcnt vmcnt(0)")
                k("s_barrier")
                for x in flag_store("L_f4a", 51, 0): k(x)
            m_ = 0
            for i in ps:
                for j in range(2):
                    a = ACC4 + 8 * i + 4 * j
                    c = "0" if s == 0 else f"v[{a}:{a+3}]"
                    bop = wo_reg(2 * s + j) if s < 16 else f"v[{SB+4*j}:{SB+4*j+3}]"
                    k(f"v_mfma_f32_16x16x32_bf16 v[{a}:{a+3}], {wreg(n)}, {bop}, {c}")
                    if j == 1 and nrd < len(fseq):
                        k(wrd(nrd)); nrd += 1
                    elif pi == 0 and m_ == 0:
                        xload()
                    elif pi == 0 and m_ in (2, 4, 6) and stl and s >= 1:
                        sid = vm.op(stl.pop(0))
                    elif pi == 0 and s >= 10 and m_ == 6 and x2st:
                        vm.op(x2st.pop(0))
                    elif pi == 0 and s >= 10 and m_ in (2, 4) and len(w2_late) > ND[2]:
                        for y in w2_late.pop(0):
                            k(y)
                        vm.tick()
                    if (pi == 1 or s >= FS) and fill:
                        k(fill.pop(0))
                        if fill and j == 0:
                            k(fill.pop(0))
                    m_ += 1
                n += 1
    assert not fill and not x2st and len(w2_late) == ND[2], (len(fill), len(w2_late))
    stamp(k, 18)
    vm.n = 0
    pa = vm.op(f"buffer_load_dword v157, v158, s[24:27], s50 offen {FL}")
    k("s_nop 4")
    for x in epi_seq(passes[-1]):
        k(x)
        if x.startswith("buffer"):
            vm.tick()
    stamp(k, 19)
    vm.wait(pa)
    k("v_cmp_ne_u32 vcc, s98, v157")
    for tag, imm in (("a", 0), ("b", 128)):
        OOL.append([f"L_p4{tag}_spin:", "s_mov_b32 s39, 0x40000", f"L_p4{tag}_spin2:",
                    f"buffer_load_dword v157, v158, s[24:27], s50 offen offset:{imm} {FL}", "s_sub_u32 s39, s39, 1", "s_waitcnt vmcnt(0)",
                    "v_cmp_ne_u32 vcc, s98, v157", f"s_cbranch_scc1 L_p4{tag}_ok", "s_nop 1", f"s_cbranch_vccnz L_p4{tag}_spin2", f"s_branch L_p4{tag}_ok"])
    ACC5, RB, DEPTH = 8, 72, 10
    G5, X5, R5 = 224, 240, 248
    kord = [7 * p + i for p in range(4) for i in passes[0]] + [7 * p + i for p in range(4) for i in passes[1]]
    NAK = 4 * len(passes[0])
    hid = []
    base = [None]
    def hload():
        s = len(hid)
        if s >= 28:
            return
        r = RB + 8 * (s % DEPTH)
        ks = kord[s]
        if base[0] is None or not (0 <= ks - base[0] < 4):
            base[0] = ks
            k(f"s_add_u32 s44, s46, {1024*ks}")
            k(f"s_add_u32 s45, s47, {1024*ks}")
        off = (ks - base[0]) * 1024
        vm.op(f"buffer_load_dwordx4 v[{r}:{r+3}], v2, s[24:27], s44 offen offset:{off} {FL}")
        hid.append(vm.op(f"buffer_load_dwordx4 v[{r+4}:{r+7}], v2, s[24:27], s45 offen offset:{off} {FL}"))
    k("s_nop 1")
    k("s_cbranch_vccnz L_p4a_spin")
    k.label("L_p4a_ok")
    stamp(k, 22)
    P5D = int(os.environ.get("P5D", "6"))
    for s in range(P5D):
        hload()
    f5 = L()
    f5(f"""
    v_lshrrev_b32 v250, 5, v1
    v_and_b32 v251, 31, v1
    v_lshlrev_b32 v252, 4, v250
    s_and_b32 s41, s52, 7
    s_lshl_b32 s41, s41, 7
    s_add_u32 s41, s41, {LDS_VEC + 1024}
    v_add_u32 v252, s41, v252
    v_lshrrev_b32 v249, 4, v251
    v_lshlrev_b32 v249, 14, v249
    v_and_b32 v254, 15, v251
    v_lshl_add_u32 v249, v254, 4, v249
    v_lshl_add_u32 v249, v250, 8, v249
    s_lshl_b32 s42, s58, 15
    s_lshl_b32 s41, s52, 10
    s_add_u32 s43, s42, s41
    s_add_u32 s43, s43, {OFF_X2}
    s_and_b32 s41, s58, 3
    s_lshl_b32 s41, s41, 7
    s_add_u32 s41, s41, {LDS_R}
    v_lshlrev_b32 v254, 2, v251
    v_add_u32 v254, s41, v254
    v_lshlrev_b32 v253, 10, v251
    v_lshl_add_u32 v253, v250, 4, v253
    s_lshl_b32 s41, s52, 6
    s_add_u32 s42, s42, s41
    """)
    for j in range(4):
        f5(f"ds_read_b128 v[{G5+4*j}:{G5+4*j+3}], v252 offset:{32*j}")
    f5(f"ds_read_b32 v{R5}, v254")
    for x in f5: k(x)
    f5 = L()
    f5("s_waitcnt lgkmcnt(0)")
    for i in range(16):
        f5(f"v_mul_f32 v{G5+i}, v{R5}, v{G5+i}")
    for t in (1, 2, 3):
        f5(f"""
        s_xor_b32 s56, s3, {t}
        s_mul_i32 s56, s56, 12288
        s_add_u32 s56, s56, {(t-1)*4096}
        v_add_u32 v{3+t}, s56, v2
        """)
    f5("s_mul_i32 s56, s3, 12288")
    f5("v_add_u32 v3, s56, v2")
    PBS = int(os.environ.get("PBS", "4"))
    checked = False
    for s in range(28):
        vm.wait(hid[s])
        if s == 1:
            k("s_barrier")
            for x in flag_store("L_f4b", 51, 128): k(x)
        if len(hid) == NAK and not checked and hid[s] > pb:
            k("v_cmp_ne_u32 vcc, s98, v157")
        r = RB + 8 * (s % DEPTH)
        ks = kord[s]
        A0, A1 = f"a[{8*ks}:{8*ks+3}]", f"a[{8*ks+4}:{8*ks+7}]"
        B0, B1 = f"v[{r}:{r+3}]", f"v[{r+4}:{r+7}]"
        for t, (a, b) in enumerate(((A0, B0), (A0, B1), (A1, B0), (A1, B1))):
            acc = ACC5 + 16 * t
            c = "0" if s == 0 else f"v[{acc}:{acc+15}]"
            k(f"v_mfma_f32_32x32x16_bf16 v[{acc}:{acc+15}], {a}, {b}, {c}")
            if t == 0 and s == PBS:
                pb = vm.op(f"buffer_load_dword v157, v158, s[24:27], s50 offen offset:128 {FL}")
            if t == 1 and len(hid) == NAK and not checked and hid[s] > pb:
                k("s_cbranch_vccnz L_p4b_spin")
                k.label("L_p4b_ok")
                checked = True
            if t in (0, 1, 2) and (len(hid) < NAK or checked) and len(hid) - s <= P5D:
                hload()
            if t == 2 and s in (14, 15):
                vm.op(f"buffer_load_dwordx4 v[{X5+4*(s-14)}:{X5+4*(s-14)+3}], v249, s[24:27], s43 offen offset:{512*(s-14)} {FL}")
            if t == 3:
                for _ in range(3):
                    if f5:
                        k(f5.pop(0))
    assert not f5 and checked
    XU5, TMP5 = 72, 88
    stamp(k, 23)
    XU5, TMP5 = 160, 176
    for i in range(5):
        k(f"v_lshlrev_b32 v{XU5+2*i}, 16, v{X5+i}")
        k(f"v_and_b32 v{XU5+2*i+1}, 0xffff0000, v{X5+i}")
    for t in (1, 2, 3):
        for q in range(4):
            k(f"ds_write_b128 v{3+t}, v[{ACC5+16*t+4*q}:{ACC5+16*t+4*q+3}] offset:{q*1024}")
    for i in range(5, 8):
        k(f"v_lshlrev_b32 v{XU5+2*i}, 16, v{X5+i}")
        k(f"v_and_b32 v{XU5+2*i+1}, 0xffff0000, v{X5+i}")
    k(f"""
    s_waitcnt lgkmcnt(0)
    s_barrier
    """)
    for i in range(12):
        k(f"ds_read_b128 v[{TMP5+4*i}:{TMP5+4*i+3}], v3 offset:{i*1024}")
    for sl in range(3):
        k(f"s_waitcnt lgkmcnt({8-4*sl})")
        for i in range(8):
            k(f"v_pk_add_f32 v[{ACC5+2*i}:{ACC5+2*i+1}], v[{ACC5+2*i}:{ACC5+2*i+1}], v[{TMP5+16*sl+2*i}:{TMP5+16*sl+2*i+1}]")
    stamp(k, 24)
    for i in range(8):
        k(f"v_pk_fma_f32 v[{ACC5+2*i}:{ACC5+2*i+1}], v[{G5+2*i}:{G5+2*i+1}], v[{ACC5+2*i}:{ACC5+2*i+1}], v[{XU5+2*i}:{XU5+2*i+1}]")
    for i in range(8):
        k(f"v_cvt_pk_bf16_f32 v{TMP5+i}, v{ACC5+2*i}, v{ACC5+2*i+1}")
    k("s_nop 0")
    for p in range(2):
        t = TMP5 + 4 * p
        k(f"v_permlane32_swap_b32 v{t}, v{t+2}")
        k(f"v_permlane32_swap_b32 v{t+1}, v{t+3}")
        k(f"buffer_store_dwordx4 v[{t}:{t+3}], v253, s[32:35], s42 offen offset:{32*p} {os.environ.get('OUTFL', '')}")
    endpgm(k)
    k.label("L_att_fallback")
    k(f"""
    s_mov_b32 s42, 0
    s_mov_b32 s43, s47
    v_mov_b32 v6, 0xff800000
    v_mov_b32 v7, 0xff800000
    """)
    k.label("L_att_maxloop")
    k(f"""
    buffer_load_dwordx4 v[{KF}:{KF+3}], v2, s[24:27], s43 offen {FL}
    s_add_u32 s43, s43, 2048
    s_waitcnt vmcnt(0)
    v_mfma_f32_32x32x16_bf16 v[{S}:{S+15}], v[{KF}:{KF+3}], v[{Q}:{Q+3}], 0
    v_mfma_f32_32x32x16_bf16 v[{S+16}:{S+31}], v[{KF}:{KF+3}], v[{Q+4}:{Q+7}], 0
    s_nop 10
    """)
    att_max16(k, 6, S, False)
    att_max16(k, 7, S + 16, False)
    k(f"""
    s_add_u32 s42, s42, 1
    s_cmp_lt_u32 s42, 64
    s_cbranch_scc1 L_att_maxloop
    s_nop 0
    v_permlane32_swap_b32 v6, v7
    v_max_f32 v6, v6, v7
    v_mov_b32 v7, v6
    s_nop 1
    v_permlane32_swap_b32 v6, v7
    v_sub_f32 v6, 0, v6
    v_sub_f32 v7, 0, v7
    """)
    for i in range(16):
        k(f"v_mov_b32 v{C+i}, v6")
        k(f"v_mov_b32 v{C+16+i}, v7")
        k(f"v_mov_b32 v{O+i}, 0")
        k(f"v_mov_b32 v{O+16+i}, 0")
    k("s_mov_b32 s42, 0")
    k("s_mov_b32 s43, s47")
    k.label("L_att_redo")
    k(f"""
    buffer_load_dwordx4 v[{KF}:{KF+3}], v2, s[24:27], s43 offen {FL}
    s_mov_b64 exec, s[48:49]
    buffer_load_dwordx4 v[{VF}:{VF+3}], v3, s[24:27], s43 offen {FL}
    buffer_load_dwordx4 v[{VF+4}:{VF+7}], v3, s[24:27], s43 offen offset:512 {FL}
    s_mov_b64 exec, -1
    s_add_u32 s43, s43, 2048
    s_waitcnt vmcnt(0)
    v_mfma_f32_32x32x16_bf16 v[{S}:{S+15}], v[{KF}:{KF+3}], v[{Q}:{Q+3}], v[{C}:{C+15}]
    v_mfma_f32_32x32x16_bf16 v[{S+16}:{S+31}], v[{KF}:{KF+3}], v[{Q+4}:{Q+7}], v[{C+16}:{C+31}]
    s_nop 10
    """)
    for b in range(2):
        for i in range(16):
            k(f"v_exp_f32 v{S+16*b+i}, v{S+16*b+i}")
        k("s_nop 0")
        for j in range(8):
            k(f"v_cvt_pk_bf16_f32 v{P+j}, v{S+16*b+2*j}, v{S+16*b+2*j+1}")
        k("s_nop 1")
        for h in range(2):
            k(f"v_mfma_f32_32x32x16_bf16 v[{O+16*b}:{O+16*b+15}], v[{VF+4*h}:{VF+4*h+3}], v[{P+4*h}:{P+4*h+3}], v[{O+16*b}:{O+16*b+15}]")
    k(f"""
    s_add_u32 s42, s42, 1
    s_cmp_lt_u32 s42, 64
    s_cbranch_scc1 L_att_redo
    s_nop 10
    s_branch L_att_fin
    """)
    for blk in OOL:
        k.lines += blk
    if DIAG:
        marks = {"L_zspin:": 1, "L_mod_spin:": 2, "L_dbg_spin:": 4, "L_xid_retry:": 8, "L_mid_retry:": 16}
        out = []
        for l in k.lines:
            out.append(l)
            if l in marks:
                out.append(f"s_or_b32 s91, s91, {marks[l]}")
        k.lines = out
    k.label(f"L_end_{k.name}")
    k("s_endpgm")
    k(".fill (65536 + L_pc_here - .) / 4 + 64, 4, 0xbf810000")
    return k, (256, 256, 163840)


def build(path=OUT):
    ks = [mega()]
    errs = []
    for k, _ in ks:
        errs += k.check()
    for e in errs:
        print(e)
    ref = open(OUT + ".ref").read().split("\n")
    hdr = [l for l in ref if l.startswith(";") and "@launch" not in l and "Override" not in l and "grid=ceil" not in l]
    out = "\n".join(hdr) + "\n"
    for k, (g, b, lds) in ks:
        kn = f"kernel={k.name} " if os.environ.get("ASLIST") else ""
        out += f"; @launch {kn}grid=({g},1,1) block=({b},1,1) lds={lds}\n"
    out += '.amdgcn_target "amdgcn-amd-amdhsa--gfx950"\n'
    codes, kds = zip(*[k.text() for k, _ in ks])
    out += "".join(codes)
    out += '.section .rodata,"a"\n' + "".join(kds)
    open(path, "w").write(out)
    print("wrote", path, len(out), "bytes;", len(errs), "checker errors")
    return len(errs)


if __name__ == "__main__":
    sys.exit(1 if build(sys.argv[1] if len(sys.argv) > 1 else OUT) else 0)
```

```python
import sys, os
sys.path.insert(0, "gen")
from asmlib import Kern
import gen as G
from gen import (MB, OFF_MOD, OFF_XHAT, OFF_WQKV, OFF_Q, OFF_KV, OFF_O, OFF_WO, OFF_X2, OFF_X2S, OFF_ST2, OFF_W1,
                 OFF_H, OFF_W2, QSCALE, P_X, P_WQKV, P_WO, P_W1, P_W2, P_C, P_WMOD, P_OUT, P_WS, srd, stamp, endpgm,
                 prologue, prologue_wait, epilogue, bf16_round, ln_stats_finish, role_ln, role_relayout, ATT, att_unit,
                 att_max16, NAME, OUT, DIAG)

OFF_MODB = 0x3000
OFF_FLAG = G.OFF_FLAG
FL = "sc1"
DF = "@DF@"
S_FAST = 93
OFF_XID = G.OFF_XID
OOL = []


def dual_begin(k):
    k._dual = len(k.lines)


def dual_end(k, tag):
    body = k.lines[k._dual:]
    del k.lines[k._dual:]
    import re
    labs = [l[:-1] for l in body if l.endswith(":")]
    def variant(fl, suffix):
        out = []
        for l in body:
            l = l.replace(DF, fl).rstrip()
            for lab in labs:
                l = re.sub(rf"\b{lab}\b", lab + suffix, l)
            out.append(l)
        return out
    if tag not in os.environ.get("FAST", "none").split(","):
        k.lines += variant("sc1", "_s")
        return
    k(f"s_cmp_eq_u32 s{S_FAST}, 0")
    k(f"s_cbranch_scc1 L_slow_{tag}")
    k.lines += variant("", "_f")
    k.label(f"L_join_{tag}")
    OOL.append([f"L_slow_{tag}:"] + variant("sc1", "_s") + [f"s_branch L_join_{tag}"])


_stamp = stamp
def stamp(k, i):
    if os.environ.get("P1ST") and i > 8:
        return
    _stamp(k, i)
def stamp1(k, i):
    if os.environ.get("P1ST"):
        _stamp(k, i)


class VM:
    def __init__(self, k):
        self.k = k; self.n = 0
    def op(self, text=None):
        if text:
            self.k(text)
        self.n += 1
        return self.n
    def tick(self):
        self.n += 1
        return self.n
    def wait_str(self, idx):
        c = self.n - idx
        return f"s_waitcnt vmcnt({min(c, 63)})"
    def wait(self, idx):
        self.k(self.wait_str(idx))


def signal(k, edge, s_group, s_member, gsize, nafter=0, fl=FL, fast=False):
    lab = f"L_sig{edge}"
    k(f"""
    s_mul_i32 s38, s{s_group}, {gsize}
    s_add_u32 s38, s38, s{s_member}
    s_lshl_b32 s38, s38, 8
    s_add_u32 s38, s38, {OFF_FLAG + edge * 65536}
    v_mov_b32 v6, 0
    v_mov_b32 v7, s98
    s_cmp_lg_u32 s3, 0
    s_waitcnt vmcnt({nafter}) lgkmcnt(0)
    s_barrier
    s_cbranch_scc1 {lab}
    s_mov_b64 exec, 1
    """)
    if fast and int(os.environ.get("FFLAG", "1")):
        k(f"""
        s_cmp_eq_u32 s{S_FAST}, 0
        s_cbranch_scc1 {lab}_slow
        buffer_store_dword v7, v6, s[24:27], s38 offen
        s_branch {lab}_done
        {lab}_slow:
        buffer_store_dword v7, v6, s[24:27], s38 offen sc1
        {lab}_done:
        """)
    else:
        k("buffer_store_dword v7, v6, s[24:27], s38 offen sc1")
    k("s_mov_b64 exec, -1")
    k.label(lab)


def flag_store(lab, soff, imm):
    return ["s_cmp_lg_u32 s3, 0", f"s_cbranch_scc1 {lab}", "s_mov_b64 exec, 1", f"s_cmp_eq_u32 s{S_FAST}, 0", f"s_cbranch_scc1 {lab}_slow",
            f"buffer_store_dword v159, v158, s[24:27], s{soff} offen offset:{imm}", f"s_branch {lab}_done", f"{lab}_slow:",
            f"buffer_store_dword v159, v158, s[24:27], s{soff} offen offset:{imm} sc1", f"{lab}_done:", "s_mov_b64 exec, -1", f"{lab}:"]


def wait_edge(k, edge, s_group, gsize):
    lab = f"L_wait{edge}"
    k(f"""
    s_cmp_lg_u32 s3, 0
    s_cbranch_scc1 {lab}
    s_mul_i32 s38, s{s_group}, {gsize*256}
    s_add_u32 s38, s38, {OFF_FLAG + edge * 65536}
    v_lshlrev_b32 v6, 8, v1
    s_mov_b32 exec_lo, {hex((1 << gsize) - 1)}
    s_mov_b32 exec_hi, 0
    s_mov_b32 s39, 0x40000
    """)
    k.label(f"L_poll{edge}")
    k(f"""
    buffer_load_dword v7, v6, s[24:27], s38 offen {FL}
    s_sub_u32 s39, s39, 1
    s_cbranch_scc1 L_bail{edge}
    s_waitcnt vmcnt(0)
    v_cmp_ne_u32 vcc, s98, v7
    s_cbranch_vccnz L_poll{edge}
    """)
    k.label(f"L_bail{edge}")
    k("s_waitcnt vmcnt(0)")
    k("s_mov_b64 exec, -1")
    k.label(lab)
    k("s_barrier")


def wbl2(k, tag):
    if tag in os.environ.get("WBL2", "").split(","):
        k(f"""
        s_lshl_b32 s38, s37, 2
        s_add_u32 s38, s38, s3
        s_cmp_lg_u32 s38, 1
        s_cbranch_scc1 L_nowb_{tag}
        buffer_wbl2 sc1
        """)
        k.label(f"L_nowb_{tag}")


def wo_reg(s):
    return f"a[{224+4*s}:{227+4*s}]" if s < 8 else f"v[{160+4*(s-8)}:{163+4*(s-8)}]"


def w1_lds(f):
    if f < 28:
        return LDS_W1A + f * 1024
    if f < 112:
        return (f - 28) * 1024
    return LDS_UT + (f - 112) * 1024


TS = 2080
LDS_W1A = 130 * 1024
LDS_MODB = 84 * 1024
LDS_VEC = 86 * 1024
LDS_OST = 88 * 1024
LDS_UT = 120 * 1024
LDS_R = 128 * 1024


def lds_rd(dst, addr):
    base = (2, 4, 5)[addr >> 16]
    return f"ds_read_b128 {dst}, v{base} offset:{addr & 0xffff}"


class L(list):
    def __call__(self, text):
        for l in text.strip("\n").split("\n"):
            if l.strip():
                self.append(l.strip())


def weave(k, main, side, every):
    n = 0
    for x in main:
        k(x)
        n += 1
        if side and n % every == 0:
            for y in side.pop(0)():
                k(y)


SLOT = (64 * 1024, 112 * 1024, 64 * 1024, 112 * 1024)
LDS_RL = 112 * 1024
LDS_MODS = 128 * 1024
LDS_MRED = 48 * 1024
LDS_SHARE = 52 * 1024
LDS_MRED2 = 159 * 1024
OFF_MODP = 0x8000


def mega():
    k = Kern(NAME + "_kernel", nvgpr=256, nagpr=256, nsgpr=102)
    k.kid = 1
    vm = VM(k)
    if DIAG:
        k("s_memtime s[60:61]")
        k("s_memrealtime s[62:63]")
        for i in range(G.NST):
            k(f"s_mov_b32 s{64+i}, 0")
    k(f"""
    s_cmp_ge_u32 s2, 256
    s_cbranch_scc1 L_end_{k.name}
    s_load_dwordx16 s[4:19], s[0:1], 0
    s_load_dwordx4 s[20:23], s[0:1], 64
    s_load_dwordx2 s[24:25], s[0:1], 80
    v_lshrrev_b32 v2, 6, v0
    v_and_b32 v1, 63, v0
    v_readfirstlane_b32 s3, v2
    s_and_b32 s36, s2, 7
    s_lshr_b32 s37, s2, 3
    v_lshlrev_b32 v2, 4, v1
    s_getpc_b64 s[38:39]
    L_pc_here:
    s_lshl_b32 s98, s37, 2
    s_add_u32 s98, s98, s3
    s_and_b32 s98, s98, 63
    s_lshl_b32 s98, s98, 10
    s_add_u32 s38, s38, s98
    s_addc_u32 s39, s39, 0
    global_load_dwordx4 a[208:211], v2, s[38:39]
    s_memrealtime s[40:41]
    """)
    VA, VB, RAW, XF, FR, ACC = 8, 16, 24, 88, 216, 24
    WM, CC, MA = 8, 12, 16
    k(f"""
    v_lshrrev_b32 v3, 1, v1
    v_lshlrev_b32 v4, 1, v3              ; c voffset: (l>>1)*2
    v_mul_u32_u24 v3, 6144, v3
    v_and_b32 v5, 1, v1
    v_lshl_add_u32 v3, v5, 4, v3
    v_lshrrev_b32 v6, 3, v1              ; r8
    v_and_b32 v7, 7, v1
    v_and_b32 v248, 2, v6
    v_xor_b32 v7, v7, v248
    s_and_b32 s38, s3, 1
    s_lshl_b32 s38, s38, 2
    v_xor_b32 v7, s38, v7
    v_mul_u32_u24 v5, 3072, v6
    v_lshl_add_u32 v5, v7, 4, v5
    s_and_b32 s93, s37, 7
    s_lshl_b32 s93, s93, 1               ; rotW
    s_lshr_b32 s99, s37, 4
    s_lshl_b32 s99, s99, 3
    s_add_u32 s99, s99, s36
    s_lshl_b32 s99, s99, 2
    s_and_b32 s38, s37, 3
    s_add_u32 s99, s99, s38
    s_bfe_u32 s92, s37, 0x20002          ; k split
    s_lshl_b32 s100, s92, 2
    s_add_u32 s100, s100, s3
    s_lshl_b32 s101, s100, 6             ; c soffset
    s_mul_i32 s100, s100, {32*6144}
    s_lshl_b32 s38, s99, 5
    s_add_u32 s100, s100, s38
    s_lshl_b32 s39, s2, 2
    s_add_u32 s39, s39, s3
    v_lshlrev_b32 v248, 6, v1
    s_waitcnt lgkmcnt(0)
    s_mov_b32 s26, {G.WS_USED:#x}
    s_mov_b32 s27, 0x00020000
    """)
    srd(k, 48, 22, 256)
    k(f"""
    s_cmp_lg_u32 s39, 3
    s_cbranch_scc1 L_nozw
    s_mul_i32 s41, s41, 0x9e3779b1
    s_xor_b32 s40, s40, s41
    s_or_b32 s40, s40, 1
    v_mov_b32 v249, s40
    s_mov_b64 exec, 15
    buffer_store_dword v249, v248, s[48:51], 0 offen {FL}
    s_mov_b64 exec, -1
    L_nozw:
    """)
    srd(k, 44, P_WMOD, 512 * 3072 * 2)
    srd(k, 56, P_C, 1024)
    srd(k, 28, P_X, 2048 * 1024)
    stamp(k, 0)
    vm.op(f"buffer_load_ushort v{CC}, v4, s[56:59], s101 offen")
    wmid = vm.op(f"buffer_load_dwordx4 v[{WM}:{WM+3}], v3, s[44:47], s100 offen")
    srd(k, 32, 20, 2048 * 1024)
    k(f"""
    s_lshr_b32 s20, s36, 1
    s_lshl_b32 s20, s20, 3
    s_and_b32 s38, s37, 7
    s_add_u32 s20, s20, s38        ; tb1
    s_and_b32 s21, s36, 1
    s_lshl_b32 s21, s21, 2
    s_lshr_b32 s101, s37, 3        ; rotX
    s_add_u32 s21, s21, s101       ; cb1
    s_lshl_b32 s22, s21, 2
    s_add_u32 s22, s22, s3         ; head
    s_lshl_b32 s38, s20, 16
    s_lshl_b32 s23, s3, 14
    s_add_u32 s38, s38, s23
    """)
    rowid = {}
    def xrow(r):
        def f():
            out = []
            if r % 4 == 0:
                out = [f"s_xor_b32 s17, s101, {r//4}", "s_lshl_b32 s17, s17, 12", "s_add_u32 s17, s17, s16"]
            out.append(f"buffer_load_dwordx4 v[{RAW+4*r}:{RAW+4*r+3}], v2, s[28:31], s17 offen offset:{(r%4)*1024}")
            rowid[r] = vm.tick()
            return out
        return f
    k("s_mov_b32 s16, s38")
    NX0 = int(os.environ.get("NX0", "8"))
    for r in range(NX0):
        for y in xrow(r)():
            k(y)
    srd(k, 40, P_WQKV, 512 * 1536 * 2)
    k(f"""
    s_cmp_lt_u32 s2, 32
    s_cselect_b32 s52, s{P_WO}, s{P_W1}
    s_cselect_b32 s53, s{P_WO+1}, s{P_W1+1}
    s_mov_b32 s54, {512*1792*2:#x}
    s_cselect_b32 s54, {512*512*2:#x}, s54
    s_cmp_ge_u32 s2, 144
    s_cselect_b32 s52, s{P_W2}, s52
    s_cselect_b32 s53, s{P_W2+1}, s53
    s_mov_b32 s55, 0x00020000
    s_lshl_b32 s23, s21, 7
    s_mul_i32 s38, s3, {8*3072}
    s_add_u32 s23, s23, s38
    s_mul_i32 s100, s3, 3072
    """)
    RS_SCALAR = """
    s_cmp_lt_u32 s2, 32
    s_cselect_b32 s4, 0, 32
    s_cselect_b32 s5, 0, 1
    s_cmp_ge_u32 s2, 144
    s_cselect_b32 s4, 144, s4
    s_cselect_b32 s5, 2, s5
    s_sub_u32 s4, s2, s4
    s_lshr_b32 s6, s4, 3
    s_and_b32 s7, s4, 7
    s_mul_i32 s9, s4, 2341
    s_lshr_b32 s9, s9, 16
    s_mul_i32 s10, s9, 28
    s_sub_u32 s10, s4, s10
    s_mov_b32 s8, 1024
    s_cmp_eq_u32 s5, 1
    s_cselect_b32 s6, s9, s6
    s_cselect_b32 s7, s10, s7
    s_cselect_b32 s8, 3584, s8
    s_lshl_b32 s9, s6, 2
    s_add_u32 s9, s9, s3
    """
    WT = int(os.environ.get("WT", "0"))
    if WT:
        k(f"""
        v_lshrrev_b32 v248, 4, v1
        v_mul_u32_u24 v248, 3072, v248
        v_bfe_u32 v249, v1, 2, 2
        v_lshl_add_u32 v248, v249, 10, v248
        v_and_b32 v249, 3, v1
        v_lshl_add_u32 v248, v249, 7, v248
        s_lshl_b32 s4, s37, 2
        s_add_u32 s4, s4, s3
        s_mul_i32 s4, s4, 12288
        s_and_b32 s5, s36, 1
        s_lshl_b32 s5, s5, 9
        s_add_u32 s4, s4, s5
        s_mov_b32 s6, 0x0fff0fff
        s_mov_b32 s7, 0x0fff0fff
        s_mov_b64 exec, s[6:7]
        """)
        vm.op("buffer_load_dword a216, v248, s[40:43], s4 offen")
        k("s_mov_b64 exec, -1")
    k(RS_SCALAR)
    k(f"""
    s_lshl_b32 s12, s8, 5
    s_mul_i32 s12, s12, s9
    s_lshl_b32 s11, s7, 7
    s_add_u32 s12, s12, s11
    s_lshl_b32 s1, s8, 3
    v_lshrrev_b32 v248, 3, v1
    v_mul_lo_u32 v248, v248, s8
    v_and_b32 v249, 7, v1
    v_lshl_add_u32 v248, v249, 4, v248
    v_add_u32 v248, s12, v248
    v_accvgpr_write_b32 a212, v248
    s_lshl_b32 s0, s3, 16
    s_lshl_b32 s4, s2, 8
    s_add_u32 s0, s0, s4
    s_add_u32 s0, s0, {OFF_FLAG}
    """)
    stamp(k, 1)
    wd = {}
    def wdma(s):
        base = SLOT[s // 4] + (s % 4) * 12288
        def f(p):
            out = []
            if p == 0:
                out = [f"s_xor_b32 s39, s93, {s}", f"s_mul_i32 s39, s39, {32*3072}", f"s_add_u32 m0, s100, {base}", "s_add_u32 s39, s39, s23"]
            out.append(f"buffer_load_dwordx4 v5, s[40:43], s39 offen offset:{p*1024} lds")
            wd[s] = vm.tick()
            return out
        return [(lambda p=p: f(p)) for p in range(3)]
    NWA = int(os.environ.get("NWA", "6"))
    wq = [xrow(r) for r in range(NX0, 16)] + [g for s in range(NWA) for g in wdma(s)]
    def mod_reduce(mj, MA_, t0, t1, lds_off, lds_base=0):
        mj("s_nop 0")
        for i in range(4):
            mj(f"v_permlane32_swap_b32 v{MA_+i}, v{MA_+4+i}")
        for i in range(0, 4, 2):
            mj(f"v_pk_add_f32 v[{MA_+i}:{MA_+i+1}], v[{MA_+i}:{MA_+i+1}], v[{MA_+4+i}:{MA_+5+i}]")
        mj(f"v_lshrrev_b32 v{t0}, 4, v1")
        mj(f"v_and_b32 v{t1}, 1, v1")
        for i in range(2):
            mj(f"v_permlane16_swap_b32 v{MA_+i}, v{MA_+2+i}")
        mj(f"v_pk_add_f32 v[{MA_}:{MA_+1}], v[{MA_}:{MA_+1}], v[{MA_+2}:{MA_+3}]")
        mj(f"v_lshlrev_b32 v{t0}, 3, v{t0}")
        mj(f"v_lshl_add_u32 v{t0}, v{t1}, 5, v{t0}")
        for n_, ror in enumerate((8, 4, 2)):
            for i in range(2):
                mj(f"v_add_f32_dpp v{MA_+i}, v{MA_+i}, v{MA_+i} row_ror:{ror} row_mask:0xf bank_mask:0xf")
            mj("s_lshl_b32 s38, s3, 6" if n_ == 0 else (f"v_add_u32 v{t0}, s38, v{t0}" if n_ == 1 else f"v_add_u32 v{t0}, {lds_base}, v{t0}"))
        mj(f"ds_write_b64 v{t0}, v[{MA_}:{MA_+1}] offset:{lds_off}")
    def silu(mj, regs, tmp):
        for r, t in zip(regs, tmp):
            mj(f"v_mul_f32 v{t}, 0xbfb8aa3b, v{r}")
        for t in tmp:
            mj(f"v_exp_f32 v{t}, v{t}")
        mj("s_nop 0")
        for t in tmp:
            mj(f"v_add_f32 v{t}, 1.0, v{t}")
        for t in tmp:
            mj(f"v_rcp_f32 v{t}, v{t}")
        mj("s_nop 0")
        for r, t in zip(regs, tmp):
            mj(f"v_mul_f32 v{r}, v{r}, v{t}")
        for r in regs:
            bf16_round(mj, r, r)
    mj = L()
    vm.wait(wmid)
    mj(f"v_lshlrev_b32 v{CC}, 16, v{CC}")
    silu(mj, [CC], [CC + 1])
    for i in range(4):
        mj(f"v_lshlrev_b32 v{MA+2*i}, 16, v{WM+i}")
        mj(f"v_and_b32 v{MA+2*i+1}, 0xffff0000, v{WM+i}")
    for i in range(4):
        mj(f"v_pk_mul_f32 v[{MA+2*i}:{MA+2*i+1}], v[{MA+2*i}:{MA+2*i+1}], v[{CC}:{CC+1}] op_sel_hi:[1,0]")
    mod_reduce(mj, MA, CC, CC + 1, LDS_MRED)
    weave(k, mj, wq, int(os.environ.get("WV0", "10")))
    stamp(k, 2)
    SU, SQ = 216, 232
    WV = int(os.environ.get("WV1", "12"))
    PUBROW = int(os.environ.get("PUBROW", "3"))
    for r in range(16):
        ln = L()
        while r not in rowid:
            for y in wq.pop(0)():
                k(y)
        vm.wait(rowid[r])
        b, t = RAW + 4 * r, XF + 8 * r
        for i in range(4):
            ln(f"v_lshlrev_b32 v{t+2*i}, 16, v{b+i}")
            ln(f"v_and_b32 v{t+2*i+1}, 0xffff0000, v{b+i}")
        ln(f"v_pk_add_f32 v[248:249], v[{t}:{t+1}], v[{t+2}:{t+3}]")
        ln(f"v_pk_mul_f32 v[250:251], v[{t}:{t+1}], v[{t}:{t+1}]")
        ln(f"v_pk_add_f32 v[252:253], v[{t+4}:{t+5}], v[{t+6}:{t+7}]")
        for i in range(1, 4):
            ln(f"v_pk_fma_f32 v[250:251], v[{t+2*i}:{t+2*i+1}], v[{t+2*i}:{t+2*i+1}], v[250:251]")
        ln("v_pk_add_f32 v[248:249], v[248:249], v[252:253]")
        ln(f"v_add_f32 v{SQ+r}, v250, v251")
        ln(f"v_add_f32 v{SU+r}, v248, v249")
        weave(k, ln, wq, WV)
        if r in (0, 4, 8, 12):
            stamp1(k, 14 + r // 4)
        if r == PUBROW - 2:
            k("s_waitcnt lgkmcnt(0)")
            k("s_load_dword s98, s[48:49], 0")
        if r == PUBROW:
            k(f"""
            v_lshlrev_b32 v{CC}, 2, v1
            s_waitcnt lgkmcnt(0)
            s_barrier
            ds_read_b32 v{MA}, v{CC} offset:{LDS_MRED}
            s_cmp_eq_u32 s98, 0
            s_cbranch_scc1 L_zspin
            L_zpoll_out:
            s_cmp_lg_u32 s3, 0
            s_cbranch_scc1 L_mod_done
            s_lshl_b32 s38, s92, 13
            s_lshl_b32 s4, s99, 7
            s_add_u32 s38, s38, s4
            s_add_u32 s38, s38, {OFF_MODP}
            v_lshlrev_b32 v{CC}, 3, v1
            s_waitcnt lgkmcnt(0)
            v_mov_b32 v{MA+1}, v{MA}
            s_nop 1
            v_permlane32_swap_b32 v{MA+1}, v{MA}
            v_add_f32 v{MA}, v{MA+1}, v{MA}
            v_mov_b32 v{MA+1}, v{MA}
            s_nop 1
            v_permlane16_swap_b32 v{MA+1}, v{MA}
            v_add_f32 v{MA}, v{MA+1}, v{MA}
            v_mov_b32 v{MA+1}, s98
            s_mov_b64 exec, 0xffff
            buffer_store_dwordx2 v[{MA}:{MA+1}], v{CC}, s[24:27], s38 offen {FL}
            s_mov_b64 exec, -1
            L_mod_done:
            """)
            z = ["L_zspin:"]
            for ln_ in (64, 128, 192):
                z += [f"s_load_dword s98, s[48:49], {ln_}", "s_waitcnt lgkmcnt(0)", "s_cmp_lg_u32 s98, 0", "s_cbranch_scc1 L_zpoll_out", "s_sleep 6"]
            z += ["s_mov_b32 s4, 0x40000", f"v_mov_b32 v{CC+2}, 0",
                  "L_zspin2:", f"buffer_load_dword v{CC+1}, v{CC+2}, s[48:51], 0 offen {FL}", "s_waitcnt vmcnt(0)",
                  f"v_readfirstlane_b32 s98, v{CC+1}", "s_sub_u32 s4, s4, 1", "s_cbranch_scc1 L_zpoll_out", "s_sleep 8", "s_cmp_eq_u32 s98, 0",
                  "s_cbranch_scc1 L_zspin2", "s_branch L_zpoll_out"]
            OOL.append(z)
    k(f"""
    v_and_b32 v248, 15, v1
    v_lshrrev_b32 v249, 4, v1
    v_mul_u32_u24 v3, 3072, v249
    v_lshrrev_b32 v250, 2, v248
    v_lshl_add_u32 v3, v250, 7, v3
    v_and_b32 v250, 1, v248
    v_lshl_add_u32 v3, v250, 3, v3
    v_bfe_u32 v250, v248, 1, 1
    s_lshl_b32 s38, s3, 1
    v_add_u32 v250, s38, v250
    v_bfe_u32 v251, v248, 3, 1
    v_and_b32 v252, 1, v249
    v_lshl_add_u32 v251, v252, 1, v251
    v_lshlrev_b32 v251, 1, v251
    v_xor_b32 v250, v250, v251
    v_lshl_add_u32 v3, v250, 4, v3
    v_add_u32 v4, 0x10000, v3
    v_add_u32 v6, 0x20000, v3
    """)
    def trreads(b):
        out = []
        for s in range(4 * b, 4 * b + 4):
            for p in range(3):
                for h in range(2):
                    addr = SLOT[b] + (s % 4) * 12288 + p * 1024 + h * 512
                    ar = 12 * s + 4 * p + 2 * h
                    out.append(f"ds_read_b64_tr_b16 a[{ar}:{ar+1}], v{(3, 4, 6)[addr >> 16]} offset:{addr & 0xffff}")
        return out
    def normalize(half):
        out = L()
        for rr in range(8):
            r = 8 * half + rr
            out(f"v_readlane_b32 s{4+2*rr}, v{SQ+4}, {16*(r>>2) + 4*(r&3)}")
            out(f"v_readlane_b32 s{5+2*rr}, v{SU+4}, {16*(r>>2) + 4*(r&3)}")
        for rr in range(8):
            t = XF + 8 * (8 * half + rr)
            for i in range(4):
                out(f"v_pk_fma_f32 v[{t+2*i}:{t+2*i+1}], v[{t+2*i}:{t+2*i+1}], s[{4+2*rr}:{5+2*rr}], s[{4+2*rr}:{5+2*rr}] op_sel:[0,0,1] op_sel_hi:[1,0,1]")
        return out
    stamp(k, 3)
    ln = L()
    for base in (SQ, SU):
        for r in range(8):
            ln(f"v_permlane32_swap_b32 v{base+r}, v{base+8+r}")
    for base in (SQ, SU):
        for r in range(0, 8, 2):
            ln(f"v_pk_add_f32 v[{base+r}:{base+r+1}], v[{base+r}:{base+r+1}], v[{base+8+r}:{base+9+r}]")
    for base in (SQ, SU):
        for r in range(4):
            ln(f"v_permlane16_swap_b32 v{base+r}, v{base+4+r}")
    for base in (SQ, SU):
        for r in range(0, 4, 2):
            ln(f"v_pk_add_f32 v[{base+r}:{base+r+1}], v[{base+r}:{base+r+1}], v[{base+4+r}:{base+5+r}]")
    ln("""
    s_mov_b32 s4, 0x00f000f0
    s_mov_b32 s5, 0x00f000f0
    s_mov_b32 s6, 0x0f000f00
    s_mov_b32 s7, 0x0f000f00
    s_mov_b32 s8, 0xf000f000
    s_mov_b32 s9, 0xf000f000
    """)
    for ror in (8, 4):
        for base in (SQ, SU):
            for r in range(4):
                ln(f"v_add_f32_dpp v{base+r}, v{base+r}, v{base+r} row_ror:{ror} row_mask:0xf bank_mask:0xf")
    for i in range(1, 4):
        for base in (SQ, SU):
            ln(f"v_cndmask_b32 v{base}, v{base}, v{base+i}, s[{2+2*i}:{3+2*i}]")
    ln("s_nop 0")
    for qp in ("[1,0,3,2]", "[2,3,0,1]"):
        for base in (SQ, SU):
            ln(f"v_add_f32_dpp v{base}, v{base}, v{base} quad_perm:{qp} row_mask:0xf bank_mask:0xf")
        ln("s_nop 0")
    ln_stats_finish(ln, SU, SQ, SU + 4, SQ + 4, SQ + 8)
    ln(f"v_mul_f32 v{SU+4}, -v{SU+4}, v{SQ+4}")
    weave(k, ln, wq, int(os.environ.get('WV2', '8')))
    for g in wq:
        for y in g():
            k(y)
    stamp(k, 4)
    MP = 24
    def modloads():
        out = ["s_lshl_b32 s38, s3, 11", f"s_add_u32 s38, s38, {OFF_MODP}"]
        for q in range(4):
            if q:
                out.append("s_add_u32 s38, s38, 8192")
            for h in range(2):
                r_ = MP + 8 * q + 4 * h
                out.append(f"buffer_load_dwordx4 v[{r_}:{r_+3}], v2, s[24:27], s38 offen offset:{1024*h} {FL}")
        return out
    def modcheck():
        out = L()
        t = [MP + 2 * i + 1 for i in range(16)]
        out(f"v_and_b32 v252, v{t[0]}, v{t[1]}")
        out(f"v_or_b32 v253, v{t[0]}, v{t[1]}")
        for i in range(2, 16, 2):
            out(f"v_bitop3_b32 v252, v252, v{t[i]}, v{t[i+1]} bitop3:0x80")
            out(f"v_or3_b32 v253, v253, v{t[i]}, v{t[i+1]}")
        out("v_xor_b32 v252, s98, v252")
        out("v_xor_b32 v253, s98, v253")
        out("v_or_b32 v252, v252, v253")
        out("v_cmp_ne_u32 vcc, 0, v252")
        return out
    for x in modloads():
        k(x)
        if x.startswith("buffer"):
            modid = vm.tick()
    if int(os.environ.get("PRET", "1")):
        k(f"""
        v_lshlrev_b32 v56, 7, v1
        s_lshl_b32 s4, s3, 12
        s_add_u32 s4, s4, {OFF_XID}
        s_sub_u32 s4, s4, s0
        v_add_u32 v56, s4, v56
        s_cmp_eq_u32 s2, 9
        s_cselect_b32 s4, 32, 0
        v_cmp_gt_u32 vcc, s4, v1
        v_and_b32 v57, 1, v1
        v_lshlrev_b32 v57, 7, v57
        v_cndmask_b32 v56, v57, v56, vcc
        """)
        vm.op("buffer_load_dword a213, v56, s[24:27], s0 offen")
        TLBS = int(os.environ.get("TLBS", "0"))
        if TLBS:
            k(f"""
            v_lshlrev_b32 v57, {TLBS}, v1
            s_cmp_eq_u32 s3, 2
            s_cselect_b32 s4, 0, 0x7f000000
            """)
            vm.op("buffer_load_dword a214, v57, s[24:27], s4 offen")
            vm.op("buffer_load_dword a215, v57, s[32:35], s4 offen")
    OOL.append(["L_mod_spin:", "s_mov_b32 s39, 0x40000", "L_mod_spin2:"]
               + modloads() + ["s_sub_u32 s39, s39, 1", "s_waitcnt vmcnt(0)"]
               + list(modcheck()) + ["s_cbranch_scc1 L_mod_ok", "s_sleep 4", "s_cbranch_vccnz L_mod_spin2", "s_branch L_mod_ok"])
    stamp1(k, 9)
    vm.wait(wd[3]); k("s_barrier")
    stamp1(k, 10)
    wq = [g for s in range(NWA, 8) for g in wdma(s)]
    NWB = int(os.environ.get("NWB", "8"))
    wq = [g for s in range(NWA, NWB) for g in wdma(s)]
    tr0 = [(lambda x=x: [x]) for x in trreads(0)]
    mix = []
    while wq or tr0:
        mix += tr0[:2] + wq[:1]
        tr0, wq = tr0[2:], wq[1:]
    weave(k, normalize(0) + normalize(1), mix, 96 // len(mix))
    assert not mix
    stamp1(k, 11)
    k(f"""
    s_lshl_b32 s38, s93, 2
    v_xor_b32 v254, s38, v1
    v_lshlrev_b32 v254, 8, v254
    v_and_b32 v253, 7, v1
    v_lshl_add_u32 v254, v253, 4, v254
    s_lshl_b32 s38, s3, 14
    s_lshl_b32 s39, s101, 6
    v_add_u32 v254, s38, v254
    v_xor_b32 v254, s39, v254
    s_lshl_b32 s38, s3, 10
    v_lshlrev_b32 v7, 3, v1
    v_add_u32 v7, s38, v7
    v_lshlrev_b32 v255, 5, v1
    s_cmp_ge_u32 s3, 2
    s_cselect_b32 s5, 1.0, 0
    """)
    vm.wait(modid)
    stamp1(k, 12)
    for x in modcheck(): k(x)
    k("s_nop 0")
    k("s_cbranch_vccnz L_mod_spin")
    k.label("L_mod_ok")
    for i in range(4):
        k(f"v_add_f32 v{8+i}, v{MP+2*i}, v{MP+8+2*i}")
        k(f"v_add_f32 v{12+i}, v{MP+16+2*i}, v{MP+24+2*i}")
    k("v_pk_add_f32 v[8:9], v[8:9], v[12:13]")
    k("v_pk_add_f32 v[10:11], v[10:11], v[14:15]")
    for rep in range(2):
        k("v_cvt_pk_bf16_f32 v12, v8, v9")
        k("v_cvt_pk_bf16_f32 v13, v10, v11")
        for i in range(2):
            k(f"v_lshlrev_b32 v{8+2*i}, 16, v{12+i}")
            k(f"v_and_b32 v{9+2*i}, 0xffff0000, v{12+i}")
        if rep == 0:
            for i in range(4):
                k(f"v_add_f32 v{8+i}, s5, v{8+i}")
    k(f"""
    ds_write_b64 v7, v[8:9] offset:{LDS_SHARE}
    ds_write_b64 v7, v[10:11] offset:{LDS_SHARE+512}
    s_waitcnt lgkmcnt(0)
    s_barrier
    ds_read_b128 v[{VB}:{VB+3}], v255 offset:{LDS_SHARE}
    ds_read_b128 v[{VB+4}:{VB+7}], v255 offset:{LDS_SHARE+16}
    ds_read_b128 v[{VA}:{VA+3}], v255 offset:{LDS_SHARE+2048}
    ds_read_b128 v[{VA+4}:{VA+7}], v255 offset:{LDS_SHARE+2064}
    """)
    wq = [g for s in range(NWB, 12) for g in wdma(s)]
    for g in wq[:2]:
        for y in g():
            k(y)
    wq = wq[2:]
    k("s_waitcnt lgkmcnt(0)")
    stamp(k, 5)
    md = L()
    def mrow(r):
        t = XF + 8 * r
        for i in range(4):
            md(f"v_pk_fma_f32 v[{t+2*i}:{t+2*i+1}], v[{t+2*i}:{t+2*i+1}], v[{VA+2*i}:{VA+2*i+1}], v[{VB+2*i}:{VB+2*i+1}]")
        for i in range(4):
            md(f"v_cvt_pk_bf16_f32 v{t+i}, v{t+2*i}, v{t+2*i+1}")
        md(f"v_xor_b32 v{t+4}, {r<<4}, v254")
    def mwr(r):
        t = XF + 8 * r
        md(f"ds_write_b128 v{t+4}, v[{t}:{t+3}]")
    mrow(0)
    md("s_barrier")
    for r in range(1, 16):
        mwr(r - 1)
        mrow(r)
    mwr(15)
    weave(k, md, wq, 160 // len(wq))
    assert not wq
    k(f"""
    v_and_b32 v8, 15, v1
    v_lshrrev_b32 v9, 4, v1
    v_xor_b32 v10, v8, v9
    v_lshlrev_b32 v10, 4, v10
    v_lshl_add_u32 v8, v9, 8, v10
    v_xor_b32 v9, 64, v8
    v_accvgpr_read_b32 v248, a212
    """)
    stamp1(k, 13)
    k(vm.wait_str(wd[7]) + " lgkmcnt(0)")
    k("s_barrier")
    stamp(k, 6)
    def aread(s):
        f = FR + 16 * (s & 1)
        return [f"ds_read_b128 v[{f+4*b}:{f+4*b+3}], v{8 + (s & 1)} offset:{b*16384+s*1024}" for b in range(4)]
    ex1, ex2, ex3 = trreads(1), trreads(2), trreads(3)
    RLATT = int(os.environ.get("RLATT", "1"))
    for x in aread(0): k(x)
    for s in range(16):
        nxt = aread(s + 1) if s < 15 else []
        k("s_waitcnt lgkmcnt(0)")
        if s in (3, 5, 8, 10, 13):
            stamp1(k, 18 + (3, 5, 8, 10, 13).index(s))
        SB3 = int(os.environ.get("SB3", "10"))
        if s == 3:
            k("s_barrier")
        if s == 5:
            vm.wait(wd[11]); k("s_barrier")
        if s == SB3:
            vm.wait(wd[15]); k("s_barrier")
        if s < 3:
            nxt += ex1[8 * s:8 * s + 8]
        if s in (3, 4):
            for s2_ in (12 + 2 * (s - 3), 13 + 2 * (s - 3)):
                for g in wdma(s2_):
                    nxt.append("\n".join(g()))
        if 5 <= s < 9:
            nxt += ex2[6 * (s - 5):6 * (s - 5) + 6]
        if SB3 <= s < SB3 + 4:
            nxt += ex3[6 * (s - SB3):6 * (s - SB3) + 6]
        RL0 = int(os.environ.get("RL0", "5"))
        if RL0 <= s < RL0 + 4 and not RLATT:
            i = s - RL0
            nxt += ["s_add_u32 s12, s12, s1" if i else "s_mov_b32 s12, 0", f"buffer_load_dwordx4 a[{192+4*i}:{195+4*i}], v248, s[52:55], s12 offen"]
            vm.tick()
        f = FR + 16 * (s & 1)
        for b in range(4):
            for which in range(3):
                acc = ACC + 4 * (which * 4 + b)
                w = f"a[{12*s+4*which}:{12*s+4*which+3}]"
                h = f"v[{f+4*b}:{f+4*b+3}]"
                c = "0" if s == 0 else f"v[{acc}:{acc+3}]"
                a_, b_ = (w, h) if which < 2 else (h, w)
                k(f"v_mfma_f32_16x16x32_bf16 v[{acc}:{acc+3}], {a_}, {b_}, {c}")
                if nxt:
                    k(nxt.pop(0))
        assert not nxt
    stamp(k, 7)
    C2 = 200
    k(f"""
    v_lshrrev_b32 v221, 1, v1
    v_lshlrev_b32 v220, 3, v221
    s_lshl_b32 s38, s3, 8
    buffer_load_dwordx2 v[{C2}:{C2+1}], v220, s[56:59], s38 offen
    """)
    k(f"""
    s_lshl_b32 s40, s22, 16
    s_lshl_b32 s41, s20, 11
    s_add_u32 s40, s40, s41
    s_add_u32 s40, s40, {OFF_Q}
    s_lshl_b32 s42, s22, 17
    s_lshl_b32 s41, s20, 12
    s_add_u32 s42, s42, s41
    s_add_u32 s42, s42, {OFF_KV}
    v_mov_b32 v12, {QSCALE:#x}
    v_mov_b32 v13, {QSCALE:#x}
    """)
    for which in (1, 2, 0):
        for bp in range(2):
            t = 88 + 4 * (which * 2 + bp)
            for b2 in range(2):
                acc = ACC + 4 * (which * 4 + bp * 2 + b2)
                if which == 0:
                    k(f"v_pk_mul_f32 v[{acc}:{acc+1}], v[12:13], v[{acc}:{acc+1}]")
                    k(f"v_pk_mul_f32 v[{acc+2}:{acc+3}], v[12:13], v[{acc+2}:{acc+3}]")
                k(f"v_cvt_pk_bf16_f32 v{t+2*b2}, v{acc}, v{acc+1}")
                k(f"v_cvt_pk_bf16_f32 v{t+2*b2+1}, v{acc+2}, v{acc+3}")
        op = "v_permlane32_swap_b32" if which == 2 else "v_permlane16_swap_b32"
        for bp in range(2):
            t = 88 + 4 * (which * 2 + bp)
            if bp == 1:
                k("s_nop 0")
            k(f"{op} v{t}, v{t+2}")
            k(f"{op} v{t+1}, v{t+3}")
            if which == 0:
                vm.op(f"buffer_store_dwordx4 v[{t}:{t+3}], v2, s[24:27], s40 offen offset:{bp*1024} {FL}")
            else:
                vm.op(f"buffer_store_dwordx4 v[{t}:{t+3}], v2, s[24:27], s42 offen offset:{bp*2048+(which-1)*1024} {FL}")
    stamp(k, 25)
    signal(k, 0, 21, 20, 32)
    stamp(k, 26)
    RA, RD, W2M, M2 = 160, 168, 184, 208
    LDS_RLS = LDS_W1A
    k(RS_SCALAR)
    k(f"""
    s_lshl_b32 s14, s3, 12
    s_add_u32 s14, s14, {LDS_RLS}
    v_and_b32 v248, 15, v1
    v_lshrrev_b32 v249, 4, v1
    v_lshrrev_b32 v250, 2, v248
    v_and_b32 v248, 3, v248
    v_lshlrev_b32 v248, 3, v248
    v_lshl_add_u32 v248, v250, 7, v248
    v_add_u32 v248, s14, v248
    v_and_b32 v250, 1, v249
    v_lshrrev_b32 v249, 1, v249
    s_cmp_eq_u32 s5, 1
    s_cbranch_scc1 L_rl_c
    v_lshl_add_u32 v248, v250, 5, v248
    s_lshr_b32 s13, s5, 1
    s_add_u32 s23, s13, 9
    v_lshlrev_b32 v249, s23, v249
    v_add_u32 v{RA}, v248, v249
    v_add_u32 v{RA+1}, 64, v{RA}
    v_add_u32 v{RA+2}, 0x800, v{RA}
    v_add_u32 v{RA+3}, 0x840, v{RA}
    s_lshr_b32 s23, 1024, s13
    s_cmp_eq_u32 s5, 0
    s_cselect_b32 s15, 32, 112      ; ksteps
    s_mov_b32 s10, {OFF_W2}
    s_cselect_b32 s10, {OFF_WO}, s10
    s_lshl_b32 s11, s7, 1
    s_mul_i32 s11, s11, s15
    s_lshl_b32 s13, s9, 1
    s_add_u32 s11, s11, s13
    s_lshl_b32 s11, s11, 10
    s_add_u32 s16, s11, s10
    s_lshl_b32 s15, s15, 10
    s_add_u32 s17, s16, s15
    s_add_u32 s18, s16, 1024
    s_add_u32 s19, s17, 1024
    s_branch L_rl_d
    L_rl_c:
    v_lshl_add_u32 v248, v249, 11, v248
    v_lshl_add_u32 v{RA}, v250, 9, v248
    v_add_u32 v{RA+1}, 32, v{RA}
    v_add_u32 v{RA+2}, 64, v{RA}
    v_add_u32 v{RA+3}, 0x60, v{RA}
    s_mov_b32 s23, 1024
    s_lshl_b32 s15, s7, 2
    s_mul_i32 s13, s9, 7
    """)
    for f in range(4):
        k(f"""
        s_mul_i32 s10, s15, 9363
        s_lshr_b32 s10, s10, 16
        s_mul_i32 s11, s10, 105
        s_add_u32 s11, s11, s15
        s_add_u32 s11, s11, s13
        s_lshl_b32 s11, s11, 10
        s_add_u32 s{16+f}, s11, {OFF_W1}
        s_add_u32 s15, s15, 1
        """)
    k.label("L_rl_d")
    for f in range(4):
        k(f"v_add_u32 v{RA+4+f}, s23, v{RA+f}")
    k(f"""
    v_add_u32 v220, s14, v2
    s_lshr_b32 s99, s37, 2
    s_lshl_b32 s99, s99, 3
    s_add_u32 s99, s99, s36
    s_lshl_b32 s99, s99, 2
    s_and_b32 s38, s37, 3
    s_add_u32 s99, s99, s38
    s_add_u32 s99, s99, 64
    v_mul_u32_u24 v221, {4*6144}, v221
    v_and_b32 v249, 1, v1
    v_lshl_add_u32 v221, v249, 4, v221
    s_mul_i32 s15, s3, {128*6144}
    s_lshl_b32 s4, s99, 5
    s_add_u32 s15, s15, s4
    s_cmp_ge_u32 s37, 16
    s_cselect_b32 s15, 0x7f000000, s15
    s_lshl_b32 s20, s2, 1
    s_lshr_b32 s21, s3, 1
    s_add_u32 s20, s20, s21
    s_mul_i32 s20, s20, 6144
    s_and_b32 s21, s3, 1
    s_lshl_b32 s21, s21, 11
    s_add_u32 s20, s20, s21
    s_add_u32 s20, s20, 2048
    s_mov_b64 s[8:9], s[52:53]
    s_mov_b32 s10, s54
    s_mov_b32 s11, 0x00020000
    v_accvgpr_read_b32 v222, a212
    s_mov_b64 s[4:5], s[44:45]
    s_mov_b32 s6, s46
    s_mov_b32 s7, 0x00020000
    v_lshlrev_b32 v{C2+2}, 16, v{C2}
    v_and_b32 v{C2+3}, 0xffff0000, v{C2}
    v_lshlrev_b32 v{C2+4}, 16, v{C2+1}
    v_and_b32 v{C2+5}, 0xffff0000, v{C2+1}
    """)
    silu(k, [C2 + 2 + i for i in range(4)], [M2 + i for i in range(4)])
    stamp(k, 8)
    Q, KF, VF, S, P, O, C = (ATT[x] for x in ("Q", "KF", "VF", "S", "P", "O", "C"))
    TOKP = int(os.environ.get("TOKP", "0"))
    MAP2 = "s_mov_b32 s40, s37\n    s_mov_b32 s54, s36" if TOKP else "s_lshl_b32 s40, s36, 2\n    s_and_b32 s42, s37, 3\n    s_add_u32 s40, s40, s42\n    s_lshr_b32 s54, s37, 2"
    k(f"""
    {MAP2}
    s_lshl_b32 s41, s54, 2
    s_add_u32 s41, s41, s3         ; qblock64
    s_lshl_b32 s42, s40, 16
    s_lshl_b32 s43, s41, 11
    s_add_u32 s42, s42, s43
    s_add_u32 s42, s42, {OFF_Q}
    s_lshl_b32 s44, s40, 17
    s_lshl_b32 s45, s3, 10
    s_add_u32 s47, s44, {OFF_KV}
    s_add_u32 s44, s47, s45
    s_lshl_b32 s46, s41, 16
    s_lshl_b32 s43, s40, 10
    s_add_u32 s46, s46, s43
    s_add_u32 s46, s46, {OFF_O}
    s_lshr_b32 s38, s3, 1
    s_mul_i32 s38, s38, {TS}
    s_and_b32 s39, s45, 1024
    s_add_u32 s13, s38, s39
    s_mov_b32 m0, s13
    v_and_b32 v3, 15, v1
    v_lshlrev_b32 v3, 4, v3
    v_lshrrev_b32 v4, 5, v1
    v_lshl_add_u32 v3, v4, 8, v3
    v_add_u32 v3, 0x400, v3
    v_add_u32 v156, 0x200, v3
    s_mov_b32 s48, 0x0000ffff
    s_mov_b32 s49, 0x0000ffff
    v_and_b32 v8, 27, v1
    v_cmp_eq_u32 vcc, 16, v8
    v_mov_b32 v9, 0x800
    v_mov_b32 v10, 0x810
    v_cndmask_b32 v9, v10, v9, vcc
    v_cndmask_b32 v3, v9, v3, s[48:49]
    v_cndmask_b32 v156, v9, v156, s[48:49]
    v_add_u32 v4, 0x10000, v2
    v_add_u32 v5, 0x10000, v3
    v_add_u32 v157, 0x10000, v156
    v_mul_u32_u24 v8, {TS}, v1
    v_mov_b32 v12, 0x3f803f80
    v_mov_b32 v13, 0x3f803f80
    v_mov_b32 v14, 0x3f803f80
    v_mov_b32 v15, 0x3f803f80
    v_mov_b32 v16, 0
    v_mov_b32 v17, 0
    v_mov_b32 v18, 0
    v_mov_b32 v19, 0
    ds_write_b128 v8, v[12:15] offset:2048
    ds_write_b128 v8, v[16:19] offset:2064
    s_waitcnt lgkmcnt(0)
    """)
    k(f"""
    s_lshr_b32 s50, s37, 3
    s_lshl_b32 s50, s50, 2
    s_add_u32 s50, s50, s3          ; P3 ncol32
    s_lshl_b32 s51, s50, 15
    s_add_u32 s51, s51, {OFF_WO}
    s_lshr_b32 s52, s37, 3
    s_lshl_b32 s52, s52, 1
    s_and_b32 s53, s37, 1
    s_add_u32 s52, s52, s53         ; cb5
    s_lshl_b32 s52, s52, 1
    s_lshr_b32 s53, s3, 1
    s_add_u32 s52, s52, s53
    s_xor_b32 s53, s52, 1
    s_mul_i32 s55, s52, {112*1024}
    s_mul_i32 s56, s53, {112*1024}
    s_mul_i32 s53, s3, {28*1024}
    s_add_u32 s53, s53, {OFF_W2}
    s_add_u32 s55, s55, s53
    s_add_u32 s56, s56, s53
    s_lshr_b32 s57, s37, 3
    s_lshl_b32 s57, s57, 2
    s_and_b32 s53, s37, 3
    s_add_u32 s57, s57, s53         ; cb4
    s_mul_i32 s58, s57, {112*1024}
    s_add_u32 s58, s58, {OFF_W1}
    s_mul_i32 s22, s3, 7168
    s_mul_i32 s23, s3, 21504
    s_add_u32 s21, s58, s23
    s_add_u32 s21, s21, {28*1024}
    v_lshrrev_b32 v8, 5, v1
    v_and_b32 v9, 31, v1
    v_lshlrev_b32 v148, 10, v9
    v_lshl_add_u32 v148, v8, 3, v148
    v_lshlrev_b32 v149, 4, v9
    v_lshl_add_u32 v149, v8, 12, v149
    s_lshl_b32 s59, s36, 3
    s_and_b32 s53, s37, 7
    s_add_u32 s59, s59, s53
    s_lshl_b32 s59, s59, 15
    s_lshl_b32 s53, s50, 6
    s_add_u32 s59, s59, s53
    v_lshlrev_b32 v155, 7, v1
    s_lshr_b32 s0, s2, 2
    s_lshl_b32 s0, s0, 7
    s_and_b32 s53, s2, 3
    s_lshl_b32 s53, s53, 2
    s_add_u32 s0, s0, s53
    s_lshr_b32 s53, s37, 2
    """)
    wait_edge(k, 0, 53 if TOKP else 36, 32)
    stamp(k, 9)
    vm.n = 0
    rid = []
    def dma():
        i = len(rid)
        out = []
        if i < 4:
            if i:
                out += [f"s_add_u32 m0, s13, {2*TS*i}", "s_add_u32 s44, s44, 4096"]
            out += [f"buffer_load_dwordx4 v2, s[24:27], s44 offen {FL} lds"]
        else:
            if i % 4 == 0:
                out += [f"s_add_u32 m0, s43, {2*TS*i}", f"s_add_u32 s44, s41, {4096*i}"]
            if i % 4 == 2:
                out += [f"s_add_u32 m0, s43, {2*TS*(i-2) + TS - 2048}"]
            out += [f"buffer_load_dwordx4 v2, s[24:27], s44 offen offset:{1024*(i%4)} {FL} lds"]
        rid.append(vm.tick())
        return out
    k("s_lshl_b32 s43, s3, 12")
    k("s_add_u32 s41, s47, s43")
    k(f"s_mul_i32 s43, s3, {2*TS}")
    k("s_mov_b32 s100, 0x07060302")
    vm.op(f"buffer_load_dwordx4 v[{KF}:{KF+3}], v2, s[24:27], s47 offen {FL}")
    vm.op(f"buffer_load_dwordx4 v[{Q}:{Q+3}], v2, s[24:27], s42 offen {FL}")
    qid = vm.op(f"buffer_load_dwordx4 v[{Q+4}:{Q+7}], v2, s[24:27], s42 offen offset:1024 {FL}")
    for r in range(4):
        for x in dma(): k(x)
    fin2 = L()
    fin2(f"""
    s_cmp_lg_u32 s3, 1
    s_cbranch_scc1 L_m2_done
    s_cmp_ge_u32 s37, 16
    s_cbranch_scc1 L_m2_done
    v_lshlrev_b32 v216, 2, v1
    v_add_u32 v217, {LDS_MRED2}, v216
    ds_read_b32 v{M2}, v217
    s_lshr_b32 s38, s99, 5
    s_cmp_eq_u32 s38, 4
    s_cselect_b32 s39, 1.0, 0
    s_waitcnt lgkmcnt(0)
    v_mov_b32 v{M2+1}, v{M2}
    s_nop 1
    v_permlane32_swap_b32 v{M2+1}, v{M2}
    v_add_f32 v{M2}, v{M2+1}, v{M2}
    v_mov_b32 v{M2+1}, v{M2}
    s_nop 1
    v_permlane16_swap_b32 v{M2+1}, v{M2}
    v_add_f32 v{M2}, v{M2+1}, v{M2}
    """)
    bf16_round(fin2, M2, M2)
    fin2(f"v_add_f32 v{M2}, s39, v{M2}")
    bf16_round(fin2, M2, M2)
    fin2(f"""
    s_lshl_b32 s39, s99, 6
    s_mov_b64 exec, 0xffff
    buffer_store_dword v{M2}, v216, s[24:27], s39 offen offset:{OFF_MOD} {FL}
    s_sub_u32 s38, 4, s38
    s_cmp_gt_u32 s38, 1
    s_cbranch_scc1 L_m2_done
    s_lshl_b32 s38, s38, 10
    s_and_b32 s39, s99, 31
    s_lshl_b32 s39, s39, 5
    s_add_u32 s38, s38, s39
    s_add_u32 s38, s38, {OFF_MODB}
    v_bfe_u32 v217, v1, 2, 1
    v_lshlrev_b32 v216, 4, v217
    v_bfe_u32 v217, v1, 3, 1
    v_lshl_add_u32 v216, v217, 3, v216
    v_and_b32 v217, 3, v1
    v_lshl_add_u32 v216, v217, 1, v216
    buffer_store_short_d16_hi v{M2}, v216, s[24:27], s38 offen {FL}
    L_m2_done:
    s_mov_b64 exec, -1
    """)
    vm.wait(qid)
    def kread(t):
        off = t * TS
        return f"ds_read_b128 v[{KF}:{KF+3}], v{2 if off < 65536 else 4} offset:{off & 0xffff}"
    def vread(t):
        off = t * TS
        b = VF + 8 * (t & 1)
        r_ = [f"ds_read_b128 v[{b}:{b+3}], v{3 if off < 65536 else 5} offset:{off & 0xffff}",
              f"ds_read_b128 v[{b+4}:{b+7}], v{156 if off < 65536 else 157} offset:{off & 0xffff}"]
        if os.environ.get("PROBE") == "mask" and t >= 2:
            r_ = ["s_mov_b64 exec, s[48:49]"] + r_ + ["s_mov_b64 exec, -1"]
        return r_
    k(f"""
    v_mfma_f32_32x32x16_bf16 v[{S}:{S+15}], v[{KF}:{KF+3}], v[{Q}:{Q+3}], 0
    v_mfma_f32_32x32x16_bf16 v[{S+16}:{S+31}], v[{KF}:{KF+3}], v[{Q+4}:{Q+7}], 0
    s_nop 10
    """)
    att_max16(k, 6, S, True)
    att_max16(k, 7, S + 16, True)
    k("""
    s_nop 1
    v_permlane32_swap_b32 v6, v7
    v_max_f32 v6, v6, v7
    v_sub_f32 v6, 0, v6
    v_mov_b32 v7, v6
    s_nop 1
    v_permlane32_swap_b32 v6, v7
    """)
    for i in range(0, 16, 2):
        k(f"v_pk_mov_b32 v[{C+i}:{C+i+1}], v[6:7], v[6:7] op_sel:[0,0]")
    for i in range(0, 4, 2):
        k(f"v_pk_mov_b32 v[{C+16+i}:{C+17+i}], v[6:7], v[6:7] op_sel:[1,1]")
    k(f"v_mfma_f32_32x32x16_bf16 v[{S}:{S+15}], v[{KF}:{KF+3}], v[{Q}:{Q+3}], v[{C}:{C+15}]")
    for i in range(4, 16, 2):
        k(f"v_pk_mov_b32 v[{C+16+i}:{C+17+i}], v[6:7], v[6:7] op_sel:[1,1]")
    vm.wait(rid[0])
    k("s_barrier")
    for x in vread(0): k(x)
    k("s_nop 1")
    for _ in range(int(os.environ.get('IDLE', '0'))):
        k('s_sleep 32')
    stamp(k, 10)
    jobs = []
    for s in range(32):
        pre = ["s_add_u32 s51, s51, 4096"] if (s and s % 4 == 0) else []
        jobs.append(pre + [f"buffer_load_dwordx4 {wo_reg(s)}, v2, s[24:27], s51 offen offset:{(s%4)*1024} {FL}"])
    for s in range(28):
        for i, sr in enumerate((55, 56)):
            pre = [f"s_add_u32 s{sr}, s{sr}, 4096"] if (s and s % 4 == 0) else []
            jobs.append(pre + [f"buffer_load_dwordx4 a[{8*s+4*i}:{8*s+4*i+3}], v2, s[24:27], s{sr} offen offset:{(s%4)*1024} {FL}"])
    w1jobs = []
    for i in range(7):
        pre = [f"s_add_u32 m0, s22, {LDS_W1A + 4096*(i//4)}", f"s_add_u32 s44, s58, s22"] + ([f"s_add_u32 s44, s44, 4096"] if i else []) if i % 4 == 0 else []
        w1jobs.append(pre + [f"buffer_load_dwordx4 v2, s[24:27], s44 offen offset:{1024*(i%4)} sc1 lds"])
    for i in range(21):
        pre = [f"s_add_u32 m0, s23, {4096*(i//4)}", f"s_add_u32 s44, s21, {4096*(i//4)}"] if i % 4 == 0 else []
        w1jobs.append(pre + [f"buffer_load_dwordx4 v2, s[24:27], s44 offen offset:{1024*(i%4)} sc1 lds"])
    modb = ["s_and_b32 s53, s45, 1024", f"s_add_u32 m0, s53, {LDS_MODB}", f"s_add_u32 s53, s53, {OFF_MODB}",
            "buffer_load_dwordx4 v2, s[24:27], s53 offen sc1 lds"]
    vec1 = [f"s_mov_b32 m0, {LDS_VEC}", "s_lshr_b32 s53, s37, 3", "s_lshl_b32 s53, s53, 9", f"s_add_u32 s53, s53, {OFF_MOD + 2*2048}",
            "buffer_load_dwordx4 v149, s[24:27], s53 offen sc1 lds"]
    vec2 = [f"s_mov_b32 m0, {LDS_VEC + 1024}", "s_lshr_b32 s53, s37, 4", "s_lshl_b32 s53, s53, 10", f"s_add_u32 s53, s53, {OFF_MOD + 5*2048}",
            "buffer_load_dwordx4 v2, s[24:27], s53 offen sc1 lds"]
    xj = [[f"buffer_load_dwordx2 v[{140+2*j}:{141+2*j}], v148, s[28:31], s59 offen offset:{16*j}"] for j in range(4)]
    wo_j, w2_j = jobs[:32], jobs[32:]
    NW2 = int(os.environ.get("NW2", "44"))
    w2_late = w2_j[NW2:]
    jobs = w1jobs[:7] + w2_j[:NW2] + wo_j
    late = w1jobs[7:]
    if os.environ.get("PROBE") == "nopf":
        jobs = []; late = []
    vecj = [modb, vec1, vec2]
    pfj = [[f"buffer_load_dwordx4 v[{224+4*i}:{227+4*i}], v2, s[4:7], s20 offen offset:{1024*i}"] for i in range(2)]
    rlj = [["s_add_u32 s12, s12, s1" if i else "s_mov_b32 s12, 0", f"buffer_load_dwordx4 a[{192+4*i}:{195+4*i}], v222, s[8:11], s12 offen"]
           for i in range(4)] if RLATT else []
    m2j = [(["s_add_u32 s15, s15, 6144"] if i else []) + [f"buffer_load_dwordx4 v[{W2M+4*i}:{W2M+4*i+3}], v221, s[4:7], s15 offen"]
           for i in range(4)]
    bg = L()
    for p in range(4):
        for i in range(4):
            src = W2M + 4 * p + i
            t_ = 216 + 2 * (i & 1)
            bg(f"v_lshlrev_b32 v{t_}, 16, v{src}")
            bg(f"v_and_b32 v{t_+1}, 0xffff0000, v{src}")
            if p == 0:
                bg(f"v_pk_mul_f32 v[{M2+2*i}:{M2+2*i+1}], v[{t_}:{t_+1}], v[{C2+2}:{C2+3}] op_sel_hi:[1,0]")
            else:
                sel = "op_sel:[0,1,0] op_sel_hi:[1,1,1]" if p & 1 else "op_sel_hi:[1,0,1]"
                cr = C2 + 2 + (p & 2)
                bg(f"v_pk_fma_f32 v[{M2+2*i}:{M2+2*i+1}], v[{t_}:{t_+1}], v[{cr}:{cr+1}], v[{M2+2*i}:{M2+2*i+1}] {sel}")
    mod_reduce(bg, M2, C2, C2 + 1, 0, LDS_MRED2)
    bg = [x for x in bg if not x.startswith("s_nop")]
    U_RL, U_FLAG, U_XL, U_XC = 4, (30 if TOKP else 20), (48 if TOKP else 44), (54 if TOKP else 50)
    U_M2, U_BG, U_FIN, U_MFLAG, U_ML, U_MC = (38 if TOKP else 32), 56, 68, 76, 112, 118
    if RLATT:
        U_RL, U_FLAG, U_XL, U_XC = 34, 46, 60, 66
        U_M2, U_BG, U_FIN, U_MFLAG = 47, 62, 74, 80
    def flagblk(lab, off, cond, xcc=False):
        val = ["s_getreg_b32 s38, hwreg(HW_REG_XCC_ID, 0, 4)", "s_xor_b32 s38, s38, s98"] if xcc else ["s_mov_b32 s38, s98"]
        return cond + val + [f"s_add_u32 s39, s0, {off}", "s_mov_b64 exec, 1", "v_mov_b32 v6, 0", "v_mov_b32 v7, s38",
                             f"buffer_store_dword v7, v6, s[24:27], s39 offen {FL}", "s_mov_b64 exec, -1", f"{lab}:"]
    def chk(lim):
        return ["v_xor_b32 v150, s98, v150", "v_xor_b32 v151, s98, v151", "v_xor_b32 v152, s98, v152", "v_xor_b32 v153, s98, v153",
                "v_or3_b32 v154, v150, v151, v152", "v_or_b32 v154, v154, v153", f"v_cmp_lt_u32 vcc, {lim}, v154"]
    for tag, off, lim in (("xid", OFF_XID, 0), ("mid", OFF_XID + 8192, 15)):
        OOL.append([f"L_{tag}_retry:", "s_mov_b32 s39, 0x40000", f"s_mov_b32 s53, {off}", f"L_{tag}_spin:",
                    f"buffer_load_dwordx4 v[150:153], v155, s[24:27], s53 offen {FL}", "s_sub_u32 s39, s39, 1", "s_waitcnt vmcnt(0)"] + chk(lim) +
                   [f"s_cbranch_scc1 L_{tag}_ok", "s_sleep 32", f"s_cbranch_vccnz L_{tag}_spin", f"s_branch L_{tag}_ok"])
    for u in range(128):
        t = u >> 1
        side = {}
        def add(slot, xs):
            side.setdefault(slot, []).extend(xs)
        def place(d, slot):
            ms = (7 if u % 2 == 0 else 14) if slot == 1 else 21
            if len(d) == 2 and d[0].startswith("s_add_u32 m0"):
                add(ms - 1, d[:1]); add(ms, d[1:])
            else:
                add(ms, d)
        def put(d, slot):
            place(d, slot)
            return vm.tick()
        if u % 2 == 1 or u == 0:
            add(7, ["s_waitcnt lgkmcnt(0)"])
        if len(rid) < 32:
            place(dma(), 1)
        elif rlj:
            rlid = put(rlj.pop(0), 1)
        elif pfj:
            put(pfj.pop(0), 1)
        elif xj:
            put(xj.pop(0), 1)
        elif U_M2 <= u < U_M2 + 4:
            m2id = put(m2j[u - U_M2], 1)
        elif vecj and u > U_MC:
            put(vecj.pop(0), 1)
        elif jobs and u > U_XC and (u > U_MFLAG or len(jobs) > 24):
            put(jobs.pop(0), 1)
        if u == U_BG:
            add(7, [vm.wait_str(m2id)])
        if u > U_BG:
            for sl in (4, 6, 8, 11, 13, 18, 20, 25):
                if bg:
                    add(sl, [bg.pop(0)])
        if u % 2 == 0 and t < 63:
            pre = []
            if u == 2:
                pre = [vm.wait_str(rid[3]), "s_barrier"]
            elif u == 14:
                pre = [vm.wait_str(rid[11 if TOKP else 15]), "s_barrier"]
            elif u == U_FLAG:
                pre = [vm.wait_str(max(rid[31], rlst)), "s_barrier"] + flagblk("L_noxid", OFF_XID, ["s_cmp_lg_u32 s3, 1", "s_cbranch_scc1 L_noxid"])
            elif u == U_FIN:
                assert not bg
                pre = ["s_barrier"] + list(fin2)
                finid = vm.n
            elif u == U_MFLAG:
                pre = flagblk("L_nomid", OFF_XID + 8192, ["s_cmp_lg_u32 s3, 1", "s_cbranch_scc1 L_nomid", vm.wait_str(finid)], xcc=True)
            elif u == 86:
                pre = ["s_barrier"]
            add(14, pre + [kread(t + 1)] + vread(t + 1))
        if u == U_RL - 2:
            if RLATT:
                add(16, [vm.wait_str(rlid)])
            for i in range(4):
                add(17 + 2 * i, [f"ds_write_b128 v220, a[{192+4*i}:{195+4*i}] offset:{1024*i}"])
        if u == U_RL:
            for f in range(4):
                add(17 + 2 * f, [f"ds_read_b64_tr_b16 v[{RD+4*f}:{RD+4*f+1}], v{RA+f}"])
                add(18 + 2 * f, [f"ds_read_b64_tr_b16 v[{RD+4*f+2}:{RD+4*f+3}], v{RA+4+f}"])
        if U_RL + 1 <= u < U_RL + 9 and u % 2 == 1:
            f = (u - U_RL - 1) // 2
            add(14, [f"buffer_store_dwordx4 v[{RD+4*f}:{RD+4*f+3}], v2, s[24:27], s{16+f} offen {FL}"])
            rlst = vm.tick()
        if len(rid) < 32 and (not TOKP or u < 4):
            place(dma(), 17)
        elif u in (U_XL, U_ML):
            off = OFF_XID if u == U_XL else OFF_XID + 8192
            xidid = put([f"s_mov_b32 s53, {off}", f"buffer_load_dwordx4 v[150:153], v155, s[24:27], s53 offen {FL}"], 17)
        elif u in (U_XC, U_MC):
            tag = "xid" if u == U_XC else "mid"
            add(17, [vm.wait_str(xidid)] + chk(0 if u == U_XC else 15))
            add(24, [f"s_cbranch_vccnz L_{tag}_retry", f"L_{tag}_ok:"])
        elif u >= 87 and late:
            put(late.pop(0), 17)
        elif jobs and u > U_XC + (3 if RLATT else 7) and (RLATT or u % 4 != 3) and (u > U_MFLAG or len(jobs) > 24):
            put(jobs.pop(0), 17)
        if DIAG and os.environ.get('ATTST') and u in (14, 24, 32, 52, 60, 76, 88, 108):
            stamp(k, (14, 24, 32, 52, 60, 76, 88, 108).index(u))
        att_unit(k, u, side, last=(u == 127))
    assert not vecj
    assert not jobs and not late, (len(jobs), len(late))
    k(f"""
    s_nop 0
    v_cvt_pk_bf16_f32 v{P+7}, v{S+30}, v{S+31}
    s_nop 1
    v_mfma_f32_32x32x16_bf16 v[{O+16}:{O+31}], v[{VF+12}:{VF+15}], v[{P+4}:{P+7}], v[{O+16}:{O+31}]
    s_mov_b32 s53, 0x53800000
    v_cmp_nge_f32 vcc, s53, v{O+8}
    s_nop 9
    v_cmp_nge_f32 s[42:43], s53, v{O+24}
    s_nop 3
    s_or_b64 vcc, vcc, s[42:43]
    s_cbranch_scc0 L_att_fin
    s_branch {'L_att_fin' if os.environ.get('PROBE') else 'L_att_fallback'}
    """)
    k.label("L_att_fin")
    stamp(k, 11)
    XR, XU, GA, A2 = 140, 44, 108, 124
    k(f"""
    v_rcp_f32 v6, v{O+8}
    v_rcp_f32 v7, v{O+24}
    s_lshl_b32 s42, s36, 3
    s_and_b32 s43, s37, 7
    s_add_u32 s42, s42, s43         ; t3 (tok32)
    v_lshrrev_b32 v8, 5, v1         ; h
    v_and_b32 v9, 31, v1            ; tok
    """)
    dual_begin(k)
    for b_ in range(2):
        for i in range(8):
            k(f"v_mul_f32 v{O+16*b_+i}, v{6+b_}, v{O+16*b_+i}")
        for i in range(4):
            k(f"v_cvt_pk_bf16_f32 v{P+4*b_+i}, v{O+16*b_+2*i}, v{O+16*b_+2*i+1}")
        if b_:
            k("s_add_u32 s46, s46, 32768")
        k(f"buffer_store_dwordx4 v[{P+4*b_}:{P+4*b_+3}], v2, s[24:27], s46 offen {DF}")
    k(f"""
    v_add_u32 v5, 0x20000, v2
    v_lshrrev_b32 v12, 4, v9
    v_lshlrev_b32 v12, 14, v12
    v_and_b32 v13, 15, v9
    v_lshl_add_u32 v12, v13, 4, v12
    v_lshl_add_u32 v12, v8, 8, v12
    v_lshlrev_b32 v13, 3, v9
    s_lshl_b32 s43, s3, 10
    s_lshl_b32 s44, s42, 15
    s_lshl_b32 s45, s50, 10
    s_add_u32 s44, s44, s45
    s_add_u32 s45, s44, {OFF_X2S}
    s_add_u32 s44, s44, {OFF_X2}
    s_lshl_b32 s46, s42, 12
    s_lshl_b32 s47, s50, 8
    s_add_u32 s46, s46, s47
    s_add_u32 s46, s46, {OFF_ST2}
    s_lshl_b32 s47, s42, 15
    s_add_u32 s47, s47, s43
    s_add_u32 s47, s47, {OFF_O}
    s_add_u32 m0, s43, {LDS_OST}
    """)
    k(f"""
    v_lshl_or_b32 v150, v151, 4, v150
    v_lshl_or_b32 v152, v153, 4, v152
    v_lshl_or_b32 v150, v152, 8, v150
    v_and_b32 v151, 1, v1
    v_readlane_b32 s38, v150, 0
    v_readlane_b32 s39, v150, 1
    v_cmp_eq_u32 vcc, 1, v151
    v_mov_b32 v152, s38
    v_mov_b32 v153, s39
    v_cndmask_b32 v152, v152, v153, vcc
    v_cmp_ne_u32 vcc, v152, v150
    s_nop 3
    s_cmp_eq_u64 vcc, 0
    s_cselect_b32 s{S_FAST}, 1, 0
    """)
    def w2some(n):
        for _ in range(n):
            for y in w2_late.pop(0):
                k(y)
        return n
    ND = [int(x) for x in os.environ.get("ND", "0,0,0").split(",")]
    signal(k, 1, 54, 40, 32, nafter=w2some(ND[0]), fast=bool(TOKP))
    dual_end(k, 'e1')
    stamp(k, 12)
    k(f"""
    s_lshl_b32 s38, s3, 7
    s_add_u32 s38, s38, {LDS_VEC}
    v_lshlrev_b32 v10, 4, v8
    v_add_u32 v10, s38, v10
    """)
    for j in range(4):
        k(f"ds_read_b128 v[{GA+4*j}:{GA+4*j+3}], v10 offset:{32*j}")
        k(f"ds_read_b128 v[{A2+4*j}:{A2+4*j+3}], v10 offset:{512+32*j}")
    for i in range(8):
        k(f"v_lshlrev_b32 v{XU+2*i}, 16, v{XR+i}")
        k(f"v_and_b32 v{XU+2*i+1}, 0xffff0000, v{XR+i}")
    MA_, WU, UA = 60, 92, 36
    k(f"""
    v_add_u32 v14, s43, v2
    v_add_u32 v15, s43, v4
    v_add_u32 v16, s43, v5
    v_and_b32 v17, 15, v1
    v_lshrrev_b32 v18, 4, v1
    v_lshlrev_b32 v17, 10, v17
    v_lshl_add_u32 v17, v18, 4, v17
    v_add_u32 v17, {LDS_MODB}, v17
    s_mov_b32 s48, 0x00030003
    s_mov_b32 s49, 0x00030003
    """)
    for i in range(32):
        k(f"v_mov_b32 v{MA_+i}, 0")
    def mread(s0):
        k("s_mov_b64 exec, s[48:49]")
        for s in range(s0, s0 + 8):
            k(f"ds_read_b128 v[{MA_+4*(s%8)}:{MA_+4*(s%8)+3}], v17 offset:{64*s}")
        k("s_mov_b64 exec, -1")
    def uread(s):
        for h in range(2):
            addr = w1_lds(s * 7) + 4 * h * 1024
            r = WU + 8 * (s & 1) + 4 * h
            k(f"ds_read_b128 v[{r}:{r+3}], v{14 + (addr >> 16)} offset:{addr & 0xffff}")
    def ut_steps(s0, s1):
        for s in range(s0, s1):
            if s < 15:
                uread(s + 1)
                k("s_waitcnt lgkmcnt(2)")
            else:
                k("s_waitcnt lgkmcnt(0)")
            for h in range(2):
                u_ = UA + 4 * h
                r = WU + 8 * (s & 1) + 4 * h
                c = "0" if s == 0 else f"v[{u_}:{u_+3}]"
                k(f"v_mfma_f32_16x16x32_bf16 v[{u_}:{u_+3}], v[{MA_+4*(s%8)}:{MA_+4*(s%8)+3}], v[{r}:{r+3}], {c}")
    mread(0)
    uread(0)
    UTE = int(os.environ.get("UTE", "8"))
    ut_steps(0, UTE)
    if UTE == 8:
        mread(8)
    stamp(k, 13)
    wait_edge(k, 1, 36, 32)
    stamp(k, 14)
    vm.n = 0
    oid = []
    for i in range(8):
        if i:
            k("s_add_u32 m0, m0, 4096")
            k("s_add_u32 s47, s47, 4096")
        oid.append(vm.op(f"buffer_load_dwordx4 v2, s[24:27], s47 offen {FL} lds"))
    if UTE < 8:
        ut_steps(UTE, 8)
        mread(8)
    ut_steps(8, 16)
    k("s_nop 6")
    for h in range(2):
        u_ = UA + 4 * h
        d = WU + 4 * h
        for i in range(2):
            bf16_round(k, 18 + i, u_ + i)
        for i in range(2):
            k(f"v_sub_f32 v{u_+i}, v{u_+i}, v{18+i}")
        for i in range(2):
            k(f"v_cvt_pk_bf16_f32 v{d+i}, v{18+i}, v{u_+i}")
        k(f"v_mov_b32 v{d+2}, 0")
        k(f"v_mov_b32 v{d+3}, 0")
        k(f"ds_write_b128 v15, v[{d}:{d+3}] offset:{LDS_UT + 4*h*1024 - 65536}")
    AC, OFR = 20, 60
    bounds = [int(x) for x in os.environ.get("P3B", "0,8,20").split(",")] + [32]
    ahead = 6
    def ord_(s2):
        if s2 in bounds:
            vm.wait(oid[bounds[bounds.index(s2) + 1] // 4 - 1])
            k("s_barrier")
        k(lds_rd(f"v[{OFR+4*(s2%8)}:{OFR+4*(s2%8)+3}]", LDS_OST + s2 * 1024))
    for s in range(ahead):
        ord_(s)
    for s in range(32):
        issued = min(32, s + ahead)
        k(f"s_waitcnt lgkmcnt({issued - 1 - s})")
        c = "0" if s == 0 else f"v[{AC}:{AC+15}]"
        k(f"v_mfma_f32_32x32x16_bf16 v[{AC}:{AC+15}], {wo_reg(s)}, v[{OFR+4*(s%8)}:{OFR+4*(s%8)+3}], {c}")
        if s + ahead < 32:
            ord_(s + ahead)
    k("s_nop 11")
    stamp(k, 15)
    for i in range(8):
        k(f"v_pk_fma_f32 v[{AC+2*i}:{AC+2*i+1}], v[{GA+2*i}:{GA+2*i+1}], v[{AC+2*i}:{AC+2*i+1}], v[{XU+2*i}:{XU+2*i+1}]")
    for i in range(8):
        k(f"v_pk_mul_f32 v[{A2+2*i}:{A2+2*i+1}], v[{A2+2*i}:{A2+2*i+1}], v[{AC+2*i}:{AC+2*i+1}]")
    for i in range(8):
        k(f"v_cvt_pk_bf16_f32 v{60+i}, v{A2+2*i}, v{A2+2*i+1}")
    dual_begin(k)
    k(f"buffer_store_dwordx4 v[60:63], v12, s[24:27], s45 offen {DF}")
    k(f"buffer_store_dwordx4 v[64:67], v12, s[24:27], s45 offen offset:512 {DF}")
    k(f"v_pk_add_f32 v[14:15], v[{AC}:{AC+1}], v[{AC+2}:{AC+3}]")
    k(f"v_pk_mul_f32 v[16:17], v[{AC}:{AC+1}], v[{AC}:{AC+1}]")
    for i in range(1, 8):
        if i >= 2:
            k(f"v_pk_add_f32 v[14:15], v[14:15], v[{AC+2*i}:{AC+2*i+1}]")
        k(f"v_pk_fma_f32 v[16:17], v[{AC+2*i}:{AC+2*i+1}], v[{AC+2*i}:{AC+2*i+1}], v[16:17]")
    k("v_add_f32 v14, v14, v15")
    k("v_add_f32 v15, v16, v17")
    k("v_mov_b32 v16, v14")
    k("v_mov_b32 v17, v15")
    for i in range(2):
        k(f"v_cvt_pk_bf16_f32 v{144+i}, v{AC+2*i}, v{AC+2*i+1}")
    k("v_permlane32_swap_b32 v16, v14")
    k("v_permlane32_swap_b32 v17, v15")
    k("v_pk_add_f32 v[14:15], v[14:15], v[16:17]")
    k("s_mov_b32 exec_hi, 0")
    k(f"buffer_store_dwordx2 v[14:15], v13, s[24:27], s46 offen {DF}")
    k("s_mov_b32 exec_hi, -1")
    for i in range(2, 8):
        k(f"v_cvt_pk_bf16_f32 v{144+i}, v{AC+2*i}, v{AC+2*i+1}")
    k("v_mov_b32 v156, v12")
    k("s_mov_b32 s59, s44")
    x2st = [f"buffer_store_dwordx4 v[144:147], v156, s[24:27], s59 offen {FL}", f"buffer_store_dwordx4 v[148:151], v156, s[24:27], s59 offen offset:512 {FL}"]
    k("""
    s_lshr_b32 s40, s42, 2          ; E3 group
    s_and_b32 s41, s42, 3
    s_lshl_b32 s41, s41, 2
    s_lshr_b32 s43, s37, 3
    s_add_u32 s41, s41, s43         ; member
    """)
    signal(k, 2, 40, 41, 16, nafter=w2some(ND[1]), fast=True)
    dual_end(k, 'e2')
    stamp(k, 16)
    ACC4, WF, ST, SB = 8, 64, 120, 136
    k(f"""
    s_lshl_b32 s40, s36, 1
    s_bfe_u32 s41, s37, 0x10002
    s_add_u32 s40, s40, s41        ; tb4
    s_lshl_b32 s44, s40, 2
    s_add_u32 s44, s44, s3         ; tok32
    s_lshl_b32 s45, s44, 15
    s_add_u32 s45, s45, {OFF_X2S}
    s_add_u32 s46, s45, 16384
    v_and_b32 v3, 15, v1
    v_lshrrev_b32 v152, 4, v1
    v_lshlrev_b32 v153, 3, v3
    v_lshl_add_u32 v153, v152, 10, v153
    s_lshl_b32 s47, s44, 12
    s_add_u32 s47, s47, {OFF_ST2}
    s_mul_i32 s42, s44, {112*1024}
    s_mul_i32 s43, s57, {7*1024}
    s_add_u32 s42, s42, s43
    s_add_u32 s42, s42, {OFF_H}
    s_add_u32 s43, s42, 4096
    """)
    NA = int(os.environ.get("P4A", "4"))
    passes = [list(range(NA)), list(range(NA, 7))] if NA < 7 else [list(range(7))]
    fseq = [(s, i) for ps in passes for s in range(17) for i in ps]
    RING, LA = 14, int(os.environ.get("P4LA", "10"))
    def wreg(n):
        return f"v[{WF+4*(n%RING)}:{WF+4*(n%RING)+3}]"
    def wrd(n):
        s, i = fseq[n]
        return lds_rd(wreg(n), w1_lds(s * 7 + i))
    for n in range(LA):
        k(wrd(n))
    wait_edge(k, 2, 40, 16)
    wbl2(k, "a")
    stamp(k, 17)
    vm.n = 0
    xid = []
    def xload():
        s = len(xid)
        if s >= 16:
            return
        if s and s % 4 == 0:
            k("s_add_u32 s45, s45, 4096")
            k("s_add_u32 s46, s46, 4096")
        vm.op(f"buffer_load_dwordx4 {wo_reg(2*s)}, v2, s[24:27], s45 offen offset:{(s%4)*1024} {FL}")
        xid.append(vm.op(f"buffer_load_dwordx4 {wo_reg(2*s+1)}, v2, s[24:27], s46 offen offset:{(s%4)*1024} {FL}"))
    for s in range(int(os.environ.get("P4D", "7"))):
        xload()
    stl = [f"buffer_load_dwordx2 v[{ST+8*j+2*pp}:{ST+8*j+2*pp+1}], v153, s[24:27], s47 offen offset:{256*pp+128*j} {FL}"
           for j in range(2) for pp in range(4)]
    fill = L()
    for j in range(2):
        b = ST + 8 * j
        fill(f"v_pk_add_f32 v[{b}:{b+1}], v[{b}:{b+1}], v[{b+2}:{b+3}]")
        fill(f"v_pk_add_f32 v[{b+4}:{b+5}], v[{b+4}:{b+5}], v[{b+6}:{b+7}]")
        fill(f"v_pk_add_f32 v[{b}:{b+1}], v[{b}:{b+1}], v[{b+4}:{b+5}]")
    regs = [ST, ST + 1, ST + 8, ST + 9]
    tmp = [ST + 2, ST + 3, ST + 10, ST + 11]
    for op in ("v_permlane16_swap_b32", "v_permlane32_swap_b32"):
        for r, t in zip(regs, tmp):
            fill(f"v_mov_b32 v{t}, v{r}")
        fill("s_nop 1")
        for r, t in zip(regs, tmp):
            fill(f"{op} v{t}, v{r}")
        for r, t in zip(regs, tmp):
            fill(f"v_add_f32 v{r}, v{t}, v{r}")
    for j in range(2):
        b = ST + 8 * j
        ln_stats_finish(fill, b, b + 1, b + 4, b + 5, None, std_out=b + 6)
        fill(f"v_cvt_pk_bf16_f32 v{SB+4*j}, -v{b+4}, -v{b+4}")
        fill(f"v_cvt_pk_bf16_f32 v{SB+4*j+1}, v{b+6}, v{b+6}")
        fill(f"v_mov_b32 v{SB+4*j+2}, 0")
        fill(f"v_mov_b32 v{SB+4*j+3}, 0")
    fill(f"""
    v_lshlrev_b32 v154, 2, v3
    s_lshl_b32 s41, s3, 7
    v_add_u32 v154, s41, v154
    v_add_u32 v154, {LDS_R}, v154
    """)
    def tile_epi(i):
        a = ACC4 + 8 * i
        e = L()
        for q in range(4):
            e(f"v_cvt_pk_bf16_f32 v{a+q}, v{a+2*q}, v{a+2*q+1}")
        for q in range(4):
            e(f"v_pk_max_i16 v{a+q}, v{a+q}, 0")
        t = L()
        t(f"v_permlane16_swap_b32 v{a}, v{a+2}")
        t(f"v_permlane16_swap_b32 v{a+1}, v{a+3}")
        t(f"buffer_store_dwordx4 v[{a}:{a+3}], v2, s[24:27], s{42 if i < 4 else 43} offen offset:{(i%4)*1024} {FL}")
        return e, t
    def epi_seq(tiles):
        out = []
        prev = None
        for i in tiles:
            e, t = tile_epi(i)
            out += e
            if prev:
                out += prev
            prev = t
        return out + ["s_nop 1"] + prev
    FS = int(os.environ.get("P4FS", "7"))
    nrd = LA
    n = 0
    for pi, ps in enumerate(passes):
        for s in range(17):
            last = n + len(ps) - 1
            w = f"lgkmcnt({nrd - 1 - last})"
            if pi == 0 and s < 16:
                k(vm.wait_str(xid[s]) + " " + w)
            else:
                k("s_waitcnt " + w)
            if pi == 0 and s == FS:
                vm.wait(sid)
            if pi == 0 and s == 16:
                while fill:
                    k(fill.pop(0))
                k("s_nop 1")
            if pi == 1 and s == 0:
                fill = L()
                fill(f"""
                ds_write_b32 v154, v{ST+5}
                ds_write_b32 v154, v{ST+13} offset:64
                v_lshlrev_b32 v158, 8, v3
                v_mov_b32 v159, s98
                s_lshl_b32 s50, s40, 12
                s_add_u32 s50, s50, {OFF_FLAG + 3*65536}
                """)
                extra_lgkm = 2
            if pi == 1 and s == 1:
                fill = epi_seq(passes[0])
                fill = [x for x in fill if not x.startswith("s_nop")]
                fill += [l.strip() for l in f"""s_lshl_b32 s51, s57, 8
                s_add_u32 s51, s51, s50
                s_lshl_b32 s58, s36, 2
                s_bfe_u32 s41, s37, 0x20001
                s_add_u32 s58, s58, s41
                s_lshl_b32 s58, s58, 1
                s_and_b32 s41, s3, 1
                s_add_u32 s58, s58, s41
                s_xor_b32 s41, s58, 1
                s_mul_i32 s46, s58, {112*1024}
                s_mul_i32 s47, s41, {112*1024}
                s_mul_i32 s41, s3, {28*1024}
                s_add_u32 s41, s41, {OFF_H}
                s_add_u32 s46, s46, s41
                s_add_u32 s47, s47, s41""".split("\n")]
            if pi == 1 and s == int(os.environ.get("SIGA", "15")):
                assert not fill
                k("s_waitcnt vmcnt(0)")
                k("s_barrier")
                for x in flag_store("L_f4a", 51, 0): k(x)
            m_ = 0
            for i in ps:
                for j in range(2):
                    a = ACC4 + 8 * i + 4 * j
                    c = "0" if s == 0 else f"v[{a}:{a+3}]"
                    bop = wo_reg(2 * s + j) if s < 16 else f"v[{SB+4*j}:{SB+4*j+3}]"
                    k(f"v_mfma_f32_16x16x32_bf16 v[{a}:{a+3}], {wreg(n)}, {bop}, {c}")
                    if j == 1 and nrd < len(fseq):
                        k(wrd(nrd)); nrd += 1
                    elif pi == 0 and m_ == 0:
                        xload()
                    elif pi == 0 and m_ in (2, 4, 6) and stl and s >= 1:
                        sid = vm.op(stl.pop(0))
                    elif pi == 0 and s >= 10 and m_ == 6 and x2st:
                        vm.op(x2st.pop(0))
                    elif pi == 0 and s >= 10 and m_ in (2, 4) and len(w2_late) > ND[2]:
                        for y in w2_late.pop(0):
                            k(y)
                        vm.tick()
                    if (pi == 1 or s >= FS) and fill:
                        k(fill.pop(0))
                        if fill and j == 0:
                            k(fill.pop(0))
                    m_ += 1
                n += 1
    assert not fill and not x2st and len(w2_late) == ND[2], (len(fill), len(w2_late))
    stamp(k, 18)
    vm.n = 0
    pa = vm.op(f"buffer_load_dword v157, v158, s[24:27], s50 offen {FL}")
    k("s_nop 4")
    for x in epi_seq(passes[-1]):
        k(x)
        if x.startswith("buffer"):
            vm.tick()
    stamp(k, 19)
    vm.wait(pa)
    k("v_cmp_ne_u32 vcc, s98, v157")
    for tag, imm in (("a", 0), ("b", 128)):
        OOL.append([f"L_p4{tag}_spin:", "s_mov_b32 s39, 0x40000", f"L_p4{tag}_spin2:",
                    f"buffer_load_dword v157, v158, s[24:27], s50 offen offset:{imm} {FL}", "s_sub_u32 s39, s39, 1", "s_waitcnt vmcnt(0)",
                    "v_cmp_ne_u32 vcc, s98, v157", f"s_cbranch_scc1 L_p4{tag}_ok", "s_nop 1", f"s_cbranch_vccnz L_p4{tag}_spin2", f"s_branch L_p4{tag}_ok"])
    ACC5, RB, DEPTH = 8, 72, 10
    G5, X5, R5 = 224, 240, 248
    kord = [7 * p + i for p in range(4) for i in passes[0]] + [7 * p + i for p in range(4) for i in passes[1]]
    NAK = 4 * len(passes[0])
    hid = []
    base = [None]
    def hload():
        s = len(hid)
        if s >= 28:
            return
        r = RB + 8 * (s % DEPTH)
        ks = kord[s]
        if base[0] is None or not (0 <= ks - base[0] < 4):
            base[0] = ks
            k(f"s_add_u32 s44, s46, {1024*ks}")
            k(f"s_add_u32 s45, s47, {1024*ks}")
        off = (ks - base[0]) * 1024
        vm.op(f"buffer_load_dwordx4 v[{r}:{r+3}], v2, s[24:27], s44 offen offset:{off} {FL}")
        hid.append(vm.op(f"buffer_load_dwordx4 v[{r+4}:{r+7}], v2, s[24:27], s45 offen offset:{off} {FL}"))
    k("s_nop 1")
    k("s_cbranch_vccnz L_p4a_spin")
    k.label("L_p4a_ok")
    stamp(k, 22)
    P5D = int(os.environ.get("P5D", "6"))
    for s in range(P5D):
        hload()
    f5 = L()
    f5(f"""
    v_lshrrev_b32 v250, 5, v1
    v_and_b32 v251, 31, v1
    v_lshlrev_b32 v252, 4, v250
    s_and_b32 s41, s52, 7
    s_lshl_b32 s41, s41, 7
    s_add_u32 s41, s41, {LDS_VEC + 1024}
    v_add_u32 v252, s41, v252
    v_lshrrev_b32 v249, 4, v251
    v_lshlrev_b32 v249, 14, v249
    v_and_b32 v254, 15, v251
    v_lshl_add_u32 v249, v254, 4, v249
    v_lshl_add_u32 v249, v250, 8, v249
    s_lshl_b32 s42, s58, 15
    s_lshl_b32 s41, s52, 10
    s_add_u32 s43, s42, s41
    s_add_u32 s43, s43, {OFF_X2}
    s_and_b32 s41, s58, 3
    s_lshl_b32 s41, s41, 7
    s_add_u32 s41, s41, {LDS_R}
    v_lshlrev_b32 v254, 2, v251
    v_add_u32 v254, s41, v254
    v_lshlrev_b32 v253, 10, v251
    v_lshl_add_u32 v253, v250, 4, v253
    s_lshl_b32 s41, s52, 6
    s_add_u32 s42, s42, s41
    """)
    for j in range(4):
        f5(f"ds_read_b128 v[{G5+4*j}:{G5+4*j+3}], v252 offset:{32*j}")
    f5(f"ds_read_b32 v{R5}, v254")
    for x in f5: k(x)
    f5 = L()
    f5("s_waitcnt lgkmcnt(0)")
    for i in range(16):
        f5(f"v_mul_f32 v{G5+i}, v{R5}, v{G5+i}")
    for t in (1, 2, 3):
        f5(f"""
        s_xor_b32 s56, s3, {t}
        s_mul_i32 s56, s56, 12288
        s_add_u32 s56, s56, {(t-1)*4096}
        v_add_u32 v{3+t}, s56, v2
        """)
    f5("s_mul_i32 s56, s3, 12288")
    f5("v_add_u32 v3, s56, v2")
    PBS = int(os.environ.get("PBS", "4"))
    checked = False
    for s in range(28):
        vm.wait(hid[s])
        if s == 1:
            k("s_barrier")
            for x in flag_store("L_f4b", 51, 128): k(x)
        if len(hid) == NAK and not checked and hid[s] > pb:
            k("v_cmp_ne_u32 vcc, s98, v157")
        r = RB + 8 * (s % DEPTH)
        ks = kord[s]
        A0, A1 = f"a[{8*ks}:{8*ks+3}]", f"a[{8*ks+4}:{8*ks+7}]"
        B0, B1 = f"v[{r}:{r+3}]", f"v[{r+4}:{r+7}]"
        for t, (a, b) in enumerate(((A0, B0), (A0, B1), (A1, B0), (A1, B1))):
            acc = ACC5 + 16 * t
            c = "0" if s == 0 else f"v[{acc}:{acc+15}]"
            k(f"v_mfma_f32_32x32x16_bf16 v[{acc}:{acc+15}], {a}, {b}, {c}")
            if t == 0 and s == PBS:
                pb = vm.op(f"buffer_load_dword v157, v158, s[24:27], s50 offen offset:128 {FL}")
            if t == 1 and len(hid) == NAK and not checked and hid[s] > pb:
                k("s_cbranch_vccnz L_p4b_spin")
                k.label("L_p4b_ok")
                checked = True
            if t in (0, 1, 2) and (len(hid) < NAK or checked) and len(hid) - s <= P5D:
                hload()
            if t == 2 and s in (14, 15):
                vm.op(f"buffer_load_dwordx4 v[{X5+4*(s-14)}:{X5+4*(s-14)+3}], v249, s[24:27], s43 offen offset:{512*(s-14)} {FL}")
            if t == 3:
                for _ in range(3):
                    if f5:
                        k(f5.pop(0))
    assert not f5 and checked
    XU5, TMP5 = 72, 88
    stamp(k, 23)
    XU5, TMP5 = 160, 176
    for i in range(5):
        k(f"v_lshlrev_b32 v{XU5+2*i}, 16, v{X5+i}")
        k(f"v_and_b32 v{XU5+2*i+1}, 0xffff0000, v{X5+i}")
    for t in (1, 2, 3):
        for q in range(4):
            k(f"ds_write_b128 v{3+t}, v[{ACC5+16*t+4*q}:{ACC5+16*t+4*q+3}] offset:{q*1024}")
    for i in range(5, 8):
        k(f"v_lshlrev_b32 v{XU5+2*i}, 16, v{X5+i}")
        k(f"v_and_b32 v{XU5+2*i+1}, 0xffff0000, v{X5+i}")
    k(f"""
    s_waitcnt lgkmcnt(0)
    s_barrier
    """)
    for i in range(12):
        k(f"ds_read_b128 v[{TMP5+4*i}:{TMP5+4*i+3}], v3 offset:{i*1024}")
    for sl in range(3):
        k(f"s_waitcnt lgkmcnt({8-4*sl})")
        for i in range(8):
            k(f"v_pk_add_f32 v[{ACC5+2*i}:{ACC5+2*i+1}], v[{ACC5+2*i}:{ACC5+2*i+1}], v[{TMP5+16*sl+2*i}:{TMP5+16*sl+2*i+1}]")
    stamp(k, 24)
    for i in range(8):
        k(f"v_pk_fma_f32 v[{ACC5+2*i}:{ACC5+2*i+1}], v[{G5+2*i}:{G5+2*i+1}], v[{ACC5+2*i}:{ACC5+2*i+1}], v[{XU5+2*i}:{XU5+2*i+1}]")
    for i in range(8):
        k(f"v_cvt_pk_bf16_f32 v{TMP5+i}, v{ACC5+2*i}, v{ACC5+2*i+1}")
    k("s_nop 0")
    for p in range(2):
        t = TMP5 + 4 * p
        k(f"v_permlane32_swap_b32 v{t}, v{t+2}")
        k(f"v_permlane32_swap_b32 v{t+1}, v{t+3}")
        k(f"buffer_store_dwordx4 v[{t}:{t+3}], v253, s[32:35], s42 offen offset:{32*p} {os.environ.get('OUTFL', '')}")
    endpgm(k)
    k.label("L_att_fallback")
    k(f"""
    s_mov_b32 s42, 0
    s_mov_b32 s43, s47
    v_mov_b32 v6, 0xff800000
    v_mov_b32 v7, 0xff800000
    """)
    k.label("L_att_maxloop")
    k(f"""
    buffer_load_dwordx4 v[{KF}:{KF+3}], v2, s[24:27], s43 offen {FL}
    s_add_u32 s43, s43, 2048
    s_waitcnt vmcnt(0)
    v_mfma_f32_32x32x16_bf16 v[{S}:{S+15}], v[{KF}:{KF+3}], v[{Q}:{Q+3}], 0
    v_mfma_f32_32x32x16_bf16 v[{S+16}:{S+31}], v[{KF}:{KF+3}], v[{Q+4}:{Q+7}], 0
    s_nop 10
    """)
    att_max16(k, 6, S, False)
    att_max16(k, 7, S + 16, False)
    k(f"""
    s_add_u32 s42, s42, 1
    s_cmp_lt_u32 s42, 64
    s_cbranch_scc1 L_att_maxloop
    s_nop 0
    v_permlane32_swap_b32 v6, v7
    v_max_f32 v6, v6, v7
    v_mov_b32 v7, v6
    s_nop 1
    v_permlane32_swap_b32 v6, v7
    v_sub_f32 v6, 0, v6
    v_sub_f32 v7, 0, v7
    """)
    for i in range(16):
        k(f"v_mov_b32 v{C+i}, v6")
        k(f"v_mov_b32 v{C+16+i}, v7")
        k(f"v_mov_b32 v{O+i}, 0")
        k(f"v_mov_b32 v{O+16+i}, 0")
    k("s_mov_b32 s42, 0")
    k("s_mov_b32 s43, s47")
    k.label("L_att_redo")
    k(f"""
    buffer_load_dwordx4 v[{KF}:{KF+3}], v2, s[24:27], s43 offen {FL}
    s_mov_b64 exec, s[48:49]
    buffer_load_dwordx4 v[{VF}:{VF+3}], v3, s[24:27], s43 offen {FL}
    buffer_load_dwordx4 v[{VF+4}:{VF+7}], v3, s[24:27], s43 offen offset:512 {FL}
    s_mov_b64 exec, -1
    s_add_u32 s43, s43, 2048
    s_waitcnt vmcnt(0)
    v_mfma_f32_32x32x16_bf16 v[{S}:{S+15}], v[{KF}:{KF+3}], v[{Q}:{Q+3}], v[{C}:{C+15}]
    v_mfma_f32_32x32x16_bf16 v[{S+16}:{S+31}], v[{KF}:{KF+3}], v[{Q+4}:{Q+7}], v[{C+16}:{C+31}]
    s_nop 10
    """)
    for b in range(2):
        for i in range(16):
            k(f"v_exp_f32 v{S+16*b+i}, v{S+16*b+i}")
        k("s_nop 0")
        for j in range(8):
            k(f"v_cvt_pk_bf16_f32 v{P+j}, v{S+16*b+2*j}, v{S+16*b+2*j+1}")
        k("s_nop 1")
        for h in range(2):
            k(f"v_mfma_f32_32x32x16_bf16 v[{O+16*b}:{O+16*b+15}], v[{VF+4*h}:{VF+4*h+3}], v[{P+4*h}:{P+4*h+3}], v[{O+16*b}:{O+16*b+15}]")
    k(f"""
    s_add_u32 s42, s42, 1
    s_cmp_lt_u32 s42, 64
    s_cbranch_scc1 L_att_redo
    s_nop 10
    s_branch L_att_fin
    """)
    for blk in OOL:
        k.lines += blk
    if DIAG:
        marks = {"L_zspin:": 1, "L_mod_spin:": 2, "L_dbg_spin:": 4, "L_xid_retry:": 8, "L_mid_retry:": 16}
        out = []
        for l in k.lines:
            out.append(l)
            if l in marks:
                out.append(f"s_or_b32 s91, s91, {marks[l]}")
        k.lines = out
    k.label(f"L_end_{k.name}")
    k("s_endpgm")
    k(".fill (65536 + L_pc_here - .) / 4 + 64, 4, 0xbf810000")
    return k, (256, 256, 163840)


DOC = """;
"""


def build(path=OUT):
    ks = [mega()]
    errs = []
    for k, _ in ks:
        errs += k.check()
    for e in errs:
        print(e)
    ref = open(OUT + ".ref").read().split("\n")
    hdr = [l for l in ref if l.startswith(";") and "@launch" not in l and "Override" not in l and "grid=ceil" not in l]
    out = "\n".join(hdr) + "\n"
    for k, (g, b, lds) in ks:
        kn = f"kernel={k.name} " if os.environ.get("ASLIST") else ""
        out += f"; @launch {kn}grid=({g},1,1) block=({b},1,1) lds={lds}\n"
    out += DOC
    out += '.amdgcn_target "amdgcn-amd-amdhsa--gfx950"\n'
    codes, kds = zip(*[k.text() for k, _ in ks])
    out += "".join(codes)
    out += '.section .rodata,"a"\n' + "".join(kds)
    open(path, "w").write(out)
    print("wrote", path, len(out), "bytes;", len(errs), "checker errors")
    return len(errs)


if __name__ == "__main__":
    sys.exit(1 if build(sys.argv[1] if len(sys.argv) > 1 else OUT) else 0)
```
